```python
import torch

def _softmax(x, axis=-1):
    return torch.softmax(x, dim=axis)
def _gelu(x):
    return torch.nn.functional.gelu(x, approximate="tanh")
def _silu(x):
    return torch.nn.functional.silu(x)
def _sigmoid(x):
    return torch.sigmoid(x)
def _layernorm(x, axis=-1, eps=1e-5):
    m = x.mean(dim=axis, keepdim=True)
    v = x.var(dim=axis, keepdim=True, unbiased=False)
    return (x - m) / torch.sqrt(v + eps)
def _scatter_add(tgt, idx, src, axis=0):
    return tgt.clone().index_add_(axis, idx, src)
def _segment_sum(src, seg, n):
    out = torch.zeros((n,) + src.shape[1:], dtype=src.dtype)
    return out.index_add_(0, seg, src)
def _pad(x, pw):
    flat = tuple(v for pair in reversed(pw) for v in pair)
    return torch.nn.functional.pad(x, flat)

kernel_name = 'gather_scatter__molecular_angular_gemnet__graph'

def setup_inputs():

    _w = (lambda a: (lambda t: t.to(torch.bfloat16) if t.is_floating_point() else t)(torch.as_tensor(a)))
    N, deg, De, L = 50000, 16, 16, 1
    E = N * deg
    T = E * deg
    NR = 8
    dist = torch.rand(E).to(float)
    angle = (torch.rand(T) * torch.pi).to(float)
    centers = torch.linspace(0.0, 1.0, NR).to(float)
    ang_freq = torch.arange(1, L + 1).to(float)
    return {
        "m": _w((lambda *s: torch.randn(*s, dtype=torch.bfloat16) * 0.05)(E, De)),
        "idx_in": _w((lambda lo, hi, *s: torch.randint(lo, hi, s))(0, E, T).to(torch.int64)),
        "idx_out": _w((lambda lo, hi, *s: torch.randint(lo, hi, s))(0, E, T).to(torch.int64)),
        "dist": _w(dist),
        "angle": _w(angle),
        "centers": _w(centers),
        "ang_freq": _w(ang_freq),
        "w_rbf": _w((lambda *s: torch.randn(*s, dtype=torch.bfloat16) * 0.2)(NR, De)),
        "w_sbf": _w((lambda *s: torch.randn(*s, dtype=torch.bfloat16) * 0.2)(NR * L, De)),
        "w_down": _w((lambda *s: torch.randn(*s, dtype=torch.bfloat16) * 0.2)(De, De)),
        "w_up": _w((lambda *s: torch.randn(*s, dtype=torch.bfloat16) * 0.2)(De, De)),
    }

def reference(m, idx_in, idx_out, dist, angle, centers, ang_freq, w_rbf, w_sbf, w_down, w_up):
    E, De = m.shape[0], m.shape[1]
    NR = centers.shape[0]
    L = ang_freq.shape[0]
    rbf = torch.exp(-10.0 * (dist[:, None] - centers[None, :]) ** 2)
    cbf = torch.cos(ang_freq[None, :] * angle[:, None])
    rbf_t = rbf[idx_out]
    sbf = torch.reshape(rbf_t[:, :, None] * cbf[:, None, :], (-1, NR * L))
    x = (m[idx_in] @ w_down) * (sbf @ w_sbf)
    agg = _segment_sum(x, idx_out, E)
    return m + (agg @ w_up) * (rbf @ w_rbf)
```

```python
import re

TRANS = ("v_exp_f32", "v_log_f32", "v_rcp_f32", "v_rsq_f32", "v_sqrt_f32", "v_sin_f32", "v_cos_f32")

def regs_of(tok):
    tok = tok.strip()
    tok = tok.lstrip("-").replace("abs(", "").replace(")", "").replace("|", "")
    if tok == "vcc": return {("s", 106), ("s", 107)}
    if tok == "vcc_lo": return {("s", 106)}
    if tok == "vcc_hi": return {("s", 107)}
    if tok == "exec": return {("s", 126), ("s", 127)}
    m = re.fullmatch(r"([vsa])(\d+)", tok)
    if m: return {(m.group(1), int(m.group(2)))}
    m = re.fullmatch(r"([vsa])\[(\d+):(\d+)\]", tok)
    if m: return {(m.group(1), i) for i in range(int(m.group(2)), int(m.group(3)) + 1)}
    return set()

class Ins:
    def __init__(self, text):
        self.text = text
        t = text.split(";")[0].strip()
        self.label = t.endswith(":")
        self.op = t.split()[0] if t else ""
        rest = t[len(self.op):].strip()
        parts = [p.strip() for p in re.split(r",(?![^\[]*\])", rest)] if rest else []
        self.mods = ""
        if parts:
            sp = parts[-1].split(None, 1)
            parts[-1] = sp[0]
            if len(sp) > 1: self.mods = sp[1]
        op = self.op
        self.valu = op.startswith("v_") and not op.startswith("v_mfma")
        self.mfma = op.startswith("v_mfma")
        self.vmem = op.startswith(("buffer_", "global_")) and op not in ("buffer_wbl2", "buffer_inv")
        self.ds = op.startswith("ds_")
        self.dpp = "_dpp" in op
        self.trans = op.replace("_e32", "").replace("_e64", "") in TRANS
        self.w = set(); self.r = set(); self.srcc = set(); self.ab = set(); self.sdata = set(); self.lanesel = set()
        R = [regs_of(p) for p in parts]
        if self.mfma:
            self.w = R[0]; self.ab = R[1] | R[2]; self.srcc = R[3]; self.r = self.ab | self.srcc
        elif self.valu:
            self.w = set(R[0]); srcs = R[1:]
            if "_co_" in op or op.startswith("v_mad_u64"):
                self.w |= R[1]; srcs = R[2:]
            for s in srcs: self.r |= s
            if op.startswith(("v_fmac", "v_dot2c", "v_permlane", "v_writelane")) or "UNUSED_PRESERVE" in self.mods or self.dpp:
                self.r |= {x for x in R[0] if x[0] == "v"}
            if op.startswith("v_permlane"): self.w |= R[1]
            if op.startswith(("v_readlane", "v_writelane")) and len(R) > 2: self.lanesel = R[2]
        elif self.vmem:
            if "load" in op and re.search(r"\blds\b", self.mods):
                for s in R: self.r |= s
            elif "load" in op:
                self.w = R[0]
                for s in R[1:]: self.r |= s
            else:
                for s in R: self.r |= s
                if "x3" in op or "x4" in op:
                    self.sdata = R[0] if op.startswith("buffer_") else R[1]
        elif self.ds:
            if "read" in op or "rtn" in op or "permute" in op or "swizzle" in op:
                self.w = R[0]
                for s in R[1:]: self.r |= s
            else:
                for s in R: self.r |= s
        self.moved = self.valu and bool(re.search(r"dst_sel:(WORD|BYTE)", self.mods))
        self.slots = 1
        if op == "s_nop": self.slots = int(parts[0], 0) + 1
        if self.label or not op or op.startswith("."): self.slots = 0

def need(p, c):
    n = 0
    pv = {x for x in p.w if x[0] != "s"}; ps = {x for x in p.w if x[0] == "s"}
    if p.valu:
        if c.valu and c.dpp and pv & c.r: n = max(n, 2)
        if c.valu and ps & c.r: n = max(n, 2)
        if c.valu and ps & c.lanesel: n = max(n, 4)
        if c.vmem and ps & c.r: n = max(n, 5)
        if c.op.startswith(("v_readlane", "v_readfirstlane")) and pv & c.r: n = max(n, 1)
        if p.trans and c.valu and pv & c.r: n = max(n, 1)
        if c.mfma and pv & c.r: n = max(n, 2)
        if p.moved and c.valu and pv & (c.r | c.w): n = max(n, 1)
        if c.op.startswith("v_permlane") and pv & c.r: n = max(n, 2)
    if p.mfma:
        big = "32x32" in p.op
        full = 12 if big else 8
        if c.valu and pv & (c.r | c.w): n = max(n, full)
        if (c.vmem or c.ds) and pv & (c.r | c.w): n = max(n, full)
        if c.mfma:
            if pv & c.ab: n = max(n, full)
            if pv & c.srcc and pv != c.srcc: n = max(n, full - 2)
        if c.valu and p.srcc & c.w: n = max(n, 7 if big else 3)
    if p.sdata:
        if c.valu and p.sdata & c.w: n = max(n, 2)
        elif p.sdata & c.w: n = max(n, 1)
    return n

class Asm:
    def __init__(self):
        self.lines = []
    def __call__(self, text):
        for l in text.split("\n"):
            l = l.strip()
            if l: self.lines.append(l)
    def finish(self):
        out = []; hist = []
        pads = 0
        for l in self.lines:
            c = Ins(l)
            if c.slots and (c.valu or c.mfma or c.vmem or c.ds):
                dist = 0; req = 0
                for p in reversed(hist):
                    if dist >= 12: break
                    n = need(p, c)
                    if n - dist > req: req = n - dist
                    dist += p.slots
                if req > 0:
                    nop = Ins(f"s_nop {req-1}")
                    out.append("    " + nop.text); hist.append(nop); pads += 1
            out.append(l if c.label or l.startswith(".") else "    " + l)
            hist.append(c)
            if len(hist) > 40: hist = hist[-30:]
        self.pads = pads
        return "\n".join(out) + "\n"
```

```python
import sys, argparse
from asmlib import Asm

E = 800000; T = 12800000
NT = 256
CHA = 25088
TILE_N = 50000
TILE_BYTES = 300032
WS_DESC = 0x5000000
WS_PROF = 0x6000000
CAP = 64
BSTR = 400
NG = 196

def srd(a, d, base, size, off=None):
    if off is None:
        a(f"s_mov_b32 s{d}, s{base}")
        a(f"s_mov_b32 s{d+1}, s{base+1}")
    else:
        a(f"s_add_u32 s{d}, s{base}, {off}")
        a(f"s_addc_u32 s{d+1}, s{base+1}, 0")
    a(f"s_mov_b32 s{d+2}, {size}")
    a(f"s_mov_b32 s{d+3}, 0x20000")

class Prof:
    def __init__(self, a, on): self.a = a; self.on = on; self.n = 0
    def stamp(self):
        if not self.on: return
        a = self.a
        a("s_waitcnt lgkmcnt(0)")
        a("s_memtime s[58:59]")
        a("s_waitcnt lgkmcnt(0)")
        a(f"s_mov_b32 s{60+self.n}, s58")
        self.n += 1
    def dump(self, wsreg, region, vt, wave_sreg):
        if not self.on: return
        a = self.a
        srd(a, 52, wsreg, 0x100000, WS_PROF + region)
        a(f"s_lshl_b32 s56, s2, 4")
        a(f"s_add_u32 s56, s56, s{wave_sreg}")
        a(f"s_lshl_b32 s56, s56, 7")
        a("s_mov_b64 exec, 1")
        for i in range(self.n):
            a(f"v_mov_b32 v{vt}, s56")
            a(f"v_mov_b32 v{vt+1}, s{60+i}")
            a(f"buffer_store_dword v{vt+1}, v{vt}, s[52:55], 0 offen offset:{4*i}")
        a("s_waitcnt vmcnt(0)")
        a("s_mov_b64 exec, -1")

def gen_p1(o):
    a = Asm(); S = o.S; P = Prof(a, o.prof)
    NK = S * 256
    KSL = (S << 26) // E
    SCR = NK * 4; STG = SCR + 64
    W0 = 4; KP0 = 53; C0 = 78; TO = 103; T0 = 104
    ld = o.p1_ld; st = o.p1_st
    a("s_cmp_ge_u32 s2, 256")
    a("s_cbranch_scc1 P1_end")
    a("s_load_dwordx4 s[4:7], s[0:1], 8")
    a("s_load_dwordx2 s[28:29], s[0:1], 32")
    a("s_load_dwordx2 s[30:31], s[0:1], 48")
    a("s_load_dwordx2 s[32:33], s[0:1], 104")
    a("v_lshlrev_b32 v1, 4, v0")
    a("v_lshlrev_b32 v2, 3, v0")
    a("v_mov_b32 v3, 1")
    for i in range(4): a(f"v_mov_b32 v{T0+i}, 0")
    a(f"ds_write_b128 v1, v[{T0}:{T0+3}]")
    a("v_lshrrev_b32 v108, 6, v0")
    a("v_readfirstlane_b32 s3, v108")
    a(f"s_mul_i32 s34, s2, 848")
    a(f"s_add_u32 s34, s34, {3072*4096}")
    a(f"v_add_u32 v109, s34, v0")
    a(f"v_cmp_gt_u32 vcc, 848, v0")
    a(f"v_lshlrev_b32 v110, 2, v109")
    a(f"v_lshlrev_b32 v109, 1, v109")
    a(f"v_cndmask_b32 v110, 2.0, v110, vcc")
    a(f"v_cndmask_b32 v109, 2.0, v109, vcc")
    a("s_waitcnt lgkmcnt(0)")
    P.stamp()
    srd(a, 8, 4, T * 4); srd(a, 12, 6, T * 4); srd(a, 16, 28, T * 2)
    a("s_load_dword s35, s[30:31], 0")
    a("s_lshl_b32 s36, s2, 14")
    a("s_lshl_b32 s37, s2, 13")
    a(f"buffer_load_dword v{TO}, v110, s[12:15], 0 offen {ld}")
    a(f"buffer_load_dword v{W0+48}, v110, s[8:11], 0 offen {ld}")
    a(f"buffer_load_ushort v{C0+24}, v109, s[16:19], 0 offen {ld}")
    def issue_idx(r):
        b = C0 + 4 * (r % 6); w = W0 + 4 * r
        a(f"buffer_load_dwordx4 v[{b}:{b+3}], v1, s[12:15], s36 offen {ld}")
        a(f"buffer_load_dwordx4 v[{w}:{w+3}], v1, s[8:11], s36 offen {ld}")
        a(f"s_add_u32 s36, s36, {256*16384}")
    def issue_ang(r):
        b = C0 + 2 * r
        a(f"buffer_load_dwordx2 v[{b}:{b+1}], v2, s[16:19], s37 offen {ld}")
        a(f"s_add_u32 s37, s37, {256*8192}")
    for r in range(6): issue_idx(r)
    a("s_mov_b32 s38, 0x3c00")
    a("s_mov_b32 s39, 0x3fc")
    a("s_waitcnt lgkmcnt(0)")
    a("s_lshl_b32 s35, s35, 16")
    a("s_barrier")
    def key(O, W, t0, t1):
        a(f"v_mul_u32_u24 v{t0}, {KSL}, v{W}")
        a(f"v_lshrrev_b32 v{t1}, 8, v{O}")
        a(f"v_and_b32_sdwa v{t0}, v{t0}, s38 dst_sel:DWORD dst_unused:UNUSED_PAD src0_sel:WORD_1 src1_sel:DWORD")
        a(f"v_bfi_b32 v{t1}, 15, v{O}, v{t1}")
        a(f"v_lshrrev_b32 v{O}, 2, v{O}")
        a(f"v_lshl_or_b32 v{W}, v{W}, 12, v{t1}")
        a(f"v_and_or_b32 v{O}, v{O}, s39, v{t0}")
    for r in range(12):
        a("s_waitcnt vmcnt(10)")
        if r == 0:
            key(TO, W0 + 48, T0, T0 + 1)
            a(f"v_cndmask_b32 v{KP0+24}, 2.0, v{TO}, vcc")
            a(f"ds_add_u32 v{KP0+24}, v3")
        b = C0 + 4 * (r % 6)
        for j in range(4):
            key(b + j, W0 + 4 * r + j, T0 + 2 * j, T0 + 2 * j + 1)
            a(f"ds_add_u32 v{b+j}, v3")
        a(f"v_lshl_or_b32 v{KP0+2*r}, v{b+1}, 16, v{b}")
        a(f"v_lshl_or_b32 v{KP0+2*r+1}, v{b+3}, 16, v{b+2}")
        if r < 6: issue_idx(r + 6)
        else:
            issue_ang(2 * (r - 6)); issue_ang(2 * (r - 6) + 1)
    a("s_waitcnt lgkmcnt(0)")
    a("s_barrier")
    P.stamp()
    c = T0; x = T0 + 4; tot = T0 + 5; y = T0 + 6
    a(f"s_cmp_ge_u32 s3, {S}")
    a("s_cbranch_scc1 P1_scan1")
    a(f"ds_read_b128 v[{c}:{c+3}], v1")
    a("s_waitcnt lgkmcnt(0)")
    a(f"v_add_u32 v{c+1}, v{c}, v{c+1}")
    a(f"v_add_u32 v{c+2}, v{c+1}, v{c+2}")
    a(f"v_add_u32 v{c+3}, v{c+2}, v{c+3}")
    a(f"v_mov_b32 v{x}, v{c+3}")
    for sh in (1, 2, 4, 8):
        a(f"v_add_u32_dpp v{x}, v{x}, v{x} row_shr:{sh} row_mask:0xf bank_mask:0xf bound_ctrl:1")
    a(f"v_add_u32_dpp v{x}, v{x}, v{x} row_bcast:15 row_mask:0xa bank_mask:0xf")
    a(f"v_add_u32_dpp v{x}, v{x}, v{x} row_bcast:31 row_mask:0xc bank_mask:0xf")
    a(f"v_readlane_b32 s40, v{x}, 63")
    a(f"s_lshl_b32 s41, s3, 2")
    a(f"v_mov_b32 v{y}, s41")
    a(f"v_mov_b32 v{y+1}, s40")
    a(f"ds_write_b32 v{y}, v{y+1} offset:{SCR}")
    a("s_waitcnt lgkmcnt(0)")
    a("P1_scan1:")
    a("s_barrier")
    a(f"s_cmp_ge_u32 s3, {S}")
    a("s_cbranch_scc1 P1_scan2")
    a(f"v_and_b32 v{y}, 63, v0")
    a(f"v_lshlrev_b32 v{y+1}, 2, v{y}")
    a(f"ds_read_b32 v{y+2}, v{y+1} offset:{SCR}")
    a(f"v_cmp_gt_u32 s[42:43], s3, v{y}")
    a(f"v_sub_u32 v{x}, v{x}, v{c+3}")
    a("s_waitcnt lgkmcnt(0)")
    a(f"v_cndmask_b32 v{y+2}, 0, v{y+2}, s[42:43]")
    for sh in (1, 2, 4, 8):
        a(f"v_add_u32_dpp v{y+2}, v{y+2}, v{y+2} row_shr:{sh} row_mask:0xf bank_mask:0xf bound_ctrl:1")
    a(f"v_readlane_b32 s40, v{y+2}, 15")
    srd(a, 24, 32, NT * NT * S * 4, WS_DESC)
    s0 = T0 + 12
    a(f"v_add_u32 v{s0}, s40, v{x}")
    for j in range(4): a(f"v_add_u32 v{s0+1+j}, v{s0}, v{c+j}")
    a(f"ds_write_b128 v1, v[{s0}:{s0+3}]")
    a(f"s_mul_i32 s40, s2, {256*S*4}")
    a(f"s_add_u32 s40, s40, s41")
    a(f"v_mul_u32_u24 v{y}, {16*S}, v{y}")
    a(f"v_add_u32 v{y}, s40, v{y}")
    for j in range(4):
        a(f"v_lshl_or_b32 v{c+j}, v{s0+j+1}, 16, v{s0+j}")
        a(f"buffer_store_dword v{c+j}, v{y}, s[24:27], 0 offen offset:{j*S*4}")
    a("s_waitcnt lgkmcnt(0)")
    a("P1_scan2:")
    a("s_barrier")
    P.stamp()
    def atomics(n):
        t = T0 + 4 * (n % 2)
        if n == 12:
            a(f"ds_add_rtn_u32 v{t}, v{KP0+24}, v3"); return 1
        for j in range(4):
            kp = KP0 + 2 * n + j // 2
            if j % 2 == 0: a(f"v_and_b32 v{t+j}, 0xffff, v{kp}")
            else: a(f"v_lshrrev_b32 v{t+j}, 16, v{kp}")
            a(f"ds_add_rtn_u32 v{t+j}, v{t+j}, v3")
        return 4
    atomics(0)
    for n in range(13):
        k = atomics(n + 1) if n < 12 else 0
        a(f"s_waitcnt lgkmcnt({k})")
        t = T0 + 4 * (n % 2); u = T0 + 8
        if n == 12:
            a(f"v_mov_b32 v{u}, 0xffff")
            a(f"v_cndmask_b32 v{t}, v{u}, v{t}, vcc")
        for j in range(4 if n < 12 else 1):
            a(f"v_lshrrev_b32 v{u+j}, 1, v{t+j}")
            a(f"v_add_lshl_u32 v{u+j}, v{u+j}, v{t+j}, 2")
            a(f"ds_write_b32 v{u+j}, v{W0+4*n+j} offset:{STG}")
        if n < 12:
            a(f"v_lshl_or_b32 v{KP0+2*n}, v{t+1}, 16, v{t}")
            a(f"v_lshl_or_b32 v{KP0+2*n+1}, v{t+3}, 16, v{t+2}")
        else:
            a(f"v_mov_b32 v{KP0+24}, v{t}")
    P.stamp()
    a("s_waitcnt vmcnt(0)")
    a("s_mov_b32 s44, 0xffff0000")
    def caddr(kp, hi, u, sub):
        if hi: a(f"v_lshrrev_b32 v{u}, 16, v{kp}")
        else: a(f"v_and_b32 v{u}, 0xffff, v{kp}")
        if sub: a(f"v_subrev_u32 v{u}, {CHA}, v{u}")
        a(f"v_ashrrev_i32 v{u+1}, 1, v{u}")
    for n in range(25):
        cr = C0 + n; t = T0 + 8 * (n % 2)
        a(f"v_lshlrev_b32 v{t}, 16, v{cr}")
        a(f"v_and_b32 v{t+1}, s44, v{cr}")
        a(f"v_mul_f32 v{t}, s35, v{t}")
        a(f"v_mul_f32 v{t+1}, s35, v{t+1}")
        a(f"v_cvt_pk_bf16_f32 v{t+1}, v{t}, v{t+1}")
        a(f"v_lshlrev_b32 v{t}, 16, v{t+1}")
        a(f"v_and_b32 v{t+1}, s44, v{t+1}")
        a(f"v_mul_f32 v{t}, 0.15915494, v{t}")
        a(f"v_mul_f32 v{t+1}, 0.15915494, v{t+1}")
        a(f"v_fract_f32 v{t}, v{t}")
        a(f"v_fract_f32 v{t+1}, v{t+1}")
        a(f"v_cos_f32 v{t}, v{t}")
        a(f"v_cos_f32 v{t+1}, v{t+1}")
        for h in range(2 if n < 24 else 1):
            u = t + 2 + 2 * h
            caddr(KP0 + n, h, u, False)
            a(f"v_lshl_add_u32 v{u}, v{u+1}, 2, v{u}")
            a(f"v_lshlrev_b32 v{u}, 1, v{u}")
        a(f"v_cvt_pk_bf16_f32 v{cr}, v{t}, v{t+1}")
        a(f"ds_write_b16 v{t+2}, v{cr} offset:{STG+8}")
        if n < 24: a(f"ds_write_b16_d16_hi v{t+4}, v{cr} offset:{STG+8}")
    def copyout(ch):
        nbytes = CHA * 6 if ch == 0 else (TILE_N - CHA) * 6
        a(f"s_mul_i32 s40, s2, {TILE_BYTES}")
        if ch: a(f"s_add_u32 s40, s40, {CHA*6}")
        srd(a, 20, 32, nbytes, "s40")
        a("v_mov_b32 v2, v1")
        a(f"v_mov_b32 v{TO}, v1")
        a("s_waitcnt lgkmcnt(0)")
        a("s_barrier")
        P.stamp()
        def rd(k):
            t = T0 + 4 * (k % 6)
            a(f"ds_read_b128 v[{t}:{t+3}], v2 offset:{STG}")
            a(f"v_add_u32 v2, 16384, v2")
        for k in range(6): rd(k)
        for k in range(10):
            t = T0 + 4 * (k % 6)
            a(f"s_waitcnt lgkmcnt({min(5, 9-k)})")
            a(f"buffer_store_dwordx4 v[{t}:{t+3}], v{TO}, s[20:23], 0 offen {st}")
            a(f"v_add_u32 v{TO}, 16384, v{TO}")
            if k + 6 < 10: rd(k + 6)
    copyout(0)
    a("s_barrier")
    P.stamp()
    for n in range(25):
        for h in range(2 if n < 24 else 1):
            u = T0 + 4 * ((2 * n + h) % 4)
            caddr(KP0 + n, h, u, True)
            a(f"v_add_lshl_u32 v{u+2}, v{u+1}, v{u}, 2")
            a(f"v_lshl_add_u32 v{u}, v{u+1}, 2, v{u}")
            a(f"ds_write_b32 v{u+2}, v{W0+2*n+h} offset:{STG}")
            a(f"v_lshlrev_b32 v{u}, 1, v{u}")
            a(f"ds_write_b16{'_d16_hi' if h else ''} v{u}, v{C0+n} offset:{STG+8}")
    copyout(1)
    if o.prof:
        P.stamp()
        a("s_waitcnt vmcnt(0)")
        P.stamp()
        P.dump(32, 0, T0, 3)
    a("P1_end:")
    a("s_endpgm")
    return a.finish(), STG + CHA * 6

def gen_p2(o):
    a = Asm(); S = o.S; P = Prof(a, o.prof)
    FLAG = 2048 - 16
    BUF0 = 2048; BUFSZ = NG * BSTR
    LDS = BUF0 + 2 * BUFSZ
    a("s_cmp_ge_u32 s2, 256")
    a("s_cbranch_scc1 P2_end")
    a("s_load_dwordx2 s[4:5], s[0:1], 0")
    a("s_load_dwordx2 s[6:7], s[0:1], 24")
    a("s_load_dwordx2 s[32:33], s[0:1], 104")
    a("s_load_dwordx2 s[34:35], s[0:1], 40")
    a("s_load_dwordx8 s[36:43], s[0:1], 56")
    a("s_load_dwordx2 s[44:45], s[0:1], 88")
    a("v_lshrrev_b32 v1, 6, v0")
    a("v_readfirstlane_b32 s3, v1")
    a("s_and_b32 s46, s2, 7")
    a("s_lshl_b32 s46, s46, 5")
    a("s_lshr_b32 s47, s2, 3")
    a("s_add_u32 s46, s46, s47")
    a("v_and_b32 v12, 63, v0")
    a("s_waitcnt lgkmcnt(0)")
    P.stamp()
    srd(a, 8, 4, E * 32)
    srd(a, 12, 32, NT * TILE_BYTES)
    srd(a, 16, 32, NT * NT * S * 4, WS_DESC)
    srd(a, 20, 44, E * 32)
    srd(a, 24, 6, E * 2)
    srd(a, 28, 40, 512)
    a("s_cmp_ge_u32 s3, 4")
    a("s_cbranch_scc1 P2_consumer")
    D0 = 40; R0 = 64
    vU = 1; vTB = 2; vOne = 3; v3FC = 4; v100 = 5; vZ = 6
    vd = 8; vhs = 9; vp0 = 10; vst = 11; ven = 13; vca = 14; vcb = 15; vra = 16; vrb = 17; vba = 18; vbb = 19; vt = 20
    if o.prio: a(f"s_setprio {o.prio}")
    a(f"s_lshl_b32 s47, s3, 6")
    a(f"v_add_u32 v{vt}, s47, v12")
    a(f"v_lshlrev_b32 v{vt}, 8, v{vt}")
    a(f"v_add_u32 v{vt}, s46, v{vt}")
    a(f"v_mul_u32_u24 v{vt}, {4*S}, v{vt}")
    k = 0
    while k < S:
        w = 4 if S - k >= 4 else (2 if S - k >= 2 else 1)
        sfx = {4: "x4", 2: "x2", 1: ""}[w]
        dst = f"v[{D0+k}:{D0+k+w-1}]" if w > 1 else f"v{D0+k}"
        a(f"buffer_load_dword{sfx} {dst}, v{vt}, s[16:19], 0 offen offset:{4*k}")
        k += w
    a(f"v_mov_b32 v{D0+S}, 0")
    a(f"v_and_b32 v{vU}, 15, v12")
    a(f"v_and_b32 v{vTB}, 48, v12")
    a(f"v_add_u32 v{vTB}, s47, v{vTB}")
    a(f"v_mul_u32_u24 v{vTB}, {TILE_BYTES}, v{vTB}")
    a(f"v_mad_u32_u24 v{vTB}, v{vU}, 12, v{vTB}")
    a(f"v_mov_b32 v{vOne}, 1")
    a(f"v_mov_b32 v{v3FC}, 0x3fc")
    a(f"v_mov_b32 v{v100}, {BSTR//4}")
    a(f"v_mov_b32 v{vZ}, 0")
    a("s_mov_b32 s48, 0")
    a("s_mov_b32 s49, 0")
    a("s_mov_b32 s50, 0")
    a(f"s_mov_b32 s51, {BUF0}")
    a("s_mov_b32 s84, 0x80008000")
    a("s_mov_b32 s85, 0x80008000")
    def issue(dreg, i):
        a(f"v_mov_b32_dpp v{vd}, v{dreg} row_newbcast:{i} row_mask:0xf bank_mask:0xf")
        a(f"s_mov_b32 s86, {i*TILE_BYTES}")
        a(f"v_bfe_u32 v{vhs}, v{vd}, 1, 15")
        a(f"v_add_lshl_u32 v{vp0}, v{vhs}, v{vU}, 1")
        a(f"v_cmp_lt_u32_sdwa vcc, v{vp0}, v{vd} src0_sel:DWORD src1_sel:WORD_1")
        a(f"v_mad_u32_u24 v{vt}, v{vhs}, 12, v{vTB}")
        a(f"v_cndmask_b32 v{vt}, 2.0, v{vt}, vcc")
        r = R0 + 4 * i
        a(f"buffer_load_dwordx3 v[{r}:{r+2}], v{vt}, s[12:15], s86 offen {o.p2_rec}")
    def next_round():
        a("s_add_u32 s48, s48, 1")
        if o.maxr:
            a(f"s_cmp_gt_u32 s48, {o.maxr}")
            a("s_cbranch_scc1 P2_pdone")
        a(f"v_mov_b32 v{vt}, s48")
        a(f"ds_max_u32 v{vZ}, v{vt} offset:{FLAG}")
        a("s_xor_b32 s50, s50, 1024")
        a(f"s_xor_b32 s51, s51, {(BUF0 ^ ((BUF0 + BUFSZ - 1024 * (BSTR//4)) & 0xffffffff))}")
        a("s_waitcnt lgkmcnt(0)")
        a("s_barrier")
    a("s_waitcnt vmcnt(0)")
    for i in range(16): issue(D0, i)
    a("s_barrier")
    a("P2_pslice:")
    for i in range(16):
        r = R0 + 4 * i
        a(f"v_mov_b32_dpp v{vd}, v{D0} row_newbcast:{i} row_mask:0xf bank_mask:0xf")
        a(f"v_and_b32 v{vst}, 0xffff, v{vd}")
        a(f"v_lshrrev_b32 v{ven}, 16, v{vd}")
        a(f"v_lshrrev_b32 v{vhs}, 1, v{vst}")
        a(f"v_add_lshl_u32 v{vp0}, v{vhs}, v{vU}, 1")
        a("s_waitcnt vmcnt(15)")
        a(f"P2_place{i}:")
        a(f"v_cmp_lt_u32 s[88:89], v{vp0}, v{ven}")
        a(f"v_cmp_ge_u32 vcc, v{vp0}, v{vst}")
        a(f"v_add_u32 v{vt}, 1, v{vp0}")
        a(f"v_cmp_lt_u32 s[90:91], v{vt}, v{ven}")
        a(f"v_add_u32 v{vt}, 2, v{vp0}")
        a(f"v_cmp_lt_u32 s[92:93], v{vt}, v{ven}")
        a(f"s_and_b64 s[88:89], s[88:89], vcc")
        a(f"P2_retry{i}:")
        a(f"v_lshrrev_b32 v{vca}, 2, v{r}")
        a(f"v_lshrrev_b32 v{vcb}, 2, v{r+1}")
        a(f"v_and_or_b32 v{vca}, v{vca}, v{v3FC}, s50")
        a(f"v_and_or_b32 v{vcb}, v{vcb}, v{v3FC}, s50")
        a(f"s_mov_b64 exec, s[88:89]")
        a(f"ds_add_rtn_u32 v{vra}, v{vca}, v{vOne}")
        a(f"s_mov_b64 exec, s[90:91]")
        a(f"ds_add_rtn_u32 v{vrb}, v{vcb}, v{vOne}")
        a(f"s_mov_b64 exec, -1")
        a(f"v_mad_u32_u24 v{vba}, v{vca}, v{v100}, s51")
        a(f"v_mad_u32_u24 v{vbb}, v{vcb}, v{v100}, s51")
        a("s_waitcnt lgkmcnt(0)")
        a(f"v_cmp_gt_u32 vcc, {CAP}, v{vra}")
        a(f"v_cmp_gt_u32 s[94:95], {CAP}, v{vrb}")
        a(f"v_lshl_add_u32 v{vca}, v{vra}, 2, v{vba}")
        a(f"v_lshl_add_u32 v{vba}, v{vra}, 1, v{vba}")
        a(f"v_lshl_add_u32 v{vcb}, v{vrb}, 2, v{vbb}")
        a(f"v_lshl_add_u32 v{vbb}, v{vrb}, 1, v{vbb}")
        a(f"s_and_b64 exec, s[88:89], vcc")
        a(f"ds_write_b32 v{vca}, v{r}")
        a(f"ds_write_b16 v{vba}, v{r+2} offset:{CAP*4}")
        a(f"s_and_b64 exec, s[90:91], s[94:95]")
        a(f"ds_write_b32 v{vcb}, v{r+1}")
        a(f"ds_write_b16_d16_hi v{vbb}, v{r+2} offset:{CAP*4}")
        a(f"s_mov_b64 exec, -1")
        a(f"s_andn2_b64 s[88:89], s[88:89], vcc")
        a(f"s_andn2_b64 s[90:91], s[90:91], s[94:95]")
        a(f"s_or_b64 s[94:95], s[88:89], s[90:91]")
        a(f"s_cbranch_scc1 P2_stall{i}")
        a(f"s_and_b64 s[92:93], s[92:93], s[84:85]")
        a(f"s_cbranch_scc1 P2_more{i}")
        issue(D0 + 1, i)
    a("s_add_u32 s49, s49, 1")
    a(f"s_cmp_ge_u32 s49, {S}")
    a("s_cbranch_scc1 P2_pdone")
    for k in range(S): a(f"v_mov_b32 v{D0+k}, v{D0+k+1}")
    a("s_cmp_ge_u32 s48, s49")
    a("s_cbranch_scc1 P2_pslice")
    next_round()
    a("s_branch P2_pslice")
    a("P2_pdone:")
    a("s_waitcnt vmcnt(0) lgkmcnt(0)")
    a("s_endpgm")
    for i in range(16):
        r = R0 + 4 * i
        a(f"P2_stall{i}:")
        next_round()
        a(f"s_branch P2_retry{i}")
        a(f"P2_more{i}:")
        a(f"v_add_u32 v{vhs}, 16, v{vhs}")
        a(f"v_add_u32 v{vp0}, 32, v{vp0}")
        a(f"s_mov_b32 s86, {i*TILE_BYTES}")
        a(f"v_cmp_lt_u32 vcc, v{vp0}, v{ven}")
        a(f"v_mad_u32_u24 v{vt}, v{vhs}, 12, v{vTB}")
        a(f"v_cndmask_b32 v{vt}, 2.0, v{vt}, vcc")
        a(f"buffer_load_dwordx3 v[{r}:{r+2}], v{vt}, s[12:15], s86 offen {o.p2_rec}")
        a("s_waitcnt vmcnt(0)")
        a(f"s_branch P2_place{i}")
    a("P2_consumer:")
    ACC = 60; G0 = 52; B0 = 44; WA = 36; WB = 40; D1 = 28; vW = 20; vC = 16; vA = 15
    bA = 1; bW = 2; bC = 3; vLB = 4; vH = 5; vSl = 6; vCnt = 7; vCA = 8; vAd = 10; vZ = 11; vFl = 9
    a("s_sub_u32 s47, s3, 4")
    a("s_min_u32 s48, s47, 4")
    a("s_lshl_b32 s49, s47, 4")
    a("s_add_u32 s49, s49, s48")
    a("s_cmp_lt_u32 s47, 4")
    a("s_cselect_b32 s50, 17, 16")
    a("v_and_b32 v13, 15, v12")
    a("v_lshrrev_b32 v14, 4, v12")
    a(f"v_and_b32 v{vH}, 16, v12")
    a(f"v_lshlrev_b32 v{vAd}, 4, v{vH}")
    a(f"v_lshl_add_u32 v{vAd}, v13, 1, v{vAd}")
    for c in range(8): a(f"buffer_load_ushort v{vW+c}, v{vAd}, s[28:31], 0 offen offset:{32*c}")
    for i in range(4): a(f"v_mov_b32 v{D1+i}, 0")
    a(f"v_subrev_u32 v{vA}, 256, v0")
    a(f"v_lshlrev_b32 v{vA}, 4, v{vA}")
    for k in range(-(-LDS // (768 * 16))):
        a(f"ds_write_b128 v{vA}, v[{D1}:{D1+3}]")
        a(f"v_add_u32 v{vA}, {768*16}, v{vA}")
    for i in range(68): a(f"v_mov_b32 v{ACC+i}, 0")
    for i in range(16): a(f"v_mov_b32 v{B0+i}, 0")
    a(f"v_mov_b32 v{vZ}, 0")
    a(f"v_and_b32 v{vSl}, 12, v12")
    a(f"v_lshlrev_b32 v{vSl}, 1, v{vSl}")
    a(f"v_and_or_b32 v{vSl}, v12, 3, v{vSl}")
    a(f"v_lshrrev_b32 v{vA}, 5, v12")
    a(f"v_lshl_or_b32 v{vSl}, v{vA}, 2, v{vSl}")
    a(f"s_mul_i32 s51, s49, {BSTR}")
    a(f"s_add_u32 s51, s51, {BUF0}")
    a(f"v_lshl_add_u32 v{bA}, v{vSl}, 2, s51")
    a(f"v_lshl_add_u32 v{bW}, v14, 5, s51")
    a(f"v_lshl_add_u32 v{bC}, v14, 4, s51")
    a(f"v_mov_b32 v{vLB}, 0x80008000")
    a(f"v_lshrrev_b32 v{vLB}, v13, v{vLB}")
    a(f"v_add_lshl_u32 v{vCA}, v12, s49, 2")
    a(f"v_cmp_gt_u32 vcc, s50, v12")
    a(f"v_cmp_gt_u32 s[88:89], 32, v12")
    a("s_mov_b32 s84, 0x05040100")
    a("s_mov_b32 s85, 0xffffffe0")
    a(f"v_cndmask_b32 v{vCA}, 2.0, v{vCA}, vcc")
    a("s_waitcnt vmcnt(0)")
    for u in range(4):
        a(f"v_lshl_or_b32 v{vW+u}, v{vW+2*u+1}, 16, v{vW+2*u}")
    for u in range(4):
        a(f"v_cndmask_b32 v{WA+u}, 0, v{vW+u}, s[88:89]")
        a(f"v_cndmask_b32 v{WB+u}, v{vW+u}, 0, s[88:89]")
    a("s_mov_b32 s48, 0")
    a("s_waitcnt lgkmcnt(0)")
    a("s_barrier")
    P.stamp()
    def lds_reads(i, second):
        oa = i * BSTR + (128 if second else 0); oc = i * BSTR + CAP * 4 + (64 if second else 0)
        a(f"ds_read_b32 v{vA}, v{bA} offset:{oa}")
        a(f"ds_read_b128 v[{vW}:{vW+3}], v{bW} offset:{oa}")
        a(f"ds_read_b128 v[{vW+4}:{vW+7}], v{bW} offset:{oa+16}")
        a(f"ds_read_b128 v[{vC}:{vC+3}], v{bC} offset:{oc}")
    def addr_and_perm():
        a(f"v_lshrrev_b32 v{vAd}, 7, v{vA}")
        a(f"v_and_or_b32 v{vAd}, v{vAd}, s85, v{vH}")
        a(f"v_cmp_gt_u32 vcc, s86, v{vSl}")
        for u in range(4): a(f"v_perm_b32 v{vW+u}, v{vW+2*u+1}, v{vW+2*u}, s84")
        a(f"v_cndmask_b32 v{vAd}, 2.0, v{vAd}, vcc")
    def masks():
        for u in range(4): a(f"v_pk_lshlrev_b16 v{vW+u}, v{vW+u}, v{vLB}")
        for u in range(4): a(f"v_pk_ashrrev_i16 v{vW+u}, 15, v{vW+u} op_sel_hi:[0,1]")
    def mfma1(g):
        a(f"v_mfma_f32_16x16x32_bf16 v[{D1}:{D1+3}], v[{g}:{g+3}], v[{WA}:{WA+3}], 0")
        a(f"v_mfma_f32_16x16x32_bf16 v[{D1+4}:{D1+7}], v[{g}:{g+3}], v[{WB}:{WB+3}], 0")
    def mfma2(i, b):
        for u in range(4): a(f"v_cvt_pk_bf16_f32 v{D1+u}, v{D1+2*u}, v{D1+2*u+1}")
        c = ACC + 4 * i
        a(f"v_mfma_f32_16x16x32_bf16 v[{c}:{c+3}], v[{D1}:{D1+3}], v[{b}:{b+3}], v[{c}:{c+3}]")
    NS = 17
    for par in range(2):
        a(f"P2_round{par}:")
        a("s_barrier")
        if o.prof and par == 0:
            a("s_cmp_lg_u32 s48, 0"); a("s_cbranch_scc1 P2_nostamp"); P.stamp(); a("P2_nostamp:")
        a(f"ds_read_b32 v{vCnt}, v{vCA} offset:{1024*par}")
        a(f"ds_read_b32 v{vFl}, v{vZ} offset:{FLAG}")
        lds_reads(0, False)
        a("s_add_u32 s48, s48, 1")
        a("s_waitcnt lgkmcnt(4)")
        a(f"ds_write_b32 v{vCA}, v{vZ} offset:{1024*par}")
        a(f"v_min_u32 v{vCnt}, {CAP}, v{vCnt}")
        a(f"v_readfirstlane_b32 s87, v{vFl}")
        for i in range(NS):
            p = (par * NS + i) % 2
            g = G0 + 4 * p; b = B0 + 4 * p
            if o.cprio and i % 5 == 0 and i < 15: a(f"s_setprio {2 - i // 5}")
            a(f"v_readlane_b32 s86, v{vCnt}, {i}")
            a("s_waitcnt lgkmcnt(0)")
            addr_and_perm()
            a("s_waitcnt vmcnt(1)")
            mfma1(g)
            a(f"buffer_load_dwordx4 v[{g}:{g+3}], v{vAd}, s[8:11], 0 offen")
            masks()
            mfma2((i - 2) % NS, b)
            for u in range(4): a(f"v_and_b32 v{b+u}, v{vW+u}, v{vC+u}")
            a("s_cmp_gt_u32 s86, 32")
            a(f"s_cbranch_scc1 P2_slow{par}_{i}")
            a(f"P2_back{par}_{i}:")
            if i + 1 < NS: lds_reads(i + 1, False)
        op = "v_add_u32" if par == 0 else "v_subrev_u32"
        for r in (bA, bW, bC): a(f"{op} v{r}, {BUFSZ}, v{r}")
        a("s_cmp_ge_u32 s87, s48")
        if par == 0:
            a("s_cbranch_scc0 P2_drain0")
        else:
            a("s_cbranch_scc1 P2_round0")
    def drain(par):
        for i in (NS, NS + 1):
            p = (par * NS + i) % 2
            a(f"s_waitcnt vmcnt({NS+1-i})")
            mfma1(G0 + 4 * p)
            mfma2(i - 2, B0 + 4 * p)
    drain(1)
    a("s_branch P2_epi")
    for par in range(2):
        for i in range(NS):
            a(f"P2_slow{par}_{i}:")
            lds_reads(i, True)
            a("s_sub_u32 s86, s86, 32")
            a("s_waitcnt lgkmcnt(0)")
            addr_and_perm()
            a(f"buffer_load_dwordx4 v[{vW+4}:{vW+7}], v{vAd}, s[8:11], 0 offen")
            masks()
            for u in range(4): a(f"v_and_b32 v{vC+u}, v{vW+u}, v{vC+u}")
            a("s_waitcnt vmcnt(0)")
            mfma1(vW + 4)
            mfma2(i, vC)
            a(f"s_branch P2_back{par}_{i}")
    a("P2_drain0:")
    drain(0)
    a("P2_epi:")
    P.stamp()
    vOff = 1; vOo = 2; vDo = 3; DS = 4
    WS_ = 16; WR_ = 20; WU = 24; CEN = 26
    M0 = 30
    X = 38
    a(f"s_lshl_b32 s51, s49, 8")
    a(f"s_add_u32 s51, s51, s46")
    a(f"s_lshl_b32 s51, s51, 4")
    a(f"v_add_u32 v{vOff}, s51, v13")
    a(f"v_lshrrev_b32 v{X}, 1, v14")
    a(f"v_lshl_add_u32 v{vDo}, v{X}, 12, v{vOff}")
    a(f"v_lshlrev_b32 v{vDo}, 1, v{vDo}")
    a(f"v_lshlrev_b32 v{vOff}, 5, v{vOff}")
    a(f"v_lshl_add_u32 v{vOff}, v14, 3, v{vOff}")
    a(f"v_mov_b32 v{vOo}, v{vOff}")
    a(f"v_lshlrev_b32 v{X+1}, 7, v14")
    a(f"v_lshl_add_u32 v{X+1}, v13, 1, v{X+1}")
    a(f"v_and_b32 v{X+2}, 0xff, v{X+1}")
    a(f"v_and_b32 v{X+3}, 1, v14")
    a(f"v_lshlrev_b32 v{X+3}, 3, v{X+3}")
    srd(a, 28, 42, 512)
    for c in range(4): a(f"buffer_load_ushort v{X+4+c}, v{X+1}, s[28:31], 0 offen offset:{32*c}")
    srd(a, 12, 38, 256)
    for c in range(4): a(f"buffer_load_ushort v{X+8+c}, v{X+2}, s[12:15], 0 offen offset:{32*c}")
    srd(a, 16, 36, 256)
    for c in range(4): a(f"buffer_load_ushort v{X+12+c}, v{X+2}, s[16:19], 0 offen offset:{32*c}")
    srd(a, 52, 34, 16)
    for c in range(4): a(f"buffer_load_ushort v{CEN+c}, v{X+3}, s[52:55], 0 offen offset:{2*c}")
    for k in range(9):
        a(f"buffer_load_ushort v{DS+k}, v{vDo}, s[24:27], 0 offen")
        a(f"v_add_u32 v{vDo}, {2*4096*2}, v{vDo}")
    def mload(i):
        m = M0 + 2 * (i % 4)
        a(f"buffer_load_dwordx2 v[{m}:{m+1}], v{vOff}, s[8:11], 0 offen")
        a(f"v_add_u32 v{vOff}, {4096*32}, v{vOff}")
    for i in range(4): mload(i)
    a("s_mov_b32 s84, 0xffff0000")
    a("s_mov_b32 s85, 0xc1200000")
    a("s_mov_b32 s86, 0x3fb8aa3b")
    a("s_waitcnt vmcnt(4)")
    for u in range(2):
        a(f"v_lshl_or_b32 v{WU+u}, v{X+5+2*u}, 16, v{X+4+2*u}")
        a(f"v_lshl_or_b32 v{X+8+u}, v{X+9+2*u}, 16, v{X+8+2*u}")
        a(f"v_lshl_or_b32 v{X+12+u}, v{X+13+2*u}, 16, v{X+12+2*u}")
    for u in range(2):
        a(f"v_cndmask_b32 v{WS_+u}, 0, v{X+8+u}, s[88:89]")
        a(f"v_cndmask_b32 v{WS_+2+u}, v{X+8+u}, 0, s[88:89]")
        a(f"v_cndmask_b32 v{WR_+u}, 0, v{X+12+u}, s[88:89]")
        a(f"v_cndmask_b32 v{WR_+2+u}, v{X+12+u}, 0, s[88:89]")
    for c in range(4): a(f"v_lshlrev_b32 v{CEN+c}, 16, v{CEN+c}")
    RB = X; t = X + 2; SS = X + 6; GG = X + 10; AG = X + 14; UU = X + 16; OT = X + 20
    def rnd():
        for u in range(2):
            a(f"v_cvt_pk_bf16_f32 v{t+2*u+1}, v{t+2*u}, v{t+2*u+1}")
        for u in range(2):
            a(f"v_lshlrev_b32 v{t+2*u}, 16, v{t+2*u+1}")
            a(f"v_and_b32 v{t+2*u+1}, s84, v{t+2*u+1}")
    for i in range(NS):
        if i == 16:
            a("s_cmp_lt_u32 s50, 17")
            a("s_cbranch_scc1 P2_fin")
        if i % 2 == 0:
            d = DS + i // 2
            a(f"v_lshlrev_b32 v{d}, 16, v{d}")
            for c in range(4): a(f"v_sub_f32 v{t+c}, v{d}, v{CEN+c}")
            rnd()
            for c in range(4): a(f"v_mul_f32 v{t+c}, v{t+c}, v{t+c}")
            rnd()
            for c in range(4): a(f"v_mul_f32 v{t+c}, s85, v{t+c}")
            rnd()
            for c in range(4): a(f"v_mul_f32 v{t+c}, s86, v{t+c}")
            for c in range(4): a(f"v_exp_f32 v{t+c}, v{t+c}")
            for u in range(2): a(f"v_cvt_pk_bf16_f32 v{RB+u}, v{t+2*u}, v{t+2*u+1}")
        h = 2 * (i % 2); c0 = ACC + 4 * i; m = M0 + 2 * (i % 4)
        a(f"v_mfma_f32_16x16x16_bf16 v[{SS}:{SS+3}], v[{WS_+h}:{WS_+h+1}], v[{RB}:{RB+1}], 0")
        a(f"v_mfma_f32_16x16x16_bf16 v[{GG}:{GG+3}], v[{WR_+h}:{WR_+h+1}], v[{RB}:{RB+1}], 0")
        nl = min(3, NS - 1 - i); ns = min(3, i)
        a(f"s_waitcnt vmcnt({nl + ns if i + 3 < NS else nl})")
        a(f"v_lshlrev_b32 v{t}, 16, v{m}")
        a(f"v_and_b32 v{t+1}, s84, v{m}")
        a(f"v_lshlrev_b32 v{t+2}, 16, v{m+1}")
        a(f"v_and_b32 v{t+3}, s84, v{m+1}")
        for c in range(4): a(f"v_mul_f32 v{SS+c}, v{SS+c}, v{c0+c}")
        for u in range(2): a(f"v_cvt_pk_bf16_f32 v{AG+u}, v{SS+2*u}, v{SS+2*u+1}")
        a(f"v_mfma_f32_16x16x16_bf16 v[{UU}:{UU+3}], v[{WU}:{WU+1}], v[{AG}:{AG+1}], 0")
        for c in range(4): a(f"v_fma_f32 v{t+c}, v{UU+c}, v{GG+c}, v{t+c}")
        for u in range(2): a(f"v_cvt_pk_bf16_f32 v{OT+u}, v{t+2*u}, v{t+2*u+1}")
        a(f"buffer_store_dwordx2 v[{OT}:{OT+1}], v{vOo}, s[20:23], 0 offen")
        a(f"v_add_u32 v{vOo}, {4096*32}, v{vOo}")
        if i + 4 < NS: mload(i + 4)
    a("P2_fin:")
    if o.prof:
        P.stamp()
        a("s_waitcnt vmcnt(0)")
        P.stamp()
        P.dump(32, 0x80000, X, 3)
    a("P2_end:")
    a("s_endpgm")
    return a.finish(), LDS

KD = """.amdhsa_kernel {name}
  .amdhsa_next_free_vgpr 128
  .amdhsa_next_free_sgpr 96
  .amdhsa_accum_offset 128
  .amdhsa_group_segment_fixed_size 0
  .amdhsa_kernarg_size 112
  .amdhsa_user_sgpr_count 2
  .amdhsa_user_sgpr_kernarg_segment_ptr 1
  .amdhsa_system_sgpr_workgroup_id_x 1
  .amdhsa_float_denorm_mode_32 3
.end_amdhsa_kernel
"""

def build(o):
    p1, l1 = gen_p1(o); p2, l2 = gen_p2(o)
    ref = open("gather_scatter__molecular_angular_gemnet__graph.s.ref").read().split("\n")
    head = [l for l in ref if l.startswith(";") and "launch geometry" not in l and "Harness parses" not in l and "@launch" not in l]
    s = "\n".join(head) + "\n"
    s += "; Two launches: p1 partitions the triplets by (input slice, output bin); p2 gathers / segment-sums with MFMA.\n"
    s += f"; @launch kernel=gemnet_p1_kernel grid=(256,1,1) block=(1024,1,1) lds={l1}\n"
    s += f"; @launch kernel=gemnet_p2_kernel grid=(256,1,1) block=(1024,1,1) lds={l2}\n"
    s += '.amdgcn_target "amdgcn-amd-amdhsa--gfx950"\n.text\n'
    for n, b in (("gemnet_p1_kernel", p1), ("gemnet_p2_kernel", p2)):
        s += f".globl {n}\n.p2align 8\n.type {n},@function\n{n}:\n" + b
    s += '.section .rodata,"a"\n'
    for n in ("gemnet_p1_kernel", "gemnet_p2_kernel"):
        s += ".p2align 6\n" + KD.format(name=n)
    return s

def parser():
    p = argparse.ArgumentParser()
    p.add_argument("-S", type=int, default=10)
    p.add_argument("--prof", type=int, default=0)
    p.add_argument("--maxr", type=int, default=0)
    p.add_argument("--p1_ld", default="")
    p.add_argument("--p1_st", default="")
    p.add_argument("--p2_rec", default="")
    p.add_argument("--prio", type=int, default=3)
    p.add_argument("--cprio", type=int, default=0)
    p.add_argument("-o", default="gather_scatter__molecular_angular_gemnet__graph.s")
    return p

if __name__ == "__main__":
    o = parser().parse_args()
    open(o.o, "w").write(build(o))
```

```python
import sys, argparse
from asmlib import Asm

E = 800000; T = 12800000
NT = 256
CHA = 25088
TILE_N = 50000
TILE_BYTES = 300032
WS_DESC = 0x5000000
WS_PROF = 0x6000000
CAP = 64
BSTR = 400
NG = 196

def srd(a, d, base, size, off=None):
    if off is None:
        a(f"s_mov_b32 s{d}, s{base}")
        a(f"s_mov_b32 s{d+1}, s{base+1}")
    else:
        a(f"s_add_u32 s{d}, s{base}, {off}")
        a(f"s_addc_u32 s{d+1}, s{base+1}, 0")
    a(f"s_mov_b32 s{d+2}, {size}")
    a(f"s_mov_b32 s{d+3}, 0x20000")

class Prof:
    def __init__(self, a, on): self.a = a; self.on = on; self.n = 0
    def stamp(self):
        if not self.on: return
        a = self.a
        a("s_waitcnt lgkmcnt(0)")
        a("s_memtime s[58:59]")
        a("s_waitcnt lgkmcnt(0)")
        a(f"s_mov_b32 s{60+self.n}, s58")
        a("s_memrealtime s[58:59]")
        a("s_waitcnt lgkmcnt(0)")
        a(f"s_mov_b32 s{72+self.n}, s58")
        self.n += 1
    def dump(self, wsreg, region, vt, wave_sreg):
        if not self.on: return
        a = self.a
        srd(a, 52, wsreg, 0x100000, WS_PROF + region)
        a(f"s_lshl_b32 s56, s2, 4")
        a(f"s_add_u32 s56, s56, s{wave_sreg}")
        a(f"s_lshl_b32 s56, s56, 7")
        a("s_mov_b64 exec, 1")
        for i in range(self.n):
            a(f"v_mov_b32 v{vt}, s56")
            a(f"v_mov_b32 v{vt+1}, s{60+i}")
            a(f"buffer_store_dword v{vt+1}, v{vt}, s[52:55], 0 offen offset:{4*i}")
            a(f"v_mov_b32 v{vt+1}, s{72+i}")
            a(f"buffer_store_dword v{vt+1}, v{vt}, s[52:55], 0 offen offset:{64+4*i}")
        a("s_waitcnt vmcnt(0)")
        a("s_mov_b64 exec, -1")

def gen_p1(o):
    a = Asm(); S = o.S; P = Prof(a, o.prof)
    NK = S * 256
    KSL = (S << 26) // E
    SCR = NK * 4; STG = SCR + 64
    W0 = 4; KP0 = 53; C0 = 78; TO = 103; T0 = 104
    ld = o.p1_ld; st = o.p1_st
    a("s_cmp_ge_u32 s2, 256")
    a("s_cbranch_scc1 P1_end")
    a("s_load_dwordx4 s[4:7], s[0:1], 8")
    a("s_load_dwordx2 s[28:29], s[0:1], 32")
    a("s_load_dwordx2 s[30:31], s[0:1], 48")
    a("s_load_dwordx2 s[32:33], s[0:1], 104")
    a("v_lshlrev_b32 v1, 4, v0")
    a("v_lshlrev_b32 v2, 3, v0")
    a("v_mov_b32 v3, 1")
    for i in range(4): a(f"v_mov_b32 v{T0+i}, 0")
    a(f"ds_write_b128 v1, v[{T0}:{T0+3}]")
    a("v_lshrrev_b32 v108, 6, v0")
    a("v_readfirstlane_b32 s3, v108")
    a(f"s_mul_i32 s34, s2, 848")
    a(f"s_add_u32 s34, s34, {3072*4096}")
    a(f"v_add_u32 v109, s34, v0")
    a(f"v_cmp_gt_u32 vcc, 848, v0")
    a(f"v_lshlrev_b32 v110, 2, v109")
    a(f"v_lshlrev_b32 v109, 1, v109")
    a(f"v_cndmask_b32 v110, 2.0, v110, vcc")
    a(f"v_cndmask_b32 v109, 2.0, v109, vcc")
    a("s_waitcnt lgkmcnt(0)")
    P.stamp()
    srd(a, 8, 4, T * 4); srd(a, 12, 6, T * 4); srd(a, 16, 28, T * 2)
    a("s_load_dword s35, s[30:31], 0")
    a("s_lshl_b32 s36, s2, 14")
    a("s_lshl_b32 s37, s2, 13")
    a(f"buffer_load_dword v{TO}, v110, s[12:15], 0 offen {ld}")
    a(f"buffer_load_dword v{W0+48}, v110, s[8:11], 0 offen {ld}")
    a(f"buffer_load_ushort v{C0+24}, v109, s[16:19], 0 offen {ld}")
    def issue_idx(r):
        b = C0 + 4 * (r % 6); w = W0 + 4 * r
        a(f"buffer_load_dwordx4 v[{b}:{b+3}], v1, s[12:15], s36 offen {ld}")
        a(f"buffer_load_dwordx4 v[{w}:{w+3}], v1, s[8:11], s36 offen {ld}")
        a(f"s_add_u32 s36, s36, {256*16384}")
    def issue_ang(r):
        b = C0 + 2 * r
        a(f"buffer_load_dwordx2 v[{b}:{b+1}], v2, s[16:19], s37 offen {ld}")
        a(f"s_add_u32 s37, s37, {256*8192}")
    for r in range(6): issue_idx(r)
    a("s_mov_b32 s38, 0x3c00")
    a("s_mov_b32 s39, 0x3fc")
    a("s_waitcnt lgkmcnt(0)")
    a("s_lshl_b32 s35, s35, 16")
    a("s_barrier")
    def key(O, W, t0, t1):
        a(f"v_mul_u32_u24 v{t0}, {KSL}, v{W}")
        a(f"v_lshrrev_b32 v{t1}, 8, v{O}")
        a(f"v_and_b32_sdwa v{t0}, v{t0}, s38 dst_sel:DWORD dst_unused:UNUSED_PAD src0_sel:WORD_1 src1_sel:DWORD")
        a(f"v_bfi_b32 v{t1}, 15, v{O}, v{t1}")
        a(f"v_lshrrev_b32 v{O}, 2, v{O}")
        a(f"v_lshl_or_b32 v{W}, v{W}, 12, v{t1}")
        a(f"v_and_or_b32 v{O}, v{O}, s39, v{t0}")
    for r in range(12):
        a("s_waitcnt vmcnt(10)")
        if r == 0:
            key(TO, W0 + 48, T0, T0 + 1)
            a(f"v_cndmask_b32 v{KP0+24}, 2.0, v{TO}, vcc")
            a(f"ds_add_u32 v{KP0+24}, v3")
        b = C0 + 4 * (r % 6)
        for j in range(4):
            key(b + j, W0 + 4 * r + j, T0 + 2 * j, T0 + 2 * j + 1)
            a(f"ds_add_u32 v{b+j}, v3")
        a(f"v_lshl_or_b32 v{KP0+2*r}, v{b+1}, 16, v{b}")
        a(f"v_lshl_or_b32 v{KP0+2*r+1}, v{b+3}, 16, v{b+2}")
        if r < 6: issue_idx(r + 6)
        else:
            issue_ang(2 * (r - 6)); issue_ang(2 * (r - 6) + 1)
    a("s_waitcnt lgkmcnt(0)")
    a("s_barrier")
    P.stamp()
    c = T0; x = T0 + 4; tot = T0 + 5; y = T0 + 6
    a(f"s_cmp_ge_u32 s3, {S}")
    a("s_cbranch_scc1 P1_scan1")
    a(f"ds_read_b128 v[{c}:{c+3}], v1")
    a("s_waitcnt lgkmcnt(0)")
    a(f"v_add_u32 v{c+1}, v{c}, v{c+1}")
    a(f"v_add_u32 v{c+2}, v{c+1}, v{c+2}")
    a(f"v_add_u32 v{c+3}, v{c+2}, v{c+3}")
    a(f"v_mov_b32 v{x}, v{c+3}")
    for sh in (1, 2, 4, 8):
        a(f"v_add_u32_dpp v{x}, v{x}, v{x} row_shr:{sh} row_mask:0xf bank_mask:0xf bound_ctrl:1")
    a(f"v_add_u32_dpp v{x}, v{x}, v{x} row_bcast:15 row_mask:0xa bank_mask:0xf")
    a(f"v_add_u32_dpp v{x}, v{x}, v{x} row_bcast:31 row_mask:0xc bank_mask:0xf")
    a(f"v_readlane_b32 s40, v{x}, 63")
    a(f"s_lshl_b32 s41, s3, 2")
    a(f"v_mov_b32 v{y}, s41")
    a(f"v_mov_b32 v{y+1}, s40")
    a(f"ds_write_b32 v{y}, v{y+1} offset:{SCR}")
    a("s_waitcnt lgkmcnt(0)")
    a("P1_scan1:")
    a("s_barrier")
    a(f"s_cmp_ge_u32 s3, {S}")
    a("s_cbranch_scc1 P1_scan2")
    a(f"v_and_b32 v{y}, 63, v0")
    a(f"v_lshlrev_b32 v{y+1}, 2, v{y}")
    a(f"ds_read_b32 v{y+2}, v{y+1} offset:{SCR}")
    a(f"v_cmp_gt_u32 s[42:43], s3, v{y}")
    a(f"v_sub_u32 v{x}, v{x}, v{c+3}")
    a("s_waitcnt lgkmcnt(0)")
    a(f"v_cndmask_b32 v{y+2}, 0, v{y+2}, s[42:43]")
    for sh in (1, 2, 4, 8):
        a(f"v_add_u32_dpp v{y+2}, v{y+2}, v{y+2} row_shr:{sh} row_mask:0xf bank_mask:0xf bound_ctrl:1")
    a(f"v_readlane_b32 s40, v{y+2}, 15")
    srd(a, 24, 32, NT * NT * S * 4, WS_DESC)
    s0 = T0 + 12
    a(f"v_add_u32 v{s0}, s40, v{x}")
    for j in range(4): a(f"v_add_u32 v{s0+1+j}, v{s0}, v{c+j}")
    a(f"ds_write_b128 v1, v[{s0}:{s0+3}]")
    a(f"s_mul_i32 s40, s2, {256*S*4}")
    a(f"s_add_u32 s40, s40, s41")
    a(f"v_mul_u32_u24 v{y}, {16*S}, v{y}")
    a(f"v_add_u32 v{y}, s40, v{y}")
    for j in range(4):
        a(f"v_lshl_or_b32 v{c+j}, v{s0+j+1}, 16, v{s0+j}")
        a(f"buffer_store_dword v{c+j}, v{y}, s[24:27], 0 offen offset:{j*S*4}")
    a("s_waitcnt lgkmcnt(0)")
    a("P1_scan2:")
    a("s_barrier")
    P.stamp()
    def atomics(n):
        t = T0 + 4 * (n % 2)
        if n == 12:
            a(f"ds_add_rtn_u32 v{t}, v{KP0+24}, v3"); return 1
        for j in range(4):
            kp = KP0 + 2 * n + j // 2
            if j % 2 == 0: a(f"v_and_b32 v{t+j}, 0xffff, v{kp}")
            else: a(f"v_lshrrev_b32 v{t+j}, 16, v{kp}")
            a(f"ds_add_rtn_u32 v{t+j}, v{t+j}, v3")
        return 4
    atomics(0)
    for n in range(13):
        k = atomics(n + 1) if n < 12 else 0
        a(f"s_waitcnt lgkmcnt({k})")
        t = T0 + 4 * (n % 2); u = T0 + 8
        if n == 12:
            a(f"v_mov_b32 v{u}, 0xffff")
            a(f"v_cndmask_b32 v{t}, v{u}, v{t}, vcc")
        for j in range(4 if n < 12 else 1):
            a(f"v_lshrrev_b32 v{u+j}, 1, v{t+j}")
            a(f"v_add_lshl_u32 v{u+j}, v{u+j}, v{t+j}, 2")
            a(f"ds_write_b32 v{u+j}, v{W0+4*n+j} offset:{STG}")
        if n < 12:
            a(f"v_lshl_or_b32 v{KP0+2*n}, v{t+1}, 16, v{t}")
            a(f"v_lshl_or_b32 v{KP0+2*n+1}, v{t+3}, 16, v{t+2}")
        else:
            a(f"v_mov_b32 v{KP0+24}, v{t}")
    P.stamp()
    a("s_waitcnt vmcnt(0)")
    a("s_mov_b32 s44, 0xffff0000")
    def caddr(kp, hi, u, sub):
        if hi: a(f"v_lshrrev_b32 v{u}, 16, v{kp}")
        else: a(f"v_and_b32 v{u}, 0xffff, v{kp}")
        if sub: a(f"v_subrev_u32 v{u}, {CHA}, v{u}")
        a(f"v_ashrrev_i32 v{u+1}, 1, v{u}")
    for n in range(25):
        cr = C0 + n; t = T0 + 8 * (n % 2)
        a(f"v_lshlrev_b32 v{t}, 16, v{cr}")
        a(f"v_and_b32 v{t+1}, s44, v{cr}")
        a(f"v_mul_f32 v{t}, s35, v{t}")
        a(f"v_mul_f32 v{t+1}, s35, v{t+1}")
        a(f"v_cvt_pk_bf16_f32 v{t+1}, v{t}, v{t+1}")
        a(f"v_lshlrev_b32 v{t}, 16, v{t+1}")
        a(f"v_and_b32 v{t+1}, s44, v{t+1}")
        a(f"v_mul_f32 v{t}, 0.15915494, v{t}")
        a(f"v_mul_f32 v{t+1}, 0.15915494, v{t+1}")
        a(f"v_fract_f32 v{t}, v{t}")
        a(f"v_fract_f32 v{t+1}, v{t+1}")
        a(f"v_cos_f32 v{t}, v{t}")
        a(f"v_cos_f32 v{t+1}, v{t+1}")
        for h in range(2 if n < 24 else 1):
            u = t + 2 + 2 * h
            caddr(KP0 + n, h, u, False)
            a(f"v_lshl_add_u32 v{u}, v{u+1}, 2, v{u}")
            a(f"v_lshlrev_b32 v{u}, 1, v{u}")
        a(f"v_cvt_pk_bf16_f32 v{cr}, v{t}, v{t+1}")
        a(f"ds_write_b16 v{t+2}, v{cr} offset:{STG+8}")
        if n < 24: a(f"ds_write_b16_d16_hi v{t+4}, v{cr} offset:{STG+8}")
    def copyout(ch):
        nbytes = CHA * 6 if ch == 0 else (TILE_N - CHA) * 6
        a(f"s_mul_i32 s40, s2, {TILE_BYTES}")
        if ch: a(f"s_add_u32 s40, s40, {CHA*6}")
        srd(a, 20, 32, nbytes, "s40")
        a("v_mov_b32 v2, v1")
        a(f"v_mov_b32 v{TO}, v1")
        a("s_waitcnt lgkmcnt(0)")
        a("s_barrier")
        P.stamp()
        def rd(k):
            t = T0 + 4 * (k % 6)
            a(f"ds_read_b128 v[{t}:{t+3}], v2 offset:{STG}")
            a(f"v_add_u32 v2, 16384, v2")
        for k in range(6): rd(k)
        for k in range(10):
            t = T0 + 4 * (k % 6)
            a(f"s_waitcnt lgkmcnt({min(5, 9-k)})")
            a(f"buffer_store_dwordx4 v[{t}:{t+3}], v{TO}, s[20:23], 0 offen {st}")
            a(f"v_add_u32 v{TO}, 16384, v{TO}")
            if k + 6 < 10: rd(k + 6)
    copyout(0)
    a("s_barrier")
    P.stamp()
    for n in range(25):
        for h in range(2 if n < 24 else 1):
            u = T0 + 4 * ((2 * n + h) % 4)
            caddr(KP0 + n, h, u, True)
            a(f"v_add_lshl_u32 v{u+2}, v{u+1}, v{u}, 2")
            a(f"v_lshl_add_u32 v{u}, v{u+1}, 2, v{u}")
            a(f"ds_write_b32 v{u+2}, v{W0+2*n+h} offset:{STG}")
            a(f"v_lshlrev_b32 v{u}, 1, v{u}")
            a(f"ds_write_b16{'_d16_hi' if h else ''} v{u}, v{C0+n} offset:{STG+8}")
    copyout(1)
    if o.prof:
        P.stamp()
        a("s_waitcnt vmcnt(0)")
        P.stamp()
        P.dump(32, 0, T0, 3)
    a("P1_end:")
    a("s_endpgm")
    return a.finish(), STG + CHA * 6

def gen_p2(o):
    a = Asm(); S = o.S; P = Prof(a, o.prof)
    FLAG = 2048 - 16
    BUF0 = 2048; BUFSZ = NG * BSTR
    LDS = BUF0 + 2 * BUFSZ
    a("s_cmp_ge_u32 s2, 256")
    a("s_cbranch_scc1 P2_end")
    a("s_load_dwordx2 s[4:5], s[0:1], 0")
    a("s_load_dwordx2 s[6:7], s[0:1], 24")
    a("s_load_dwordx2 s[32:33], s[0:1], 104")
    a("s_load_dwordx2 s[34:35], s[0:1], 40")
    a("s_load_dwordx8 s[36:43], s[0:1], 56")
    a("s_load_dwordx2 s[44:45], s[0:1], 88")
    a("v_lshrrev_b32 v1, 6, v0")
    a("v_readfirstlane_b32 s3, v1")
    a("s_and_b32 s46, s2, 7")
    a("s_lshl_b32 s46, s46, 5")
    a("s_lshr_b32 s47, s2, 3")
    a("s_add_u32 s46, s46, s47")
    a("v_and_b32 v12, 63, v0")
    a("s_waitcnt lgkmcnt(0)")
    P.stamp()
    srd(a, 8, 4, E * 32)
    srd(a, 12, 32, NT * TILE_BYTES)
    srd(a, 16, 32, NT * NT * S * 4, WS_DESC)
    srd(a, 20, 44, E * 32)
    srd(a, 24, 6, E * 2)
    srd(a, 28, 40, 512)
    a("s_cmp_ge_u32 s3, 4")
    a("s_cbranch_scc1 P2_consumer")
    D0 = 40; R0 = 64
    vU = 1; vTB = 2; vOne = 3; v3FC = 4; v100 = 5; vZ = 6
    vd = 8; vhs = 9; vp0 = 10; vst = 11; ven = 13; vca = 14; vcb = 15; vra = 16; vrb = 17; vba = 18; vbb = 19; vt = 20
    if o.prio: a(f"s_setprio {o.prio}")
    a(f"s_lshl_b32 s47, s3, 6")
    a(f"v_add_u32 v{vt}, s47, v12")
    a(f"v_lshlrev_b32 v{vt}, 8, v{vt}")
    a(f"v_add_u32 v{vt}, s46, v{vt}")
    a(f"v_mul_u32_u24 v{vt}, {4*S}, v{vt}")
    k = 0
    while k < S:
        w = 4 if S - k >= 4 else (2 if S - k >= 2 else 1)
        sfx = {4: "x4", 2: "x2", 1: ""}[w]
        dst = f"v[{D0+k}:{D0+k+w-1}]" if w > 1 else f"v{D0+k}"
        a(f"buffer_load_dword{sfx} {dst}, v{vt}, s[16:19], 0 offen offset:{4*k}")
        k += w
    a(f"v_mov_b32 v{D0+S}, 0")
    a(f"v_and_b32 v{vU}, 15, v12")
    a(f"v_and_b32 v{vTB}, 48, v12")
    a(f"v_add_u32 v{vTB}, s47, v{vTB}")
    a(f"v_mul_u32_u24 v{vTB}, {TILE_BYTES}, v{vTB}")
    a(f"v_mad_u32_u24 v{vTB}, v{vU}, 12, v{vTB}")
    a(f"v_mov_b32 v{vOne}, 1")
    a(f"v_mov_b32 v{v3FC}, 0x3fc")
    a(f"v_mov_b32 v{v100}, {BSTR//4}")
    a(f"v_mov_b32 v{vZ}, 0")
    a("s_mov_b32 s48, 0")
    a("s_mov_b32 s49, 0")
    a("s_mov_b32 s50, 0")
    a(f"s_mov_b32 s51, {BUF0}")
    a("s_mov_b32 s84, 0x80008000")
    a("s_mov_b32 s85, 0x80008000")
    def issue(dreg, i):
        a(f"v_mov_b32_dpp v{vd}, v{dreg} row_newbcast:{i} row_mask:0xf bank_mask:0xf")
        a(f"s_mov_b32 s86, {i*TILE_BYTES}")
        a(f"v_bfe_u32 v{vhs}, v{vd}, 1, 15")
        a(f"v_add_lshl_u32 v{vp0}, v{vhs}, v{vU}, 1")
        a(f"v_cmp_lt_u32_sdwa vcc, v{vp0}, v{vd} src0_sel:DWORD src1_sel:WORD_1")
        a(f"v_mad_u32_u24 v{vt}, v{vhs}, 12, v{vTB}")
        a(f"v_cndmask_b32 v{vt}, 2.0, v{vt}, vcc")
        r = R0 + 4 * i
        a(f"buffer_load_dwordx3 v[{r}:{r+2}], v{vt}, s[12:15], s86 offen {o.p2_rec}")
    def next_round():
        a("s_add_u32 s48, s48, 1")
        if o.maxr:
            a(f"s_cmp_gt_u32 s48, {o.maxr}")
            a("s_cbranch_scc1 P2_pdone")
        a(f"v_mov_b32 v{vt}, s48")
        a(f"ds_max_u32 v{vZ}, v{vt} offset:{FLAG}")
        a("s_xor_b32 s50, s50, 1024")
        a(f"s_xor_b32 s51, s51, {(BUF0 ^ ((BUF0 + BUFSZ - 1024 * (BSTR//4)) & 0xffffffff))}")
        a("s_waitcnt lgkmcnt(0)")
        a("s_barrier")
    a("s_waitcnt vmcnt(0)")
    for i in range(16): issue(D0, i)
    a("s_barrier")
    a("P2_pslice:")
    for i in range(16):
        r = R0 + 4 * i
        a(f"v_mov_b32_dpp v{vd}, v{D0} row_newbcast:{i} row_mask:0xf bank_mask:0xf")
        a(f"v_and_b32 v{vst}, 0xffff, v{vd}")
        a(f"v_lshrrev_b32 v{ven}, 16, v{vd}")
        a(f"v_lshrrev_b32 v{vhs}, 1, v{vst}")
        a(f"v_add_lshl_u32 v{vp0}, v{vhs}, v{vU}, 1")
        a("s_waitcnt vmcnt(15)")
        a(f"P2_place{i}:")
        a(f"v_cmp_lt_u32 s[88:89], v{vp0}, v{ven}")
        a(f"v_cmp_ge_u32 vcc, v{vp0}, v{vst}")
        a(f"v_add_u32 v{vt}, 1, v{vp0}")
        a(f"v_cmp_lt_u32 s[90:91], v{vt}, v{ven}")
        a(f"v_add_u32 v{vt}, 2, v{vp0}")
        a(f"v_cmp_lt_u32 s[92:93], v{vt}, v{ven}")
        a(f"s_and_b64 s[88:89], s[88:89], vcc")
        a(f"P2_retry{i}:")
        a(f"v_lshrrev_b32 v{vca}, 2, v{r}")
        a(f"v_lshrrev_b32 v{vcb}, 2, v{r+1}")
        a(f"v_and_or_b32 v{vca}, v{vca}, v{v3FC}, s50")
        a(f"v_and_or_b32 v{vcb}, v{vcb}, v{v3FC}, s50")
        a(f"s_mov_b64 exec, s[88:89]")
        a(f"ds_add_rtn_u32 v{vra}, v{vca}, v{vOne}")
        a(f"s_mov_b64 exec, s[90:91]")
        a(f"ds_add_rtn_u32 v{vrb}, v{vcb}, v{vOne}")
        a(f"s_mov_b64 exec, -1")
        a(f"v_mad_u32_u24 v{vba}, v{vca}, v{v100}, s51")
        a(f"v_mad_u32_u24 v{vbb}, v{vcb}, v{v100}, s51")
        a("s_waitcnt lgkmcnt(0)")
        a(f"v_cmp_gt_u32 vcc, {CAP}, v{vra}")
        a(f"v_cmp_gt_u32 s[94:95], {CAP}, v{vrb}")
        a(f"v_lshl_add_u32 v{vca}, v{vra}, 2, v{vba}")
        a(f"v_lshl_add_u32 v{vba}, v{vra}, 1, v{vba}")
        a(f"v_lshl_add_u32 v{vcb}, v{vrb}, 2, v{vbb}")
        a(f"v_lshl_add_u32 v{vbb}, v{vrb}, 1, v{vbb}")
        a(f"s_and_b64 exec, s[88:89], vcc")
        a(f"ds_write_b32 v{vca}, v{r}")
        a(f"ds_write_b16 v{vba}, v{r+2} offset:{CAP*4}")
        a(f"s_and_b64 exec, s[90:91], s[94:95]")
        a(f"ds_write_b32 v{vcb}, v{r+1}")
        a(f"ds_write_b16_d16_hi v{vbb}, v{r+2} offset:{CAP*4}")
        a(f"s_mov_b64 exec, -1")
        a(f"s_andn2_b64 s[88:89], s[88:89], vcc")
        a(f"s_andn2_b64 s[90:91], s[90:91], s[94:95]")
        a(f"s_or_b64 s[94:95], s[88:89], s[90:91]")
        a(f"s_cbranch_scc1 P2_stall{i}")
        a(f"s_and_b64 s[92:93], s[92:93], s[84:85]")
        a(f"s_cbranch_scc1 P2_more{i}")
        issue(D0 + 1, i)
    a("s_add_u32 s49, s49, 1")
    a(f"s_cmp_ge_u32 s49, {S}")
    a("s_cbranch_scc1 P2_pdone")
    for k in range(S): a(f"v_mov_b32 v{D0+k}, v{D0+k+1}")
    a("s_cmp_ge_u32 s48, s49")
    a("s_cbranch_scc1 P2_pslice")
    next_round()
    a("s_branch P2_pslice")
    a("P2_pdone:")
    a("s_waitcnt vmcnt(0) lgkmcnt(0)")
    a("s_endpgm")
    for i in range(16):
        r = R0 + 4 * i
        a(f"P2_stall{i}:")
        next_round()
        a(f"s_branch P2_retry{i}")
        a(f"P2_more{i}:")
        a(f"v_add_u32 v{vhs}, 16, v{vhs}")
        a(f"v_add_u32 v{vp0}, 32, v{vp0}")
        a(f"s_mov_b32 s86, {i*TILE_BYTES}")
        a(f"v_cmp_lt_u32 vcc, v{vp0}, v{ven}")
        a(f"v_mad_u32_u24 v{vt}, v{vhs}, 12, v{vTB}")
        a(f"v_cndmask_b32 v{vt}, 2.0, v{vt}, vcc")
        a(f"buffer_load_dwordx3 v[{r}:{r+2}], v{vt}, s[12:15], s86 offen {o.p2_rec}")
        a("s_waitcnt vmcnt(0)")
        a(f"s_branch P2_place{i}")
    a("P2_consumer:")
    ACC = 60; G0 = 52; B0 = 44; WA = 36; WB = 40; D1 = 28; vW = 20; vC = 16; vA = 15
    bA = 1; bW = 2; bC = 3; vLB = 4; vH = 5; vSl = 6; vCnt = 7; vCA = 8; vAd = 10; vZ = 11; vFl = 9
    a("s_sub_u32 s47, s3, 4")
    a("s_min_u32 s48, s47, 4")
    a("s_lshl_b32 s49, s47, 4")
    a("s_add_u32 s49, s49, s48")
    a("s_cmp_lt_u32 s47, 4")
    a("s_cselect_b32 s50, 17, 16")
    a("v_and_b32 v13, 15, v12")
    a("v_lshrrev_b32 v14, 4, v12")
    a(f"v_and_b32 v{vH}, 16, v12")
    a(f"v_lshlrev_b32 v{vAd}, 4, v{vH}")
    a(f"v_lshl_add_u32 v{vAd}, v13, 1, v{vAd}")
    for c in range(8): a(f"buffer_load_ushort v{vW+c}, v{vAd}, s[28:31], 0 offen offset:{32*c}")
    for i in range(4): a(f"v_mov_b32 v{D1+i}, 0")
    a(f"v_subrev_u32 v{vA}, 256, v0")
    a(f"v_lshlrev_b32 v{vA}, 4, v{vA}")
    for k in range(-(-LDS // (768 * 16))):
        a(f"ds_write_b128 v{vA}, v[{D1}:{D1+3}]")
        a(f"v_add_u32 v{vA}, {768*16}, v{vA}")
    for i in range(68): a(f"v_mov_b32 v{ACC+i}, 0")
    for i in range(16): a(f"v_mov_b32 v{B0+i}, 0")
    a(f"v_mov_b32 v{vZ}, 0")
    a(f"v_and_b32 v{vSl}, 12, v12")
    a(f"v_lshlrev_b32 v{vSl}, 1, v{vSl}")
    a(f"v_and_or_b32 v{vSl}, v12, 3, v{vSl}")
    a(f"v_lshrrev_b32 v{vA}, 5, v12")
    a(f"v_lshl_or_b32 v{vSl}, v{vA}, 2, v{vSl}")
    a(f"s_mul_i32 s51, s49, {BSTR}")
    a(f"s_add_u32 s51, s51, {BUF0}")
    a(f"v_lshl_add_u32 v{bA}, v{vSl}, 2, s51")
    a(f"v_lshl_add_u32 v{bW}, v14, 5, s51")
    a(f"v_lshl_add_u32 v{bC}, v14, 4, s51")
    a(f"v_mov_b32 v{vLB}, 0x80008000")
    a(f"v_lshrrev_b32 v{vLB}, v13, v{vLB}")
    a(f"v_add_lshl_u32 v{vCA}, v12, s49, 2")
    a(f"v_cmp_gt_u32 vcc, s50, v12")
    a(f"v_cmp_gt_u32 s[88:89], 32, v12")
    a("s_mov_b32 s84, 0x05040100")
    a("s_mov_b32 s85, 0xffffffe0")
    a(f"v_cndmask_b32 v{vCA}, 2.0, v{vCA}, vcc")
    a("s_waitcnt vmcnt(0)")
    for u in range(4):
        a(f"v_lshl_or_b32 v{vW+u}, v{vW+2*u+1}, 16, v{vW+2*u}")
    for u in range(4):
        a(f"v_cndmask_b32 v{WA+u}, 0, v{vW+u}, s[88:89]")
        a(f"v_cndmask_b32 v{WB+u}, v{vW+u}, 0, s[88:89]")
    a("s_mov_b32 s48, 0")
    a("s_waitcnt lgkmcnt(0)")
    a("s_barrier")
    P.stamp()
    def lds_reads(i, second):
        oa = i * BSTR + (128 if second else 0); oc = i * BSTR + CAP * 4 + (64 if second else 0)
        a(f"ds_read_b32 v{vA}, v{bA} offset:{oa}")
        a(f"ds_read_b128 v[{vW}:{vW+3}], v{bW} offset:{oa}")
        a(f"ds_read_b128 v[{vW+4}:{vW+7}], v{bW} offset:{oa+16}")
        a(f"ds_read_b128 v[{vC}:{vC+3}], v{bC} offset:{oc}")
    def addr_and_perm():
        a(f"v_lshrrev_b32 v{vAd}, 7, v{vA}")
        a(f"v_and_or_b32 v{vAd}, v{vAd}, s85, v{vH}")
        a(f"v_cmp_gt_u32 vcc, s86, v{vSl}")
        for u in range(4): a(f"v_perm_b32 v{vW+u}, v{vW+2*u+1}, v{vW+2*u}, s84")
        a(f"v_cndmask_b32 v{vAd}, 2.0, v{vAd}, vcc")
    def masks():
        for u in range(4): a(f"v_pk_lshlrev_b16 v{vW+u}, v{vW+u}, v{vLB}")
        for u in range(4): a(f"v_pk_ashrrev_i16 v{vW+u}, 15, v{vW+u} op_sel_hi:[0,1]")
    def mfma1(g):
        a(f"v_mfma_f32_16x16x32_bf16 v[{D1}:{D1+3}], v[{g}:{g+3}], v[{WA}:{WA+3}], 0")
        a(f"v_mfma_f32_16x16x32_bf16 v[{D1+4}:{D1+7}], v[{g}:{g+3}], v[{WB}:{WB+3}], 0")
    def mfma2(i, b):
        for u in range(4): a(f"v_cvt_pk_bf16_f32 v{D1+u}, v{D1+2*u}, v{D1+2*u+1}")
        c = ACC + 4 * i
        a(f"v_mfma_f32_16x16x32_bf16 v[{c}:{c+3}], v[{D1}:{D1+3}], v[{b}:{b+3}], v[{c}:{c+3}]")
    NS = 17
    for par in range(2):
        a(f"P2_round{par}:")
        a("s_barrier")
        if o.prof and par == 0:
            a("s_cmp_lg_u32 s48, 0"); a("s_cbranch_scc1 P2_nostamp"); P.stamp(); a("P2_nostamp:")
        a(f"ds_read_b32 v{vCnt}, v{vCA} offset:{1024*par}")
        a(f"ds_read_b32 v{vFl}, v{vZ} offset:{FLAG}")
        lds_reads(0, False)
        a("s_add_u32 s48, s48, 1")
        a("s_waitcnt lgkmcnt(4)")
        a(f"ds_write_b32 v{vCA}, v{vZ} offset:{1024*par}")
        a(f"v_min_u32 v{vCnt}, {CAP}, v{vCnt}")
        a(f"v_readfirstlane_b32 s87, v{vFl}")
        for i in range(NS):
            p = (par * NS + i) % 2
            g = G0 + 4 * p; b = B0 + 4 * p
            if o.cprio and i % 5 == 0 and i < 15: a(f"s_setprio {2 - i // 5}")
            a(f"v_readlane_b32 s86, v{vCnt}, {i}")
            a("s_waitcnt lgkmcnt(0)")
            addr_and_perm()
            a("s_waitcnt vmcnt(1)")
            mfma1(g)
            a(f"buffer_load_dwordx4 v[{g}:{g+3}], v{vAd}, s[8:11], 0 offen")
            masks()
            mfma2((i - 2) % NS, b)
            for u in range(4): a(f"v_and_b32 v{b+u}, v{vW+u}, v{vC+u}")
            a("s_cmp_gt_u32 s86, 32")
            a(f"s_cbranch_scc1 P2_slow{par}_{i}")
            a(f"P2_back{par}_{i}:")
            if i + 1 < NS: lds_reads(i + 1, False)
        op = "v_add_u32" if par == 0 else "v_subrev_u32"
        for r in (bA, bW, bC): a(f"{op} v{r}, {BUFSZ}, v{r}")
        a("s_cmp_ge_u32 s87, s48")
        if par == 0:
            a("s_cbranch_scc0 P2_drain0")
        else:
            a("s_cbranch_scc1 P2_round0")
    def drain(par):
        for i in (NS, NS + 1):
            p = (par * NS + i) % 2
            a(f"s_waitcnt vmcnt({NS+1-i})")
            mfma1(G0 + 4 * p)
            mfma2(i - 2, B0 + 4 * p)
    drain(1)
    a("s_branch P2_epi")
    for par in range(2):
        for i in range(NS):
            a(f"P2_slow{par}_{i}:")
            lds_reads(i, True)
            a("s_sub_u32 s86, s86, 32")
            a("s_waitcnt lgkmcnt(0)")
            addr_and_perm()
            a(f"buffer_load_dwordx4 v[{vW+4}:{vW+7}], v{vAd}, s[8:11], 0 offen")
            masks()
            for u in range(4): a(f"v_and_b32 v{vC+u}, v{vW+u}, v{vC+u}")
            a("s_waitcnt vmcnt(0)")
            mfma1(vW + 4)
            mfma2(i, vC)
            a(f"s_branch P2_back{par}_{i}")
    a("P2_drain0:")
    drain(0)
    a("P2_epi:")
    P.stamp()
    vOff = 1; vOo = 2; vDo = 3; DS = 4
    WS_ = 16; WR_ = 20; WU = 24; CEN = 26
    M0 = 30
    X = 38
    a(f"s_lshl_b32 s51, s49, 8")
    a(f"s_add_u32 s51, s51, s46")
    a(f"s_lshl_b32 s51, s51, 4")
    a(f"v_add_u32 v{vOff}, s51, v13")
    a(f"v_lshrrev_b32 v{X}, 1, v14")
    a(f"v_lshl_add_u32 v{vDo}, v{X}, 12, v{vOff}")
    a(f"v_lshlrev_b32 v{vDo}, 1, v{vDo}")
    a(f"v_lshlrev_b32 v{vOff}, 5, v{vOff}")
    a(f"v_lshl_add_u32 v{vOff}, v14, 3, v{vOff}")
    a(f"v_mov_b32 v{vOo}, v{vOff}")
    a(f"v_lshlrev_b32 v{X+1}, 7, v14")
    a(f"v_lshl_add_u32 v{X+1}, v13, 1, v{X+1}")
    a(f"v_and_b32 v{X+2}, 0xff, v{X+1}")
    a(f"v_and_b32 v{X+3}, 1, v14")
    a(f"v_lshlrev_b32 v{X+3}, 3, v{X+3}")
    srd(a, 28, 42, 512)
    for c in range(4): a(f"buffer_load_ushort v{X+4+c}, v{X+1}, s[28:31], 0 offen offset:{32*c}")
    srd(a, 12, 38, 256)
    for c in range(4): a(f"buffer_load_ushort v{X+8+c}, v{X+2}, s[12:15], 0 offen offset:{32*c}")
    srd(a, 16, 36, 256)
    for c in range(4): a(f"buffer_load_ushort v{X+12+c}, v{X+2}, s[16:19], 0 offen offset:{32*c}")
    srd(a, 52, 34, 16)
    for c in range(4): a(f"buffer_load_ushort v{CEN+c}, v{X+3}, s[52:55], 0 offen offset:{2*c}")
    for k in range(9):
        a(f"buffer_load_ushort v{DS+k}, v{vDo}, s[24:27], 0 offen")
        a(f"v_add_u32 v{vDo}, {2*4096*2}, v{vDo}")
    def mload(i):
        m = M0 + 2 * (i % 4)
        a(f"buffer_load_dwordx2 v[{m}:{m+1}], v{vOff}, s[8:11], 0 offen")
        a(f"v_add_u32 v{vOff}, {4096*32}, v{vOff}")
    for i in range(4): mload(i)
    a("s_mov_b32 s84, 0xffff0000")
    a("s_mov_b32 s85, 0xc1200000")
    a("s_mov_b32 s86, 0x3fb8aa3b")
    a("s_waitcnt vmcnt(4)")
    for u in range(2):
        a(f"v_lshl_or_b32 v{WU+u}, v{X+5+2*u}, 16, v{X+4+2*u}")
        a(f"v_lshl_or_b32 v{X+8+u}, v{X+9+2*u}, 16, v{X+8+2*u}")
        a(f"v_lshl_or_b32 v{X+12+u}, v{X+13+2*u}, 16, v{X+12+2*u}")
    for u in range(2):
        a(f"v_cndmask_b32 v{WS_+u}, 0, v{X+8+u}, s[88:89]")
        a(f"v_cndmask_b32 v{WS_+2+u}, v{X+8+u}, 0, s[88:89]")
        a(f"v_cndmask_b32 v{WR_+u}, 0, v{X+12+u}, s[88:89]")
        a(f"v_cndmask_b32 v{WR_+2+u}, v{X+12+u}, 0, s[88:89]")
    for c in range(4): a(f"v_lshlrev_b32 v{CEN+c}, 16, v{CEN+c}")
    RB = X; t = X + 2; SS = X + 6; GG = X + 10; AG = X + 14; UU = X + 16; OT = X + 20
    def rnd():
        for u in range(2):
            a(f"v_cvt_pk_bf16_f32 v{t+2*u+1}, v{t+2*u}, v{t+2*u+1}")
        for u in range(2):
            a(f"v_lshlrev_b32 v{t+2*u}, 16, v{t+2*u+1}")
            a(f"v_and_b32 v{t+2*u+1}, s84, v{t+2*u+1}")
    for i in range(NS):
        if i == 16:
            a("s_cmp_lt_u32 s50, 17")
            a("s_cbranch_scc1 P2_fin")
        if i % 2 == 0:
            d = DS + i // 2
            a(f"v_lshlrev_b32 v{d}, 16, v{d}")
            for c in range(4): a(f"v_sub_f32 v{t+c}, v{d}, v{CEN+c}")
            rnd()
            for c in range(4): a(f"v_mul_f32 v{t+c}, v{t+c}, v{t+c}")
            rnd()
            for c in range(4): a(f"v_mul_f32 v{t+c}, s85, v{t+c}")
            rnd()
            for c in range(4): a(f"v_mul_f32 v{t+c}, s86, v{t+c}")
            for c in range(4): a(f"v_exp_f32 v{t+c}, v{t+c}")
            for u in range(2): a(f"v_cvt_pk_bf16_f32 v{RB+u}, v{t+2*u}, v{t+2*u+1}")
        h = 2 * (i % 2); c0 = ACC + 4 * i; m = M0 + 2 * (i % 4)
        a(f"v_mfma_f32_16x16x16_bf16 v[{SS}:{SS+3}], v[{WS_+h}:{WS_+h+1}], v[{RB}:{RB+1}], 0")
        a(f"v_mfma_f32_16x16x16_bf16 v[{GG}:{GG+3}], v[{WR_+h}:{WR_+h+1}], v[{RB}:{RB+1}], 0")
        nl = min(3, NS - 1 - i); ns = min(3, i)
        a(f"s_waitcnt vmcnt({nl + ns if i + 3 < NS else nl})")
        a(f"v_lshlrev_b32 v{t}, 16, v{m}")
        a(f"v_and_b32 v{t+1}, s84, v{m}")
        a(f"v_lshlrev_b32 v{t+2}, 16, v{m+1}")
        a(f"v_and_b32 v{t+3}, s84, v{m+1}")
        for c in range(4): a(f"v_mul_f32 v{SS+c}, v{SS+c}, v{c0+c}")
        for u in range(2): a(f"v_cvt_pk_bf16_f32 v{AG+u}, v{SS+2*u}, v{SS+2*u+1}")
        a(f"v_mfma_f32_16x16x16_bf16 v[{UU}:{UU+3}], v[{WU}:{WU+1}], v[{AG}:{AG+1}], 0")
        for c in range(4): a(f"v_fma_f32 v{t+c}, v{UU+c}, v{GG+c}, v{t+c}")
        for u in range(2): a(f"v_cvt_pk_bf16_f32 v{OT+u}, v{t+2*u}, v{t+2*u+1}")
        a(f"buffer_store_dwordx2 v[{OT}:{OT+1}], v{vOo}, s[20:23], 0 offen")
        a(f"v_add_u32 v{vOo}, {4096*32}, v{vOo}")
        if i + 4 < NS: mload(i + 4)
    a("P2_fin:")
    if o.prof:
        P.stamp()
        a("s_waitcnt vmcnt(0)")
        P.stamp()
        P.dump(32, 0x80000, X, 3)
    a("P2_end:")
    a("s_endpgm")
    return a.finish(), LDS

KD = """.amdhsa_kernel {name}
  .amdhsa_next_free_vgpr 128
  .amdhsa_next_free_sgpr 96
  .amdhsa_accum_offset 128
  .amdhsa_group_segment_fixed_size 0
  .amdhsa_kernarg_size 112
  .amdhsa_user_sgpr_count 2
  .amdhsa_user_sgpr_kernarg_segment_ptr 1
  .amdhsa_system_sgpr_workgroup_id_x 1
  .amdhsa_float_denorm_mode_32 3
.end_amdhsa_kernel
"""

def build(o):
    p1, l1 = gen_p1(o); p2, l2 = gen_p2(o)
    ref = open("gather_scatter__molecular_angular_gemnet__graph.s.ref").read().split("\n")
    head = [l for l in ref if l.startswith(";") and "launch geometry" not in l and "Harness parses" not in l and "@launch" not in l]
    s = "\n".join(head) + "\n"
    s += "; Two launches: p1 partitions the triplets by (input slice, output bin); p2 gathers / segment-sums with MFMA.\n"
    s += f"; @launch kernel=gemnet_p1_kernel grid=(256,1,1) block=(1024,1,1) lds={l1}\n"
    s += f"; @launch kernel=gemnet_p2_kernel grid=(256,1,1) block=(1024,1,1) lds={l2}\n"
    s += '.amdgcn_target "amdgcn-amd-amdhsa--gfx950"\n.text\n'
    for n, b in (("gemnet_p1_kernel", p1), ("gemnet_p2_kernel", p2)):
        s += f".globl {n}\n.p2align 8\n.type {n},@function\n{n}:\n" + b
    s += '.section .rodata,"a"\n'
    for n in ("gemnet_p1_kernel", "gemnet_p2_kernel"):
        s += ".p2align 6\n" + KD.format(name=n)
    return s

def parser():
    p = argparse.ArgumentParser()
    p.add_argument("-S", type=int, default=10)
    p.add_argument("--prof", type=int, default=0)
    p.add_argument("--maxr", type=int, default=0)
    p.add_argument("--p1_ld", default="")
    p.add_argument("--p1_st", default="")
    p.add_argument("--p2_rec", default="")
    p.add_argument("--prio", type=int, default=3)
    p.add_argument("--cprio", type=int, default=0)
    p.add_argument("-o", default="gather_scatter__molecular_angular_gemnet__graph.s")
    return p

if __name__ == "__main__":
    o = parser().parse_args()
    open(o.o, "w").write(build(o))
```

```python
import sys, argparse
from asmlib import Asm

E = 800000; T = 12800000
NT = 256
CHA = 25088
TILE_N = 50000
TILE_BYTES = 300032
WS_DESC = 0x5000000
WS_PROF = 0x6000000
CAP = 64
BSTR = 400
NG = 196

def srd(a, d, base, size, off=None):
    if off is None:
        a(f"s_mov_b32 s{d}, s{base}")
        a(f"s_mov_b32 s{d+1}, s{base+1}")
    else:
        a(f"s_add_u32 s{d}, s{base}, {off}")
        a(f"s_addc_u32 s{d+1}, s{base+1}, 0")
    a(f"s_mov_b32 s{d+2}, {size}")
    a(f"s_mov_b32 s{d+3}, 0x20000")

class Prof:
    def __init__(self, a, on): self.a = a; self.on = on; self.n = 0
    def stamp(self):
        if not self.on: return
        a = self.a
        a("s_waitcnt lgkmcnt(0)")
        a("s_memtime s[58:59]")
        a("s_waitcnt lgkmcnt(0)")
        a(f"s_mov_b32 s{60+self.n}, s58")
        a("s_memrealtime s[58:59]")
        a("s_waitcnt lgkmcnt(0)")
        a(f"s_mov_b32 s{72+self.n}, s58")
        self.n += 1
    def dump(self, wsreg, region, vt, wave_sreg):
        if not self.on: return
        a = self.a
        srd(a, 52, wsreg, 0x100000, WS_PROF + region)
        a(f"s_lshl_b32 s56, s2, 4")
        a(f"s_add_u32 s56, s56, s{wave_sreg}")
        a(f"s_lshl_b32 s56, s56, 7")
        a("s_mov_b64 exec, 1")
        for i in range(self.n):
            a(f"v_mov_b32 v{vt}, s56")
            a(f"v_mov_b32 v{vt+1}, s{60+i}")
            a(f"buffer_store_dword v{vt+1}, v{vt}, s[52:55], 0 offen offset:{4*i}")
            a(f"v_mov_b32 v{vt+1}, s{72+i}")
            a(f"buffer_store_dword v{vt+1}, v{vt}, s[52:55], 0 offen offset:{64+4*i}")
        a(f"v_mov_b32 v{vt+1}, s71")
        a(f"buffer_store_dword v{vt+1}, v{vt}, s[52:55], 0 offen offset:124")
        a("s_waitcnt vmcnt(0)")
        a("s_mov_b64 exec, -1")

def gen_p1(o):
    a = Asm(); S = o.S; P = Prof(a, o.prof)
    NK = S * 256
    KSL = (S << 26) // E
    SCR = NK * 4; STG = SCR + 64
    W0 = 4; KP0 = 53; C0 = 78; TO = 103; T0 = 104
    ld = o.p1_ld; st = o.p1_st
    a("s_cmp_ge_u32 s2, 256")
    a("s_cbranch_scc1 P1_end")
    a("s_load_dwordx4 s[4:7], s[0:1], 8")
    a("s_load_dwordx2 s[28:29], s[0:1], 32")
    a("s_load_dwordx2 s[30:31], s[0:1], 48")
    a("s_load_dwordx2 s[32:33], s[0:1], 104")
    a("s_load_dwordx2 s[46:47], s[0:1], 0")
    a("v_lshlrev_b32 v1, 4, v0")
    a("v_lshlrev_b32 v2, 3, v0")
    a("v_mov_b32 v3, 1")
    for i in range(4): a(f"v_mov_b32 v{T0+i}, 0")
    a(f"ds_write_b128 v1, v[{T0}:{T0+3}]")
    a("v_lshrrev_b32 v127, 6, v0")
    a("v_readfirstlane_b32 s3, v127")
    a(f"s_mul_i32 s34, s2, 848")
    a(f"s_add_u32 s34, s34, {3072*4096}")
    a(f"v_add_u32 v109, s34, v0")
    a(f"v_cmp_gt_u32 vcc, 848, v0")
    a(f"v_lshlrev_b32 v110, 2, v109")
    a(f"v_lshlrev_b32 v109, 1, v109")
    a(f"v_cndmask_b32 v110, 2.0, v110, vcc")
    a(f"v_cndmask_b32 v109, 2.0, v109, vcc")
    a("s_waitcnt lgkmcnt(0)")
    P.stamp()
    srd(a, 8, 4, T * 4); srd(a, 12, 6, T * 4); srd(a, 16, 28, T * 2)
    a("s_load_dword s35, s[30:31], 0")
    a("s_lshl_b32 s36, s2, 14")
    a("s_lshl_b32 s37, s2, 13")
    a(f"buffer_load_dword v{TO}, v110, s[12:15], 0 offen {ld}")
    a(f"buffer_load_dword v{W0+48}, v110, s[8:11], 0 offen {ld}")
    a(f"buffer_load_ushort v{C0+24}, v109, s[16:19], 0 offen {ld}")
    def issue_idx(r):
        b = C0 + 4 * (r % 6); w = W0 + 4 * r
        a(f"buffer_load_dwordx4 v[{b}:{b+3}], v1, s[12:15], s36 offen {ld}")
        a(f"buffer_load_dwordx4 v[{w}:{w+3}], v1, s[8:11], s36 offen {ld}")
        a(f"s_add_u32 s36, s36, {256*16384}")
    def issue_ang(r):
        b = C0 + 2 * r
        a(f"buffer_load_dwordx2 v[{b}:{b+1}], v2, s[16:19], s37 offen {ld}")
        a(f"s_add_u32 s37, s37, {256*8192}")
    for r in range(6): issue_idx(r)
    a("s_mov_b32 s38, 0x3c00")
    a("s_mov_b32 s39, 0x3fc")
    a("s_waitcnt lgkmcnt(0)")
    a("s_lshl_b32 s35, s35, 16")
    a("s_barrier")
    def key(O, W, t0, t1):
        a(f"v_mul_u32_u24 v{t0}, {KSL}, v{W}")
        a(f"v_lshrrev_b32 v{t1}, 8, v{O}")
        a(f"v_and_b32_sdwa v{t0}, v{t0}, s38 dst_sel:DWORD dst_unused:UNUSED_PAD src0_sel:WORD_1 src1_sel:DWORD")
        a(f"v_bfi_b32 v{t1}, 15, v{O}, v{t1}")
        a(f"v_lshrrev_b32 v{O}, 2, v{O}")
        a(f"v_lshl_or_b32 v{W}, v{W}, 12, v{t1}")
        a(f"v_and_or_b32 v{O}, v{O}, s39, v{t0}")
    for r in range(12):
        a("s_waitcnt vmcnt(10)")
        if r == 0:
            key(TO, W0 + 48, T0, T0 + 1)
            a(f"v_cndmask_b32 v{KP0+24}, 2.0, v{TO}, vcc")
            a(f"ds_add_u32 v{KP0+24}, v3")
        b = C0 + 4 * (r % 6)
        for j in range(4):
            key(b + j, W0 + 4 * r + j, T0 + 2 * j, T0 + 2 * j + 1)
            a(f"ds_add_u32 v{b+j}, v3")
        a(f"v_lshl_or_b32 v{KP0+2*r}, v{b+1}, 16, v{b}")
        a(f"v_lshl_or_b32 v{KP0+2*r+1}, v{b+3}, 16, v{b+2}")
        if r < 6: issue_idx(r + 6)
        else:
            issue_ang(2 * (r - 6)); issue_ang(2 * (r - 6) + 1)
    if o.warm:
        srd(a, 48, 46, E * 32)
        a("s_mul_i32 s40, s2, 782")
        a(f"v_add_u32 v{T0}, s40, v0")
        a(f"v_cmp_gt_u32 s[42:43], 13, v127")
        a(f"v_lshlrev_b32 v{T0}, 7, v{T0}")
        a(f"v_cndmask_b32 v{T0}, 2.0, v{T0}, s[42:43]")
        a(f"buffer_load_dword v{TO}, v{T0}, s[48:51], 0 offen")
    a("s_waitcnt lgkmcnt(0)")
    a("s_barrier")
    P.stamp()
    c = T0; x = T0 + 4; tot = T0 + 5; y = T0 + 6
    a(f"s_cmp_ge_u32 s3, {S}")
    a("s_cbranch_scc1 P1_scan1")
    a(f"ds_read_b128 v[{c}:{c+3}], v1")
    a("s_waitcnt lgkmcnt(0)")
    a(f"v_add_u32 v{c+1}, v{c}, v{c+1}")
    a(f"v_add_u32 v{c+2}, v{c+1}, v{c+2}")
    a(f"v_add_u32 v{c+3}, v{c+2}, v{c+3}")
    a(f"v_mov_b32 v{x}, v{c+3}")
    for sh in (1, 2, 4, 8):
        a(f"v_add_u32_dpp v{x}, v{x}, v{x} row_shr:{sh} row_mask:0xf bank_mask:0xf bound_ctrl:1")
    a(f"v_add_u32_dpp v{x}, v{x}, v{x} row_bcast:15 row_mask:0xa bank_mask:0xf")
    a(f"v_add_u32_dpp v{x}, v{x}, v{x} row_bcast:31 row_mask:0xc bank_mask:0xf")
    a(f"v_readlane_b32 s40, v{x}, 63")
    a(f"s_lshl_b32 s41, s3, 2")
    a(f"v_mov_b32 v{y}, s41")
    a(f"v_mov_b32 v{y+1}, s40")
    a(f"ds_write_b32 v{y}, v{y+1} offset:{SCR}")
    a("s_waitcnt lgkmcnt(0)")
    a("P1_scan1:")
    a("s_barrier")
    a(f"s_cmp_ge_u32 s3, {S}")
    a("s_cbranch_scc1 P1_scan2")
    a(f"v_and_b32 v{y}, 63, v0")
    a(f"v_lshlrev_b32 v{y+1}, 2, v{y}")
    a(f"ds_read_b32 v{y+2}, v{y+1} offset:{SCR}")
    a(f"v_cmp_gt_u32 s[42:43], s3, v{y}")
    a(f"v_sub_u32 v{x}, v{x}, v{c+3}")
    a("s_waitcnt lgkmcnt(0)")
    a(f"v_cndmask_b32 v{y+2}, 0, v{y+2}, s[42:43]")
    for sh in (1, 2, 4, 8):
        a(f"v_add_u32_dpp v{y+2}, v{y+2}, v{y+2} row_shr:{sh} row_mask:0xf bank_mask:0xf bound_ctrl:1")
    a(f"v_readlane_b32 s40, v{y+2}, 15")
    srd(a, 24, 32, NT * NT * S * 4, WS_DESC)
    s0 = T0 + 12
    a(f"v_add_u32 v{s0}, s40, v{x}")
    for j in range(4): a(f"v_add_u32 v{s0+1+j}, v{s0}, v{c+j}")
    a(f"ds_write_b128 v1, v[{s0}:{s0+3}]")
    a(f"s_mul_i32 s40, s2, {256*S*4}")
    a(f"s_add_u32 s40, s40, s41")
    a(f"v_mul_u32_u24 v{y}, {16*S}, v{y}")
    a(f"v_add_u32 v{y}, s40, v{y}")
    for j in range(4):
        a(f"v_lshl_or_b32 v{c+j}, v{s0+j+1}, 16, v{s0+j}")
        a(f"buffer_store_dword v{c+j}, v{y}, s[24:27], 0 offen offset:{j*S*4}")
    a("s_waitcnt lgkmcnt(0)")
    a("P1_scan2:")
    a("s_barrier")
    P.stamp()
    def atomics(n):
        t = T0 + 4 * (n % 2)
        if n == 12:
            a(f"ds_add_rtn_u32 v{t}, v{KP0+24}, v3"); return 1
        for j in range(4):
            kp = KP0 + 2 * n + j // 2
            if j % 2 == 0: a(f"v_and_b32 v{t+j}, 0xffff, v{kp}")
            else: a(f"v_lshrrev_b32 v{t+j}, 16, v{kp}")
            a(f"ds_add_rtn_u32 v{t+j}, v{t+j}, v3")
        return 4
    atomics(0)
    for n in range(13):
        k = atomics(n + 1) if n < 12 else 0
        a(f"s_waitcnt lgkmcnt({k})")
        t = T0 + 4 * (n % 2); u = T0 + 8
        if n == 12:
            a(f"v_mov_b32 v{u}, 0xffff")
            a(f"v_cndmask_b32 v{t}, v{u}, v{t}, vcc")
        for j in range(4 if n < 12 else 1):
            a(f"v_lshrrev_b32 v{u+j}, 1, v{t+j}")
            a(f"v_add_lshl_u32 v{u+j}, v{u+j}, v{t+j}, 2")
            a(f"ds_write_b32 v{u+j}, v{W0+4*n+j} offset:{STG}")
        if n < 12:
            a(f"v_lshl_or_b32 v{KP0+2*n}, v{t+1}, 16, v{t}")
            a(f"v_lshl_or_b32 v{KP0+2*n+1}, v{t+3}, 16, v{t+2}")
        else:
            a(f"v_mov_b32 v{KP0+24}, v{t}")
    P.stamp()
    a("s_waitcnt vmcnt(0)")
    a("s_mov_b32 s44, 0xffff0000")
    def caddr(kp, hi, u, sub):
        if hi: a(f"v_lshrrev_b32 v{u}, 16, v{kp}")
        else: a(f"v_and_b32 v{u}, 0xffff, v{kp}")
        if sub: a(f"v_subrev_u32 v{u}, {CHA}, v{u}")
        a(f"v_ashrrev_i32 v{u+1}, 1, v{u}")
    for n in range(25):
        cr = C0 + n; t = T0 + 8 * (n % 2)
        a(f"v_lshlrev_b32 v{t}, 16, v{cr}")
        a(f"v_and_b32 v{t+1}, s44, v{cr}")
        a(f"v_mul_f32 v{t}, s35, v{t}")
        a(f"v_mul_f32 v{t+1}, s35, v{t+1}")
        a(f"v_cvt_pk_bf16_f32 v{t+1}, v{t}, v{t+1}")
        a(f"v_lshlrev_b32 v{t}, 16, v{t+1}")
        a(f"v_and_b32 v{t+1}, s44, v{t+1}")
        a(f"v_mul_f32 v{t}, 0.15915494, v{t}")
        a(f"v_mul_f32 v{t+1}, 0.15915494, v{t+1}")
        a(f"v_fract_f32 v{t}, v{t}")
        a(f"v_fract_f32 v{t+1}, v{t+1}")
        a(f"v_cos_f32 v{t}, v{t}")
        a(f"v_cos_f32 v{t+1}, v{t+1}")
        for h in range(2 if n < 24 else 1):
            u = t + 2 + 2 * h
            caddr(KP0 + n, h, u, False)
            a(f"v_lshl_add_u32 v{u}, v{u+1}, 2, v{u}")
            a(f"v_lshlrev_b32 v{u}, 1, v{u}")
        a(f"v_cvt_pk_bf16_f32 v{cr}, v{t}, v{t+1}")
        a(f"ds_write_b16 v{t+2}, v{cr} offset:{STG+8}")
        if n < 24: a(f"ds_write_b16_d16_hi v{t+4}, v{cr} offset:{STG+8}")
    def copyout(ch):
        nbytes = CHA * 6 if ch == 0 else (TILE_N - CHA) * 6
        a(f"s_mul_i32 s40, s2, {TILE_BYTES}")
        if ch: a(f"s_add_u32 s40, s40, {CHA*6}")
        srd(a, 20, 32, nbytes, "s40")
        a("v_mov_b32 v2, v1")
        a(f"v_mov_b32 v{TO}, v1")
        a("s_waitcnt lgkmcnt(0)")
        a("s_barrier")
        P.stamp()
        def rd(k):
            t = T0 + 4 * (k % 6)
            a(f"ds_read_b128 v[{t}:{t+3}], v2 offset:{STG}")
            a(f"v_add_u32 v2, 16384, v2")
        for k in range(6): rd(k)
        for k in range(10):
            t = T0 + 4 * (k % 6)
            a(f"s_waitcnt lgkmcnt({min(5, 9-k)})")
            a(f"buffer_store_dwordx4 v[{t}:{t+3}], v{TO}, s[20:23], 0 offen {st}")
            a(f"v_add_u32 v{TO}, 16384, v{TO}")
            if k + 6 < 10: rd(k + 6)
    copyout(0)
    a("s_barrier")
    P.stamp()
    for n in range(25):
        for h in range(2 if n < 24 else 1):
            u = T0 + 4 * ((2 * n + h) % 4)
            caddr(KP0 + n, h, u, True)
            a(f"v_add_lshl_u32 v{u+2}, v{u+1}, v{u}, 2")
            a(f"v_lshl_add_u32 v{u}, v{u+1}, 2, v{u}")
            a(f"ds_write_b32 v{u+2}, v{W0+2*n+h} offset:{STG}")
            a(f"v_lshlrev_b32 v{u}, 1, v{u}")
            a(f"ds_write_b16{'_d16_hi' if h else ''} v{u}, v{C0+n} offset:{STG+8}")
    copyout(1)
    if o.prof:
        P.stamp()
        a("s_waitcnt vmcnt(0)")
        P.stamp()
        P.dump(32, 0, T0, 3)
    a("P1_end:")
    a("s_endpgm")
    return a.finish(), STG + CHA * 6

def gen_p2(o):
    a = Asm(); S = o.S; P = Prof(a, o.prof)
    FLAG = 2048 - 16
    BUF0 = 2048; BUFSZ = NG * BSTR
    LDS = BUF0 + 2 * BUFSZ
    a("s_cmp_ge_u32 s2, 256")
    a("s_cbranch_scc1 P2_end")
    a("s_load_dwordx2 s[4:5], s[0:1], 0")
    a("s_load_dwordx2 s[6:7], s[0:1], 24")
    a("s_load_dwordx2 s[32:33], s[0:1], 104")
    a("s_load_dwordx2 s[34:35], s[0:1], 40")
    a("s_load_dwordx8 s[36:43], s[0:1], 56")
    a("s_load_dwordx2 s[44:45], s[0:1], 88")
    a("v_lshrrev_b32 v1, 6, v0")
    a("v_readfirstlane_b32 s3, v1")
    a("s_and_b32 s46, s2, 7")
    a("s_lshl_b32 s46, s46, 5")
    a("s_lshr_b32 s47, s2, 3")
    a("s_add_u32 s46, s46, s47")
    a("v_and_b32 v12, 63, v0")
    a("s_waitcnt lgkmcnt(0)")
    P.stamp()
    srd(a, 8, 4, E * 32)
    srd(a, 12, 32, NT * TILE_BYTES)
    srd(a, 16, 32, NT * NT * S * 4, WS_DESC)
    srd(a, 20, 44, E * 32)
    srd(a, 24, 6, E * 2)
    srd(a, 28, 40, 512)
    a("s_cmp_ge_u32 s3, 4")
    a("s_cbranch_scc1 P2_consumer")
    D0 = 40; R0 = 64
    vU = 1; vTB = 2; vOne = 3; v3FC = 4; v100 = 5; vZ = 6
    vd = 8; vhs = 9; vp0 = 10; vst = 11; ven = 13; vca = 14; vcb = 15; vra = 16; vrb = 17; vba = 18; vbb = 19; vt = 20
    if o.prio: a(f"s_setprio {o.prio}")
    a(f"s_lshl_b32 s47, s3, 6")
    a(f"v_add_u32 v{vt}, s47, v12")
    a(f"v_lshlrev_b32 v{vt}, 8, v{vt}")
    a(f"v_add_u32 v{vt}, s46, v{vt}")
    a(f"v_mul_u32_u24 v{vt}, {4*S}, v{vt}")
    k = 0
    while k < S:
        w = 4 if S - k >= 4 else (2 if S - k >= 2 else 1)
        sfx = {4: "x4", 2: "x2", 1: ""}[w]
        dst = f"v[{D0+k}:{D0+k+w-1}]" if w > 1 else f"v{D0+k}"
        a(f"buffer_load_dword{sfx} {dst}, v{vt}, s[16:19], 0 offen offset:{4*k}")
        k += w
    a(f"v_mov_b32 v{D0+S}, 0")
    a(f"v_and_b32 v{vU}, 15, v12")
    a(f"v_and_b32 v{vTB}, 48, v12")
    a(f"v_add_u32 v{vTB}, s47, v{vTB}")
    a(f"v_mul_u32_u24 v{vTB}, {TILE_BYTES}, v{vTB}")
    a(f"v_mad_u32_u24 v{vTB}, v{vU}, 12, v{vTB}")
    a(f"v_mov_b32 v{vOne}, 1")
    a(f"v_mov_b32 v{v3FC}, 0x3fc")
    a(f"v_mov_b32 v{v100}, {BSTR//4}")
    a(f"v_mov_b32 v{vZ}, 0")
    a("s_mov_b32 s48, 0")
    a("s_mov_b32 s49, 0")
    a("s_mov_b32 s50, 0")
    a(f"s_mov_b32 s51, {BUF0}")
    a("s_mov_b32 s84, 0x80008000")
    a("s_mov_b32 s85, 0x80008000")
    def issue(dreg, i):
        a(f"v_mov_b32_dpp v{vd}, v{dreg} row_newbcast:{i} row_mask:0xf bank_mask:0xf")
        a(f"s_mov_b32 s86, {i*TILE_BYTES}")
        a(f"v_bfe_u32 v{vhs}, v{vd}, 1, 15")
        a(f"v_add_lshl_u32 v{vp0}, v{vhs}, v{vU}, 1")
        a(f"v_cmp_lt_u32_sdwa vcc, v{vp0}, v{vd} src0_sel:DWORD src1_sel:WORD_1")
        a(f"v_mad_u32_u24 v{vt}, v{vhs}, 12, v{vTB}")
        a(f"v_cndmask_b32 v{vt}, 2.0, v{vt}, vcc")
        r = R0 + 4 * i
        a(f"buffer_load_dwordx3 v[{r}:{r+2}], v{vt}, s[12:15], s86 offen {o.p2_rec}")
    def next_round():
        a("s_add_u32 s48, s48, 1")
        if o.maxr:
            a(f"s_cmp_gt_u32 s48, {o.maxr}")
            a("s_cbranch_scc1 P2_pdone")
        a(f"v_mov_b32 v{vt}, s48")
        a(f"ds_max_u32 v{vZ}, v{vt} offset:{FLAG}")
        a("s_xor_b32 s50, s50, 1024")
        a(f"s_xor_b32 s51, s51, {(BUF0 ^ ((BUF0 + BUFSZ - 1024 * (BSTR//4)) & 0xffffffff))}")
        a("s_waitcnt lgkmcnt(0)")
        if o.prof:
            a("s_memtime s[56:57]")
            a("s_waitcnt lgkmcnt(0)")
        a("s_barrier")
        if o.prof:
            a("s_memtime s[58:59]")
            a("s_waitcnt lgkmcnt(0)")
            a("s_sub_u32 s56, s58, s56")
            a("s_add_u32 s71, s71, s56")
    a("s_mov_b32 s71, 0")
    a("s_waitcnt vmcnt(0)")
    for i in range(16): issue(D0, i)
    a("s_barrier")
    a("P2_pslice:")
    for i in range(16):
        r = R0 + 4 * i
        a(f"v_mov_b32_dpp v{vd}, v{D0} row_newbcast:{i} row_mask:0xf bank_mask:0xf")
        a(f"v_and_b32 v{vst}, 0xffff, v{vd}")
        a(f"v_lshrrev_b32 v{ven}, 16, v{vd}")
        a(f"v_lshrrev_b32 v{vhs}, 1, v{vst}")
        a(f"v_add_lshl_u32 v{vp0}, v{vhs}, v{vU}, 1")
        a("s_waitcnt vmcnt(15)")
        a(f"P2_place{i}:")
        a(f"v_cmp_lt_u32 s[88:89], v{vp0}, v{ven}")
        a(f"v_cmp_ge_u32 vcc, v{vp0}, v{vst}")
        a(f"v_add_u32 v{vt}, 1, v{vp0}")
        a(f"v_cmp_lt_u32 s[90:91], v{vt}, v{ven}")
        a(f"v_add_u32 v{vt}, 2, v{vp0}")
        a(f"v_cmp_lt_u32 s[92:93], v{vt}, v{ven}")
        a(f"s_and_b64 s[88:89], s[88:89], vcc")
        a(f"P2_retry{i}:")
        a(f"v_lshrrev_b32 v{vca}, 2, v{r}")
        a(f"v_lshrrev_b32 v{vcb}, 2, v{r+1}")
        a(f"v_and_or_b32 v{vca}, v{vca}, v{v3FC}, s50")
        a(f"v_and_or_b32 v{vcb}, v{vcb}, v{v3FC}, s50")
        a(f"s_mov_b64 exec, s[88:89]")
        a(f"ds_add_rtn_u32 v{vra}, v{vca}, v{vOne}")
        a(f"s_mov_b64 exec, s[90:91]")
        a(f"ds_add_rtn_u32 v{vrb}, v{vcb}, v{vOne}")
        a(f"s_mov_b64 exec, -1")
        a(f"v_mad_u32_u24 v{vba}, v{vca}, v{v100}, s51")
        a(f"v_mad_u32_u24 v{vbb}, v{vcb}, v{v100}, s51")
        a("s_waitcnt lgkmcnt(0)")
        a(f"v_cmp_gt_u32 vcc, {CAP}, v{vra}")
        a(f"v_cmp_gt_u32 s[94:95], {CAP}, v{vrb}")
        a(f"v_lshl_add_u32 v{vca}, v{vra}, 2, v{vba}")
        a(f"v_lshl_add_u32 v{vba}, v{vra}, 1, v{vba}")
        a(f"v_lshl_add_u32 v{vcb}, v{vrb}, 2, v{vbb}")
        a(f"v_lshl_add_u32 v{vbb}, v{vrb}, 1, v{vbb}")
        a(f"s_and_b64 exec, s[88:89], vcc")
        a(f"ds_write_b32 v{vca}, v{r}")
        a(f"ds_write_b16 v{vba}, v{r+2} offset:{CAP*4}")
        a(f"s_and_b64 exec, s[90:91], s[94:95]")
        a(f"ds_write_b32 v{vcb}, v{r+1}")
        a(f"ds_write_b16_d16_hi v{vbb}, v{r+2} offset:{CAP*4}")
        a(f"s_mov_b64 exec, -1")
        a(f"s_andn2_b64 s[88:89], s[88:89], vcc")
        a(f"s_andn2_b64 s[90:91], s[90:91], s[94:95]")
        a(f"s_or_b64 s[94:95], s[88:89], s[90:91]")
        a(f"s_cbranch_scc1 P2_stall{i}")
        a(f"s_and_b64 s[92:93], s[92:93], s[84:85]")
        a(f"s_cbranch_scc1 P2_more{i}")
        issue(D0 + 1, i)
    a("s_add_u32 s49, s49, 1")
    a(f"s_cmp_ge_u32 s49, {S}")
    a("s_cbranch_scc1 P2_pdone")
    for k in range(S): a(f"v_mov_b32 v{D0+k}, v{D0+k+1}")
    a("s_cmp_ge_u32 s48, s49")
    a("s_cbranch_scc1 P2_pslice")
    next_round()
    a("s_branch P2_pslice")
    a("P2_pdone:")
    a("s_waitcnt vmcnt(0) lgkmcnt(0)")
    if o.prof:
        n0 = P.n; P.stamp(); P.dump(32, 0x80000, 8, 3); P.n = n0
    a("s_endpgm")
    for i in range(16):
        r = R0 + 4 * i
        a(f"P2_stall{i}:")
        next_round()
        a(f"s_branch P2_retry{i}")
        a(f"P2_more{i}:")
        a(f"v_add_u32 v{vhs}, 16, v{vhs}")
        a(f"v_add_u32 v{vp0}, 32, v{vp0}")
        a(f"s_mov_b32 s86, {i*TILE_BYTES}")
        a(f"v_cmp_lt_u32 vcc, v{vp0}, v{ven}")
        a(f"v_mad_u32_u24 v{vt}, v{vhs}, 12, v{vTB}")
        a(f"v_cndmask_b32 v{vt}, 2.0, v{vt}, vcc")
        a(f"buffer_load_dwordx3 v[{r}:{r+2}], v{vt}, s[12:15], s86 offen {o.p2_rec}")
        a("s_waitcnt vmcnt(0)")
        a(f"s_branch P2_place{i}")
    a("P2_consumer:")
    ACC = 60; G0 = 52; B0 = 44; WA = 36; WB = 40; D1 = 28; vW = 20; vC = 16; vA = 15
    bA = 1; bW = 2; bC = 3; vLB = 4; vH = 5; vSl = 6; vCnt = 7; vCA = 8; vAd = 10; vZ = 11; vFl = 9
    a("s_sub_u32 s47, s3, 4")
    a("s_min_u32 s48, s47, 4")
    a("s_lshl_b32 s49, s47, 4")
    a("s_add_u32 s49, s49, s48")
    a("s_cmp_lt_u32 s47, 4")
    a("s_cselect_b32 s50, 17, 16")
    a("v_and_b32 v13, 15, v12")
    a("v_lshrrev_b32 v14, 4, v12")
    a(f"v_and_b32 v{vH}, 16, v12")
    a(f"v_lshlrev_b32 v{vAd}, 4, v{vH}")
    a(f"v_lshl_add_u32 v{vAd}, v13, 1, v{vAd}")
    for c in range(8): a(f"buffer_load_ushort v{vW+c}, v{vAd}, s[28:31], 0 offen offset:{32*c}")
    for i in range(4): a(f"v_mov_b32 v{D1+i}, 0")
    a(f"v_subrev_u32 v{vA}, 256, v0")
    a(f"v_lshlrev_b32 v{vA}, 4, v{vA}")
    for k in range(-(-LDS // (768 * 16))):
        a(f"ds_write_b128 v{vA}, v[{D1}:{D1+3}]")
        a(f"v_add_u32 v{vA}, {768*16}, v{vA}")
    for i in range(68): a(f"v_mov_b32 v{ACC+i}, 0")
    for i in range(16): a(f"v_mov_b32 v{B0+i}, 0")
    a(f"v_mov_b32 v{vZ}, 0")
    a(f"v_and_b32 v{vSl}, 12, v12")
    a(f"v_lshlrev_b32 v{vSl}, 1, v{vSl}")
    a(f"v_and_or_b32 v{vSl}, v12, 3, v{vSl}")
    a(f"v_lshrrev_b32 v{vA}, 5, v12")
    a(f"v_lshl_or_b32 v{vSl}, v{vA}, 2, v{vSl}")
    a(f"s_mul_i32 s51, s49, {BSTR}")
    a(f"s_add_u32 s51, s51, {BUF0}")
    a(f"v_lshl_add_u32 v{bA}, v{vSl}, 2, s51")
    a(f"v_lshl_add_u32 v{bW}, v14, 5, s51")
    a(f"v_lshl_add_u32 v{bC}, v14, 4, s51")
    a(f"v_mov_b32 v{vLB}, 0x80008000")
    a(f"v_lshrrev_b32 v{vLB}, v13, v{vLB}")
    a(f"v_add_lshl_u32 v{vCA}, v12, s49, 2")
    a(f"v_cmp_gt_u32 vcc, s50, v12")
    a(f"v_cmp_gt_u32 s[88:89], 32, v12")
    a("s_mov_b32 s84, 0x05040100")
    a("s_mov_b32 s85, 0xffffffe0" if not o.dbg & 4 else "s_mov_b32 s85, 0x1fffe0")
    a(f"v_cndmask_b32 v{vCA}, 2.0, v{vCA}, vcc")
    a("s_waitcnt vmcnt(0)")
    for u in range(4):
        a(f"v_lshl_or_b32 v{vW+u}, v{vW+2*u+1}, 16, v{vW+2*u}")
    for u in range(4):
        a(f"v_cndmask_b32 v{WA+u}, 0, v{vW+u}, s[88:89]")
        a(f"v_cndmask_b32 v{WB+u}, v{vW+u}, 0, s[88:89]")
    a("s_mov_b32 s48, 0")
    a("s_mov_b32 s71, 0")
    a("s_waitcnt lgkmcnt(0)")
    a("s_barrier")
    P.stamp()
    def lds_reads(i, second):
        oa = i * BSTR + (128 if second else 0); oc = i * BSTR + CAP * 4 + (64 if second else 0)
        a(f"ds_read_b32 v{vA}, v{bA} offset:{oa}")
        a(f"ds_read_b128 v[{vW}:{vW+3}], v{bW} offset:{oa}")
        a(f"ds_read_b128 v[{vW+4}:{vW+7}], v{bW} offset:{oa+16}")
        a(f"ds_read_b128 v[{vC}:{vC+3}], v{bC} offset:{oc}")
    def addr_and_perm():
        a(f"v_lshrrev_b32 v{vAd}, 7, v{vA}")
        a(f"v_and_or_b32 v{vAd}, v{vAd}, s85, v{vH}")
        a(f"v_cmp_gt_u32 vcc, s86, v{vSl}")
        for u in range(4): a(f"v_perm_b32 v{vW+u}, v{vW+2*u+1}, v{vW+2*u}, s84")
        a(f"v_cndmask_b32 v{vAd}, 2.0, v{vAd}, vcc")
        if o.dbg & 1: a(f"v_mov_b32 v{vAd}, 2.0")
    def masks():
        if o.dbg & 2: return
        for u in range(4): a(f"v_pk_lshlrev_b16 v{vW+u}, v{vW+u}, v{vLB}")
        for u in range(4): a(f"v_pk_ashrrev_i16 v{vW+u}, 15, v{vW+u} op_sel_hi:[0,1]")
    def mfma1(g):
        if o.dbg & 2: return
        a(f"v_mfma_f32_16x16x32_bf16 v[{D1}:{D1+3}], v[{g}:{g+3}], v[{WA}:{WA+3}], 0")
        a(f"v_mfma_f32_16x16x32_bf16 v[{D1+4}:{D1+7}], v[{g}:{g+3}], v[{WB}:{WB+3}], 0")
    def mfma2(i, b):
        if o.dbg & 2: return
        for u in range(4): a(f"v_cvt_pk_bf16_f32 v{D1+u}, v{D1+2*u}, v{D1+2*u+1}")
        c = ACC + 4 * i
        a(f"v_mfma_f32_16x16x32_bf16 v[{c}:{c+3}], v[{D1}:{D1+3}], v[{b}:{b+3}], v[{c}:{c+3}]")
    NS = 17
    for par in range(2):
        a(f"P2_round{par}:")
        if o.prof:
            a("s_memtime s[56:57]")
            a("s_waitcnt lgkmcnt(0)")
        a("s_barrier")
        if o.prof:
            a("s_memtime s[58:59]")
            a("s_waitcnt lgkmcnt(0)")
            a("s_sub_u32 s56, s58, s56")
            a("s_add_u32 s71, s71, s56")
        if o.prof and par == 0:
            a("s_cmp_lg_u32 s48, 0"); a("s_cbranch_scc1 P2_nostamp"); P.stamp(); a("P2_nostamp:")
        a(f"ds_read_b32 v{vCnt}, v{vCA} offset:{1024*par}")
        a(f"ds_read_b32 v{vFl}, v{vZ} offset:{FLAG}")
        lds_reads(0, False)
        a("s_add_u32 s48, s48, 1")
        a("s_waitcnt lgkmcnt(4)")
        a(f"ds_write_b32 v{vCA}, v{vZ} offset:{1024*par}")
        a(f"v_min_u32 v{vCnt}, {CAP}, v{vCnt}")
        a(f"v_readfirstlane_b32 s87, v{vFl}")
        for i in range(NS):
            p = (par * NS + i) % 2
            g = G0 + 4 * p; b = B0 + 4 * p
            if o.cprio and i % 5 == 0 and i < 15: a(f"s_setprio {2 - i // 5}")
            a(f"v_readlane_b32 s86, v{vCnt}, {i}")
            a("s_waitcnt lgkmcnt(0)")
            addr_and_perm()
            a("s_waitcnt vmcnt(1)")
            mfma1(g)
            a(f"buffer_load_dwordx4 v[{g}:{g+3}], v{vAd}, s[8:11], 0 offen")
            masks()
            mfma2((i - 2) % NS, b)
            for u in range(4): a(f"v_and_b32 v{b+u}, v{vW+u}, v{vC+u}")
            a("s_cmp_gt_u32 s86, 32")
            a(f"s_cbranch_scc1 P2_slow{par}_{i}")
            a(f"P2_back{par}_{i}:")
            if i + 1 < NS: lds_reads(i + 1, False)
        op = "v_add_u32" if par == 0 else "v_subrev_u32"
        for r in (bA, bW, bC): a(f"{op} v{r}, {BUFSZ}, v{r}")
        a("s_cmp_ge_u32 s87, s48")
        if par == 0:
            a("s_cbranch_scc0 P2_drain0")
        else:
            a("s_cbranch_scc1 P2_round0")
    def drain(par):
        for i in (NS, NS + 1):
            p = (par * NS + i) % 2
            a(f"s_waitcnt vmcnt({NS+1-i})")
            mfma1(G0 + 4 * p)
            mfma2(i - 2, B0 + 4 * p)
    drain(1)
    a("s_branch P2_epi")
    for par in range(2):
        for i in range(NS):
            a(f"P2_slow{par}_{i}:")
            lds_reads(i, True)
            a("s_sub_u32 s86, s86, 32")
            a("s_waitcnt lgkmcnt(0)")
            addr_and_perm()
            a(f"buffer_load_dwordx4 v[{vW+4}:{vW+7}], v{vAd}, s[8:11], 0 offen")
            masks()
            for u in range(4): a(f"v_and_b32 v{vC+u}, v{vW+u}, v{vC+u}")
            a("s_waitcnt vmcnt(0)")
            mfma1(vW + 4)
            mfma2(i, vC)
            a(f"s_branch P2_back{par}_{i}")
    a("P2_drain0:")
    drain(0)
    a("P2_epi:")
    P.stamp()
    vOff = 1; vOo = 2; vDo = 3; DS = 4
    WS_ = 16; WR_ = 20; WU = 24; CEN = 26
    M0 = 30
    X = 38
    a(f"s_lshl_b32 s51, s49, 8")
    a(f"s_add_u32 s51, s51, s46")
    a(f"s_lshl_b32 s51, s51, 4")
    a(f"v_add_u32 v{vOff}, s51, v13")
    a(f"v_lshrrev_b32 v{X}, 1, v14")
    a(f"v_lshl_add_u32 v{vDo}, v{X}, 12, v{vOff}")
    a(f"v_lshlrev_b32 v{vDo}, 1, v{vDo}")
    a(f"v_lshlrev_b32 v{vOff}, 5, v{vOff}")
    a(f"v_lshl_add_u32 v{vOff}, v14, 3, v{vOff}")
    a(f"v_mov_b32 v{vOo}, v{vOff}")
    a(f"v_lshlrev_b32 v{X+1}, 7, v14")
    a(f"v_lshl_add_u32 v{X+1}, v13, 1, v{X+1}")
    a(f"v_and_b32 v{X+2}, 0xff, v{X+1}")
    a(f"v_and_b32 v{X+3}, 1, v14")
    a(f"v_lshlrev_b32 v{X+3}, 3, v{X+3}")
    srd(a, 28, 42, 512)
    for c in range(4): a(f"buffer_load_ushort v{X+4+c}, v{X+1}, s[28:31], 0 offen offset:{32*c}")
    srd(a, 12, 38, 256)
    for c in range(4): a(f"buffer_load_ushort v{X+8+c}, v{X+2}, s[12:15], 0 offen offset:{32*c}")
    srd(a, 16, 36, 256)
    for c in range(4): a(f"buffer_load_ushort v{X+12+c}, v{X+2}, s[16:19], 0 offen offset:{32*c}")
    srd(a, 52, 34, 16)
    for c in range(4): a(f"buffer_load_ushort v{CEN+c}, v{X+3}, s[52:55], 0 offen offset:{2*c}")
    for k in range(9):
        a(f"buffer_load_ushort v{DS+k}, v{vDo}, s[24:27], 0 offen")
        a(f"v_add_u32 v{vDo}, {2*4096*2}, v{vDo}")
    def mload(i):
        m = M0 + 2 * (i % 4)
        a(f"buffer_load_dwordx2 v[{m}:{m+1}], v{vOff}, s[8:11], 0 offen")
        a(f"v_add_u32 v{vOff}, {4096*32}, v{vOff}")
    for i in range(4): mload(i)
    a("s_mov_b32 s84, 0xffff0000")
    a("s_mov_b32 s85, 0xc1200000")
    a("s_mov_b32 s86, 0x3fb8aa3b")
    a("s_waitcnt vmcnt(4)")
    for u in range(2):
        a(f"v_lshl_or_b32 v{WU+u}, v{X+5+2*u}, 16, v{X+4+2*u}")
        a(f"v_lshl_or_b32 v{X+8+u}, v{X+9+2*u}, 16, v{X+8+2*u}")
        a(f"v_lshl_or_b32 v{X+12+u}, v{X+13+2*u}, 16, v{X+12+2*u}")
    for u in range(2):
        a(f"v_cndmask_b32 v{WS_+u}, 0, v{X+8+u}, s[88:89]")
        a(f"v_cndmask_b32 v{WS_+2+u}, v{X+8+u}, 0, s[88:89]")
        a(f"v_cndmask_b32 v{WR_+u}, 0, v{X+12+u}, s[88:89]")
        a(f"v_cndmask_b32 v{WR_+2+u}, v{X+12+u}, 0, s[88:89]")
    for c in range(4): a(f"v_lshlrev_b32 v{CEN+c}, 16, v{CEN+c}")
    RB = X; t = X + 2; SS = X + 6; GG = X + 10; AG = X + 14; UU = X + 16; OT = X + 20
    def rnd():
        for u in range(2):
            a(f"v_cvt_pk_bf16_f32 v{t+2*u+1}, v{t+2*u}, v{t+2*u+1}")
        for u in range(2):
            a(f"v_lshlrev_b32 v{t+2*u}, 16, v{t+2*u+1}")
            a(f"v_and_b32 v{t+2*u+1}, s84, v{t+2*u+1}")
    for i in range(NS):
        if i == 16:
            a("s_cmp_lt_u32 s50, 17")
            a("s_cbranch_scc1 P2_fin")
        if i % 2 == 0:
            d = DS + i // 2
            a(f"v_lshlrev_b32 v{d}, 16, v{d}")
            for c in range(4): a(f"v_sub_f32 v{t+c}, v{d}, v{CEN+c}")
            rnd()
            for c in range(4): a(f"v_mul_f32 v{t+c}, v{t+c}, v{t+c}")
            rnd()
            for c in range(4): a(f"v_mul_f32 v{t+c}, s85, v{t+c}")
            rnd()
            for c in range(4): a(f"v_mul_f32 v{t+c}, s86, v{t+c}")
            for c in range(4): a(f"v_exp_f32 v{t+c}, v{t+c}")
            for u in range(2): a(f"v_cvt_pk_bf16_f32 v{RB+u}, v{t+2*u}, v{t+2*u+1}")
        h = 2 * (i % 2); c0 = ACC + 4 * i; m = M0 + 2 * (i % 4)
        a(f"v_mfma_f32_16x16x16_bf16 v[{SS}:{SS+3}], v[{WS_+h}:{WS_+h+1}], v[{RB}:{RB+1}], 0")
        a(f"v_mfma_f32_16x16x16_bf16 v[{GG}:{GG+3}], v[{WR_+h}:{WR_+h+1}], v[{RB}:{RB+1}], 0")
        nl = min(3, NS - 1 - i); ns = min(3, i)
        a(f"s_waitcnt vmcnt({nl + ns if i + 3 < NS else nl})")
        a(f"v_lshlrev_b32 v{t}, 16, v{m}")
        a(f"v_and_b32 v{t+1}, s84, v{m}")
        a(f"v_lshlrev_b32 v{t+2}, 16, v{m+1}")
        a(f"v_and_b32 v{t+3}, s84, v{m+1}")
        for c in range(4): a(f"v_mul_f32 v{SS+c}, v{SS+c}, v{c0+c}")
        for u in range(2): a(f"v_cvt_pk_bf16_f32 v{AG+u}, v{SS+2*u}, v{SS+2*u+1}")
        a(f"v_mfma_f32_16x16x16_bf16 v[{UU}:{UU+3}], v[{WU}:{WU+1}], v[{AG}:{AG+1}], 0")
        for c in range(4): a(f"v_fma_f32 v{t+c}, v{UU+c}, v{GG+c}, v{t+c}")
        for u in range(2): a(f"v_cvt_pk_bf16_f32 v{OT+u}, v{t+2*u}, v{t+2*u+1}")
        a(f"buffer_store_dwordx2 v[{OT}:{OT+1}], v{vOo}, s[20:23], 0 offen")
        a(f"v_add_u32 v{vOo}, {4096*32}, v{vOo}")
        if i + 4 < NS: mload(i + 4)
    a("P2_fin:")
    if o.prof:
        P.stamp()
        a("s_waitcnt vmcnt(0)")
        P.stamp()
        P.dump(32, 0x80000, X, 3)
    a("P2_end:")
    a("s_endpgm")
    return a.finish(), LDS

KD = """.amdhsa_kernel {name}
  .amdhsa_next_free_vgpr 128
  .amdhsa_next_free_sgpr 96
  .amdhsa_accum_offset 128
  .amdhsa_group_segment_fixed_size 0
  .amdhsa_kernarg_size 112
  .amdhsa_user_sgpr_count 2
  .amdhsa_user_sgpr_kernarg_segment_ptr 1
  .amdhsa_system_sgpr_workgroup_id_x 1
  .amdhsa_float_denorm_mode_32 3
.end_amdhsa_kernel
"""

def build(o):
    p1, l1 = gen_p1(o); p2, l2 = gen_p2(o)
    ref = open("gather_scatter__molecular_angular_gemnet__graph.s.ref").read().split("\n")
    head = [l for l in ref if l.startswith(";") and "launch geometry" not in l and "Harness parses" not in l and "@launch" not in l]
    s = "\n".join(head) + "\n"
    s += "; Two launches: p1 partitions the triplets by (input slice, output bin); p2 gathers / segment-sums with MFMA.\n"
    s += f"; @launch kernel=gemnet_p1_kernel grid=(256,1,1) block=(1024,1,1) lds={l1}\n"
    s += f"; @launch kernel=gemnet_p2_kernel grid=(256,1,1) block=(1024,1,1) lds={l2}\n"
    s += '.amdgcn_target "amdgcn-amd-amdhsa--gfx950"\n.text\n'
    for n, b in (("gemnet_p1_kernel", p1), ("gemnet_p2_kernel", p2)):
        s += f".globl {n}\n.p2align 8\n.type {n},@function\n{n}:\n" + b
    s += '.section .rodata,"a"\n'
    for n in ("gemnet_p1_kernel", "gemnet_p2_kernel"):
        s += ".p2align 6\n" + KD.format(name=n)
    return s

def parser():
    p = argparse.ArgumentParser()
    p.add_argument("-S", type=int, default=10)
    p.add_argument("--prof", type=int, default=0)
    p.add_argument("--maxr", type=int, default=0)
    p.add_argument("--dbg", type=int, default=0)
    p.add_argument("--warm", type=int, default=0)
    p.add_argument("--p1_ld", default="nt")
    p.add_argument("--p1_st", default="")
    p.add_argument("--p2_rec", default="")
    p.add_argument("--prio", type=int, default=3)
    p.add_argument("--cprio", type=int, default=0)
    p.add_argument("-o", default="gather_scatter__molecular_angular_gemnet__graph.s")
    return p

if __name__ == "__main__":
    o = parser().parse_args()
    open(o.o, "w").write(build(o))
```

```python
import sys, argparse
from asmlib import Asm

E = 800000; T = 12800000
NT = 256
CHA = 25088
TILE_N = 50000
TILE_BYTES = 300032
WS_DESC = 0x5000000
WS_PROF = 0x6000000
CAP = 56
WSTR = CAP * 4
MARK = 0x00100000
NG = 196

def srd(a, d, base, size, off=None):
    if off is None:
        a(f"s_mov_b32 s{d}, s{base}")
        a(f"s_mov_b32 s{d+1}, s{base+1}")
    else:
        a(f"s_add_u32 s{d}, s{base}, {off}")
        a(f"s_addc_u32 s{d+1}, s{base+1}, 0")
    a(f"s_mov_b32 s{d+2}, {size}")
    a(f"s_mov_b32 s{d+3}, 0x20000")

class Prof:
    def __init__(self, a, on): self.a = a; self.on = on; self.n = 0
    def stamp(self):
        if not self.on: return
        a = self.a
        a("s_waitcnt lgkmcnt(0)")
        a("s_memtime s[58:59]")
        a("s_waitcnt lgkmcnt(0)")
        a(f"s_mov_b32 s{60+self.n}, s58")
        a("s_memrealtime s[58:59]")
        a("s_waitcnt lgkmcnt(0)")
        a(f"s_mov_b32 s{72+self.n}, s58")
        self.n += 1
    def dump(self, wsreg, region, vt, wave_sreg):
        if not self.on: return
        a = self.a
        srd(a, 52, wsreg, 0x100000, WS_PROF + region)
        a(f"s_lshl_b32 s56, s2, 4")
        a(f"s_add_u32 s56, s56, s{wave_sreg}")
        a(f"s_lshl_b32 s56, s56, 7")
        a("s_mov_b64 exec, 1")
        for i in range(self.n):
            a(f"v_mov_b32 v{vt}, s56")
            a(f"v_mov_b32 v{vt+1}, s{60+i}")
            a(f"buffer_store_dword v{vt+1}, v{vt}, s[52:55], 0 offen offset:{4*i}")
            a(f"v_mov_b32 v{vt+1}, s{72+i}")
            a(f"buffer_store_dword v{vt+1}, v{vt}, s[52:55], 0 offen offset:{64+4*i}")
        a(f"v_mov_b32 v{vt+1}, s71")
        a(f"buffer_store_dword v{vt+1}, v{vt}, s[52:55], 0 offen offset:124")
        a("s_waitcnt vmcnt(0)")
        a("s_mov_b64 exec, -1")

def gen_p1(o):
    a = Asm(); S = o.S; P = Prof(a, o.prof)
    NK = S * 256
    KSL = (S << 26) // E
    CN = 16; SCR = CN + NK * 4; STG = SCR + 64
    W0 = 4; KP0 = 53; C0 = 78; TO = 103; T0 = 104
    ld = o.p1_ld; st = o.p1_st
    a("s_cmp_ge_u32 s2, 256")
    a("s_cbranch_scc1 P1_end")
    a("s_load_dwordx4 s[4:7], s[0:1], 8")
    a("s_load_dwordx2 s[28:29], s[0:1], 32")
    a("s_load_dwordx2 s[30:31], s[0:1], 48")
    a("s_load_dwordx2 s[32:33], s[0:1], 104")
    a("s_load_dwordx2 s[46:47], s[0:1], 0")
    a("v_lshlrev_b32 v1, 4, v0")
    a("v_lshlrev_b32 v2, 3, v0")
    a("v_mov_b32 v3, 1")
    for i in range(4): a(f"v_mov_b32 v{T0+i}, 0")
    a(f"ds_write_b128 v1, v[{T0}:{T0+3}]")
    a("v_lshrrev_b32 v127, 6, v0")
    a("v_readfirstlane_b32 s3, v127")
    a(f"s_mul_i32 s34, s2, 848")
    a(f"s_add_u32 s34, s34, {3072*4096}")
    a(f"v_add_u32 v109, s34, v0")
    a(f"v_cmp_gt_u32 vcc, 848, v0")
    a(f"v_lshlrev_b32 v110, 2, v109")
    a(f"v_lshlrev_b32 v109, 1, v109")
    a(f"v_cndmask_b32 v110, 2.0, v110, vcc")
    a(f"v_cndmask_b32 v109, 2.0, v109, vcc")
    a("s_waitcnt lgkmcnt(0)")
    P.stamp()
    srd(a, 8, 4, T * 4); srd(a, 12, 6, T * 4); srd(a, 16, 28, T * 2)
    a("s_load_dword s35, s[30:31], 0")
    a("s_lshl_b32 s36, s2, 14")
    a("s_lshl_b32 s37, s2, 13")
    a(f"buffer_load_dword v{TO}, v110, s[12:15], 0 offen {ld}")
    a(f"buffer_load_dword v{W0+48}, v110, s[8:11], 0 offen {ld}")
    a(f"buffer_load_ushort v{C0+24}, v109, s[16:19], 0 offen {ld}")
    def issue_idx(r):
        b = C0 + 4 * (r % 6); w = W0 + 4 * r
        a(f"buffer_load_dwordx4 v[{b}:{b+3}], v1, s[12:15], s36 offen {ld}")
        a(f"buffer_load_dwordx4 v[{w}:{w+3}], v1, s[8:11], s36 offen {ld}")
        a(f"s_add_u32 s36, s36, {256*16384}")
    def issue_ang(r):
        b = C0 + 2 * r
        a(f"buffer_load_dwordx2 v[{b}:{b+1}], v2, s[16:19], s37 offen {ld}")
        a(f"s_add_u32 s37, s37, {256*8192}")
    for r in range(6): issue_idx(r)
    a("s_mov_b32 s38, 0x3c00")
    a(f"v_mov_b32 v{T0+20}, 0x3fc")
    a(f"v_mov_b32 v{T0+21}, 0x0ff00000")
    a("s_waitcnt lgkmcnt(0)")
    a("s_lshl_b32 s35, s35, 16")
    a("s_barrier")
    def key(O, W, t0, t1):
        a(f"v_mul_u32_u24 v{t0}, {KSL}, v{W}")
        a(f"v_lshlrev_b32 v{t1}, 8, v{O}")
        a(f"v_lshl_or_b32 v{W}, v{O}, 28, v{W}")
        a(f"v_and_b32_sdwa v{t0}, v{t0}, s38 dst_sel:DWORD dst_unused:UNUSED_PAD src0_sel:WORD_1 src1_sel:DWORD")
        a(f"v_lshrrev_b32 v{O}, 2, v{O}")
        a(f"v_bitop3_b32 v{W}, v{t1}, v{T0+21}, v{W} bitop3:0xea")
        a(f"v_bitop3_b32 v{O}, v{O}, v{T0+20}, v{t0} bitop3:0xea")
    for r in range(12):
        a(f"s_waitcnt vmcnt({min(10, 2*(11-r))})")
        if r == 0:
            key(TO, W0 + 48, T0, T0 + 1)
            a(f"v_cndmask_b32 v{KP0+24}, 2.0, v{TO}, vcc")
            a(f"ds_add_u32 v{KP0+24}, v3 offset:{CN}")
        b = C0 + 4 * (r % 6)
        for j in range(4):
            key(b + j, W0 + 4 * r + j, T0 + 2 * j, T0 + 2 * j + 1)
            a(f"ds_add_u32 v{b+j}, v3 offset:{CN}")
        a(f"v_lshl_or_b32 v{KP0+2*r}, v{b+1}, 16, v{b}")
        a(f"v_lshl_or_b32 v{KP0+2*r+1}, v{b+3}, 16, v{b+2}")
        if r < 6: issue_idx(r + 6)
    a("s_waitcnt lgkmcnt(0)")
    a("s_barrier")
    P.stamp()
    c = T0; x = T0 + 4; tot = T0 + 5; y = T0 + 6
    a(f"s_cmp_ge_u32 s3, {S}")
    a("s_cbranch_scc1 P1_scan1")
    a(f"ds_read_b128 v[{c}:{c+3}], v1 offset:{CN}")
    a("s_waitcnt lgkmcnt(0)")
    a(f"v_add_u32 v{c+1}, v{c}, v{c+1}")
    a(f"v_add_u32 v{c+2}, v{c+1}, v{c+2}")
    a(f"v_add_u32 v{c+3}, v{c+2}, v{c+3}")
    a(f"v_mov_b32 v{x}, v{c+3}")
    for sh in (1, 2, 4, 8):
        a(f"v_add_u32_dpp v{x}, v{x}, v{x} row_shr:{sh} row_mask:0xf bank_mask:0xf bound_ctrl:1")
    a(f"v_add_u32_dpp v{x}, v{x}, v{x} row_bcast:15 row_mask:0xa bank_mask:0xf")
    a(f"v_add_u32_dpp v{x}, v{x}, v{x} row_bcast:31 row_mask:0xc bank_mask:0xf")
    a(f"v_readlane_b32 s40, v{x}, 63")
    a(f"s_lshl_b32 s41, s3, 2")
    a(f"v_mov_b32 v{y}, s41")
    a(f"v_mov_b32 v{y+1}, s40")
    a(f"ds_write_b32 v{y}, v{y+1} offset:{SCR}")
    a("s_waitcnt lgkmcnt(0)")
    a("P1_scan1:")
    a("s_barrier")
    a(f"s_cmp_ge_u32 s3, {S}")
    a("s_cbranch_scc1 P1_scan2")
    a(f"v_and_b32 v{y}, 63, v0")
    a(f"v_lshlrev_b32 v{y+1}, 2, v{y}")
    a(f"ds_read_b32 v{y+2}, v{y+1} offset:{SCR}")
    a(f"v_cmp_gt_u32 s[42:43], s3, v{y}")
    a(f"v_sub_u32 v{x}, v{x}, v{c+3}")
    a("s_waitcnt lgkmcnt(0)")
    a(f"v_cndmask_b32 v{y+2}, 0, v{y+2}, s[42:43]")
    for sh in (1, 2, 4, 8):
        a(f"v_add_u32_dpp v{y+2}, v{y+2}, v{y+2} row_shr:{sh} row_mask:0xf bank_mask:0xf bound_ctrl:1")
    a(f"v_readlane_b32 s40, v{y+2}, 15")
    s0 = T0 + 12
    a(f"v_add_u32 v{s0}, s40, v{x}")
    for j in range(3): a(f"v_add_u32 v{s0+1+j}, v{s0}, v{c+j}")
    a(f"ds_write_b128 v1, v[{s0}:{s0+3}] offset:{CN}")
    a("s_waitcnt lgkmcnt(0)")
    a("P1_scan2:")
    a("s_barrier")
    P.stamp()
    def atomics(n):
        t = T0 + 4 * (n % 2)
        if n == 12:
            a(f"ds_add_rtn_u32 v{t}, v{KP0+24}, v3 offset:{CN}"); return 1
        for j in range(4):
            kp = KP0 + 2 * n + j // 2
            if j % 2 == 0: a(f"v_and_b32 v{t+j}, 0xffff, v{kp}")
            else: a(f"v_lshrrev_b32 v{t+j}, 16, v{kp}")
            a(f"ds_add_rtn_u32 v{t+j}, v{t+j}, v3 offset:{CN}")
        return 4
    a(f"s_cmp_ge_u32 s3, {o.asplit}")
    a("s_cbranch_scc1 P1_ang1")
    for n in range(12): issue_ang(n)
    a("P1_ang1:")
    atomics(0)
    for n in range(13):
        k = atomics(n + 1) if n < 12 else 0
        a(f"s_waitcnt lgkmcnt({k})")
        t = T0 + 4 * (n % 2); u = T0 + 8
        if n < 12:
            a(f"v_lshl_or_b32 v{KP0+2*n}, v{t+1}, 16, v{t}")
            a(f"v_lshl_or_b32 v{KP0+2*n+1}, v{t+3}, 16, v{t+2}")
        else:
            a(f"v_mov_b32 v{u}, 0xffff")
            a(f"v_cndmask_b32 v{KP0+24}, v{u}, v{t}, vcc")
    a(f"s_cmp_lt_u32 s3, {o.asplit}")
    a("s_cbranch_scc1 P1_ang2")
    for n in range(12): issue_ang(n)
    a("P1_ang2:")
    P.stamp()
    srd(a, 24, 32, NT * NT * S * 4, WS_DESC)
    srd(a, 48, 46, E * 32)
    def warm():
        a("s_cmp_lt_u32 s3, 3")
        a("s_cbranch_scc1 P1_nowarm")
        a("s_mul_i32 s40, s2, 782")
        a("s_sub_u32 s40, s40, 192")
        a(f"v_add_u32 v3, s40, v0")
        a(f"v_lshlrev_b32 v3, 7, v3")
        a(f"buffer_load_dword v3, v3, s[48:51], 0 offen")
        a("P1_nowarm:")
    a("s_cmp_eq_u32 s35, 1.0")
    a("s_cbranch_scc1 P1_f1")
    a("s_waitcnt vmcnt(0)")
    for n in range(25):
        cr = C0 + n; t = T0
        a(f"v_lshlrev_b32 v{t}, 16, v{cr}")
        a(f"v_and_b32 v{t+1}, 0xffff0000, v{cr}")
        a(f"v_mul_f32 v{t}, s35, v{t}")
        a(f"v_mul_f32 v{t+1}, s35, v{t+1}")
        a(f"v_cvt_pk_bf16_f32 v{cr}, v{t}, v{t+1}")
    a("P1_f1:")
    def addrs(n, h, u, base):
        a(f"v_mad_u32_u16 v{u}, v{KP0+n}, 6, {base}" + (" op_sel:[1,0,0,0]" if h else ""))
        a(f"v_and_b32 v{u+1}, 2, v{u}")
        a(f"v_sub_u32 v{u}, v{u}, v{u+1}")
        a(f"v_sub_u32 v{u+1}, v{u}, v{u+1}")
    for n in range(25):
        cr = C0 + n; t = T0 + 6 * (n % 2)
        if n % 2 == 0 and n < 24: a(f"s_waitcnt vmcnt({11 - n // 2})")
        if n == 24 and o.warm == 1: warm()
        a(f"v_lshlrev_b32 v{t}, 16, v{cr}")
        a(f"v_and_b32 v{t+1}, 0xffff0000, v{cr}")
        a(f"v_mul_f32 v{t}, 0.15915494, v{t}")
        a(f"v_mul_f32 v{t+1}, 0.15915494, v{t+1}")
        a(f"v_fract_f32 v{t}, v{t}")
        a(f"v_fract_f32 v{t+1}, v{t+1}")
        a(f"v_cos_f32 v{t}, v{t}")
        a(f"v_cos_f32 v{t+1}, v{t+1}")
        for h in range(2 if n < 24 else 1):
            u = t + 2 + 2 * h
            addrs(n, h, u, 0)
            a(f"ds_write_b32 v{u}, v{W0+2*n+h} offset:{STG}")
        a(f"v_cvt_pk_bf16_f32 v{cr}, v{t}, v{t+1}")
        a(f"ds_write_b16 v{t+3}, v{cr} offset:{STG+8}")
        if n < 24: a(f"ds_write_b16_d16_hi v{t+5}, v{cr} offset:{STG+8}")
    def store(k):
        t = T0 + 4 * (k % 6)
        a(f"buffer_store_dwordx4 v[{t}:{t+3}], v{TO}, s[20:23], 0 offen {st}")
        a(f"v_subrev_u32 v{TO}, 16384, v{TO}")
    def copyout(ch, nnow):
        nbytes = CHA * 6 if ch == 0 else (TILE_N - CHA) * 6
        a(f"s_mul_i32 s40, s2, {TILE_BYTES}")
        if ch: a(f"s_add_u32 s40, s40, {CHA*6}")
        srd(a, 20, 32, nbytes, "s40")
        a(f"v_add_u32 v2, {9*16384}, v1")
        a(f"v_add_u32 v{TO}, {9*16384}, v1")
        a("s_waitcnt lgkmcnt(0)")
        a("s_barrier")
        P.stamp()
        if ch == 0:
            a("s_cmp_ge_u32 s3, 4")
            a("s_cbranch_scc1 P1_nodesc")
            a(f"v_lshlrev_b32 v{T0+23}, 2, v0")
            for k in range(S):
                a(f"ds_read_b32 v{T0+k}, v{T0+23} offset:{CN+1024*k-4}")
                a(f"ds_read_b32 v{T0+12+k}, v{T0+23} offset:{CN+1024*k}")
            a(f"s_mul_i32 s40, s2, {256*S*4}")
            a("s_waitcnt lgkmcnt(0)")
            for k in range(S): a(f"v_lshl_or_b32 v{T0+k}, v{T0+12+k}, 16, v{T0+k}")
            a(f"v_mul_u32_u24 v{T0+12}, {4*S}, v0")
            k = 0
            while k < S:
                w = 4 if S - k >= 4 else (2 if S - k >= 2 else 1)
                sfx = {4: "x4", 2: "x2", 1: ""}[w]
                src = f"v[{T0+k}:{T0+k+w-1}]" if w > 1 else f"v{T0+k}"
                a(f"buffer_store_dword{sfx} {src}, v{T0+12}, s[24:27], s40 offen offset:{4*k} {o.p1_dst}")
                k += w
            a("s_nop 1")
            a("P1_nodesc:")
        def rd(k):
            t = T0 + 4 * (k % 6)
            a(f"ds_read_b128 v[{t}:{t+3}], v2 offset:{STG}")
            a(f"v_subrev_u32 v2, 16384, v2")
        for k in range(6): rd(k)
        for k in range(nnow):
            a(f"s_waitcnt lgkmcnt({min(5, 9-k)})")
            store(k)
            if k + 6 < 10: rd(k + 6)
    nnow = 10 - o.defer
    copyout(0, nnow)
    a(f"s_mov_b32 s45, {(-CHA*6) & 0xffffffff}")
    a("s_waitcnt lgkmcnt(0)")
    a("s_barrier")
    P.stamp()
    for n in range(25):
        if n == 20 and o.warm == 2: warm()
        if n % 4 == 1 and nnow < 10:
            store(nnow); nnow += 1
        for h in range(2 if n < 24 else 1):
            u = T0 + 16 + 2 * ((2 * n + h) % 4)
            addrs(n, h, u, "s45")
            a(f"ds_write_b32 v{u}, v{W0+2*n+h} offset:{STG}")
            a(f"ds_write_b16{'_d16_hi' if h else ''} v{u+1}, v{C0+n} offset:{STG+8}")
    assert nnow == 10
    copyout(1, 10)
    if o.prof:
        P.stamp()
        a("s_waitcnt vmcnt(0)")
        P.stamp()
        P.dump(32, 0, T0, 3)
    a("P1_end:")
    a("s_endpgm")
    return a.finish(), STG + CHA * 6

def gen_p2(o):
    a = Asm(); S = o.S; P = Prof(a, o.prof)
    FLAG = 2048 - 16; FLC = 2048 - 32
    uid = [0]
    LUT = 2048; CB = 2560; WSZ = NG * WSTR; WB = CB + WSZ + 16
    LDS = WB + 2 * WSZ + 64
    a("s_cmp_ge_u32 s2, 256")
    a("s_cbranch_scc1 P2_end")
    a("s_load_dwordx2 s[4:5], s[0:1], 0")
    a("s_load_dwordx2 s[6:7], s[0:1], 24")
    a("s_load_dwordx2 s[32:33], s[0:1], 104")
    a("s_load_dwordx2 s[34:35], s[0:1], 40")
    a("s_load_dwordx8 s[36:43], s[0:1], 56")
    a("s_load_dwordx2 s[44:45], s[0:1], 88")
    a("v_lshrrev_b32 v1, 6, v0")
    a("v_readfirstlane_b32 s3, v1")
    a("s_and_b32 s46, s2, 7")
    a("s_lshl_b32 s46, s46, 5")
    a("s_lshr_b32 s47, s2, 3")
    a("s_add_u32 s46, s46, s47")
    a("v_and_b32 v12, 63, v0")
    a("s_waitcnt lgkmcnt(0)")
    P.stamp()
    srd(a, 8, 4, E * 32)
    srd(a, 12, 32, NT * TILE_BYTES)
    srd(a, 16, 32, NT * NT * S * 4, WS_DESC)
    srd(a, 20, 44, E * 32)
    srd(a, 24, 6, E * 2)
    srd(a, 28, 40, 512)
    a("s_cmp_ge_u32 s3, 4")
    a("s_cbranch_scc1 P2_consumer")
    D0 = 40; R0 = 64
    vU12 = 1; vTile = 2; vInc = 3; v3FC = 4; vCb = 5; vZ = 6; v2U2 = 7; v2U1 = 8; vSg = 9
    n2c = 10; a0c = 11; n2n = 13; a0n = 14; n1n = 15
    vca = 16; vcb = 17; vra = 18; vrb = 19; vwa = 20; vwb = 21; vha = 22; vhb = 23; vt = 24; vt2 = 25; vPW = 26
    ODDC = 52; MORC = 54; ODDN = 84; MORN = 86; ROW0 = 82; M0_ = 88; M1_ = 90
    if o.prio: a(f"s_setprio {o.prio}")
    a(f"s_lshl_b32 s47, s3, 6")
    a(f"v_add_u32 v{vTile}, s47, v12")
    a(f"v_lshlrev_b32 v{vt}, 8, v{vTile}")
    a(f"v_add_u32 v{vt}, s46, v{vt}")
    a(f"v_mul_u32_u24 v{vt}, {4*S}, v{vt}")
    k = 0
    while k < S:
        w = 4 if S - k >= 4 else (2 if S - k >= 2 else 1)
        sfx = {4: "x4", 2: "x2", 1: ""}[w]
        dst = f"v[{D0+k}:{D0+k+w-1}]" if w > 1 else f"v{D0+k}"
        a(f"buffer_load_dword{sfx} {dst}, v{vt}, s[16:19], 0 offen offset:{4*k}")
        k += w
    a(f"v_mov_b32 v{D0+S}, 0")
    a(f"v_mul_u32_u24 v{vTile}, {TILE_BYTES}, v{vTile}")
    a(f"v_and_b32 v{vt}, 15, v12")
    a(f"v_mul_u32_u24 v{vU12}, 12, v{vt}")
    a(f"v_lshl_add_u32 v{v2U1}, v{vt}, 1, 1")
    a(f"v_add_u32 v{v2U2}, 1, v{v2U1}")
    a(f"v_mov_b32 v{vInc}, {(1 << 20) + 4}")
    a(f"v_mov_b32 v{v3FC}, 0x3fc")
    a(f"v_mov_b32 v{vSg}, 0x80000000")
    for r in (vCb, vZ, vra, vrb): a(f"v_mov_b32 v{r}, 0")
    a("s_mov_b32 s48, 0")
    a("s_mov_b32 s49, 0")
    a(f"s_mov_b32 s{ROW0}, 0x00010001")
    a(f"s_mov_b32 s{ROW0+1}, 0x00010001")
    def prep():
        a(f"v_bfe_u32 v{vt}, v{D0}, 1, 15")
        a(f"v_mad_u32_u24 v{a0n}, v{vt}, 12, v{vTile}")
        a(f"v_lshrrev_b32 v{n2n}, 16, v{D0}")
        a(f"v_and_b32 v{vt}, 0xfffe, v{D0}")
        a(f"v_sub_u32 v{n2n}, v{n2n}, v{vt}")
        a(f"v_and_b32 v{vt}, 1, v{D0}")
        a(f"v_cmp_eq_u32 s[{ODDN}:{ODDN+1}], 1, v{vt}")
        a(f"v_cmp_lt_u32 s[{MORN}:{MORN+1}], 32, v{n2n}")
        for k in range(S): a(f"v_mov_b32 v{D0+k}, v{D0+k+1}")
    def issue(i):
        a(f"v_add_u32_dpp v{vt}, v{a0n}, v{vU12} row_newbcast:{i} row_mask:0xf bank_mask:0xf")
        a(f"v_sub_u32_dpp v{vt2}, v{n2n}, v{v2U1} row_newbcast:{i} row_mask:0xf bank_mask:0xf")
        a(f"v_bitop3_b32 v{vt}, v{vt2}, v{vSg}, v{vt} bitop3:0xea")
        r = R0 + 4 * i
        a(f"buffer_load_dwordx3 v[{r}:{r+2}], v{vt}, s[12:15], 0 offen {o.p2_rec}")
    def twait(body):
        if o.prof:
            a("s_waitcnt lgkmcnt(0)")
            a("s_memtime s[56:57]")
            a("s_waitcnt lgkmcnt(0)")
        body()
        if o.prof:
            a("s_memtime s[58:59]")
            a("s_waitcnt lgkmcnt(0)")
            a("s_sub_u32 s56, s58, s56")
            a("s_add_u32 s71, s71, s56")
    def next_round():
        a("s_add_u32 s48, s48, 1")
        if o.maxr:
            a(f"s_cmp_gt_u32 s48, {o.maxr}")
            a("s_cbranch_scc1 P2_pdone")
        a(f"v_mov_b32 v{vt}, s48")
        if not o.flags:
            a(f"ds_max_u32 v{vZ}, v{vt} offset:{FLAG}")
            a(f"v_xor_b32 v{vCb}, 1024, v{vCb}")
            a("s_waitcnt lgkmcnt(0)")
            twait(lambda: a("s_barrier"))
            return
        a(f"ds_write_b32 v{vPW}, v{vt} offset:{FLAG}")
        a(f"v_xor_b32 v{vCb}, 1024, v{vCb}")
        a("s_lshr_b32 s50, s48, 1")
        a("s_mul_i32 s50, s50, 12")
        a(f"v_lshrrev_b32 v{vt2}, 8, v{vCb}")
        uid[0] += 1; u = uid[0]
        def spin():
            a(f"P2_pw{u}:")
            a(f"ds_read_b32 v{vt}, v{vt2} offset:{FLC}")
            a("s_waitcnt lgkmcnt(0)")
            a(f"v_readfirstlane_b32 s51, v{vt}")
            a("s_cmp_ge_u32 s51, s50")
            a(f"s_cbranch_scc1 P2_pg{u}")
            a(f"s_sleep {o.psleep}")
            a(f"s_branch P2_pw{u}")
            a(f"P2_pg{u}:")
        twait(spin)
    a(f"s_lshl_b32 s50, s3, 2")
    a(f"v_mov_b32 v{vPW}, s50")
    if o.prof: a("s_mov_b32 s71, 0")
    a("s_waitcnt vmcnt(0)")
    prep()
    for i in range(16): issue(i)
    a("s_barrier")
    a("P2_pslice:")
    a(f"v_mov_b32 v{n2c}, v{n2n}")
    a(f"v_mov_b32 v{a0c}, v{a0n}")
    a(f"s_mov_b64 s[{ODDC}:{ODDC+1}], s[{ODDN}:{ODDN+1}]")
    a(f"s_mov_b64 s[{MORC}:{MORC+1}], s[{MORN}:{MORN+1}]")
    prep()
    for i in range(16):
        r = R0 + 4 * i
        a(f"v_sub_co_u32_dpp v{vt}, vcc, v{n2c}, v{v2U1} row_newbcast:{i} row_mask:0xf bank_mask:0xf")
        a(f"s_and_b64 s[92:93], s[{ODDC}:{ODDC+1}], s[{ROW0}:{ROW0+1}]")
        a(f"s_nor_b64 s[{M0_}:{M0_+1}], vcc, s[92:93]")
        a(f"v_sub_co_u32_dpp v{vt}, vcc, v{n2c}, v{v2U2} row_newbcast:{i} row_mask:0xf bank_mask:0xf")
        a(f"s_lshr_b64 s[{ODDC}:{ODDC+1}], s[{ODDC}:{ODDC+1}], 1")
        a(f"s_not_b64 s[{M1_}:{M1_+1}], vcc")
        a("s_waitcnt vmcnt(15)")
        a(f"P2_retry{i}:")
        a(f"v_lshrrev_b32 v{vca}, 18, v{r}")
        a(f"v_lshrrev_b32 v{vcb}, 18, v{r+1}")
        a(f"v_bitop3_b32 v{vca}, v{vca}, v{v3FC}, v{vCb} bitop3:0xea")
        a(f"v_bitop3_b32 v{vcb}, v{vcb}, v{v3FC}, v{vCb} bitop3:0xea")
        a(f"s_mov_b64 exec, s[{M0_}:{M0_+1}]")
        a(f"ds_add_rtn_u32 v{vra}, v{vca}, v{vInc}")
        a(f"s_mov_b64 exec, s[{M1_}:{M1_+1}]")
        a(f"ds_add_rtn_u32 v{vrb}, v{vcb}, v{vInc}")
        a(f"s_mov_b64 exec, -1")
        a(f"v_and_b32 v{vwa}, 0xf00fffff, v{r}")
        a(f"v_and_b32 v{vwb}, 0xf00fffff, v{r+1}")
        a("s_waitcnt lgkmcnt(0)")
        a(f"v_and_b32 v{vra}, 0xfc03ffff, v{vra}")
        a(f"v_and_b32 v{vrb}, 0xfc03ffff, v{vrb}")
        a(f"v_lshrrev_b32 v{vha}, 1, v{vra}")
        a(f"v_lshrrev_b32 v{vhb}, 1, v{vrb}")
        a(f"v_or_b32 v{vt}, v{vra}, v{vrb}")
        a(f"v_cmp_lt_u32 vcc, v{vInc}, v{vt}")
        a(f"s_mov_b64 exec, s[{M0_}:{M0_+1}]")
        a(f"ds_write_b32 v{vra}, v{vwa} offset:{WB}")
        a(f"ds_write_b16 v{vha}, v{r+2} offset:{CB}")
        a(f"s_mov_b64 exec, s[{M1_}:{M1_+1}]")
        a(f"ds_write_b32 v{vrb}, v{vwb} offset:{WB}")
        a(f"ds_write_b16_d16_hi v{vhb}, v{r+2} offset:{CB}")
        a(f"s_mov_b64 exec, -1")
        a(f"s_cbranch_vccnz P2_stall{i}")
        a(f"s_and_b64 s[92:93], s[{MORC}:{MORC+1}], s[{ROW0}:{ROW0+1}]")
        a(f"s_cbranch_scc1 P2_more{i}")
        a(f"s_lshr_b64 s[{MORC}:{MORC+1}], s[{MORC}:{MORC+1}], 1")
        issue(i)
    a("s_add_u32 s49, s49, 1")
    a(f"s_cmp_ge_u32 s49, {S}")
    a("s_cbranch_scc1 P2_pdone")
    a("s_cmp_ge_u32 s48, s49")
    a("s_cbranch_scc1 P2_pslice")
    next_round()
    a("s_branch P2_pslice")
    a("P2_pdone:")
    if o.flags:
        a("s_add_u32 s48, s48, 0x40000001")
        a(f"v_mov_b32 v{vt}, s48")
        a(f"ds_write_b32 v{vPW}, v{vt} offset:{FLAG}")
    a("s_waitcnt vmcnt(0) lgkmcnt(0)")
    if o.prof:
        n0 = P.n; P.stamp(); P.dump(32, 0x80000, 8, 3); P.n = n0
    a("s_endpgm")
    for i in range(16):
        r = R0 + 4 * i
        a(f"P2_stall{i}:")
        a(f"v_cmp_lt_u32 s[{M0_}:{M0_+1}], v{vInc}, v{vra}")
        a(f"v_cmp_lt_u32 s[{M1_}:{M1_+1}], v{vInc}, v{vrb}")
        next_round()
        a(f"s_branch P2_retry{i}")
        a(f"P2_more{i}:")
        a(f"s_lshl_b64 exec, s[{ROW0}:{ROW0+1}], {i}")
        a(f"v_max_u32 v{n2c}, 32, v{n2c}")
        a(f"v_subrev_u32 v{n2c}, 32, v{n2c}")
        a(f"v_add_u32 v{a0c}, 192, v{a0c}")
        a(f"v_cmp_lt_u32 vcc, 32, v{n2c}")
        a(f"s_mov_b64 exec, -1")
        a(f"s_lshr_b64 s[92:93], vcc, {i}")
        a(f"s_andn2_b64 s[{MORC}:{MORC+1}], s[{MORC}:{MORC+1}], s[{ROW0}:{ROW0+1}]")
        a(f"s_or_b64 s[{MORC}:{MORC+1}], s[{MORC}:{MORC+1}], s[92:93]")
        a(f"v_sub_co_u32_dpp v{vt2}, vcc, v{n2c}, v{v2U2} row_newbcast:{i} row_mask:0xf bank_mask:0xf")
        a(f"s_not_b64 s[{M1_}:{M1_+1}], vcc")
        a(f"v_sub_co_u32_dpp v{vt2}, vcc, v{n2c}, v{v2U1} row_newbcast:{i} row_mask:0xf bank_mask:0xf")
        a(f"v_add_u32_dpp v{vt}, v{a0c}, v{vU12} row_newbcast:{i} row_mask:0xf bank_mask:0xf")
        a(f"s_not_b64 s[{M0_}:{M0_+1}], vcc")
        a(f"v_cndmask_b32 v{vt}, v{vt}, v{vSg}, vcc")
        a(f"buffer_load_dwordx3 v[{r}:{r+2}], v{vt}, s[12:15], 0 offen {o.p2_rec}")
        a("s_waitcnt vmcnt(0)")
        a(f"s_branch P2_retry{i}")
    a("P2_consumer:")
    ACC = 60; G0 = 52; B0 = 44; WA = 36; WBr = 40; D1 = 28; vM = 24; vC = 20; vX = 16
    bA = 1; bE = 2; bC = 3; bR = 4; vH = 5; vL = 6; vCA = 7; vCI = 8; vA = 9; vE = 10; vZ = 15
    a("s_sub_u32 s47, s3, 4")
    a("s_min_u32 s48, s47, 4")
    a("s_lshl_b32 s49, s47, 4")
    a("s_add_u32 s49, s49, s48")
    a("s_cmp_lt_u32 s47, 4")
    a("s_cselect_b32 s50, 17, 16")
    a(f"s_cselect_b32 s84, 0, {MARK}")
    a(f"s_cselect_b32 s85, {17*WSTR//16-192}, {16*WSTR//16-192}")
    a("s_bfm_b64 s[92:93], s85, 0")
    a("v_and_b32 v13, 15, v12")
    a("v_lshrrev_b32 v14, 4, v12")
    a(f"v_and_b32 v{vH}, 16, v12")
    a(f"v_lshlrev_b32 v{vA}, 4, v{vH}")
    a(f"v_lshl_add_u32 v{vA}, v13, 1, v{vA}")
    for c in range(8): a(f"buffer_load_ushort v{vC+c}, v{vA}, s[28:31], 0 offen offset:{32*c}")
    for i in range(4): a(f"v_mov_b32 v{D1+i}, {MARK}")
    a(f"v_subrev_u32 v{vA}, 256, v0")
    a(f"v_lshlrev_b32 v{vA}, 4, v{vA}")
    for k in range(-(-(LDS - CB) // (768 * 16))):
        a(f"ds_write_b128 v{vA}, v[{D1}:{D1+3}] offset:{CB}")
        a(f"v_add_u32 v{vA}, {768*16}, v{vA}")
    for i in range(68): a(f"v_mov_b32 v{ACC+i}, 0")
    for i in range(16): a(f"v_mov_b32 v{B0+i}, 0")
    a(f"v_mov_b32 v{vZ}, 0")
    a(f"v_lshrrev_b32 v{vA}, 2, v13")
    a(f"v_cmp_eq_u32 vcc, v{vA}, v14")
    a(f"v_and_b32 v{vE}, 3, v12")
    a(f"v_lshlrev_b32 v{vE}, 4, v{vE}")
    a(f"v_mov_b32 v{vX}, 0xffff")
    a(f"v_mov_b32 v{vX+1}, 0")
    a(f"v_cndmask_b32 v{vX}, 0, v{vX}, vcc")
    a(f"v_lshlrev_b64 v[{vX}:{vX+1}], v{vE}, v[{vX}:{vX+1}]")
    a(f"v_lshrrev_b32 v{vA}, 1, v{vH}")
    a(f"v_lshl_add_u32 v{vA}, v13, 4, v{vA}")
    a(f"v_lshrrev_b32 v{vE}, 5, v12")
    a(f"v_lshl_add_u32 v{vA}, v{vE}, 8, v{vA}")
    a(f"ds_write_b64 v{vA}, v[{vX}:{vX+1}] offset:{LUT}")
    a(f"v_and_b32 v0, 7, v12")
    a(f"v_lshlrev_b32 v0, 2, v0")
    a(f"ds_write_b32 v0, v{vZ} offset:{FLC}")
    a(f"v_and_b32 v0, 12, v0")
    a(f"s_mul_i32 s51, s49, {WSTR}")
    a(f"s_lshr_b32 s86, s51, 1")
    a(f"s_add_u32 s86, s86, {CB}")
    a(f"v_lshl_add_u32 v{bC}, v14, 4, s86")
    a(f"v_mul_u32_u24 v{vCI}, {WSTR}, v12")
    a(f"s_add_u32 s86, s51, {(64 - CAP) << 20}")
    a(f"v_add_u32 v{vCI}, s86, v{vCI}")
    a(f"s_add_u32 s51, s51, {WB}")
    a(f"v_lshl_add_u32 v{bR}, v12, 4, s51")
    a(f"v_and_b32 v{vA}, 12, v12")
    a(f"v_lshlrev_b32 v{bA}, 1, v{vA}")
    a(f"v_and_or_b32 v{bA}, v12, 3, v{bA}")
    a(f"v_lshl_or_b32 v{bA}, v{vE}, 2, v{bA}")
    a(f"v_lshl_add_u32 v{bA}, v{bA}, 2, s51")
    a(f"v_lshl_add_u32 v{bE}, v14, 5, v{vA}")
    a(f"v_add_u32 v{bE}, s51, v{bE}")
    a(f"v_and_b32 v{vL}, 1, v12")
    a(f"v_lshlrev_b32 v{vL}, 3, v{vL}")
    a(f"v_and_b32 v{vA}, 2, v12")
    a(f"v_lshl_add_u32 v{vL}, v{vA}, 7, v{vL}")
    a(f"v_add_lshl_u32 v{vCA}, v12, s49, 2")
    a(f"v_cmp_gt_u32 vcc, s50, v12")
    a(f"v_cmp_gt_u32 s[88:89], 32, v12")
    a(f"v_add_u32 v{vA}, {WSZ}, v{vCI}")
    a(f"v_cndmask_b32 v{vCA}, 2.0, v{vCA}, vcc")
    a(f"ds_write_b32 v{vCA}, v{vCI}")
    a(f"ds_write_b32 v{vCA}, v{vA} offset:1024")
    a(f"s_mov_b32 s85, {(64 - CAP + 33) << 20}")
    a("s_mov_b32 s94, 0xf000f000")
    a("s_mov_b32 s95, 0xf000f000")
    a("s_waitcnt vmcnt(0)")
    for u in range(4):
        a(f"v_lshl_or_b32 v{vC+u}, v{vC+2*u+1}, 16, v{vC+2*u}")
    for u in range(4):
        a(f"v_cndmask_b32 v{WA+u}, 0, v{vC+u}, s[88:89]")
        a(f"v_cndmask_b32 v{WBr+u}, v{vC+u}, 0, s[88:89]")
    a("s_mov_b32 s48, 0")
    if o.prof: a("s_mov_b32 s71, 0")
    a("s_waitcnt lgkmcnt(0)")
    a("s_barrier")
    P.stamp()
    def reads1(par, i, second):
        oa = par * WSZ + i * WSTR + (128 if second else 0)
        a(f"ds_read_b32 v{vA}, v{bA} offset:{oa}")
        a(f"ds_read_u8 v{vE}, v{bE} offset:{oa+3}")
        a(f"ds_read_u8 v{vE+1}, v{bE} offset:{oa+19}")
    def reads2(par, i, second):
        oc = (par * WSZ + i * WSTR + (128 if second else 0)) // 2
        a(f"v_add_u32 v{vE}, v{vE}, v{vL}")
        a(f"v_add_u32 v{vE+1}, v{vE+1}, v{vL}")
        a(f"ds_read_b64_tr_b16 v[{vM}:{vM+1}], v{vE} offset:{LUT}")
        a(f"ds_read_b64_tr_b16 v[{vM+2}:{vM+3}], v{vE+1} offset:{LUT}")
        a(f"ds_read_b128 v[{vC}:{vC+3}], v{bC} offset:{oc}")
    def addr():
        if o.dbg & 4: a(f"v_and_b32 v{vA}, 0x10ffff, v{vA}")
        a(f"v_mad_u32_u24 v{vA}, v{vA}, 32, v{vH}")
        if o.dbg & 1: a(f"v_mov_b32 v{vA}, 2.0")
    def mfma1(g):
        if o.dbg & 2: return
        a(f"v_mfma_f32_16x16x32_bf16 v[{D1}:{D1+3}], v[{g}:{g+3}], v[{WA}:{WA+3}], 0")
        a(f"v_mfma_f32_16x16x32_bf16 v[{D1+4}:{D1+7}], v[{g}:{g+3}], v[{WBr}:{WBr+3}], 0")
    def mfma2(i, b):
        if o.dbg & 2: return
        for u in range(4): a(f"v_cvt_pk_bf16_f32 v{D1+u}, v{D1+2*u}, v{D1+2*u+1}")
        c = ACC + 4 * i
        a(f"v_mfma_f32_16x16x32_bf16 v[{c}:{c+3}], v[{D1}:{D1+3}], v[{b}:{b+3}], v[{c}:{c+3}]")
    NS = 17
    for par in range(2):
        a(f"P2_round{par}:")
        if not o.flags:
            twait(lambda: a("s_barrier"))
            reads1(par, 0, False)
            a(f"ds_read_b32 v{vX}, v{vCA} offset:{1024*par}")
            a(f"ds_read_b32 v{vX+1}, v{vZ} offset:{FLAG}")
        else:
            def spin():
                a(f"P2_cw{par}:")
                a(f"ds_read_b32 v{vX+1}, v0 offset:{FLAG}")
                reads1(par, 0, False)
                a(f"ds_read_b32 v{vX}, v{vCA} offset:{1024*par}")
                a("s_waitcnt lgkmcnt(4)")
                a(f"v_cmp_ge_u32 vcc, s48, v{vX+1}")
                a(f"v_and_b32 v{vX+1}, 0x3fffffff, v{vX+1}")
                a(f"s_cbranch_vccz P2_cg{par}")
                a(f"s_sleep {o.csleep}")
                a(f"s_branch P2_cw{par}")
                a(f"P2_cg{par}:")
            twait(spin)
            a(f"v_cmp_lt_u32 vcc, s48, v{vX+1}")
            a(f"s_cbranch_vccz P2_drain{1-par}")
        if o.prof and par == 0:
            a("s_cmp_lg_u32 s48, 0"); a("s_cbranch_scc1 P2_nostamp"); P.stamp(); a("P2_nostamp:")
        if par: a(f"v_add_u32 v{vX+2}, {WSZ}, v{vCI}")
        a(f"ds_write_b32 v{vCA}, v{vX+2 if par else vCI} offset:{1024*par}")
        a("s_add_u32 s48, s48, 1")
        for i in range(NS):
            p = (par * NS + i) % 2
            g = G0 + 4 * p; b = B0 + 4 * p
            if o.cprio and i % 5 == 0 and i < 15: a(f"s_setprio {2 - i // 5}")
            a("s_waitcnt lgkmcnt(0)")
            if i == NS - 1: a(f"v_or_b32 v{vA}, s84, v{vA}")
            addr()
            a("s_waitcnt vmcnt(1)")
            mfma1(g)
            a(f"buffer_load_dwordx4 v[{g}:{g+3}], v{vA}, s[8:11], 0 offen")
            reads2(par, i, False)
            if i + 1 < NS: reads1(par, i + 1, False)
            if i == 0:
                a(f"v_cmp_le_u32 s[90:91], s85, v{vX}")
                if not o.flags: a(f"v_readfirstlane_b32 s87, v{vX+1}")
            mfma2((i - 2) % NS, b)
            a(f"s_bitcmp1_b32 s90, {i}")
            a(f"s_waitcnt lgkmcnt({3 if i + 1 < NS else 0})")
            for u in range(4): a(f"v_and_b32 v{b+u}, v{vM+u}, v{vC+u}")
            a(f"s_cbranch_scc1 P2_slow{par}_{i}")
            a(f"P2_back{par}_{i}:")
        for u in range(4): a(f"v_mov_b32 v{vX+u}, {MARK}")
        for k in range(4):
            if k == 3: a("s_mov_b64 exec, s[92:93]")
            a(f"ds_write_b128 v{bR}, v[{vX}:{vX+3}] offset:{par*WSZ+1024*k}")
        if o.flags:
            a("s_mov_b64 exec, 1")
            a(f"v_mov_b32 v{vA}, 1")
            a(f"ds_add_u32 v{vZ}, v{vA} offset:{FLC+4*par}")
            a("s_mov_b64 exec, -1")
            if par: a("s_branch P2_round0")
            continue
        a("s_mov_b64 exec, -1")
        a("s_cmp_ge_u32 s87, s48")
        a("s_waitcnt lgkmcnt(0)")
        if par == 0:
            a("s_cbranch_scc0 P2_drain0")
        else:
            a("s_cbranch_scc1 P2_round0")
    def drain(par):
        a("s_waitcnt lgkmcnt(0)")
        for i in (NS, NS + 1):
            p = (par * NS + i) % 2
            a(f"s_waitcnt vmcnt({NS+1-i})")
            mfma1(G0 + 4 * p)
            mfma2(i - 2, B0 + 4 * p)
    a("P2_drain1:")
    drain(1)
    a("s_branch P2_epi")
    for par in range(2):
        for i in range(NS):
            a(f"P2_slow{par}_{i}:")
            reads1(par, i, True)
            a("s_waitcnt lgkmcnt(0)")
            a("s_mov_b64 exec, s[94:95]")
            a(f"v_mov_b32 v{vA}, {MARK}")
            a("s_mov_b64 exec, -1")
            addr()
            a(f"buffer_load_dwordx4 v[{vX}:{vX+3}], v{vA}, s[8:11], 0 offen")
            reads2(par, i, True)
            if i + 1 < NS: reads1(par, i + 1, False)
            a(f"s_waitcnt lgkmcnt({3 if i + 1 < NS else 0})")
            for u in range(4): a(f"v_and_b32 v{vM+u}, v{vM+u}, v{vC+u}")
            a("s_waitcnt vmcnt(0)")
            mfma1(vX)
            mfma2(i, vM)
            a(f"s_branch P2_back{par}_{i}")
    a("P2_drain0:")
    drain(0)
    a("P2_epi:")
    P.stamp()
    vOff = 1; vOo = 2; vDo = 3; DS = 4
    WS_ = 16; WR_ = 20; WU = 24; CEN = 26
    M0 = 30
    X = 38
    a(f"s_lshl_b32 s51, s49, 8")
    a(f"s_add_u32 s51, s51, s46")
    a(f"s_lshl_b32 s51, s51, 4")
    a(f"v_add_u32 v{vOff}, s51, v13")
    a(f"v_lshrrev_b32 v{X}, 1, v14")
    a(f"v_lshl_add_u32 v{vDo}, v{X}, 12, v{vOff}")
    a(f"v_lshlrev_b32 v{vDo}, 1, v{vDo}")
    a(f"v_lshlrev_b32 v{vOff}, 5, v{vOff}")
    a(f"v_lshl_add_u32 v{vOff}, v14, 3, v{vOff}")
    a(f"v_mov_b32 v{vOo}, v{vOff}")
    a(f"v_lshlrev_b32 v{X+1}, 7, v14")
    a(f"v_lshl_add_u32 v{X+1}, v13, 1, v{X+1}")
    a(f"v_and_b32 v{X+2}, 0xff, v{X+1}")
    a(f"v_and_b32 v{X+3}, 1, v14")
    a(f"v_lshlrev_b32 v{X+3}, 3, v{X+3}")
    srd(a, 28, 42, 512)
    for c in range(4): a(f"buffer_load_ushort v{X+4+c}, v{X+1}, s[28:31], 0 offen offset:{32*c}")
    srd(a, 12, 38, 256)
    for c in range(4): a(f"buffer_load_ushort v{X+8+c}, v{X+2}, s[12:15], 0 offen offset:{32*c}")
    srd(a, 16, 36, 256)
    for c in range(4): a(f"buffer_load_ushort v{X+12+c}, v{X+2}, s[16:19], 0 offen offset:{32*c}")
    srd(a, 52, 34, 16)
    for c in range(4): a(f"buffer_load_ushort v{CEN+c}, v{X+3}, s[52:55], 0 offen offset:{2*c}")
    for k in range(9):
        a(f"buffer_load_ushort v{DS+k}, v{vDo}, s[24:27], 0 offen")
        a(f"v_add_u32 v{vDo}, {2*4096*2}, v{vDo}")
    def mload(i):
        m = M0 + 2 * (i % 4)
        a(f"buffer_load_dwordx2 v[{m}:{m+1}], v{vOff}, s[8:11], 0 offen")
        a(f"v_add_u32 v{vOff}, {4096*32}, v{vOff}")
    for i in range(4): mload(i)
    a("s_mov_b32 s84, 0xffff0000")
    a("s_mov_b32 s85, 0xc1200000")
    a("s_mov_b32 s86, 0x3fb8aa3b")
    a("s_waitcnt vmcnt(4)")
    for u in range(2):
        a(f"v_lshl_or_b32 v{WU+u}, v{X+5+2*u}, 16, v{X+4+2*u}")
        a(f"v_lshl_or_b32 v{X+8+u}, v{X+9+2*u}, 16, v{X+8+2*u}")
        a(f"v_lshl_or_b32 v{X+12+u}, v{X+13+2*u}, 16, v{X+12+2*u}")
    for u in range(2):
        a(f"v_cndmask_b32 v{WS_+u}, 0, v{X+8+u}, s[88:89]")
        a(f"v_cndmask_b32 v{WS_+2+u}, v{X+8+u}, 0, s[88:89]")
        a(f"v_cndmask_b32 v{WR_+u}, 0, v{X+12+u}, s[88:89]")
        a(f"v_cndmask_b32 v{WR_+2+u}, v{X+12+u}, 0, s[88:89]")
    for c in range(4): a(f"v_lshlrev_b32 v{CEN+c}, 16, v{CEN+c}")
    RB = X; t = X + 2; SS = X + 6; GG = X + 10; AG = X + 14; UU = X + 16; OT = X + 20
    def rnd():
        for u in range(2):
            a(f"v_cvt_pk_bf16_f32 v{t+2*u+1}, v{t+2*u}, v{t+2*u+1}")
        for u in range(2):
            a(f"v_lshlrev_b32 v{t+2*u}, 16, v{t+2*u+1}")
            a(f"v_and_b32 v{t+2*u+1}, s84, v{t+2*u+1}")
    for i in range(NS):
        if i == 16:
            a("s_cmp_lt_u32 s50, 17")
            a("s_cbranch_scc1 P2_fin")
        if i % 2 == 0:
            d = DS + i // 2
            a(f"v_lshlrev_b32 v{d}, 16, v{d}")
            for c in range(4): a(f"v_sub_f32 v{t+c}, v{d}, v{CEN+c}")
            rnd()
            for c in range(4): a(f"v_mul_f32 v{t+c}, v{t+c}, v{t+c}")
            rnd()
            for c in range(4): a(f"v_mul_f32 v{t+c}, s85, v{t+c}")
            rnd()
            for c in range(4): a(f"v_mul_f32 v{t+c}, s86, v{t+c}")
            for c in range(4): a(f"v_exp_f32 v{t+c}, v{t+c}")
            for u in range(2): a(f"v_cvt_pk_bf16_f32 v{RB+u}, v{t+2*u}, v{t+2*u+1}")
        h = 2 * (i % 2); c0 = ACC + 4 * i; m = M0 + 2 * (i % 4)
        a(f"v_mfma_f32_16x16x16_bf16 v[{SS}:{SS+3}], v[{WS_+h}:{WS_+h+1}], v[{RB}:{RB+1}], 0")
        a(f"v_mfma_f32_16x16x16_bf16 v[{GG}:{GG+3}], v[{WR_+h}:{WR_+h+1}], v[{RB}:{RB+1}], 0")
        nl = min(3, NS - 1 - i); ns = min(3, i)
        a(f"s_waitcnt vmcnt({nl + ns if i + 3 < NS else nl})")
        a(f"v_lshlrev_b32 v{t}, 16, v{m}")
        a(f"v_and_b32 v{t+1}, s84, v{m}")
        a(f"v_lshlrev_b32 v{t+2}, 16, v{m+1}")
        a(f"v_and_b32 v{t+3}, s84, v{m+1}")
        for c in range(4): a(f"v_mul_f32 v{SS+c}, v{SS+c}, v{c0+c}")
        for u in range(2): a(f"v_cvt_pk_bf16_f32 v{AG+u}, v{SS+2*u}, v{SS+2*u+1}")
        a(f"v_mfma_f32_16x16x16_bf16 v[{UU}:{UU+3}], v[{WU}:{WU+1}], v[{AG}:{AG+1}], 0")
        for c in range(4): a(f"v_fma_f32 v{t+c}, v{UU+c}, v{GG+c}, v{t+c}")
        for u in range(2): a(f"v_cvt_pk_bf16_f32 v{OT+u}, v{t+2*u}, v{t+2*u+1}")
        a(f"buffer_store_dwordx2 v[{OT}:{OT+1}], v{vOo}, s[20:23], 0 offen")
        a(f"v_add_u32 v{vOo}, {4096*32}, v{vOo}")
        if i + 4 < NS: mload(i + 4)
    a("P2_fin:")
    if o.prof:
        P.stamp()
        a("s_waitcnt vmcnt(0)")
        P.stamp()
        P.dump(32, 0x80000, X, 3)
    a("P2_end:")
    a("s_endpgm")
    return a.finish(), LDS

KD = """.amdhsa_kernel {name}
  .amdhsa_next_free_vgpr 128
  .amdhsa_next_free_sgpr 96
  .amdhsa_accum_offset 128
  .amdhsa_group_segment_fixed_size 0
  .amdhsa_kernarg_size 112
  .amdhsa_user_sgpr_count 2
  .amdhsa_user_sgpr_kernarg_segment_ptr 1
  .amdhsa_system_sgpr_workgroup_id_x 1
  .amdhsa_float_denorm_mode_32 3
.end_amdhsa_kernel
"""

def build(o):
    p1, l1 = gen_p1(o); p2, l2 = gen_p2(o)
    ref = open("gather_scatter__molecular_angular_gemnet__graph.s.ref").read().split("\n")
    head = [l for l in ref if l.startswith(";") and "launch geometry" not in l and "Harness parses" not in l and "@launch" not in l]
    s = "\n".join(head) + "\n"
    s += "; Two launches: p1 partitions the triplets by (input slice, output bin); p2 gathers / segment-sums with MFMA.\n"
    s += f"; @launch kernel=gemnet_p1_kernel grid=(256,1,1) block=(1024,1,1) lds={l1}\n"
    s += f"; @launch kernel=gemnet_p2_kernel grid=(256,1,1) block=(1024,1,1) lds={l2}\n"
    s += '.amdgcn_target "amdgcn-amd-amdhsa--gfx950"\n.text\n'
    for n, b in (("gemnet_p1_kernel", p1), ("gemnet_p2_kernel", p2)):
        s += f".globl {n}\n.p2align 8\n.type {n},@function\n{n}:\n" + b
    s += '.section .rodata,"a"\n'
    for n in ("gemnet_p1_kernel", "gemnet_p2_kernel"):
        s += ".p2align 6\n" + KD.format(name=n)
    return s

def parser():
    p = argparse.ArgumentParser()
    p.add_argument("-S", type=int, default=10)
    p.add_argument("--prof", type=int, default=0)
    p.add_argument("--maxr", type=int, default=0)
    p.add_argument("--dbg", type=int, default=0)
    p.add_argument("--warm", type=int, default=0)
    p.add_argument("--defer", type=int, default=4)
    p.add_argument("--flags", type=int, default=1)
    p.add_argument("--psleep", type=int, default=2)
    p.add_argument("--csleep", type=int, default=2)
    p.add_argument("--asplit", type=int, default=8)
    p.add_argument("--p1_dst", default="")
    p.add_argument("--p1_ld", default="nt")
    p.add_argument("--p1_st", default="sc1")
    p.add_argument("--p2_rec", default="")
    p.add_argument("--prio", type=int, default=3)
    p.add_argument("--cprio", type=int, default=1)
    p.add_argument("-o", default="gather_scatter__molecular_angular_gemnet__graph.s")
    return p

if __name__ == "__main__":
    o = parser().parse_args()
    open(o.o, "w").write(build(o))
```

```python
import sys, argparse
from asmlib import Asm

E = 800000; T = 12800000
NT = 256
CHA = 25088
TILE_N = 50000
TILE_BYTES = 300032
WS_DESC = 0x5000000
WS_PROF = 0x6000000
CAP = 56
WSTR = CAP * 4
MARK = 0x00100000
NG = 196

def srd(a, d, base, size, off=None):
    if off is None:
        a(f"s_mov_b32 s{d}, s{base}")
        a(f"s_mov_b32 s{d+1}, s{base+1}")
    else:
        a(f"s_add_u32 s{d}, s{base}, {off}")
        a(f"s_addc_u32 s{d+1}, s{base+1}, 0")
    a(f"s_mov_b32 s{d+2}, {size}")
    a(f"s_mov_b32 s{d+3}, 0x20000")

class Prof:
    def __init__(self, a, on, fuse=0): self.a = a; self.on = on; self.n = 0; self.fuse = fuse
    def stamp(self, fused_too=True):
        if not self.on or (self.fuse and not fused_too): return
        a = self.a
        a("s_waitcnt lgkmcnt(0)")
        a("s_memtime s[58:59]")
        a("s_waitcnt lgkmcnt(0)")
        a(f"s_mov_b32 s{60+self.n}, s58")
        a("s_memrealtime s[58:59]")
        a("s_waitcnt lgkmcnt(0)")
        a(f"s_mov_b32 s{72+self.n}, s58")
        self.n += 1
    def dump(self, wsreg, region, vt, wave_sreg):
        if not self.on: return
        a = self.a
        srd(a, 52, wsreg, 0x100000, WS_PROF + region)
        a(f"s_lshl_b32 s56, s2, 4")
        a(f"s_add_u32 s56, s56, s{wave_sreg}")
        a(f"s_lshl_b32 s56, s56, 7")
        a("s_mov_b64 exec, 1")
        for i in range(self.n):
            a(f"v_mov_b32 v{vt}, s56")
            a(f"v_mov_b32 v{vt+1}, s{60+i}")
            a(f"buffer_store_dword v{vt+1}, v{vt}, s[52:55], 0 offen offset:{4*i}")
            a(f"v_mov_b32 v{vt+1}, s{72+i}")
            a(f"buffer_store_dword v{vt+1}, v{vt}, s[52:55], 0 offen offset:{64+4*i}")
        a(f"v_mov_b32 v{vt+1}, s71")
        a(f"buffer_store_dword v{vt+1}, v{vt}, s[52:55], 0 offen offset:124")
        a("s_waitcnt vmcnt(0)")
        a("s_mov_b64 exec, -1")

def gen_p1(o, a, P):
    S = o.S
    NK = S * 256
    KSL = (S << 26) // E
    CN = 16; SCR = CN + NK * 4; STG = SCR + 64; XW = STG + CHA * 6
    W0 = 4; KP0 = 53; C0 = 78; TO = 103; T0 = 104
    ld = o.p1_ld; st = o.p1_st
    a("s_cmp_ge_u32 s2, 256")
    a("s_cbranch_scc1 " + ("P2_end" if o.fuse else "P1_end"))
    a("s_load_dwordx4 s[4:7], s[0:1], 8")
    a("s_load_dwordx2 s[28:29], s[0:1], 32")
    a("s_load_dwordx2 s[30:31], s[0:1], 48")
    a("s_load_dwordx2 s[32:33], s[0:1], 104")
    a("s_load_dwordx2 s[46:47], s[0:1], 0")
    a("s_load_dwordx2 s[94:95], s[0:1], 96")
    a("v_lshlrev_b32 v1, 4, v0")
    a("v_lshlrev_b32 v2, 3, v0")
    a("v_mov_b32 v3, 1")
    for i in range(4): a(f"v_mov_b32 v{T0+i}, 0")
    a(f"ds_write_b128 v1, v[{T0}:{T0+3}]")
    a("v_lshrrev_b32 v127, 6, v0")
    a("v_readfirstlane_b32 s3, v127")
    a(f"s_mul_i32 s34, s2, 848")
    a(f"s_add_u32 s34, s34, {3072*4096}")
    a(f"v_add_u32 v109, s34, v0")
    a(f"v_cmp_gt_u32 vcc, 848, v0")
    a(f"v_lshlrev_b32 v110, 2, v109")
    a(f"v_lshlrev_b32 v109, 1, v109")
    a(f"v_cndmask_b32 v110, 2.0, v110, vcc")
    a(f"v_cndmask_b32 v109, 2.0, v109, vcc")
    a("s_waitcnt lgkmcnt(0)")
    P.stamp()
    srd(a, 8, 4, T * 4); srd(a, 12, 6, T * 4); srd(a, 16, 28, T * 2)
    a("s_load_dword s35, s[30:31], 0")
    if o.cmap == 0:
        a("s_mov_b32 s36, s2")
    elif o.cmap == 1:
        a("s_and_b32 s36, s2, 7")
        a("s_lshl_b32 s36, s36, 5")
        a("s_lshr_b32 s37, s2, 3")
        a("s_add_u32 s36, s36, s37")
    else:
        a("s_mul_i32 s36, s2, 12")
    a("s_lshl_b32 s37, s36, 13")
    a("s_lshl_b32 s36, s36, 14")
    cstep = 1 if o.cmap == 2 else 256
    a(f"buffer_load_dword v{TO}, v110, s[12:15], 0 offen {ld}")
    a(f"buffer_load_dword v{W0+48}, v110, s[8:11], 0 offen {ld}")
    a(f"buffer_load_ushort v{C0+24}, v109, s[16:19], 0 offen {ld}")
    def issue_idx(r):
        b = C0 + 4 * (r % 6); w = W0 + 4 * r
        a(f"buffer_load_dwordx4 v[{b}:{b+3}], v1, s[12:15], s36 offen {ld}")
        a(f"buffer_load_dwordx4 v[{w}:{w+3}], v1, s[8:11], s36 offen {ld}")
        a(f"s_add_u32 s36, s36, {cstep*16384}")
    def issue_ang(r):
        b = C0 + 2 * r
        a(f"buffer_load_dwordx2 v[{b}:{b+1}], v2, s[16:19], s37 offen {ld}")
        a(f"s_add_u32 s37, s37, {cstep*8192}")
    for r in range(6): issue_idx(r)
    a("s_mov_b32 s38, 0x3c00")
    a(f"v_mov_b32 v{T0+20}, 0x3fc")
    a(f"v_mov_b32 v{T0+21}, 0x0ff00000")
    a("s_waitcnt lgkmcnt(0)")
    a("s_lshl_b32 s35, s35, 16")
    a("s_barrier")
    def key(O, W, t0, t1):
        a(f"v_mul_u32_u24 v{t0}, {KSL}, v{W}")
        a(f"v_lshlrev_b32 v{t1}, 8, v{O}")
        a(f"v_lshl_or_b32 v{W}, v{O}, 28, v{W}")
        a(f"v_and_b32_sdwa v{t0}, v{t0}, s38 dst_sel:DWORD dst_unused:UNUSED_PAD src0_sel:WORD_1 src1_sel:DWORD")
        a(f"v_lshrrev_b32 v{O}, 2, v{O}")
        a(f"v_bitop3_b32 v{W}, v{t1}, v{T0+21}, v{W} bitop3:0xea")
        a(f"v_bitop3_b32 v{O}, v{O}, v{T0+20}, v{t0} bitop3:0xea")
    for r in range(12):
        a(f"s_waitcnt vmcnt({min(10, 2*(11-r))})")
        if r == 0:
            key(TO, W0 + 48, T0, T0 + 1)
            a(f"v_cndmask_b32 v{KP0+24}, 2.0, v{TO}, vcc")
            a(f"ds_add_u32 v{KP0+24}, v3 offset:{CN}")
        b = C0 + 4 * (r % 6)
        for j in range(4):
            key(b + j, W0 + 4 * r + j, T0 + 2 * j, T0 + 2 * j + 1)
            a(f"ds_add_u32 v{b+j}, v3 offset:{CN}")
        a(f"v_lshl_or_b32 v{KP0+2*r}, v{b+1}, 16, v{b}")
        a(f"v_lshl_or_b32 v{KP0+2*r+1}, v{b+3}, 16, v{b+2}")
        if r < 6: issue_idx(r + 6)
    if o.aearly:
        a(f"s_cmp_ge_u32 s3, {o.aearly}")
        a("s_cbranch_scc1 P1_ang0")
        for n in range(12): issue_ang(n)
        a("P1_ang0:")
    a("s_waitcnt lgkmcnt(0)")
    a("s_barrier")
    P.stamp()
    c = T0; x = T0 + 4; tot = T0 + 5; y = T0 + 6
    a(f"s_cmp_ge_u32 s3, {S}")
    a("s_cbranch_scc1 P1_scan1")
    a(f"ds_read_b128 v[{c}:{c+3}], v1 offset:{CN}")
    a("s_waitcnt lgkmcnt(0)")
    a(f"v_add_u32 v{c+1}, v{c}, v{c+1}")
    a(f"v_add_u32 v{c+2}, v{c+1}, v{c+2}")
    a(f"v_add_u32 v{c+3}, v{c+2}, v{c+3}")
    a(f"v_mov_b32 v{x}, v{c+3}")
    for sh in (1, 2, 4, 8):
        a(f"v_add_u32_dpp v{x}, v{x}, v{x} row_shr:{sh} row_mask:0xf bank_mask:0xf bound_ctrl:1")
    a(f"v_add_u32_dpp v{x}, v{x}, v{x} row_bcast:15 row_mask:0xa bank_mask:0xf")
    a(f"v_add_u32_dpp v{x}, v{x}, v{x} row_bcast:31 row_mask:0xc bank_mask:0xf")
    a(f"v_readlane_b32 s40, v{x}, 63")
    a(f"s_lshl_b32 s41, s3, 2")
    a(f"v_mov_b32 v{y}, s41")
    a(f"v_mov_b32 v{y+1}, s40")
    a(f"ds_write_b32 v{y}, v{y+1} offset:{SCR}")
    a("s_waitcnt lgkmcnt(0)")
    a("P1_scan1:")
    a("s_barrier")
    a(f"s_cmp_ge_u32 s3, {S}")
    a("s_cbranch_scc1 P1_scan2")
    a(f"v_and_b32 v{y}, 63, v0")
    a(f"v_lshlrev_b32 v{y+1}, 2, v{y}")
    a(f"ds_read_b32 v{y+2}, v{y+1} offset:{SCR}")
    a(f"v_cmp_gt_u32 s[42:43], s3, v{y}")
    a(f"v_sub_u32 v{x}, v{x}, v{c+3}")
    a("s_waitcnt lgkmcnt(0)")
    a(f"v_cndmask_b32 v{y+2}, 0, v{y+2}, s[42:43]")
    for sh in (1, 2, 4, 8):
        a(f"v_add_u32_dpp v{y+2}, v{y+2}, v{y+2} row_shr:{sh} row_mask:0xf bank_mask:0xf bound_ctrl:1")
    a(f"v_readlane_b32 s40, v{y+2}, 15")
    s0 = T0 + 12
    a(f"v_add_u32 v{s0}, s40, v{x}")
    for j in range(3): a(f"v_add_u32 v{s0+1+j}, v{s0}, v{c+j}")
    a(f"ds_write_b128 v1, v[{s0}:{s0+3}] offset:{CN}")
    a("s_waitcnt lgkmcnt(0)")
    a("P1_scan2:")
    a("s_barrier")
    P.stamp(False)
    def atomics(n):
        t = T0 + 4 * (n % 2)
        if n == 12:
            a(f"ds_add_rtn_u32 v{t}, v{KP0+24}, v3 offset:{CN}"); return 1
        for j in range(4):
            kp = KP0 + 2 * n + j // 2
            if j % 2 == 0: a(f"v_and_b32 v{t+j}, 0xffff, v{kp}")
            else: a(f"v_lshrrev_b32 v{t+j}, 16, v{kp}")
            a(f"ds_add_rtn_u32 v{t+j}, v{t+j}, v3 offset:{CN}")
        return 4
    assert o.aearly <= o.asplit
    a(f"s_cmp_ge_u32 s3, {o.asplit}")
    a("s_cbranch_scc1 P1_ang1")
    a(f"s_cmp_lt_u32 s3, {o.aearly}")
    a("s_cbranch_scc1 P1_ang1")
    for n in range(12): issue_ang(n)
    a("P1_ang1:")
    atomics(0)
    for n in range(13):
        k = atomics(n + 1) if n < 12 else 0
        a(f"s_waitcnt lgkmcnt({k})")
        t = T0 + 4 * (n % 2); u = T0 + 8
        if n < 12:
            a(f"v_lshl_or_b32 v{KP0+2*n}, v{t+1}, 16, v{t}")
            a(f"v_lshl_or_b32 v{KP0+2*n+1}, v{t+3}, 16, v{t+2}")
        else:
            a(f"v_mov_b32 v{u}, 0xffff")
            a(f"v_cndmask_b32 v{KP0+24}, v{u}, v{t}, vcc")
    a(f"s_cmp_lt_u32 s3, {o.asplit}")
    a("s_cbranch_scc1 P1_ang2")
    for n in range(12): issue_ang(n)
    a("P1_ang2:")
    P.stamp(False)
    srd(a, 24, 32, NT * NT * S * 4, WS_DESC)
    srd(a, 48, 46, E * 32)
    def warm():
        a("s_cmp_lt_u32 s3, 3")
        a("s_cbranch_scc1 P1_nowarm")
        a("s_mul_i32 s40, s2, 782")
        a("s_sub_u32 s40, s40, 192")
        a(f"v_add_u32 v3, s40, v0")
        a(f"v_lshlrev_b32 v3, 7, v3")
        a(f"buffer_load_dword v3, v3, s[48:51], 0 offen")
        a("P1_nowarm:")
    a("s_cmp_eq_u32 s35, 1.0")
    a("s_cbranch_scc1 P1_f1")
    a("s_waitcnt vmcnt(0)")
    for n in range(25):
        cr = C0 + n; t = T0
        a(f"v_lshlrev_b32 v{t}, 16, v{cr}")
        a(f"v_and_b32 v{t+1}, 0xffff0000, v{cr}")
        a(f"v_mul_f32 v{t}, s35, v{t}")
        a(f"v_mul_f32 v{t+1}, s35, v{t+1}")
        a(f"v_cvt_pk_bf16_f32 v{cr}, v{t}, v{t+1}")
    a("P1_f1:")
    MG = -(-(1 << 19) // S)
    assert all((n * MG) >> 19 == n // S for n in range(4096))
    a(f"s_mov_b32 s40, {(-(1024*S - 4)) & 0xffffffff}")
    for j in range(4):
        t = T0 + 12 + j
        a(f"v_lshl_add_u32 v{t}, v0, 2, {j}")
        a(f"v_mul_u32_u24 v{T0}, {MG}, v{t}")
        a(f"v_lshrrev_b32 v{T0}, 19, v{T0}")
        a(f"v_lshlrev_b32 v{t}, 10, v{t}")
        a(f"v_mad_i32_i24 v{t}, v{T0}, s40, v{t}")
    def addrs(n, h, u, base):
        a(f"v_mad_u32_u16 v{u}, v{KP0+n}, 6, {base}" + (" op_sel:[1,0,0,0]" if h else ""))
        a(f"v_and_b32 v{u+1}, 2, v{u}")
        a(f"v_sub_u32 v{u}, v{u}, v{u+1}")
        a(f"v_sub_u32 v{u+1}, v{u}, v{u+1}")
    for n in range(25):
        cr = C0 + n; t = T0 + 6 * (n % 2)
        if n % 2 == 0 and n < 24: a(f"s_waitcnt vmcnt({11 - n // 2})")
        if n == 24 and o.warm == 1: warm()
        a(f"v_lshlrev_b32 v{t}, 16, v{cr}")
        a(f"v_and_b32 v{t+1}, 0xffff0000, v{cr}")
        a(f"v_mul_f32 v{t}, 0.15915494, v{t}")
        a(f"v_mul_f32 v{t+1}, 0.15915494, v{t+1}")
        a(f"v_fract_f32 v{t}, v{t}")
        a(f"v_fract_f32 v{t+1}, v{t+1}")
        a(f"v_cos_f32 v{t}, v{t}")
        a(f"v_cos_f32 v{t+1}, v{t+1}")
        for h in range(2 if n < 24 else 1):
            u = t + 2 + 2 * h
            addrs(n, h, u, 0)
            a(f"ds_write_b32 v{u}, v{W0+2*n+h} offset:{STG}")
        a(f"v_cvt_pk_bf16_f32 v{cr}, v{t}, v{t+1}")
        a(f"ds_write_b16 v{t+3}, v{cr} offset:{STG+8}")
        if n < 24: a(f"ds_write_b16_d16_hi v{t+5}, v{cr} offset:{STG+8}")
    def store(k):
        t = T0 + 4 * (k % 6)
        a(f"buffer_store_dwordx4 v[{t}:{t+3}], v{TO}, s[20:23], 0 offen {st}")
        a(f"v_subrev_u32 v{TO}, 16384, v{TO}")
    def copyout(ch, nnow):
        nbytes = CHA * 6 if ch == 0 else (TILE_N - CHA) * 6
        a(f"s_mul_i32 s40, s2, {TILE_BYTES}")
        if ch: a(f"s_add_u32 s40, s40, {CHA*6}")
        srd(a, 20, 32, nbytes, "s40")
        a(f"v_add_u32 v2, {9*16384}, v1")
        a(f"v_add_u32 v{TO}, {9*16384}, v1")
        a("s_waitcnt lgkmcnt(0)")
        a("s_barrier")
        P.stamp()
        if ch == 0:
            a(f"s_cmp_ge_u32 s3, {S}")
            a("s_cbranch_scc1 P1_nodesc")
            for j in range(4):
                a(f"ds_read2_b32 v[{T0+2*j}:{T0+2*j+1}], v{T0+12+j} offset0:{CN//4-1} offset1:{CN//4}")
            a(f"s_mul_i32 s40, s2, {256*S*4}")
            a("s_waitcnt lgkmcnt(0)")
            for j in range(4): a(f"v_lshl_or_b32 v{T0+j}, v{T0+2*j+1}, 16, v{T0+2*j}")
            a(f"buffer_store_dwordx4 v[{T0}:{T0+3}], v1, s[24:27], s40 offen {st}")
            a("s_nop 1")
            a("P1_nodesc:")
            if o.fuse:
                a(f"v_mov_b32 v3, {XW}")
                for j in range(4): a(f"v_mov_b32 v{T0+20+j}, 0")
                a(f"ds_write_b128 v3, v[{T0+20}:{T0+23}]")
                srd(a, 24, 94, 256)
        def rd(k):
            t = T0 + 4 * (k % 6)
            a(f"ds_read_b128 v[{t}:{t+3}], v2 offset:{STG}")
            a(f"v_subrev_u32 v2, 16384, v2")
        for k in range(6): rd(k)
        for k in range(nnow):
            a(f"s_waitcnt lgkmcnt({min(5, 9-k)})")
            store(k)
            if k + 6 < 10: rd(k + 6)
    nnow = 10 - o.defer
    copyout(0, nnow)
    a(f"s_mov_b32 s45, {(-CHA*6) & 0xffffffff}")
    a("s_waitcnt lgkmcnt(0)")
    a("s_barrier")
    P.stamp()
    if o.fuse and o.early:
        while nnow < 10:
            store(nnow); nnow += 1
        a(f"s_cmp_lt_u32 s3, {o.early}")
        a("s_cbranch_scc1 P2_nosiga0")
        a("s_waitcnt vmcnt(0)")
        signal_wg(a, 2, 0, XW + 8, "a0")
    for n in range(25):
        if n == 20 and o.warm == 2: warm()
        if n % o.dstep == (1 if o.dstep > 1 else 0) and nnow < 10:
            store(nnow); nnow += 1
        for h in range(2 if n < 24 else 1):
            u = T0 + 16 + 2 * ((2 * n + h) % 4)
            addrs(n, h, u, "s45")
            a(f"ds_write_b32 v{u}, v{W0+2*n+h} offset:{STG}")
            a(f"ds_write_b16{'_d16_hi' if h else ''} v{u+1}, v{C0+n} offset:{STG+8}")
    assert nnow == 10
    if o.fuse and o.early:
        a(f"s_cmp_ge_u32 s3, {o.early}")
        a("s_cbranch_scc1 P2_nosiga1")
        a("s_waitcnt vmcnt(0)")
        signal_wg(a, 2, 0, XW + 8, "a1")
    if o.fuse:
        a(f"s_mul_i32 s40, s2, {TILE_BYTES}")
        a(f"s_add_u32 s40, s40, {CHA*6}")
        a(f"v_add_u32 v2, {4*16384}, v1")
        a(f"v_add_u32 v3, {8*16384}, v1")
        a("s_waitcnt vmcnt(0) lgkmcnt(0)")
        srd(a, 20, 32, (TILE_N - CHA) * 6, "s40")
        a("s_barrier")
        P.stamp()
        if not o.early:
            a("v_mov_b32 v60, 0")
            a("v_mov_b32 v61, 0")
            a("s_cmp_lg_u32 s3, 0")
            a("s_cbranch_scc1 P1_nosig")
            arrive(a, 60, 0)
            a("P1_nosig:")
        for k in range(10):
            a(f"ds_read_b128 v[{64+4*k}:{67+4*k}], v{1+k//4} offset:{STG+16384*(k%4)}")
        a("v_mov_b32 v63, v1")
        a("s_waitcnt lgkmcnt(0)")
        a("s_barrier")
        return XW
    copyout(1, 10)
    if o.prof:
        P.stamp()
        a("s_waitcnt vmcnt(0)")
        P.stamp()
        P.dump(32, 0, T0, 3)
    a("P1_end:")
    a("s_endpgm")
    return XW

def arrive(a, t, level):
    a(f"v_mov_b32 v{t}, 0")
    a(f"v_mov_b32 v{t+1}, 1")
    a("s_mov_b64 exec, 1")
    a(f"buffer_atomic_add v{t+1}, v{t}, s[24:27], 0 offen offset:{64*level} sc0 sc1")
    a("s_mov_b64 exec, -1")

def release(a, t, level, tag):
    a("s_waitcnt vmcnt(0)")
    a(f"v_readfirstlane_b32 s40, v{t+1}")
    a("s_cmp_lg_u32 s40, 255")
    a(f"s_cbranch_scc1 P2_norel{tag}")
    a("s_mov_b64 exec, 1")
    a(f"buffer_store_dword v{t+1}, v{t}, s[24:27], 0 offen offset:{128+4*level} sc1")
    a("s_mov_b64 exec, -1")
    a(f"P2_norel{tag}:")

def signal_wg(a, t, level, word, tag):
    a(f"v_mov_b32 v{t}, {word}")
    a(f"v_mov_b32 v{t+1}, 1")
    a("s_mov_b64 exec, 1")
    a(f"ds_add_rtn_u32 v{t+1}, v{t}, v{t+1}")
    a("s_mov_b64 exec, -1")
    a("s_waitcnt lgkmcnt(0)")
    a(f"v_readfirstlane_b32 s40, v{t+1}")
    a("s_cmp_lg_u32 s40, 15")
    a(f"s_cbranch_scc1 P2_nosig{tag}")
    arrive(a, t, level)
    release(a, t, level, tag)
    a(f"P2_nosig{tag}:")

def gen_p2(o, a, P, XW):
    S = o.S
    FLAG = 2048 - 16; FLC = 2048 - 32
    uid = [0]
    LUT = 2048; CB = 2560; WSZ = NG * WSTR; WB = CB + WSZ + 16
    LDS = WB + 2 * WSZ + 64
    if not o.fuse:
        a("s_cmp_ge_u32 s2, 256")
        a("s_cbranch_scc1 P2_end")
        a("s_load_dwordx2 s[32:33], s[0:1], 104")
        a("v_lshrrev_b32 v1, 6, v0")
        a("v_readfirstlane_b32 s3, v1")
    a("s_load_dwordx2 s[4:5], s[0:1], 0")
    a("s_load_dwordx2 s[6:7], s[0:1], 72")
    a("s_and_b32 s46, s2, 7")
    a("s_lshl_b32 s46, s46, 5")
    a("s_lshr_b32 s47, s2, 3")
    a("s_add_u32 s46, s46, s47")
    a("v_and_b32 v12, 63, v0")
    a("s_waitcnt lgkmcnt(0)")
    P.stamp(False)
    srd(a, 8, 4, E * 32)
    srd(a, 12, 32, NT * TILE_BYTES)
    srd(a, 16, 32, NT * NT * S * 4, WS_DESC)
    srd(a, 28, 6, 512)
    def stores_b():
        for k in range(10):
            a(f"buffer_store_dwordx4 v[{64+4*k}:{67+4*k}], v63, s[20:23], 0 offen {o.p1_st}")
            a(f"v_add_u32 v63, 16384, v63")
    def signal_b(t, tag): signal_wg(a, t, 1, XW + 4, "b" + tag)
    a("s_cmp_ge_u32 s3, 4")
    a("s_cbranch_scc1 P2_consumer")
    D0 = 40; R0 = 64
    vU12 = 1; vTile = 2; vInc = 3; v3FC = 4; vCb = 5; vZ = 6; v2U2 = 7; v2U1 = 8; vSg = 9
    n2c = 10; a0c = 11; n2n = 13; a0n = 14; n1n = 15
    vca = 16; vcb = 17; vra = 18; vrb = 19; vwa = 20; vwb = 21; vha = 22; vhb = 23; vt = 24; vt2 = 25; vPW = 26; vFl = 27
    ODDC = 52; MORC = 54; ODDN = 84; MORN = 86; ROW0 = 82; M0_ = 88; M1_ = 90
    if o.prio: a(f"s_setprio {o.prio}")
    a(f"s_lshl_b32 s47, s3, 6")
    a(f"v_add_u32 v{vTile}, s47, v12")
    a(f"s_lshl_b32 s50, s3, 2")
    a(f"v_mov_b32 v{vPW}, s50")
    a("s_mov_b32 s48, 0")
    def poll(level, tag):
        a("s_mov_b32 s51, 0")
        a(f"P2_poll{tag}:")
        a(f"buffer_load_dword v{vt}, v{vFl}, s[24:27], 0 offen offset:{128+4*level} sc1")
        a("s_add_u32 s51, s51, 1")
        a(f"s_cmp_gt_u32 s51, {o.maxpoll}")
        a("s_cbranch_scc1 P2_pdone")
        a("s_waitcnt vmcnt(0)")
        a(f"v_cmp_eq_u32 vcc, 0, v{vt}")
        a(f"s_cbranch_vccz P2_polled{tag}")
        a(f"s_sleep {o.gsleep}")
        a(f"s_branch P2_poll{tag}")
        a(f"P2_polled{tag}:")
    if o.fuse:
        a(f"v_mov_b32 v{vFl}, 0")
        a("s_mov_b32 s45, 0")
        if not o.early: release(a, 60, 0, "a")
        stores_b()
        a("s_waitcnt vmcnt(0)")
        signal_b(vt, "p")
        nsave = P.n
        P.stamp()
        poll(0, "a")
        P.stamp()
    a(f"v_lshlrev_b32 v{vt}, 8, v{vTile}")
    a(f"v_add_u32 v{vt}, s46, v{vt}")
    a(f"v_mul_u32_u24 v{vt}, {4*S}, v{vt}")
    k = 0
    while k < S:
        w = 4 if S - k >= 4 else (2 if S - k >= 2 else 1)
        sfx = {4: "x4", 2: "x2", 1: ""}[w]
        dst = f"v[{D0+k}:{D0+k+w-1}]" if w > 1 else f"v{D0+k}"
        a(f"buffer_load_dword{sfx} {dst}, v{vt}, s[16:19], 0 offen offset:{4*k} {o.p2_rec}")
        k += w
    a(f"v_mov_b32 v{D0+S}, 0")
    a(f"v_mul_u32_u24 v{vTile}, {TILE_BYTES}, v{vTile}")
    a(f"v_and_b32 v{vt}, 15, v12")
    a(f"v_mul_u32_u24 v{vU12}, 12, v{vt}")
    a(f"v_lshl_add_u32 v{v2U1}, v{vt}, 1, 1")
    a(f"v_add_u32 v{v2U2}, 1, v{v2U1}")
    a(f"v_mov_b32 v{vInc}, {(1 << 20) + 4}")
    a(f"v_mov_b32 v{v3FC}, 0x3fc")
    a(f"v_mov_b32 v{vSg}, 0x80000000")
    for r in (vCb, vZ, vra, vrb): a(f"v_mov_b32 v{r}, 0")
    a("s_mov_b32 s49, 0")
    a(f"s_mov_b32 s{ROW0}, 0x00010001")
    a(f"s_mov_b32 s{ROW0+1}, 0x00010001")
    def prep():
        if o.fuse:
            uid[0] += 1; u = uid[0]
            a(f"v_cmp_lt_u32 vcc, {(CHA << 16) | 0xffff}, v{D0}")
            a("s_cmp_lg_u32 s45, 0")
            a(f"s_cbranch_scc1 P2_haveb{u}")
            a(f"s_cbranch_vccz P2_haveb{u}")
            poll(1, f"b{u}")
            a("s_mov_b32 s45, 1")
            a(f"P2_haveb{u}:")
        a(f"v_bfe_u32 v{vt}, v{D0}, 1, 15")
        a(f"v_mad_u32_u24 v{a0n}, v{vt}, 12, v{vTile}")
        a(f"v_lshrrev_b32 v{n2n}, 16, v{D0}")
        a(f"v_and_b32 v{vt}, 0xfffe, v{D0}")
        a(f"v_sub_u32 v{n2n}, v{n2n}, v{vt}")
        a(f"v_and_b32 v{vt}, 1, v{D0}")
        a(f"v_cmp_eq_u32 s[{ODDN}:{ODDN+1}], 1, v{vt}")
        a(f"v_cmp_lt_u32 s[{MORN}:{MORN+1}], 32, v{n2n}")
        for k in range(S): a(f"v_mov_b32 v{D0+k}, v{D0+k+1}")
    def issue(i):
        a(f"v_add_u32_dpp v{vt}, v{a0n}, v{vU12} row_newbcast:{i} row_mask:0xf bank_mask:0xf")
        a(f"v_sub_u32_dpp v{vt2}, v{n2n}, v{v2U1} row_newbcast:{i} row_mask:0xf bank_mask:0xf")
        a(f"v_bitop3_b32 v{vt}, v{vt2}, v{vSg}, v{vt} bitop3:0xea")
        r = R0 + 4 * i
        a(f"buffer_load_dwordx3 v[{r}:{r+2}], v{vt}, s[12:15], 0 offen {o.p2_rec}")
    def twait(body):
        if o.prof:
            a("s_waitcnt lgkmcnt(0)")
            a("s_memtime s[56:57]")
            a("s_waitcnt lgkmcnt(0)")
        body()
        if o.prof:
            a("s_memtime s[58:59]")
            a("s_waitcnt lgkmcnt(0)")
            a("s_sub_u32 s56, s58, s56")
            a("s_add_u32 s71, s71, s56")
    def next_round():
        a("s_add_u32 s48, s48, 1")
        if o.maxr:
            a(f"s_cmp_gt_u32 s48, {o.maxr}")
            a("s_cbranch_scc1 P2_pdone")
        a(f"v_mov_b32 v{vt}, s48")
        if not o.flags:
            a(f"ds_max_u32 v{vZ}, v{vt} offset:{FLAG}")
            a(f"v_xor_b32 v{vCb}, 1024, v{vCb}")
            a("s_waitcnt lgkmcnt(0)")
            twait(lambda: a("s_barrier"))
            return
        a(f"ds_write_b32 v{vPW}, v{vt} offset:{FLAG}")
        a(f"v_xor_b32 v{vCb}, 1024, v{vCb}")
        a("s_lshr_b32 s50, s48, 1")
        a("s_mul_i32 s50, s50, 12")
        a(f"v_lshrrev_b32 v{vt2}, 8, v{vCb}")
        uid[0] += 1; u = uid[0]
        def spin():
            a(f"P2_pw{u}:")
            a(f"ds_read_b32 v{vt}, v{vt2} offset:{FLC}")
            a("s_waitcnt lgkmcnt(0)")
            a(f"v_readfirstlane_b32 s51, v{vt}")
            a("s_cmp_ge_u32 s51, s50")
            a(f"s_cbranch_scc1 P2_pg{u}")
            a(f"s_sleep {o.psleep}")
            a(f"s_branch P2_pw{u}")
            a(f"P2_pg{u}:")
        twait(spin)
    if o.prof: a("s_mov_b32 s71, 0")
    a("s_waitcnt vmcnt(0)")
    if o.fuse: P.stamp()
    prep()
    for i in range(16): issue(i)
    if o.fuse and o.prof:
        a("s_waitcnt vmcnt(15)")
        P.stamp()
    if o.fuse:
        a(f"v_mov_b32 v{vt2}, {XW}")
        a("P2_iw:")
        a(f"ds_read_b32 v{vt}, v{vt2}")
        a("s_waitcnt lgkmcnt(0)")
        a(f"v_readfirstlane_b32 s51, v{vt}")
        a("s_cmp_ge_u32 s51, 12")
        a("s_cbranch_scc0 P2_iw")
    else:
        a("s_barrier")
    a("P2_pslice:")
    a(f"v_mov_b32 v{n2c}, v{n2n}")
    a(f"v_mov_b32 v{a0c}, v{a0n}")
    a(f"s_mov_b64 s[{ODDC}:{ODDC+1}], s[{ODDN}:{ODDN+1}]")
    a(f"s_mov_b64 s[{MORC}:{MORC+1}], s[{MORN}:{MORN+1}]")
    prep()
    for i in range(16):
        r = R0 + 4 * i
        a(f"v_sub_co_u32_dpp v{vt}, vcc, v{n2c}, v{v2U1} row_newbcast:{i} row_mask:0xf bank_mask:0xf")
        a(f"s_and_b64 s[92:93], s[{ODDC}:{ODDC+1}], s[{ROW0}:{ROW0+1}]")
        a(f"s_nor_b64 s[{M0_}:{M0_+1}], vcc, s[92:93]")
        a(f"v_sub_co_u32_dpp v{vt}, vcc, v{n2c}, v{v2U2} row_newbcast:{i} row_mask:0xf bank_mask:0xf")
        a(f"s_lshr_b64 s[{ODDC}:{ODDC+1}], s[{ODDC}:{ODDC+1}], 1")
        a(f"s_not_b64 s[{M1_}:{M1_+1}], vcc")
        a("s_waitcnt vmcnt(15)")
        a(f"P2_retry{i}:")
        a(f"v_lshrrev_b32 v{vca}, 18, v{r}")
        a(f"v_lshrrev_b32 v{vcb}, 18, v{r+1}")
        a(f"v_bitop3_b32 v{vca}, v{vca}, v{v3FC}, v{vCb} bitop3:0xea")
        a(f"v_bitop3_b32 v{vcb}, v{vcb}, v{v3FC}, v{vCb} bitop3:0xea")
        a(f"s_mov_b64 exec, s[{M0_}:{M0_+1}]")
        a(f"ds_add_rtn_u32 v{vra}, v{vca}, v{vInc}")
        a(f"s_mov_b64 exec, s[{M1_}:{M1_+1}]")
        a(f"ds_add_rtn_u32 v{vrb}, v{vcb}, v{vInc}")
        a(f"s_mov_b64 exec, -1")
        a(f"v_and_b32 v{vwa}, 0xf00fffff, v{r}")
        a(f"v_and_b32 v{vwb}, 0xf00fffff, v{r+1}")
        a("s_waitcnt lgkmcnt(0)")
        a(f"v_and_b32 v{vra}, 0xfc03ffff, v{vra}")
        a(f"v_and_b32 v{vrb}, 0xfc03ffff, v{vrb}")
        a(f"v_lshrrev_b32 v{vha}, 1, v{vra}")
        a(f"v_lshrrev_b32 v{vhb}, 1, v{vrb}")
        a(f"v_or_b32 v{vt}, v{vra}, v{vrb}")
        a(f"v_cmp_lt_u32 vcc, v{vInc}, v{vt}")
        a(f"s_mov_b64 exec, s[{M0_}:{M0_+1}]")
        a(f"ds_write_b32 v{vra}, v{vwa} offset:{WB}")
        a(f"ds_write_b16 v{vha}, v{r+2} offset:{CB}")
        a(f"s_mov_b64 exec, s[{M1_}:{M1_+1}]")
        a(f"ds_write_b32 v{vrb}, v{vwb} offset:{WB}")
        a(f"ds_write_b16_d16_hi v{vhb}, v{r+2} offset:{CB}")
        a(f"s_mov_b64 exec, -1")
        a(f"s_cbranch_vccnz P2_stall{i}")
        a(f"s_and_b64 s[92:93], s[{MORC}:{MORC+1}], s[{ROW0}:{ROW0+1}]")
        a(f"s_cbranch_scc1 P2_more{i}")
        a(f"s_lshr_b64 s[{MORC}:{MORC+1}], s[{MORC}:{MORC+1}], 1")
        issue(i)
    a("s_add_u32 s49, s49, 1")
    a(f"s_cmp_ge_u32 s49, {S}")
    a("s_cbranch_scc1 P2_pdone")
    a("s_cmp_ge_u32 s48, s49")
    a("s_cbranch_scc1 P2_pslice")
    next_round()
    a("s_branch P2_pslice")
    a("P2_pdone:")
    if o.flags:
        a("s_add_u32 s48, s48, 0x40000001")
        a(f"v_mov_b32 v{vt}, s48")
        a(f"ds_write_b32 v{vPW}, v{vt} offset:{FLAG}")
    a("s_waitcnt vmcnt(0) lgkmcnt(0)")
    if o.prof:
        n0 = P.n; P.stamp(); P.dump(32, 0x80000, 8, 3); P.n = nsave if o.fuse else n0
    a("s_endpgm")
    for i in range(16):
        r = R0 + 4 * i
        a(f"P2_stall{i}:")
        a(f"v_cmp_lt_u32 s[{M0_}:{M0_+1}], v{vInc}, v{vra}")
        a(f"v_cmp_lt_u32 s[{M1_}:{M1_+1}], v{vInc}, v{vrb}")
        next_round()
        a(f"s_branch P2_retry{i}")
        a(f"P2_more{i}:")
        a(f"s_lshl_b64 exec, s[{ROW0}:{ROW0+1}], {i}")
        a(f"v_max_u32 v{n2c}, 32, v{n2c}")
        a(f"v_subrev_u32 v{n2c}, 32, v{n2c}")
        a(f"v_add_u32 v{a0c}, 192, v{a0c}")
        a(f"v_cmp_lt_u32 vcc, 32, v{n2c}")
        a(f"s_mov_b64 exec, -1")
        a(f"s_lshr_b64 s[92:93], vcc, {i}")
        a(f"s_andn2_b64 s[{MORC}:{MORC+1}], s[{MORC}:{MORC+1}], s[{ROW0}:{ROW0+1}]")
        a(f"s_or_b64 s[{MORC}:{MORC+1}], s[{MORC}:{MORC+1}], s[92:93]")
        a(f"v_sub_co_u32_dpp v{vt2}, vcc, v{n2c}, v{v2U2} row_newbcast:{i} row_mask:0xf bank_mask:0xf")
        a(f"s_not_b64 s[{M1_}:{M1_+1}], vcc")
        a(f"v_sub_co_u32_dpp v{vt2}, vcc, v{n2c}, v{v2U1} row_newbcast:{i} row_mask:0xf bank_mask:0xf")
        a(f"v_add_u32_dpp v{vt}, v{a0c}, v{vU12} row_newbcast:{i} row_mask:0xf bank_mask:0xf")
        a(f"s_not_b64 s[{M0_}:{M0_+1}], vcc")
        a(f"v_cndmask_b32 v{vt}, v{vt}, v{vSg}, vcc")
        a(f"buffer_load_dwordx3 v[{r}:{r+2}], v{vt}, s[12:15], 0 offen {o.p2_rec}")
        a("s_waitcnt vmcnt(0)")
        a(f"s_branch P2_retry{i}")
    a("P2_consumer:")
    ACC = 60; G0 = 52; B0 = 44; WA = 36; WBr = 40; D1 = 28; vM = 24; vC = 20; vX = 16
    bA = 1; bE = 2; bC = 3; bR = 4; vH = 5; vL = 6; vCA = 7; vCI = 8; vA = 9; vE = 10; vZ = 15
    a("s_sub_u32 s47, s3, 4")
    a("s_min_u32 s48, s47, 4")
    a("s_lshl_b32 s49, s47, 4")
    a("s_add_u32 s49, s49, s48")
    a("s_cmp_lt_u32 s47, 4")
    a("s_cselect_b32 s50, 17, 16")
    a(f"s_cselect_b32 s84, 0, {MARK}")
    a(f"s_cselect_b32 s85, {17*WSTR//16-192}, {16*WSTR//16-192}")
    a("s_bfm_b64 s[92:93], s85, 0")
    a("v_and_b32 v13, 15, v12")
    a("v_lshrrev_b32 v14, 4, v12")
    a(f"v_and_b32 v{vH}, 16, v12")
    a(f"v_lshlrev_b32 v{vA}, 4, v{vH}")
    a(f"v_lshl_add_u32 v{vA}, v13, 1, v{vA}")
    for c in range(8): a(f"buffer_load_ushort v{vC+c}, v{vA}, s[28:31], 0 offen offset:{32*c}")
    for i in range(4): a(f"v_mov_b32 v{D1+i}, {MARK}")
    a(f"v_subrev_u32 v{vA}, 256, v0")
    a(f"v_lshlrev_b32 v{vA}, 4, v{vA}")
    for k in range(-(-(LDS - CB) // (768 * 16))):
        a(f"ds_write_b128 v{vA}, v[{D1}:{D1+3}] offset:{CB}")
        a(f"v_add_u32 v{vA}, {768*16}, v{vA}")
    for i in range(16): a(f"v_mov_b32 v{B0+i}, 0")
    a(f"v_mov_b32 v{vZ}, 0")
    a(f"v_lshrrev_b32 v{vA}, 2, v13")
    a(f"v_cmp_eq_u32 vcc, v{vA}, v14")
    a(f"v_and_b32 v{vE}, 3, v12")
    a(f"v_lshlrev_b32 v{vE}, 4, v{vE}")
    a(f"v_mov_b32 v{vX}, 0xffff")
    a(f"v_mov_b32 v{vX+1}, 0")
    a(f"v_cndmask_b32 v{vX}, 0, v{vX}, vcc")
    a(f"v_lshlrev_b64 v[{vX}:{vX+1}], v{vE}, v[{vX}:{vX+1}]")
    a(f"v_lshrrev_b32 v{vA}, 1, v{vH}")
    a(f"v_lshl_add_u32 v{vA}, v13, 4, v{vA}")
    a(f"v_lshrrev_b32 v{vE}, 5, v12")
    a(f"v_lshl_add_u32 v{vA}, v{vE}, 8, v{vA}")
    a(f"ds_write_b64 v{vA}, v[{vX}:{vX+1}] offset:{LUT}")
    a(f"v_and_b32 v0, 7, v12")
    a(f"v_lshlrev_b32 v0, 2, v0")
    a(f"ds_write_b32 v0, v{vZ} offset:{FLC}")
    a(f"v_and_b32 v0, 12, v0")
    a(f"s_mul_i32 s51, s49, {WSTR}")
    a(f"s_lshr_b32 s86, s51, 1")
    a(f"s_add_u32 s86, s86, {CB}")
    a(f"v_lshl_add_u32 v{bC}, v14, 4, s86")
    a(f"v_mul_u32_u24 v{vCI}, {WSTR}, v12")
    a(f"s_add_u32 s86, s51, {(64 - CAP) << 20}")
    a(f"v_add_u32 v{vCI}, s86, v{vCI}")
    a(f"s_add_u32 s51, s51, {WB}")
    a(f"v_lshl_add_u32 v{bR}, v12, 4, s51")
    a(f"v_and_b32 v{vA}, 12, v12")
    a(f"v_lshlrev_b32 v{bA}, 1, v{vA}")
    a(f"v_and_or_b32 v{bA}, v12, 3, v{bA}")
    a(f"v_lshl_or_b32 v{bA}, v{vE}, 2, v{bA}")
    a(f"v_lshl_add_u32 v{bA}, v{bA}, 2, s51")
    a(f"v_lshl_add_u32 v{bE}, v14, 5, v{vA}")
    a(f"v_add_u32 v{bE}, s51, v{bE}")
    a(f"v_and_b32 v{vL}, 1, v12")
    a(f"v_lshlrev_b32 v{vL}, 3, v{vL}")
    a(f"v_and_b32 v{vA}, 2, v12")
    a(f"v_lshl_add_u32 v{vL}, v{vA}, 7, v{vL}")
    a(f"v_add_lshl_u32 v{vCA}, v12, s49, 2")
    a(f"v_cmp_gt_u32 vcc, s50, v12")
    a(f"v_cmp_gt_u32 s[88:89], 32, v12")
    a(f"v_add_u32 v{vA}, {WSZ}, v{vCI}")
    a(f"v_cndmask_b32 v{vCA}, 2.0, v{vCA}, vcc")
    a(f"ds_write_b32 v{vCA}, v{vCI}")
    a(f"ds_write_b32 v{vCA}, v{vA} offset:1024")
    a(f"s_mov_b32 s85, {(64 - CAP + 33) << 20}")
    a("s_mov_b32 s94, 0xf000f000")
    a("s_mov_b32 s95, 0xf000f000")
    if o.fuse:
        a(f"v_mov_b32 v{vX}, {XW}")
        a(f"v_mov_b32 v{vX+1}, 1")
        a("s_mov_b64 exec, 1")
        a(f"ds_add_u32 v{vX}, v{vX+1}")
        a("s_mov_b64 exec, -1")
        stores_b()
    for i in range(68): a(f"v_mov_b32 v{ACC+i}, 0")
    a("s_waitcnt vmcnt(0)")
    if o.fuse: signal_b(vX, "c")
    for u in range(4):
        a(f"v_lshl_or_b32 v{vC+u}, v{vC+2*u+1}, 16, v{vC+2*u}")
    for u in range(4):
        a(f"v_cndmask_b32 v{WA+u}, 0, v{vC+u}, s[88:89]")
        a(f"v_cndmask_b32 v{WBr+u}, v{vC+u}, 0, s[88:89]")
    a("s_mov_b32 s48, 0")
    if o.prof: a("s_mov_b32 s71, 0")
    a("s_waitcnt lgkmcnt(0)")
    if not o.fuse: a("s_barrier")
    P.stamp()
    def reads1(par, i, second):
        oa = par * WSZ + i * WSTR + (128 if second else 0)
        a(f"ds_read_b32 v{vA}, v{bA} offset:{oa}")
        a(f"ds_read_u8 v{vE}, v{bE} offset:{oa+3}")
        a(f"ds_read_u8 v{vE+1}, v{bE} offset:{oa+19}")
    def reads2(par, i, second):
        oc = (par * WSZ + i * WSTR + (128 if second else 0)) // 2
        a(f"v_add_u32 v{vE}, v{vE}, v{vL}")
        a(f"v_add_u32 v{vE+1}, v{vE+1}, v{vL}")
        a(f"ds_read_b64_tr_b16 v[{vM}:{vM+1}], v{vE} offset:{LUT}")
        a(f"ds_read_b64_tr_b16 v[{vM+2}:{vM+3}], v{vE+1} offset:{LUT}")
        a(f"ds_read_b128 v[{vC}:{vC+3}], v{bC} offset:{oc}")
    def addr():
        if o.dbg & 4: a(f"v_and_b32 v{vA}, 0x10ffff, v{vA}")
        a(f"v_mad_u32_u24 v{vA}, v{vA}, 32, v{vH}")
        if o.dbg & 1: a(f"v_mov_b32 v{vA}, 2.0")
    def mfma1(g):
        if o.dbg & 2: return
        a(f"v_mfma_f32_16x16x32_bf16 v[{D1}:{D1+3}], v[{g}:{g+3}], v[{WA}:{WA+3}], 0")
        a(f"v_mfma_f32_16x16x32_bf16 v[{D1+4}:{D1+7}], v[{g}:{g+3}], v[{WBr}:{WBr+3}], 0")
    def mfma2(i, b):
        if o.dbg & 2: return
        for u in range(4): a(f"v_cvt_pk_bf16_f32 v{D1+u}, v{D1+2*u}, v{D1+2*u+1}")
        c = ACC + 4 * i
        a(f"v_mfma_f32_16x16x32_bf16 v[{c}:{c+3}], v[{D1}:{D1+3}], v[{b}:{b+3}], v[{c}:{c+3}]")
    NS = 17
    for par in range(2):
        a(f"P2_round{par}:")
        if not o.flags:
            twait(lambda: a("s_barrier"))
            reads1(par, 0, False)
            a(f"ds_read_b32 v{vX}, v{vCA} offset:{1024*par}")
            a(f"ds_read_b32 v{vX+1}, v{vZ} offset:{FLAG}")
        else:
            def spin():
                a(f"P2_cw{par}:")
                a(f"ds_read_b32 v{vX+1}, v0 offset:{FLAG}")
                reads1(par, 0, False)
                a(f"ds_read_b32 v{vX}, v{vCA} offset:{1024*par}")
                a("s_waitcnt lgkmcnt(4)")
                a(f"v_cmp_ge_u32 vcc, s48, v{vX+1}")
                a(f"v_and_b32 v{vX+1}, 0x3fffffff, v{vX+1}")
                a(f"s_cbranch_vccz P2_cg{par}")
                a(f"s_sleep {o.csleep}")
                a(f"s_branch P2_cw{par}")
                a(f"P2_cg{par}:")
            twait(spin)
            a(f"v_cmp_lt_u32 vcc, s48, v{vX+1}")
            a(f"s_cbranch_vccz P2_drain{1-par}")
        if o.prof and par == 0:
            a("s_cmp_lg_u32 s48, 0"); a("s_cbranch_scc1 P2_nostamp"); P.stamp(); a("P2_nostamp:")
        if par: a(f"v_add_u32 v{vX+2}, {WSZ}, v{vCI}")
        a(f"ds_write_b32 v{vCA}, v{vX+2 if par else vCI} offset:{1024*par}")
        a("s_add_u32 s48, s48, 1")
        for i in range(NS):
            p = (par * NS + i) % 2
            g = G0 + 4 * p; b = B0 + 4 * p
            if o.cprio and i % 5 == 0 and i < 15: a(f"s_setprio {2 - i // 5}")
            a("s_waitcnt lgkmcnt(0)")
            if i == NS - 1: a(f"v_or_b32 v{vA}, s84, v{vA}")
            addr()
            a("s_waitcnt vmcnt(1)")
            mfma1(g)
            a(f"buffer_load_dwordx4 v[{g}:{g+3}], v{vA}, s[8:11], 0 offen")
            reads2(par, i, False)
            if i + 1 < NS: reads1(par, i + 1, False)
            if i == 0:
                a(f"v_cmp_le_u32 s[90:91], s85, v{vX}")
                if not o.flags: a(f"v_readfirstlane_b32 s87, v{vX+1}")
            mfma2((i - 2) % NS, b)
            a(f"s_bitcmp1_b32 s90, {i}")
            a(f"s_waitcnt lgkmcnt({3 if i + 1 < NS else 0})")
            for u in range(4): a(f"v_and_b32 v{b+u}, v{vM+u}, v{vC+u}")
            a(f"s_cbranch_scc1 P2_slow{par}_{i}")
            a(f"P2_back{par}_{i}:")
        for u in range(4): a(f"v_mov_b32 v{vX+u}, {MARK}")
        for k in range(4):
            if k == 3: a("s_mov_b64 exec, s[92:93]")
            a(f"ds_write_b128 v{bR}, v[{vX}:{vX+3}] offset:{par*WSZ+1024*k}")
        if o.flags:
            a("s_mov_b64 exec, 1")
            a(f"v_mov_b32 v{vA}, 1")
            a(f"ds_add_u32 v{vZ}, v{vA} offset:{FLC+4*par}")
            a("s_mov_b64 exec, -1")
            if par: a("s_branch P2_round0")
            continue
        a("s_mov_b64 exec, -1")
        a("s_cmp_ge_u32 s87, s48")
        a("s_waitcnt lgkmcnt(0)")
        if par == 0:
            a("s_cbranch_scc0 P2_drain0")
        else:
            a("s_cbranch_scc1 P2_round0")
    def drain(par):
        a("s_waitcnt lgkmcnt(0)")
        for i in (NS, NS + 1):
            p = (par * NS + i) % 2
            a(f"s_waitcnt vmcnt({NS+1-i})")
            mfma1(G0 + 4 * p)
            mfma2(i - 2, B0 + 4 * p)
    a("P2_drain1:")
    drain(1)
    a("s_branch P2_epi")
    for par in range(2):
        for i in range(NS):
            a(f"P2_slow{par}_{i}:")
            reads1(par, i, True)
            a("s_waitcnt lgkmcnt(0)")
            a("s_mov_b64 exec, s[94:95]")
            a(f"v_mov_b32 v{vA}, {MARK}")
            a("s_mov_b64 exec, -1")
            addr()
            a(f"buffer_load_dwordx4 v[{vX}:{vX+3}], v{vA}, s[8:11], 0 offen")
            reads2(par, i, True)
            if i + 1 < NS: reads1(par, i + 1, False)
            a(f"s_waitcnt lgkmcnt({3 if i + 1 < NS else 0})")
            for u in range(4): a(f"v_and_b32 v{vM+u}, v{vM+u}, v{vC+u}")
            a("s_waitcnt vmcnt(0)")
            mfma1(vX)
            mfma2(i, vM)
            a(f"s_branch P2_back{par}_{i}")
    a("P2_drain0:")
    drain(0)
    a("P2_epi:")
    P.stamp()
    vOff = 1; vOo = 2; vDo = 3; DS = 4
    WS_ = 16; WR_ = 20; WU = 24; CEN = 26
    M0 = 30
    X = 38
    a("s_load_dwordx2 s[6:7], s[0:1], 24")
    a("s_load_dwordx2 s[34:35], s[0:1], 40")
    a("s_load_dwordx8 s[36:43], s[0:1], 56")
    a("s_load_dwordx2 s[44:45], s[0:1], 88")
    a(f"s_lshl_b32 s51, s49, 8")
    a(f"s_add_u32 s51, s51, s46")
    a(f"s_lshl_b32 s51, s51, 4")
    a(f"v_add_u32 v{vOff}, s51, v13")
    a(f"v_lshrrev_b32 v{X}, 1, v14")
    a(f"v_lshl_add_u32 v{vDo}, v{X}, 12, v{vOff}")
    a(f"v_lshlrev_b32 v{vDo}, 1, v{vDo}")
    a(f"v_lshlrev_b32 v{vOff}, 5, v{vOff}")
    a(f"v_lshl_add_u32 v{vOff}, v14, 3, v{vOff}")
    a(f"v_mov_b32 v{vOo}, v{vOff}")
    a(f"v_lshlrev_b32 v{X+1}, 7, v14")
    a(f"v_lshl_add_u32 v{X+1}, v13, 1, v{X+1}")
    a(f"v_and_b32 v{X+2}, 0xff, v{X+1}")
    a(f"v_and_b32 v{X+3}, 1, v14")
    a(f"v_lshlrev_b32 v{X+3}, 3, v{X+3}")
    a("s_waitcnt lgkmcnt(0)")
    srd(a, 20, 44, E * 32)
    srd(a, 24, 6, E * 2)
    srd(a, 28, 42, 512)
    for c in range(4): a(f"buffer_load_ushort v{X+4+c}, v{X+1}, s[28:31], 0 offen offset:{32*c}")
    srd(a, 12, 38, 256)
    for c in range(4): a(f"buffer_load_ushort v{X+8+c}, v{X+2}, s[12:15], 0 offen offset:{32*c}")
    srd(a, 16, 36, 256)
    for c in range(4): a(f"buffer_load_ushort v{X+12+c}, v{X+2}, s[16:19], 0 offen offset:{32*c}")
    srd(a, 52, 34, 16)
    for c in range(4): a(f"buffer_load_ushort v{CEN+c}, v{X+3}, s[52:55], 0 offen offset:{2*c}")
    for k in range(9):
        a(f"buffer_load_ushort v{DS+k}, v{vDo}, s[24:27], 0 offen")
        a(f"v_add_u32 v{vDo}, {2*4096*2}, v{vDo}")
    def mload(i):
        m = M0 + 2 * (i % 4)
        a(f"buffer_load_dwordx2 v[{m}:{m+1}], v{vOff}, s[8:11], 0 offen")
        a(f"v_add_u32 v{vOff}, {4096*32}, v{vOff}")
    for i in range(4): mload(i)
    a("s_mov_b32 s84, 0xffff0000")
    a("s_mov_b32 s85, 0xc1200000")
    a("s_mov_b32 s86, 0x3fb8aa3b")
    a("s_waitcnt vmcnt(4)")
    for u in range(2):
        a(f"v_lshl_or_b32 v{WU+u}, v{X+5+2*u}, 16, v{X+4+2*u}")
        a(f"v_lshl_or_b32 v{X+8+u}, v{X+9+2*u}, 16, v{X+8+2*u}")
        a(f"v_lshl_or_b32 v{X+12+u}, v{X+13+2*u}, 16, v{X+12+2*u}")
    for u in range(2):
        a(f"v_cndmask_b32 v{WS_+u}, 0, v{X+8+u}, s[88:89]")
        a(f"v_cndmask_b32 v{WS_+2+u}, v{X+8+u}, 0, s[88:89]")
        a(f"v_cndmask_b32 v{WR_+u}, 0, v{X+12+u}, s[88:89]")
        a(f"v_cndmask_b32 v{WR_+2+u}, v{X+12+u}, 0, s[88:89]")
    for c in range(4): a(f"v_lshlrev_b32 v{CEN+c}, 16, v{CEN+c}")
    RB = X; t = X + 2; SS = X + 6; GG = X + 10; AG = X + 14; UU = X + 16; OT = X + 20
    def rnd():
        for u in range(2):
            a(f"v_cvt_pk_bf16_f32 v{t+2*u+1}, v{t+2*u}, v{t+2*u+1}")
        for u in range(2):
            a(f"v_lshlrev_b32 v{t+2*u}, 16, v{t+2*u+1}")
            a(f"v_and_b32 v{t+2*u+1}, s84, v{t+2*u+1}")
    for i in range(NS):
        if i == 16:
            a("s_cmp_lt_u32 s50, 17")
            a("s_cbranch_scc1 P2_fin")
        if i % 2 == 0:
            d = DS + i // 2
            a(f"v_lshlrev_b32 v{d}, 16, v{d}")
            for c in range(4): a(f"v_sub_f32 v{t+c}, v{d}, v{CEN+c}")
            rnd()
            for c in range(4): a(f"v_mul_f32 v{t+c}, v{t+c}, v{t+c}")
            rnd()
            for c in range(4): a(f"v_mul_f32 v{t+c}, s85, v{t+c}")
            rnd()
            for c in range(4): a(f"v_mul_f32 v{t+c}, s86, v{t+c}")
            for c in range(4): a(f"v_exp_f32 v{t+c}, v{t+c}")
            for u in range(2): a(f"v_cvt_pk_bf16_f32 v{RB+u}, v{t+2*u}, v{t+2*u+1}")
        h = 2 * (i % 2); c0 = ACC + 4 * i; m = M0 + 2 * (i % 4)
        a(f"v_mfma_f32_16x16x16_bf16 v[{SS}:{SS+3}], v[{WS_+h}:{WS_+h+1}], v[{RB}:{RB+1}], 0")
        a(f"v_mfma_f32_16x16x16_bf16 v[{GG}:{GG+3}], v[{WR_+h}:{WR_+h+1}], v[{RB}:{RB+1}], 0")
        nl = min(3, NS - 1 - i); ns = min(3, i)
        a(f"s_waitcnt vmcnt({nl + ns if i + 3 < NS else nl})")
        a(f"v_lshlrev_b32 v{t}, 16, v{m}")
        a(f"v_and_b32 v{t+1}, s84, v{m}")
        a(f"v_lshlrev_b32 v{t+2}, 16, v{m+1}")
        a(f"v_and_b32 v{t+3}, s84, v{m+1}")
        for c in range(4): a(f"v_mul_f32 v{SS+c}, v{SS+c}, v{c0+c}")
        for u in range(2): a(f"v_cvt_pk_bf16_f32 v{AG+u}, v{SS+2*u}, v{SS+2*u+1}")
        a(f"v_mfma_f32_16x16x16_bf16 v[{UU}:{UU+3}], v[{WU}:{WU+1}], v[{AG}:{AG+1}], 0")
        for c in range(4): a(f"v_fma_f32 v{t+c}, v{UU+c}, v{GG+c}, v{t+c}")
        for u in range(2): a(f"v_cvt_pk_bf16_f32 v{OT+u}, v{t+2*u}, v{t+2*u+1}")
        a(f"buffer_store_dwordx2 v[{OT}:{OT+1}], v{vOo}, s[20:23], 0 offen")
        a(f"v_add_u32 v{vOo}, {4096*32}, v{vOo}")
        if i + 4 < NS: mload(i + 4)
    a("P2_fin:")
    if o.prof:
        P.stamp()
        a("s_waitcnt vmcnt(0)")
        P.stamp()
        P.dump(32, 0x80000, X, 3)
    a("P2_end:")
    a("s_endpgm")
    return LDS

KD = """.amdhsa_kernel {name}
  .amdhsa_next_free_vgpr 128
  .amdhsa_next_free_sgpr 96
  .amdhsa_accum_offset 128
  .amdhsa_group_segment_fixed_size 0
  .amdhsa_kernarg_size 112
  .amdhsa_user_sgpr_count 2
  .amdhsa_user_sgpr_kernarg_segment_ptr 1
  .amdhsa_system_sgpr_workgroup_id_x 1
  .amdhsa_float_denorm_mode_32 3
.end_amdhsa_kernel
"""

NAME = "gather_scatter__molecular_angular_gemnet__graph_kernel"

def build(o):
    if o.fuse:
        a = Asm(); P = Prof(a, o.prof, 1)
        xw = gen_p1(o, a, P); gen_p2(o, a, P, xw)
        ks = [(NAME, a.finish(), xw + 16)]
    else:
        a = Asm(); l1 = gen_p1(o, a, Prof(a, o.prof))
        b = Asm(); l2 = gen_p2(o, b, Prof(b, o.prof), 0)
        ks = [("gemnet_p1_kernel", a.finish(), l1), ("gemnet_p2_kernel", b.finish(), l2)]
    ref = open("gather_scatter__molecular_angular_gemnet__graph.s.ref").read().split("\n")
    head = [l for l in ref if l.startswith(";") and "launch geometry" not in l and "Harness parses" not in l and "@launch" not in l]
    s = "\n".join(head) + "\n"
    s += "; Part 1 partitions the triplets by (input slice, output bin); part 2 gathers / segment-sums with MFMA.\n"
    for n, b, l in ks:
        s += f"; @launch {'' if o.fuse else 'kernel=' + n + ' '}grid=(256,1,1) block=(1024,1,1) lds={l}\n"
    s += '.amdgcn_target "amdgcn-amd-amdhsa--gfx950"\n.text\n'
    for n, b, l in ks:
        s += f".globl {n}\n.p2align 8\n.type {n},@function\n{n}:\n" + b
    s += '.section .rodata,"a"\n'
    for n, b, l in ks:
        s += ".p2align 6\n" + KD.format(name=n)
    return s

def parser():
    p = argparse.ArgumentParser()
    p.add_argument("-S", type=int, default=10)
    p.add_argument("--prof", type=int, default=0)
    p.add_argument("--maxr", type=int, default=0)
    p.add_argument("--dbg", type=int, default=0)
    p.add_argument("--warm", type=int, default=0)
    p.add_argument("--defer", type=int, default=4)
    p.add_argument("--cmap", type=int, default=2)
    p.add_argument("--early", type=int, default=8)
    p.add_argument("--aearly", type=int, default=0)
    p.add_argument("--dstep", type=int, default=4)
    p.add_argument("--fuse", type=int, default=0)
    p.add_argument("--gsleep", type=int, default=4)
    p.add_argument("--maxpoll", type=int, default=1000000)
    p.add_argument("--flags", type=int, default=1)
    p.add_argument("--psleep", type=int, default=2)
    p.add_argument("--csleep", type=int, default=2)
    p.add_argument("--asplit", type=int, default=8)
    p.add_argument("--p1_dst", default="")
    p.add_argument("--p1_ld", default="nt")
    p.add_argument("--p1_st", default="sc1")
    p.add_argument("--p2_rec", default="sc1")
    p.add_argument("--prio", type=int, default=3)
    p.add_argument("--cprio", type=int, default=1)
    p.add_argument("-o", default="gather_scatter__molecular_angular_gemnet__graph.s")
    return p

if __name__ == "__main__":
    o = parser().parse_args()
    open(o.o, "w").write(build(o))
```

```python
import sys, argparse
from asmlib import Asm

E = 800000; T = 12800000
NT = 256
CHA = 25088
TILE_N = 50000
TILE_BYTES = 300032
WS_DESC = 0x5000000
WS_PROF = 0x6000000
CAP = 56
WSTR = CAP * 4
MARK = 0x00100000
NG = 196

def srd(a, d, base, size, off=None):
    if off is None:
        a(f"s_mov_b32 s{d}, s{base}")
        a(f"s_mov_b32 s{d+1}, s{base+1}")
    else:
        a(f"s_add_u32 s{d}, s{base}, {off}")
        a(f"s_addc_u32 s{d+1}, s{base+1}, 0")
    a(f"s_mov_b32 s{d+2}, {size}")
    a(f"s_mov_b32 s{d+3}, 0x20000")

class Prof:
    def __init__(self, a, on, fuse=0): self.a = a; self.on = on; self.n = 0; self.fuse = fuse
    def stamp(self, fused_too=True):
        if not self.on or (self.fuse and not fused_too): return
        a = self.a
        a("s_waitcnt lgkmcnt(0)")
        a("s_memtime s[58:59]")
        a("s_waitcnt lgkmcnt(0)")
        a(f"s_mov_b32 s{60+self.n}, s58")
        a("s_memrealtime s[58:59]")
        a("s_waitcnt lgkmcnt(0)")
        a(f"s_mov_b32 s{72+self.n}, s58")
        self.n += 1
    def dump(self, wsreg, region, vt, wave_sreg):
        if not self.on: return
        a = self.a
        srd(a, 52, wsreg, 0x100000, WS_PROF + region)
        a(f"s_lshl_b32 s56, s2, 4")
        a(f"s_add_u32 s56, s56, s{wave_sreg}")
        a(f"s_lshl_b32 s56, s56, 7")
        a("s_mov_b64 exec, 1")
        for i in range(self.n):
            a(f"v_mov_b32 v{vt}, s56")
            a(f"v_mov_b32 v{vt+1}, s{60+i}")
            a(f"buffer_store_dword v{vt+1}, v{vt}, s[52:55], 0 offen offset:{4*i}")
            a(f"v_mov_b32 v{vt+1}, s{72+i}")
            a(f"buffer_store_dword v{vt+1}, v{vt}, s[52:55], 0 offen offset:{64+4*i}")
        a(f"v_mov_b32 v{vt+1}, s71")
        a(f"buffer_store_dword v{vt+1}, v{vt}, s[52:55], 0 offen offset:124")
        a("s_waitcnt vmcnt(0)")
        a("s_mov_b64 exec, -1")

def gen_p1(o, a, P):
    S = o.S
    NK = S * 256
    KSL = (S << 26) // E
    CN = 16; SCR = CN + NK * 4; STG = SCR + 64; XW = STG + CHA * 6
    W0 = 4; KP0 = 53; C0 = 78; TO = 103; T0 = 104
    ld = o.p1_ld; st = o.p1_st
    a("s_cmp_ge_u32 s2, 256")
    a("s_cbranch_scc1 " + ("P2_end" if o.fuse else "P1_end"))
    a("s_load_dwordx4 s[4:7], s[0:1], 8")
    a("s_load_dwordx2 s[28:29], s[0:1], 32")
    a("s_load_dwordx2 s[30:31], s[0:1], 48")
    a("s_load_dwordx2 s[32:33], s[0:1], 104")
    a("s_load_dwordx2 s[46:47], s[0:1], 0")
    a("s_load_dwordx2 s[94:95], s[0:1], 96")
    a("v_lshlrev_b32 v1, 4, v0")
    a("v_lshlrev_b32 v2, 3, v0")
    a("v_mov_b32 v3, 1")
    for i in range(4): a(f"v_mov_b32 v{T0+i}, 0")
    a(f"ds_write_b128 v1, v[{T0}:{T0+3}]")
    a("v_lshrrev_b32 v127, 6, v0")
    a("v_readfirstlane_b32 s3, v127")
    a(f"s_mul_i32 s34, s2, 848")
    a(f"s_add_u32 s34, s34, {3072*4096}")
    a(f"v_add_u32 v109, s34, v0")
    a(f"v_cmp_gt_u32 vcc, 848, v0")
    a(f"v_lshlrev_b32 v110, 2, v109")
    a(f"v_lshlrev_b32 v109, 1, v109")
    a(f"v_cndmask_b32 v110, 2.0, v110, vcc")
    a(f"v_cndmask_b32 v109, 2.0, v109, vcc")
    a("s_waitcnt lgkmcnt(0)")
    P.stamp()
    srd(a, 8, 4, T * 4); srd(a, 12, 6, T * 4); srd(a, 16, 28, T * 2)
    a("s_load_dword s35, s[30:31], 0")
    if o.cmap == 0:
        a("s_mov_b32 s36, s2")
    elif o.cmap == 1:
        a("s_and_b32 s36, s2, 7")
        a("s_lshl_b32 s36, s36, 5")
        a("s_lshr_b32 s37, s2, 3")
        a("s_add_u32 s36, s36, s37")
    else:
        a("s_mul_i32 s36, s2, 12")
    a("s_lshl_b32 s37, s36, 13")
    a("s_lshl_b32 s36, s36, 14")
    cstep = 1 if o.cmap == 2 else 256
    a(f"buffer_load_dword v{TO}, v110, s[12:15], 0 offen {ld}")
    a(f"buffer_load_dword v{W0+48}, v110, s[8:11], 0 offen {ld}")
    a(f"buffer_load_ushort v{C0+24}, v109, s[16:19], 0 offen {ld}")
    def issue_idx(r):
        b = C0 + 4 * (r % 6); w = W0 + 4 * r
        a(f"buffer_load_dwordx4 v[{b}:{b+3}], v1, s[12:15], s36 offen {ld}")
        a(f"buffer_load_dwordx4 v[{w}:{w+3}], v1, s[8:11], s36 offen {ld}")
        a(f"s_add_u32 s36, s36, {cstep*16384}")
    def issue_ang(r):
        b = C0 + 2 * r
        a(f"buffer_load_dwordx2 v[{b}:{b+1}], v2, s[16:19], s37 offen {ld}")
        a(f"s_add_u32 s37, s37, {cstep*8192}")
    for r in range(6): issue_idx(r)
    a("s_mov_b32 s38, 0x7c00")
    a(f"s_mov_b32 s39, {KSL}")
    a(f"v_mov_b32 v{T0+20}, 0x3fc")
    a(f"v_mov_b32 v{T0+21}, 0x0ff00000")
    a("s_waitcnt lgkmcnt(0)")
    a("s_lshl_b32 s35, s35, 16")
    a("s_barrier")
    def key(O, W, t0, t1):
        if o.rot:
            a(f"v_lshlrev_b32 v{t0}, 17, v{O}")
            a(f"v_and_b32 v{t0}, {7 << 26}, v{t0}")
            a(f"v_mad_u32_u24 v{t0}, v{W}, s39, v{t0}")
        else:
            a(f"v_mul_u32_u24 v{t0}, {KSL}, v{W}")
        a(f"v_lshlrev_b32 v{t1}, 8, v{O}")
        a(f"v_lshl_or_b32 v{W}, v{O}, 28, v{W}")
        a(f"v_and_b32_sdwa v{t0}, v{t0}, s38 dst_sel:DWORD dst_unused:UNUSED_PAD src0_sel:WORD_1 src1_sel:DWORD")
        a(f"v_lshrrev_b32 v{O}, 2, v{O}")
        a(f"v_bitop3_b32 v{W}, v{t1}, v{T0+21}, v{W} bitop3:0xea")
        if o.rot:
            a(f"v_subrev_u32 v{t1}, {S*1024}, v{t0}")
            a(f"v_min_u32 v{t0}, v{t0}, v{t1}")
        a(f"v_bitop3_b32 v{O}, v{O}, v{T0+20}, v{t0} bitop3:0xea")
    for r in range(12):
        a(f"s_waitcnt vmcnt({min(10, 2*(11-r))})")
        if r == 0:
            key(TO, W0 + 48, T0, T0 + 1)
            a(f"v_cndmask_b32 v{KP0+24}, 2.0, v{TO}, vcc")
            a(f"ds_add_u32 v{KP0+24}, v3 offset:{CN}")
        b = C0 + 4 * (r % 6)
        for j in range(4):
            key(b + j, W0 + 4 * r + j, T0 + 2 * j, T0 + 2 * j + 1)
            a(f"ds_add_u32 v{b+j}, v3 offset:{CN}")
        a(f"v_lshl_or_b32 v{KP0+2*r}, v{b+1}, 16, v{b}")
        a(f"v_lshl_or_b32 v{KP0+2*r+1}, v{b+3}, 16, v{b+2}")
        if r < 6: issue_idx(r + 6)
    if o.aearly:
        a(f"s_cmp_ge_u32 s3, {o.aearly}")
        a("s_cbranch_scc1 P1_ang0")
        for n in range(12): issue_ang(n)
        a("P1_ang0:")
    a("s_waitcnt lgkmcnt(0)")
    a("s_barrier")
    P.stamp()
    c = T0; x = T0 + 4; tot = T0 + 5; y = T0 + 6
    a(f"s_cmp_ge_u32 s3, {S}")
    a("s_cbranch_scc1 P1_scan1")
    a(f"ds_read_b128 v[{c}:{c+3}], v1 offset:{CN}")
    a("s_waitcnt lgkmcnt(0)")
    a(f"v_add_u32 v{c+1}, v{c}, v{c+1}")
    a(f"v_add_u32 v{c+2}, v{c+1}, v{c+2}")
    a(f"v_add_u32 v{c+3}, v{c+2}, v{c+3}")
    a(f"v_mov_b32 v{x}, v{c+3}")
    for sh in (1, 2, 4, 8):
        a(f"v_add_u32_dpp v{x}, v{x}, v{x} row_shr:{sh} row_mask:0xf bank_mask:0xf bound_ctrl:1")
    a(f"v_add_u32_dpp v{x}, v{x}, v{x} row_bcast:15 row_mask:0xa bank_mask:0xf")
    a(f"v_add_u32_dpp v{x}, v{x}, v{x} row_bcast:31 row_mask:0xc bank_mask:0xf")
    a(f"v_readlane_b32 s40, v{x}, 63")
    a(f"s_lshl_b32 s41, s3, 2")
    a(f"v_mov_b32 v{y}, s41")
    a(f"v_mov_b32 v{y+1}, s40")
    a(f"ds_write_b32 v{y}, v{y+1} offset:{SCR}")
    a("s_waitcnt lgkmcnt(0)")
    a("P1_scan1:")
    a("s_barrier")
    a(f"s_cmp_ge_u32 s3, {S}")
    a("s_cbranch_scc1 P1_scan2")
    a(f"v_and_b32 v{y}, 63, v0")
    a(f"v_lshlrev_b32 v{y+1}, 2, v{y}")
    a(f"ds_read_b32 v{y+2}, v{y+1} offset:{SCR}")
    a(f"v_cmp_gt_u32 s[42:43], s3, v{y}")
    a(f"v_sub_u32 v{x}, v{x}, v{c+3}")
    a("s_waitcnt lgkmcnt(0)")
    a(f"v_cndmask_b32 v{y+2}, 0, v{y+2}, s[42:43]")
    for sh in (1, 2, 4, 8):
        a(f"v_add_u32_dpp v{y+2}, v{y+2}, v{y+2} row_shr:{sh} row_mask:0xf bank_mask:0xf bound_ctrl:1")
    a(f"v_readlane_b32 s40, v{y+2}, 15")
    s0 = T0 + 12
    a(f"v_add_u32 v{s0}, s40, v{x}")
    for j in range(3): a(f"v_add_u32 v{s0+1+j}, v{s0}, v{c+j}")
    a(f"ds_write_b128 v1, v[{s0}:{s0+3}] offset:{CN}")
    a("s_waitcnt lgkmcnt(0)")
    a("P1_scan2:")
    a("s_barrier")
    P.stamp(False)
    def atomics(n):
        t = T0 + 4 * (n % 2)
        if n == 12:
            a(f"ds_add_rtn_u32 v{t}, v{KP0+24}, v3 offset:{CN}"); return 1
        for j in range(4):
            kp = KP0 + 2 * n + j // 2
            if j % 2 == 0: a(f"v_and_b32 v{t+j}, 0xffff, v{kp}")
            else: a(f"v_lshrrev_b32 v{t+j}, 16, v{kp}")
            a(f"ds_add_rtn_u32 v{t+j}, v{t+j}, v3 offset:{CN}")
        return 4
    assert o.aearly <= o.asplit
    a(f"s_cmp_ge_u32 s3, {o.asplit}")
    a("s_cbranch_scc1 P1_ang1")
    a(f"s_cmp_lt_u32 s3, {o.aearly}")
    a("s_cbranch_scc1 P1_ang1")
    for n in range(12): issue_ang(n)
    a("P1_ang1:")
    atomics(0)
    for n in range(13):
        k = atomics(n + 1) if n < 12 else 0
        a(f"s_waitcnt lgkmcnt({k})")
        t = T0 + 4 * (n % 2); u = T0 + 8
        if n < 12:
            a(f"v_lshl_or_b32 v{KP0+2*n}, v{t+1}, 16, v{t}")
            a(f"v_lshl_or_b32 v{KP0+2*n+1}, v{t+3}, 16, v{t+2}")
        else:
            a(f"v_mov_b32 v{u}, 0xffff")
            a(f"v_cndmask_b32 v{KP0+24}, v{u}, v{t}, vcc")
    a(f"s_cmp_lt_u32 s3, {o.asplit}")
    a("s_cbranch_scc1 P1_ang2")
    for n in range(12): issue_ang(n)
    a("P1_ang2:")
    P.stamp(False)
    srd(a, 24, 32, NT * NT * S * 4, WS_DESC)
    srd(a, 48, 46, E * 32)
    def warm():
        a("s_cmp_lt_u32 s3, 3")
        a("s_cbranch_scc1 P1_nowarm")
        a("s_mul_i32 s40, s2, 782")
        a("s_sub_u32 s40, s40, 192")
        a(f"v_add_u32 v3, s40, v0")
        a(f"v_lshlrev_b32 v3, 7, v3")
        a(f"buffer_load_dword v3, v3, s[48:51], 0 offen")
        a("P1_nowarm:")
    a("s_cmp_eq_u32 s35, 1.0")
    a("s_cbranch_scc1 P1_f1")
    a("s_waitcnt vmcnt(0)")
    for n in range(25):
        cr = C0 + n; t = T0
        a(f"v_lshlrev_b32 v{t}, 16, v{cr}")
        a(f"v_and_b32 v{t+1}, 0xffff0000, v{cr}")
        a(f"v_mul_f32 v{t}, s35, v{t}")
        a(f"v_mul_f32 v{t+1}, s35, v{t+1}")
        a(f"v_cvt_pk_bf16_f32 v{cr}, v{t}, v{t+1}")
    a("P1_f1:")
    MG = -(-(1 << 19) // S)
    assert all((n * MG) >> 19 == n // S for n in range(4096))
    a(f"s_mov_b32 s40, {(-(1024*S - 4)) & 0xffffffff}")
    for j in range(4):
        t = T0 + 12 + j
        a(f"v_lshl_add_u32 v{t}, v0, 2, {j}")
        a(f"v_mul_u32_u24 v{T0}, {MG}, v{t}")
        a(f"v_lshrrev_b32 v{T0}, 19, v{T0}")
        a(f"v_lshlrev_b32 v{t}, 10, v{t}")
        a(f"v_mad_i32_i24 v{t}, v{T0}, s40, v{t}")
    def addrs(n, h, u, base):
        a(f"v_mad_u32_u16 v{u}, v{KP0+n}, 6, {base}" + (" op_sel:[1,0,0,0]" if h else ""))
        a(f"v_and_b32 v{u+1}, 2, v{u}")
        a(f"v_sub_u32 v{u}, v{u}, v{u+1}")
        a(f"v_sub_u32 v{u+1}, v{u}, v{u+1}")
    for n in range(25):
        cr = C0 + n; t = T0 + 6 * (n % 2)
        if n % 2 == 0 and n < 24: a(f"s_waitcnt vmcnt({11 - n // 2})")
        if n == 24 and o.warm == 1: warm()
        a(f"v_lshlrev_b32 v{t}, 16, v{cr}")
        a(f"v_and_b32 v{t+1}, 0xffff0000, v{cr}")
        a(f"v_mul_f32 v{t}, 0.15915494, v{t}")
        a(f"v_mul_f32 v{t+1}, 0.15915494, v{t+1}")
        a(f"v_fract_f32 v{t}, v{t}")
        a(f"v_fract_f32 v{t+1}, v{t+1}")
        a(f"v_cos_f32 v{t}, v{t}")
        a(f"v_cos_f32 v{t+1}, v{t+1}")
        for h in range(2 if n < 24 else 1):
            u = t + 2 + 2 * h
            addrs(n, h, u, 0)
            a(f"ds_write_b32 v{u}, v{W0+2*n+h} offset:{STG}")
        a(f"v_cvt_pk_bf16_f32 v{cr}, v{t}, v{t+1}")
        a(f"ds_write_b16 v{t+3}, v{cr} offset:{STG+8}")
        if n < 24: a(f"ds_write_b16_d16_hi v{t+5}, v{cr} offset:{STG+8}")
    def store(k):
        t = T0 + 4 * (k % 6)
        a(f"buffer_store_dwordx4 v[{t}:{t+3}], v{TO}, s[20:23], 0 offen {st}")
        a(f"v_subrev_u32 v{TO}, 16384, v{TO}")
    def copyout(ch, nnow):
        nbytes = CHA * 6 if ch == 0 else (TILE_N - CHA) * 6
        a(f"s_mul_i32 s40, s2, {TILE_BYTES}")
        if ch: a(f"s_add_u32 s40, s40, {CHA*6}")
        srd(a, 20, 32, nbytes, "s40")
        a(f"v_add_u32 v2, {9*16384}, v1")
        a(f"v_add_u32 v{TO}, {9*16384}, v1")
        a("s_waitcnt lgkmcnt(0)")
        a("s_barrier")
        P.stamp()
        if ch == 0:
            a(f"s_cmp_ge_u32 s3, {S}")
            a("s_cbranch_scc1 P1_nodesc")
            for j in range(4):
                a(f"ds_read2_b32 v[{T0+2*j}:{T0+2*j+1}], v{T0+12+j} offset0:{CN//4-1} offset1:{CN//4}")
            a(f"s_mul_i32 s40, s2, {256*S*4}")
            a("s_waitcnt lgkmcnt(0)")
            for j in range(4): a(f"v_lshl_or_b32 v{T0+j}, v{T0+2*j+1}, 16, v{T0+2*j}")
            a(f"buffer_store_dwordx4 v[{T0}:{T0+3}], v1, s[24:27], s40 offen {st}")
            a("s_nop 1")
            a("P1_nodesc:")
            if o.fuse:
                a(f"v_mov_b32 v3, {XW}")
                for j in range(4): a(f"v_mov_b32 v{T0+20+j}, 0")
                a(f"ds_write_b128 v3, v[{T0+20}:{T0+23}]")
                a(f"ds_write_b128 v3, v[{T0+20}:{T0+23}] offset:16")
                srd(a, 24, 94, 256)
        def rd(k):
            t = T0 + 4 * (k % 6)
            a(f"ds_read_b128 v[{t}:{t+3}], v2 offset:{STG}")
            a(f"v_subrev_u32 v2, 16384, v2")
        for k in range(6): rd(k)
        for k in range(nnow):
            a(f"s_waitcnt lgkmcnt({min(5, 9-k)})")
            store(k)
            if k + 6 < 10: rd(k + 6)
    nnow = 10 - o.defer
    copyout(0, nnow)
    a(f"s_mov_b32 s45, {(-CHA*6) & 0xffffffff}")
    if o.fuse: a(f"s_waitcnt vmcnt({nnow})")
    a("s_waitcnt lgkmcnt(0)")
    a("s_barrier")
    P.stamp()
    if o.fuse:
        a("v_mov_b32 v2, 0")
        a("v_mov_b32 v3, 0")
        a("s_cmp_lg_u32 s3, 0")
        a("s_cbranch_scc1 P1_nod")
        arrive(a, 2, 2)
        a("P1_nod:")
        while nnow < 10:
            store(nnow); nnow += 1
        a(f"s_cmp_lt_u32 s3, {o.early}")
        a("s_cbranch_scc1 P2_nosiga0")
        a("s_waitcnt vmcnt(0)")
        signal_wg(a, 2, 0, XW + 8, 16, "a0")
    for n in range(25):
        if n == 20 and o.warm == 2: warm()
        if n % o.dstep == (1 if o.dstep > 1 else 0) and nnow < 10:
            store(nnow); nnow += 1
        for h in range(2 if n < 24 else 1):
            u = T0 + 16 + 2 * ((2 * n + h) % 4)
            addrs(n, h, u, "s45")
            a(f"ds_write_b32 v{u}, v{W0+2*n+h} offset:{STG}")
            a(f"ds_write_b16{'_d16_hi' if h else ''} v{u+1}, v{C0+n} offset:{STG+8}")
    assert nnow == 10
    if o.fuse:
        lds_count(a, 4, XW + 12)
        a(f"s_cmp_ge_u32 s3, {o.early}")
        a("s_cbranch_scc1 P2_nosiga1")
        release(a, 2, 2, "d")
        signal_wg(a, 2, 0, XW + 8, 16, "a1")
        a(f"s_mul_i32 s40, s2, {TILE_BYTES}")
        a(f"s_add_u32 s40, s40, {CHA*6}")
        srd(a, 20, 32, (TILE_N - CHA) * 6, "s40")
        return XW, STG
    copyout(1, 10)
    if o.prof:
        P.stamp()
        a("s_waitcnt vmcnt(0)")
        P.stamp()
        P.dump(32, 0, T0, 3)
    a("P1_end:")
    a("s_endpgm")
    return XW, STG

def arrive(a, t, level):
    a(f"v_mov_b32 v{t}, 0")
    a(f"v_mov_b32 v{t+1}, 1")
    a("s_mov_b64 exec, 1")
    a(f"buffer_atomic_add v{t+1}, v{t}, s[24:27], 0 offen offset:{32*level} sc0 sc1")
    a("s_mov_b64 exec, -1")

def release(a, t, level, tag):
    a("s_waitcnt vmcnt(0)")
    a(f"v_readfirstlane_b32 s40, v{t+1}")
    a("s_cmp_lg_u32 s40, 255")
    a(f"s_cbranch_scc1 P2_norel{tag}")
    a("s_mov_b64 exec, 1")
    a(f"buffer_store_dword v{t+1}, v{t}, s[24:27], 0 offen offset:{128+4*level} sc1")
    a("s_mov_b64 exec, -1")
    a(f"P2_norel{tag}:")

def lds_count(a, t, word):
    a(f"v_mov_b32 v{t}, {word}")
    a(f"v_mov_b32 v{t+1}, 1")
    a("s_mov_b64 exec, 1")
    a("s_waitcnt lgkmcnt(0)")
    a(f"ds_add_u32 v{t}, v{t+1}")
    a("s_mov_b64 exec, -1")

def lds_wait(a, t, word, n, tag, sleep):
    a(f"v_mov_b32 v{t}, {word}")
    a(f"P2_lw{tag}:")
    a(f"ds_read_b32 v{t+1}, v{t}")
    a("s_waitcnt lgkmcnt(0)")
    a(f"v_readfirstlane_b32 s40, v{t+1}")
    a(f"s_cmp_ge_u32 s40, {n}")
    a(f"s_cbranch_scc1 P2_lg{tag}")
    if sleep: a(f"s_sleep {sleep}")
    a(f"s_branch P2_lw{tag}")
    a(f"P2_lg{tag}:")

def signal_wg(a, t, level, word, nw, tag):
    a(f"v_mov_b32 v{t}, {word}")
    a(f"v_mov_b32 v{t+1}, 1")
    a("s_mov_b64 exec, 1")
    a(f"ds_add_rtn_u32 v{t+1}, v{t}, v{t+1}")
    a("s_mov_b64 exec, -1")
    a("s_waitcnt lgkmcnt(0)")
    a(f"v_readfirstlane_b32 s40, v{t+1}")
    a(f"s_cmp_lg_u32 s40, {nw-1}")
    a(f"s_cbranch_scc1 P2_nosig{tag}")
    arrive(a, t, level)
    release(a, t, level, tag)
    a(f"P2_nosig{tag}:")

def gen_p2(o, a, P, XW, STG):
    S = o.S
    FLAG = 2048 - 16; FLC = 2048 - 32
    uid = [0]
    LUT = 2048; CB = 2560; WSZ = NG * WSTR; WB = CB + WSZ + 16
    LDS = WB + 2 * WSZ + 64
    if not o.fuse:
        a("s_cmp_ge_u32 s2, 256")
        a("s_cbranch_scc1 P2_end")
        a("s_load_dwordx2 s[32:33], s[0:1], 104")
        a("v_lshrrev_b32 v1, 6, v0")
        a("v_readfirstlane_b32 s3, v1")
    a("s_load_dwordx2 s[4:5], s[0:1], 0")
    a("s_load_dwordx2 s[6:7], s[0:1], 72")
    a("s_and_b32 s46, s2, 7")
    a("s_lshl_b32 s46, s46, 5")
    a("s_lshr_b32 s47, s2, 3")
    a("s_add_u32 s46, s46, s47")
    a("v_and_b32 v12, 63, v0")
    a("s_waitcnt lgkmcnt(0)")
    P.stamp(False)
    srd(a, 8, 4, E * 32)
    srd(a, 12, 32, NT * TILE_BYTES)
    srd(a, 16, 32, NT * NT * S * 4, WS_DESC)
    srd(a, 28, 6, 512)
    a("s_cmp_ge_u32 s3, 4")
    a("s_cbranch_scc1 P2_consumer")
    D0 = 40; R0 = 64
    vU12 = 1; vTile = 2; vInc = 3; v3FC = 4; vCb = 5; vZ = 6; v2U2 = 7; v2U1 = 8; vSg = 9
    n2c = 10; a0c = 11; n2n = 13; a0n = 14; n1n = 15
    vca = 16; vcb = 17; vra = 18; vrb = 19; vwa = 20; vwb = 21; vha = 22; vhb = 23; vt = 24; vt2 = 25; vPW = 26; vFl = 27
    ODDC = 52; MORC = 54; ODDN = 84; MORN = 86; ROW0 = 82; M0_ = 88; M1_ = 90
    if o.prio: a(f"s_setprio {o.prio}")
    a(f"s_lshl_b32 s47, s3, 6")
    a(f"v_add_u32 v{vTile}, s47, v12")
    a(f"s_lshl_b32 s50, s3, 2")
    a(f"v_mov_b32 v{vPW}, s50")
    a("s_mov_b32 s48, 0")
    def poll(level, tag):
        a("s_mov_b32 s51, 0")
        a(f"P2_poll{tag}:")
        a(f"buffer_load_dword v{vt}, v{vFl}, s[24:27], 0 offen offset:{128+4*level} sc1")
        a("s_add_u32 s51, s51, 1")
        a(f"s_cmp_gt_u32 s51, {o.maxpoll}")
        a("s_cbranch_scc1 P2_pdone")
        a("s_waitcnt vmcnt(0)")
        a(f"v_cmp_eq_u32 vcc, 0, v{vt}")
        a(f"s_cbranch_vccz P2_polled{tag}")
        a(f"s_sleep {o.gsleep}")
        a(f"s_branch P2_poll{tag}")
        a(f"P2_polled{tag}:")
    if o.fuse:
        a(f"v_mov_b32 v{vFl}, 0")
        a("s_mov_b32 s45, 0")
        a("s_mov_b32 s44, s3")
        nsave = P.n
        P.stamp()
        poll(2, "d")
        P.stamp()
    a(f"v_lshlrev_b32 v{vt}, 8, v{vTile}")
    a(f"v_add_u32 v{vt}, s46, v{vt}")
    a(f"v_mul_u32_u24 v{vt}, {4*S}, v{vt}")
    k = 0
    while k < S:
        w = 4 if S - k >= 4 else (2 if S - k >= 2 else 1)
        sfx = {4: "x4", 2: "x2", 1: ""}[w]
        dst = f"v[{D0+k}:{D0+k+w-1}]" if w > 1 else f"v{D0+k}"
        a(f"buffer_load_dword{sfx} {dst}, v{vt}, s[16:19], 0 offen offset:{4*k} {o.p2_rec}")
        k += w
    a(f"v_mov_b32 v{D0+S}, 0")
    a(f"v_mul_u32_u24 v{vTile}, {TILE_BYTES}, v{vTile}")
    a(f"v_and_b32 v{vt}, 15, v12")
    a(f"v_mul_u32_u24 v{vU12}, 12, v{vt}")
    a(f"v_lshl_add_u32 v{v2U1}, v{vt}, 1, 1")
    a(f"v_add_u32 v{v2U2}, 1, v{v2U1}")
    a(f"v_mov_b32 v{vInc}, {(1 << 20) + 4}")
    a(f"v_mov_b32 v{v3FC}, 0x3fc")
    a(f"v_mov_b32 v{vSg}, 0x80000000")
    for r in (vCb, vZ, vra, vrb): a(f"v_mov_b32 v{r}, 0")
    a("s_mov_b32 s49, 0")
    a(f"s_mov_b32 s{ROW0}, 0x00010001")
    a(f"s_mov_b32 s{ROW0+1}, 0x00010001")
    def prep():
        if o.fuse:
            uid[0] += 1; u = uid[0]
            a(f"v_cmp_lt_u32 vcc, {(CHA << 16) | 0xffff}, v{D0}")
            a("s_cmp_lg_u32 s45, 0")
            a(f"s_cbranch_scc1 P2_haveb{u}")
            a(f"s_cbranch_vccz P2_haveb{u}")
            if o.bwb: a("s_call_b64 s[42:43], P2_relb")
            poll(1, f"b{u}")
            if o.bwb: a("buffer_inv sc1")
            a("s_mov_b32 s45, 1")
            a(f"P2_haveb{u}:")
        a(f"v_bfe_u32 v{vt}, v{D0}, 1, 15")
        a(f"v_mad_u32_u24 v{a0n}, v{vt}, 12, v{vTile}")
        a(f"v_lshrrev_b32 v{n2n}, 16, v{D0}")
        a(f"v_and_b32 v{vt}, 0xfffe, v{D0}")
        a(f"v_sub_u32 v{n2n}, v{n2n}, v{vt}")
        a(f"v_and_b32 v{vt}, 1, v{D0}")
        a(f"v_cmp_eq_u32 s[{ODDN}:{ODDN+1}], 1, v{vt}")
        a(f"v_cmp_lt_u32 s[{MORN}:{MORN+1}], 32, v{n2n}")
        for k in range(S): a(f"v_mov_b32 v{D0+k}, v{D0+k+1}")
    def issue(i):
        a(f"v_add_u32_dpp v{vt}, v{a0n}, v{vU12} row_newbcast:{i} row_mask:0xf bank_mask:0xf")
        a(f"v_sub_u32_dpp v{vt2}, v{n2n}, v{v2U1} row_newbcast:{i} row_mask:0xf bank_mask:0xf")
        a(f"v_bitop3_b32 v{vt}, v{vt2}, v{vSg}, v{vt} bitop3:0xea")
        r = R0 + 4 * i
        a(f"buffer_load_dwordx3 v[{r}:{r+2}], v{vt}, s[12:15], 0 offen {o.p2_rec}")
    def twait(body):
        if o.prof:
            a("s_waitcnt lgkmcnt(0)")
            a("s_memtime s[56:57]")
            a("s_waitcnt lgkmcnt(0)")
        body()
        if o.prof:
            a("s_memtime s[58:59]")
            a("s_waitcnt lgkmcnt(0)")
            a("s_sub_u32 s56, s58, s56")
            a("s_add_u32 s71, s71, s56")
    L0 = -(-(1 << 26) // ((S << 26) // E)) // 4 + 1
    def next_round(regular=False):
        a("s_add_u32 s48, s48, 1")
        if o.maxr:
            a(f"s_cmp_gt_u32 s48, {o.maxr}")
            a("s_cbranch_scc1 P2_pdone")
        a(f"v_mov_b32 v{vt}, s48")
        if not o.flags:
            a(f"ds_max_u32 v{vZ}, v{vt} offset:{FLAG}")
            a(f"v_xor_b32 v{vCb}, 1024, v{vCb}")
            a("s_waitcnt lgkmcnt(0)")
            twait(lambda: a("s_barrier"))
            return
        a("s_waitcnt lgkmcnt(0)")
        a(f"ds_write_b32 v{vPW}, v{vt} offset:{FLAG}")
        a(f"v_xor_b32 v{vCb}, 1024, v{vCb}")
        if regular and o.sw:
            n = -(-L0 // 1024)
            uid[0] += 1
            a(f"s_add_u32 s40, s49, {o.swd}")
            a(f"s_cmp_ge_u32 s40, {S}")
            a(f"s_cbranch_scc1 P2_nw{uid[0]}")
            a(f"s_mul_i32 s40, s40, {L0 - 1}")
            a(f"s_lshl_b32 s41, s2, 2")
            a(f"s_add_u32 s41, s41, s3")
            a(f"s_mul_i32 s41, s41, {n}")
            a(f"s_add_u32 s40, s40, s41")
            if o.sw != 2:
                a(f"s_min_u32 s40, s40, {E // 4 - n}")
                a(f"s_lshl_b32 s40, s40, 7")
                a(f"s_add_u32 s36, s8, s40")
                a(f"s_addc_u32 s37, s9, 0")
                if o.sw == 1:
                    for j in range(n): a(f"s_load_dwordx2 s[38:39], s[36:37], {128*j+60}")
                elif o.sw == 3:
                    for j in range(2 * n): a(f"s_load_dword s38, s[36:37], {64*j}")
                else:
                    for j in range(n): a(f"s_load_dword s38, s[36:37], {128*j}")
            else:
                a(f"v_add_lshl_u32 v28, v12, s40, 7")
                a(f"s_bfm_b64 exec, {n}, 0")
                a(f"buffer_load_dword v29, v28, s[8:11], 0 offen")
                a(f"s_mov_b64 exec, -1")
            a(f"P2_nw{uid[0]}:")
        if o.fuse and o.bwb:
            uid[0] += 1
            a(f"s_cmp_lg_u32 s48, {o.bwb}")
            a(f"s_cbranch_scc1 P2_nr{uid[0]}")
            a("s_call_b64 s[42:43], P2_relb")
            a(f"P2_nr{uid[0]}:")
        a("s_lshr_b32 s50, s48, 1")
        a("s_mul_i32 s50, s50, 12")
        a(f"v_lshrrev_b32 v{vt2}, 8, v{vCb}")
        uid[0] += 1; u = uid[0]
        def spin():
            a(f"P2_pw{u}:")
            a(f"ds_read_b32 v{vt}, v{vt2} offset:{FLC}")
            a("s_waitcnt lgkmcnt(0)")
            a(f"v_readfirstlane_b32 s51, v{vt}")
            a("s_cmp_ge_u32 s51, s50")
            a(f"s_cbranch_scc1 P2_pg{u}")
            a(f"s_sleep {o.psleep}")
            a(f"s_branch P2_pw{u}")
            a(f"P2_pg{u}:")
        twait(spin)
    if o.prof: a("s_mov_b32 s71, 0")
    if o.fuse:
        poll(0, "a")
        P.stamp()
    else:
        a("s_waitcnt vmcnt(0)")
    prep()
    for i in range(16): issue(i)
    if o.fuse and o.prof:
        a("s_waitcnt vmcnt(15)")
        P.stamp()
    if o.fuse:
        lds_wait(a, vt, XW, 12, "i", 1)
        P.stamp()
    else:
        a("s_barrier")
    def ppass(tg, inl):
        a(f"v_mov_b32 v{n2c}, v{n2n}")
        a(f"v_mov_b32 v{a0c}, v{a0n}")
        a(f"s_mov_b64 s[{ODDC}:{ODDC+1}], s[{ODDN}:{ODDN+1}]")
        a(f"s_mov_b64 s[{MORC}:{MORC+1}], s[{MORN}:{MORN+1}]")
        prep()
        for i in range(16):
            r = R0 + 4 * i
            a(f"v_sub_co_u32_dpp v{vt}, vcc, v{n2c}, v{v2U1} row_newbcast:{i} row_mask:0xf bank_mask:0xf")
            a(f"s_and_b64 s[92:93], s[{ODDC}:{ODDC+1}], s[{ROW0}:{ROW0+1}]")
            a(f"s_nor_b64 s[{M0_}:{M0_+1}], vcc, s[92:93]")
            a(f"v_sub_co_u32_dpp v{vt}, vcc, v{n2c}, v{v2U2} row_newbcast:{i} row_mask:0xf bank_mask:0xf")
            a(f"s_lshr_b64 s[{ODDC}:{ODDC+1}], s[{ODDC}:{ODDC+1}], 1")
            a(f"s_not_b64 s[{M1_}:{M1_+1}], vcc")
            a(f"s_waitcnt vmcnt({15 if inl else 15 - i})")
            a(f"P2_retry{tg}{i}:")
            a(f"v_lshrrev_b32 v{vca}, 18, v{r}")
            a(f"v_lshrrev_b32 v{vcb}, 18, v{r+1}")
            a(f"v_bitop3_b32 v{vca}, v{vca}, v{v3FC}, v{vCb} bitop3:0xea")
            a(f"v_bitop3_b32 v{vcb}, v{vcb}, v{v3FC}, v{vCb} bitop3:0xea")
            a(f"s_mov_b64 exec, s[{M0_}:{M0_+1}]")
            a(f"ds_add_rtn_u32 v{vra}, v{vca}, v{vInc}")
            a(f"s_mov_b64 exec, s[{M1_}:{M1_+1}]")
            a(f"ds_add_rtn_u32 v{vrb}, v{vcb}, v{vInc}")
            a(f"s_mov_b64 exec, -1")
            a(f"v_and_b32 v{vwa}, 0xf00fffff, v{r}")
            a(f"v_and_b32 v{vwb}, 0xf00fffff, v{r+1}")
            a("s_waitcnt lgkmcnt(0)")
            a(f"v_and_b32 v{vra}, 0xfc03ffff, v{vra}")
            a(f"v_and_b32 v{vrb}, 0xfc03ffff, v{vrb}")
            a(f"v_lshrrev_b32 v{vha}, 1, v{vra}")
            a(f"v_lshrrev_b32 v{vhb}, 1, v{vrb}")
            a(f"v_or_b32 v{vt}, v{vra}, v{vrb}")
            a(f"v_cmp_lt_u32 vcc, v{vInc}, v{vt}")
            a(f"s_mov_b64 exec, s[{M0_}:{M0_+1}]")
            a(f"ds_write_b32 v{vra}, v{vwa} offset:{WB}")
            a(f"ds_write_b16 v{vha}, v{r+2} offset:{CB}")
            a(f"s_mov_b64 exec, s[{M1_}:{M1_+1}]")
            a(f"ds_write_b32 v{vrb}, v{vwb} offset:{WB}")
            a(f"ds_write_b16_d16_hi v{vhb}, v{r+2} offset:{CB}")
            a(f"s_mov_b64 exec, -1")
            a(f"s_cbranch_vccnz P2_stall{tg}{i}")
            a(f"s_and_b64 s[92:93], s[{MORC}:{MORC+1}], s[{ROW0}:{ROW0+1}]")
            a(f"s_cbranch_scc1 P2_more{tg}{i}")
            a(f"s_lshr_b64 s[{MORC}:{MORC+1}], s[{MORC}:{MORC+1}], 1")
            if inl: issue(i)
    if o.ffill:
        ppass("f", False)
        a("s_mov_b32 s49, 1")
        a("s_cmp_ge_u32 s48, s49")
        a("s_cbranch_scc1 P2_ff1")
        next_round(True)
        a("P2_ff1:")
        for i in range(16): issue(i)
    a("P2_pslice:")
    ppass("", True)
    a("s_add_u32 s49, s49, 1")
    a(f"s_cmp_ge_u32 s49, {S}")
    a("s_cbranch_scc1 P2_pdone")
    a("s_cmp_ge_u32 s48, s49")
    a("s_cbranch_scc1 P2_pslice")
    next_round(True)
    a("s_branch P2_pslice")
    a("P2_pdone:")
    if o.flags:
        a("s_add_u32 s48, s48, 0x40000001")
        a(f"v_mov_b32 v{vt}, s48")
        a("s_waitcnt lgkmcnt(0)")
        a(f"ds_write_b32 v{vPW}, v{vt} offset:{FLAG}")
    a("s_waitcnt vmcnt(0) lgkmcnt(0)")
    if o.prof:
        n0 = P.n; P.stamp(); P.dump(32, 0x80000, 8, 3); P.n = nsave if o.fuse else n0
    a("s_endpgm")
    if o.fuse and o.bwb:
        assert 1 <= o.bwb <= 2
        a("P2_relb:")
        a("s_cmp_lg_u32 s44, 0")
        a("s_cbranch_scc1 P2_norelb")
        a("s_mov_b32 s44, 1")
        lds_wait(a, 28, XW + 4, 12, "b", 1)
        a("buffer_wbl2 sc1")
        a("s_waitcnt vmcnt(0)")
        arrive(a, 28, 1)
        release(a, 28, 1, "b")
        a("s_setpc_b64 s[42:43]")
    for tg, i in [(t_, i_) for t_ in (("f", "") if o.ffill else ("",)) for i_ in range(16)]:
        r = R0 + 4 * i
        a(f"P2_stall{tg}{i}:")
        a(f"v_cmp_lt_u32 s[{M0_}:{M0_+1}], v{vInc}, v{vra}")
        a(f"v_cmp_lt_u32 s[{M1_}:{M1_+1}], v{vInc}, v{vrb}")
        next_round()
        a(f"s_branch P2_retry{tg}{i}")
        a(f"P2_more{tg}{i}:")
        a(f"s_lshl_b64 exec, s[{ROW0}:{ROW0+1}], {i}")
        a(f"v_max_u32 v{n2c}, 32, v{n2c}")
        a(f"v_subrev_u32 v{n2c}, 32, v{n2c}")
        a(f"v_add_u32 v{a0c}, 192, v{a0c}")
        a(f"v_cmp_lt_u32 vcc, 32, v{n2c}")
        a(f"s_mov_b64 exec, -1")
        a(f"s_lshr_b64 s[92:93], vcc, {i}")
        a(f"s_andn2_b64 s[{MORC}:{MORC+1}], s[{MORC}:{MORC+1}], s[{ROW0}:{ROW0+1}]")
        a(f"s_or_b64 s[{MORC}:{MORC+1}], s[{MORC}:{MORC+1}], s[92:93]")
        a(f"v_sub_co_u32_dpp v{vt2}, vcc, v{n2c}, v{v2U2} row_newbcast:{i} row_mask:0xf bank_mask:0xf")
        a(f"s_not_b64 s[{M1_}:{M1_+1}], vcc")
        a(f"v_sub_co_u32_dpp v{vt2}, vcc, v{n2c}, v{v2U1} row_newbcast:{i} row_mask:0xf bank_mask:0xf")
        a(f"v_add_u32_dpp v{vt}, v{a0c}, v{vU12} row_newbcast:{i} row_mask:0xf bank_mask:0xf")
        a(f"s_not_b64 s[{M0_}:{M0_+1}], vcc")
        a(f"v_cndmask_b32 v{vt}, v{vt}, v{vSg}, vcc")
        a(f"buffer_load_dwordx3 v[{r}:{r+2}], v{vt}, s[12:15], 0 offen {o.p2_rec}")
        a("s_waitcnt vmcnt(0)")
        a(f"s_branch P2_retry{tg}{i}")
    a("P2_consumer:")
    ACC = 60; G0 = 52; B0 = 44; WA = 36; WBr = 40; D1 = 28; vM = 24; vC = 20; vX = 16
    bA = 1; bE = 2; bC = 3; bR = 4; vH = 5; vL = 6; vCA = 7; vCI = 8; vA = 9; vE = 10; vZ = 15
    a("s_sub_u32 s47, s3, 4")
    a("s_min_u32 s48, s47, 4")
    a("s_lshl_b32 s49, s47, 4")
    a("s_add_u32 s49, s49, s48")
    a("s_cmp_lt_u32 s47, 4")
    a("s_cselect_b32 s50, 17, 16")
    a(f"s_cselect_b32 s84, 0, {MARK}")
    a(f"s_cselect_b32 s85, {17*WSTR//16-192}, {16*WSTR//16-192}")
    a("s_bfm_b64 s[92:93], s85, 0")
    a("v_and_b32 v13, 15, v12")
    a("v_lshrrev_b32 v14, 4, v12")
    a(f"v_and_b32 v{vH}, 16, v12")
    a(f"v_lshlrev_b32 v{vA}, 4, v{vH}")
    a(f"v_lshl_add_u32 v{vA}, v13, 1, v{vA}")
    for c in range(8): a(f"buffer_load_ushort v{vC+c}, v{vA}, s[28:31], 0 offen offset:{32*c}")
    def warm2(which):
        a(f"s_lshl_b32 s40, s47, 6")
        a(f"v_add_u32 v{D1+5}, s40, v12")
        if which & 1:
            n = -(-((S - 8) * L0 if o.rot else E // 4 - L0) // 256)
            if o.sw: n = -(-(o.swd + 1) * L0 // 256)
            a(f"s_mul_i32 s40, s2, {n}")
            if not o.sw: a(f"s_add_u32 s40, s40, {L0}")
            a(f"v_cmp_gt_u32 vcc, {n}, v{D1+5}")
            a(f"v_add_lshl_u32 v{D1+6}, v{D1+5}, s40, 7")
            a(f"v_cndmask_b32 v{D1+6}, 2.0, v{D1+6}, vcc")
            a(f"buffer_load_dword v{D1+6}, v{D1+6}, s[8:11], 0 offen")
        if which & 2:
            n = -(-L0 // 32)
            a(f"s_lshr_b32 s40, s2, 3")
            a(f"s_mul_i32 s40, s40, {n}")
            if o.rot:
                a(f"s_and_b32 s41, s2, 7")
                a(f"s_sub_u32 s41, {S}, s41")
                a(f"s_cmp_eq_u32 s41, {S}")
                a(f"s_cselect_b32 s41, 0, s41")
                a(f"s_mul_i32 s41, s41, {L0 - 1}")
                a(f"s_add_u32 s40, s40, s41")
            a(f"v_cmp_gt_u32 vcc, {n}, v{D1+5}")
            a(f"v_add_lshl_u32 v{D1+7}, v{D1+5}, s40, 7")
            a(f"v_cndmask_b32 v{D1+7}, 2.0, v{D1+7}, vcc")
            a(f"buffer_load_dword v{D1+7}, v{D1+7}, s[8:11], 0 offen")
    for i in range(4): a(f"v_mov_b32 v{D1+i}, {MARK}")
    a(f"v_subrev_u32 v{vA}, 256, v0")
    a(f"v_lshlrev_b32 v{vA}, 4, v{vA}")
    if o.fuse:
        a(f"v_mov_b32 v60, v{vA}")
        for k in range(1, 4): a(f"v_add_u32 v{60+k}, {4*12288*k}, v{vA}")
        lds_wait(a, vX, XW + 12, 16, "s", 1)
        P.stamp()
        for k in range(13):
            a(f"ds_read_b128 v[{64+4*k}:{67+4*k}], v{60+k//4} offset:{STG+12288*(k%4)}")
        lds_count(a, vX, XW + 16)
        lds_wait(a, vX, XW + 16, 12, "x", 0)
    for k in range(-(-(LDS - CB) // (768 * 16))):
        a(f"ds_write_b128 v{vA}, v[{D1}:{D1+3}] offset:{CB}")
        a(f"v_add_u32 v{vA}, {768*16}, v{vA}")
    for i in range(16): a(f"v_mov_b32 v{B0+i}, 0")
    a(f"v_mov_b32 v{vZ}, 0")
    a(f"v_lshrrev_b32 v{vA}, 2, v13")
    a(f"v_cmp_eq_u32 vcc, v{vA}, v14")
    a(f"v_and_b32 v{vE}, 3, v12")
    a(f"v_lshlrev_b32 v{vE}, 4, v{vE}")
    a(f"v_mov_b32 v{vX}, 0xffff")
    a(f"v_mov_b32 v{vX+1}, 0")
    a(f"v_cndmask_b32 v{vX}, 0, v{vX}, vcc")
    a(f"v_lshlrev_b64 v[{vX}:{vX+1}], v{vE}, v[{vX}:{vX+1}]")
    a(f"v_lshrrev_b32 v{vA}, 1, v{vH}")
    a(f"v_lshl_add_u32 v{vA}, v13, 4, v{vA}")
    a(f"v_lshrrev_b32 v{vE}, 5, v12")
    a(f"v_lshl_add_u32 v{vA}, v{vE}, 8, v{vA}")
    a(f"ds_write_b64 v{vA}, v[{vX}:{vX+1}] offset:{LUT}")
    a(f"v_and_b32 v0, 7, v12")
    a(f"v_lshlrev_b32 v0, 2, v0")
    a(f"ds_write_b32 v0, v{vZ} offset:{FLC}")
    a(f"v_and_b32 v0, 12, v0")
    a(f"s_mul_i32 s51, s49, {WSTR}")
    a(f"s_lshr_b32 s86, s51, 1")
    a(f"s_add_u32 s86, s86, {CB}")
    a(f"v_lshl_add_u32 v{bC}, v14, 4, s86")
    a(f"v_mul_u32_u24 v{vCI}, {WSTR}, v12")
    a(f"s_add_u32 s86, s51, {(64 - CAP) << 20}")
    a(f"v_add_u32 v{vCI}, s86, v{vCI}")
    a(f"s_add_u32 s51, s51, {WB}")
    a(f"v_lshl_add_u32 v{bR}, v12, 4, s51")
    a(f"v_and_b32 v{vA}, 12, v12")
    a(f"v_lshlrev_b32 v{bA}, 1, v{vA}")
    a(f"v_and_or_b32 v{bA}, v12, 3, v{bA}")
    a(f"v_lshl_or_b32 v{bA}, v{vE}, 2, v{bA}")
    if o.dbg & 8:
        a(f"v_lshrrev_b32 v{bA}, 1, v12")
        a(f"v_and_b32 v{vH}, 1, v12")
        a(f"v_lshlrev_b32 v{vH}, 4, v{vH}")
    a(f"v_lshl_add_u32 v{bA}, v{bA}, 2, s51")
    a(f"v_lshl_add_u32 v{bE}, v14, 5, v{vA}")
    a(f"v_add_u32 v{bE}, s51, v{bE}")
    a(f"v_and_b32 v{vL}, 1, v12")
    a(f"v_lshlrev_b32 v{vL}, 3, v{vL}")
    a(f"v_and_b32 v{vA}, 2, v12")
    a(f"v_lshl_add_u32 v{vL}, v{vA}, 7, v{vL}")
    a(f"v_add_lshl_u32 v{vCA}, v12, s49, 2")
    a(f"v_cmp_gt_u32 vcc, s50, v12")
    a(f"v_cmp_gt_u32 s[88:89], 32, v12")
    a(f"v_add_u32 v{vA}, {WSZ}, v{vCI}")
    a(f"v_cndmask_b32 v{vCA}, 2.0, v{vCA}, vcc")
    a(f"ds_write_b32 v{vCA}, v{vCI}")
    a(f"ds_write_b32 v{vCA}, v{vA} offset:1024")
    a(f"s_mov_b32 s85, {(64 - CAP + 33) << 20}")
    a("s_mov_b32 s94, 0xf000f000" if not o.dbg & 8 else "s_mov_b32 s94, 0")
    a("s_mov_b32 s95, 0xf000f000" if not o.dbg & 8 else "s_mov_b32 s95, 0xffff0000")
    if o.fuse:
        lds_count(a, vX, XW)
        for k in range(13):
            a(f"buffer_store_dwordx4 v[{64+4*k}:{67+4*k}], v60, s[20:23], 0 offen {'' if o.bwb else o.p1_st}")
            a(f"v_add_u32 v60, 12288, v60")
            if o.thr >= 0: a(f"s_waitcnt vmcnt({o.thr})")
    for i in range(68): a(f"v_mov_b32 v{ACC+i}, 0")
    a("s_waitcnt vmcnt(0)")
    if o.fuse and o.bwb: lds_count(a, vX, XW + 4)
    elif o.fuse: signal_wg(a, vX, 1, XW + 4, 12, "b")
    for u in range(4):
        a(f"v_lshl_or_b32 v{vC+u}, v{vC+2*u+1}, 16, v{vC+2*u}")
    for u in range(4):
        a(f"v_cndmask_b32 v{WA+u}, 0, v{vC+u}, s[88:89]")
        a(f"v_cndmask_b32 v{WBr+u}, v{vC+u}, 0, s[88:89]")
    a("s_mov_b32 s48, 0")
    if o.prof: a("s_mov_b32 s71, 0")
    if o.w2 & 3: warm2(o.w2 & 3)
    a("s_waitcnt lgkmcnt(0)")
    if not o.fuse: a("s_barrier")
    P.stamp()
    if o.w2 >> 2: warm2(o.w2 >> 2)
    if o.w2: a("s_waitcnt vmcnt(0)")
    def reads1(par, i, second):
        oa = par * WSZ + i * WSTR + (128 if second else 0)
        a(f"ds_read_b32 v{vA}, v{bA} offset:{oa}")
        a(f"ds_read_u8 v{vE}, v{bE} offset:{oa+3}")
        a(f"ds_read_u8 v{vE+1}, v{bE} offset:{oa+19}")
    def reads2(par, i, second):
        oc = (par * WSZ + i * WSTR + (128 if second else 0)) // 2
        a(f"v_add_u32 v{vE}, v{vE}, v{vL}")
        a(f"v_add_u32 v{vE+1}, v{vE+1}, v{vL}")
        a(f"ds_read_b64_tr_b16 v[{vM}:{vM+1}], v{vE} offset:{LUT}")
        a(f"ds_read_b64_tr_b16 v[{vM+2}:{vM+3}], v{vE+1} offset:{LUT}")
        a(f"ds_read_b128 v[{vC}:{vC+3}], v{bC} offset:{oc}")
    def addr():
        if o.dbg & 4: a(f"v_and_b32 v{vA}, 0x10ffff, v{vA}")
        a(f"v_mad_u32_u24 v{vA}, v{vA}, 32, v{vH}")
        if o.dbg & 1: a(f"v_mov_b32 v{vA}, 2.0")
    def mfma1(g):
        if o.dbg & 2: return
        a(f"v_mfma_f32_16x16x32_bf16 v[{D1}:{D1+3}], v[{g}:{g+3}], v[{WA}:{WA+3}], 0")
        a(f"v_mfma_f32_16x16x32_bf16 v[{D1+4}:{D1+7}], v[{g}:{g+3}], v[{WBr}:{WBr+3}], 0")
    def mfma2(i, b):
        if o.dbg & 2: return
        for u in range(4): a(f"v_cvt_pk_bf16_f32 v{D1+u}, v{D1+2*u}, v{D1+2*u+1}")
        c = ACC + 4 * i
        a(f"v_mfma_f32_16x16x32_bf16 v[{c}:{c+3}], v[{D1}:{D1+3}], v[{b}:{b+3}], v[{c}:{c+3}]")
    NS = 17
    for par in range(2):
        a(f"P2_round{par}:")
        if not o.flags:
            twait(lambda: a("s_barrier"))
            reads1(par, 0, False)
            a(f"ds_read_b32 v{vX}, v{vCA} offset:{1024*par}")
            a(f"ds_read_b32 v{vX+1}, v{vZ} offset:{FLAG}")
        else:
            def spin():
                a(f"P2_cw{par}:")
                a(f"ds_read_b32 v{vX+1}, v0 offset:{FLAG}")
                reads1(par, 0, False)
                a(f"ds_read_b32 v{vX}, v{vCA} offset:{1024*par}")
                a("s_waitcnt lgkmcnt(4)")
                a(f"v_cmp_ge_u32 vcc, s48, v{vX+1}")
                a(f"v_and_b32 v{vX+1}, 0x3fffffff, v{vX+1}")
                a(f"s_cbranch_vccz P2_cg{par}")
                a(f"s_sleep {o.csleep}")
                a(f"s_branch P2_cw{par}")
                a(f"P2_cg{par}:")
            twait(spin)
            a(f"v_cmp_lt_u32 vcc, s48, v{vX+1}")
            a(f"s_cbranch_vccz P2_drain{1-par}")
        if o.prof and par == 0:
            a("s_cmp_lg_u32 s48, 0"); a("s_cbranch_scc1 P2_nostamp"); P.stamp(); a("P2_nostamp:")
        if par: a(f"v_add_u32 v{vX+2}, {WSZ}, v{vCI}")
        a(f"ds_write_b32 v{vCA}, v{vX+2 if par else vCI} offset:{1024*par}")
        a("s_add_u32 s48, s48, 1")
        for i in range(NS):
            p = (par * NS + i) % 2
            g = G0 + 4 * p; b = B0 + 4 * p
            if o.cprio == 1 and i % 5 == 0 and i < 15: a(f"s_setprio {2 - i // 5}")
            if o.cprio == 2: a(f"s_setprio {2 - i % 3}")
            if o.cprio == 4 and i % 2 == 0: a(f"s_setprio {2 - (i // 2) % 3}")
            if o.cprio == 5 and i % 3 == 0: a(f"s_setprio {2 - (i // 3) % 3}")
            a("s_waitcnt lgkmcnt(0)")
            if i == NS - 1: a(f"v_or_b32 v{vA}, s84, v{vA}")
            addr()
            a(f"s_waitcnt vmcnt({o.dd-1})")
            mfma1(g)
            a(f"buffer_load_dwordx4 v[{g}:{g+3}], v{vA}, s[8:11], 0 offen")
            reads2(par, i, False)
            if i + 1 < NS: reads1(par, i + 1, False)
            if i == 0:
                a(f"v_cmp_le_u32 s[90:91], s85, v{vX}")
                if not o.flags: a(f"v_readfirstlane_b32 s87, v{vX+1}")
            mfma2((i - 2) % NS, b)
            a(f"s_bitcmp1_b32 s90, {i}")
            a(f"s_waitcnt lgkmcnt({3 if i + 1 < NS else 0})")
            for u in range(4): a(f"v_and_b32 v{b+u}, v{vM+u}, v{vC+u}")
            a(f"s_cbranch_scc1 P2_slow{par}_{i}")
            a(f"P2_back{par}_{i}:")
        for u in range(4): a(f"v_mov_b32 v{vX+u}, {MARK}")
        for k in range(4):
            if k == 3: a("s_mov_b64 exec, s[92:93]")
            a(f"ds_write_b128 v{bR}, v[{vX}:{vX+3}] offset:{par*WSZ+1024*k}")
        if o.flags:
            a("s_mov_b64 exec, 1")
            a(f"v_mov_b32 v{vA}, 1")
            a("s_waitcnt lgkmcnt(0)")
            if o.cprio == 3:
                a(f"ds_add_rtn_u32 v{vA}, v{vZ}, v{vA} offset:{FLC+4*par}")
                a("s_sub_u32 s40, s48, 1")
                a("s_lshr_b32 s40, s40, 1")
                a("s_mul_i32 s40, s40, 12")
                a("s_waitcnt lgkmcnt(0)")
                a(f"v_readfirstlane_b32 s41, v{vA}")
                a("s_sub_u32 s41, s41, s40")
                a("s_setprio 0")
                a("s_cmp_lt_u32 s41, 4")
                a(f"s_cbranch_scc1 P2_pr{par}")
                a("s_setprio 1")
                a("s_cmp_lt_u32 s41, 8")
                a(f"s_cbranch_scc1 P2_pr{par}")
                a("s_setprio 2")
                a(f"P2_pr{par}:")
            else:
                a(f"ds_add_u32 v{vZ}, v{vA} offset:{FLC+4*par}")
            a("s_mov_b64 exec, -1")
            if par: a("s_branch P2_round0")
            continue
        a("s_mov_b64 exec, -1")
        a("s_cmp_ge_u32 s87, s48")
        a("s_waitcnt lgkmcnt(0)")
        if par == 0:
            a("s_cbranch_scc0 P2_drain0")
        else:
            a("s_cbranch_scc1 P2_round0")
    def drain(par):
        a("s_waitcnt lgkmcnt(0)")
        for i in (NS, NS + 1):
            p = (par * NS + i) % 2
            a(f"s_waitcnt vmcnt({NS+1-i})")
            mfma1(G0 + 4 * p)
            mfma2(i - 2, B0 + 4 * p)
    a("P2_drain1:")
    drain(1)
    a("s_branch P2_epi")
    for par in range(2):
        for i in range(NS):
            a(f"P2_slow{par}_{i}:")
            reads1(par, i, True)
            a("s_waitcnt lgkmcnt(0)")
            a("s_mov_b64 exec, s[94:95]")
            a(f"v_mov_b32 v{vA}, {MARK}")
            a("s_mov_b64 exec, -1")
            addr()
            a(f"buffer_load_dwordx4 v[{vX}:{vX+3}], v{vA}, s[8:11], 0 offen")
            reads2(par, i, True)
            if i + 1 < NS: reads1(par, i + 1, False)
            a(f"s_waitcnt lgkmcnt({3 if i + 1 < NS else 0})")
            for u in range(4): a(f"v_and_b32 v{vM+u}, v{vM+u}, v{vC+u}")
            a("s_waitcnt vmcnt(0)")
            mfma1(vX)
            mfma2(i, vM)
            a(f"s_branch P2_back{par}_{i}")
    a("P2_drain0:")
    drain(0)
    a("P2_epi:")
    P.stamp()
    vOff = 1; vOo = 2; vDo = 3; DS = 4
    WS_ = 16; WR_ = 20; WU = 24; CEN = 26
    M0 = 30
    X = 38
    a("s_load_dwordx2 s[6:7], s[0:1], 24")
    a("s_load_dwordx2 s[34:35], s[0:1], 40")
    a("s_load_dwordx8 s[36:43], s[0:1], 56")
    a("s_load_dwordx2 s[44:45], s[0:1], 88")
    a(f"s_lshl_b32 s51, s49, 8")
    a(f"s_add_u32 s51, s51, s46")
    a(f"s_lshl_b32 s51, s51, 4")
    a(f"v_add_u32 v{vOff}, s51, v13")
    a(f"v_lshrrev_b32 v{X}, 1, v14")
    a(f"v_lshl_add_u32 v{vDo}, v{X}, 12, v{vOff}")
    a(f"v_lshlrev_b32 v{vDo}, 1, v{vDo}")
    a(f"v_lshlrev_b32 v{vOff}, 5, v{vOff}")
    a(f"v_lshl_add_u32 v{vOff}, v14, 3, v{vOff}")
    a(f"v_mov_b32 v{vOo}, v{vOff}")
    a(f"v_lshlrev_b32 v{X+1}, 7, v14")
    a(f"v_lshl_add_u32 v{X+1}, v13, 1, v{X+1}")
    a(f"v_and_b32 v{X+2}, 0xff, v{X+1}")
    a(f"v_and_b32 v{X+3}, 1, v14")
    a(f"v_lshlrev_b32 v{X+3}, 3, v{X+3}")
    a("s_waitcnt lgkmcnt(0)")
    srd(a, 20, 44, E * 32)
    srd(a, 24, 6, E * 2)
    srd(a, 28, 42, 512)
    for c in range(4): a(f"buffer_load_ushort v{X+4+c}, v{X+1}, s[28:31], 0 offen offset:{32*c}")
    srd(a, 12, 38, 256)
    for c in range(4): a(f"buffer_load_ushort v{X+8+c}, v{X+2}, s[12:15], 0 offen offset:{32*c}")
    srd(a, 16, 36, 256)
    for c in range(4): a(f"buffer_load_ushort v{X+12+c}, v{X+2}, s[16:19], 0 offen offset:{32*c}")
    srd(a, 52, 34, 16)
    for c in range(4): a(f"buffer_load_ushort v{CEN+c}, v{X+3}, s[52:55], 0 offen offset:{2*c}")
    for k in range(9):
        a(f"buffer_load_ushort v{DS+k}, v{vDo}, s[24:27], 0 offen")
        a(f"v_add_u32 v{vDo}, {2*4096*2}, v{vDo}")
    def mload(i):
        m = M0 + 2 * (i % 4)
        a(f"buffer_load_dwordx2 v[{m}:{m+1}], v{vOff}, s[8:11], 0 offen")
        a(f"v_add_u32 v{vOff}, {4096*32}, v{vOff}")
    for i in range(4): mload(i)
    a("s_mov_b32 s84, 0xffff0000")
    a("s_mov_b32 s85, 0xc1200000")
    a("s_mov_b32 s86, 0x3fb8aa3b")
    a("s_waitcnt vmcnt(4)")
    for u in range(2):
        a(f"v_lshl_or_b32 v{WU+u}, v{X+5+2*u}, 16, v{X+4+2*u}")
        a(f"v_lshl_or_b32 v{X+8+u}, v{X+9+2*u}, 16, v{X+8+2*u}")
        a(f"v_lshl_or_b32 v{X+12+u}, v{X+13+2*u}, 16, v{X+12+2*u}")
    for u in range(2):
        a(f"v_cndmask_b32 v{WS_+u}, 0, v{X+8+u}, s[88:89]")
        a(f"v_cndmask_b32 v{WS_+2+u}, v{X+8+u}, 0, s[88:89]")
        a(f"v_cndmask_b32 v{WR_+u}, 0, v{X+12+u}, s[88:89]")
        a(f"v_cndmask_b32 v{WR_+2+u}, v{X+12+u}, 0, s[88:89]")
    for c in range(4): a(f"v_lshlrev_b32 v{CEN+c}, 16, v{CEN+c}")
    RB = X; t = X + 2; SS = X + 6; GG = X + 10; AG = X + 14; UU = X + 16; OT = X + 20
    def rnd():
        for u in range(2):
            a(f"v_cvt_pk_bf16_f32 v{t+2*u+1}, v{t+2*u}, v{t+2*u+1}")
        for u in range(2):
            a(f"v_lshlrev_b32 v{t+2*u}, 16, v{t+2*u+1}")
            a(f"v_and_b32 v{t+2*u+1}, s84, v{t+2*u+1}")
    for i in range(NS):
        if i == 16:
            a("s_cmp_lt_u32 s50, 17")
            a("s_cbranch_scc1 P2_fin")
        if i % 2 == 0:
            d = DS + i // 2
            a(f"v_lshlrev_b32 v{d}, 16, v{d}")
            for c in range(4): a(f"v_sub_f32 v{t+c}, v{d}, v{CEN+c}")
            rnd()
            for c in range(4): a(f"v_mul_f32 v{t+c}, v{t+c}, v{t+c}")
            rnd()
            for c in range(4): a(f"v_mul_f32 v{t+c}, s85, v{t+c}")
            rnd()
            for c in range(4): a(f"v_mul_f32 v{t+c}, s86, v{t+c}")
            for c in range(4): a(f"v_exp_f32 v{t+c}, v{t+c}")
            for u in range(2): a(f"v_cvt_pk_bf16_f32 v{RB+u}, v{t+2*u}, v{t+2*u+1}")
        h = 2 * (i % 2); c0 = ACC + 4 * i; m = M0 + 2 * (i % 4)
        a(f"v_mfma_f32_16x16x16_bf16 v[{SS}:{SS+3}], v[{WS_+h}:{WS_+h+1}], v[{RB}:{RB+1}], 0")
        a(f"v_mfma_f32_16x16x16_bf16 v[{GG}:{GG+3}], v[{WR_+h}:{WR_+h+1}], v[{RB}:{RB+1}], 0")
        nl = min(3, NS - 1 - i); ns = min(3, i)
        a(f"s_waitcnt vmcnt({nl + ns if i + 3 < NS else nl})")
        a(f"v_lshlrev_b32 v{t}, 16, v{m}")
        a(f"v_and_b32 v{t+1}, s84, v{m}")
        a(f"v_lshlrev_b32 v{t+2}, 16, v{m+1}")
        a(f"v_and_b32 v{t+3}, s84, v{m+1}")
        for c in range(4): a(f"v_mul_f32 v{SS+c}, v{SS+c}, v{c0+c}")
        for u in range(2): a(f"v_cvt_pk_bf16_f32 v{AG+u}, v{SS+2*u}, v{SS+2*u+1}")
        a(f"v_mfma_f32_16x16x16_bf16 v[{UU}:{UU+3}], v[{WU}:{WU+1}], v[{AG}:{AG+1}], 0")
        for c in range(4): a(f"v_fma_f32 v{t+c}, v{UU+c}, v{GG+c}, v{t+c}")
        for u in range(2): a(f"v_cvt_pk_bf16_f32 v{OT+u}, v{t+2*u}, v{t+2*u+1}")
        a(f"buffer_store_dwordx2 v[{OT}:{OT+1}], v{vOo}, s[20:23], 0 offen {o.ost}")
        a(f"v_add_u32 v{vOo}, {4096*32}, v{vOo}")
        if i + 4 < NS: mload(i + 4)
    a("P2_fin:")
    if o.prof:
        P.stamp()
        a("s_waitcnt vmcnt(0)")
        P.stamp()
        P.dump(32, 0x80000, X, 3)
    a("P2_end:")
    a("s_endpgm")
    return LDS

KD = """.amdhsa_kernel {name}
  .amdhsa_next_free_vgpr 128
  .amdhsa_next_free_sgpr 96
  .amdhsa_accum_offset 128
  .amdhsa_group_segment_fixed_size 0
  .amdhsa_kernarg_size 112
  .amdhsa_user_sgpr_count 2
  .amdhsa_user_sgpr_kernarg_segment_ptr 1
  .amdhsa_system_sgpr_workgroup_id_x 1
  .amdhsa_float_denorm_mode_32 3
.end_amdhsa_kernel
"""

NAME = "gather_scatter__molecular_angular_gemnet__graph_kernel"

def build(o):
    if o.fuse:
        a = Asm(); P = Prof(a, o.prof, 1)
        xw, stg = gen_p1(o, a, P); gen_p2(o, a, P, xw, stg)
        ks = [(NAME, a.finish(), xw + 32)]
    else:
        a = Asm(); l1, _ = gen_p1(o, a, Prof(a, o.prof))
        b = Asm(); l2 = gen_p2(o, b, Prof(b, o.prof), 0, 0)
        ks = [("gemnet_p1_kernel", a.finish(), l1), ("gemnet_p2_kernel", b.finish(), l2)]
    ref = open("gather_scatter__molecular_angular_gemnet__graph.s.ref").read().split("\n")
    head = [l for l in ref if l.startswith(";") and "launch geometry" not in l and "Harness parses" not in l and "@launch" not in l]
    s = "\n".join(head) + "\n"
    s += "; Part 1 partitions the triplets by (input slice, output bin); part 2 gathers / segment-sums with MFMA.\n"
    for n, b, l in ks:
        s += f"; @launch {'' if o.fuse else 'kernel=' + n + ' '}grid=(256,1,1) block=(1024,1,1) lds={l}\n"
    s += '.amdgcn_target "amdgcn-amd-amdhsa--gfx950"\n.text\n'
    for n, b, l in ks:
        s += f".globl {n}\n.p2align 8\n.type {n},@function\n{n}:\n" + b
    s += '.section .rodata,"a"\n'
    for n, b, l in ks:
        s += ".p2align 6\n" + KD.format(name=n)
    return s

def parser():
    p = argparse.ArgumentParser()
    p.add_argument("-S", type=int, default=10)
    p.add_argument("--prof", type=int, default=0)
    p.add_argument("--maxr", type=int, default=0)
    p.add_argument("--dbg", type=int, default=0)
    p.add_argument("--warm", type=int, default=0)
    p.add_argument("--defer", type=int, default=4)
    p.add_argument("--cmap", type=int, default=2)
    p.add_argument("--early", type=int, default=8)
    p.add_argument("--bwb", type=int, default=0)
    p.add_argument("--ost", default="")
    p.add_argument("--sw", type=int, default=0)
    p.add_argument("--swd", type=int, default=0)
    p.add_argument("--rot", type=int, default=0)
    p.add_argument("--ffill", type=int, default=0)
    p.add_argument("--w2", type=int, default=0)
    p.add_argument("--dd", type=int, default=2)
    p.add_argument("--thr", type=int, default=-1)
    p.add_argument("--aearly", type=int, default=0)
    p.add_argument("--dstep", type=int, default=4)
    p.add_argument("--fuse", type=int, default=0)
    p.add_argument("--gsleep", type=int, default=4)
    p.add_argument("--maxpoll", type=int, default=1000000)
    p.add_argument("--flags", type=int, default=1)
    p.add_argument("--psleep", type=int, default=2)
    p.add_argument("--csleep", type=int, default=2)
    p.add_argument("--asplit", type=int, default=8)
    p.add_argument("--p1_dst", default="")
    p.add_argument("--p1_ld", default="nt")
    p.add_argument("--p1_st", default="sc1")
    p.add_argument("--p2_rec", default="sc1")
    p.add_argument("--prio", type=int, default=3)
    p.add_argument("--cprio", type=int, default=3)
    p.add_argument("-o", default="gather_scatter__molecular_angular_gemnet__graph.s")
    return p

if __name__ == "__main__":
    o = parser().parse_args()
    open(o.o, "w").write(build(o))
```

```python
import sys, argparse
from asmlib import Asm

E = 800000; T = 12800000
NT = 256
CHA = 25088
TILE_N = 50000
TILE_BYTES = 300032
WS_DESC = 0x5000000
WS_PROF = 0x6000000
CAP = 56
WSTR = CAP * 4
MARK = 0x00100000
NG = 196

def srd(a, d, base, size, off=None):
    if off is None:
        a(f"s_mov_b32 s{d}, s{base}")
        a(f"s_mov_b32 s{d+1}, s{base+1}")
    else:
        a(f"s_add_u32 s{d}, s{base}, {off}")
        a(f"s_addc_u32 s{d+1}, s{base+1}, 0")
    a(f"s_mov_b32 s{d+2}, {size}")
    a(f"s_mov_b32 s{d+3}, 0x20000")

class Prof:
    def __init__(self, a, on, fuse=0): self.a = a; self.on = on; self.n = 0; self.fuse = fuse
    def stamp(self, fused_too=True):
        if not self.on or (self.fuse and not fused_too): return
        a = self.a
        a("s_waitcnt lgkmcnt(0)")
        a("s_memtime s[58:59]")
        a("s_waitcnt lgkmcnt(0)")
        a(f"s_mov_b32 s{60+self.n}, s58")
        a("s_memrealtime s[58:59]")
        a("s_waitcnt lgkmcnt(0)")
        a(f"s_mov_b32 s{72+self.n}, s58")
        self.n += 1
    def dump(self, wsreg, region, vt, wave_sreg):
        if self.on != 1: return
        a = self.a
        srd(a, 52, wsreg, 0x100000, WS_PROF + region)
        a(f"s_lshl_b32 s56, s2, 4")
        a(f"s_add_u32 s56, s56, s{wave_sreg}")
        a(f"s_lshl_b32 s56, s56, 7")
        a("s_mov_b64 exec, 1")
        for i in range(self.n):
            a(f"v_mov_b32 v{vt}, s56")
            a(f"v_mov_b32 v{vt+1}, s{60+i}")
            a(f"buffer_store_dword v{vt+1}, v{vt}, s[52:55], 0 offen offset:{4*i}")
            a(f"v_mov_b32 v{vt+1}, s{72+i}")
            a(f"buffer_store_dword v{vt+1}, v{vt}, s[52:55], 0 offen offset:{64+4*i}")
        a(f"v_mov_b32 v{vt+1}, s71")
        a(f"buffer_store_dword v{vt+1}, v{vt}, s[52:55], 0 offen offset:124")
        a("s_waitcnt vmcnt(0)")
        a("s_mov_b64 exec, -1")

def gen_p1(o, a, P):
    S = o.S
    NK = S * 256
    KSL = (S << 26) // E
    CN = 16; SCR = CN + NK * 4; STG = SCR + 64; XW = STG + CHA * 6
    W0 = 4; KP0 = 53; C0 = 78; TO = 103; T0 = 104
    ld = o.p1_ld; st = o.p1_st
    a("s_cmp_ge_u32 s2, 256")
    a("s_cbranch_scc1 " + ("P2_end" if o.fuse else "P1_end"))
    a("s_load_dwordx4 s[4:7], s[0:1], 8")
    a("s_load_dwordx2 s[28:29], s[0:1], 32")
    a("s_load_dwordx2 s[30:31], s[0:1], 48")
    a("s_load_dwordx2 s[32:33], s[0:1], 104")
    a("s_load_dwordx2 s[46:47], s[0:1], 0")
    a("s_load_dwordx2 s[94:95], s[0:1], 96")
    a("v_lshlrev_b32 v1, 4, v0")
    a("v_lshlrev_b32 v2, 3, v0")
    a("v_mov_b32 v3, 1")
    for i in range(4): a(f"v_mov_b32 v{T0+i}, 0")
    a(f"ds_write_b128 v1, v[{T0}:{T0+3}]")
    a("v_lshrrev_b32 v127, 6, v0")
    a("v_readfirstlane_b32 s3, v127")
    a(f"s_mul_i32 s34, s2, 848")
    a(f"s_add_u32 s34, s34, {3072*4096}")
    a(f"v_add_u32 v109, s34, v0")
    a(f"v_cmp_gt_u32 vcc, 848, v0")
    a(f"v_lshlrev_b32 v110, 2, v109")
    a(f"v_lshlrev_b32 v109, 1, v109")
    a(f"v_cndmask_b32 v110, 2.0, v110, vcc")
    a(f"v_cndmask_b32 v109, 2.0, v109, vcc")
    a("s_waitcnt lgkmcnt(0)")
    P.stamp()
    srd(a, 8, 4, T * 4); srd(a, 12, 6, T * 4); srd(a, 16, 28, T * 2)
    a("s_load_dword s35, s[30:31], 0")
    if o.cmap == 0:
        a("s_mov_b32 s36, s2")
    elif o.cmap == 1:
        a("s_and_b32 s36, s2, 7")
        a("s_lshl_b32 s36, s36, 5")
        a("s_lshr_b32 s37, s2, 3")
        a("s_add_u32 s36, s36, s37")
    else:
        a("s_mul_i32 s36, s2, 12")
    a("s_lshl_b32 s37, s36, 13")
    a("s_lshl_b32 s36, s36, 14")
    cstep = 1 if o.cmap == 2 else 256
    a(f"buffer_load_dword v{TO}, v110, s[12:15], 0 offen {ld}")
    a(f"buffer_load_dword v{W0+48}, v110, s[8:11], 0 offen {ld}")
    a(f"buffer_load_ushort v{C0+24}, v109, s[16:19], 0 offen {ld}")
    def issue_idx(r):
        b = C0 + 4 * (r % 6); w = W0 + 4 * r
        a(f"buffer_load_dwordx4 v[{b}:{b+3}], v1, s[12:15], s36 offen {ld}")
        a(f"buffer_load_dwordx4 v[{w}:{w+3}], v1, s[8:11], s36 offen {ld}")
        a(f"s_add_u32 s36, s36, {cstep*16384}")
    def issue_ang(r):
        b = C0 + 2 * r
        a(f"buffer_load_dwordx2 v[{b}:{b+1}], v2, s[16:19], s37 offen {ld}")
        a(f"s_add_u32 s37, s37, {cstep*8192}")
    for r in range(6): issue_idx(r)
    a("s_mov_b32 s38, 0x7c00")
    a(f"s_mov_b32 s39, {KSL}")
    a(f"v_mov_b32 v{T0+20}, 0x3fc")
    a(f"v_mov_b32 v{T0+21}, 0x0ff00000")
    a("s_waitcnt lgkmcnt(0)")
    a("s_lshl_b32 s35, s35, 16")
    a("s_barrier")
    def key(O, W, t0, t1):
        if o.rot:
            a(f"v_lshlrev_b32 v{t0}, 17, v{O}")
            a(f"v_and_b32 v{t0}, {7 << 26}, v{t0}")
            a(f"v_mad_u32_u24 v{t0}, v{W}, s39, v{t0}")
        else:
            a(f"v_mul_u32_u24 v{t0}, {KSL}, v{W}")
        a(f"v_lshlrev_b32 v{t1}, 8, v{O}")
        a(f"v_lshl_or_b32 v{W}, v{O}, 28, v{W}")
        a(f"v_and_b32_sdwa v{t0}, v{t0}, s38 dst_sel:DWORD dst_unused:UNUSED_PAD src0_sel:WORD_1 src1_sel:DWORD")
        a(f"v_lshrrev_b32 v{O}, 2, v{O}")
        a(f"v_bitop3_b32 v{W}, v{t1}, v{T0+21}, v{W} bitop3:0xea")
        if o.rot:
            a(f"v_subrev_u32 v{t1}, {S*1024}, v{t0}")
            a(f"v_min_u32 v{t0}, v{t0}, v{t1}")
        a(f"v_bitop3_b32 v{O}, v{O}, v{T0+20}, v{t0} bitop3:0xea")
    for r in range(12):
        a(f"s_waitcnt vmcnt({min(10, 2*(11-r))})")
        if r == 0:
            key(TO, W0 + 48, T0, T0 + 1)
            a(f"v_cndmask_b32 v{KP0+24}, 2.0, v{TO}, vcc")
            a(f"ds_add_u32 v{KP0+24}, v3 offset:{CN}")
        b = C0 + 4 * (r % 6)
        for j in range(4):
            key(b + j, W0 + 4 * r + j, T0 + 2 * j, T0 + 2 * j + 1)
            a(f"ds_add_u32 v{b+j}, v3 offset:{CN}")
        a(f"v_lshl_or_b32 v{KP0+2*r}, v{b+1}, 16, v{b}")
        a(f"v_lshl_or_b32 v{KP0+2*r+1}, v{b+3}, 16, v{b+2}")
        if r < 6: issue_idx(r + 6)
    if o.aearly:
        a(f"s_cmp_ge_u32 s3, {o.aearly}")
        a("s_cbranch_scc1 P1_ang0")
        for n in range(12): issue_ang(n)
        a("P1_ang0:")
    a("s_waitcnt lgkmcnt(0)")
    a("s_barrier")
    P.stamp()
    c = T0; x = T0 + 4; tot = T0 + 5; y = T0 + 6
    a(f"s_cmp_ge_u32 s3, {S}")
    a("s_cbranch_scc1 P1_scan1")
    a(f"ds_read_b128 v[{c}:{c+3}], v1 offset:{CN}")
    a("s_waitcnt lgkmcnt(0)")
    a(f"v_add_u32 v{c+1}, v{c}, v{c+1}")
    a(f"v_add_u32 v{c+2}, v{c+1}, v{c+2}")
    a(f"v_add_u32 v{c+3}, v{c+2}, v{c+3}")
    a(f"v_mov_b32 v{x}, v{c+3}")
    for sh in (1, 2, 4, 8):
        a(f"v_add_u32_dpp v{x}, v{x}, v{x} row_shr:{sh} row_mask:0xf bank_mask:0xf bound_ctrl:1")
    a(f"v_add_u32_dpp v{x}, v{x}, v{x} row_bcast:15 row_mask:0xa bank_mask:0xf")
    a(f"v_add_u32_dpp v{x}, v{x}, v{x} row_bcast:31 row_mask:0xc bank_mask:0xf")
    a(f"v_readlane_b32 s40, v{x}, 63")
    a(f"s_lshl_b32 s41, s3, 2")
    a(f"v_mov_b32 v{y}, s41")
    a(f"v_mov_b32 v{y+1}, s40")
    a(f"ds_write_b32 v{y}, v{y+1} offset:{SCR}")
    a("s_waitcnt lgkmcnt(0)")
    a("P1_scan1:")
    a("s_barrier")
    a(f"s_cmp_ge_u32 s3, {S}")
    a("s_cbranch_scc1 P1_scan2")
    a(f"v_and_b32 v{y}, 63, v0")
    a(f"v_lshlrev_b32 v{y+1}, 2, v{y}")
    a(f"ds_read_b32 v{y+2}, v{y+1} offset:{SCR}")
    a(f"v_cmp_gt_u32 s[42:43], s3, v{y}")
    a(f"v_sub_u32 v{x}, v{x}, v{c+3}")
    a("s_waitcnt lgkmcnt(0)")
    a(f"v_cndmask_b32 v{y+2}, 0, v{y+2}, s[42:43]")
    for sh in (1, 2, 4, 8):
        a(f"v_add_u32_dpp v{y+2}, v{y+2}, v{y+2} row_shr:{sh} row_mask:0xf bank_mask:0xf bound_ctrl:1")
    a(f"v_readlane_b32 s40, v{y+2}, 15")
    s0 = T0 + 12
    a(f"v_add_u32 v{s0}, s40, v{x}")
    for j in range(3): a(f"v_add_u32 v{s0+1+j}, v{s0}, v{c+j}")
    a(f"ds_write_b128 v1, v[{s0}:{s0+3}] offset:{CN}")
    a("s_waitcnt lgkmcnt(0)")
    a("P1_scan2:")
    a("s_barrier")
    P.stamp(False)
    def atomics(n):
        t = T0 + 4 * (n % 2)
        if n == 12:
            a(f"ds_add_rtn_u32 v{t}, v{KP0+24}, v3 offset:{CN}"); return 1
        for j in range(4):
            kp = KP0 + 2 * n + j // 2
            if j % 2 == 0: a(f"v_and_b32 v{t+j}, 0xffff, v{kp}")
            else: a(f"v_lshrrev_b32 v{t+j}, 16, v{kp}")
            a(f"ds_add_rtn_u32 v{t+j}, v{t+j}, v3 offset:{CN}")
        return 4
    assert o.aearly <= o.asplit
    a(f"s_cmp_ge_u32 s3, {o.asplit}")
    a("s_cbranch_scc1 P1_ang1")
    a(f"s_cmp_lt_u32 s3, {o.aearly}")
    a("s_cbranch_scc1 P1_ang1")
    for n in range(12): issue_ang(n)
    a("P1_ang1:")
    atomics(0)
    for n in range(13):
        k = atomics(n + 1) if n < 12 else 0
        a(f"s_waitcnt lgkmcnt({k})")
        t = T0 + 4 * (n % 2); u = T0 + 8
        if n < 12:
            a(f"v_lshl_or_b32 v{KP0+2*n}, v{t+1}, 16, v{t}")
            a(f"v_lshl_or_b32 v{KP0+2*n+1}, v{t+3}, 16, v{t+2}")
        else:
            a(f"v_mov_b32 v{u}, 0xffff")
            a(f"v_cndmask_b32 v{KP0+24}, v{u}, v{t}, vcc")
    a(f"s_cmp_lt_u32 s3, {o.asplit}")
    a("s_cbranch_scc1 P1_ang2")
    for n in range(12): issue_ang(n)
    a("P1_ang2:")
    P.stamp(False)
    srd(a, 24, 32, NT * NT * S * 4, WS_DESC)
    srd(a, 48, 46, E * 32)
    def warm():
        a("s_cmp_lt_u32 s3, 3")
        a("s_cbranch_scc1 P1_nowarm")
        a("s_mul_i32 s40, s2, 782")
        a("s_sub_u32 s40, s40, 192")
        a(f"v_add_u32 v3, s40, v0")
        a(f"v_lshlrev_b32 v3, 7, v3")
        a(f"buffer_load_dword v3, v3, s[48:51], 0 offen")
        a("P1_nowarm:")
    a("s_cmp_eq_u32 s35, 1.0")
    a("s_cbranch_scc1 P1_f1")
    a("s_waitcnt vmcnt(0)")
    for n in range(25):
        cr = C0 + n; t = T0
        a(f"v_lshlrev_b32 v{t}, 16, v{cr}")
        a(f"v_and_b32 v{t+1}, 0xffff0000, v{cr}")
        a(f"v_mul_f32 v{t}, s35, v{t}")
        a(f"v_mul_f32 v{t+1}, s35, v{t+1}")
        a(f"v_cvt_pk_bf16_f32 v{cr}, v{t}, v{t+1}")
    a("P1_f1:")
    MG = -(-(1 << 19) // S)
    assert all((n * MG) >> 19 == n // S for n in range(4096))
    a(f"s_mov_b32 s40, {(-(1024*S - 4)) & 0xffffffff}")
    for j in range(4):
        t = T0 + 12 + j
        a(f"v_lshl_add_u32 v{t}, v0, 2, {j}")
        a(f"v_mul_u32_u24 v{T0}, {MG}, v{t}")
        a(f"v_lshrrev_b32 v{T0}, 19, v{T0}")
        a(f"v_lshlrev_b32 v{t}, 10, v{t}")
        a(f"v_mad_i32_i24 v{t}, v{T0}, s40, v{t}")
    def addrs(n, h, u, base):
        a(f"v_mad_u32_u16 v{u}, v{KP0+n}, 6, {base}" + (" op_sel:[1,0,0,0]" if h else ""))
        a(f"v_and_b32 v{u+1}, 2, v{u}")
        a(f"v_sub_u32 v{u}, v{u}, v{u+1}")
        a(f"v_sub_u32 v{u+1}, v{u}, v{u+1}")
    for n in range(25):
        cr = C0 + n; t = T0 + 6 * (n % 2)
        if n % 2 == 0 and n < 24: a(f"s_waitcnt vmcnt({11 - n // 2})")
        if n == 24 and o.warm == 1: warm()
        a(f"v_lshlrev_b32 v{t}, 16, v{cr}")
        a(f"v_and_b32 v{t+1}, 0xffff0000, v{cr}")
        a(f"v_mul_f32 v{t}, 0.15915494, v{t}")
        a(f"v_mul_f32 v{t+1}, 0.15915494, v{t+1}")
        a(f"v_fract_f32 v{t}, v{t}")
        a(f"v_fract_f32 v{t+1}, v{t+1}")
        a(f"v_cos_f32 v{t}, v{t}")
        a(f"v_cos_f32 v{t+1}, v{t+1}")
        for h in range(2 if n < 24 else 1):
            u = t + 2 + 2 * h
            addrs(n, h, u, 0)
            a(f"ds_write_b32 v{u}, v{W0+2*n+h} offset:{STG}")
        a(f"v_cvt_pk_bf16_f32 v{cr}, v{t}, v{t+1}")
        a(f"ds_write_b16 v{t+3}, v{cr} offset:{STG+8}")
        if n < 24: a(f"ds_write_b16_d16_hi v{t+5}, v{cr} offset:{STG+8}")
    def store(k):
        t = T0 + 4 * (k % 6)
        a(f"buffer_store_dwordx4 v[{t}:{t+3}], v{TO}, s[20:23], 0 offen {st}")
        a(f"v_subrev_u32 v{TO}, 16384, v{TO}")
    def copyout(ch, nnow):
        nbytes = CHA * 6 if ch == 0 else (TILE_N - CHA) * 6
        a(f"s_mul_i32 s40, s2, {TILE_BYTES}")
        if ch: a(f"s_add_u32 s40, s40, {CHA*6}")
        srd(a, 20, 32, nbytes, "s40")
        a(f"v_add_u32 v2, {9*16384}, v1")
        a(f"v_add_u32 v{TO}, {9*16384}, v1")
        a("s_waitcnt lgkmcnt(0)")
        a("s_barrier")
        P.stamp()
        if ch == 0:
            a(f"s_cmp_ge_u32 s3, {S}")
            a("s_cbranch_scc1 P1_nodesc")
            for j in range(4):
                a(f"ds_read2_b32 v[{T0+2*j}:{T0+2*j+1}], v{T0+12+j} offset0:{CN//4-1} offset1:{CN//4}")
            a(f"s_mul_i32 s40, s2, {256*S*4}")
            a("s_waitcnt lgkmcnt(0)")
            for j in range(4): a(f"v_lshl_or_b32 v{T0+j}, v{T0+2*j+1}, 16, v{T0+2*j}")
            a(f"buffer_store_dwordx4 v[{T0}:{T0+3}], v1, s[24:27], s40 offen {st}")
            a("s_nop 1")
            a("P1_nodesc:")
            if o.fuse:
                a(f"v_mov_b32 v3, {XW}")
                for j in range(4): a(f"v_mov_b32 v{T0+20+j}, 0")
                a(f"ds_write_b128 v3, v[{T0+20}:{T0+23}]")
                a(f"ds_write_b128 v3, v[{T0+20}:{T0+23}] offset:16")
                srd(a, 24, 94, 256)
        def rd(k):
            t = T0 + 4 * (k % 6)
            a(f"ds_read_b128 v[{t}:{t+3}], v2 offset:{STG}")
            a(f"v_subrev_u32 v2, 16384, v2")
        for k in range(6): rd(k)
        for k in range(nnow):
            a(f"s_waitcnt lgkmcnt({min(5, 9-k)})")
            store(k)
            if k + 6 < 10: rd(k + 6)
    nnow = 10 - o.defer
    copyout(0, nnow)
    a(f"s_mov_b32 s45, {(-CHA*6) & 0xffffffff}")
    if o.fuse: a(f"s_waitcnt vmcnt({nnow})")
    a("s_waitcnt lgkmcnt(0)")
    a("s_barrier")
    P.stamp()
    if o.fuse:
        a("v_mov_b32 v2, 0")
        a("v_mov_b32 v3, 0")
        a("s_cmp_lg_u32 s3, 0")
        a("s_cbranch_scc1 P1_nod")
        arrive(a, 2, 2)
        a("P1_nod:")
        while nnow < 10:
            store(nnow); nnow += 1
        a(f"s_cmp_lt_u32 s3, {o.early}")
        a("s_cbranch_scc1 P2_nosiga0")
        a("s_waitcnt vmcnt(0)")
        signal_wg(a, 2, 0, XW + 8, 16, "a0")
    for n in range(25):
        if n == 20 and o.warm == 2: warm()
        if n % o.dstep == (1 if o.dstep > 1 else 0) and nnow < 10:
            store(nnow); nnow += 1
        for h in range(2 if n < 24 else 1):
            u = T0 + 16 + 2 * ((2 * n + h) % 4)
            addrs(n, h, u, "s45")
            a(f"ds_write_b32 v{u}, v{W0+2*n+h} offset:{STG}")
            a(f"ds_write_b16{'_d16_hi' if h else ''} v{u+1}, v{C0+n} offset:{STG+8}")
    assert nnow == 10
    if o.fuse:
        lds_count(a, 4, XW + 12)
        a(f"s_cmp_ge_u32 s3, {o.early}")
        a("s_cbranch_scc1 P2_nosiga1")
        release(a, 2, 2, "d")
        signal_wg(a, 2, 0, XW + 8, 16, "a1")
        a(f"s_mul_i32 s40, s2, {TILE_BYTES}")
        a(f"s_add_u32 s40, s40, {CHA*6}")
        srd(a, 20, 32, (TILE_N - CHA) * 6, "s40")
        return XW, STG
    copyout(1, 10)
    if o.prof:
        P.stamp()
        a("s_waitcnt vmcnt(0)")
        P.stamp()
        P.dump(32, 0, T0, 3)
    a("P1_end:")
    a("s_endpgm")
    return XW, STG

def arrive(a, t, level):
    a(f"v_mov_b32 v{t}, 0")
    a(f"v_mov_b32 v{t+1}, 1")
    a("s_mov_b64 exec, 1")
    a(f"buffer_atomic_add v{t+1}, v{t}, s[24:27], 0 offen offset:{32*level} sc0 sc1")
    a("s_mov_b64 exec, -1")

def release(a, t, level, tag):
    a("s_waitcnt vmcnt(0)")
    a(f"v_readfirstlane_b32 s40, v{t+1}")
    a("s_cmp_lg_u32 s40, 255")
    a(f"s_cbranch_scc1 P2_norel{tag}")
    a("s_mov_b64 exec, 1")
    a(f"buffer_store_dword v{t+1}, v{t}, s[24:27], 0 offen offset:{128+4*level} sc1")
    a("s_mov_b64 exec, -1")
    a(f"P2_norel{tag}:")

def lds_count(a, t, word):
    a(f"v_mov_b32 v{t}, {word}")
    a(f"v_mov_b32 v{t+1}, 1")
    a("s_mov_b64 exec, 1")
    a("s_waitcnt lgkmcnt(0)")
    a(f"ds_add_u32 v{t}, v{t+1}")
    a("s_mov_b64 exec, -1")

def lds_wait(a, t, word, n, tag, sleep):
    a(f"v_mov_b32 v{t}, {word}")
    a(f"P2_lw{tag}:")
    a(f"ds_read_b32 v{t+1}, v{t}")
    a("s_waitcnt lgkmcnt(0)")
    a(f"v_readfirstlane_b32 s40, v{t+1}")
    a(f"s_cmp_ge_u32 s40, {n}")
    a(f"s_cbranch_scc1 P2_lg{tag}")
    if sleep: a(f"s_sleep {sleep}")
    a(f"s_branch P2_lw{tag}")
    a(f"P2_lg{tag}:")

def signal_wg(a, t, level, word, nw, tag):
    a(f"v_mov_b32 v{t}, {word}")
    a(f"v_mov_b32 v{t+1}, 1")
    a("s_mov_b64 exec, 1")
    a(f"ds_add_rtn_u32 v{t+1}, v{t}, v{t+1}")
    a("s_mov_b64 exec, -1")
    a("s_waitcnt lgkmcnt(0)")
    a(f"v_readfirstlane_b32 s40, v{t+1}")
    a(f"s_cmp_lg_u32 s40, {nw-1}")
    a(f"s_cbranch_scc1 P2_nosig{tag}")
    arrive(a, t, level)
    release(a, t, level, tag)
    a(f"P2_nosig{tag}:")

def gen_p2(o, a, P, XW, STG):
    S = o.S
    FLAG = 2048 - 16; FLC = 2048 - 32
    uid = [0]
    LUT = 2048; CB = 2560; WSZ = NG * WSTR; WB = CB + WSZ + 16
    LDS = WB + 2 * WSZ + 64
    if not o.fuse:
        a("s_cmp_ge_u32 s2, 256")
        a("s_cbranch_scc1 P2_end")
        a("s_load_dwordx2 s[32:33], s[0:1], 104")
        a("v_lshrrev_b32 v1, 6, v0")
        a("v_readfirstlane_b32 s3, v1")
    a("s_load_dwordx2 s[4:5], s[0:1], 0")
    a("s_load_dwordx2 s[6:7], s[0:1], 72")
    a("s_and_b32 s46, s2, 7")
    a("s_lshl_b32 s46, s46, 5")
    a("s_lshr_b32 s47, s2, 3")
    a("s_add_u32 s46, s46, s47")
    a("v_and_b32 v12, 63, v0")
    a("s_waitcnt lgkmcnt(0)")
    P.stamp(False)
    srd(a, 8, 4, E * 32)
    srd(a, 12, 32, NT * TILE_BYTES)
    srd(a, 16, 32, NT * NT * S * 4, WS_DESC)
    srd(a, 28, 6, 512)
    a("s_cmp_ge_u32 s3, 4")
    a("s_cbranch_scc1 P2_consumer")
    D0 = 40; R0 = 64
    vU12 = 1; vTile = 2; vInc = 3; v3FC = 4; vCb = 5; vZ = 6; v2U2 = 7; v2U1 = 8; vSg = 9
    n2c = 10; a0c = 11; n2n = 13; a0n = 14; n1n = 15
    vca = 16; vcb = 17; vra = 18; vrb = 19; vwa = 20; vwb = 21; vha = 22; vhb = 23; vt = 24; vt2 = 25; vPW = 26; vFl = 27
    ODDC = 52; MORC = 54; ODDN = 84; MORN = 86; ROW0 = 82; M0_ = 88; M1_ = 90
    if o.prio: a(f"s_setprio {o.prio}")
    a(f"s_lshl_b32 s47, s3, 6")
    a(f"v_add_u32 v{vTile}, s47, v12")
    a(f"s_lshl_b32 s50, s3, 2")
    a(f"v_mov_b32 v{vPW}, s50")
    a("s_mov_b32 s48, 0")
    def poll(level, tag):
        a("s_mov_b32 s51, 0")
        a(f"P2_poll{tag}:")
        a(f"buffer_load_dword v{vt}, v{vFl}, s[24:27], 0 offen offset:{128+4*level} sc1")
        a("s_add_u32 s51, s51, 1")
        a(f"s_cmp_gt_u32 s51, {o.maxpoll}")
        a("s_cbranch_scc1 P2_pdone")
        a("s_waitcnt vmcnt(0)")
        a(f"v_cmp_eq_u32 vcc, 0, v{vt}")
        a(f"s_cbranch_vccz P2_polled{tag}")
        a(f"s_sleep {o.gsleep}")
        a(f"s_branch P2_poll{tag}")
        a(f"P2_polled{tag}:")
    if o.fuse:
        a(f"v_mov_b32 v{vFl}, 0")
        a("s_mov_b32 s45, 0")
        a("s_mov_b32 s44, s3")
        nsave = P.n
        P.stamp()
        poll(2, "d")
        P.stamp()
    a(f"v_lshlrev_b32 v{vt}, 8, v{vTile}")
    a(f"v_add_u32 v{vt}, s46, v{vt}")
    a(f"v_mul_u32_u24 v{vt}, {4*S}, v{vt}")
    k = 0
    while k < S:
        w = 4 if S - k >= 4 else (2 if S - k >= 2 else 1)
        sfx = {4: "x4", 2: "x2", 1: ""}[w]
        dst = f"v[{D0+k}:{D0+k+w-1}]" if w > 1 else f"v{D0+k}"
        a(f"buffer_load_dword{sfx} {dst}, v{vt}, s[16:19], 0 offen offset:{4*k} {o.p2_rec}")
        k += w
    a(f"v_mov_b32 v{D0+S}, 0")
    a(f"v_mul_u32_u24 v{vTile}, {TILE_BYTES}, v{vTile}")
    a(f"v_and_b32 v{vt}, 15, v12")
    a(f"v_mul_u32_u24 v{vU12}, 12, v{vt}")
    a(f"v_lshl_add_u32 v{v2U1}, v{vt}, 1, 1")
    a(f"v_add_u32 v{v2U2}, 1, v{v2U1}")
    a(f"v_mov_b32 v{vInc}, {(1 << 20) + 4}")
    a(f"v_mov_b32 v{v3FC}, 0x3fc")
    a(f"v_mov_b32 v{vSg}, 0x80000000")
    for r in (vCb, vZ, vra, vrb): a(f"v_mov_b32 v{r}, 0")
    a("s_mov_b32 s49, 0")
    a(f"s_mov_b32 s{ROW0}, 0x00010001")
    a(f"s_mov_b32 s{ROW0+1}, 0x00010001")
    def prep():
        if o.fuse:
            uid[0] += 1; u = uid[0]
            a(f"v_cmp_lt_u32 vcc, {(CHA << 16) | 0xffff}, v{D0}")
            a("s_cmp_lg_u32 s45, 0")
            a(f"s_cbranch_scc1 P2_haveb{u}")
            a(f"s_cbranch_vccz P2_haveb{u}")
            if o.bwb: a("s_call_b64 s[42:43], P2_relb")
            poll(1, f"b{u}")
            if o.bwb: a("buffer_inv sc1")
            a("s_mov_b32 s45, 1")
            a(f"P2_haveb{u}:")
        a(f"v_bfe_u32 v{vt}, v{D0}, 1, 15")
        a(f"v_mad_u32_u24 v{a0n}, v{vt}, 12, v{vTile}")
        a(f"v_lshrrev_b32 v{n2n}, 16, v{D0}")
        a(f"v_and_b32 v{vt}, 0xfffe, v{D0}")
        a(f"v_sub_u32 v{n2n}, v{n2n}, v{vt}")
        a(f"v_and_b32 v{vt}, 1, v{D0}")
        a(f"v_cmp_eq_u32 s[{ODDN}:{ODDN+1}], 1, v{vt}")
        a(f"v_cmp_lt_u32 s[{MORN}:{MORN+1}], 32, v{n2n}")
        for k in range(S): a(f"v_mov_b32 v{D0+k}, v{D0+k+1}")
    def issue(i):
        a(f"v_add_u32_dpp v{vt}, v{a0n}, v{vU12} row_newbcast:{i} row_mask:0xf bank_mask:0xf")
        a(f"v_sub_u32_dpp v{vt2}, v{n2n}, v{v2U1} row_newbcast:{i} row_mask:0xf bank_mask:0xf")
        a(f"v_bitop3_b32 v{vt}, v{vt2}, v{vSg}, v{vt} bitop3:0xea")
        r = R0 + 4 * i
        a(f"buffer_load_dwordx3 v[{r}:{r+2}], v{vt}, s[12:15], 0 offen {o.p2_rec}")
    def twait(body):
        if o.prof:
            a("s_waitcnt lgkmcnt(0)")
            a("s_memtime s[56:57]")
            a("s_waitcnt lgkmcnt(0)")
        body()
        if o.prof:
            a("s_memtime s[58:59]")
            a("s_waitcnt lgkmcnt(0)")
            a("s_sub_u32 s56, s58, s56")
            a("s_add_u32 s71, s71, s56")
    L0 = -(-(1 << 26) // ((S << 26) // E)) // 4 + 1
    def next_round(regular=False):
        a("s_add_u32 s48, s48, 1")
        if o.maxr:
            a(f"s_cmp_gt_u32 s48, {o.maxr}")
            a("s_cbranch_scc1 P2_pdone")
        a(f"v_mov_b32 v{vt}, s48")
        if not o.flags:
            a(f"ds_max_u32 v{vZ}, v{vt} offset:{FLAG}")
            a(f"v_xor_b32 v{vCb}, 1024, v{vCb}")
            a("s_waitcnt lgkmcnt(0)")
            twait(lambda: a("s_barrier"))
            return
        a("s_waitcnt lgkmcnt(0)")
        a(f"ds_write_b32 v{vPW}, v{vt} offset:{FLAG}")
        a(f"v_xor_b32 v{vCb}, 1024, v{vCb}")
        if regular and o.sw:
            n = -(-L0 // 1024)
            uid[0] += 1
            a(f"s_add_u32 s40, s49, {o.swd}")
            a(f"s_cmp_ge_u32 s40, {S}")
            a(f"s_cbranch_scc1 P2_nw{uid[0]}")
            a(f"s_mul_i32 s40, s40, {L0 - 1}")
            a(f"s_lshl_b32 s41, s2, 2")
            a(f"s_add_u32 s41, s41, s3")
            a(f"s_mul_i32 s41, s41, {n}")
            a(f"s_add_u32 s40, s40, s41")
            if o.sw != 2:
                a(f"s_min_u32 s40, s40, {E // 4 - n}")
                a(f"s_lshl_b32 s40, s40, 7")
                a(f"s_add_u32 s36, s8, s40")
                a(f"s_addc_u32 s37, s9, 0")
                if o.sw == 1:
                    for j in range(n): a(f"s_load_dwordx2 s[38:39], s[36:37], {128*j+60}")
                elif o.sw == 3:
                    for j in range(2 * n): a(f"s_load_dword s38, s[36:37], {64*j}")
                else:
                    for j in range(n): a(f"s_load_dword s38, s[36:37], {128*j}")
            else:
                a(f"v_add_lshl_u32 v28, v12, s40, 7")
                a(f"s_bfm_b64 exec, {n}, 0")
                a(f"buffer_load_dword v29, v28, s[8:11], 0 offen")
                a(f"s_mov_b64 exec, -1")
            a(f"P2_nw{uid[0]}:")
        if o.fuse and o.bwb:
            uid[0] += 1
            a(f"s_cmp_lg_u32 s48, {o.bwb}")
            a(f"s_cbranch_scc1 P2_nr{uid[0]}")
            a("s_call_b64 s[42:43], P2_relb")
            a(f"P2_nr{uid[0]}:")
        a("s_lshr_b32 s50, s48, 1")
        a("s_mul_i32 s50, s50, 12")
        a(f"v_lshrrev_b32 v{vt2}, 8, v{vCb}")
        uid[0] += 1; u = uid[0]
        def spin():
            a(f"P2_pw{u}:")
            a(f"ds_read_b32 v{vt}, v{vt2} offset:{FLC}")
            a("s_waitcnt lgkmcnt(0)")
            a(f"v_readfirstlane_b32 s51, v{vt}")
            a("s_cmp_ge_u32 s51, s50")
            a(f"s_cbranch_scc1 P2_pg{u}")
            a(f"s_sleep {o.psleep}")
            a(f"s_branch P2_pw{u}")
            a(f"P2_pg{u}:")
        twait(spin)
    if o.prof: a("s_mov_b32 s71, 0")
    if o.fuse:
        poll(0, "a")
        P.stamp()
    else:
        a("s_waitcnt vmcnt(0)")
    prep()
    for i in range(16): issue(i)
    if o.fuse and o.prof:
        a("s_waitcnt vmcnt(15)")
        P.stamp()
    if o.fuse:
        lds_wait(a, vt, XW, 12, "i", 1)
        P.stamp()
    else:
        a("s_barrier")
    def ppass(tg, inl):
        a(f"v_mov_b32 v{n2c}, v{n2n}")
        a(f"v_mov_b32 v{a0c}, v{a0n}")
        a(f"s_mov_b64 s[{ODDC}:{ODDC+1}], s[{ODDN}:{ODDN+1}]")
        a(f"s_mov_b64 s[{MORC}:{MORC+1}], s[{MORN}:{MORN+1}]")
        prep()
        for i in range(16):
            r = R0 + 4 * i
            a(f"v_sub_co_u32_dpp v{vt}, vcc, v{n2c}, v{v2U1} row_newbcast:{i} row_mask:0xf bank_mask:0xf")
            a(f"s_and_b64 s[92:93], s[{ODDC}:{ODDC+1}], s[{ROW0}:{ROW0+1}]")
            a(f"s_nor_b64 s[{M0_}:{M0_+1}], vcc, s[92:93]")
            a(f"v_sub_co_u32_dpp v{vt}, vcc, v{n2c}, v{v2U2} row_newbcast:{i} row_mask:0xf bank_mask:0xf")
            a(f"s_lshr_b64 s[{ODDC}:{ODDC+1}], s[{ODDC}:{ODDC+1}], 1")
            a(f"s_not_b64 s[{M1_}:{M1_+1}], vcc")
            a(f"s_waitcnt vmcnt({15 if inl else 15 - i})")
            a(f"P2_retry{tg}{i}:")
            a(f"v_lshrrev_b32 v{vca}, 18, v{r}")
            a(f"v_lshrrev_b32 v{vcb}, 18, v{r+1}")
            a(f"v_bitop3_b32 v{vca}, v{vca}, v{v3FC}, v{vCb} bitop3:0xea")
            a(f"v_bitop3_b32 v{vcb}, v{vcb}, v{v3FC}, v{vCb} bitop3:0xea")
            a(f"s_mov_b64 exec, s[{M0_}:{M0_+1}]")
            a(f"ds_add_rtn_u32 v{vra}, v{vca}, v{vInc}")
            a(f"s_mov_b64 exec, s[{M1_}:{M1_+1}]")
            a(f"ds_add_rtn_u32 v{vrb}, v{vcb}, v{vInc}")
            a(f"s_mov_b64 exec, -1")
            a(f"v_and_b32 v{vwa}, 0xf00fffff, v{r}")
            a(f"v_and_b32 v{vwb}, 0xf00fffff, v{r+1}")
            a("s_waitcnt lgkmcnt(0)")
            a(f"v_and_b32 v{vra}, 0xfc03ffff, v{vra}")
            a(f"v_and_b32 v{vrb}, 0xfc03ffff, v{vrb}")
            a(f"v_lshrrev_b32 v{vha}, 1, v{vra}")
            a(f"v_lshrrev_b32 v{vhb}, 1, v{vrb}")
            a(f"v_or_b32 v{vt}, v{vra}, v{vrb}")
            a(f"v_cmp_lt_u32 vcc, v{vInc}, v{vt}")
            a(f"s_mov_b64 exec, s[{M0_}:{M0_+1}]")
            a(f"ds_write_b32 v{vra}, v{vwa} offset:{WB}")
            a(f"ds_write_b16 v{vha}, v{r+2} offset:{CB}")
            a(f"s_mov_b64 exec, s[{M1_}:{M1_+1}]")
            a(f"ds_write_b32 v{vrb}, v{vwb} offset:{WB}")
            a(f"ds_write_b16_d16_hi v{vhb}, v{r+2} offset:{CB}")
            a(f"s_mov_b64 exec, -1")
            a(f"s_cbranch_vccnz P2_stall{tg}{i}")
            a(f"s_and_b64 s[92:93], s[{MORC}:{MORC+1}], s[{ROW0}:{ROW0+1}]")
            a(f"s_cbranch_scc1 P2_more{tg}{i}")
            a(f"s_lshr_b64 s[{MORC}:{MORC+1}], s[{MORC}:{MORC+1}], 1")
            if inl: issue(i)
    if o.ffill:
        ppass("f", False)
        a("s_mov_b32 s49, 1")
        a("s_cmp_ge_u32 s48, s49")
        a("s_cbranch_scc1 P2_ff1")
        next_round(True)
        a("P2_ff1:")
        for i in range(16): issue(i)
    a("P2_pslice:")
    ppass("", True)
    a("s_add_u32 s49, s49, 1")
    a(f"s_cmp_ge_u32 s49, {S}")
    a("s_cbranch_scc1 P2_pdone")
    a("s_cmp_ge_u32 s48, s49")
    a("s_cbranch_scc1 P2_pslice")
    next_round(True)
    a("s_branch P2_pslice")
    a("P2_pdone:")
    if o.flags:
        a("s_add_u32 s48, s48, 0x40000001")
        a(f"v_mov_b32 v{vt}, s48")
        a("s_waitcnt lgkmcnt(0)")
        a(f"ds_write_b32 v{vPW}, v{vt} offset:{FLAG}")
    a("s_waitcnt vmcnt(0) lgkmcnt(0)")
    if o.prof:
        n0 = P.n; P.stamp(); P.dump(32, 0x80000, 8, 3); P.n = nsave if o.fuse else n0
    a("s_endpgm")
    if o.fuse and o.bwb:
        assert 1 <= o.bwb <= 2
        a("P2_relb:")
        a("s_cmp_lg_u32 s44, 0")
        a("s_cbranch_scc1 P2_norelb")
        a("s_mov_b32 s44, 1")
        lds_wait(a, 28, XW + 4, 12, "b", 1)
        a("buffer_wbl2 sc1")
        a("s_waitcnt vmcnt(0)")
        arrive(a, 28, 1)
        release(a, 28, 1, "b")
        a("s_setpc_b64 s[42:43]")
    for tg, i in [(t_, i_) for t_ in (("f", "") if o.ffill else ("",)) for i_ in range(16)]:
        r = R0 + 4 * i
        a(f"P2_stall{tg}{i}:")
        a(f"v_cmp_lt_u32 s[{M0_}:{M0_+1}], v{vInc}, v{vra}")
        a(f"v_cmp_lt_u32 s[{M1_}:{M1_+1}], v{vInc}, v{vrb}")
        next_round()
        a(f"s_branch P2_retry{tg}{i}")
        a(f"P2_more{tg}{i}:")
        a(f"s_lshl_b64 exec, s[{ROW0}:{ROW0+1}], {i}")
        a(f"v_max_u32 v{n2c}, 32, v{n2c}")
        a(f"v_subrev_u32 v{n2c}, 32, v{n2c}")
        a(f"v_add_u32 v{a0c}, 192, v{a0c}")
        a(f"v_cmp_lt_u32 vcc, 32, v{n2c}")
        a(f"s_mov_b64 exec, -1")
        a(f"s_lshr_b64 s[92:93], vcc, {i}")
        a(f"s_andn2_b64 s[{MORC}:{MORC+1}], s[{MORC}:{MORC+1}], s[{ROW0}:{ROW0+1}]")
        a(f"s_or_b64 s[{MORC}:{MORC+1}], s[{MORC}:{MORC+1}], s[92:93]")
        a(f"v_sub_co_u32_dpp v{vt2}, vcc, v{n2c}, v{v2U2} row_newbcast:{i} row_mask:0xf bank_mask:0xf")
        a(f"s_not_b64 s[{M1_}:{M1_+1}], vcc")
        a(f"v_sub_co_u32_dpp v{vt2}, vcc, v{n2c}, v{v2U1} row_newbcast:{i} row_mask:0xf bank_mask:0xf")
        a(f"v_add_u32_dpp v{vt}, v{a0c}, v{vU12} row_newbcast:{i} row_mask:0xf bank_mask:0xf")
        a(f"s_not_b64 s[{M0_}:{M0_+1}], vcc")
        a(f"v_cndmask_b32 v{vt}, v{vt}, v{vSg}, vcc")
        a(f"buffer_load_dwordx3 v[{r}:{r+2}], v{vt}, s[12:15], 0 offen {o.p2_rec}")
        a("s_waitcnt vmcnt(0)")
        a(f"s_branch P2_retry{tg}{i}")
    a("P2_consumer:")
    ACC = 60; G0 = 52; B0 = 44; WA = 36; WBr = 40; D1 = 28; vM = 24; vC = 20; vX = 16
    bA = 1; bE = 2; bC = 3; bR = 4; vH = 5; vL = 6; vCA = 7; vCI = 8; vA = 9; vE = 10; vZ = 15
    a("s_sub_u32 s47, s3, 4")
    a("s_min_u32 s48, s47, 4")
    a("s_lshl_b32 s49, s47, 4")
    a("s_add_u32 s49, s49, s48")
    a("s_cmp_lt_u32 s47, 4")
    a("s_cselect_b32 s50, 17, 16")
    a(f"s_cselect_b32 s84, 0, {MARK}")
    a(f"s_cselect_b32 s85, {17*WSTR//16-192}, {16*WSTR//16-192}")
    a("s_bfm_b64 s[92:93], s85, 0")
    a("v_and_b32 v13, 15, v12")
    a("v_lshrrev_b32 v14, 4, v12")
    a(f"v_and_b32 v{vH}, 16, v12")
    a(f"v_lshlrev_b32 v{vA}, 4, v{vH}")
    a(f"v_lshl_add_u32 v{vA}, v13, 1, v{vA}")
    for c in range(8): a(f"buffer_load_ushort v{vC+c}, v{vA}, s[28:31], 0 offen offset:{32*c}")
    def warm2(which):
        a(f"s_lshl_b32 s40, s47, 6")
        a(f"v_add_u32 v{D1+5}, s40, v12")
        if which & 1:
            n = -(-((S - 8) * L0 if o.rot else E // 4 - L0) // 256)
            if o.sw: n = -(-(o.swd + 1) * L0 // 256)
            a(f"s_mul_i32 s40, s2, {n}")
            if not o.sw: a(f"s_add_u32 s40, s40, {L0}")
            a(f"v_cmp_gt_u32 vcc, {n}, v{D1+5}")
            a(f"v_add_lshl_u32 v{D1+6}, v{D1+5}, s40, 7")
            a(f"v_cndmask_b32 v{D1+6}, 2.0, v{D1+6}, vcc")
            a(f"buffer_load_dword v{D1+6}, v{D1+6}, s[8:11], 0 offen")
        if which & 2:
            n = -(-L0 // 32)
            a(f"s_lshr_b32 s40, s2, 3")
            a(f"s_mul_i32 s40, s40, {n}")
            if o.rot:
                a(f"s_and_b32 s41, s2, 7")
                a(f"s_sub_u32 s41, {S}, s41")
                a(f"s_cmp_eq_u32 s41, {S}")
                a(f"s_cselect_b32 s41, 0, s41")
                a(f"s_mul_i32 s41, s41, {L0 - 1}")
                a(f"s_add_u32 s40, s40, s41")
            a(f"v_cmp_gt_u32 vcc, {n}, v{D1+5}")
            a(f"v_add_lshl_u32 v{D1+7}, v{D1+5}, s40, 7")
            a(f"v_cndmask_b32 v{D1+7}, 2.0, v{D1+7}, vcc")
            a(f"buffer_load_dword v{D1+7}, v{D1+7}, s[8:11], 0 offen")
    for i in range(4): a(f"v_mov_b32 v{D1+i}, {MARK}")
    a(f"v_subrev_u32 v{vA}, 256, v0")
    a(f"v_lshlrev_b32 v{vA}, 4, v{vA}")
    if o.fuse:
        a(f"v_mov_b32 v60, v{vA}")
        for k in range(1, 4): a(f"v_add_u32 v{60+k}, {4*12288*k}, v{vA}")
        lds_wait(a, vX, XW + 12, 16, "s", 1)
        P.stamp()
        for k in range(13):
            a(f"ds_read_b128 v[{64+4*k}:{67+4*k}], v{60+k//4} offset:{STG+12288*(k%4)}")
        lds_count(a, vX, XW + 16)
        lds_wait(a, vX, XW + 16, 12, "x", 0)
    for k in range(-(-(LDS - CB) // (768 * 16))):
        a(f"ds_write_b128 v{vA}, v[{D1}:{D1+3}] offset:{CB}")
        a(f"v_add_u32 v{vA}, {768*16}, v{vA}")
    for i in range(16): a(f"v_mov_b32 v{B0+i}, 0")
    a(f"v_mov_b32 v{vZ}, 0")
    a(f"v_lshrrev_b32 v{vA}, 2, v13")
    a(f"v_cmp_eq_u32 vcc, v{vA}, v14")
    a(f"v_and_b32 v{vE}, 3, v12")
    a(f"v_lshlrev_b32 v{vE}, 4, v{vE}")
    a(f"v_mov_b32 v{vX}, 0xffff")
    a(f"v_mov_b32 v{vX+1}, 0")
    a(f"v_cndmask_b32 v{vX}, 0, v{vX}, vcc")
    a(f"v_lshlrev_b64 v[{vX}:{vX+1}], v{vE}, v[{vX}:{vX+1}]")
    a(f"v_lshrrev_b32 v{vA}, 1, v{vH}")
    a(f"v_lshl_add_u32 v{vA}, v13, 4, v{vA}")
    a(f"v_lshrrev_b32 v{vE}, 5, v12")
    a(f"v_lshl_add_u32 v{vA}, v{vE}, 8, v{vA}")
    a(f"ds_write_b64 v{vA}, v[{vX}:{vX+1}] offset:{LUT}")
    a(f"v_and_b32 v0, 7, v12")
    a(f"v_lshlrev_b32 v0, 2, v0")
    a(f"ds_write_b32 v0, v{vZ} offset:{FLC}")
    a(f"v_and_b32 v0, 12, v0")
    a(f"s_mul_i32 s51, s49, {WSTR}")
    a(f"s_lshr_b32 s86, s51, 1")
    a(f"s_add_u32 s86, s86, {CB}")
    a(f"v_lshl_add_u32 v{bC}, v14, 4, s86")
    a(f"v_mul_u32_u24 v{vCI}, {WSTR}, v12")
    a(f"s_add_u32 s86, s51, {(64 - CAP) << 20}")
    a(f"v_add_u32 v{vCI}, s86, v{vCI}")
    a(f"s_add_u32 s51, s51, {WB}")
    a(f"v_lshl_add_u32 v{bR}, v12, 4, s51")
    a(f"v_and_b32 v{vA}, 12, v12")
    a(f"v_lshlrev_b32 v{bA}, 1, v{vA}")
    a(f"v_and_or_b32 v{bA}, v12, 3, v{bA}")
    a(f"v_lshl_or_b32 v{bA}, v{vE}, 2, v{bA}")
    if o.dbg & 8:
        a(f"v_lshrrev_b32 v{bA}, 1, v12")
        a(f"v_and_b32 v{vH}, 1, v12")
        a(f"v_lshlrev_b32 v{vH}, 4, v{vH}")
    a(f"v_lshl_add_u32 v{bA}, v{bA}, 2, s51")
    a(f"v_lshl_add_u32 v{bE}, v14, 5, v{vA}")
    a(f"v_add_u32 v{bE}, s51, v{bE}")
    a(f"v_and_b32 v{vL}, 1, v12")
    a(f"v_lshlrev_b32 v{vL}, 3, v{vL}")
    a(f"v_and_b32 v{vA}, 2, v12")
    a(f"v_lshl_add_u32 v{vL}, v{vA}, 7, v{vL}")
    a(f"v_add_lshl_u32 v{vCA}, v12, s49, 2")
    a(f"v_cmp_gt_u32 vcc, s50, v12")
    a(f"v_cmp_gt_u32 s[88:89], 32, v12")
    a(f"v_add_u32 v{vA}, {WSZ}, v{vCI}")
    a(f"v_cndmask_b32 v{vCA}, 2.0, v{vCA}, vcc")
    a(f"ds_write_b32 v{vCA}, v{vCI}")
    a(f"ds_write_b32 v{vCA}, v{vA} offset:1024")
    a(f"s_mov_b32 s85, {(64 - CAP + 33) << 20}")
    a("s_mov_b32 s94, 0xf000f000" if not o.dbg & 8 else "s_mov_b32 s94, 0")
    a("s_mov_b32 s95, 0xf000f000" if not o.dbg & 8 else "s_mov_b32 s95, 0xffff0000")
    if o.fuse:
        lds_count(a, vX, XW)
        for k in range(13):
            a(f"buffer_store_dwordx4 v[{64+4*k}:{67+4*k}], v60, s[20:23], 0 offen {'' if o.bwb else o.p1_st}")
            a(f"v_add_u32 v60, 12288, v60")
            if o.thr >= 0: a(f"s_waitcnt vmcnt({o.thr})")
    for i in range(68): a(f"v_mov_b32 v{ACC+i}, 0")
    a("s_waitcnt vmcnt(0)")
    if o.fuse and o.bwb: lds_count(a, vX, XW + 4)
    elif o.fuse: signal_wg(a, vX, 1, XW + 4, 12, "b")
    for u in range(4):
        a(f"v_lshl_or_b32 v{vC+u}, v{vC+2*u+1}, 16, v{vC+2*u}")
    for u in range(4):
        a(f"v_cndmask_b32 v{WA+u}, 0, v{vC+u}, s[88:89]")
        a(f"v_cndmask_b32 v{WBr+u}, v{vC+u}, 0, s[88:89]")
    a("s_mov_b32 s48, 0")
    if o.prof: a("s_mov_b32 s71, 0")
    if o.w2 & 3: warm2(o.w2 & 3)
    a("s_waitcnt lgkmcnt(0)")
    if not o.fuse: a("s_barrier")
    P.stamp()
    if o.w2 >> 2: warm2(o.w2 >> 2)
    if o.w2: a("s_waitcnt vmcnt(0)")
    def reads1(par, i, second):
        oa = par * WSZ + i * WSTR + (128 if second else 0)
        a(f"ds_read_b32 v{vA}, v{bA} offset:{oa}")
        a(f"ds_read_u8 v{vE}, v{bE} offset:{oa+3}")
        a(f"ds_read_u8 v{vE+1}, v{bE} offset:{oa+19}")
    def reads2(par, i, second):
        oc = (par * WSZ + i * WSTR + (128 if second else 0)) // 2
        a(f"v_add_u32 v{vE}, v{vE}, v{vL}")
        a(f"v_add_u32 v{vE+1}, v{vE+1}, v{vL}")
        a(f"ds_read_b64_tr_b16 v[{vM}:{vM+1}], v{vE} offset:{LUT}")
        a(f"ds_read_b64_tr_b16 v[{vM+2}:{vM+3}], v{vE+1} offset:{LUT}")
        a(f"ds_read_b128 v[{vC}:{vC+3}], v{bC} offset:{oc}")
    def addr():
        if o.dbg & 4: a(f"v_and_b32 v{vA}, 0x10ffff, v{vA}")
        a(f"v_mad_u32_u24 v{vA}, v{vA}, 32, v{vH}")
        if o.dbg & 1: a(f"v_mov_b32 v{vA}, 2.0")
    def mfma1(g):
        if o.dbg & 2: return
        a(f"v_mfma_f32_16x16x32_bf16 v[{D1}:{D1+3}], v[{g}:{g+3}], v[{WA}:{WA+3}], 0")
        a(f"v_mfma_f32_16x16x32_bf16 v[{D1+4}:{D1+7}], v[{g}:{g+3}], v[{WBr}:{WBr+3}], 0")
    def mfma2(i, b):
        if o.dbg & 2: return
        for u in range(4): a(f"v_cvt_pk_bf16_f32 v{D1+u}, v{D1+2*u}, v{D1+2*u+1}")
        c = ACC + 4 * i
        a(f"v_mfma_f32_16x16x32_bf16 v[{c}:{c+3}], v[{D1}:{D1+3}], v[{b}:{b+3}], v[{c}:{c+3}]")
    NS = 17
    for par in range(2):
        a(f"P2_round{par}:")
        if not o.flags:
            twait(lambda: a("s_barrier"))
            reads1(par, 0, False)
            a(f"ds_read_b32 v{vX}, v{vCA} offset:{1024*par}")
            a(f"ds_read_b32 v{vX+1}, v{vZ} offset:{FLAG}")
        else:
            def spin():
                a(f"P2_cw{par}:")
                a(f"ds_read_b32 v{vX+1}, v0 offset:{FLAG}")
                reads1(par, 0, False)
                a(f"ds_read_b32 v{vX}, v{vCA} offset:{1024*par}")
                a("s_waitcnt lgkmcnt(4)")
                a(f"v_cmp_ge_u32 vcc, s48, v{vX+1}")
                a(f"v_and_b32 v{vX+1}, 0x3fffffff, v{vX+1}")
                a(f"s_cbranch_vccz P2_cg{par}")
                a(f"s_sleep {o.csleep}")
                a(f"s_branch P2_cw{par}")
                a(f"P2_cg{par}:")
            twait(spin)
            a(f"v_cmp_lt_u32 vcc, s48, v{vX+1}")
            a(f"s_cbranch_vccz P2_drain{1-par}")
        if o.prof and par == 0:
            a("s_cmp_lg_u32 s48, 0"); a("s_cbranch_scc1 P2_nostamp"); P.stamp(); a("P2_nostamp:")
        if par: a(f"v_add_u32 v{vX+2}, {WSZ}, v{vCI}")
        a(f"ds_write_b32 v{vCA}, v{vX+2 if par else vCI} offset:{1024*par}")
        a("s_add_u32 s48, s48, 1")
        for i in range(NS):
            p = (par * NS + i) % 2
            g = G0 + 4 * p; b = B0 + 4 * p
            if o.cprio == 1 and i % 5 == 0 and i < 15: a(f"s_setprio {2 - i // 5}")
            if o.cprio == 2: a(f"s_setprio {2 - i % 3}")
            if o.cprio == 4 and i % 2 == 0: a(f"s_setprio {2 - (i // 2) % 3}")
            if o.cprio == 5 and i % 3 == 0: a(f"s_setprio {2 - (i // 3) % 3}")
            a("s_waitcnt lgkmcnt(0)")
            if i == NS - 1: a(f"v_or_b32 v{vA}, s84, v{vA}")
            addr()
            a(f"s_waitcnt vmcnt({o.dd-1})")
            mfma1(g)
            a(f"buffer_load_dwordx4 v[{g}:{g+3}], v{vA}, s[8:11], 0 offen")
            reads2(par, i, False)
            if i + 1 < NS: reads1(par, i + 1, False)
            if i == 0:
                a(f"v_cmp_le_u32 s[90:91], s85, v{vX}")
                if not o.flags: a(f"v_readfirstlane_b32 s87, v{vX+1}")
            mfma2((i - 2) % NS, b)
            a(f"s_bitcmp1_b32 s90, {i}")
            a(f"s_waitcnt lgkmcnt({3 if i + 1 < NS else 0})")
            for u in range(4): a(f"v_and_b32 v{b+u}, v{vM+u}, v{vC+u}")
            a(f"s_cbranch_scc1 P2_slow{par}_{i}")
            a(f"P2_back{par}_{i}:")
        for u in range(4): a(f"v_mov_b32 v{vX+u}, {MARK}")
        for k in range(4):
            if k == 3: a("s_mov_b64 exec, s[92:93]")
            a(f"ds_write_b128 v{bR}, v[{vX}:{vX+3}] offset:{par*WSZ+1024*k}")
        if o.flags:
            a("s_mov_b64 exec, 1")
            a(f"v_mov_b32 v{vA}, 1")
            a("s_waitcnt lgkmcnt(0)")
            if o.cprio == 3:
                a(f"ds_add_rtn_u32 v{vA}, v{vZ}, v{vA} offset:{FLC+4*par}")
                a("s_sub_u32 s40, s48, 1")
                a("s_lshr_b32 s40, s40, 1")
                a("s_mul_i32 s40, s40, 12")
                a("s_waitcnt lgkmcnt(0)")
                a(f"v_readfirstlane_b32 s41, v{vA}")
                a("s_sub_u32 s41, s41, s40")
                a("s_setprio 0")
                a("s_cmp_lt_u32 s41, 4")
                a(f"s_cbranch_scc1 P2_pr{par}")
                a("s_setprio 1")
                a("s_cmp_lt_u32 s41, 8")
                a(f"s_cbranch_scc1 P2_pr{par}")
                a("s_setprio 2")
                a(f"P2_pr{par}:")
            else:
                a(f"ds_add_u32 v{vZ}, v{vA} offset:{FLC+4*par}")
            a("s_mov_b64 exec, -1")
            if par: a("s_branch P2_round0")
            continue
        a("s_mov_b64 exec, -1")
        a("s_cmp_ge_u32 s87, s48")
        a("s_waitcnt lgkmcnt(0)")
        if par == 0:
            a("s_cbranch_scc0 P2_drain0")
        else:
            a("s_cbranch_scc1 P2_round0")
    def drain(par):
        a("s_waitcnt lgkmcnt(0)")
        for i in (NS, NS + 1):
            p = (par * NS + i) % 2
            a(f"s_waitcnt vmcnt({NS+1-i})")
            mfma1(G0 + 4 * p)
            mfma2(i - 2, B0 + 4 * p)
    a("P2_drain1:")
    drain(1)
    a("s_branch P2_epi")
    for par in range(2):
        for i in range(NS):
            a(f"P2_slow{par}_{i}:")
            reads1(par, i, True)
            a("s_waitcnt lgkmcnt(0)")
            a("s_mov_b64 exec, s[94:95]")
            a(f"v_mov_b32 v{vA}, {MARK}")
            a("s_mov_b64 exec, -1")
            addr()
            a(f"buffer_load_dwordx4 v[{vX}:{vX+3}], v{vA}, s[8:11], 0 offen")
            reads2(par, i, True)
            if i + 1 < NS: reads1(par, i + 1, False)
            a(f"s_waitcnt lgkmcnt({3 if i + 1 < NS else 0})")
            for u in range(4): a(f"v_and_b32 v{vM+u}, v{vM+u}, v{vC+u}")
            a("s_waitcnt vmcnt(0)")
            mfma1(vX)
            mfma2(i, vM)
            a(f"s_branch P2_back{par}_{i}")
    a("P2_drain0:")
    drain(0)
    a("P2_epi:")
    P.stamp()
    vOff = 1; vOo = 2; vDo = 3; DS = 4
    WS_ = 16; WR_ = 20; WU = 24; CEN = 26
    M0 = 30
    X = 38
    a("s_load_dwordx2 s[6:7], s[0:1], 24")
    a("s_load_dwordx2 s[34:35], s[0:1], 40")
    a("s_load_dwordx8 s[36:43], s[0:1], 56")
    a("s_load_dwordx2 s[44:45], s[0:1], 88")
    a(f"s_lshl_b32 s51, s49, 8")
    a(f"s_add_u32 s51, s51, s46")
    a(f"s_lshl_b32 s51, s51, 4")
    a(f"v_add_u32 v{vOff}, s51, v13")
    a(f"v_lshrrev_b32 v{X}, 1, v14")
    a(f"v_lshl_add_u32 v{vDo}, v{X}, 12, v{vOff}")
    a(f"v_lshlrev_b32 v{vDo}, 1, v{vDo}")
    a(f"v_lshlrev_b32 v{vOff}, 5, v{vOff}")
    a(f"v_lshl_add_u32 v{vOff}, v14, 3, v{vOff}")
    a(f"v_mov_b32 v{vOo}, v{vOff}")
    a(f"v_lshlrev_b32 v{X+1}, 7, v14")
    a(f"v_lshl_add_u32 v{X+1}, v13, 1, v{X+1}")
    a(f"v_and_b32 v{X+2}, 0xff, v{X+1}")
    a(f"v_and_b32 v{X+3}, 1, v14")
    a(f"v_lshlrev_b32 v{X+3}, 3, v{X+3}")
    a("s_waitcnt lgkmcnt(0)")
    srd(a, 20, 44, E * 32)
    srd(a, 24, 6, E * 2)
    srd(a, 28, 42, 512)
    for c in range(4): a(f"buffer_load_ushort v{X+4+c}, v{X+1}, s[28:31], 0 offen offset:{32*c}")
    srd(a, 12, 38, 256)
    for c in range(4): a(f"buffer_load_ushort v{X+8+c}, v{X+2}, s[12:15], 0 offen offset:{32*c}")
    srd(a, 16, 36, 256)
    for c in range(4): a(f"buffer_load_ushort v{X+12+c}, v{X+2}, s[16:19], 0 offen offset:{32*c}")
    srd(a, 52, 34, 16)
    for c in range(4): a(f"buffer_load_ushort v{CEN+c}, v{X+3}, s[52:55], 0 offen offset:{2*c}")
    for k in range(9):
        a(f"buffer_load_ushort v{DS+k}, v{vDo}, s[24:27], 0 offen")
        a(f"v_add_u32 v{vDo}, {2*4096*2}, v{vDo}")
    def mload(i):
        m = M0 + 2 * (i % 4)
        a(f"buffer_load_dwordx2 v[{m}:{m+1}], v{vOff}, s[8:11], 0 offen")
        a(f"v_add_u32 v{vOff}, {4096*32}, v{vOff}")
    for i in range(4): mload(i)
    a("s_mov_b32 s84, 0xffff0000")
    a("s_mov_b32 s85, 0xc1200000")
    a("s_mov_b32 s86, 0x3fb8aa3b")
    a("s_waitcnt vmcnt(4)")
    for u in range(2):
        a(f"v_lshl_or_b32 v{WU+u}, v{X+5+2*u}, 16, v{X+4+2*u}")
        a(f"v_lshl_or_b32 v{X+8+u}, v{X+9+2*u}, 16, v{X+8+2*u}")
        a(f"v_lshl_or_b32 v{X+12+u}, v{X+13+2*u}, 16, v{X+12+2*u}")
    for u in range(2):
        a(f"v_cndmask_b32 v{WS_+u}, 0, v{X+8+u}, s[88:89]")
        a(f"v_cndmask_b32 v{WS_+2+u}, v{X+8+u}, 0, s[88:89]")
        a(f"v_cndmask_b32 v{WR_+u}, 0, v{X+12+u}, s[88:89]")
        a(f"v_cndmask_b32 v{WR_+2+u}, v{X+12+u}, 0, s[88:89]")
    for c in range(4): a(f"v_lshlrev_b32 v{CEN+c}, 16, v{CEN+c}")
    RB = X; t = X + 2; SS = X + 6; GG = X + 10; AG = X + 14; UU = X + 16; OT = X + 20
    def rnd():
        for u in range(2):
            a(f"v_cvt_pk_bf16_f32 v{t+2*u+1}, v{t+2*u}, v{t+2*u+1}")
        for u in range(2):
            a(f"v_lshlrev_b32 v{t+2*u}, 16, v{t+2*u+1}")
            a(f"v_and_b32 v{t+2*u+1}, s84, v{t+2*u+1}")
    for i in range(NS):
        if i == 16:
            a("s_cmp_lt_u32 s50, 17")
            a("s_cbranch_scc1 P2_fin")
        if i % 2 == 0:
            d = DS + i // 2
            a(f"v_lshlrev_b32 v{d}, 16, v{d}")
            for c in range(4): a(f"v_sub_f32 v{t+c}, v{d}, v{CEN+c}")
            rnd()
            for c in range(4): a(f"v_mul_f32 v{t+c}, v{t+c}, v{t+c}")
            rnd()
            for c in range(4): a(f"v_mul_f32 v{t+c}, s85, v{t+c}")
            rnd()
            for c in range(4): a(f"v_mul_f32 v{t+c}, s86, v{t+c}")
            for c in range(4): a(f"v_exp_f32 v{t+c}, v{t+c}")
            for u in range(2): a(f"v_cvt_pk_bf16_f32 v{RB+u}, v{t+2*u}, v{t+2*u+1}")
        h = 2 * (i % 2); c0 = ACC + 4 * i; m = M0 + 2 * (i % 4)
        a(f"v_mfma_f32_16x16x16_bf16 v[{SS}:{SS+3}], v[{WS_+h}:{WS_+h+1}], v[{RB}:{RB+1}], 0")
        a(f"v_mfma_f32_16x16x16_bf16 v[{GG}:{GG+3}], v[{WR_+h}:{WR_+h+1}], v[{RB}:{RB+1}], 0")
        nl = min(3, NS - 1 - i); ns = min(3, i)
        a(f"s_waitcnt vmcnt({nl + ns if i + 3 < NS else nl})")
        a(f"v_lshlrev_b32 v{t}, 16, v{m}")
        a(f"v_and_b32 v{t+1}, s84, v{m}")
        a(f"v_lshlrev_b32 v{t+2}, 16, v{m+1}")
        a(f"v_and_b32 v{t+3}, s84, v{m+1}")
        for c in range(4): a(f"v_mul_f32 v{SS+c}, v{SS+c}, v{c0+c}")
        for u in range(2): a(f"v_cvt_pk_bf16_f32 v{AG+u}, v{SS+2*u}, v{SS+2*u+1}")
        a(f"v_mfma_f32_16x16x16_bf16 v[{UU}:{UU+3}], v[{WU}:{WU+1}], v[{AG}:{AG+1}], 0")
        for c in range(4): a(f"v_fma_f32 v{t+c}, v{UU+c}, v{GG+c}, v{t+c}")
        for u in range(2): a(f"v_cvt_pk_bf16_f32 v{OT+u}, v{t+2*u}, v{t+2*u+1}")
        a(f"buffer_store_dwordx2 v[{OT}:{OT+1}], v{vOo}, s[20:23], 0 offen {o.ost}")
        a(f"v_add_u32 v{vOo}, {4096*32}, v{vOo}")
        if i + 4 < NS: mload(i + 4)
    a("P2_fin:")
    if o.prof:
        P.stamp()
        a("s_waitcnt vmcnt(0)")
        P.stamp()
        P.dump(32, 0x80000, X, 3)
    if o.amp:
        x0, x1, k, cyc, wg = [int(v) for v in o.amp.split(",")]
        a("s_cmp_lg_u32 s3, 15"); a("s_cbranch_scc1 P2_end")
        if wg >= 0: a(f"s_cmp_lg_u32 s2, {wg}"); a("s_cbranch_scc1 P2_end")
        if cyc:
            a(f"s_sub_u32 s40, s{60+x1}, s{60+x0}")
            a(f"s_mul_hi_u32 s40, s40, {(1 << 32) // 24}")
        else:
            a(f"s_sub_u32 s40, s{72+x1}, s{72+x0}")
        a(f"s_mul_i32 s40, s40, {k}")
        a("s_min_u32 s40, s40, 100000")
        a("P2_amp:")
        a("s_memrealtime s[58:59]")
        a("s_waitcnt lgkmcnt(0)")
        a(f"s_sub_u32 s41, s58, s{72+P.n-1}")
        a("s_cmp_lt_u32 s41, s40")
        a("s_cbranch_scc1 P2_amp")
    a("P2_end:")
    a("s_endpgm")
    return LDS

KD = """.amdhsa_kernel {name}
  .amdhsa_next_free_vgpr 128
  .amdhsa_next_free_sgpr 96
  .amdhsa_accum_offset 128
  .amdhsa_group_segment_fixed_size 0
  .amdhsa_kernarg_size 112
  .amdhsa_user_sgpr_count 2
  .amdhsa_user_sgpr_kernarg_segment_ptr 1
  .amdhsa_system_sgpr_workgroup_id_x 1
  .amdhsa_float_denorm_mode_32 3
.end_amdhsa_kernel
"""

NAME = "gather_scatter__molecular_angular_gemnet__graph_kernel"

def build(o):
    if o.fuse:
        a = Asm(); P = Prof(a, o.prof, 1)
        xw, stg = gen_p1(o, a, P); gen_p2(o, a, P, xw, stg)
        ks = [(NAME, a.finish(), xw + 32)]
    else:
        a = Asm(); l1, _ = gen_p1(o, a, Prof(a, o.prof))
        b = Asm(); l2 = gen_p2(o, b, Prof(b, o.prof), 0, 0)
        ks = [("gemnet_p1_kernel", a.finish(), l1), ("gemnet_p2_kernel", b.finish(), l2)]
    ref = open("gather_scatter__molecular_angular_gemnet__graph.s.ref").read().split("\n")
    head = [l for l in ref if l.startswith(";") and "launch geometry" not in l and "Harness parses" not in l and "@launch" not in l]
    s = "\n".join(head) + "\n"
    s += "; Part 1 partitions the triplets by (input slice, output bin); part 2 gathers / segment-sums with MFMA.\n"
    for n, b, l in ks:
        s += f"; @launch {'' if o.fuse else 'kernel=' + n + ' '}grid=(256,1,1) block=(1024,1,1) lds={l}\n"
    s += '.amdgcn_target "amdgcn-amd-amdhsa--gfx950"\n.text\n'
    for n, b, l in ks:
        s += f".globl {n}\n.p2align 8\n.type {n},@function\n{n}:\n" + b
    s += '.section .rodata,"a"\n'
    for n, b, l in ks:
        s += ".p2align 6\n" + KD.format(name=n)
    return s

def parser():
    p = argparse.ArgumentParser()
    p.add_argument("-S", type=int, default=10)
    p.add_argument("--prof", type=int, default=0)
    p.add_argument("--maxr", type=int, default=0)
    p.add_argument("--dbg", type=int, default=0)
    p.add_argument("--warm", type=int, default=0)
    p.add_argument("--defer", type=int, default=4)
    p.add_argument("--cmap", type=int, default=2)
    p.add_argument("--early", type=int, default=8)
    p.add_argument("--bwb", type=int, default=0)
    p.add_argument("--amp", default="")
    p.add_argument("--ost", default="")
    p.add_argument("--sw", type=int, default=0)
    p.add_argument("--swd", type=int, default=0)
    p.add_argument("--rot", type=int, default=0)
    p.add_argument("--ffill", type=int, default=0)
    p.add_argument("--w2", type=int, default=0)
    p.add_argument("--dd", type=int, default=2)
    p.add_argument("--thr", type=int, default=-1)
    p.add_argument("--aearly", type=int, default=0)
    p.add_argument("--dstep", type=int, default=4)
    p.add_argument("--fuse", type=int, default=0)
    p.add_argument("--gsleep", type=int, default=4)
    p.add_argument("--maxpoll", type=int, default=1000000)
    p.add_argument("--flags", type=int, default=1)
    p.add_argument("--psleep", type=int, default=2)
    p.add_argument("--csleep", type=int, default=2)
    p.add_argument("--asplit", type=int, default=8)
    p.add_argument("--p1_dst", default="")
    p.add_argument("--p1_ld", default="nt")
    p.add_argument("--p1_st", default="sc1")
    p.add_argument("--p2_rec", default="sc1")
    p.add_argument("--prio", type=int, default=3)
    p.add_argument("--cprio", type=int, default=3)
    p.add_argument("-o", default="gather_scatter__molecular_angular_gemnet__graph.s")
    return p

if __name__ == "__main__":
    o = parser().parse_args()
    open(o.o, "w").write(build(o))
```

```python
import sys, argparse
from asmlib import Asm

E = 800000; T = 12800000
NT = 256
CHA = 25088
TILE_N = 50000
TILE_BYTES = 300032
WS_DESC = 0x5000000
WS_PROF = 0x6000000
CAP = 56
WSTR = CAP * 4
MARK = 0x00100000
NG = 196
WREG = 9472

GUARD = [0]
def guard(a):
    if GUARD[0]:
        a("s_add_u32 s99, s99, 1")
        a(f"s_cmp_gt_u32 s99, {GUARD[0]}")
        a("s_cbranch_scc1 P2_end")

def slicing(o):
    B = (o.f0 << 26) // 100
    K = ((o.S << 26) - B) // E
    return K, B

def srd(a, d, base, size, off=None):
    if off is None:
        a(f"s_mov_b32 s{d}, s{base}")
        a(f"s_mov_b32 s{d+1}, s{base+1}")
    else:
        a(f"s_add_u32 s{d}, s{base}, {off}")
        a(f"s_addc_u32 s{d+1}, s{base+1}, 0")
    a(f"s_mov_b32 s{d+2}, {size}")
    a(f"s_mov_b32 s{d+3}, 0x20000")

class Prof:
    def __init__(self, a, on, fuse=0): self.a = a; self.on = on; self.n = 0; self.fuse = fuse
    def stamp(self, fused_too=True):
        if not self.on or (self.fuse and not fused_too): return
        a = self.a
        a("s_waitcnt lgkmcnt(0)")
        a("s_memtime s[58:59]")
        a("s_waitcnt lgkmcnt(0)")
        a(f"s_mov_b32 s{60+self.n}, s58")
        a("s_memrealtime s[58:59]")
        a("s_waitcnt lgkmcnt(0)")
        a(f"s_mov_b32 s{72+self.n}, s58")
        self.n += 1
    def dump(self, wsreg, region, vt, wave_sreg):
        if self.on != 1: return
        a = self.a
        srd(a, 52, wsreg, 0x100000, WS_PROF + region)
        a(f"s_lshl_b32 s56, s2, 4")
        a(f"s_add_u32 s56, s56, s{wave_sreg}")
        a(f"s_lshl_b32 s56, s56, 7")
        a("s_mov_b64 exec, 1")
        for i in range(self.n):
            a(f"v_mov_b32 v{vt}, s56")
            a(f"v_mov_b32 v{vt+1}, s{60+i}")
            a(f"buffer_store_dword v{vt+1}, v{vt}, s[52:55], 0 offen offset:{4*i}")
            a(f"v_mov_b32 v{vt+1}, s{72+i}")
            a(f"buffer_store_dword v{vt+1}, v{vt}, s[52:55], 0 offen offset:{64+4*i}")
        a(f"v_mov_b32 v{vt+1}, s71")
        a(f"buffer_store_dword v{vt+1}, v{vt}, s[52:55], 0 offen offset:124")
        a("s_waitcnt vmcnt(0)")
        a("s_mov_b64 exec, -1")

def gen_p1(o, a, P):
    S = o.S
    NK = S * 256
    KSL, BSL = slicing(o)
    CN = 16; SCR = CN + NK * 4; STG = SCR + 64; XW = STG + CHA * 6
    W0 = 4; KP0 = 53; C0 = 78; TO = 103; T0 = 104
    ld = o.p1_ld; st = o.p1_st
    a("s_cmp_ge_u32 s2, 256")
    a("s_cbranch_scc1 P2_end")
    if GUARD[0]: a("s_mov_b32 s99, 0")
    a("s_load_dwordx4 s[4:7], s[0:1], 8")
    a("s_load_dwordx2 s[28:29], s[0:1], 32")
    a("s_load_dwordx2 s[30:31], s[0:1], 48")
    a("s_load_dwordx2 s[32:33], s[0:1], 104")
    a("s_load_dwordx2 s[94:95], s[0:1], 96")
    a("s_load_dwordx2 s[48:49], s[0:1], 0")
    a("s_load_dwordx2 s[50:51], s[0:1], 72")
    a("s_load_dwordx2 s[86:87], s[0:1], 88")
    a("v_lshlrev_b32 v1, 4, v0")
    a("v_lshlrev_b32 v2, 3, v0")
    a("v_mov_b32 v3, 1")
    for i in range(4): a(f"v_mov_b32 v{T0+i}, 0")
    a(f"ds_write_b128 v1, v[{T0}:{T0+3}]")
    a("v_lshrrev_b32 v127, 6, v0")
    a("v_readfirstlane_b32 s3, v127")
    a(f"s_mul_i32 s34, s2, 848")
    a(f"s_add_u32 s34, s34, {3072*4096}")
    a(f"v_add_u32 v109, s34, v0")
    a(f"v_cmp_gt_u32 vcc, 848, v0")
    a(f"v_lshlrev_b32 v110, 2, v109")
    a(f"v_lshlrev_b32 v109, 1, v109")
    a(f"v_cndmask_b32 v110, 2.0, v110, vcc")
    a(f"v_cndmask_b32 v109, 2.0, v109, vcc")
    a("s_waitcnt lgkmcnt(0)")
    P.stamp()
    srd(a, 8, 4, T * 4); srd(a, 12, 6, T * 4); srd(a, 16, 28, T * 2)
    a("s_load_dword s35, s[30:31], 0")
    a("s_mul_i32 s36, s2, 12")
    a("s_lshl_b32 s37, s36, 13")
    a("s_lshl_b32 s36, s36, 14")
    a(f"buffer_load_dword v{TO}, v110, s[12:15], 0 offen {ld}")
    a(f"buffer_load_dword v{W0+48}, v110, s[8:11], 0 offen {ld}")
    a(f"buffer_load_ushort v{C0+24}, v109, s[16:19], 0 offen {ld}")
    def issue_idx(r):
        b = C0 + 4 * (r % 6); w = W0 + 4 * r
        a(f"buffer_load_dwordx4 v[{b}:{b+3}], v1, s[12:15], s36 offen {ld}")
        a(f"buffer_load_dwordx4 v[{w}:{w+3}], v1, s[8:11], s36 offen {ld}")
        a(f"s_add_u32 s36, s36, 16384")
    def issue_ang(r):
        b = C0 + 2 * r
        a(f"buffer_load_dwordx2 v[{b}:{b+1}], v2, s[16:19], s37 offen {ld}")
        a(f"s_add_u32 s37, s37, 8192")
    for r in range(6): issue_idx(r)
    a("s_mov_b32 s38, 0x7c00")
    MG = -(-(1 << 19) // S)
    assert all((n * MG) >> 19 == n // S for n in range(4096))
    a(f"s_mov_b32 s40, {(-(1024*S - 4)) & 0xffffffff}")
    for j in range(4):
        t = T0 + 16 + j
        a(f"v_lshl_add_u32 v{t}, v0, 2, {j}")
        a(f"v_mul_u32_u24 v{T0}, {MG}, v{t}")
        a(f"v_lshrrev_b32 v{T0}, 19, v{T0}")
        a(f"v_lshlrev_b32 v{t}, 10, v{t}")
        a(f"v_mad_i32_i24 v{t}, v{T0}, s40, v{t}")
        a(f"v_add_u32 v{t}, {STG}, v{t}")
    srd(a, 20, 32, NT * NT * S * 4, WS_DESC)
    srd(a, 24, 94, 256)
    a("s_mov_b32 s44, 0")
    a(f"s_mov_b32 s39, {KSL}")
    a(f"v_mov_b32 v{T0+22}, {BSL}")
    if o.cpf:
        a("s_getpc_b64 s[40:41]")
        a("P1_pc:")
        a("s_and_b32 s40, s40, 0xffffff80")
        a(f"s_mov_b32 s42, P2_end-P1_pc")
        a("s_mov_b32 s43, 0x20000")
        a("s_lshr_b32 s45, s2, 3")
        a(f"s_mul_i32 s45, s45, {o.cpf}")
        a(f"v_add_lshl_u32 v{T0+23}, v0, s45, 7")
        a("s_cmp_lg_u32 s3, 0")
        a("s_cbranch_scc1 P1_nopf")
        a(f"s_bfm_b64 exec, {o.cpf}, 0")
        a(f"buffer_load_dword v{T0+23}, v{T0+23}, s[40:43], 0 offen")
        a("s_mov_b64 exec, -1")
        a("P1_nopf:")
    a(f"v_mov_b32 v{T0+20}, 0x3fc")
    a(f"v_mov_b32 v{T0+21}, 0x0ff00000")
    a("s_waitcnt lgkmcnt(0)")
    a("s_lshl_b32 s35, s35, 16")
    a("s_barrier")
    def key(O, W, t0, t1):
        a(f"v_mad_u32_u24 v{t0}, v{W}, s39, v{T0+22}")
        a(f"v_lshlrev_b32 v{t1}, 8, v{O}")
        a(f"v_lshl_or_b32 v{W}, v{O}, 28, v{W}")
        a(f"v_and_b32_sdwa v{t0}, v{t0}, s38 dst_sel:DWORD dst_unused:UNUSED_PAD src0_sel:WORD_1 src1_sel:DWORD")
        a(f"v_lshrrev_b32 v{O}, 2, v{O}")
        a(f"v_bitop3_b32 v{W}, v{t1}, v{T0+21}, v{W} bitop3:0xea")
        a(f"v_bitop3_b32 v{O}, v{O}, v{T0+20}, v{t0} bitop3:0xea")
    for r in range(12):
        a(f"s_waitcnt vmcnt({min(10, 2*(11-r))})")
        if r == 0:
            key(TO, W0 + 48, T0, T0 + 1)
            a(f"v_cndmask_b32 v{KP0+24}, 2.0, v{TO}, vcc")
            a(f"ds_add_u32 v{KP0+24}, v3 offset:{CN}")
        b = C0 + 4 * (r % 6)
        for j in range(4):
            key(b + j, W0 + 4 * r + j, T0 + 2 * j, T0 + 2 * j + 1)
            a(f"ds_add_u32 v{b+j}, v3 offset:{CN}")
        a(f"v_lshl_or_b32 v{KP0+2*r}, v{b+1}, 16, v{b}")
        a(f"v_lshl_or_b32 v{KP0+2*r+1}, v{b+3}, 16, v{b+2}")
        if r < 6: issue_idx(r + 6)
    a("s_waitcnt lgkmcnt(0)")
    a("s_barrier")
    P.stamp()
    c = T0; x = T0 + 4; tot = T0 + 5; y = T0 + 6
    a(f"s_cmp_ge_u32 s3, {S}")
    a("s_cbranch_scc1 P1_scan1")
    a(f"ds_read_b128 v[{c}:{c+3}], v1 offset:{CN}")
    a("s_waitcnt lgkmcnt(0)")
    a(f"v_add_u32 v{c+1}, v{c}, v{c+1}")
    a(f"v_add_u32 v{c+2}, v{c+1}, v{c+2}")
    a(f"v_add_u32 v{c+3}, v{c+2}, v{c+3}")
    a(f"v_mov_b32 v{x}, v{c+3}")
    for sh in (1, 2, 4, 8):
        a(f"v_add_u32_dpp v{x}, v{x}, v{x} row_shr:{sh} row_mask:0xf bank_mask:0xf bound_ctrl:1")
    a(f"v_add_u32_dpp v{x}, v{x}, v{x} row_bcast:15 row_mask:0xa bank_mask:0xf")
    a(f"v_add_u32_dpp v{x}, v{x}, v{x} row_bcast:31 row_mask:0xc bank_mask:0xf")
    a(f"v_readlane_b32 s40, v{x}, 63")
    a(f"s_lshl_b32 s41, s3, 2")
    a(f"v_mov_b32 v{y}, s41")
    a(f"v_mov_b32 v{y+1}, s40")
    a(f"ds_write_b32 v{y}, v{y+1} offset:{SCR}")
    a("s_waitcnt lgkmcnt(0)")
    a("P1_scan1:")
    a("s_barrier")
    a(f"s_cmp_ge_u32 s3, {S}")
    a("s_cbranch_scc1 P1_scan2")
    a(f"v_and_b32 v{y}, 63, v0")
    a(f"v_lshlrev_b32 v{y+1}, 2, v{y}")
    a(f"ds_read_b32 v{y+2}, v{y+1} offset:{SCR}")
    a(f"v_cmp_gt_u32 s[42:43], s3, v{y}")
    a(f"v_sub_u32 v{x}, v{x}, v{c+3}")
    a("s_waitcnt lgkmcnt(0)")
    a(f"v_cndmask_b32 v{y+2}, 0, v{y+2}, s[42:43]")
    for sh in (1, 2, 4, 8):
        a(f"v_add_u32_dpp v{y+2}, v{y+2}, v{y+2} row_shr:{sh} row_mask:0xf bank_mask:0xf bound_ctrl:1")
    a(f"v_readlane_b32 s40, v{y+2}, 15")
    s0 = T0 + 12
    a(f"v_add_u32 v{s0}, s40, v{x}")
    for j in range(3): a(f"v_add_u32 v{s0+1+j}, v{s0}, v{c+j}")
    a(f"ds_write_b128 v1, v[{s0}:{s0+3}] offset:{CN}")
    a(f"ds_write_b128 v1, v[{s0}:{s0+3}] offset:{STG}")
    a(f"v_mov_b32 v{c}, {STG + NK * 4}")
    a(f"v_mov_b32 v{c+1}, {TILE_N}")
    a(f"ds_write_b32 v{c}, v{c+1}")
    a("s_waitcnt lgkmcnt(0)")
    a("P1_scan2:")
    a("s_barrier")
    a(f"s_cmp_ge_u32 s3, {S}")
    a("s_cbranch_scc1 P1_nodesc")
    for j in range(4):
        a(f"ds_read2_b32 v[{T0+2*j}:{T0+2*j+1}], v{T0+16+j} offset0:0 offset1:1")
    a(f"s_mul_i32 s40, s2, {256*S*4}")
    lds_count(a, T0 + 8, 4)
    for j in range(4): a(f"v_lshl_or_b32 v{T0+12+j}, v{T0+2*j+1}, 16, v{T0+2*j}")
    a(f"buffer_store_dwordx4 v[{T0+12}:{T0+15}], v1, s[20:23], s40 offen {st}")
    a("P1_nodesc:")
    def atomics(n):
        t = T0 + 4 * (n % 2)
        if n == 12:
            a(f"ds_add_rtn_u32 v{t}, v{KP0+24}, v3 offset:{CN}"); return 1
        for j in range(4):
            kp = KP0 + 2 * n + j // 2
            if j % 2 == 0: a(f"v_and_b32 v{t+j}, 0xffff, v{kp}")
            else: a(f"v_lshrrev_b32 v{t+j}, 16, v{kp}")
            a(f"ds_add_rtn_u32 v{t+j}, v{t+j}, v3 offset:{CN}")
        return 4
    a(f"s_cmp_ge_u32 s3, {o.asplit}")
    a("s_cbranch_scc1 P1_ang1")
    for n in range(12): issue_ang(n)
    a("P1_ang1:")
    atomics(0)
    for n in range(13):
        k = atomics(n + 1) if n < 12 else 0
        a(f"s_waitcnt lgkmcnt({k})")
        t = T0 + 4 * (n % 2); u = T0 + 8
        if n < 12:
            a(f"v_lshl_or_b32 v{KP0+2*n}, v{t+1}, 16, v{t}")
            a(f"v_lshl_or_b32 v{KP0+2*n+1}, v{t+3}, 16, v{t+2}")
        else:
            a(f"v_mov_b32 v{u}, 0xffff")
            a(f"v_cndmask_b32 v{KP0+24}, v{u}, v{t}, vcc")
    a(f"s_cmp_lt_u32 s3, {o.asplit}")
    a("s_cbranch_scc1 P1_ang2")
    for n in range(12): issue_ang(n)
    a("P1_ang2:")
    a("s_cmp_eq_u32 s35, 1.0")
    a("s_cbranch_scc1 P1_f1")
    a("s_waitcnt vmcnt(0)")
    for n in range(25):
        cr = C0 + n; t = T0
        a(f"v_lshlrev_b32 v{t}, 16, v{cr}")
        a(f"v_and_b32 v{t+1}, 0xffff0000, v{cr}")
        a(f"v_mul_f32 v{t}, s35, v{t}")
        a(f"v_mul_f32 v{t+1}, s35, v{t+1}")
        a(f"v_cvt_pk_bf16_f32 v{cr}, v{t}, v{t+1}")
    a("P1_f1:")
    lds_wait(a, T0, 4, S, "q", 0)
    def addrs(n, h, u, base):
        a(f"v_mad_u32_u16 v{u}, v{KP0+n}, 6, {base}" + (" op_sel:[1,0,0,0]" if h else ""))
        a(f"v_and_b32 v{u+1}, 2, v{u}")
        a(f"v_sub_u32 v{u}, v{u}, v{u+1}")
        a(f"v_sub_u32 v{u+1}, v{u}, v{u+1}")
    for n in range(25):
        cr = C0 + n; t = T0 + 6 * (n % 2)
        if n % 2 == 0 and n < 24: a(f"s_waitcnt vmcnt({11 - n // 2})")
        if n == 0:
            a(f"s_cmp_ge_u32 s3, {S}")
            a("s_cbranch_scc1 P1_noe")
            lds_ticket(a, 2, 8)
            a(f"s_cmp_lg_u32 s40, {S-1}")
            a("s_cbranch_scc1 P1_noe")
            arrive(a, 2, LV_E)
            a("s_mov_b32 s44, 1")
            a("P1_noe:")
        if n == 14:
            a("s_cmp_eq_u32 s44, 0")
            a("s_cbranch_scc1 P2_norele")
            release(a, 2, LV_E, "e")
        a(f"v_lshlrev_b32 v{t}, 16, v{cr}")
        a(f"v_and_b32 v{t+1}, 0xffff0000, v{cr}")
        a(f"v_mul_f32 v{t}, 0.15915494, v{t}")
        a(f"v_mul_f32 v{t+1}, 0.15915494, v{t+1}")
        a(f"v_fract_f32 v{t}, v{t}")
        a(f"v_fract_f32 v{t+1}, v{t+1}")
        a(f"v_cos_f32 v{t}, v{t}")
        a(f"v_cos_f32 v{t+1}, v{t+1}")
        for h in range(2 if n < 24 else 1):
            u = t + 2 + 2 * h
            addrs(n, h, u, 0)
            a(f"ds_write_b32 v{u}, v{W0+2*n+h} offset:{STG}")
        a(f"v_cvt_pk_bf16_f32 v{cr}, v{t}, v{t+1}")
        a(f"ds_write_b16 v{t+3}, v{cr} offset:{STG+8}")
        if n < 24: a(f"ds_write_b16_d16_hi v{t+5}, v{cr} offset:{STG+8}")
    a(f"s_mul_i32 s40, s2, {TILE_BYTES}")
    srd(a, 20, 32, CHA * 6, "s40")
    a(f"s_mul_i32 s40, s3, {WREG - 1024}")
    a(f"v_add_u32 v2, s40, v1")
    a(f"v_add_u32 v{TO}, {9*1024}, v2")
    a("s_mov_b32 s44, 0")
    a("s_waitcnt lgkmcnt(0)")
    a("s_barrier")
    P.stamp()
    a(f"s_cmp_lg_u32 s3, 15")
    a("s_cbranch_scc1 P1_noclr")
    a(f"v_and_b32 v3, 15, v0")
    a(f"v_lshlrev_b32 v3, 2, v3")
    a(f"v_add_u32 v3, {XW}, v3")
    a(f"v_mov_b32 v{T0}, 0")
    a(f"ds_write_b32 v3, v{T0}")
    a("P1_noclr:")
    def rd(k):
        t = T0 + 4 * (k % 6)
        a(f"ds_read_b128 v[{t}:{t+3}], v2 offset:{STG + 1024 * (9 - k)}")
    def store(k):
        t = T0 + 4 * (k % 6)
        if k == 0: a("s_mov_b64 exec, 0xffff")
        a(f"buffer_store_dwordx4 v[{t}:{t+3}], v{TO}, s[20:23], 0 offen {st}")
        if k == 0: a("s_mov_b64 exec, -1")
        a(f"v_subrev_u32 v{TO}, 1024, v{TO}")
    for k in range(6): rd(k)
    for k in range(6):
        a(f"s_waitcnt lgkmcnt({min(5, 9-k)})")
        store(k)
        if k + 6 < 10: rd(k + 6)
    a("s_waitcnt lgkmcnt(0)")
    a(f"s_cmp_ge_u32 s3, {o.nd}")
    a("s_cbranch_scc1 P1_nod")
    for k in range(6, 10): store(k)
    a("s_waitcnt vmcnt(0)")
    lds_ticket(a, 2, 0)
    a(f"s_cmp_lg_u32 s40, {o.nd-1}")
    a("s_cbranch_scc1 P1_nod")
    arrive(a, 2, LV_D)
    a("s_mov_b32 s44, 1")
    a("P1_nod:")
    a(f"s_mov_b32 s45, {(-CHA*6) & 0xffffffff}")
    a("s_barrier")
    P.stamp()
    nnow = 6
    for n in range(25):
        if n == 1:
            a("s_cmp_eq_u32 s44, 0")
            a("s_cbranch_scc1 P2_noreld")
            release(a, 2, LV_D, "d")
        if n % o.dstep == 1 and nnow < 10:
            a(f"s_cmp_lt_u32 s3, {o.nd}")
            a(f"s_cbranch_scc1 P1_ns{n}")
            store(nnow); nnow += 1
            a(f"P1_ns{n}:")
        for h in range(2 if n < 24 else 1):
            u = T0 + 16 + 2 * ((2 * n + h) % 4)
            addrs(n, h, u, "s45")
            a(f"ds_write_b32 v{u}, v{W0+2*n+h} offset:{STG}")
            a(f"ds_write_b16{'_d16_hi' if h else ''} v{u+1}, v{C0+n} offset:{STG+8}")
    assert nnow == 10
    lds_count(a, 4, XW + X_S)
    a(f"s_mul_i32 s40, s2, {TILE_BYTES}")
    a(f"s_add_u32 s40, s40, {CHA*6}")
    srd(a, 20, 32, (TILE_N - CHA) * 6, "s40")
    return XW, STG

LV_A, LV_B, LV_D, LV_E = 0, 1, 2, 3
X_A, X_S, X_X, X_I, X_B, X_R, X_C, X_H, X_CW, X_PW = 0, 4, 8, 12, 16, 20, 24, 28, 32, 48

def arrive(a, t, level):
    a(f"v_mov_b32 v{t}, 0")
    a(f"v_mov_b32 v{t+1}, 1")
    a("s_mov_b64 exec, 1")
    a(f"buffer_atomic_add v{t+1}, v{t}, s[24:27], 0 offen offset:{32*level} sc0 sc1")
    a("s_mov_b64 exec, -1")

def release(a, t, level, tag):
    a("s_waitcnt vmcnt(0)")
    a(f"v_readfirstlane_b32 s40, v{t+1}")
    a("s_cmp_lg_u32 s40, 255")
    a(f"s_cbranch_scc1 P2_norel{tag}")
    a("s_mov_b64 exec, 1")
    a(f"buffer_store_dword v{t+1}, v{t}, s[24:27], 0 offen offset:{128+4*level} sc1")
    a("s_mov_b64 exec, -1")
    a(f"P2_norel{tag}:")

def lds_count(a, t, word):
    a(f"v_mov_b32 v{t}, {word}")
    a(f"v_mov_b32 v{t+1}, 1")
    a("s_mov_b64 exec, 1")
    a("s_waitcnt lgkmcnt(0)")
    a(f"ds_add_u32 v{t}, v{t+1}")
    a("s_mov_b64 exec, -1")

def lds_wait(a, t, word, n, tag, sleep):
    a(f"v_mov_b32 v{t}, {word}")
    a(f"P2_lw{tag}:")
    a(f"ds_read_b32 v{t+1}, v{t}")
    a("s_waitcnt lgkmcnt(0)")
    a(f"v_readfirstlane_b32 s40, v{t+1}")
    a(f"s_cmp_ge_u32 s40, {n}")
    a(f"s_cbranch_scc1 P2_lg{tag}")
    if sleep: a(f"s_sleep {sleep}")
    guard(a)
    a(f"s_branch P2_lw{tag}")
    a(f"P2_lg{tag}:")

def lds_ticket(a, t, word):
    a(f"v_mov_b32 v{t}, {word}")
    a(f"v_mov_b32 v{t+1}, 1")
    a("s_mov_b64 exec, 1")
    a(f"ds_add_rtn_u32 v{t+1}, v{t}, v{t+1}")
    a("s_mov_b64 exec, -1")
    a("s_waitcnt lgkmcnt(0)")
    a(f"v_readfirstlane_b32 s40, v{t+1}")

def gen_p2(o, a, P, XW, STG):
    S = o.S
    uid = [0]
    LUT = 2048; CB = 2560; WSZ = NG * WSTR
    RBSZ = 100 * 512
    WB = CB + WSZ + 16 + (RBSZ - WSZ)
    RB_AT = (WB + WSZ - RBSZ, WB + WSZ + 32)
    WT = WB + WSZ + 32 + RBSZ
    assert WT + 2560 <= XW and WB < 65536 and WB + 2 * WSZ + 4096 <= WT
    a("s_and_b32 s46, s2, 7")
    a("s_lshl_b32 s46, s46, 5")
    a("s_lshr_b32 s47, s2, 3")
    a("s_add_u32 s46, s46, s47")
    a("v_and_b32 v12, 63, v0")
    srd(a, 8, 48, E * 32)
    srd(a, 12, 32, NT * TILE_BYTES)
    srd(a, 16, 32, NT * NT * S * 4, WS_DESC)
    srd(a, 28, 50, 512)
    a("s_mov_b64 s[6:7], s[86:87]")
    if o.prof: a("s_mov_b32 s71, 0")
    a("s_mov_b32 s48, 0")
    a("s_cmp_ge_u32 s3, 4")
    a("s_cbranch_scc1 P2_consumer")
    def twait(body):
        if o.prof:
            a("s_waitcnt lgkmcnt(0)")
            a("s_memtime s[56:57]")
            a("s_waitcnt lgkmcnt(0)")
        body()
        if o.prof:
            a("s_memtime s[58:59]")
            a("s_waitcnt lgkmcnt(0)")
            a("s_sub_u32 s56, s58, s56")
            a("s_add_u32 s71, s71, s56")
    D0 = 40; R0 = 64
    vU12 = 1; vTile = 2; vInc = 3; v3FC = 4; vCb = 5; vZ = 6; v2U2 = 7; v2U1 = 8; vSg = 9
    n2c = 10; a0c = 11; n2n = 13; a0n = 14
    vca = 16; vcb = 17; vra = 18; vrb = 19; vwa = 20; vwb = 21; vha = 22; vhb = 23; vt = 24; vt2 = 25; vPW = 26; vS = 28
    ODDC = 52; MORC = 54; ODDN = 84; MORN = 86; ROW0 = 82; M0_ = 88; M1_ = 90
    KSL, BSL = slicing(o)
    L0 = -(-(1 << 26) // KSL) // 4 + 1
    def warm():
        n = -(-L0 // 1024)
        a(f"s_mul_i32 s40, s49, {L0 - 1}")
        a(f"s_lshl_b32 s41, s2, 2")
        a(f"s_add_u32 s41, s41, s3")
        a(f"s_mul_i32 s41, s41, {n}")
        a(f"s_add_u32 s40, s40, s41")
        a(f"s_sub_u32 s40, s40, {BSL // KSL // 4}")
        a(f"s_min_u32 s40, s40, {E // 4 - n}")
        a(f"s_lshl_b32 s40, s40, 7")
        a(f"s_add_u32 s36, s8, s40")
        a(f"s_addc_u32 s37, s9, 0")
        for j in range(n): a(f"s_load_dwordx2 s[38:39], s[36:37], {128*j+60}")
    def poll(level, tag, meanwhile=None):
        a("s_mov_b32 s51, 0")
        a(f"P2_poll{tag}:")
        a(f"buffer_load_dword v{vt}, v{vZ}, s[24:27], 0 offen offset:{128+4*level} sc1")
        a("s_add_u32 s51, s51, 1")
        a(f"s_cmp_gt_u32 s51, {o.maxpoll}")
        a("s_cbranch_scc1 P2_giveup")
        if meanwhile: a(f"s_call_b64 s[34:35], {meanwhile}")
        a("s_waitcnt vmcnt(0)")
        a(f"v_cmp_eq_u32 vcc, 0, v{vt}")
        a(f"s_cbranch_vccz P2_polled{tag}")
        a(f"s_sleep {o.gsleep}")
        a(f"s_branch P2_poll{tag}")
        a(f"P2_polled{tag}:")
    def prep():
        uid[0] += 1; u = uid[0]
        a(f"v_cmp_lt_u32 vcc, s45, v{D0}")
        a(f"s_cbranch_vccz P2_have{u}")
        a("s_call_b64 s[42:43], P2_ensure")
        a(f"P2_have{u}:")
        a(f"v_bfe_u32 v{vt}, v{D0}, 1, 15")
        a(f"v_mad_u32_u24 v{a0n}, v{vt}, 12, v{vTile}")
        a(f"v_lshrrev_b32 v{n2n}, 16, v{D0}")
        a(f"v_and_b32 v{vt}, 0xfffe, v{D0}")
        a(f"v_sub_u32 v{n2n}, v{n2n}, v{vt}")
        a(f"v_and_b32 v{vt}, 1, v{D0}")
        a(f"v_cmp_eq_u32 s[{ODDN}:{ODDN+1}], 1, v{vt}")
        a(f"v_cmp_lt_u32 s[{MORN}:{MORN+1}], 32, v{n2n}")
        for k in range(S): a(f"v_mov_b32 v{D0+k}, v{D0+k+1}")
    def issue(i):
        t = (vt, vca)[i % 2]
        a(f"v_add_u32_dpp v{t}, v{a0n}, v{vU12} row_newbcast:{i} row_mask:0xf bank_mask:0xf")
        a(f"v_sub_u32_dpp v{t+1}, v{n2n}, v{v2U1} row_newbcast:{i} row_mask:0xf bank_mask:0xf")
        a(f"v_bitop3_b32 v{t}, v{t+1}, v{vSg}, v{t} bitop3:0xea")
        r = R0 + 4 * i
        a(f"buffer_load_dwordx3 v[{r}:{r+2}], v{t}, s[12:15], 0 offen sc1")
    def unhold():
        if o.hold >= 16: return
        a("s_lshl_b32 s40, 1, s3")
        a(f"v_mov_b32 v{vt}, {XW + X_H}")
        a(f"v_mov_b32 v{vt2}, s40")
        a("s_mov_b64 exec, 1")
        a(f"ds_or_b32 v{vt}, v{vt2}")
        a("s_mov_b64 exec, -1")
    def next_round(regular):
        a(f"s_mov_b32 s98, {int(regular)}")
        a("s_call_b64 s[42:43], P2_next")
    def wait_buffer(tag):
        a("s_lshr_b32 s50, s48, 1")
        a("s_mul_i32 s50, s50, 12")
        a("s_and_b32 s51, s48, 1")
        a("s_lshl_b32 s51, s51, 2")
        a(f"s_add_u32 s51, s51, {XW + X_CW}")
        a(f"v_mov_b32 v{vt2}, s51")
        a(f"P2_pw{tag}:")
        a(f"ds_read_b32 v{vt}, v{vt2}")
        a("s_waitcnt lgkmcnt(0)")
        a(f"v_readfirstlane_b32 s51, v{vt}")
        a("s_cmp_ge_u32 s51, s50")
        a(f"s_cbranch_scc1 P2_pg{tag}")
        a(f"s_sleep {o.psleep}")
        guard(a)
        a(f"s_branch P2_pw{tag}")
        a(f"P2_pg{tag}:")
    a("s_setprio 3")
    a("s_waitcnt vmcnt(0)")
    lds_count(a, vt, XW + X_A)
    a(f"s_lshl_b32 s47, s3, 6")
    a(f"v_add_u32 v{vTile}, s47, v12")
    a(f"s_lshl_b32 s50, s3, 2")
    a(f"s_add_u32 s50, s50, {XW + X_PW}")
    a(f"v_mov_b32 v{vPW}, s50")
    a(f"v_lshlrev_b32 v15, 8, v{vTile}")
    a(f"v_add_u32 v15, s46, v15")
    a(f"v_mul_u32_u24 v15, {4*S}, v15")
    a(f"v_mov_b32 v{D0+S}, 0")
    a(f"v_mul_u32_u24 v{vTile}, {TILE_BYTES}, v{vTile}")
    a(f"v_and_b32 v{vt}, 15, v12")
    a(f"v_mul_u32_u24 v{vU12}, 12, v{vt}")
    a(f"v_lshl_add_u32 v{v2U1}, v{vt}, 1, 1")
    a(f"v_add_u32 v{v2U2}, 1, v{v2U1}")
    a(f"v_mov_b32 v{vInc}, {(1 << 20) + 4}")
    a(f"v_mov_b32 v{v3FC}, 0x3fc")
    a(f"v_mov_b32 v{vSg}, 0x80000000")
    for r in (vCb, vZ, vra, vrb, vS, vS + 1): a(f"v_mov_b32 v{r}, 0")
    a("s_mov_b32 s49, 0")
    a(f"s_mov_b32 s{ROW0}, 0x00010001")
    a(f"s_mov_b32 s{ROW0+1}, 0x00010001")
    a(f"s_mov_b32 s45, {((o.nd * WREG // 12 * 2) << 16) | 0xffff}")
    a("s_cmp_eq_u32 s3, 1")
    a("s_cselect_b32 s44, 1, 0")
    nsave = P.n
    P.stamp()
    q = 32
    for i in range(4): a(f"v_mov_b32 v{q+i}, {MARK}")
    a(f"v_lshlrev_b32 v{q+4}, 4, v0")
    a(f"v_add_u32 v{q+5}, {WB}, v{q+4}")
    a(f"v_add_u32 v{q+6}, {WB + 11 * 4096}, v{q+4}")
    a(f"v_and_b32 v52, 15, v12")
    a(f"v_lshrrev_b32 v53, 4, v12")
    a(f"v_lshrrev_b32 v56, 2, v52")
    a(f"v_cmp_eq_u32 vcc, v56, v53")
    a(f"v_and_b32 v56, 3, v12")
    a(f"v_lshlrev_b32 v56, 4, v56")
    a(f"v_mov_b32 v54, 0xffff")
    a(f"v_mov_b32 v55, 0")
    a(f"v_cndmask_b32 v54, 0, v54, vcc")
    a(f"v_lshlrev_b64 v[54:55], v56, v[54:55]")
    a(f"v_and_b32 v56, 1, v53")
    a(f"v_lshlrev_b32 v56, 3, v56")
    a(f"v_lshl_add_u32 v52, v52, 4, v56")
    a(f"v_lshrrev_b32 v53, 1, v53")
    a(f"v_lshl_add_u32 v52, v53, 8, v52")
    a(f"v_lshlrev_b32 v53, 2, v0")
    a(f"v_mul_u32_u24 v56, {WSTR}, v0")
    a(f"v_add_u32 v56, {(64 - CAP) << 20}, v56")
    a(f"v_add_u32 v57, {WSZ}, v56")
    a("s_mov_b32 s47, 0")
    assert S <= 11
    poll(LV_E, "e")
    k = 0
    while k < S:
        w = 4 if S - k >= 4 else (2 if S - k >= 2 else 1)
        sfx = {4: "x4", 2: "x2", 1: ""}[w]
        dst = f"v[{D0+k}:{D0+k+w-1}]" if w > 1 else f"v{D0+k}"
        a(f"buffer_load_dword{sfx} {dst}, v15, s[16:19], 0 offen offset:{4*k} sc1")
        k += w
    if o.dry:
        a(f"v_mov_b32 v{n2n}, 0")
        a(f"v_mov_b32 v{a0n}, 0")
        a(f"s_mov_b64 s[{ODDN}:{ODDN+1}], 0")
        a(f"s_mov_b64 s[{MORN}:{MORN+1}], 0")
        a("s_mov_b32 s98, 1")
        a("s_branch P2_first")
        a("P2_dried:")
    poll(LV_D, "d", "P2_tryinit")
    P.stamp()
    prep()
    for i in range(16): issue(i)
    if o.hold < 16:
        a(f"s_waitcnt vmcnt({o.holdn})")
        unhold()
    P.stamp()
    a("s_cmp_lg_u32 s47, 0")
    a("s_cbranch_scc1 P2_inited")
    lds_wait(a, vt, XW + X_X, 12, "x", 1)
    a("s_call_b64 s[34:35], P2_tryinit")
    a("P2_inited:")
    a("s_cmp_lg_u32 s44, 1")
    a("s_cbranch_scc1 P2_noarr")
    a("s_mov_b32 s44, 3")
    lds_wait(a, vS, XW + X_A, 16, "a0", 1)
    arrive(a, vS, LV_A)
    a("P2_noarr:")
    lds_wait(a, vt, XW + X_I, 4, "i", 0)
    P.stamp()
    def rela():
        uid[0] += 1
        a("s_cmp_lg_u32 s44, 3")
        a(f"s_cbranch_scc1 P2_nra{uid[0]}")
        a("s_call_b64 s[34:35], P2_rela")
        a(f"P2_nra{uid[0]}:")
    def ppass(tg, inl):
        a(f"v_mov_b32 v{n2c}, v{n2n}")
        a(f"v_mov_b32 v{a0c}, v{a0n}")
        a(f"s_mov_b64 s[{ODDC}:{ODDC+1}], s[{ODDN}:{ODDN+1}]")
        a(f"s_mov_b64 s[{MORC}:{MORC+1}], s[{MORN}:{MORN+1}]")
        if inl: prep()
        for i in range(16):
            r = R0 + 4 * i
            a(f"v_sub_co_u32_dpp v{vt}, vcc, v{n2c}, v{v2U1} row_newbcast:{i} row_mask:0xf bank_mask:0xf")
            a(f"s_and_b64 s[92:93], s[{ODDC}:{ODDC+1}], s[{ROW0}:{ROW0+1}]")
            a(f"s_nor_b64 s[{M0_}:{M0_+1}], vcc, s[92:93]")
            a(f"v_sub_co_u32_dpp v{vt2}, vcc, v{n2c}, v{v2U2} row_newbcast:{i} row_mask:0xf bank_mask:0xf")
            a(f"s_lshr_b64 s[{ODDC}:{ODDC+1}], s[{ODDC}:{ODDC+1}], 1")
            a(f"s_not_b64 s[{M1_}:{M1_+1}], vcc")
            a(f"s_waitcnt vmcnt({15 if inl else 15 - i})")
            a(f"P2_retry{tg}{i}:")
            a(f"v_lshrrev_b32 v{vca}, 18, v{r}")
            a(f"v_lshrrev_b32 v{vcb}, 18, v{r+1}")
            a(f"v_bitop3_b32 v{vca}, v{vca}, v{v3FC}, v{vCb} bitop3:0xea")
            a(f"v_bitop3_b32 v{vcb}, v{vcb}, v{v3FC}, v{vCb} bitop3:0xea")
            a(f"s_mov_b64 exec, s[{M0_}:{M0_+1}]")
            a(f"ds_add_rtn_u32 v{vra}, v{vca}, v{vInc}")
            a(f"s_mov_b64 exec, s[{M1_}:{M1_+1}]")
            a(f"ds_add_rtn_u32 v{vrb}, v{vcb}, v{vInc}")
            a(f"s_mov_b64 exec, -1")
            a(f"v_and_b32 v{vwa}, 0xf00fffff, v{r}")
            a(f"v_and_b32 v{vwb}, 0xf00fffff, v{r+1}")
            a("s_waitcnt lgkmcnt(0)")
            a(f"v_and_b32 v{vra}, 0xfc03ffff, v{vra}")
            a(f"v_and_b32 v{vrb}, 0xfc03ffff, v{vrb}")
            a(f"v_lshrrev_b32 v{vha}, 1, v{vra}")
            a(f"v_lshrrev_b32 v{vhb}, 1, v{vrb}")
            a(f"v_or_b32 v{vt}, v{vra}, v{vrb}")
            a(f"v_cmp_lt_u32 vcc, v{vInc}, v{vt}")
            a(f"s_mov_b64 exec, s[{M0_}:{M0_+1}]")
            a(f"ds_write_b32 v{vra}, v{vwa} offset:{WB}")
            a(f"ds_write_b16 v{vha}, v{r+2} offset:{CB}")
            a(f"s_mov_b64 exec, s[{M1_}:{M1_+1}]")
            a(f"ds_write_b32 v{vrb}, v{vwb} offset:{WB}")
            a(f"ds_write_b16_d16_hi v{vhb}, v{r+2} offset:{CB}")
            a(f"s_mov_b64 exec, -1")
            a(f"s_cbranch_vccnz P2_stall{tg}{i}")
            a(f"s_and_b64 s[92:93], s[{MORC}:{MORC+1}], s[{ROW0}:{ROW0+1}]")
            a(f"s_cbranch_scc1 P2_more{tg}{i}")
            a(f"s_lshr_b64 s[{MORC}:{MORC+1}], s[{MORC}:{MORC+1}], 1")
            if inl: issue(i)
            elif i == o.reli: rela()
    if o.dry:
        a("s_mov_b32 s98, 0")
        a("P2_first:")
    ppass("f", False)
    if o.dry:
        a("s_cmp_lg_u32 s98, 0")
        a("s_cbranch_scc1 P2_dried")
    P.stamp()
    a("s_mov_b32 s49, 1")
    a("s_cmp_ge_u32 s48, s49")
    a("s_cbranch_scc1 P2_ff1")
    next_round(False)
    a("P2_ff1:")
    prep()
    for i in range(16): issue(i)
    if o.sw: warm()
    a("P2_pslice:")
    ppass("", True)
    a("s_add_u32 s49, s49, 1")
    a(f"s_cmp_ge_u32 s49, {S}")
    a("s_cbranch_scc1 P2_pdone")
    a("s_cmp_ge_u32 s48, s49")
    a("s_cbranch_scc1 P2_pslice")
    next_round(True)
    a("s_branch P2_pslice")
    a("P2_next:")
    a("s_add_u32 s48, s48, 1")
    if o.maxr:
        a(f"s_cmp_gt_u32 s48, {o.maxr}")
        a("s_cbranch_scc1 P2_giveup")
    a(f"v_mov_b32 v{vt}, s48")
    a("s_waitcnt lgkmcnt(0)")
    a(f"ds_write_b32 v{vPW}, v{vt}")
    a(f"v_xor_b32 v{vCb}, 1024, v{vCb}")
    rela()
    a("s_cmp_lg_u32 s48, 2")
    a("s_cbranch_scc1 P2_next1")
    a("s_call_b64 s[96:97], P2_pubb")
    a("P2_next1:")
    if o.sw:
        a("s_cmp_eq_u32 s98, 0")
        a("s_cbranch_scc1 P2_next2")
        warm()
        a("P2_next2:")
    twait(lambda: wait_buffer("n"))
    a("s_setpc_b64 s[42:43]")
    a("P2_tryinit:")
    a("s_cmp_lg_u32 s47, 0")
    a("s_cbranch_scc1 P2_tryinit1")
    a(f"v_mov_b32 v{vt2}, {XW + X_X}")
    a(f"ds_read_b32 v{vt2}, v{vt2}")
    a("s_waitcnt lgkmcnt(0)")
    a(f"v_readfirstlane_b32 s40, v{vt2}")
    a("s_cmp_lt_u32 s40, 12")
    a("s_cbranch_scc1 P2_tryinit1")
    a("s_mov_b32 s47, 1")
    a(f"ds_write_b64 v52, v[54:55] offset:{LUT}")
    a(f"ds_write_b32 v53, v56")
    a(f"ds_write_b32 v53, v57 offset:1024")
    assert 11 * 4096 >= WSZ + 16 and CB + 11 * 4096 <= WB and 22 * 4096 >= 2 * WSZ + 64
    for k in range(11):
        a(f"ds_write_b128 v{q+4}, v[{q}:{q+3}] offset:{CB + 4096 * k}")
        a(f"ds_write_b128 v{q+5}, v[{q}:{q+3}] offset:{4096 * k}")
        a(f"ds_write_b128 v{q+6}, v[{q}:{q+3}] offset:{4096 * k}")
    lds_count(a, 58, XW + X_I)
    a("P2_tryinit1:")
    a("s_setpc_b64 s[34:35]")
    a("P2_rela:")
    a("s_mov_b32 s44, 0")
    release(a, vS, LV_A, "a0")
    a("s_setpc_b64 s[34:35]")
    a("P2_pubb:")
    lds_ticket(a, vS, XW + X_C)
    a("s_cmp_lg_u32 s40, 0")
    a("s_cbranch_scc1 P2_norelb")
    lds_wait(a, vS, XW + X_B, 12, "b", 1)
    arrive(a, vS, LV_B)
    release(a, vS, LV_B, "b")
    a("s_setpc_b64 s[96:97]")
    a("P2_ensure:")
    unhold()
    a("s_cmp_lg_u32 s44, 1")
    a("s_cbranch_scc1 P2_norela1")
    a("s_mov_b32 s44, 0")
    lds_wait(a, vS, XW + X_A, 16, "a1", 1)
    arrive(a, vS, LV_A)
    release(a, vS, LV_A, "a1")
    poll(LV_A, "a", "P2_tryinit")
    a(f"s_mov_b32 s45, {(CHA << 16) | 0xffff}")
    a(f"v_cmp_lt_u32 vcc, s45, v{D0}")
    a("s_cbranch_vccz P2_ens1")
    a("s_call_b64 s[96:97], P2_pubb")
    poll(LV_B, "b", "P2_tryinit")
    a("s_mov_b32 s45, -1")
    a("P2_ens1:")
    a("s_setpc_b64 s[42:43]")
    for tg, i in [(t_, i_) for t_ in ("", "f") for i_ in range(16)]:
        r = R0 + 4 * i
        a(f"P2_stall{tg}{i}:")
        a(f"v_cmp_lt_u32 s[{M0_}:{M0_+1}], v{vInc}, v{vra}")
        a(f"v_cmp_lt_u32 s[{M1_}:{M1_+1}], v{vInc}, v{vrb}")
        next_round(False)
        a(f"s_branch P2_retry{tg}{i}")
        a(f"P2_more{tg}{i}:")
        a(f"s_lshl_b64 exec, s[{ROW0}:{ROW0+1}], {i}")
        a(f"v_max_u32 v{n2c}, 32, v{n2c}")
        a(f"v_subrev_u32 v{n2c}, 32, v{n2c}")
        a(f"v_add_u32 v{a0c}, 192, v{a0c}")
        a(f"v_cmp_lt_u32 vcc, 32, v{n2c}")
        a(f"s_mov_b64 exec, -1")
        a(f"s_lshr_b64 s[92:93], vcc, {i}")
        a(f"s_andn2_b64 s[{MORC}:{MORC+1}], s[{MORC}:{MORC+1}], s[{ROW0}:{ROW0+1}]")
        a(f"s_or_b64 s[{MORC}:{MORC+1}], s[{MORC}:{MORC+1}], s[92:93]")
        a(f"v_sub_co_u32_dpp v{vt2}, vcc, v{n2c}, v{v2U2} row_newbcast:{i} row_mask:0xf bank_mask:0xf")
        a(f"s_not_b64 s[{M1_}:{M1_+1}], vcc")
        a(f"v_sub_co_u32_dpp v{vt2}, vcc, v{n2c}, v{v2U1} row_newbcast:{i} row_mask:0xf bank_mask:0xf")
        a(f"v_add_u32_dpp v{vt}, v{a0c}, v{vU12} row_newbcast:{i} row_mask:0xf bank_mask:0xf")
        a(f"s_not_b64 s[{M0_}:{M0_+1}], vcc")
        a(f"v_cndmask_b32 v{vt}, v{vt}, v{vSg}, vcc")
        a(f"buffer_load_dwordx3 v[{r}:{r+2}], v{vt}, s[12:15], 0 offen sc1")
        a("s_waitcnt vmcnt(0)")
        a(f"s_branch P2_retry{tg}{i}")
    a("P2_giveup:")
    lds_count(a, vt, XW + X_I)
    unhold()
    a("P2_pdone:")
    a("s_add_u32 s48, s48, 0x40000001")
    a(f"v_mov_b32 v{vt}, s48")
    a("s_waitcnt lgkmcnt(0)")
    a(f"ds_write_b32 v{vPW}, v{vt}")
    a(f"s_setprio {o.eprio}")
    a("s_load_dwordx2 s[6:7], s[0:1], 24")
    a("s_load_dwordx2 s[34:35], s[0:1], 40")
    a("s_load_dwordx8 s[36:43], s[0:1], 56")
    DS = 30; CEN = 56; RB0 = 64; t = 60; X = 1
    a("v_and_b32 v13, 15, v12")
    a("v_lshrrev_b32 v14, 4, v12")
    a(f"v_lshlrev_b32 v{X}, 7, v14")
    a(f"v_lshl_add_u32 v{X}, v13, 1, v{X}")
    a(f"v_and_b32 v{X+1}, 0xff, v{X}")
    a(f"v_and_b32 v{X+2}, 1, v14")
    a(f"v_lshlrev_b32 v{X+2}, 3, v{X+2}")
    a(f"v_lshrrev_b32 v{X+3}, 1, v14")
    a(f"v_lshlrev_b32 v{X+3}, 13, v{X+3}")
    a(f"v_lshl_add_u32 v{X+3}, v13, 1, v{X+3}")
    a("s_lshl_b32 s47, s46, 5")
    a(f"v_add_u32 v{X+3}, s47, v{X+3}")
    a(f"v_cmp_gt_u32 s[88:89], 32, v12")
    a("s_waitcnt vmcnt(0) lgkmcnt(0)")
    srd(a, 20, 6, E * 2)
    srd(a, 28, 42, 512)
    srd(a, 12, 38, 256)
    srd(a, 16, 36, 256)
    srd(a, 52, 34, 16)
    for c in range(4): a(f"buffer_load_ushort v{CEN+c}, v{X+2}, s[52:55], 0 offen offset:{2*c}")
    a("s_mul_i32 s47, s3, 25")
    for k in range(25):
        a("s_mul_i32 s50, s47, 57")
        a("s_lshr_b32 s50, s50, 9")
        a("s_min_u32 s50, s50, 4")
        a("s_lshl_b32 s51, s47, 1")
        a("s_sub_u32 s50, s51, s50")
        a("s_lshl_b32 s50, s50, 13")
        a(f"v_add_u32 v{DS+k}, s50, v{X+3}")
        a("s_add_u32 s47, s47, 1")
        a(f"buffer_load_ushort v{DS+k}, v{DS+k}, s[20:23], 0 offen")
    assert all((n * 57) >> 9 == n // 9 for n in range(45))
    Y = 116
    for c in range(4): a(f"buffer_load_ushort v{Y+c}, v{X}, s[28:31], 0 offen offset:{32*c}")
    for c in range(4): a(f"buffer_load_ushort v{Y+4+c}, v{X+1}, s[12:15], 0 offen offset:{32*c}")
    for c in range(4): a(f"buffer_load_ushort v{Y+8+c}, v{X+1}, s[16:19], 0 offen offset:{32*c}")
    a("s_waitcnt vmcnt(36)")
    for c in range(4): a(f"v_lshlrev_b32 v{CEN+c}, 16, v{CEN+c}")
    def rnd():
        for u in range(2):
            a(f"v_cvt_pk_bf16_f32 v{t+2*u+1}, v{t+2*u}, v{t+2*u+1}")
        for u in range(2):
            a(f"v_lshlrev_b32 v{t+2*u}, 16, v{t+2*u+1}")
            a(f"v_and_b32 v{t+2*u+1}, 0xffff0000, v{t+2*u+1}")
    for k in range(25):
        d = DS + k
        a(f"s_waitcnt vmcnt({36 - k})")
        a(f"v_lshlrev_b32 v{d}, 16, v{d}")
        for c in range(4): a(f"v_sub_f32 v{t+c}, v{d}, v{CEN+c}")
        rnd()
        for c in range(4): a(f"v_mul_f32 v{t+c}, v{t+c}, v{t+c}")
        rnd()
        for c in range(4): a(f"v_mul_f32 v{t+c}, 0xc1200000, v{t+c}")
        rnd()
        for c in range(4): a(f"v_mul_f32 v{t+c}, 0x3fb8aa3b, v{t+c}")
        for c in range(4): a(f"v_exp_f32 v{t+c}, v{t+c}")
        for u in range(2): a(f"v_cvt_pk_bf16_f32 v{RB0+2*k+u}, v{t+2*u}, v{t+2*u+1}")
    a("s_waitcnt vmcnt(0)")
    Z = 30
    for u in range(2):
        a(f"v_lshl_or_b32 v{Z+8+u}, v{Y+2*u+1}, 16, v{Y+2*u}")
        a(f"v_lshl_or_b32 v{Y+4+u}, v{Y+5+2*u}, 16, v{Y+4+2*u}")
        a(f"v_lshl_or_b32 v{Y+8+u}, v{Y+9+2*u}, 16, v{Y+8+2*u}")
    for u in range(2):
        a(f"v_cndmask_b32 v{Z+u}, 0, v{Y+4+u}, s[88:89]")
        a(f"v_cndmask_b32 v{Z+2+u}, v{Y+4+u}, 0, s[88:89]")
        a(f"v_cndmask_b32 v{Z+4+u}, 0, v{Y+8+u}, s[88:89]")
        a(f"v_cndmask_b32 v{Z+6+u}, v{Y+8+u}, 0, s[88:89]")
    a(f"v_lshlrev_b32 v{X}, 3, v12")
    a(f"v_add_u32 v{X+1}, {WT}, v{X}")
    a(f"v_and_b32 v{X+2}, 3, v12")
    a(f"v_lshlrev_b32 v{X+2}, 2, v{X+2}")
    a(f"v_add_u32 v{X+2}, {XW + X_PW}, v{X+2}")
    a("P2_dw:")
    a(f"ds_read_b32 v{vt}, v{X+2}")
    a("s_waitcnt lgkmcnt(0)")
    a(f"v_cmp_gt_u32 vcc, 2.0, v{vt}")
    a("s_cbranch_vccz P2_dg")
    a(f"s_sleep {o.psleep}")
    guard(a)
    a("s_branch P2_dw")
    a("P2_dg:")
    a(f"v_readlane_b32 s48, v{vt}, 0")
    for k in range(1, 4):
        a(f"v_readlane_b32 s50, v{vt}, {k}")
        a("s_max_u32 s48, s48, s50")
    a("s_and_b32 s48, s48, 0x3fffffff")
    wait_buffer("e")
    a("s_bitcmp1_b32 s48, 0")
    a(f"s_cselect_b32 s50, {RB_AT[1] - RB_AT[0]}, 0")
    a(f"s_add_u32 s50, s50, {RB_AT[0]}")
    a(f"s_mul_i32 s51, s3, {25*512}")
    a("s_add_u32 s50, s50, s51")
    a(f"v_add_u32 v{X}, s50, v{X}")
    for k in range(5): a(f"ds_write_b64 v{X+1}, v[{Z+2*k}:{Z+2*k+1}] offset:{512*k}")
    for k in range(25): a(f"ds_write_b64 v{X}, v[{RB0+2*k}:{RB0+2*k+1}] offset:{512*k}")
    lds_count(a, vt, XW + X_R)
    a("s_waitcnt lgkmcnt(0)")
    if o.prof:
        P.stamp(); P.dump(32, 0x80000, 8, 3); P.n = nsave
    a("s_endpgm")
    a("P2_consumer:")
    ACC = 60; G0 = 52; B0 = 44; WA = 36; WBr = 40; D1 = 28; vM = 24; vC = 20; vX = 16
    bA = 1; bE = 2; bC = 3; bR = 4; vH = 5; vL = 6; vCA = 7; vCI = 8; vA = 9; vE = 10
    a("s_sub_u32 s47, s3, 4")
    a("s_min_u32 s44, s47, 4")
    a("s_lshl_b32 s49, s47, 4")
    a("s_add_u32 s49, s49, s44")
    a("s_cmp_lt_u32 s47, 4")
    a("s_cselect_b32 s50, 17, 16")
    a(f"s_cselect_b32 s84, 0, {MARK}")
    a(f"s_cselect_b32 s85, {17*WSTR//16-192}, {16*WSTR//16-192}")
    a("s_bfm_b64 s[92:93], s85, 0")
    a("v_and_b32 v13, 15, v12")
    a("v_lshrrev_b32 v14, 4, v12")
    a(f"v_and_b32 v{vH}, 16, v12")
    a(f"v_lshlrev_b32 v{vA}, 4, v{vH}")
    a(f"v_lshl_add_u32 v{vA}, v13, 1, v{vA}")
    a(f"v_subrev_u32 v60, 256, v0")
    a(f"v_lshlrev_b32 v60, 4, v60")
    for k in range(1, 4): a(f"v_add_u32 v{60+k}, {4*12288*k}, v60")
    lds_wait(a, vX, XW + X_S, 16, "s", 1)
    P.stamp()
    for k in range(13):
        a(f"ds_read_b128 v[{64+4*k}:{67+4*k}], v{60+k//4} offset:{STG+12288*(k%4)}")
    lds_count(a, vX, XW + X_X)
    a("s_waitcnt vmcnt(0)")
    lds_count(a, vX, XW + X_A)
    if o.hold < 16:
        a(f"s_cmp_lt_u32 s3, {o.hold}")
        a("s_cbranch_scc1 P2_lgh")
        lds_wait(a, vX, XW + X_H, 15, "h", 2)
    if o.spr: a(f"s_setprio {o.spr}")
    for k in range(13):
        a(f"buffer_store_dwordx4 v[{64+4*k}:{67+4*k}], v60, s[20:23], 0 offen {o.p1_st}")
        a(f"v_add_u32 v60, 12288, v60")
    for c in range(8): a(f"buffer_load_ushort v{vC+c}, v{vA}, s[28:31], 0 offen offset:{32*c}")
    if o.spr: a("s_setprio 0")
    a(f"v_and_b32 v0, 3, v12")
    a(f"v_lshlrev_b32 v0, 2, v0")
    a(f"v_add_u32 v0, {XW + X_CW}, v0")
    a(f"s_mul_i32 s51, s49, {WSTR}")
    a(f"s_lshr_b32 s86, s51, 1")
    a(f"s_add_u32 s86, s86, {CB}")
    a(f"v_lshl_add_u32 v{bC}, v14, 4, s86")
    a(f"v_mul_u32_u24 v{vCI}, {WSTR}, v12")
    a(f"s_add_u32 s86, s51, {(64 - CAP) << 20}")
    a(f"v_add_u32 v{vCI}, s86, v{vCI}")
    a(f"s_add_u32 s51, s51, {WB}")
    a(f"v_lshl_add_u32 v{bR}, v12, 4, s51")
    a(f"v_and_b32 v{vA}, 12, v12")
    a(f"v_lshlrev_b32 v{bA}, 1, v{vA}")
    a(f"v_and_or_b32 v{bA}, v12, 3, v{bA}")
    a(f"v_lshrrev_b32 v{vE}, 5, v12")
    a(f"v_lshl_or_b32 v{bA}, v{vE}, 2, v{bA}")
    a(f"v_lshl_add_u32 v{bA}, v{bA}, 2, s51")
    a(f"v_lshl_add_u32 v{bE}, v14, 5, v{vA}")
    a(f"v_add_u32 v{bE}, s51, v{bE}")
    a(f"v_and_b32 v{vL}, 1, v12")
    a(f"v_lshlrev_b32 v{vL}, 3, v{vL}")
    a(f"v_and_b32 v{vA}, 2, v12")
    a(f"v_lshl_add_u32 v{vL}, v{vA}, 7, v{vL}")
    a(f"v_add_lshl_u32 v{vCA}, v12, s49, 2")
    a(f"v_cmp_gt_u32 vcc, s50, v12")
    a(f"v_cmp_gt_u32 s[88:89], 32, v12")
    a(f"s_mov_b32 s85, {(64 - CAP + 33) << 20}")
    a("s_mov_b32 s94, 0xf000f000")
    a("s_mov_b32 s95, 0xf000f000")
    a(f"v_cndmask_b32 v{vCA}, 2.0, v{vCA}, vcc")
    a(f"s_lshl_b32 s51, s49, 8")
    a(f"s_add_u32 s51, s51, s46")
    a(f"s_lshl_b32 s51, s51, 4")
    a(f"v_add_lshl_u32 v15, v13, s51, 5")
    a(f"v_lshl_add_u32 v15, v14, 3, v15")
    a(f"v_lshlrev_b32 v13, 3, v12")
    for i in range(16): a(f"v_mov_b32 v{B0+i}, 0")
    for i in range(68): a(f"v_mov_b32 v{ACC+i}, 0")
    a("s_waitcnt vmcnt(0)")
    lds_count(a, vX, XW + X_B)
    for u in range(4):
        a(f"v_lshl_or_b32 v{vC+u}, v{vC+2*u+1}, 16, v{vC+2*u}")
    for u in range(4):
        a(f"v_cndmask_b32 v{WA+u}, 0, v{vC+u}, s[88:89]")
        a(f"v_cndmask_b32 v{WBr+u}, v{vC+u}, 0, s[88:89]")
    srd(a, 20, 6, E * 32)
    P.stamp()
    def reads1(par, i, second):
        oa = par * WSZ + i * WSTR + (128 if second else 0)
        a(f"ds_read_b32 v{vA}, v{bA} offset:{oa}")
        a(f"ds_read_u8 v{vE}, v{bE} offset:{oa+3}")
        a(f"ds_read_u8 v{vE+1}, v{bE} offset:{oa+19}")
    def reads2(par, i, second):
        oc = (par * WSZ + i * WSTR + (128 if second else 0)) // 2
        a(f"v_add_u32 v{vE}, v{vE}, v{vL}")
        a(f"v_add_u32 v{vE+1}, v{vE+1}, v{vL}")
        a(f"ds_read_b64_tr_b16 v[{vM}:{vM+1}], v{vE} offset:{LUT}")
        a(f"ds_read_b64_tr_b16 v[{vM+2}:{vM+3}], v{vE+1} offset:{LUT}")
        a(f"ds_read_b128 v[{vC}:{vC+3}], v{bC} offset:{oc}")
    def addr():
        a(f"v_mad_u32_u24 v{vA}, v{vA}, 32, v{vH}")
    def mfma1(g):
        a(f"v_mfma_f32_16x16x32_bf16 v[{D1}:{D1+3}], v[{g}:{g+3}], v[{WA}:{WA+3}], 0")
        a(f"v_mfma_f32_16x16x32_bf16 v[{D1+4}:{D1+7}], v[{g}:{g+3}], v[{WBr}:{WBr+3}], 0")
    def mfma2(i, b):
        for u in range(4): a(f"v_cvt_pk_bf16_f32 v{D1+u}, v{D1+2*u}, v{D1+2*u+1}")
        c = ACC + 4 * i
        a(f"v_mfma_f32_16x16x32_bf16 v[{c}:{c+3}], v[{D1}:{D1+3}], v[{b}:{b+3}], v[{c}:{c+3}]")
    NS = 17
    for par in range(2):
        a(f"P2_round{par}:")
        def spin():
            a(f"P2_cw{par}:")
            a(f"ds_read_b32 v{vX+1}, v0 offset:{X_PW - X_CW}")
            reads1(par, 0, False)
            a(f"ds_read_b32 v{vX}, v{vCA} offset:{1024*par}")
            a("s_waitcnt lgkmcnt(4)")
            a(f"v_cmp_ge_u32 vcc, s48, v{vX+1}")
            a(f"v_and_b32 v{vX+1}, 0x3fffffff, v{vX+1}")
            a(f"s_cbranch_vccz P2_cg{par}")
            a(f"s_sleep {o.csleep}")
            guard(a)
            a(f"s_branch P2_cw{par}")
            a(f"P2_cg{par}:")
        twait(spin)
        a(f"v_cmp_lt_u32 vcc, s48, v{vX+1}")
        a(f"s_cbranch_vccz P2_drain{1-par}")
        if o.prof and par == 0:
            a("s_cmp_lg_u32 s48, 0"); a("s_cbranch_scc1 P2_nostamp"); P.stamp(); a("P2_nostamp:")
        if par: a(f"v_add_u32 v{vX+2}, {WSZ}, v{vCI}")
        a(f"ds_write_b32 v{vCA}, v{vX+2 if par else vCI} offset:{1024*par}")
        a("s_add_u32 s48, s48, 1")
        for i in range(NS):
            p = (par * NS + i) % 2
            g = G0 + 4 * p; b = B0 + 4 * p
            a("s_waitcnt lgkmcnt(0)")
            if i == NS - 1: a(f"v_or_b32 v{vA}, s84, v{vA}")
            addr()
            a("s_waitcnt vmcnt(1)")
            mfma1(g)
            a(f"buffer_load_dwordx4 v[{g}:{g+3}], v{vA}, s[8:11], 0 offen")
            reads2(par, i, False)
            if i + 1 < NS: reads1(par, i + 1, False)
            if i == 0: a(f"v_cmp_le_u32 s[90:91], s85, v{vX}")
            mfma2((i - 2) % NS, b)
            a(f"s_bitcmp1_b32 s90, {i}")
            a(f"s_waitcnt lgkmcnt({3 if i + 1 < NS else 0})")
            for u in range(4): a(f"v_and_b32 v{b+u}, v{vM+u}, v{vC+u}")
            a(f"s_cbranch_scc1 P2_slow{par}_{i}")
            a(f"P2_back{par}_{i}:")
        for u in range(4): a(f"v_mov_b32 v{vX+u}, {MARK}")
        for k in range(4):
            if k == 3: a("s_mov_b64 exec, s[92:93]")
            a(f"ds_write_b128 v{bR}, v[{vX}:{vX+3}] offset:{par*WSZ+1024*k}")
        a("s_mov_b64 exec, 1")
        a(f"v_mov_b32 v{vA}, 1")
        a("s_waitcnt lgkmcnt(0)")
        a(f"ds_add_rtn_u32 v{vA}, v0, v{vA} offset:{4*par}")
        a("s_sub_u32 s40, s48, 1")
        a("s_lshr_b32 s40, s40, 1")
        a("s_mul_i32 s40, s40, 12")
        a("s_waitcnt lgkmcnt(0)")
        a(f"v_readfirstlane_b32 s41, v{vA}")
        a("s_mov_b64 exec, -1")
        a("s_sub_u32 s41, s41, s40")
        a("s_setprio 0")
        a("s_cmp_lt_u32 s41, 4")
        a(f"s_cbranch_scc1 P2_round{1-par}")
        a("s_setprio 1")
        a("s_cmp_lt_u32 s41, 8")
        a(f"s_cbranch_scc1 P2_round{1-par}")
        a("s_setprio 2")
        if par: a("s_branch P2_round0")
    for par in range(2):
        for i in range(NS):
            a(f"P2_slow{par}_{i}:")
            reads1(par, i, True)
            a("s_waitcnt lgkmcnt(0)")
            a("s_mov_b64 exec, s[94:95]")
            a(f"v_mov_b32 v{vA}, {MARK}")
            a("s_mov_b64 exec, -1")
            addr()
            a(f"buffer_load_dwordx4 v[{vX}:{vX+3}], v{vA}, s[8:11], 0 offen")
            reads2(par, i, True)
            if i + 1 < NS: reads1(par, i + 1, False)
            a(f"s_waitcnt lgkmcnt({3 if i + 1 < NS else 0})")
            for u in range(4): a(f"v_and_b32 v{vM+u}, v{vM+u}, v{vC+u}")
            a("s_waitcnt vmcnt(0)")
            mfma1(vX)
            mfma2(i, vM)
            a(f"s_branch P2_back{par}_{i}")
    vLo = 14; vSo = 15; vRb = 12; vWt = 13
    mreg = [0, 2, 4, 6, 8, 10, 16, 18, 20, 22, 24, 26, 28, 30, 32, ACC, ACC + 2]
    NPRE = 12
    def mload(i):
        a(f"buffer_load_dwordx2 v[{mreg[i]}:{mreg[i]+1}], v{vLo}, s[8:11], 0 offen")
        a(f"v_add_u32 v{vLo}, {4096*32}, v{vLo}")
    for par in (1, 0):
        a(f"P2_drain{par}:")
        a("s_waitcnt lgkmcnt(0)")
        if par == 1: P.stamp()
        elif o.prof: P.n -= 1; P.stamp()
        a(f"v_mov_b32 v{vLo}, v{vSo}")
        for i in range(NPRE): mload(i)
        a(f"s_mov_b32 s51, {RB_AT[1 - par]}")
        for i in (NS, NS + 1):
            p = (par * NS + i) % 2
            a(f"s_waitcnt vmcnt({NS + 1 - i + NPRE})")
            mfma1(G0 + 4 * p)
            mfma2(i - 2, B0 + 4 * p)
        if par == 1: a("s_branch P2_epi")
    a("P2_epi:")
    WS_ = 34; WR_ = 38; WU = 42; RB = 44; SS = 48; GG = 52; UU = 56
    a("s_lshl_b32 s47, s47, 3")
    a("s_add_u32 s47, s47, s44")
    a("s_lshl_b32 s47, s47, 9")
    a("s_add_u32 s51, s51, s47")
    a(f"v_add_u32 v{vRb}, s51, v{vWt}")
    a(f"v_add_u32 v{vWt}, {WT}, v{vWt}")
    lds_wait(a, UU, XW + X_R, 4, "r", 1)
    for k in range(5): a(f"ds_read_b64 v[{WS_+2*k}:{WS_+2*k+1}], v{vWt} offset:{512*k}")
    def rbread(k): a(f"ds_read_b64 v[{RB+2*(k%2)}:{RB+2*(k%2)+1}], v{vRb} offset:{512*k}")
    rbread(0); rbread(1)
    for i in range(NPRE, 15): mload(i)
    vm = [("m", i) for i in range(15)]
    def mf(d, w, i):
        h = 2 * (i % 2); r = RB + 2 * ((i // 2) % 2)
        a(f"v_mfma_f32_16x16x16_bf16 v[{d}:{d+3}], v[{w+h}:{w+h+1}], v[{r}:{r+1}], 0")
    def stage_b(i):
        c0 = ACC + 4 * i
        for c in range(4): a(f"v_mul_f32 v{c0+c}, v{SS+c}, v{c0+c}")
        for u in range(2): a(f"v_cvt_pk_bf16_f32 v{c0+u}, v{c0+2*u}, v{c0+2*u+1}")
        mf(GG, WR_, i)
        if i % 2 == 1 and i // 2 + 2 <= 8: rbread(i // 2 + 2)
        a(f"v_mfma_f32_16x16x16_bf16 v[{UU}:{UU+3}], v[{WU}:{WU+1}], v[{c0}:{c0+1}], 0")
        if i + 1 < NS:
            if i % 2 == 1: a(f"s_waitcnt lgkmcnt({1 if i // 2 + 2 <= 8 else 0})")
            mf(SS, WS_, i + 1)
    def stage_c(i):
        c0 = ACC + 4 * i; m = mreg[i]
        a(f"s_waitcnt vmcnt({len(vm) - 1 - vm.index(('m', i))})")
        a(f"v_lshlrev_b32 v{c0}, 16, v{m}")
        a(f"v_and_b32 v{c0+1}, 0xffff0000, v{m}")
        a(f"v_lshlrev_b32 v{c0+2}, 16, v{m+1}")
        a(f"v_and_b32 v{c0+3}, 0xffff0000, v{m+1}")
        for c in range(4): a(f"v_fma_f32 v{c0+c}, v{UU+c}, v{GG+c}, v{c0+c}")
        for u in range(2): a(f"v_cvt_pk_bf16_f32 v{m+u}, v{c0+2*u}, v{c0+2*u+1}")
        a(f"buffer_store_dwordx2 v[{m}:{m+1}], v{vSo}, s[20:23], 0 offen {o.ost}")
        a(f"v_add_u32 v{vSo}, {4096*32}, v{vSo}")
        vm.append(("s", i))
        if i == 0:
            mload(15); mload(16); vm.extend([("m", 15), ("m", 16)])
    a("s_waitcnt lgkmcnt(0)")
    mf(SS, WS_, 0)
    stage_b(0)
    for i in range(NS):
        if i == NS - 1:
            a("s_cmp_lt_u32 s50, 17")
            a("s_cbranch_scc1 P2_fin")
        stage_c(i)
        if i + 1 < NS: stage_b(i + 1)
    a("P2_fin:")
    if o.prof:
        P.stamp()
        a("s_waitcnt vmcnt(0)")
        P.stamp()
        P.dump(32, 0x80000, 34, 3)
    a("P2_end:")
    a("s_endpgm")

KD = """.amdhsa_kernel {name}
  .amdhsa_next_free_vgpr 128
  .amdhsa_next_free_sgpr 100
  .amdhsa_accum_offset 128
  .amdhsa_group_segment_fixed_size 0
  .amdhsa_kernarg_size 112
  .amdhsa_user_sgpr_count 2
  .amdhsa_user_sgpr_kernarg_segment_ptr 1
  .amdhsa_system_sgpr_workgroup_id_x 1
  .amdhsa_float_denorm_mode_32 3
.end_amdhsa_kernel
"""

NAME = "gather_scatter__molecular_angular_gemnet__graph_kernel"

def build(o):
    GUARD[0] = 1000000 if o.maxr else 0
    a = Asm(); P = Prof(a, o.prof, 1)
    xw, stg = gen_p1(o, a, P); gen_p2(o, a, P, xw, stg)
    ref = open("gather_scatter__molecular_angular_gemnet__graph.s.ref").read().split("\n")
    head = [l for l in ref if l.startswith(";") and "launch geometry" not in l and "Harness parses" not in l and "@launch" not in l]
    s = "\n".join(head) + "\n"
    s += "; Part 1 partitions the triplets by (input slice, output bin); part 2 gathers / segment-sums with MFMA.\n"
    s += f"; @launch grid=(256,1,1) block=(1024,1,1) lds={xw + 64}\n"
    s += '.amdgcn_target "amdgcn-amd-amdhsa--gfx950"\n.text\n'
    s += f".globl {NAME}\n.p2align 8\n.type {NAME},@function\n{NAME}:\n" + a.finish()
    s += '.section .rodata,"a"\n.p2align 6\n' + KD.format(name=NAME)
    return s

def parser():
    p = argparse.ArgumentParser()
    p.add_argument("-S", type=int, default=10)
    for k, d in dict(prof=0, maxr=0, dstep=4, asplit=8, sw=1, psleep=2, csleep=2, gsleep=8, maxpoll=1000000, eprio=0, nd=4, spr=0, f0=0, dry=0, cpf=14, hold=16, holdn=0, reli=5, fuse=1, cmap=2, rot=0).items():
        p.add_argument("--" + k, type=int, default=d)
    p.add_argument("--p1_ld", default="nt")
    p.add_argument("--p1_st", default="sc1")
    p.add_argument("--ost", default="")
    p.add_argument("-o", default="gather_scatter__molecular_angular_gemnet__graph.s")
    return p

if __name__ == "__main__":
    o = parser().parse_args()
    open(o.o, "w").write(build(o))
```

```python
import sys, argparse
from asmlib import Asm

E = 800000; T = 12800000
NT = 256
CHA = 25088
TILE_N = 50000
TILE_BYTES = 300032
WS_DESC = 0x5000000
WS_PROF = 0x6000000
CAP = 56
WSTR = CAP * 4
MARK = 0x00100000
NG = 196
WREG = 9472

GUARD = [0]
def guard(a):
    if GUARD[0]:
        a("s_add_u32 s99, s99, 1")
        a(f"s_cmp_gt_u32 s99, {GUARD[0]}")
        a("s_cbranch_scc1 P2_end")

def slicing(o):
    B = (o.f0 << 26) // 100
    K = ((o.S << 26) - B) // E
    return K, B

def srd(a, d, base, size, off=None):
    if off is None:
        a(f"s_mov_b32 s{d}, s{base}")
        a(f"s_mov_b32 s{d+1}, s{base+1}")
    else:
        a(f"s_add_u32 s{d}, s{base}, {off}")
        a(f"s_addc_u32 s{d+1}, s{base+1}, 0")
    a(f"s_mov_b32 s{d+2}, {size}")
    a(f"s_mov_b32 s{d+3}, 0x20000")

class Prof:
    def __init__(self, a, on, fuse=0): self.a = a; self.on = on; self.n = 0; self.fuse = fuse
    def stamp(self, key=False):
        if not self.on or (self.on == 2 and not key): return
        a = self.a
        a("s_waitcnt lgkmcnt(0)")
        a("s_memtime s[58:59]")
        a("s_waitcnt lgkmcnt(0)")
        a(f"s_mov_b32 s{60+self.n}, s58")
        a("s_memrealtime s[58:59]")
        a("s_waitcnt lgkmcnt(0)")
        a(f"s_mov_b32 s{72+self.n}, s58")
        self.n += 1
    def dump(self, wsreg, region, vt, wave_sreg):
        if not self.on: return
        a = self.a
        srd(a, 52, wsreg, 0x100000, WS_PROF + region)
        a(f"s_lshl_b32 s56, s2, 4")
        a(f"s_add_u32 s56, s56, s{wave_sreg}")
        a(f"s_lshl_b32 s56, s56, 7")
        a("s_mov_b64 exec, 1")
        for i in range(self.n):
            a(f"v_mov_b32 v{vt}, s56")
            a(f"v_mov_b32 v{vt+1}, s{60+i}")
            a(f"buffer_store_dword v{vt+1}, v{vt}, s[52:55], 0 offen offset:{4*i}")
            a(f"v_mov_b32 v{vt+1}, s{72+i}")
            a(f"buffer_store_dword v{vt+1}, v{vt}, s[52:55], 0 offen offset:{64+4*i}")
        a(f"v_mov_b32 v{vt+1}, s71")
        a(f"buffer_store_dword v{vt+1}, v{vt}, s[52:55], 0 offen offset:124")
        a("s_waitcnt vmcnt(0)")
        a("s_mov_b64 exec, -1")

def gen_p1(o, a, P):
    S = o.S
    NK = S * 256
    KSL, BSL = slicing(o)
    CN = 16; SCR = CN + NK * 4; STG = SCR + 64; XW = STG + CHA * 6
    W0 = 4; KP0 = 53; C0 = 78; TO = 103; T0 = 104
    ld = o.p1_ld; st = o.p1_st
    a("s_cmp_ge_u32 s2, 256")
    a("s_cbranch_scc1 P2_end")
    if GUARD[0]: a("s_mov_b32 s99, 0")
    a("s_load_dwordx4 s[4:7], s[0:1], 8")
    a("s_load_dwordx2 s[28:29], s[0:1], 32")
    a("s_load_dwordx2 s[30:31], s[0:1], 48")
    a("s_load_dwordx2 s[32:33], s[0:1], 104")
    a("s_load_dwordx2 s[94:95], s[0:1], 96")
    a("s_load_dwordx2 s[48:49], s[0:1], 0")
    a("s_load_dwordx2 s[86:87], s[0:1], 88")
    a("v_lshlrev_b32 v1, 4, v0")
    a("v_lshlrev_b32 v2, 3, v0")
    a("v_mov_b32 v3, 1")
    for i in range(4): a(f"v_mov_b32 v{T0+i}, 0")
    a(f"ds_write_b128 v1, v[{T0}:{T0+3}]")
    a("v_lshrrev_b32 v127, 6, v0")
    a("v_readfirstlane_b32 s3, v127")
    a(f"s_mul_i32 s34, s2, 848")
    a(f"s_add_u32 s34, s34, {3072*4096}")
    a(f"v_add_u32 v109, s34, v0")
    a(f"v_cmp_gt_u32 vcc, 848, v0")
    a(f"v_lshlrev_b32 v110, 2, v109")
    a(f"v_lshlrev_b32 v109, 1, v109")
    a(f"v_cndmask_b32 v110, 2.0, v110, vcc")
    a(f"v_cndmask_b32 v109, 2.0, v109, vcc")
    a("s_waitcnt lgkmcnt(0)")
    P.stamp(True)
    srd(a, 8, 4, T * 4); srd(a, 12, 6, T * 4); srd(a, 16, 28, T * 2)
    a("s_load_dword s35, s[30:31], 0")
    a("s_mul_i32 s36, s2, 12")
    a("s_lshl_b32 s37, s36, 13")
    a("s_lshl_b32 s36, s36, 14")
    a(f"buffer_load_dword v{TO}, v110, s[12:15], 0 offen {ld}")
    a(f"buffer_load_dword v{W0+48}, v110, s[8:11], 0 offen {ld}")
    a(f"buffer_load_ushort v{C0+24}, v109, s[16:19], 0 offen {ld}")
    def issue_idx(r):
        b = C0 + 4 * (r % 6); w = W0 + 4 * r
        a(f"buffer_load_dwordx4 v[{b}:{b+3}], v1, s[12:15], s36 offen {ld}")
        a(f"buffer_load_dwordx4 v[{w}:{w+3}], v1, s[8:11], s36 offen {ld}")
        a(f"s_add_u32 s36, s36, 16384")
    def issue_ang(r):
        b = C0 + 2 * r
        a(f"buffer_load_dwordx2 v[{b}:{b+1}], v2, s[16:19], s37 offen {ld}")
        a(f"s_add_u32 s37, s37, 8192")
    DP = o.ldp
    for r in range(DP): issue_idx(r)
    a("s_mov_b32 s38, 0x7c00")
    MG = -(-(1 << 19) // S)
    assert all((n * MG) >> 19 == n // S for n in range(4096))
    a(f"s_mov_b32 s40, {(-(1024*S - 4)) & 0xffffffff}")
    for j in range(4):
        t = T0 + 16 + j
        a(f"v_lshl_add_u32 v{t}, v0, 2, {j}")
        a(f"v_mul_u32_u24 v{T0}, {MG}, v{t}")
        a(f"v_lshrrev_b32 v{T0}, 19, v{T0}")
        a(f"v_lshlrev_b32 v{t}, 10, v{t}")
        a(f"v_mad_i32_i24 v{t}, v{T0}, s40, v{t}")
        a(f"v_add_u32 v{t}, {STG}, v{t}")
    srd(a, 20, 32, NT * NT * S * 4, WS_DESC)
    srd(a, 24, 94, 256)
    a("s_mov_b32 s44, 0")
    a(f"s_mov_b32 s39, {KSL}")
    a(f"v_mov_b32 v{T0+22}, {BSL}")
    if o.cpf:
        a("s_getpc_b64 s[40:41]")
        a("P1_pc:")
        a("s_and_b32 s40, s40, 0xffffff80")
        a(f"s_mov_b32 s42, P2_end-P1_pc")
        a("s_mov_b32 s43, 0x20000")
        a("s_lshr_b32 s45, s2, 3")
        a(f"s_mul_i32 s45, s45, {o.cpf}")
        a(f"v_add_lshl_u32 v{T0+23}, v0, s45, 7")
        a("s_cmp_lg_u32 s3, 0")
        a("s_cbranch_scc1 P1_nopf")
        a(f"s_bfm_b64 exec, {o.cpf}, 0")
        a(f"buffer_load_dword v{T0+23}, v{T0+23}, s[40:43], 0 offen")
        a("s_mov_b64 exec, -1")
        a("P1_nopf:")
    a(f"v_mov_b32 v{T0+20}, 0x3fc")
    a(f"v_mov_b32 v{T0+21}, 0x0ff00000")
    a("s_waitcnt lgkmcnt(0)")
    a("s_lshl_b32 s35, s35, 16")
    a("s_barrier")
    def key(O, W, t0, t1):
        a(f"v_mad_u32_u24 v{t0}, v{W}, s39, v{T0+22}")
        a(f"v_lshlrev_b32 v{t1}, 8, v{O}")
        a(f"v_lshl_or_b32 v{W}, v{O}, 28, v{W}")
        a(f"v_and_b32_sdwa v{t0}, v{t0}, s38 dst_sel:DWORD dst_unused:UNUSED_PAD src0_sel:WORD_1 src1_sel:DWORD")
        a(f"v_lshrrev_b32 v{O}, 2, v{O}")
        a(f"v_bitop3_b32 v{W}, v{t1}, v{T0+21}, v{W} bitop3:0xea")
        a(f"v_bitop3_b32 v{O}, v{O}, v{T0+20}, v{t0} bitop3:0xea")
    for r in range(12):
        a(f"s_waitcnt vmcnt({min(2*DP-2, 2*(11-r))})")
        if DP < 6 and r + DP < 12: issue_idx(r + DP)
        if r == 0:
            key(TO, W0 + 48, T0, T0 + 1)
            a(f"v_cndmask_b32 v{KP0+24}, 2.0, v{TO}, vcc")
            a(f"ds_add_u32 v{KP0+24}, v3 offset:{CN}")
        b = C0 + 4 * (r % 6)
        for j in range(4):
            key(b + j, W0 + 4 * r + j, T0 + 2 * j, T0 + 2 * j + 1)
            a(f"ds_add_u32 v{b+j}, v3 offset:{CN}")
        a(f"v_lshl_or_b32 v{KP0+2*r}, v{b+1}, 16, v{b}")
        a(f"v_lshl_or_b32 v{KP0+2*r+1}, v{b+3}, 16, v{b+2}")
        if DP == 6 and r < 6: issue_idx(r + 6)
    a("s_waitcnt lgkmcnt(0)")
    a("s_barrier")
    P.stamp()
    c = T0; x = T0 + 4; tot = T0 + 5; y = T0 + 6
    a(f"s_cmp_ge_u32 s3, {S}")
    a("s_cbranch_scc1 P1_scan1")
    a(f"ds_read_b128 v[{c}:{c+3}], v1 offset:{CN}")
    a("s_waitcnt lgkmcnt(0)")
    a(f"v_add_u32 v{c+1}, v{c}, v{c+1}")
    a(f"v_add_u32 v{c+2}, v{c+1}, v{c+2}")
    a(f"v_add_u32 v{c+3}, v{c+2}, v{c+3}")
    a(f"v_mov_b32 v{x}, v{c+3}")
    for sh in (1, 2, 4, 8):
        a(f"v_add_u32_dpp v{x}, v{x}, v{x} row_shr:{sh} row_mask:0xf bank_mask:0xf bound_ctrl:1")
    a(f"v_add_u32_dpp v{x}, v{x}, v{x} row_bcast:15 row_mask:0xa bank_mask:0xf")
    a(f"v_add_u32_dpp v{x}, v{x}, v{x} row_bcast:31 row_mask:0xc bank_mask:0xf")
    a(f"v_readlane_b32 s40, v{x}, 63")
    a(f"s_lshl_b32 s41, s3, 2")
    a(f"v_mov_b32 v{y}, s41")
    a(f"v_mov_b32 v{y+1}, s40")
    a(f"ds_write_b32 v{y}, v{y+1} offset:{SCR}")
    a("s_waitcnt lgkmcnt(0)")
    a("P1_scan1:")
    a("s_barrier")
    a(f"s_cmp_ge_u32 s3, {S}")
    a("s_cbranch_scc1 P1_scan2")
    a(f"v_and_b32 v{y}, 63, v0")
    a(f"v_lshlrev_b32 v{y+1}, 2, v{y}")
    a(f"ds_read_b32 v{y+2}, v{y+1} offset:{SCR}")
    a(f"v_cmp_gt_u32 s[42:43], s3, v{y}")
    a(f"v_sub_u32 v{x}, v{x}, v{c+3}")
    a("s_waitcnt lgkmcnt(0)")
    a(f"v_cndmask_b32 v{y+2}, 0, v{y+2}, s[42:43]")
    for sh in (1, 2, 4, 8):
        a(f"v_add_u32_dpp v{y+2}, v{y+2}, v{y+2} row_shr:{sh} row_mask:0xf bank_mask:0xf bound_ctrl:1")
    a(f"v_readlane_b32 s40, v{y+2}, 15")
    s0 = T0 + 12
    a(f"v_add_u32 v{s0}, s40, v{x}")
    for j in range(3): a(f"v_add_u32 v{s0+1+j}, v{s0}, v{c+j}")
    a(f"ds_write_b128 v1, v[{s0}:{s0+3}] offset:{CN}")
    a(f"ds_write_b128 v1, v[{s0}:{s0+3}] offset:{STG}")
    a(f"v_mov_b32 v{c}, {STG + NK * 4}")
    a(f"v_mov_b32 v{c+1}, {TILE_N}")
    a(f"ds_write_b32 v{c}, v{c+1}")
    a("s_waitcnt lgkmcnt(0)")
    a("P1_scan2:")
    a("s_barrier")
    a(f"s_cmp_ge_u32 s3, {S}")
    a("s_cbranch_scc1 P1_nodesc")
    for j in range(4):
        a(f"ds_read2_b32 v[{T0+2*j}:{T0+2*j+1}], v{T0+16+j} offset0:0 offset1:1")
    a(f"s_mul_i32 s40, s2, {256*S*4}")
    lds_count(a, T0 + 8, 4)
    for j in range(4): a(f"v_lshl_or_b32 v{T0+12+j}, v{T0+2*j+1}, 16, v{T0+2*j}")
    a(f"buffer_store_dwordx4 v[{T0+12}:{T0+15}], v1, s[20:23], s40 offen {st}")
    a("P1_nodesc:")
    if o.pp & 1: a("s_setprio 3")
    def atomics(n):
        t = T0 + 4 * (n % 2)
        if n == 12:
            a(f"ds_add_rtn_u32 v{t}, v{KP0+24}, v3 offset:{CN}"); return 1
        for j in range(4):
            kp = KP0 + 2 * n + j // 2
            if j % 2 == 0: a(f"v_and_b32 v{t+j}, 0xffff, v{kp}")
            else: a(f"v_lshrrev_b32 v{t+j}, 16, v{kp}")
            a(f"ds_add_rtn_u32 v{t+j}, v{t+j}, v3 offset:{CN}")
        return 4
    a(f"s_cmp_ge_u32 s3, {o.asplit}")
    a("s_cbranch_scc1 P1_ang1")
    for n in range(12): issue_ang(n)
    a("P1_ang1:")
    atomics(0)
    for n in range(13):
        k = atomics(n + 1) if n < 12 else 0
        a(f"s_waitcnt lgkmcnt({k})")
        t = T0 + 4 * (n % 2); u = T0 + 8
        if n < 12:
            a(f"v_lshl_or_b32 v{KP0+2*n}, v{t+1}, 16, v{t}")
            a(f"v_lshl_or_b32 v{KP0+2*n+1}, v{t+3}, 16, v{t+2}")
        else:
            a(f"v_mov_b32 v{u}, 0xffff")
            a(f"v_cndmask_b32 v{KP0+24}, v{u}, v{t}, vcc")
    a(f"s_cmp_lt_u32 s3, {o.asplit}")
    a("s_cbranch_scc1 P1_ang2")
    for n in range(12): issue_ang(n)
    a("P1_ang2:")
    a("s_cmp_eq_u32 s35, 1.0")
    a("s_cbranch_scc1 P1_f1")
    a("s_waitcnt vmcnt(0)")
    for n in range(25):
        cr = C0 + n; t = T0
        a(f"v_lshlrev_b32 v{t}, 16, v{cr}")
        a(f"v_and_b32 v{t+1}, 0xffff0000, v{cr}")
        a(f"v_mul_f32 v{t}, s35, v{t}")
        a(f"v_mul_f32 v{t+1}, s35, v{t+1}")
        a(f"v_cvt_pk_bf16_f32 v{cr}, v{t}, v{t+1}")
    a("P1_f1:")
    lds_wait(a, T0, 4, S, "q", 0)
    def addrs(n, h, u, base):
        a(f"v_mad_u32_u16 v{u}, v{KP0+n}, 6, {base}" + (" op_sel:[1,0,0,0]" if h else ""))
        a(f"v_and_b32 v{u+1}, 2, v{u}")
        a(f"v_sub_u32 v{u}, v{u}, v{u+1}")
        a(f"v_sub_u32 v{u+1}, v{u}, v{u+1}")
    for n in range(25):
        cr = C0 + n; t = T0 + 6 * (n % 2)
        if o.pp & 1 and n in (0, 9, 17): a(f"s_setprio {2 - n // 8}")
        if n % 2 == 0 and n < 24: a(f"s_waitcnt vmcnt({11 - n // 2})")
        if n == 0:
            a(f"s_cmp_ge_u32 s3, {S}")
            a("s_cbranch_scc1 P1_noe")
            a("s_waitcnt vmcnt(0)")
            lds_ticket(a, 2, 8)
            a(f"s_cmp_lg_u32 s40, {S-1}")
            a("s_cbranch_scc1 P1_noe")
            arrive(a, 2, LV_E)
            a("s_mov_b32 s44, 1")
            a("P1_noe:")
        if n == 14:
            a("s_cmp_eq_u32 s44, 0")
            a("s_cbranch_scc1 P2_norele")
            release(a, 2, LV_E, "e")
        a(f"v_lshlrev_b32 v{t}, 16, v{cr}")
        a(f"v_and_b32 v{t+1}, 0xffff0000, v{cr}")
        a(f"v_mul_f32 v{t}, 0.15915494, v{t}")
        a(f"v_mul_f32 v{t+1}, 0.15915494, v{t+1}")
        a(f"v_fract_f32 v{t}, v{t}")
        a(f"v_fract_f32 v{t+1}, v{t+1}")
        a(f"v_cos_f32 v{t}, v{t}")
        a(f"v_cos_f32 v{t+1}, v{t+1}")
        for h in range(2 if n < 24 else 1):
            u = t + 2 + 2 * h
            addrs(n, h, u, 0)
            a(f"ds_write_b32 v{u}, v{W0+2*n+h} offset:{STG}")
        a(f"v_cvt_pk_bf16_f32 v{cr}, v{t}, v{t+1}")
        a(f"ds_write_b16 v{t+3}, v{cr} offset:{STG+8}")
        if n < 24: a(f"ds_write_b16_d16_hi v{t+5}, v{cr} offset:{STG+8}")
    a(f"s_mul_i32 s40, s2, {TILE_BYTES}")
    srd(a, 20, 32, CHA * 6, "s40")
    a(f"s_mul_i32 s40, s3, {WREG - 1024}")
    a(f"v_add_u32 v2, s40, v1")
    a(f"v_add_u32 v{TO}, {9*1024}, v2")
    a("s_mov_b32 s44, 0")
    if o.pf0:
        L0 = -(-(1 << 26) // KSL) // 4 + 1
        srd(a, 8, 48, E * 32)
        a(f"s_sub_u32 s40, s3, {o.pfw}")
        a(f"s_cmp_ge_u32 s40, {o.pfn}")
        a("s_cbranch_scc1 P1_nopf0")
        if o.pf0 == 1:
            a("s_lshr_b32 s41, s2, 3")
        else:
            a("s_mov_b32 s41, s2")
        a(f"s_mul_i32 s41, s41, {o.pfn * 64}")
        a(f"s_sub_u32 s41, s41, {o.pfw * 64}")
        a("v_add_lshl_u32 v1, v0, s41, 7")
        a("buffer_load_dword v1, v1, s[8:11], 0 offen")
        a("P1_nopf0:")
    a("s_waitcnt lgkmcnt(0)")
    a("s_barrier")
    P.stamp()
    a(f"s_cmp_lg_u32 s3, 15")
    a("s_cbranch_scc1 P1_noclr")
    a(f"v_and_b32 v3, 15, v0")
    a(f"v_lshlrev_b32 v3, 2, v3")
    a(f"v_add_u32 v3, {XW}, v3")
    a(f"v_mov_b32 v{T0}, 0")
    a(f"ds_write_b32 v3, v{T0}")
    a("P1_noclr:")
    def rd(k):
        t = T0 + 4 * (k % 6)
        a(f"ds_read_b128 v[{t}:{t+3}], v2 offset:{STG + 1024 * (9 - k)}")
    def store(k):
        t = T0 + 4 * (k % 6)
        if k == 0: a("s_mov_b64 exec, 0xffff")
        a(f"buffer_store_dwordx4 v[{t}:{t+3}], v{TO}, s[20:23], 0 offen {st}")
        if k == 0: a("s_mov_b64 exec, -1")
        a(f"v_subrev_u32 v{TO}, 1024, v{TO}")
    NB = o.nb
    for k in range(6): rd(k)
    for k in range(NB):
        a(f"s_waitcnt lgkmcnt({min(5, 9-k)})")
        store(k)
        if k + 6 < 10: rd(k + 6)
    a(f"s_waitcnt vmcnt({NB}) lgkmcnt(0)")
    a(f"s_cmp_ge_u32 s3, {o.nd}")
    a("s_cbranch_scc1 P1_nod")
    for k in range(NB, 10): store(k)
    a("s_waitcnt vmcnt(0)")
    lds_ticket(a, T0, 0)
    a(f"s_cmp_lg_u32 s40, {o.nd-1}")
    a("s_cbranch_scc1 P1_nod")
    arrive(a, T0, LV_D)
    a("s_mov_b32 s44, 1")
    a("P1_nod:")
    a(f"s_mov_b32 s45, {(-CHA*6) & 0xffffffff}")
    a("s_barrier")
    P.stamp()
    nnow = NB
    for n in range(25):
        if o.pp & 2 and n in (0, 9, 17): a(f"s_setprio {2 - n // 8}")
        if n == 1:
            a("s_cmp_eq_u32 s44, 0")
            a("s_cbranch_scc1 P2_noreld")
            release(a, T0, LV_D, "d")
        if n % o.dstep == 1 and nnow < 10:
            a(f"s_cmp_lt_u32 s3, {o.nd}")
            a(f"s_cbranch_scc1 P1_ns{n}")
            store(nnow); nnow += 1
            a(f"P1_ns{n}:")
        for h in range(2 if n < 24 else 1):
            u = 2 * h
            addrs(n, h, u, "s45")
            a(f"ds_write_b32 v{u}, v{W0+2*n+h} offset:{STG}")
            a(f"ds_write_b16{'_d16_hi' if h else ''} v{u+1}, v{C0+n} offset:{STG+8}")
    assert nnow == 10
    lds_count(a, 4, XW + X_S)
    a(f"s_mul_i32 s40, s2, {TILE_BYTES}")
    a(f"s_add_u32 s40, s40, {CHA*6}")
    srd(a, 20, 32, (TILE_N - CHA) * 6, "s40")
    return XW, STG

LV_A, LV_B, LV_D, LV_E = 0, 1, 2, 3
X_A, X_S, X_X, X_I, X_B, X_R, X_C, X_H, X_CW, X_PW = 0, 4, 8, 12, 16, 20, 24, 28, 32, 48

def arrive(a, t, level):
    a(f"v_mov_b32 v{t}, 0")
    a(f"v_mov_b32 v{t+1}, 1")
    a("s_mov_b64 exec, 1")
    a(f"buffer_atomic_add v{t+1}, v{t}, s[24:27], 0 offen offset:{32*level} sc0 sc1")
    a("s_mov_b64 exec, -1")

def release(a, t, level, tag):
    a("s_waitcnt vmcnt(0)")
    a(f"v_readfirstlane_b32 s40, v{t+1}")
    a("s_cmp_lg_u32 s40, 255")
    a(f"s_cbranch_scc1 P2_norel{tag}")
    a("s_mov_b64 exec, 1")
    a(f"buffer_store_dword v{t+1}, v{t}, s[24:27], 0 offen offset:{128+4*level} sc1")
    a("s_mov_b64 exec, -1")
    a(f"P2_norel{tag}:")

def lds_count(a, t, word):
    a(f"v_mov_b32 v{t}, {word}")
    a(f"v_mov_b32 v{t+1}, 1")
    a("s_mov_b64 exec, 1")
    a("s_waitcnt lgkmcnt(0)")
    a(f"ds_add_u32 v{t}, v{t+1}")
    a("s_mov_b64 exec, -1")

def lds_wait(a, t, word, n, tag, sleep):
    a(f"v_mov_b32 v{t}, {word}")
    a(f"P2_lw{tag}:")
    a(f"ds_read_b32 v{t+1}, v{t}")
    a("s_waitcnt lgkmcnt(0)")
    a(f"v_readfirstlane_b32 s40, v{t+1}")
    a(f"s_cmp_ge_u32 s40, {n}")
    a(f"s_cbranch_scc1 P2_lg{tag}")
    if sleep: a(f"s_sleep {sleep}")
    guard(a)
    a(f"s_branch P2_lw{tag}")
    a(f"P2_lg{tag}:")

def lds_ticket(a, t, word):
    a(f"v_mov_b32 v{t}, {word}")
    a(f"v_mov_b32 v{t+1}, 1")
    a("s_mov_b64 exec, 1")
    a(f"ds_add_rtn_u32 v{t+1}, v{t}, v{t+1}")
    a("s_mov_b64 exec, -1")
    a("s_waitcnt lgkmcnt(0)")
    a(f"v_readfirstlane_b32 s40, v{t+1}")

def gen_p2(o, a, P, XW, STG):
    S = o.S
    uid = [0]
    LUT = 2048; CB = 2560; WSZ = NG * WSTR
    RBSZ = 100 * 512
    X1 = RBSZ + 32
    WT = CB + WSZ // 2 + 16
    WB = CB + X1 // 2 + WSZ // 2 + 16
    RB_AT = (WB, WB + WSZ + 32)
    SC = WB + X1 + WSZ + 64
    assert WT + 3072 <= CB + X1 // 2 and WB < 65536 and SC + 12288 <= XW and WB % 16 == 0 and X1 % 32 == 0
    a("s_and_b32 s46, s2, 7")
    a("s_lshl_b32 s46, s46, 5")
    a("s_lshr_b32 s47, s2, 3")
    a("s_add_u32 s46, s46, s47")
    a("v_mbcnt_lo_u32_b32 v12, -1, 0")
    a("v_mbcnt_hi_u32_b32 v12, -1, v12")
    a("s_lshl_b32 s40, s3, 6")
    a("v_add_u32 v0, s40, v12")
    srd(a, 8, 48, E * 32)
    srd(a, 12, 32, NT * TILE_BYTES)
    srd(a, 16, 32, NT * NT * S * 4, WS_DESC)
    a("s_mov_b64 s[6:7], s[86:87]")
    if o.prof: a("s_mov_b32 s71, 0")
    a("s_mov_b32 s48, 0")
    a("s_cmp_ge_u32 s3, 4")
    a("s_cbranch_scc1 P2_consumer")
    def twait(body):
        if o.prof == 1:
            a("s_waitcnt lgkmcnt(0)")
            a("s_memtime s[56:57]")
            a("s_waitcnt lgkmcnt(0)")
        body()
        if o.prof == 1:
            a("s_memtime s[58:59]")
            a("s_waitcnt lgkmcnt(0)")
            a("s_sub_u32 s56, s58, s56")
            a("s_add_u32 s71, s71, s56")
    D0 = 40; R0 = 64
    vU12 = 1; vTile = 2; vInc = 3; v3FC = 4; vCb = 5; vZ = 6; v2U2 = 7; v2U1 = 8; vSg = 9
    n2c = 10; a0c = 11; n2n = 13; a0n = 14
    vca = 16; vcb = 17; vra = 18; vrb = 19; vwa = 20; vwb = 21; vha = 22; vhb = 23; vt = 24; vt2 = 25; vPW = 26; vS = 28
    ODDC = 52; MORC = 54; ODDN = 84; MORN = 86; ROW0 = 82; M0_ = 88; M1_ = 90
    KSL, BSL = slicing(o)
    L0 = -(-(1 << 26) // KSL) // 4 + 1
    def warm(sl, part):
        n = -(-L0 // 1024)
        a(f"s_mul_i32 s40, {sl}, {L0 - 1}")
        a(f"s_lshl_b32 s41, s2, 2")
        a(f"s_add_u32 s41, s41, {part}")
        a(f"s_mul_i32 s41, s41, {n}")
        a(f"s_add_u32 s40, s40, s41")
        a(f"s_sub_u32 s40, s40, {BSL // KSL // 4}")
        a(f"s_min_u32 s40, s40, {E // 4 - n}")
        a(f"s_lshl_b32 s40, s40, 7")
        a(f"s_add_u32 s36, s8, s40")
        a(f"s_addc_u32 s37, s9, 0")
        for j in range(n): a(f"s_load_dwordx2 s[38:39], s[36:37], {128*j+60}")
    def poll(level, tag, meanwhile=None):
        a("s_mov_b32 s51, 0")
        a(f"P2_poll{tag}:")
        a(f"buffer_load_dword v{vt}, v{vZ}, s[24:27], 0 offen offset:{128+4*level} sc1")
        a("s_add_u32 s51, s51, 1")
        a(f"s_cmp_gt_u32 s51, {o.maxpoll}")
        a("s_cbranch_scc1 P2_giveup")
        if meanwhile: a(f"s_call_b64 s[34:35], {meanwhile}")
        a("s_waitcnt vmcnt(0)")
        a(f"v_cmp_eq_u32 vcc, 0, v{vt}")
        a(f"s_cbranch_vccz P2_polled{tag}")
        a(f"s_sleep {o.gsleep}")
        a(f"s_branch P2_poll{tag}")
        a(f"P2_polled{tag}:")
    def ensure():
        uid[0] += 1; u = uid[0]
        a(f"v_cmp_lt_u32 vcc, s45, v{D0}")
        a(f"s_cbranch_vccz P2_have{u}")
        a("s_call_b64 s[42:43], P2_ensure")
        a(f"P2_have{u}:")
    def prep():
        ensure()
        a(f"v_bfe_u32 v{vt}, v{D0}, 1, 15")
        a(f"v_mad_u32_u24 v{a0n}, v{vt}, 12, v{vTile}")
        a(f"v_lshrrev_b32 v{n2n}, 16, v{D0}")
        a(f"v_and_b32 v{vt}, 0xfffe, v{D0}")
        a(f"v_sub_u32 v{n2n}, v{n2n}, v{vt}")
        a(f"v_and_b32 v{vt}, 1, v{D0}")
        a(f"v_cmp_eq_u32 s[{ODDN}:{ODDN+1}], 1, v{vt}")
        a(f"v_cmp_lt_u32 s[{MORN}:{MORN+1}], 32, v{n2n}")
        for k in range(S): a(f"v_mov_b32 v{D0+k}, v{D0+k+1}")
    def issue(i):
        t = (vt, vca)[i % 2]
        a(f"v_add_u32_dpp v{t}, v{a0n}, v{vU12} row_newbcast:{i} row_mask:0xf bank_mask:0xf")
        a(f"v_sub_u32_dpp v{t+1}, v{n2n}, v{v2U1} row_newbcast:{i} row_mask:0xf bank_mask:0xf")
        a(f"v_bitop3_b32 v{t}, v{t+1}, v{vSg}, v{t} bitop3:0xea")
        r = R0 + 4 * i
        a(f"buffer_load_dwordx3 v[{r}:{r+2}], v{t}, s[12:15], 0 offen sc1")
    def unhold():
        a("s_lshl_b32 s40, 1, s3")
        a(f"v_mov_b32 v{vt}, {XW + X_H}")
        a(f"v_mov_b32 v{vt2}, s40")
        a("s_mov_b64 exec, 1")
        a(f"ds_or_b32 v{vt}, v{vt2}")
        a("s_mov_b64 exec, -1")
    def next_round(regular):
        a("s_call_b64 s[42:43], P2_next")
        if regular:
            ensure()
            if o.sw:
                a(f"s_cmp_lt_u32 s49, {o.sw0}")
                a("s_cbranch_scc1 P2_nowarm")
                warm("s49", "s3")
                a("P2_nowarm:")
        a("s_call_b64 s[42:43], P2_wait")
    def wait_buffer(tag):
        a("s_lshr_b32 s50, s48, 1")
        a("s_mul_i32 s50, s50, 12")
        a("s_and_b32 s51, s48, 1")
        a("s_lshl_b32 s51, s51, 2")
        a(f"s_add_u32 s51, s51, {XW + X_CW}")
        a(f"v_mov_b32 v{vt2}, s51")
        a(f"P2_pw{tag}:")
        a(f"ds_read_b32 v{vt}, v{vt2}")
        a("s_waitcnt lgkmcnt(0)")
        a(f"v_readfirstlane_b32 s51, v{vt}")
        a("s_cmp_ge_u32 s51, s50")
        a(f"s_cbranch_scc1 P2_pg{tag}")
        a(f"s_sleep {o.psleep}")
        guard(a)
        a(f"s_branch P2_pw{tag}")
        a(f"P2_pg{tag}:")
    a("s_setprio 3")
    a("s_waitcnt vmcnt(0)")
    lds_count(a, vt, XW + X_A)
    a(f"s_lshl_b32 s47, s3, 6")
    a(f"v_add_u32 v{vTile}, s47, v12")
    a(f"s_lshl_b32 s50, s3, 2")
    a(f"s_add_u32 s50, s50, {XW + X_PW}")
    a(f"v_mov_b32 v{vPW}, s50")
    a(f"v_lshlrev_b32 v15, 8, v{vTile}")
    a(f"v_add_u32 v15, s46, v15")
    a(f"v_mul_u32_u24 v15, {4*S}, v15")
    a(f"v_mov_b32 v{D0+S}, 0")
    a(f"v_mul_u32_u24 v{vTile}, {TILE_BYTES}, v{vTile}")
    a(f"v_and_b32 v{vt}, 15, v12")
    a(f"v_mul_u32_u24 v{vU12}, 12, v{vt}")
    a(f"v_lshl_add_u32 v{v2U1}, v{vt}, 1, 1")
    a(f"v_add_u32 v{v2U2}, 1, v{v2U1}")
    a(f"v_mov_b32 v{vInc}, {(1 << 20) + 4}")
    a(f"v_mov_b32 v{v3FC}, 0x3fc")
    a(f"v_mov_b32 v{vSg}, 0x80000000")
    for r in (vCb, vZ, vra, vrb, vS, vS + 1): a(f"v_mov_b32 v{r}, 0")
    a("s_mov_b32 s49, 0")
    a(f"s_mov_b32 s{ROW0}, 0x00010001")
    a(f"s_mov_b32 s{ROW0+1}, 0x00010001")
    a(f"s_mov_b32 s45, {((o.nd * WREG // 12 * 2) << 16) | 0xffff}")
    a("s_cmp_eq_u32 s3, 1")
    a("s_cselect_b32 s44, 1, 0")
    nsave = P.n
    P.stamp()
    q = 32
    for i in range(4): a(f"v_mov_b32 v{q+i}, {MARK}")
    a(f"v_lshlrev_b32 v{q+4}, 4, v0")
    a(f"v_add_u32 v{q+5}, {WB}, v{q+4}")
    a(f"v_add_u32 v{q+6}, {WB + X1}, v{q+4}")
    a(f"v_and_b32 v52, 15, v12")
    a(f"v_lshrrev_b32 v53, 4, v12")
    a(f"v_lshrrev_b32 v56, 2, v52")
    a(f"v_cmp_eq_u32 vcc, v56, v53")
    a(f"v_and_b32 v56, 3, v12")
    a(f"v_lshlrev_b32 v56, 4, v56")
    a(f"v_mov_b32 v54, 0xffff")
    a(f"v_mov_b32 v55, 0")
    a(f"v_cndmask_b32 v54, 0, v54, vcc")
    a(f"v_lshlrev_b64 v[54:55], v56, v[54:55]")
    a(f"v_and_b32 v56, 1, v53")
    a(f"v_lshlrev_b32 v56, 3, v56")
    a(f"v_lshl_add_u32 v52, v52, 4, v56")
    a(f"v_lshrrev_b32 v53, 1, v53")
    a(f"v_lshl_add_u32 v52, v53, 8, v52")
    a(f"v_lshlrev_b32 v53, 2, v0")
    a(f"v_mul_u32_u24 v56, {WSTR}, v0")
    a(f"v_add_u32 v56, {(64 - CAP) << 20}, v56")
    a(f"v_add_u32 v57, {X1}, v56")
    a("s_mov_b32 s47, 0")
    assert S <= 11
    poll(LV_E, "e")
    k = 0
    while k < S:
        w = 4 if S - k >= 4 else (2 if S - k >= 2 else 1)
        sfx = {4: "x4", 2: "x2", 1: ""}[w]
        dst = f"v[{D0+k}:{D0+k+w-1}]" if w > 1 else f"v{D0+k}"
        a(f"buffer_load_dword{sfx} {dst}, v15, s[16:19], 0 offen offset:{4*k} sc1")
        k += w
    if o.dry:
        a(f"v_mov_b32 v{n2n}, 0")
        a(f"v_mov_b32 v{a0n}, 0")
        a(f"s_mov_b64 s[{ODDN}:{ODDN+1}], 0")
        a(f"s_mov_b64 s[{MORN}:{MORN+1}], 0")
        a("s_mov_b32 s98, 1")
        a("s_branch P2_first")
        a("P2_dried:")
    poll(LV_D, "d", "P2_tryinit")
    P.stamp()
    prep()
    for i in range(16): issue(i)
    P.stamp()
    a("s_cmp_lg_u32 s47, 0")
    a("s_cbranch_scc1 P2_inited")
    lds_wait(a, vt, XW + X_X, 12, "x", 1)
    a("s_call_b64 s[34:35], P2_tryinit")
    a("P2_inited:")
    a("s_cmp_lg_u32 s44, 1")
    a("s_cbranch_scc1 P2_noarr")
    a("s_mov_b32 s44, 3")
    lds_wait(a, vS, XW + X_A, 16, "a0", 1)
    arrive(a, vS, LV_A)
    a("P2_noarr:")
    lds_wait(a, vt, XW + X_I, 4, "i", 0)
    P.stamp()
    def rela():
        uid[0] += 1
        a("s_cmp_lg_u32 s44, 3")
        a(f"s_cbranch_scc1 P2_nra{uid[0]}")
        a("s_call_b64 s[34:35], P2_rela")
        a(f"P2_nra{uid[0]}:")
    def ppass(tg, inl):
        a(f"v_mov_b32 v{n2c}, v{n2n}")
        a(f"v_mov_b32 v{a0c}, v{a0n}")
        a(f"s_mov_b64 s[{ODDC}:{ODDC+1}], s[{ODDN}:{ODDN+1}]")
        a(f"s_mov_b64 s[{MORC}:{MORC+1}], s[{MORN}:{MORN+1}]")
        if inl: prep()
        for i in range(16):
            r = R0 + 4 * i
            a(f"v_sub_co_u32_dpp v{vt}, vcc, v{n2c}, v{v2U1} row_newbcast:{i} row_mask:0xf bank_mask:0xf")
            a(f"s_and_b64 s[92:93], s[{ODDC}:{ODDC+1}], s[{ROW0}:{ROW0+1}]")
            a(f"s_nor_b64 s[{M0_}:{M0_+1}], vcc, s[92:93]")
            a(f"v_sub_co_u32_dpp v{vt2}, vcc, v{n2c}, v{v2U2} row_newbcast:{i} row_mask:0xf bank_mask:0xf")
            a(f"s_lshr_b64 s[{ODDC}:{ODDC+1}], s[{ODDC}:{ODDC+1}], 1")
            a(f"s_not_b64 s[{M1_}:{M1_+1}], vcc")
            a(f"s_waitcnt vmcnt({15 if inl else 15 - i})")
            a(f"P2_retry{tg}{i}:")
            a(f"v_lshrrev_b32 v{vca}, 18, v{r}")
            a(f"v_lshrrev_b32 v{vcb}, 18, v{r+1}")
            a(f"v_bitop3_b32 v{vca}, v{vca}, v{v3FC}, v{vCb} bitop3:0xea")
            a(f"v_bitop3_b32 v{vcb}, v{vcb}, v{v3FC}, v{vCb} bitop3:0xea")
            a(f"s_mov_b64 exec, s[{M0_}:{M0_+1}]")
            a(f"ds_add_rtn_u32 v{vra}, v{vca}, v{vInc}")
            a(f"s_mov_b64 exec, s[{M1_}:{M1_+1}]")
            a(f"ds_add_rtn_u32 v{vrb}, v{vcb}, v{vInc}")
            a(f"s_mov_b64 exec, -1")
            a(f"v_and_b32 v{vwa}, 0xf00fffff, v{r}")
            a(f"v_and_b32 v{vwb}, 0xf00fffff, v{r+1}")
            a("s_waitcnt lgkmcnt(0)")
            a(f"v_and_b32 v{vra}, 0xfc03ffff, v{vra}")
            a(f"v_and_b32 v{vrb}, 0xfc03ffff, v{vrb}")
            a(f"v_lshrrev_b32 v{vha}, 1, v{vra}")
            a(f"v_lshrrev_b32 v{vhb}, 1, v{vrb}")
            a(f"v_or_b32 v{vt}, v{vra}, v{vrb}")
            a(f"v_cmp_lt_u32 vcc, v{vInc}, v{vt}")
            a(f"s_mov_b64 exec, s[{M0_}:{M0_+1}]")
            a(f"ds_write_b32 v{vra}, v{vwa} offset:{WB}")
            a(f"ds_write_b16 v{vha}, v{r+2} offset:{CB}")
            a(f"s_mov_b64 exec, s[{M1_}:{M1_+1}]")
            a(f"ds_write_b32 v{vrb}, v{vwb} offset:{WB}")
            a(f"ds_write_b16_d16_hi v{vhb}, v{r+2} offset:{CB}")
            a(f"s_mov_b64 exec, -1")
            a(f"s_cbranch_vccnz P2_stall{tg}{i}")
            a(f"s_and_b64 s[92:93], s[{MORC}:{MORC+1}], s[{ROW0}:{ROW0+1}]")
            a(f"s_cbranch_scc1 P2_more{tg}{i}")
            a(f"s_lshr_b64 s[{MORC}:{MORC+1}], s[{MORC}:{MORC+1}], 1")
            if inl: issue(i)
            elif i == o.reli: rela()
    if o.dry:
        a("s_mov_b32 s98, 0")
        a("P2_first:")
    ppass("f", False)
    if o.dry:
        a("s_cmp_lg_u32 s98, 0")
        a("s_cbranch_scc1 P2_dried")
    P.stamp()
    a("s_mov_b32 s49, 1")
    a("s_cmp_ge_u32 s48, s49")
    a("s_cbranch_scc1 P2_ff1")
    next_round(False)
    a("P2_ff1:")
    prep()
    for i in range(16): issue(i)
    if o.sw & 2: warm("s49", "s3")
    a("P2_pslice:")
    ppass("", True)
    a("s_add_u32 s49, s49, 1")
    a(f"s_cmp_ge_u32 s49, {S}")
    a("s_cbranch_scc1 P2_pdone")
    a("s_cmp_ge_u32 s48, s49")
    a("s_cbranch_scc1 P2_pslice")
    next_round(True)
    a("s_branch P2_pslice")
    a("P2_next:")
    a("s_add_u32 s48, s48, 1")
    if o.maxr:
        a(f"s_cmp_gt_u32 s48, {o.maxr}")
        a("s_cbranch_scc1 P2_giveup")
    a(f"v_mov_b32 v{vt}, s48")
    a("s_waitcnt lgkmcnt(0)")
    a(f"ds_write_b32 v{vPW}, v{vt}")
    a(f"v_xor_b32 v{vCb}, 1024, v{vCb}")
    rela()
    def pubb2():
        a("s_cmp_lg_u32 s48, 2")
        a("s_cbranch_scc1 P2_next1")
        a("s_call_b64 s[96:97], P2_pubb")
        a("P2_next1:")
    if not o.nl: pubb2()
    a("s_setpc_b64 s[42:43]")
    a("P2_wait:")
    twait(lambda: wait_buffer("n"))
    if o.nl: pubb2()
    a("s_setpc_b64 s[42:43]")
    a("P2_tryinit:")
    a("s_cmp_lg_u32 s47, 0")
    a("s_cbranch_scc1 P2_tryinit1")
    a(f"v_mov_b32 v{vt2}, {XW + X_X}")
    a(f"ds_read_b32 v{vt2}, v{vt2}")
    a("s_waitcnt lgkmcnt(0)")
    a(f"v_readfirstlane_b32 s40, v{vt2}")
    a("s_cmp_lt_u32 s40, 12")
    a("s_cbranch_scc1 P2_tryinit1")
    a("s_mov_b32 s47, 1")
    a(f"ds_write_b64 v52, v[54:55] offset:{LUT}")
    a(f"ds_write_b32 v53, v56")
    a(f"ds_write_b32 v53, v57 offset:1024")
    assert 11 * 4096 >= WSZ + 64 and 12 * 4096 >= WB - CB
    for k in range(12):
        a(f"ds_write_b128 v{q+4}, v[{q}:{q+3}] offset:{CB + 4096 * k}")
        if k < 11:
            a(f"ds_write_b128 v{q+5}, v[{q}:{q+3}] offset:{4096 * k}")
            a(f"ds_write_b128 v{q+6}, v[{q}:{q+3}] offset:{4096 * k}")
    lds_count(a, 58, XW + X_I)
    a("P2_tryinit1:")
    a("s_setpc_b64 s[34:35]")
    a("P2_rela:")
    a("s_mov_b32 s44, 0")
    release(a, vS, LV_A, "a0")
    a("s_setpc_b64 s[34:35]")
    a("P2_pubb:")
    lds_ticket(a, vS, XW + X_C)
    a("s_cmp_lg_u32 s40, 0")
    a("s_cbranch_scc1 P2_norelb")
    lds_wait(a, vS, XW + X_B, 12, "b", 1)
    arrive(a, vS, LV_B)
    release(a, vS, LV_B, "b")
    a("s_setpc_b64 s[96:97]")
    a("P2_ensure:")
    a("s_cmp_lg_u32 s44, 1")
    a("s_cbranch_scc1 P2_norela1")
    a("s_mov_b32 s44, 0")
    lds_wait(a, vS, XW + X_A, 16, "a1", 1)
    arrive(a, vS, LV_A)
    release(a, vS, LV_A, "a1")
    poll(LV_A, "a", "P2_tryinit")
    a(f"s_mov_b32 s45, {(CHA << 16) | 0xffff}")
    a(f"v_cmp_lt_u32 vcc, s45, v{D0}")
    a("s_cbranch_vccz P2_ens1")
    unhold()
    a("s_call_b64 s[96:97], P2_pubb")
    poll(LV_B, "b", "P2_tryinit")
    a("s_mov_b32 s45, -1")
    a("P2_ens1:")
    a("s_setpc_b64 s[42:43]")
    for tg, i in [(t_, i_) for t_ in ("", "f") for i_ in range(16)]:
        r = R0 + 4 * i
        a(f"P2_stall{tg}{i}:")
        a(f"v_cmp_lt_u32 s[{M0_}:{M0_+1}], v{vInc}, v{vra}")
        a(f"v_cmp_lt_u32 s[{M1_}:{M1_+1}], v{vInc}, v{vrb}")
        next_round(False)
        a(f"s_branch P2_retry{tg}{i}")
        a(f"P2_more{tg}{i}:")
        a(f"s_lshl_b64 exec, s[{ROW0}:{ROW0+1}], {i}")
        a(f"v_max_u32 v{n2c}, 32, v{n2c}")
        a(f"v_subrev_u32 v{n2c}, 32, v{n2c}")
        a(f"v_add_u32 v{a0c}, 192, v{a0c}")
        a(f"v_cmp_lt_u32 vcc, 32, v{n2c}")
        a(f"s_mov_b64 exec, -1")
        a(f"s_lshr_b64 s[92:93], vcc, {i}")
        a(f"s_andn2_b64 s[{MORC}:{MORC+1}], s[{MORC}:{MORC+1}], s[{ROW0}:{ROW0+1}]")
        a(f"s_or_b64 s[{MORC}:{MORC+1}], s[{MORC}:{MORC+1}], s[92:93]")
        a(f"v_sub_co_u32_dpp v{vt2}, vcc, v{n2c}, v{v2U2} row_newbcast:{i} row_mask:0xf bank_mask:0xf")
        a(f"s_not_b64 s[{M1_}:{M1_+1}], vcc")
        a(f"v_sub_co_u32_dpp v{vt2}, vcc, v{n2c}, v{v2U1} row_newbcast:{i} row_mask:0xf bank_mask:0xf")
        a(f"v_add_u32_dpp v{vt}, v{a0c}, v{vU12} row_newbcast:{i} row_mask:0xf bank_mask:0xf")
        a(f"s_not_b64 s[{M0_}:{M0_+1}], vcc")
        a(f"v_cndmask_b32 v{vt}, v{vt}, v{vSg}, vcc")
        a(f"buffer_load_dwordx3 v[{r}:{r+2}], v{vt}, s[12:15], 0 offen sc1")
        a("s_waitcnt vmcnt(0)")
        a(f"s_branch P2_retry{tg}{i}")
    a("P2_giveup:")
    lds_count(a, vt, XW + X_I)
    unhold()
    a("P2_pdone:")
    a("s_add_u32 s48, s48, 0x40000001")
    a(f"v_mov_b32 v{vt}, s48")
    a("s_waitcnt lgkmcnt(0)")
    a(f"ds_write_b32 v{vPW}, v{vt}")
    a(f"s_setprio {o.eprio}")
    a("s_load_dwordx2 s[6:7], s[0:1], 24")
    a("s_load_dwordx2 s[34:35], s[0:1], 40")
    a("s_load_dwordx8 s[36:43], s[0:1], 56")
    DS = 30; CEN = 56; RB0 = 64; t = 60; X = 1
    a("v_and_b32 v13, 15, v12")
    a("v_lshrrev_b32 v14, 4, v12")
    a(f"v_lshlrev_b32 v{X}, 7, v14")
    a(f"v_lshl_add_u32 v{X}, v13, 1, v{X}")
    a(f"v_and_b32 v{X+1}, 0xff, v{X}")
    a(f"v_and_b32 v{X+2}, 1, v14")
    a(f"v_lshlrev_b32 v{X+2}, 3, v{X+2}")
    a(f"v_lshrrev_b32 v{X+3}, 1, v14")
    a(f"v_lshlrev_b32 v{X+3}, 13, v{X+3}")
    a(f"v_lshl_add_u32 v{X+3}, v13, 1, v{X+3}")
    a("s_lshl_b32 s47, s46, 5")
    a(f"v_add_u32 v{X+3}, s47, v{X+3}")
    a(f"v_cmp_gt_u32 s[88:89], 32, v12")
    a("s_waitcnt vmcnt(0) lgkmcnt(0)")
    srd(a, 20, 6, E * 2)
    srd(a, 28, 42, 512)
    srd(a, 12, 38, 256)
    srd(a, 16, 36, 256)
    srd(a, 52, 34, 16)
    srd(a, 84, 40, 512)
    for c in range(4): a(f"buffer_load_ushort v{CEN+c}, v{X+2}, s[52:55], 0 offen offset:{2*c}")
    a("s_mul_i32 s47, s3, 25")
    for k in range(25):
        a("s_mul_i32 s50, s47, 57")
        a("s_lshr_b32 s50, s50, 9")
        a("s_min_u32 s50, s50, 4")
        a("s_lshl_b32 s51, s47, 1")
        a("s_sub_u32 s50, s51, s50")
        a("s_lshl_b32 s50, s50, 13")
        a(f"v_add_u32 v{DS+k}, s50, v{X+3}")
        a("s_add_u32 s47, s47, 1")
        a(f"buffer_load_ushort v{DS+k}, v{DS+k}, s[20:23], 0 offen")
    assert all((n * 57) >> 9 == n // 9 for n in range(45))
    Y = 116
    for c in range(4): a(f"buffer_load_ushort v{Y+c}, v{X}, s[28:31], 0 offen offset:{32*c}")
    for c in range(4): a(f"buffer_load_ushort v{Y+4+c}, v{X+1}, s[12:15], 0 offen offset:{32*c}")
    for c in range(4): a(f"buffer_load_ushort v{Y+8+c}, v{X+1}, s[16:19], 0 offen offset:{32*c}")
    for c in range(4): a(f"buffer_load_ushort v{16+c}, v{X}, s[84:87], 0 offen offset:{32*c}")
    a("s_waitcnt vmcnt(40)")
    for c in range(4): a(f"v_lshlrev_b32 v{CEN+c}, 16, v{CEN+c}")
    def rnd():
        if o.nornd: return
        for u in range(2):
            a(f"v_cvt_pk_bf16_f32 v{t+2*u+1}, v{t+2*u}, v{t+2*u+1}")
        for u in range(2):
            a(f"v_lshlrev_b32 v{t+2*u}, 16, v{t+2*u+1}")
            a(f"v_and_b32 v{t+2*u+1}, 0xffff0000, v{t+2*u+1}")
    for k in range(25):
        d = DS + k
        a(f"s_waitcnt vmcnt({40 - k})")
        a(f"v_lshlrev_b32 v{d}, 16, v{d}")
        for c in range(4): a(f"v_sub_f32 v{t+c}, v{d}, v{CEN+c}")
        rnd()
        for c in range(4): a(f"v_mul_f32 v{t+c}, v{t+c}, v{t+c}")
        rnd()
        for c in range(4): a(f"v_mul_f32 v{t+c}, 0xc1200000, v{t+c}")
        rnd()
        for c in range(4): a(f"v_mul_f32 v{t+c}, 0x3fb8aa3b, v{t+c}")
        for c in range(4): a(f"v_exp_f32 v{t+c}, v{t+c}")
        for u in range(2): a(f"v_cvt_pk_bf16_f32 v{RB0+2*k+u}, v{t+2*u}, v{t+2*u+1}")
    a("s_waitcnt vmcnt(0)")
    Z = 30
    for u in range(2):
        a(f"v_lshl_or_b32 v{Z+8+u}, v{Y+2*u+1}, 16, v{Y+2*u}")
        a(f"v_lshl_or_b32 v{Z+10+u}, v{17+2*u}, 16, v{16+2*u}")
        a(f"v_lshl_or_b32 v{Y+4+u}, v{Y+5+2*u}, 16, v{Y+4+2*u}")
        a(f"v_lshl_or_b32 v{Y+8+u}, v{Y+9+2*u}, 16, v{Y+8+2*u}")
    for u in range(2):
        a(f"v_cndmask_b32 v{Z+u}, 0, v{Y+4+u}, s[88:89]")
        a(f"v_cndmask_b32 v{Z+2+u}, v{Y+4+u}, 0, s[88:89]")
        a(f"v_cndmask_b32 v{Z+4+u}, 0, v{Y+8+u}, s[88:89]")
        a(f"v_cndmask_b32 v{Z+6+u}, v{Y+8+u}, 0, s[88:89]")
    a(f"v_lshlrev_b32 v{X}, 3, v12")
    a(f"v_add_u32 v{X+1}, {WT}, v{X}")
    a(f"v_and_b32 v{X+2}, 3, v12")
    a(f"v_lshlrev_b32 v{X+2}, 2, v{X+2}")
    a(f"v_add_u32 v{X+2}, {XW + X_PW}, v{X+2}")
    a("P2_dw:")
    a(f"ds_read_b32 v{vt}, v{X+2}")
    a("s_waitcnt lgkmcnt(0)")
    a(f"v_cmp_gt_u32 vcc, 2.0, v{vt}")
    a("s_cbranch_vccz P2_dg")
    a(f"s_sleep {o.psleep}")
    guard(a)
    a("s_branch P2_dw")
    a("P2_dg:")
    a(f"v_readlane_b32 s48, v{vt}, 0")
    for k in range(1, 4):
        a(f"v_readlane_b32 s50, v{vt}, {k}")
        a("s_max_u32 s48, s48, s50")
    a("s_and_b32 s48, s48, 0x3fffffff")
    wait_buffer("e")
    a("s_bitcmp1_b32 s48, 0")
    a(f"s_cselect_b32 s50, {RB_AT[1] - RB_AT[0]}, 0")
    a(f"s_add_u32 s50, s50, {RB_AT[0]}")
    a(f"s_mul_i32 s51, s3, {25*512}")
    a("s_add_u32 s50, s50, s51")
    a(f"v_add_u32 v{X}, s50, v{X}")
    for k in range(6): a(f"ds_write_b64 v{X+1}, v[{Z+2*k}:{Z+2*k+1}] offset:{512*k}")
    for k in range(25): a(f"ds_write_b64 v{X}, v[{RB0+2*k}:{RB0+2*k+1}] offset:{512*k}")
    lds_count(a, vt, XW + X_R)
    a("s_waitcnt lgkmcnt(0)")
    if o.prof == 1:
        P.stamp(); P.dump(32, 0x80000, 8, 3); P.n = nsave
    a("s_endpgm")
    a("P2_consumer:")
    ACC = 60; G0 = 52; B0 = 44; A2 = 28; vTw = 32; vTr = 33; vM = 24; vC = 20; vX = 16
    bA = 1; bE = 2; bC = 3; bR = 4; vH = 5; vL = 6; vCA = 7; vCI = 8; vA = 9; vE = 10
    a("s_sub_u32 s47, s3, 4")
    a("s_min_u32 s44, s47, 4")
    a("s_lshl_b32 s49, s47, 4")
    a("s_add_u32 s49, s49, s44")
    a("s_cmp_lt_u32 s47, 4")
    a("s_cselect_b32 s50, 17, 16")
    a(f"s_cselect_b32 s84, 0, {MARK}")
    a(f"s_cselect_b32 s85, {17*WSTR//16-192}, {16*WSTR//16-192}")
    a("s_bfm_b64 s[92:93], s85, 0")
    a(f"v_subrev_u32 v60, 256, v0")
    a(f"v_lshlrev_b32 v60, 4, v60")
    for k in range(1, 4): a(f"v_add_u32 v{60+k}, {4*12288*k}, v60")
    lds_wait(a, vX, XW + X_S, 16, "s", 1)
    P.stamp()
    NL = o.nl; vSt = 34
    for j in range(13):
        k = 12 - j
        a(f"ds_read_b128 v[{68+4*j}:{71+4*j}], v{60+k//4} offset:{STG+12288*(k%4)}")
    a(f"v_mov_b32 v{vSt}, v63")
    lds_count(a, vX, XW + X_X)
    a("s_waitcnt vmcnt(0)")
    lds_count(a, vX, XW + X_A)
    def store_b(j):
        a(f"buffer_store_dwordx4 v[{68+4*j}:{71+4*j}], v{vSt}, s[20:23], 0 offen {o.p1_st}")
        a(f"v_subrev_u32 v{vSt}, 12288, v{vSt}")
    if o.spr: a(f"s_setprio {o.spr}")
    for j in range(13 - NL): store_b(j)
    if o.spr: a("s_setprio 0")
    a("v_and_b32 v13, 15, v12")
    a("v_lshrrev_b32 v14, 4, v12")
    a(f"v_and_b32 v0, 3, v12")
    a(f"v_lshlrev_b32 v0, 2, v0")
    a(f"v_add_u32 v0, {XW + X_CW}, v0")
    a(f"s_mul_i32 s51, s49, {WSTR}")
    a(f"s_lshr_b32 s86, s51, 1")
    a(f"s_add_u32 s86, s86, {CB}")
    a(f"v_lshl_add_u32 v{bC}, v14, 4, s86")
    a(f"v_mul_u32_u24 v{vCI}, {WSTR}, v12")
    a(f"s_add_u32 s86, s51, {(64 - CAP) << 20}")
    a(f"v_add_u32 v{vCI}, s86, v{vCI}")
    a(f"s_add_u32 s51, s51, {WB}")
    a(f"v_lshl_add_u32 v{bR}, v12, 4, s51")
    a(f"v_and_b32 v{bA}, 24, v12")
    a(f"v_bfe_u32 v{vA}, v12, 1, 2")
    a(f"v_or_b32 v{bA}, v{bA}, v{vA}")
    a(f"v_lshrrev_b32 v{vA}, 5, v12")
    a(f"v_lshl_or_b32 v{bA}, v{vA}, 2, v{bA}")
    a(f"v_lshl_add_u32 v{bA}, v{bA}, 2, s51")
    a(f"v_and_b32 v{vH}, 1, v12")
    a(f"v_lshlrev_b32 v{vH}, 4, v{vH}")
    a("s_lshl_b32 s87, s47, 10")
    a(f"s_add_u32 s87, s87, {SC}")
    a(f"v_lshl_add_u32 v{vTw}, v12, 4, s87")
    a(f"v_lshl_add_u32 v{vTr}, v12, 3, s87")
    a(f"v_and_b32 v{vA}, 12, v12")
    a(f"v_lshl_add_u32 v{bE}, v14, 5, v{vA}")
    a(f"v_add_u32 v{bE}, s51, v{bE}")
    a(f"v_and_b32 v{vL}, 1, v12")
    a(f"v_lshlrev_b32 v{vL}, 3, v{vL}")
    a(f"v_and_b32 v{vA}, 2, v12")
    a(f"v_lshl_add_u32 v{vL}, v{vA}, 7, v{vL}")
    a(f"v_add_lshl_u32 v{vCA}, v12, s49, 2")
    a(f"v_cmp_gt_u32 vcc, s50, v12")
    a(f"s_mov_b32 s85, {(64 - CAP + 33) << 20}")
    a("s_mov_b32 s94, 0xff000000")
    a("s_mov_b32 s95, 0xff000000")
    a(f"v_cndmask_b32 v{vCA}, 2.0, v{vCA}, vcc")
    a(f"s_lshl_b32 s51, s49, 8")
    a(f"s_add_u32 s51, s51, s46")
    a(f"s_lshl_b32 s51, s51, 4")
    a(f"v_add_lshl_u32 v15, v13, s51, 5")
    a(f"v_lshl_add_u32 v15, v14, 3, v15")
    a(f"v_lshlrev_b32 v13, 3, v12")
    for i in range(16): a(f"v_mov_b32 v{B0+i}, 0")
    for i in range(68):
        if not 15 - NL <= i // 4 <= 14: a(f"v_mov_b32 v{ACC+i}, 0")
    srd(a, 28, 6, E * 32)
    def lazy(t):
        j = 13 - NL + t
        store_b(j)
        for u in range(4): a(f"v_mov_b32 v{68+4*j+u}, 0")
    lstep = [min(t * o.lstep, 14 - NL + t) for t in range(NL)]
    if NL:
        a("s_mov_b32 s42, 1")
        P.stamp()
        a(f"v_mov_b32 v{vX+2}, {XW + X_H}")
        a("P2_pre:")
        a(f"ds_read_b32 v{vX}, v0 offset:{X_PW - X_CW}")
        a(f"ds_read_b32 v{vX+1}, v{vX+2}")
        a("s_waitcnt lgkmcnt(0)")
        a(f"v_cmp_eq_u32 vcc, 0, v{vX}")
        a("s_cbranch_vccz P2_round0")
        a(f"v_cmp_eq_u32 vcc, 0, v{vX+1}")
        a("s_cbranch_vccz P2_flush")
        a(f"s_sleep {o.csleep}")
        guard(a)
        a("s_branch P2_pre")
        a("P2_flush:")
        for t in range(NL): lazy(t)
        a("s_mov_b32 s42, 0")
    a("s_waitcnt vmcnt(0)")
    lds_count(a, vX, XW + X_B)
    if not NL: P.stamp()
    def reads1(par, i, second):
        oa = par * X1 + i * WSTR + (128 if second else 0)
        a(f"ds_read_b32 v{vA}, v{bA} offset:{oa}")
        a(f"ds_read_u8 v{vE}, v{bE} offset:{oa+3}")
        a(f"ds_read_u8 v{vE+1}, v{bE} offset:{oa+19}")
    def reads2(par, i, second):
        oc = (par * X1 + i * WSTR + (128 if second else 0)) // 2
        a(f"v_add_u32 v{vE}, v{vE}, v{vL}")
        a(f"v_add_u32 v{vE+1}, v{vE+1}, v{vL}")
        a(f"ds_read_b64_tr_b16 v[{vM}:{vM+1}], v{vE} offset:{LUT}")
        a(f"ds_read_b64_tr_b16 v[{vM+2}:{vM+3}], v{vE+1} offset:{LUT}")
        a(f"ds_read_b128 v[{vC}:{vC+3}], v{bC} offset:{oc}")
    def addr():
        a(f"v_mad_u32_u24 v{vA}, v{vA}, 32, v{vH}")
    def transpose(g):
        a(f"ds_write_b128 v{vTw}, v[{g}:{g+3}]")
        a(f"ds_read_b64_tr_b16 v[{A2}:{A2+1}], v{vTr}")
        a(f"ds_read_b64_tr_b16 v[{A2+2}:{A2+3}], v{vTr} offset:512")
    def mfma2(i, b):
        c = ACC + 4 * i
        a(f"v_mfma_f32_16x16x32_bf16 v[{c}:{c+3}], v[{A2}:{A2+3}], v[{b}:{b+3}], v[{c}:{c+3}]")
    NS = 17
    for par in range(2):
        a(f"P2_round{par}:")
        def spin():
            a(f"P2_cw{par}:")
            a(f"ds_read_b32 v{vX+1}, v0 offset:{X_PW - X_CW}")
            reads1(par, 0, False)
            a(f"ds_read_b32 v{vX}, v{vCA} offset:{1024*par}")
            a("s_waitcnt lgkmcnt(4)")
            a(f"v_cmp_ge_u32 vcc, s48, v{vX+1}")
            a(f"v_and_b32 v{vX+1}, 0x3fffffff, v{vX+1}")
            a(f"s_cbranch_vccz P2_cg{par}")
            a(f"s_sleep {o.csleep}")
            guard(a)
            a(f"s_branch P2_cw{par}")
            a(f"P2_cg{par}:")
        twait(spin)
        if o.prof == 1:
            a("s_memrealtime s[58:59]")
            a("s_waitcnt lgkmcnt(0)")
            a("s_mov_b32 m0, s48")
            a("v_writelane_b32 v14, s58, m0")
            a("s_add_u32 m0, s48, 16")
            a("v_writelane_b32 v14, s56, m0")
        a(f"v_cmp_lt_u32 vcc, s48, v{vX+1}")
        a(f"s_cbranch_vccz P2_drain{1-par}")
        if o.prof == 1 and par == 0:
            a("s_cmp_lg_u32 s48, 0"); a("s_cbranch_scc1 P2_nostamp"); P.stamp(); a("P2_nostamp:")
        if par: a(f"v_add_u32 v{vX+2}, {X1}, v{vCI}")
        a(f"ds_write_b32 v{vCA}, v{vX+2 if par else vCI} offset:{1024*par}")
        a("s_add_u32 s48, s48, 1")
        for i in range(NS):
            p = (par * NS + i) % 2
            g = G0 + 4 * p; b = B0 + 4 * p
            a("s_waitcnt lgkmcnt(0)")
            if i == NS - 1: a(f"v_or_b32 v{vA}, s84, v{vA}")
            addr()
            a("s_waitcnt vmcnt(1)")
            transpose(g)
            a(f"buffer_load_dwordx4 v[{g}:{g+3}], v{vA}, s[8:11], 0 offen")
            reads2(par, i, False)
            if i + 1 < NS: reads1(par, i + 1, False)
            if i == 0: a(f"v_cmp_le_u32 s[90:91], s85, v{vX}")
            a(f"s_waitcnt lgkmcnt({6 if i + 1 < NS else 3})")
            mfma2((i - 2) % NS, b)
            a(f"s_bitcmp1_b32 s90, {i}")
            a(f"s_waitcnt lgkmcnt({3 if i + 1 < NS else 0})")
            for u in range(4): a(f"v_and_b32 v{b+u}, v{vM+u}, v{vC+u}")
            a(f"s_cbranch_scc1 P2_slow{par}_{i}")
            a(f"P2_back{par}_{i}:")
            if par == 0 and i in lstep:
                a("s_cmp_lg_u32 s42, 0")
                a(f"s_cbranch_scc1 P2_lazy{i}")
                a(f"P2_lazyb{i}:")
        if par == 0 and NL:
            a("s_cmp_eq_u32 s42, 0")
            a("s_cbranch_scc1 P2_nolz")
            a("s_mov_b32 s42, 0")
            a("s_waitcnt vmcnt(0)")
            lds_count(a, vX, XW + X_B)
            a("P2_nolz:")
        for u in range(4): a(f"v_mov_b32 v{vX+u}, {MARK}")
        for k in range(4):
            if k == 3: a("s_mov_b64 exec, s[92:93]")
            a(f"ds_write_b128 v{bR}, v[{vX}:{vX+3}] offset:{par*X1+1024*k}")
        a("s_mov_b64 exec, 1")
        a(f"v_mov_b32 v{vA}, 1")
        a("s_waitcnt lgkmcnt(0)")
        a(f"ds_add_rtn_u32 v{vA}, v0, v{vA} offset:{4*par}")
        a("s_sub_u32 s40, s48, 1")
        a("s_lshr_b32 s40, s40, 1")
        a("s_mul_i32 s40, s40, 12")
        a("s_waitcnt lgkmcnt(0)")
        a(f"v_readfirstlane_b32 s41, v{vA}")
        a("s_mov_b64 exec, -1")
        a("s_sub_u32 s41, s41, s40")
        a("s_setprio 0")
        a("s_cmp_lt_u32 s41, 4")
        a(f"s_cbranch_scc1 P2_round{1-par}")
        a("s_setprio 1")
        a("s_cmp_lt_u32 s41, 8")
        a(f"s_cbranch_scc1 P2_round{1-par}")
        a("s_setprio 2")
        if par: a("s_branch P2_round0")
    for i in sorted(set(lstep)):
        a(f"P2_lazy{i}:")
        for t in range(NL):
            if lstep[t] == i: lazy(t)
        a(f"s_branch P2_lazyb{i}")
    for par in range(2):
        for i in range(NS):
            a(f"P2_slow{par}_{i}:")
            reads1(par, i, True)
            a("s_waitcnt lgkmcnt(0)")
            a("s_mov_b64 exec, s[94:95]")
            a(f"v_mov_b32 v{vA}, {MARK}")
            a("s_mov_b64 exec, -1")
            addr()
            a(f"buffer_load_dwordx4 v[{vX}:{vX+3}], v{vA}, s[8:11], 0 offen")
            reads2(par, i, True)
            if i + 1 < NS: reads1(par, i + 1, False)
            a(f"s_waitcnt lgkmcnt({3 if i + 1 < NS else 0})")
            for u in range(4): a(f"v_and_b32 v{vM+u}, v{vM+u}, v{vC+u}")
            a("s_waitcnt vmcnt(0)")
            transpose(vX)
            a("s_waitcnt lgkmcnt(0)")
            mfma2(i, vM)
            a(f"s_branch P2_back{par}_{i}")
    vLo = 14; vSo = 15; vRb = 12; vWt = 13
    mreg = [0, 2, 4, 6, 8, 10, 16, 18, 20, 22, 24, 26, ACC, ACC + 2, ACC + 4, ACC + 6, ACC + 8]
    NPRE = 12
    def mload(i):
        a(f"buffer_load_dwordx2 v[{mreg[i]}:{mreg[i]+1}], v{vLo}, s[8:11], 0 offen")
        a(f"v_add_u32 v{vLo}, {4096*32}, v{vLo}")
    for par in (1, 0):
        a(f"P2_drain{par}:")
        a("s_waitcnt lgkmcnt(0)")
        if par == 1: P.stamp()
        elif o.prof == 1: P.n -= 1; P.stamp()
        if o.prof == 1:
            srd(a, 52, 32, 0x100000, WS_PROF)
            a("s_lshl_b32 s56, s2, 4")
            a("s_add_u32 s56, s56, s3")
            a("s_lshl_b32 s56, s56, 7")
            a("v_lshrrev_b32 v12, 1, v13")
            a("v_add_u32 v12, s56, v12")
            a("s_bfm_b64 exec, 32, 0")
            a("buffer_store_dword v14, v12, s[52:55], 0 offen")
            a("s_mov_b64 exec, -1")
        a(f"v_mov_b32 v{vLo}, v{vSo}")
        for i in range(NPRE): mload(i)
        a(f"s_mov_b32 s51, {RB_AT[1 - par]}")
        for i in (NS, NS + 1):
            p = (par * NS + i) % 2
            a(f"s_waitcnt vmcnt({NS + 1 - i + NPRE})")
            transpose(G0 + 4 * p)
            a("s_waitcnt lgkmcnt(0)")
            mfma2(i - 2, B0 + 4 * p)
        if par == 1: a("s_branch P2_epi")
    a("P2_epi:")
    WS_ = 32; WR_ = 36; WU = 40; WD = 42; RB = 44; SS = 48; GG = 52; UU = 56; ZZ = 28
    a("s_lshl_b32 s47, s47, 3")
    a("s_add_u32 s47, s47, s44")
    a("s_lshl_b32 s47, s47, 9")
    a("s_add_u32 s51, s51, s47")
    a(f"v_add_u32 v{vRb}, s51, v{vWt}")
    a(f"v_add_u32 v{vWt}, {WT}, v{vWt}")
    lds_wait(a, UU, XW + X_R, 4, "r", 1)
    for k in range(6): a(f"ds_read_b64 v[{WS_+2*k}:{WS_+2*k+1}], v{vWt} offset:{512*k}")
    def rbread(k): a(f"ds_read_b64 v[{RB+2*(k%2)}:{RB+2*(k%2)+1}], v{vRb} offset:{512*k}")
    rbread(0); rbread(1)
    vm = [("m", i) for i in range(NPRE)]
    def mf(d, w, i):
        h = 2 * (i % 2); r = RB + 2 * ((i // 2) % 2)
        a(f"v_mfma_f32_16x16x16_bf16 v[{d}:{d+3}], v[{w+h}:{w+h+1}], v[{r}:{r+1}], 0")
    def pack(i):
        c0 = ACC + 4 * i
        for u in range(2): a(f"v_cvt_pk_bf16_f32 v{c0+u}, v{c0+2*u}, v{c0+2*u+1}")
    def stage_a(i):
        c0 = ACC + 4 * i
        a(f"v_mfma_f32_16x16x16_bf16 v[{ZZ}:{ZZ+3}], v[{WD}:{WD+1}], v[{c0}:{c0+1}], 0")
        mf(SS, WS_, i)
    def stage_b(i):
        c0 = ACC + 4 * i
        if o.pk:
            for c in (0, 2): a(f"v_pk_mul_f32 v[{c0+c}:{c0+c+1}], v[{SS+c}:{SS+c+1}], v[{ZZ+c}:{ZZ+c+1}]")
        else:
            for c in range(4): a(f"v_mul_f32 v{c0+c}, v{SS+c}, v{ZZ+c}")
        pack(i)
        if i + 1 < NS: pack(i + 1)
        mf(GG, WR_, i)
        if i % 2 == 1 and i // 2 + 2 <= 8: rbread(i // 2 + 2)
        a(f"v_mfma_f32_16x16x16_bf16 v[{UU}:{UU+3}], v[{WU}:{WU+1}], v[{c0}:{c0+1}], 0")
        if i + 1 < NS:
            if i % 2 == 1: a(f"s_waitcnt lgkmcnt({1 if i // 2 + 2 <= 8 else 0})")
            stage_a(i + 1)
    def stage_c(i):
        c0 = ACC + 4 * i; m = mreg[i]
        a(f"s_waitcnt vmcnt({len(vm) - 1 - vm.index(('m', i))})")
        a(f"v_lshlrev_b32 v{c0}, 16, v{m}")
        a(f"v_and_b32 v{c0+1}, 0xffff0000, v{m}")
        a(f"v_lshlrev_b32 v{c0+2}, 16, v{m+1}")
        a(f"v_and_b32 v{c0+3}, 0xffff0000, v{m+1}")
        if o.pk:
            for c in (0, 2): a(f"v_pk_fma_f32 v[{c0+c}:{c0+c+1}], v[{UU+c}:{UU+c+1}], v[{GG+c}:{GG+c+1}], v[{c0+c}:{c0+c+1}]")
        else:
            for c in range(4): a(f"v_fma_f32 v{c0+c}, v{UU+c}, v{GG+c}, v{c0+c}")
        for u in range(2): a(f"v_cvt_pk_bf16_f32 v{m+u}, v{c0+2*u}, v{c0+2*u+1}")
        a(f"buffer_store_dwordx2 v[{m}:{m+1}], v{vSo}, s[28:31], 0 offen {o.ost}")
        a(f"v_add_u32 v{vSo}, {4096*32}, v{vSo}")
        vm.append(("s", i))
        for k in (NPRE + 2 * i, NPRE + 2 * i + 1):
            if k < NS: mload(k); vm.append(("m", k))
    pack(0)
    a("s_waitcnt lgkmcnt(0)")
    stage_a(0)
    stage_b(0)
    for i in range(NS):
        if i == NS - 1:
            a("s_cmp_lt_u32 s50, 17")
            a("s_cbranch_scc1 P2_fin")
        stage_c(i)
        if i + 1 < NS: stage_b(i + 1)
    a("P2_fin:")
    if o.prof:
        P.stamp()
        a("s_waitcnt vmcnt(0)")
        P.stamp(True)
        P.dump(32, 0x80000, 34, 3)
    a("P2_end:")
    a("s_endpgm")

KD = """.amdhsa_kernel {name}
  .amdhsa_next_free_vgpr 128
  .amdhsa_next_free_sgpr 100
  .amdhsa_accum_offset 128
  .amdhsa_group_segment_fixed_size 0
  .amdhsa_kernarg_size 112
  .amdhsa_user_sgpr_count 2
  .amdhsa_user_sgpr_kernarg_segment_ptr 1
  .amdhsa_system_sgpr_workgroup_id_x 1
  .amdhsa_float_denorm_mode_32 3
.end_amdhsa_kernel
"""

NAME = "gather_scatter__molecular_angular_gemnet__graph_kernel"

def build(o):
    GUARD[0] = 1000000 if o.maxr else 0
    a = Asm(); P = Prof(a, o.prof, 1)
    xw, stg = gen_p1(o, a, P); gen_p2(o, a, P, xw, stg)
    ref = open("gather_scatter__molecular_angular_gemnet__graph.s.ref").read().split("\n")
    head = [l for l in ref if l.startswith(";") and "launch geometry" not in l and "Harness parses" not in l and "@launch" not in l]
    s = "\n".join(head) + "\n"
    s += "; Part 1 partitions the triplets by (input slice, output bin); part 2 gathers / segment-sums with MFMA.\n"
    s += f"; @launch grid=(256,1,1) block=(1024,1,1) lds={xw + 64}\n"
    s += '.amdgcn_target "amdgcn-amd-amdhsa--gfx950"\n.text\n'
    s += f".globl {NAME}\n.p2align 8\n.type {NAME},@function\n{NAME}:\n" + a.finish()
    s += '.section .rodata,"a"\n.p2align 6\n' + KD.format(name=NAME)
    return s

def parser():
    p = argparse.ArgumentParser()
    p.add_argument("-S", type=int, default=10)
    for k, d in dict(prof=0, maxr=0, dstep=4, asplit=12, sw=1, psleep=2, csleep=2, gsleep=24, maxpoll=1000000, eprio=0, nd=4, nornd=0, pp=1, nb=6, pk=1, sw0=0, pf0=2, pfw=4, pfn=3, ldp=1, spr=2, f0=0, dry=0, cpf=14, nl=3, lstep=4, reli=5, fuse=1, cmap=2, rot=0).items():
        p.add_argument("--" + k, type=int, default=d)
    p.add_argument("--p1_ld", default="nt")
    p.add_argument("--p1_st", default="sc1")
    p.add_argument("--ost", default="sc1")
    p.add_argument("-o", default="gather_scatter__molecular_angular_gemnet__graph.s")
    return p

if __name__ == "__main__":
    o = parser().parse_args()
    open(o.o, "w").write(build(o))
```

```python
import sys, argparse
from asmlib import Asm

E = 800000; T = 12800000
NT = 256
CHA = 25088
TILE_N = 50000
TILE_BYTES = 300032
WS_DESC = 0x5000000
WS_PROF = 0x6000000
CAP = 56
WSTR = CAP * 4
MARK = 0x00100000
NG = 196
WREG = 9472

GUARD = [0]
def guard(a):
    if GUARD[0]:
        a("s_add_u32 s99, s99, 1")
        a(f"s_cmp_gt_u32 s99, {GUARD[0]}")
        a("s_cbranch_scc1 P2_end")

def slicing(o):
    B = (o.f0 << 26) // 100
    K = ((o.S << 26) - B) // E
    return K, B

def srd(a, d, base, size, off=None):
    if off is None:
        a(f"s_mov_b32 s{d}, s{base}")
        a(f"s_mov_b32 s{d+1}, s{base+1}")
    else:
        a(f"s_add_u32 s{d}, s{base}, {off}")
        a(f"s_addc_u32 s{d+1}, s{base+1}, 0")
    a(f"s_mov_b32 s{d+2}, {size}")
    a(f"s_mov_b32 s{d+3}, 0x20000")

class Prof:
    def __init__(self, a, on, fuse=0): self.a = a; self.on = on; self.n = 0; self.fuse = fuse
    def stamp(self, key=False):
        if not self.on or (self.on == 2 and not key): return
        a = self.a
        a("s_waitcnt lgkmcnt(0)")
        a("s_memtime s[58:59]")
        a("s_waitcnt lgkmcnt(0)")
        a(f"s_mov_b32 s{60+self.n}, s58")
        a("s_memrealtime s[58:59]")
        a("s_waitcnt lgkmcnt(0)")
        a(f"s_mov_b32 s{72+self.n}, s58")
        self.n += 1
    def dump(self, wsreg, region, vt, wave_sreg):
        if not self.on: return
        a = self.a
        srd(a, 52, wsreg, 0x100000, WS_PROF + region)
        a(f"s_lshl_b32 s56, s2, 4")
        a(f"s_add_u32 s56, s56, s{wave_sreg}")
        a(f"s_lshl_b32 s56, s56, 7")
        a("s_mov_b64 exec, 1")
        for i in range(self.n):
            a(f"v_mov_b32 v{vt}, s56")
            a(f"v_mov_b32 v{vt+1}, s{60+i}")
            a(f"buffer_store_dword v{vt+1}, v{vt}, s[52:55], 0 offen offset:{4*i}")
            a(f"v_mov_b32 v{vt+1}, s{72+i}")
            a(f"buffer_store_dword v{vt+1}, v{vt}, s[52:55], 0 offen offset:{64+4*i}")
        a(f"v_mov_b32 v{vt+1}, s71")
        a(f"buffer_store_dword v{vt+1}, v{vt}, s[52:55], 0 offen offset:124")
        a("s_waitcnt vmcnt(0)")
        a("s_mov_b64 exec, -1")

def gen_p1(o, a, P):
    S = o.S
    NK = S * 256
    KSL, BSL = slicing(o)
    CN = 16; SCR = CN + NK * 4; STG = SCR + 64; XW = STG + CHA * 6
    W0 = 4; KP0 = 53; C0 = 78; TO = 103; T0 = 104
    ld = o.p1_ld; st = o.p1_st
    def issue_idx(r):
        b = C0 + 4 * (r % 6); w = W0 + 4 * r
        a(f"buffer_load_dwordx4 v[{b}:{b+3}], v1, s[12:15], s36 offen {ld}")
        a(f"buffer_load_dwordx4 v[{w}:{w+3}], v1, s[8:11], s36 offen {ld}")
        a(f"s_add_u32 s36, s36, 16384")
    def issue_ang(r):
        b = C0 + 2 * r
        a(f"buffer_load_dwordx2 v[{b}:{b+1}], v2, s[16:19], s37 offen {ld}")
        a(f"s_add_u32 s37, s37, 8192")
    DP = o.ldp
    a("s_load_dwordx2 s[8:9], s[0:1], 8")
    a("s_load_dwordx2 s[12:13], s[0:1], 16")
    a("s_cmp_ge_u32 s2, 256")
    a("s_cbranch_scc1 P2_end")
    if o.cpf:
        a("s_getpc_b64 s[40:41]")
        a("P1_pc:")
        a("s_lshr_b32 s45, s2, 3")
        a(f"s_mulk_i32 s45, {o.cpf}")
        a(f"s_mov_b32 s42, P2_end-P1_pc")
        a("s_mov_b32 s43, 0x20000")
        a(f"v_add_lshl_u32 v{T0+23}, v0, s45, 7")
        a(f"v_cmp_gt_u32 vcc, {o.cpf}, v0")
        a("s_and_b64 exec, exec, vcc")
        a("s_cbranch_execz P1_nopf")
        a(f"buffer_load_dword v{T0+23}, v{T0+23}, s[40:43], 0 offen")
        a("P1_nopf:")
        a("s_mov_b64 exec, -1")
    a(f"s_mov_b32 s10, {T * 4}")
    a("s_mov_b32 s11, 0x20000")
    a("s_mov_b64 s[14:15], s[10:11]")
    a(f"s_mul_i32 s36, s2, {12 * 16384}")
    a("v_lshlrev_b32 v1, 4, v0")
    a("s_waitcnt lgkmcnt(0)")
    P.stamp(True)
    for r in range(DP): issue_idx(r)
    if GUARD[0]: a("s_mov_b32 s99, 0")
    a("s_load_dwordx2 s[16:17], s[0:1], 32")
    a("s_load_dwordx2 s[30:31], s[0:1], 48")
    a("s_load_dwordx2 s[32:33], s[0:1], 104")
    a("s_load_dwordx2 s[94:95], s[0:1], 96")
    a("s_load_dwordx2 s[48:49], s[0:1], 0")
    a("s_load_dwordx2 s[86:87], s[0:1], 88")
    a("v_lshlrev_b32 v2, 3, v0")
    a("v_mov_b32 v3, 1")
    for i in range(4): a(f"v_mov_b32 v{T0+i}, 0")
    a(f"ds_write_b128 v1, v[{T0}:{T0+3}]")
    a(f"v_lshrrev_b32 v{T0+4}, 6, v0")
    a(f"v_readfirstlane_b32 s3, v{T0+4}")
    a(f"s_mul_i32 s34, s2, 848")
    a(f"s_add_u32 s34, s34, {3072*4096}")
    a(f"v_add_u32 v109, s34, v0")
    a(f"v_cmp_gt_u32 vcc, 848, v0")
    a(f"v_lshlrev_b32 v110, 2, v109")
    a(f"v_lshlrev_b32 v109, 1, v109")
    a(f"v_cndmask_b32 v110, 2.0, v110, vcc")
    a(f"v_cndmask_b32 v109, 2.0, v109, vcc")
    a(f"buffer_load_dword v{TO}, v110, s[12:15], 0 offen {ld}")
    a(f"buffer_load_dword v{W0+48}, v110, s[8:11], 0 offen {ld}")
    a(f"s_mov_b32 s18, {T * 2}")
    a("s_mov_b32 s19, 0x20000")
    a(f"s_mul_i32 s37, s2, {12 * 8192}")
    a("s_waitcnt lgkmcnt(0)")
    a("s_load_dword s35, s[30:31], 0")
    a(f"buffer_load_ushort v{C0+24}, v109, s[16:19], 0 offen {ld}")
    a("s_mov_b32 s38, 0x7c00")
    MG = -(-(1 << 19) // S)
    assert all((n * MG) >> 19 == n // S for n in range(4096))
    a(f"s_mov_b32 s40, {(-(1024*S - 4)) & 0xffffffff}")
    for j in range(4):
        t = T0 + 16 + j
        a(f"v_lshl_add_u32 v{t}, v0, 2, {j}")
        a(f"v_mul_u32_u24 v{T0}, {MG}, v{t}")
        a(f"v_lshrrev_b32 v{T0}, 19, v{T0}")
        a(f"v_lshlrev_b32 v{t}, 10, v{t}")
        a(f"v_mad_i32_i24 v{t}, v{T0}, s40, v{t}")
        a(f"v_add_u32 v{t}, {STG}, v{t}")
    srd(a, 20, 32, NT * NT * S * 4, WS_DESC)
    srd(a, 24, 94, 256)
    a("s_mov_b32 s44, 0")
    a(f"s_mov_b32 s39, {KSL}")
    a(f"v_mov_b32 v{T0+22}, {BSL}")
    a(f"v_mov_b32 v{T0+20}, 0x3fc")
    a(f"v_mov_b32 v{T0+21}, 0x0ff00000")
    a("s_barrier")
    def key(O, W, t0, t1):
        a(f"v_mad_u32_u24 v{t0}, v{W}, s39, v{T0+22}")
        a(f"v_lshlrev_b32 v{t1}, 8, v{O}")
        a(f"v_lshl_or_b32 v{W}, v{O}, 28, v{W}")
        a(f"v_and_b32_sdwa v{t0}, v{t0}, s38 dst_sel:DWORD dst_unused:UNUSED_PAD src0_sel:WORD_1 src1_sel:DWORD")
        a(f"v_lshrrev_b32 v{O}, 2, v{O}")
        a(f"v_bitop3_b32 v{W}, v{t1}, v{T0+21}, v{W} bitop3:0xea")
        a(f"v_bitop3_b32 v{O}, v{O}, v{T0+20}, v{t0} bitop3:0xea")
    for r in range(12):
        a(f"s_waitcnt vmcnt({min(2*DP-2, 2*(11-r)) + (3 if r < DP else 0)})")
        if DP < 6 and r + DP < 12: issue_idx(r + DP)
        if r == DP:
            key(TO, W0 + 48, T0, T0 + 1)
            a(f"v_cndmask_b32 v{KP0+24}, 2.0, v{TO}, vcc")
            a(f"ds_add_u32 v{KP0+24}, v3 offset:{CN}")
        b = C0 + 4 * (r % 6)
        for j in range(4):
            key(b + j, W0 + 4 * r + j, T0 + 2 * j, T0 + 2 * j + 1)
            a(f"ds_add_u32 v{b+j}, v3 offset:{CN}")
        a(f"v_lshl_or_b32 v{KP0+2*r}, v{b+1}, 16, v{b}")
        a(f"v_lshl_or_b32 v{KP0+2*r+1}, v{b+3}, 16, v{b+2}")
        if DP == 6 and r < 6: issue_idx(r + 6)
    a("s_waitcnt lgkmcnt(0)")
    a("s_barrier")
    P.stamp()
    c = T0; x = T0 + 4; tot = T0 + 5; y = T0 + 6
    a(f"s_cmp_ge_u32 s3, {S}")
    a("s_cbranch_scc1 P1_scan1")
    a(f"ds_read_b128 v[{c}:{c+3}], v1 offset:{CN}")
    a("s_waitcnt lgkmcnt(0)")
    a(f"v_add_u32 v{c+1}, v{c}, v{c+1}")
    a(f"v_add_u32 v{c+2}, v{c+1}, v{c+2}")
    a(f"v_add_u32 v{c+3}, v{c+2}, v{c+3}")
    a(f"v_mov_b32 v{x}, v{c+3}")
    for sh in (1, 2, 4, 8):
        a(f"v_add_u32_dpp v{x}, v{x}, v{x} row_shr:{sh} row_mask:0xf bank_mask:0xf bound_ctrl:1")
    a(f"v_add_u32_dpp v{x}, v{x}, v{x} row_bcast:15 row_mask:0xa bank_mask:0xf")
    a(f"v_add_u32_dpp v{x}, v{x}, v{x} row_bcast:31 row_mask:0xc bank_mask:0xf")
    a(f"v_readlane_b32 s40, v{x}, 63")
    a(f"s_lshl_b32 s41, s3, 2")
    a(f"v_mov_b32 v{y}, s41")
    a(f"v_mov_b32 v{y+1}, s40")
    a(f"ds_write_b32 v{y}, v{y+1} offset:{SCR}")
    a("s_waitcnt lgkmcnt(0)")
    a("P1_scan1:")
    a("s_barrier")
    a(f"s_cmp_ge_u32 s3, {S}")
    a("s_cbranch_scc1 P1_scan2")
    a(f"v_and_b32 v{y}, 63, v0")
    a(f"v_lshlrev_b32 v{y+1}, 2, v{y}")
    a(f"ds_read_b32 v{y+2}, v{y+1} offset:{SCR}")
    a(f"v_cmp_gt_u32 s[42:43], s3, v{y}")
    a(f"v_sub_u32 v{x}, v{x}, v{c+3}")
    a("s_waitcnt lgkmcnt(0)")
    a(f"v_cndmask_b32 v{y+2}, 0, v{y+2}, s[42:43]")
    for sh in (1, 2, 4, 8):
        a(f"v_add_u32_dpp v{y+2}, v{y+2}, v{y+2} row_shr:{sh} row_mask:0xf bank_mask:0xf bound_ctrl:1")
    a(f"v_readlane_b32 s40, v{y+2}, 15")
    s0 = T0 + 12
    a(f"v_add_u32 v{s0}, s40, v{x}")
    for j in range(3): a(f"v_add_u32 v{s0+1+j}, v{s0}, v{c+j}")
    a(f"ds_write_b128 v1, v[{s0}:{s0+3}] offset:{CN}")
    a(f"ds_write_b128 v1, v[{s0}:{s0+3}] offset:{STG}")
    a(f"v_mov_b32 v{c}, {STG + NK * 4}")
    a(f"v_mov_b32 v{c+1}, {TILE_N}")
    a(f"ds_write_b32 v{c}, v{c+1}")
    a("s_waitcnt lgkmcnt(0)")
    a("P1_scan2:")
    a("s_barrier")
    a(f"s_cmp_ge_u32 s3, {S}")
    a("s_cbranch_scc1 P1_nodesc")
    for j in range(4):
        a(f"ds_read2_b32 v[{T0+2*j}:{T0+2*j+1}], v{T0+16+j} offset0:0 offset1:1")
    a(f"s_mul_i32 s40, s2, {256*S*4}")
    lds_count(a, T0 + 8, 4)
    for j in range(4): a(f"v_lshl_or_b32 v{T0+12+j}, v{T0+2*j+1}, 16, v{T0+2*j}")
    a(f"buffer_store_dwordx4 v[{T0+12}:{T0+15}], v1, s[20:23], s40 offen {st}")
    a("P1_nodesc:")
    if o.pp & 1: a("s_setprio 3")
    def atomics(n):
        t = T0 + 4 * (n % 2)
        if n == 12:
            a(f"ds_add_rtn_u32 v{t}, v{KP0+24}, v3 offset:{CN}"); return 1
        for j in range(4):
            kp = KP0 + 2 * n + j // 2
            if j % 2 == 0: a(f"v_and_b32 v{t+j}, 0xffff, v{kp}")
            else: a(f"v_lshrrev_b32 v{t+j}, 16, v{kp}")
            a(f"ds_add_rtn_u32 v{t+j}, v{t+j}, v3 offset:{CN}")
        return 4
    a(f"s_cmp_ge_u32 s3, {o.asplit}")
    a("s_cbranch_scc1 P1_ang1")
    for n in range(12): issue_ang(n)
    a("P1_ang1:")
    atomics(0)
    for n in range(13):
        k = atomics(n + 1) if n < 12 else 0
        a(f"s_waitcnt lgkmcnt({k})")
        t = T0 + 4 * (n % 2); u = T0 + 8
        if n < 12:
            a(f"v_lshl_or_b32 v{KP0+2*n}, v{t+1}, 16, v{t}")
            a(f"v_lshl_or_b32 v{KP0+2*n+1}, v{t+3}, 16, v{t+2}")
        else:
            a(f"v_mov_b32 v{u}, 0xffff")
            a(f"v_cndmask_b32 v{KP0+24}, v{u}, v{t}, vcc")
    a(f"s_cmp_lt_u32 s3, {o.asplit}")
    a("s_cbranch_scc1 P1_ang2")
    for n in range(12): issue_ang(n)
    a("P1_ang2:")
    a("s_lshl_b32 s35, s35, 16")
    a("s_cmp_eq_u32 s35, 1.0")
    a("s_cbranch_scc1 P1_f1")
    a("s_waitcnt vmcnt(0)")
    for n in range(25):
        cr = C0 + n; t = T0
        a(f"v_lshlrev_b32 v{t}, 16, v{cr}")
        a(f"v_and_b32 v{t+1}, 0xffff0000, v{cr}")
        a(f"v_mul_f32 v{t}, s35, v{t}")
        a(f"v_mul_f32 v{t+1}, s35, v{t+1}")
        a(f"v_cvt_pk_bf16_f32 v{cr}, v{t}, v{t+1}")
    a("P1_f1:")
    lds_wait(a, T0, 4, S, "q", 0)
    def addrs(n, h, u, base):
        a(f"v_mad_u32_u16 v{u}, v{KP0+n}, 6, {base}" + (" op_sel:[1,0,0,0]" if h else ""))
        a(f"v_and_b32 v{u+1}, 2, v{u}")
        a(f"v_sub_u32 v{u}, v{u}, v{u+1}")
        a(f"v_sub_u32 v{u+1}, v{u}, v{u+1}")
    for n in range(25):
        cr = C0 + n; t = T0 + 6 * (n % 2)
        if o.pp & 1 and n in (0, 9, 17): a(f"s_setprio {2 - n // 8}")
        if n % 2 == 0 and n < 24: a(f"s_waitcnt vmcnt({11 - n // 2})")
        if n == 0:
            a(f"s_cmp_ge_u32 s3, {S}")
            a("s_cbranch_scc1 P1_noe")
            a("s_waitcnt vmcnt(0)")
            lds_ticket(a, 2, 8)
            a(f"s_cmp_lg_u32 s40, {S-1}")
            a("s_cbranch_scc1 P1_noe")
            arrive(a, 2, LV_E)
            a("s_mov_b32 s44, 1")
            a("P1_noe:")
        if n == 14:
            a("s_cmp_eq_u32 s44, 0")
            a("s_cbranch_scc1 P2_norele")
            release(a, 2, LV_E, "e")
        a(f"v_lshlrev_b32 v{t}, 16, v{cr}")
        a(f"v_and_b32 v{t+1}, 0xffff0000, v{cr}")
        a(f"v_mul_f32 v{t}, 0.15915494, v{t}")
        a(f"v_mul_f32 v{t+1}, 0.15915494, v{t+1}")
        a(f"v_fract_f32 v{t}, v{t}")
        a(f"v_fract_f32 v{t+1}, v{t+1}")
        a(f"v_cos_f32 v{t}, v{t}")
        a(f"v_cos_f32 v{t+1}, v{t+1}")
        for h in range(2 if n < 24 else 1):
            u = t + 2 + 2 * h
            addrs(n, h, u, 0)
            a(f"ds_write_b32 v{u}, v{W0+2*n+h} offset:{STG}")
        a(f"v_cvt_pk_bf16_f32 v{cr}, v{t}, v{t+1}")
        a(f"ds_write_b16 v{t+3}, v{cr} offset:{STG+8}")
        if n < 24: a(f"ds_write_b16_d16_hi v{t+5}, v{cr} offset:{STG+8}")
    a(f"s_mul_i32 s40, s2, {TILE_BYTES}")
    srd(a, 20, 32, CHA * 6, "s40")
    a(f"s_mul_i32 s40, s3, {WREG - 1024}")
    a(f"v_add_u32 v2, s40, v1")
    a(f"v_add_u32 v{TO}, {9*1024}, v2")
    a("s_mov_b32 s44, 0")
    if o.pf0:
        L0 = -(-(1 << 26) // KSL) // 4 + 1
        srd(a, 8, 48, E * 32)
        a(f"s_sub_u32 s40, s3, {o.pfw}")
        a(f"s_cmp_ge_u32 s40, {o.pfn}")
        a("s_cbranch_scc1 P1_nopf0")
        if o.pf0 == 1:
            a("s_lshr_b32 s41, s2, 3")
        else:
            a("s_mov_b32 s41, s2")
        a(f"s_mul_i32 s41, s41, {o.pfn * 64}")
        a(f"s_sub_u32 s41, s41, {o.pfw * 64}")
        a("v_add_lshl_u32 v1, v0, s41, 7")
        a("buffer_load_dword v1, v1, s[8:11], 0 offen")
        a("P1_nopf0:")
    a("s_waitcnt lgkmcnt(0)")
    a("s_barrier")
    P.stamp()
    a(f"s_cmp_lg_u32 s3, 15")
    a("s_cbranch_scc1 P1_noclr")
    a(f"v_and_b32 v3, 15, v0")
    a(f"v_lshlrev_b32 v3, 2, v3")
    a(f"v_add_u32 v3, {XW}, v3")
    a(f"v_mov_b32 v{T0}, 0")
    a(f"ds_write_b32 v3, v{T0}")
    a("P1_noclr:")
    def rd(k):
        t = T0 + 4 * (k % 6)
        a(f"ds_read_b128 v[{t}:{t+3}], v2 offset:{STG + 1024 * (9 - k)}")
    def store(k):
        t = T0 + 4 * (k % 6)
        if k == 0: a("s_mov_b64 exec, 0xffff")
        a(f"buffer_store_dwordx4 v[{t}:{t+3}], v{TO}, s[20:23], 0 offen {st}")
        if k == 0: a("s_mov_b64 exec, -1")
        a(f"v_subrev_u32 v{TO}, 1024, v{TO}")
    NB = o.nb
    for k in range(6): rd(k)
    for k in range(NB):
        a(f"s_waitcnt lgkmcnt({min(5, 9-k)})")
        store(k)
        if k + 6 < 10: rd(k + 6)
    a(f"s_waitcnt vmcnt({NB}) lgkmcnt(0)")
    a(f"s_cmp_ge_u32 s3, {o.nd}")
    a("s_cbranch_scc1 P1_nod")
    for k in range(NB, 10): store(k)
    a("s_waitcnt vmcnt(0)")
    lds_ticket(a, T0, 0)
    a(f"s_cmp_lg_u32 s40, {o.nd-1}")
    a("s_cbranch_scc1 P1_nod")
    arrive(a, T0, LV_D)
    a("s_mov_b32 s44, 1")
    a("P1_nod:")
    a(f"s_mov_b32 s45, {(-CHA*6) & 0xffffffff}")
    a("s_barrier")
    P.stamp()
    nnow = NB
    for n in range(25):
        if o.pp & 2 and n in (0, 9, 17): a(f"s_setprio {2 - n // 8}")
        if n == 1:
            a("s_cmp_eq_u32 s44, 0")
            a("s_cbranch_scc1 P2_noreld")
            release(a, T0, LV_D, "d")
        if n % o.dstep == 1 and nnow < 10:
            a(f"s_cmp_lt_u32 s3, {o.nd}")
            a(f"s_cbranch_scc1 P1_ns{n}")
            store(nnow); nnow += 1
            a(f"P1_ns{n}:")
        for h in range(2 if n < 24 else 1):
            u = 2 * h
            addrs(n, h, u, "s45")
            a(f"ds_write_b32 v{u}, v{W0+2*n+h} offset:{STG}")
            a(f"ds_write_b16{'_d16_hi' if h else ''} v{u+1}, v{C0+n} offset:{STG+8}")
    assert nnow == 10
    lds_count(a, 4, XW + X_S)
    a(f"s_mul_i32 s40, s2, {TILE_BYTES}")
    a(f"s_add_u32 s40, s40, {CHA*6}")
    srd(a, 20, 32, (TILE_N - CHA) * 6, "s40")
    return XW, STG

LV_A, LV_B, LV_D, LV_E = 0, 1, 2, 3
X_A, X_S, X_X, X_I, X_B, X_R, X_C, X_H, X_CW, X_PW = 0, 4, 8, 12, 16, 20, 24, 28, 32, 48

def arrive(a, t, level):
    a(f"v_mov_b32 v{t}, 0")
    a(f"v_mov_b32 v{t+1}, 1")
    a("s_mov_b64 exec, 1")
    a(f"buffer_atomic_add v{t+1}, v{t}, s[24:27], 0 offen offset:{32*level} sc0 sc1")
    a("s_mov_b64 exec, -1")

def release(a, t, level, tag):
    a("s_waitcnt vmcnt(0)")
    a(f"v_readfirstlane_b32 s40, v{t+1}")
    a("s_cmp_lg_u32 s40, 255")
    a(f"s_cbranch_scc1 P2_norel{tag}")
    a("s_mov_b64 exec, 1")
    a(f"buffer_store_dword v{t+1}, v{t}, s[24:27], 0 offen offset:{128+4*level} sc1")
    a("s_mov_b64 exec, -1")
    a(f"P2_norel{tag}:")

def lds_count(a, t, word):
    a(f"v_mov_b32 v{t}, {word}")
    a(f"v_mov_b32 v{t+1}, 1")
    a("s_mov_b64 exec, 1")
    a("s_waitcnt lgkmcnt(0)")
    a(f"ds_add_u32 v{t}, v{t+1}")
    a("s_mov_b64 exec, -1")

def lds_wait(a, t, word, n, tag, sleep):
    a(f"v_mov_b32 v{t}, {word}")
    a(f"P2_lw{tag}:")
    a(f"ds_read_b32 v{t+1}, v{t}")
    a("s_waitcnt lgkmcnt(0)")
    a(f"v_readfirstlane_b32 s40, v{t+1}")
    a(f"s_cmp_ge_u32 s40, {n}")
    a(f"s_cbranch_scc1 P2_lg{tag}")
    if sleep: a(f"s_sleep {sleep}")
    guard(a)
    a(f"s_branch P2_lw{tag}")
    a(f"P2_lg{tag}:")

def lds_ticket(a, t, word):
    a(f"v_mov_b32 v{t}, {word}")
    a(f"v_mov_b32 v{t+1}, 1")
    a("s_mov_b64 exec, 1")
    a(f"ds_add_rtn_u32 v{t+1}, v{t}, v{t+1}")
    a("s_mov_b64 exec, -1")
    a("s_waitcnt lgkmcnt(0)")
    a(f"v_readfirstlane_b32 s40, v{t+1}")

def gen_p2(o, a, P, XW, STG):
    S = o.S
    uid = [0]
    LUT = 2048; CB = 2560; WSZ = NG * WSTR
    RBSZ = 100 * 512
    X1 = RBSZ + 32
    WT = CB + WSZ // 2 + 16
    WB = CB + X1 // 2 + WSZ // 2 + 16
    RB_AT = (WB, WB + WSZ + 32)
    SC = WB + X1 + WSZ + 64
    assert WT + 3072 <= CB + X1 // 2 and WB < 65536 and SC + 12288 <= XW and WB % 16 == 0 and X1 % 32 == 0
    a("s_and_b32 s46, s2, 7")
    a("s_lshl_b32 s46, s46, 5")
    a("s_lshr_b32 s47, s2, 3")
    a("s_add_u32 s46, s46, s47")
    a("v_mbcnt_lo_u32_b32 v12, -1, 0")
    a("v_mbcnt_hi_u32_b32 v12, -1, v12")
    a("s_lshl_b32 s40, s3, 6")
    a("v_add_u32 v0, s40, v12")
    srd(a, 8, 48, E * 32)
    srd(a, 12, 32, NT * TILE_BYTES)
    srd(a, 16, 32, NT * NT * S * 4, WS_DESC)
    a("s_mov_b64 s[6:7], s[86:87]")
    if o.prof: a("s_mov_b32 s71, 0")
    a("s_mov_b32 s48, 0")
    a("s_cmp_ge_u32 s3, 4")
    a("s_cbranch_scc1 P2_consumer")
    def twait(body):
        if o.prof == 1:
            a("s_waitcnt lgkmcnt(0)")
            a("s_memtime s[56:57]")
            a("s_waitcnt lgkmcnt(0)")
        body()
        if o.prof == 1:
            a("s_memtime s[58:59]")
            a("s_waitcnt lgkmcnt(0)")
            a("s_sub_u32 s56, s58, s56")
            a("s_add_u32 s71, s71, s56")
    D0 = 40; R0 = 64
    vU12 = 1; vTile = 2; vInc = 3; v3FC = 4; vCb = 5; vZ = 6; v2U2 = 7; v2U1 = 8; vSg = 9
    n2c = 10; a0c = 11; n2n = 13; a0n = 14
    vca = 16; vcb = 17; vra = 18; vrb = 19; vwa = 20; vwb = 21; vha = 22; vhb = 23; vt = 24; vt2 = 25; vPW = 26; vS = 28
    ODDC = 52; MORC = 54; ODDN = 84; MORN = 86; ROW0 = 82; M0_ = 88; M1_ = 90
    KSL, BSL = slicing(o)
    L0 = -(-(1 << 26) // KSL) // 4 + 1
    def warm(sl, part):
        n = -(-L0 // 1024)
        a(f"s_mul_i32 s40, {sl}, {L0 - 1}")
        a(f"s_lshl_b32 s41, s2, 2")
        a(f"s_add_u32 s41, s41, {part}")
        a(f"s_mul_i32 s41, s41, {n}")
        a(f"s_add_u32 s40, s40, s41")
        a(f"s_sub_u32 s40, s40, {BSL // KSL // 4}")
        a(f"s_min_u32 s40, s40, {E // 4 - n}")
        a(f"s_lshl_b32 s40, s40, 7")
        a(f"s_add_u32 s36, s8, s40")
        a(f"s_addc_u32 s37, s9, 0")
        for j in range(n): a(f"s_load_dwordx2 s[38:39], s[36:37], {128*j+60}")
    def poll(level, tag, meanwhile=None):
        a("s_mov_b32 s51, 0")
        a(f"P2_poll{tag}:")
        a(f"buffer_load_dword v{vt}, v{vZ}, s[24:27], 0 offen offset:{128+4*level} sc1")
        a("s_add_u32 s51, s51, 1")
        a(f"s_cmp_gt_u32 s51, {o.maxpoll}")
        a("s_cbranch_scc1 P2_giveup")
        if meanwhile: a(f"s_call_b64 s[34:35], {meanwhile}")
        a("s_waitcnt vmcnt(0)")
        a(f"v_cmp_eq_u32 vcc, 0, v{vt}")
        a(f"s_cbranch_vccz P2_polled{tag}")
        a(f"s_sleep {o.gsleep}")
        a(f"s_branch P2_poll{tag}")
        a(f"P2_polled{tag}:")
    def ensure():
        uid[0] += 1; u = uid[0]
        a(f"v_cmp_lt_u32 vcc, s45, v{D0}")
        a(f"s_cbranch_vccz P2_have{u}")
        a("s_call_b64 s[42:43], P2_ensure")
        a(f"P2_have{u}:")
    def prep():
        ensure()
        a(f"v_bfe_u32 v{vt}, v{D0}, 1, 15")
        a(f"v_mad_u32_u24 v{a0n}, v{vt}, 12, v{vTile}")
        a(f"v_lshrrev_b32 v{n2n}, 16, v{D0}")
        a(f"v_and_b32 v{vt}, 0xfffe, v{D0}")
        a(f"v_sub_u32 v{n2n}, v{n2n}, v{vt}")
        a(f"v_and_b32 v{vt}, 1, v{D0}")
        a(f"v_cmp_eq_u32 s[{ODDN}:{ODDN+1}], 1, v{vt}")
        a(f"v_cmp_lt_u32 s[{MORN}:{MORN+1}], 32, v{n2n}")
        for k in range(S): a(f"v_mov_b32 v{D0+k}, v{D0+k+1}")
    def issue(i):
        t = (vt, vca)[i % 2]
        a(f"v_add_u32_dpp v{t}, v{a0n}, v{vU12} row_newbcast:{i} row_mask:0xf bank_mask:0xf")
        a(f"v_sub_u32_dpp v{t+1}, v{n2n}, v{v2U1} row_newbcast:{i} row_mask:0xf bank_mask:0xf")
        a(f"v_bitop3_b32 v{t}, v{t+1}, v{vSg}, v{t} bitop3:0xea")
        r = R0 + 4 * i
        a(f"buffer_load_dwordx3 v[{r}:{r+2}], v{t}, s[12:15], 0 offen sc1")
    def unhold():
        a("s_lshl_b32 s40, 1, s3")
        a(f"v_mov_b32 v{vt}, {XW + X_H}")
        a(f"v_mov_b32 v{vt2}, s40")
        a("s_mov_b64 exec, 1")
        a(f"ds_or_b32 v{vt}, v{vt2}")
        a("s_mov_b64 exec, -1")
    def next_round(regular):
        a("s_call_b64 s[42:43], P2_next")
        if regular:
            ensure()
            if o.sw:
                a(f"s_cmp_lt_u32 s49, {o.sw0}")
                a("s_cbranch_scc1 P2_nowarm")
                warm("s49", "s3")
                a("P2_nowarm:")
        a("s_call_b64 s[42:43], P2_wait")
    def wait_buffer(tag):
        a("s_lshr_b32 s50, s48, 1")
        a("s_mul_i32 s50, s50, 12")
        a("s_and_b32 s51, s48, 1")
        a("s_lshl_b32 s51, s51, 2")
        a(f"s_add_u32 s51, s51, {XW + X_CW}")
        a(f"v_mov_b32 v{vt2}, s51")
        a(f"P2_pw{tag}:")
        a(f"ds_read_b32 v{vt}, v{vt2}")
        a("s_waitcnt lgkmcnt(0)")
        a(f"v_readfirstlane_b32 s51, v{vt}")
        a("s_cmp_ge_u32 s51, s50")
        a(f"s_cbranch_scc1 P2_pg{tag}")
        a(f"s_sleep {o.psleep}")
        guard(a)
        a(f"s_branch P2_pw{tag}")
        a(f"P2_pg{tag}:")
    a("s_setprio 3")
    a("s_waitcnt vmcnt(0)")
    lds_count(a, vt, XW + X_A)
    a(f"s_lshl_b32 s47, s3, 6")
    a(f"v_add_u32 v{vTile}, s47, v12")
    a(f"s_lshl_b32 s50, s3, 2")
    a(f"s_add_u32 s50, s50, {XW + X_PW}")
    a(f"v_mov_b32 v{vPW}, s50")
    a(f"v_lshlrev_b32 v15, 8, v{vTile}")
    a(f"v_add_u32 v15, s46, v15")
    a(f"v_mul_u32_u24 v15, {4*S}, v15")
    a(f"v_mov_b32 v{D0+S}, 0")
    a(f"v_mul_u32_u24 v{vTile}, {TILE_BYTES}, v{vTile}")
    a(f"v_and_b32 v{vt}, 15, v12")
    a(f"v_mul_u32_u24 v{vU12}, 12, v{vt}")
    a(f"v_lshl_add_u32 v{v2U1}, v{vt}, 1, 1")
    a(f"v_add_u32 v{v2U2}, 1, v{v2U1}")
    a(f"v_mov_b32 v{vInc}, {(1 << 20) + 4}")
    a(f"v_mov_b32 v{v3FC}, 0x3fc")
    a(f"v_mov_b32 v{vSg}, 0x80000000")
    for r in (vCb, vZ, vra, vrb, vS, vS + 1): a(f"v_mov_b32 v{r}, 0")
    a("s_mov_b32 s49, 0")
    a(f"s_mov_b32 s{ROW0}, 0x00010001")
    a(f"s_mov_b32 s{ROW0+1}, 0x00010001")
    a(f"s_mov_b32 s45, {((o.nd * WREG // 12 * 2) << 16) | 0xffff}")
    a("s_cmp_eq_u32 s3, 1")
    a("s_cselect_b32 s44, 1, 0")
    nsave = P.n
    P.stamp()
    q = 32
    for i in range(4): a(f"v_mov_b32 v{q+i}, {MARK}")
    a(f"v_lshlrev_b32 v{q+4}, 4, v0")
    a(f"v_add_u32 v{q+5}, {WB}, v{q+4}")
    a(f"v_add_u32 v{q+6}, {WB + X1}, v{q+4}")
    a(f"v_and_b32 v52, 15, v12")
    a(f"v_lshrrev_b32 v53, 4, v12")
    a(f"v_lshrrev_b32 v56, 2, v52")
    a(f"v_cmp_eq_u32 vcc, v56, v53")
    a(f"v_and_b32 v56, 3, v12")
    a(f"v_lshlrev_b32 v56, 4, v56")
    a(f"v_mov_b32 v54, 0xffff")
    a(f"v_mov_b32 v55, 0")
    a(f"v_cndmask_b32 v54, 0, v54, vcc")
    a(f"v_lshlrev_b64 v[54:55], v56, v[54:55]")
    a(f"v_and_b32 v56, 1, v53")
    a(f"v_lshlrev_b32 v56, 3, v56")
    a(f"v_lshl_add_u32 v52, v52, 4, v56")
    a(f"v_lshrrev_b32 v53, 1, v53")
    a(f"v_lshl_add_u32 v52, v53, 8, v52")
    a(f"v_lshlrev_b32 v53, 2, v0")
    a(f"v_mul_u32_u24 v56, {WSTR}, v0")
    a(f"v_add_u32 v56, {(64 - CAP) << 20}, v56")
    a(f"v_add_u32 v57, {X1}, v56")
    a("s_mov_b32 s47, 0")
    assert S <= 11
    poll(LV_E, "e")
    k = 0
    while k < S:
        w = 4 if S - k >= 4 else (2 if S - k >= 2 else 1)
        sfx = {4: "x4", 2: "x2", 1: ""}[w]
        dst = f"v[{D0+k}:{D0+k+w-1}]" if w > 1 else f"v{D0+k}"
        a(f"buffer_load_dword{sfx} {dst}, v15, s[16:19], 0 offen offset:{4*k} sc1")
        k += w
    if o.dry:
        a(f"v_mov_b32 v{n2n}, 0")
        a(f"v_mov_b32 v{a0n}, 0")
        a(f"s_mov_b64 s[{ODDN}:{ODDN+1}], 0")
        a(f"s_mov_b64 s[{MORN}:{MORN+1}], 0")
        a("s_mov_b32 s98, 1")
        a("s_branch P2_first")
        a("P2_dried:")
    poll(LV_D, "d", "P2_tryinit")
    P.stamp()
    prep()
    for i in range(16): issue(i)
    P.stamp()
    a("s_cmp_lg_u32 s47, 0")
    a("s_cbranch_scc1 P2_inited")
    lds_wait(a, vt, XW + X_X, 12, "x", 1)
    a("s_call_b64 s[34:35], P2_tryinit")
    a("P2_inited:")
    a("s_cmp_lg_u32 s44, 1")
    a("s_cbranch_scc1 P2_noarr")
    a("s_mov_b32 s44, 3")
    lds_wait(a, vS, XW + X_A, 16, "a0", 1)
    arrive(a, vS, LV_A)
    a("P2_noarr:")
    lds_wait(a, vt, XW + X_I, 4, "i", 0)
    P.stamp()
    def rela():
        uid[0] += 1
        a("s_cmp_lg_u32 s44, 3")
        a(f"s_cbranch_scc1 P2_nra{uid[0]}")
        a("s_call_b64 s[34:35], P2_rela")
        a(f"P2_nra{uid[0]}:")
    def ppass(tg, inl):
        a(f"v_mov_b32 v{n2c}, v{n2n}")
        a(f"v_mov_b32 v{a0c}, v{a0n}")
        a(f"s_mov_b64 s[{ODDC}:{ODDC+1}], s[{ODDN}:{ODDN+1}]")
        a(f"s_mov_b64 s[{MORC}:{MORC+1}], s[{MORN}:{MORN+1}]")
        if inl: prep()
        for i in range(16):
            r = R0 + 4 * i
            a(f"v_sub_co_u32_dpp v{vt}, vcc, v{n2c}, v{v2U1} row_newbcast:{i} row_mask:0xf bank_mask:0xf")
            a(f"s_and_b64 s[92:93], s[{ODDC}:{ODDC+1}], s[{ROW0}:{ROW0+1}]")
            a(f"s_nor_b64 s[{M0_}:{M0_+1}], vcc, s[92:93]")
            a(f"v_sub_co_u32_dpp v{vt2}, vcc, v{n2c}, v{v2U2} row_newbcast:{i} row_mask:0xf bank_mask:0xf")
            a(f"s_lshr_b64 s[{ODDC}:{ODDC+1}], s[{ODDC}:{ODDC+1}], 1")
            a(f"s_not_b64 s[{M1_}:{M1_+1}], vcc")
            a(f"s_waitcnt vmcnt({15 if inl else 15 - i})")
            a(f"P2_retry{tg}{i}:")
            a(f"v_lshrrev_b32 v{vca}, 18, v{r}")
            a(f"v_lshrrev_b32 v{vcb}, 18, v{r+1}")
            a(f"v_bitop3_b32 v{vca}, v{vca}, v{v3FC}, v{vCb} bitop3:0xea")
            a(f"v_bitop3_b32 v{vcb}, v{vcb}, v{v3FC}, v{vCb} bitop3:0xea")
            a(f"s_mov_b64 exec, s[{M0_}:{M0_+1}]")
            a(f"ds_add_rtn_u32 v{vra}, v{vca}, v{vInc}")
            a(f"s_mov_b64 exec, s[{M1_}:{M1_+1}]")
            a(f"ds_add_rtn_u32 v{vrb}, v{vcb}, v{vInc}")
            a(f"s_mov_b64 exec, -1")
            a(f"v_and_b32 v{vwa}, 0xf00fffff, v{r}")
            a(f"v_and_b32 v{vwb}, 0xf00fffff, v{r+1}")
            a("s_waitcnt lgkmcnt(0)")
            a(f"v_and_b32 v{vra}, 0xfc03ffff, v{vra}")
            a(f"v_and_b32 v{vrb}, 0xfc03ffff, v{vrb}")
            a(f"v_lshrrev_b32 v{vha}, 1, v{vra}")
            a(f"v_lshrrev_b32 v{vhb}, 1, v{vrb}")
            a(f"v_or_b32 v{vt}, v{vra}, v{vrb}")
            a(f"v_cmp_lt_u32 vcc, v{vInc}, v{vt}")
            a(f"s_mov_b64 exec, s[{M0_}:{M0_+1}]")
            a(f"ds_write_b32 v{vra}, v{vwa} offset:{WB}")
            a(f"ds_write_b16 v{vha}, v{r+2} offset:{CB}")
            a(f"s_mov_b64 exec, s[{M1_}:{M1_+1}]")
            a(f"ds_write_b32 v{vrb}, v{vwb} offset:{WB}")
            a(f"ds_write_b16_d16_hi v{vhb}, v{r+2} offset:{CB}")
            a(f"s_mov_b64 exec, -1")
            a(f"s_cbranch_vccnz P2_stall{tg}{i}")
            a(f"s_and_b64 s[92:93], s[{MORC}:{MORC+1}], s[{ROW0}:{ROW0+1}]")
            a(f"s_cbranch_scc1 P2_more{tg}{i}")
            a(f"s_lshr_b64 s[{MORC}:{MORC+1}], s[{MORC}:{MORC+1}], 1")
            if inl: issue(i)
            elif i == o.reli: rela()
    if o.dry:
        a("s_mov_b32 s98, 0")
        a("P2_first:")
    ppass("f", False)
    if o.dry:
        a("s_cmp_lg_u32 s98, 0")
        a("s_cbranch_scc1 P2_dried")
    P.stamp()
    a("s_mov_b32 s49, 1")
    a("s_cmp_ge_u32 s48, s49")
    a("s_cbranch_scc1 P2_ff1")
    next_round(False)
    a("P2_ff1:")
    prep()
    for i in range(16): issue(i)
    if o.sw & 2: warm("s49", "s3")
    a("P2_pslice:")
    ppass("", True)
    a("s_add_u32 s49, s49, 1")
    a(f"s_cmp_ge_u32 s49, {S}")
    a("s_cbranch_scc1 P2_pdone")
    a("s_cmp_ge_u32 s48, s49")
    a("s_cbranch_scc1 P2_pslice")
    next_round(True)
    a("s_branch P2_pslice")
    a("P2_next:")
    a("s_add_u32 s48, s48, 1")
    if o.maxr:
        a(f"s_cmp_gt_u32 s48, {o.maxr}")
        a("s_cbranch_scc1 P2_giveup")
    a(f"v_mov_b32 v{vt}, s48")
    a("s_waitcnt lgkmcnt(0)")
    a(f"ds_write_b32 v{vPW}, v{vt}")
    a(f"v_xor_b32 v{vCb}, 1024, v{vCb}")
    rela()
    def pubb2():
        a("s_cmp_lg_u32 s48, 2")
        a("s_cbranch_scc1 P2_next1")
        a("s_call_b64 s[96:97], P2_pubb")
        a("P2_next1:")
    if not o.nl: pubb2()
    a("s_setpc_b64 s[42:43]")
    a("P2_wait:")
    twait(lambda: wait_buffer("n"))
    if o.nl: pubb2()
    a("s_setpc_b64 s[42:43]")
    a("P2_tryinit:")
    a("s_cmp_lg_u32 s47, 0")
    a("s_cbranch_scc1 P2_tryinit1")
    a(f"v_mov_b32 v{vt2}, {XW + X_X}")
    a(f"ds_read_b32 v{vt2}, v{vt2}")
    a("s_waitcnt lgkmcnt(0)")
    a(f"v_readfirstlane_b32 s40, v{vt2}")
    a("s_cmp_lt_u32 s40, 12")
    a("s_cbranch_scc1 P2_tryinit1")
    a("s_mov_b32 s47, 1")
    a(f"ds_write_b64 v52, v[54:55] offset:{LUT}")
    a(f"ds_write_b32 v53, v56")
    a(f"ds_write_b32 v53, v57 offset:1024")
    assert 11 * 4096 >= WSZ + 64 and 12 * 4096 >= WB - CB
    for k in range(12):
        a(f"ds_write_b128 v{q+4}, v[{q}:{q+3}] offset:{CB + 4096 * k}")
        if k < 11:
            a(f"ds_write_b128 v{q+5}, v[{q}:{q+3}] offset:{4096 * k}")
            a(f"ds_write_b128 v{q+6}, v[{q}:{q+3}] offset:{4096 * k}")
    lds_count(a, 58, XW + X_I)
    a("P2_tryinit1:")
    a("s_setpc_b64 s[34:35]")
    a("P2_rela:")
    a("s_mov_b32 s44, 0")
    release(a, vS, LV_A, "a0")
    a("s_setpc_b64 s[34:35]")
    a("P2_pubb:")
    lds_ticket(a, vS, XW + X_C)
    a("s_cmp_lg_u32 s40, 0")
    a("s_cbranch_scc1 P2_norelb")
    lds_wait(a, vS, XW + X_B, 12, "b", 1)
    arrive(a, vS, LV_B)
    release(a, vS, LV_B, "b")
    a("s_setpc_b64 s[96:97]")
    a("P2_ensure:")
    a("s_cmp_lg_u32 s44, 1")
    a("s_cbranch_scc1 P2_norela1")
    a("s_mov_b32 s44, 0")
    lds_wait(a, vS, XW + X_A, 16, "a1", 1)
    arrive(a, vS, LV_A)
    release(a, vS, LV_A, "a1")
    poll(LV_A, "a", "P2_tryinit")
    a(f"s_mov_b32 s45, {(CHA << 16) | 0xffff}")
    a(f"v_cmp_lt_u32 vcc, s45, v{D0}")
    a("s_cbranch_vccz P2_ens1")
    unhold()
    a("s_call_b64 s[96:97], P2_pubb")
    poll(LV_B, "b", "P2_tryinit")
    a("s_mov_b32 s45, -1")
    a("P2_ens1:")
    a("s_setpc_b64 s[42:43]")
    for tg, i in [(t_, i_) for t_ in ("", "f") for i_ in range(16)]:
        r = R0 + 4 * i
        a(f"P2_stall{tg}{i}:")
        a(f"v_cmp_lt_u32 s[{M0_}:{M0_+1}], v{vInc}, v{vra}")
        a(f"v_cmp_lt_u32 s[{M1_}:{M1_+1}], v{vInc}, v{vrb}")
        next_round(False)
        a(f"s_branch P2_retry{tg}{i}")
        a(f"P2_more{tg}{i}:")
        a(f"s_lshl_b64 exec, s[{ROW0}:{ROW0+1}], {i}")
        a(f"v_max_u32 v{n2c}, 32, v{n2c}")
        a(f"v_subrev_u32 v{n2c}, 32, v{n2c}")
        a(f"v_add_u32 v{a0c}, 192, v{a0c}")
        a(f"v_cmp_lt_u32 vcc, 32, v{n2c}")
        a(f"s_mov_b64 exec, -1")
        a(f"s_lshr_b64 s[92:93], vcc, {i}")
        a(f"s_andn2_b64 s[{MORC}:{MORC+1}], s[{MORC}:{MORC+1}], s[{ROW0}:{ROW0+1}]")
        a(f"s_or_b64 s[{MORC}:{MORC+1}], s[{MORC}:{MORC+1}], s[92:93]")
        a(f"v_sub_co_u32_dpp v{vt2}, vcc, v{n2c}, v{v2U2} row_newbcast:{i} row_mask:0xf bank_mask:0xf")
        a(f"s_not_b64 s[{M1_}:{M1_+1}], vcc")
        a(f"v_sub_co_u32_dpp v{vt2}, vcc, v{n2c}, v{v2U1} row_newbcast:{i} row_mask:0xf bank_mask:0xf")
        a(f"v_add_u32_dpp v{vt}, v{a0c}, v{vU12} row_newbcast:{i} row_mask:0xf bank_mask:0xf")
        a(f"s_not_b64 s[{M0_}:{M0_+1}], vcc")
        a(f"v_cndmask_b32 v{vt}, v{vt}, v{vSg}, vcc")
        a(f"buffer_load_dwordx3 v[{r}:{r+2}], v{vt}, s[12:15], 0 offen sc1")
        a("s_waitcnt vmcnt(0)")
        a(f"s_branch P2_retry{tg}{i}")
    a("P2_giveup:")
    lds_count(a, vt, XW + X_I)
    unhold()
    a("P2_pdone:")
    a("s_add_u32 s48, s48, 0x40000001")
    a(f"v_mov_b32 v{vt}, s48")
    a("s_waitcnt lgkmcnt(0)")
    a(f"ds_write_b32 v{vPW}, v{vt}")
    a(f"s_setprio {o.eprio}")
    a("s_load_dwordx2 s[6:7], s[0:1], 24")
    a("s_load_dwordx2 s[34:35], s[0:1], 40")
    a("s_load_dwordx8 s[36:43], s[0:1], 56")
    DS = 30; CEN = 56; RB0 = 64; t = 60; X = 1
    a("v_and_b32 v13, 15, v12")
    a("v_lshrrev_b32 v14, 4, v12")
    a(f"v_lshlrev_b32 v{X}, 7, v14")
    a(f"v_lshl_add_u32 v{X}, v13, 1, v{X}")
    a(f"v_and_b32 v{X+1}, 0xff, v{X}")
    a(f"v_and_b32 v{X+2}, 1, v14")
    a(f"v_lshlrev_b32 v{X+2}, 3, v{X+2}")
    a(f"v_lshrrev_b32 v{X+3}, 1, v14")
    a(f"v_lshlrev_b32 v{X+3}, 13, v{X+3}")
    a(f"v_lshl_add_u32 v{X+3}, v13, 1, v{X+3}")
    a("s_lshl_b32 s47, s46, 5")
    a(f"v_add_u32 v{X+3}, s47, v{X+3}")
    a(f"v_cmp_gt_u32 s[88:89], 32, v12")
    a("s_waitcnt vmcnt(0) lgkmcnt(0)")
    srd(a, 20, 6, E * 2)
    srd(a, 28, 42, 512)
    srd(a, 12, 38, 256)
    srd(a, 16, 36, 256)
    srd(a, 52, 34, 16)
    srd(a, 84, 40, 512)
    for c in range(4): a(f"buffer_load_ushort v{CEN+c}, v{X+2}, s[52:55], 0 offen offset:{2*c}")
    a("s_mul_i32 s47, s3, 25")
    for k in range(25):
        a("s_mul_i32 s50, s47, 57")
        a("s_lshr_b32 s50, s50, 9")
        a("s_min_u32 s50, s50, 4")
        a("s_lshl_b32 s51, s47, 1")
        a("s_sub_u32 s50, s51, s50")
        a("s_lshl_b32 s50, s50, 13")
        a(f"v_add_u32 v{DS+k}, s50, v{X+3}")
        a("s_add_u32 s47, s47, 1")
        a(f"buffer_load_ushort v{DS+k}, v{DS+k}, s[20:23], 0 offen")
    assert all((n * 57) >> 9 == n // 9 for n in range(45))
    Y = 116
    for c in range(4): a(f"buffer_load_ushort v{Y+c}, v{X}, s[28:31], 0 offen offset:{32*c}")
    for c in range(4): a(f"buffer_load_ushort v{Y+4+c}, v{X+1}, s[12:15], 0 offen offset:{32*c}")
    for c in range(4): a(f"buffer_load_ushort v{Y+8+c}, v{X+1}, s[16:19], 0 offen offset:{32*c}")
    for c in range(4): a(f"buffer_load_ushort v{16+c}, v{X}, s[84:87], 0 offen offset:{32*c}")
    a("s_waitcnt vmcnt(40)")
    for c in range(4): a(f"v_lshlrev_b32 v{CEN+c}, 16, v{CEN+c}")
    def rnd():
        if o.nornd: return
        for u in range(2):
            a(f"v_cvt_pk_bf16_f32 v{t+2*u+1}, v{t+2*u}, v{t+2*u+1}")
        for u in range(2):
            a(f"v_lshlrev_b32 v{t+2*u}, 16, v{t+2*u+1}")
            a(f"v_and_b32 v{t+2*u+1}, 0xffff0000, v{t+2*u+1}")
    for k in range(25):
        d = DS + k
        a(f"s_waitcnt vmcnt({40 - k})")
        a(f"v_lshlrev_b32 v{d}, 16, v{d}")
        for c in range(4): a(f"v_sub_f32 v{t+c}, v{d}, v{CEN+c}")
        rnd()
        for c in range(4): a(f"v_mul_f32 v{t+c}, v{t+c}, v{t+c}")
        rnd()
        for c in range(4): a(f"v_mul_f32 v{t+c}, 0xc1200000, v{t+c}")
        rnd()
        for c in range(4): a(f"v_mul_f32 v{t+c}, 0x3fb8aa3b, v{t+c}")
        for c in range(4): a(f"v_exp_f32 v{t+c}, v{t+c}")
        for u in range(2): a(f"v_cvt_pk_bf16_f32 v{RB0+2*k+u}, v{t+2*u}, v{t+2*u+1}")
    a("s_waitcnt vmcnt(0)")
    Z = 30
    for u in range(2):
        a(f"v_lshl_or_b32 v{Z+8+u}, v{Y+2*u+1}, 16, v{Y+2*u}")
        a(f"v_lshl_or_b32 v{Z+10+u}, v{17+2*u}, 16, v{16+2*u}")
        a(f"v_lshl_or_b32 v{Y+4+u}, v{Y+5+2*u}, 16, v{Y+4+2*u}")
        a(f"v_lshl_or_b32 v{Y+8+u}, v{Y+9+2*u}, 16, v{Y+8+2*u}")
    for u in range(2):
        a(f"v_cndmask_b32 v{Z+u}, 0, v{Y+4+u}, s[88:89]")
        a(f"v_cndmask_b32 v{Z+2+u}, v{Y+4+u}, 0, s[88:89]")
        a(f"v_cndmask_b32 v{Z+4+u}, 0, v{Y+8+u}, s[88:89]")
        a(f"v_cndmask_b32 v{Z+6+u}, v{Y+8+u}, 0, s[88:89]")
    a(f"v_lshlrev_b32 v{X}, 3, v12")
    a(f"v_add_u32 v{X+1}, {WT}, v{X}")
    a(f"v_and_b32 v{X+2}, 3, v12")
    a(f"v_lshlrev_b32 v{X+2}, 2, v{X+2}")
    a(f"v_add_u32 v{X+2}, {XW + X_PW}, v{X+2}")
    a("P2_dw:")
    a(f"ds_read_b32 v{vt}, v{X+2}")
    a("s_waitcnt lgkmcnt(0)")
    a(f"v_cmp_gt_u32 vcc, 2.0, v{vt}")
    a("s_cbranch_vccz P2_dg")
    a(f"s_sleep {o.psleep}")
    guard(a)
    a("s_branch P2_dw")
    a("P2_dg:")
    a(f"v_readlane_b32 s48, v{vt}, 0")
    for k in range(1, 4):
        a(f"v_readlane_b32 s50, v{vt}, {k}")
        a("s_max_u32 s48, s48, s50")
    a("s_and_b32 s48, s48, 0x3fffffff")
    wait_buffer("e")
    a("s_bitcmp1_b32 s48, 0")
    a(f"s_cselect_b32 s50, {RB_AT[1] - RB_AT[0]}, 0")
    a(f"s_add_u32 s50, s50, {RB_AT[0]}")
    a(f"s_mul_i32 s51, s3, {25*512}")
    a("s_add_u32 s50, s50, s51")
    a(f"v_add_u32 v{X}, s50, v{X}")
    for k in range(6): a(f"ds_write_b64 v{X+1}, v[{Z+2*k}:{Z+2*k+1}] offset:{512*k}")
    for k in range(25): a(f"ds_write_b64 v{X}, v[{RB0+2*k}:{RB0+2*k+1}] offset:{512*k}")
    lds_count(a, vt, XW + X_R)
    a("s_waitcnt lgkmcnt(0)")
    if o.prof == 1:
        P.stamp(); P.dump(32, 0x80000, 8, 3); P.n = nsave
    a("s_endpgm")
    a("P2_consumer:")
    ACC = 60; G0 = 52; B0 = 44; A2 = 28; vTw = 32; vTr = 33; vM = 24; vC = 20; vX = 16
    bA = 1; bE = 2; bC = 3; bR = 4; vH = 5; vL = 6; vCA = 7; vCI = 8; vA = 9; vE = 10
    a("s_sub_u32 s47, s3, 4")
    a("s_min_u32 s44, s47, 4")
    a("s_lshl_b32 s49, s47, 4")
    a("s_add_u32 s49, s49, s44")
    a("s_cmp_lt_u32 s47, 4")
    a("s_cselect_b32 s50, 17, 16")
    a(f"s_cselect_b32 s84, 0, {MARK}")
    a(f"s_cselect_b32 s85, {17*WSTR//16-192}, {16*WSTR//16-192}")
    a("s_bfm_b64 s[92:93], s85, 0")
    a(f"v_subrev_u32 v60, 256, v0")
    a(f"v_lshlrev_b32 v60, 4, v60")
    for k in range(1, 4): a(f"v_add_u32 v{60+k}, {4*12288*k}, v60")
    lds_wait(a, vX, XW + X_S, 16, "s", 1)
    P.stamp()
    NL = o.nl; vSt = 34
    for j in range(13):
        k = 12 - j
        a(f"ds_read_b128 v[{68+4*j}:{71+4*j}], v{60+k//4} offset:{STG+12288*(k%4)}")
    a(f"v_mov_b32 v{vSt}, v63")
    lds_count(a, vX, XW + X_X)
    a("s_waitcnt vmcnt(0)")
    lds_count(a, vX, XW + X_A)
    def store_b(j):
        a(f"buffer_store_dwordx4 v[{68+4*j}:{71+4*j}], v{vSt}, s[20:23], 0 offen {o.p1_st}")
        a(f"v_subrev_u32 v{vSt}, 12288, v{vSt}")
    if o.spr: a(f"s_setprio {o.spr}")
    for j in range(13 - NL): store_b(j)
    if o.spr: a("s_setprio 0")
    a("v_and_b32 v13, 15, v12")
    a("v_lshrrev_b32 v14, 4, v12")
    a(f"v_and_b32 v0, 3, v12")
    a(f"v_lshlrev_b32 v0, 2, v0")
    a(f"v_add_u32 v0, {XW + X_CW}, v0")
    a(f"s_mul_i32 s51, s49, {WSTR}")
    a(f"s_lshr_b32 s86, s51, 1")
    a(f"s_add_u32 s86, s86, {CB}")
    a(f"v_lshl_add_u32 v{bC}, v14, 4, s86")
    a(f"v_mul_u32_u24 v{vCI}, {WSTR}, v12")
    a(f"s_add_u32 s86, s51, {(64 - CAP) << 20}")
    a(f"v_add_u32 v{vCI}, s86, v{vCI}")
    a(f"s_add_u32 s51, s51, {WB}")
    a(f"v_lshl_add_u32 v{bR}, v12, 4, s51")
    a(f"v_and_b32 v{bA}, 24, v12")
    a(f"v_bfe_u32 v{vA}, v12, 1, 2")
    a(f"v_or_b32 v{bA}, v{bA}, v{vA}")
    a(f"v_lshrrev_b32 v{vA}, 5, v12")
    a(f"v_lshl_or_b32 v{bA}, v{vA}, 2, v{bA}")
    a(f"v_lshl_add_u32 v{bA}, v{bA}, 2, s51")
    a(f"v_and_b32 v{vH}, 1, v12")
    a(f"v_lshlrev_b32 v{vH}, 4, v{vH}")
    a("s_lshl_b32 s87, s47, 10")
    a(f"s_add_u32 s87, s87, {SC}")
    a(f"v_lshl_add_u32 v{vTw}, v12, 4, s87")
    a(f"v_lshl_add_u32 v{vTr}, v12, 3, s87")
    a(f"v_and_b32 v{vA}, 12, v12")
    a(f"v_lshl_add_u32 v{bE}, v14, 5, v{vA}")
    a(f"v_add_u32 v{bE}, s51, v{bE}")
    a(f"v_and_b32 v{vL}, 1, v12")
    a(f"v_lshlrev_b32 v{vL}, 3, v{vL}")
    a(f"v_and_b32 v{vA}, 2, v12")
    a(f"v_lshl_add_u32 v{vL}, v{vA}, 7, v{vL}")
    a(f"v_add_lshl_u32 v{vCA}, v12, s49, 2")
    a(f"v_cmp_gt_u32 vcc, s50, v12")
    a(f"s_mov_b32 s85, {(64 - CAP + 33) << 20}")
    a("s_mov_b32 s94, 0xff000000")
    a("s_mov_b32 s95, 0xff000000")
    a(f"v_cndmask_b32 v{vCA}, 2.0, v{vCA}, vcc")
    a(f"s_lshl_b32 s51, s49, 8")
    a(f"s_add_u32 s51, s51, s46")
    a(f"s_lshl_b32 s51, s51, 4")
    a(f"v_add_lshl_u32 v15, v13, s51, 5")
    a(f"v_lshl_add_u32 v15, v14, 3, v15")
    a(f"v_lshlrev_b32 v13, 3, v12")
    for i in range(16): a(f"v_mov_b32 v{B0+i}, 0")
    for i in range(68):
        if not 15 - NL <= i // 4 <= 14: a(f"v_mov_b32 v{ACC+i}, 0")
    srd(a, 28, 6, E * 32)
    def lazy(t):
        j = 13 - NL + t
        store_b(j)
        for u in range(4): a(f"v_mov_b32 v{68+4*j+u}, 0")
    lstep = [min(t * o.lstep, 14 - NL + t) for t in range(NL)]
    if NL:
        a("s_mov_b32 s42, 1")
        P.stamp()
        a(f"v_mov_b32 v{vX+2}, {XW + X_H}")
        a("P2_pre:")
        a(f"ds_read_b32 v{vX}, v0 offset:{X_PW - X_CW}")
        a(f"ds_read_b32 v{vX+1}, v{vX+2}")
        a("s_waitcnt lgkmcnt(0)")
        a(f"v_cmp_eq_u32 vcc, 0, v{vX}")
        a("s_cbranch_vccz P2_round0")
        a(f"v_cmp_eq_u32 vcc, 0, v{vX+1}")
        a("s_cbranch_vccz P2_flush")
        a(f"s_sleep {o.csleep}")
        guard(a)
        a("s_branch P2_pre")
        a("P2_flush:")
        for t in range(NL): lazy(t)
        a("s_mov_b32 s42, 0")
    a("s_waitcnt vmcnt(0)")
    lds_count(a, vX, XW + X_B)
    if not NL: P.stamp()
    def reads1(par, i, second):
        oa = par * X1 + i * WSTR + (128 if second else 0)
        a(f"ds_read_b32 v{vA}, v{bA} offset:{oa}")
        a(f"ds_read_u8 v{vE}, v{bE} offset:{oa+3}")
        a(f"ds_read_u8 v{vE+1}, v{bE} offset:{oa+19}")
    def reads2(par, i, second):
        oc = (par * X1 + i * WSTR + (128 if second else 0)) // 2
        a(f"v_add_u32 v{vE}, v{vE}, v{vL}")
        a(f"v_add_u32 v{vE+1}, v{vE+1}, v{vL}")
        a(f"ds_read_b64_tr_b16 v[{vM}:{vM+1}], v{vE} offset:{LUT}")
        a(f"ds_read_b64_tr_b16 v[{vM+2}:{vM+3}], v{vE+1} offset:{LUT}")
        a(f"ds_read_b128 v[{vC}:{vC+3}], v{bC} offset:{oc}")
    def addr():
        a(f"v_mad_u32_u24 v{vA}, v{vA}, 32, v{vH}")
    def transpose(g):
        a(f"ds_write_b128 v{vTw}, v[{g}:{g+3}]")
        a(f"ds_read_b64_tr_b16 v[{A2}:{A2+1}], v{vTr}")
        a(f"ds_read_b64_tr_b16 v[{A2+2}:{A2+3}], v{vTr} offset:512")
    def mfma2(i, b):
        c = ACC + 4 * i
        a(f"v_mfma_f32_16x16x32_bf16 v[{c}:{c+3}], v[{A2}:{A2+3}], v[{b}:{b+3}], v[{c}:{c+3}]")
    NS = 17
    for par in range(2):
        a(f"P2_round{par}:")
        def spin():
            a(f"P2_cw{par}:")
            a(f"ds_read_b32 v{vX+1}, v0 offset:{X_PW - X_CW}")
            reads1(par, 0, False)
            a(f"ds_read_b32 v{vX}, v{vCA} offset:{1024*par}")
            a("s_waitcnt lgkmcnt(4)")
            a(f"v_cmp_ge_u32 vcc, s48, v{vX+1}")
            a(f"v_and_b32 v{vX+1}, 0x3fffffff, v{vX+1}")
            a(f"s_cbranch_vccz P2_cg{par}")
            a(f"s_sleep {o.csleep}")
            guard(a)
            a(f"s_branch P2_cw{par}")
            a(f"P2_cg{par}:")
        twait(spin)
        if o.prof == 1:
            a("s_memrealtime s[58:59]")
            a("s_waitcnt lgkmcnt(0)")
            a("s_mov_b32 m0, s48")
            a("v_writelane_b32 v14, s58, m0")
            a("s_add_u32 m0, s48, 16")
            a("v_writelane_b32 v14, s56, m0")
        a(f"v_cmp_lt_u32 vcc, s48, v{vX+1}")
        a(f"s_cbranch_vccz P2_drain{1-par}")
        if o.prof == 1 and par == 0:
            a("s_cmp_lg_u32 s48, 0"); a("s_cbranch_scc1 P2_nostamp"); P.stamp(); a("P2_nostamp:")
        if par: a(f"v_add_u32 v{vX+2}, {X1}, v{vCI}")
        a(f"ds_write_b32 v{vCA}, v{vX+2 if par else vCI} offset:{1024*par}")
        a("s_add_u32 s48, s48, 1")
        for i in range(NS):
            p = (par * NS + i) % 2
            g = G0 + 4 * p; b = B0 + 4 * p
            a("s_waitcnt lgkmcnt(0)")
            if i == NS - 1: a(f"v_or_b32 v{vA}, s84, v{vA}")
            addr()
            a("s_waitcnt vmcnt(1)")
            transpose(g)
            a(f"buffer_load_dwordx4 v[{g}:{g+3}], v{vA}, s[8:11], 0 offen")
            reads2(par, i, False)
            if i + 1 < NS: reads1(par, i + 1, False)
            if i == 0: a(f"v_cmp_le_u32 s[90:91], s85, v{vX}")
            a(f"s_waitcnt lgkmcnt({6 if i + 1 < NS else 3})")
            mfma2((i - 2) % NS, b)
            a(f"s_bitcmp1_b32 s90, {i}")
            a(f"s_waitcnt lgkmcnt({3 if i + 1 < NS else 0})")
            for u in range(4): a(f"v_and_b32 v{b+u}, v{vM+u}, v{vC+u}")
            a(f"s_cbranch_scc1 P2_slow{par}_{i}")
            a(f"P2_back{par}_{i}:")
            if par == 0 and i in lstep:
                a("s_cmp_lg_u32 s42, 0")
                a(f"s_cbranch_scc1 P2_lazy{i}")
                a(f"P2_lazyb{i}:")
        if par == 0 and NL:
            a("s_cmp_eq_u32 s42, 0")
            a("s_cbranch_scc1 P2_nolz")
            a("s_mov_b32 s42, 0")
            a("s_waitcnt vmcnt(0)")
            lds_count(a, vX, XW + X_B)
            a("P2_nolz:")
        for u in range(4): a(f"v_mov_b32 v{vX+u}, {MARK}")
        for k in range(4):
            if k == 3: a("s_mov_b64 exec, s[92:93]")
            a(f"ds_write_b128 v{bR}, v[{vX}:{vX+3}] offset:{par*X1+1024*k}")
        a("s_mov_b64 exec, 1")
        a(f"v_mov_b32 v{vA}, 1")
        a("s_waitcnt lgkmcnt(0)")
        a(f"ds_add_rtn_u32 v{vA}, v0, v{vA} offset:{4*par}")
        a("s_sub_u32 s40, s48, 1")
        a("s_lshr_b32 s40, s40, 1")
        a("s_mul_i32 s40, s40, 12")
        a("s_waitcnt lgkmcnt(0)")
        a(f"v_readfirstlane_b32 s41, v{vA}")
        a("s_mov_b64 exec, -1")
        a("s_sub_u32 s41, s41, s40")
        a("s_setprio 0")
        a("s_cmp_lt_u32 s41, 4")
        a(f"s_cbranch_scc1 P2_round{1-par}")
        a("s_setprio 1")
        a("s_cmp_lt_u32 s41, 8")
        a(f"s_cbranch_scc1 P2_round{1-par}")
        a("s_setprio 2")
        if par: a("s_branch P2_round0")
    for i in sorted(set(lstep)):
        a(f"P2_lazy{i}:")
        for t in range(NL):
            if lstep[t] == i: lazy(t)
        a(f"s_branch P2_lazyb{i}")
    for par in range(2):
        for i in range(NS):
            a(f"P2_slow{par}_{i}:")
            reads1(par, i, True)
            a("s_waitcnt lgkmcnt(0)")
            a("s_mov_b64 exec, s[94:95]")
            a(f"v_mov_b32 v{vA}, {MARK}")
            a("s_mov_b64 exec, -1")
            addr()
            a(f"buffer_load_dwordx4 v[{vX}:{vX+3}], v{vA}, s[8:11], 0 offen")
            reads2(par, i, True)
            if i + 1 < NS: reads1(par, i + 1, False)
            a(f"s_waitcnt lgkmcnt({3 if i + 1 < NS else 0})")
            for u in range(4): a(f"v_and_b32 v{vM+u}, v{vM+u}, v{vC+u}")
            a("s_waitcnt vmcnt(0)")
            transpose(vX)
            a("s_waitcnt lgkmcnt(0)")
            mfma2(i, vM)
            a(f"s_branch P2_back{par}_{i}")
    vLo = 14; vSo = 15; vRb = 12; vWt = 13
    mreg = [0, 2, 4, 6, 8, 10, 16, 18, 20, 22, 24, 26, ACC, ACC + 2, ACC + 4, ACC + 6, ACC + 8]
    NPRE = 12
    def mload(i):
        a(f"buffer_load_dwordx2 v[{mreg[i]}:{mreg[i]+1}], v{vLo}, s[8:11], 0 offen")
        a(f"v_add_u32 v{vLo}, {4096*32}, v{vLo}")
    for par in (1, 0):
        a(f"P2_drain{par}:")
        a("s_waitcnt lgkmcnt(0)")
        if par == 1: P.stamp()
        elif o.prof == 1: P.n -= 1; P.stamp()
        if o.prof == 1:
            srd(a, 52, 32, 0x100000, WS_PROF)
            a("s_lshl_b32 s56, s2, 4")
            a("s_add_u32 s56, s56, s3")
            a("s_lshl_b32 s56, s56, 7")
            a("v_lshrrev_b32 v12, 1, v13")
            a("v_add_u32 v12, s56, v12")
            a("s_bfm_b64 exec, 32, 0")
            a("buffer_store_dword v14, v12, s[52:55], 0 offen")
            a("s_mov_b64 exec, -1")
        a(f"v_mov_b32 v{vLo}, v{vSo}")
        for i in range(NPRE): mload(i)
        a(f"s_mov_b32 s51, {RB_AT[1 - par]}")
        for i in (NS, NS + 1):
            p = (par * NS + i) % 2
            a(f"s_waitcnt vmcnt({NS + 1 - i + NPRE})")
            transpose(G0 + 4 * p)
            a("s_waitcnt lgkmcnt(0)")
            mfma2(i - 2, B0 + 4 * p)
        if par == 1: a("s_branch P2_epi")
    a("P2_epi:")
    WS_ = 32; WR_ = 36; WU = 40; WD = 42; RB = 44; SS = 48; GG = 52; UU = 56; ZZ = 28
    a("s_lshl_b32 s47, s47, 3")
    a("s_add_u32 s47, s47, s44")
    a("s_lshl_b32 s47, s47, 9")
    a("s_add_u32 s51, s51, s47")
    a(f"v_add_u32 v{vRb}, s51, v{vWt}")
    a(f"v_add_u32 v{vWt}, {WT}, v{vWt}")
    lds_wait(a, UU, XW + X_R, 4, "r", 1)
    for k in range(6): a(f"ds_read_b64 v[{WS_+2*k}:{WS_+2*k+1}], v{vWt} offset:{512*k}")
    def rbread(k): a(f"ds_read_b64 v[{RB+2*(k%2)}:{RB+2*(k%2)+1}], v{vRb} offset:{512*k}")
    rbread(0); rbread(1)
    vm = [("m", i) for i in range(NPRE)]
    def mf(d, w, i):
        h = 2 * (i % 2); r = RB + 2 * ((i // 2) % 2)
        a(f"v_mfma_f32_16x16x16_bf16 v[{d}:{d+3}], v[{w+h}:{w+h+1}], v[{r}:{r+1}], 0")
    def pack(i):
        c0 = ACC + 4 * i
        for u in range(2): a(f"v_cvt_pk_bf16_f32 v{c0+u}, v{c0+2*u}, v{c0+2*u+1}")
    def stage_a(i):
        c0 = ACC + 4 * i
        a(f"v_mfma_f32_16x16x16_bf16 v[{ZZ}:{ZZ+3}], v[{WD}:{WD+1}], v[{c0}:{c0+1}], 0")
        mf(SS, WS_, i)
    def stage_b(i):
        c0 = ACC + 4 * i
        if o.pk:
            for c in (0, 2): a(f"v_pk_mul_f32 v[{c0+c}:{c0+c+1}], v[{SS+c}:{SS+c+1}], v[{ZZ+c}:{ZZ+c+1}]")
        else:
            for c in range(4): a(f"v_mul_f32 v{c0+c}, v{SS+c}, v{ZZ+c}")
        pack(i)
        if i + 1 < NS: pack(i + 1)
        mf(GG, WR_, i)
        if i % 2 == 1 and i // 2 + 2 <= 8: rbread(i // 2 + 2)
        a(f"v_mfma_f32_16x16x16_bf16 v[{UU}:{UU+3}], v[{WU}:{WU+1}], v[{c0}:{c0+1}], 0")
        if i + 1 < NS:
            if i % 2 == 1: a(f"s_waitcnt lgkmcnt({1 if i // 2 + 2 <= 8 else 0})")
            stage_a(i + 1)
    def stage_c(i):
        c0 = ACC + 4 * i; m = mreg[i]
        a(f"s_waitcnt vmcnt({len(vm) - 1 - vm.index(('m', i))})")
        a(f"v_lshlrev_b32 v{c0}, 16, v{m}")
        a(f"v_and_b32 v{c0+1}, 0xffff0000, v{m}")
        a(f"v_lshlrev_b32 v{c0+2}, 16, v{m+1}")
        a(f"v_and_b32 v{c0+3}, 0xffff0000, v{m+1}")
        if o.pk:
            for c in (0, 2): a(f"v_pk_fma_f32 v[{c0+c}:{c0+c+1}], v[{UU+c}:{UU+c+1}], v[{GG+c}:{GG+c+1}], v[{c0+c}:{c0+c+1}]")
        else:
            for c in range(4): a(f"v_fma_f32 v{c0+c}, v{UU+c}, v{GG+c}, v{c0+c}")
        for u in range(2): a(f"v_cvt_pk_bf16_f32 v{m+u}, v{c0+2*u}, v{c0+2*u+1}")
        a(f"buffer_store_dwordx2 v[{m}:{m+1}], v{vSo}, s[28:31], 0 offen {o.ost}")
        a(f"v_add_u32 v{vSo}, {4096*32}, v{vSo}")
        vm.append(("s", i))
        for k in (NPRE + 2 * i, NPRE + 2 * i + 1):
            if k < NS: mload(k); vm.append(("m", k))
    pack(0)
    a("s_waitcnt lgkmcnt(0)")
    stage_a(0)
    stage_b(0)
    for i in range(NS):
        if i == NS - 1:
            a("s_cmp_lt_u32 s50, 17")
            a("s_cbranch_scc1 P2_fin")
        stage_c(i)
        if i + 1 < NS: stage_b(i + 1)
    a("P2_fin:")
    if o.prof:
        P.stamp()
        a("s_waitcnt vmcnt(0)")
        P.stamp(True)
        P.dump(32, 0x80000, 34, 3)
    a("P2_end:")
    a("s_endpgm")

KD = """.amdhsa_kernel {name}
  .amdhsa_next_free_vgpr 128
  .amdhsa_next_free_sgpr 100
  .amdhsa_accum_offset 128
  .amdhsa_group_segment_fixed_size 0
  .amdhsa_kernarg_size 112
  .amdhsa_user_sgpr_count 2
  .amdhsa_user_sgpr_kernarg_segment_ptr 1
  .amdhsa_system_sgpr_workgroup_id_x 1
  .amdhsa_float_denorm_mode_32 3
.end_amdhsa_kernel
"""

NAME = "gather_scatter__molecular_angular_gemnet__graph_kernel"

def build(o):
    GUARD[0] = 1000000 if o.maxr else 0
    a = Asm(); P = Prof(a, o.prof, 1)
    xw, stg = gen_p1(o, a, P); gen_p2(o, a, P, xw, stg)
    ref = open("gather_scatter__molecular_angular_gemnet__graph.s.ref").read().split("\n")
    head = [l for l in ref if l.startswith(";") and "launch geometry" not in l and "Harness parses" not in l and "@launch" not in l]
    s = "\n".join(head) + "\n"
    s += "; Part 1 partitions the triplets by (input slice, output bin); part 2 gathers / segment-sums with MFMA.\n"
    s += f"; @launch grid=(256,1,1) block=(1024,1,1) lds={xw + 64}\n"
    s += '.amdgcn_target "amdgcn-amd-amdhsa--gfx950"\n.text\n'
    s += f".globl {NAME}\n.p2align 8\n.type {NAME},@function\n{NAME}:\n" + a.finish()
    s += '.section .rodata,"a"\n.p2align 6\n' + KD.format(name=NAME)
    return s

def parser():
    p = argparse.ArgumentParser()
    p.add_argument("-S", type=int, default=10)
    for k, d in dict(prof=0, maxr=0, dstep=4, asplit=12, sw=1, psleep=2, csleep=2, gsleep=24, maxpoll=1000000, eprio=0, nd=4, nornd=0, pp=1, nb=6, pk=1, sw0=0, pf0=2, pfw=4, pfn=3, ldp=1, spr=2, f0=0, dry=0, cpf=14, nl=3, lstep=4, reli=5, fuse=1, cmap=2, rot=0).items():
        p.add_argument("--" + k, type=int, default=d)
    p.add_argument("--p1_ld", default="nt")
    p.add_argument("--p1_st", default="sc1")
    p.add_argument("--ost", default="sc1")
    p.add_argument("-o", default="gather_scatter__molecular_angular_gemnet__graph.s")
    return p

if __name__ == "__main__":
    o = parser().parse_args()
    open(o.o, "w").write(build(o))
```

```python
import sys, argparse
from asmlib import Asm

E = 800000; T = 12800000
NT = 256
CHA = 25088
TILE_N = 50000
TILE_BYTES = 300032
WS_DESC = 0x5000000
WS_PROF = 0x6000000
CAP = 56
WSTR = CAP * 4
MARK = 0x00100000
NG = 196
CL = E // 8
WREG = 9472

GUARD = [0]
def guard(a):
    if GUARD[0]:
        a("s_add_u32 s99, s99, 1")
        a(f"s_cmp_gt_u32 s99, {GUARD[0]}")
        a("s_cbranch_scc1 P2_end")

def slicing(o):
    B = (o.f0 << 26) // 100
    K = ((o.S << 26) - B) // E
    return K, B

def srd(a, d, base, size, off=None):
    if off is None:
        a(f"s_mov_b32 s{d}, s{base}")
        a(f"s_mov_b32 s{d+1}, s{base+1}")
    else:
        a(f"s_add_u32 s{d}, s{base}, {off}")
        a(f"s_addc_u32 s{d+1}, s{base+1}, 0")
    a(f"s_mov_b32 s{d+2}, {size}")
    a(f"s_mov_b32 s{d+3}, 0x20000")

class Prof:
    def __init__(self, a, on, fuse=0): self.a = a; self.on = on; self.n = 0; self.fuse = fuse
    def stamp(self, key=False):
        if not self.on or (self.on == 2 and not key): return
        a = self.a
        a("s_waitcnt lgkmcnt(0)")
        a("s_memtime s[58:59]")
        a("s_waitcnt lgkmcnt(0)")
        a(f"s_mov_b32 s{60+self.n}, s58")
        a("s_memrealtime s[58:59]")
        a("s_waitcnt lgkmcnt(0)")
        a(f"s_mov_b32 s{72+self.n}, s58")
        self.n += 1
    def dump(self, wsreg, region, vt, wave_sreg):
        if not self.on: return
        a = self.a
        srd(a, 52, wsreg, 0x100000, WS_PROF + region)
        a(f"s_lshl_b32 s56, s2, 4")
        a(f"s_add_u32 s56, s56, s{wave_sreg}")
        a(f"s_lshl_b32 s56, s56, 7")
        a("s_mov_b64 exec, 1")
        for i in range(self.n):
            a(f"v_mov_b32 v{vt}, s56")
            a(f"v_mov_b32 v{vt+1}, s{60+i}")
            a(f"buffer_store_dword v{vt+1}, v{vt}, s[52:55], 0 offen offset:{4*i}")
            a(f"v_mov_b32 v{vt+1}, s{72+i}")
            a(f"buffer_store_dword v{vt+1}, v{vt}, s[52:55], 0 offen offset:{64+4*i}")
        a(f"v_mov_b32 v{vt+1}, s71")
        a(f"buffer_store_dword v{vt+1}, v{vt}, s[52:55], 0 offen offset:124")
        a("s_waitcnt vmcnt(0)")
        a("s_mov_b64 exec, -1")

def gen_p1(o, a, P):
    S = o.S
    NK = S * 256
    KSL, BSL = slicing(o)
    CN = 16; SCR = CN + NK * 4; STG = SCR + 64; XW = STG + CHA * 6
    W0 = 4; KP0 = 53; C0 = 78; TO = 103; T0 = 104
    ld = o.p1_ld; st = o.p1_st
    def issue_idx(r):
        b = C0 + 4 * (r % 6); w = W0 + 4 * r
        a(f"buffer_load_dwordx4 v[{b}:{b+3}], v1, s[12:15], s36 offen {ld}")
        a(f"buffer_load_dwordx4 v[{w}:{w+3}], v1, s[8:11], s36 offen {ld}")
        a(f"s_add_u32 s36, s36, 16384")
    def issue_ang(r):
        b = C0 + 2 * r
        a(f"buffer_load_dwordx2 v[{b}:{b+1}], v2, s[16:19], s37 offen {ld}")
        a(f"s_add_u32 s37, s37, 8192")
    DP = o.ldp
    a("s_load_dwordx2 s[8:9], s[0:1], 8")
    a("s_load_dwordx2 s[12:13], s[0:1], 16")
    a("s_cmp_ge_u32 s2, 256")
    a("s_cbranch_scc1 P2_end")
    if o.cpf:
        a("s_getpc_b64 s[40:41]")
        a("P1_pc:")
        a("s_lshr_b32 s45, s2, 3")
        a(f"s_mulk_i32 s45, {o.cpf}")
        a(f"s_mov_b32 s42, P2_end-P1_pc")
        a("s_mov_b32 s43, 0x20000")
        a(f"v_add_lshl_u32 v{T0+23}, v0, s45, 7")
        a(f"v_cmp_gt_u32 vcc, {o.cpf}, v0")
        a("s_and_b64 exec, exec, vcc")
        a("s_cbranch_execz P1_nopf")
        a(f"buffer_load_dword v{T0+23}, v{T0+23}, s[40:43], 0 offen")
        a("P1_nopf:")
        a("s_mov_b64 exec, -1")
    a(f"s_mov_b32 s10, {T * 4}")
    a("s_mov_b32 s11, 0x20000")
    a("s_mov_b64 s[14:15], s[10:11]")
    a(f"s_mul_i32 s36, s2, {12 * 16384}")
    a("v_lshlrev_b32 v1, 4, v0")
    a("s_waitcnt lgkmcnt(0)")
    P.stamp(True)
    for r in range(DP): issue_idx(r)
    if GUARD[0]: a("s_mov_b32 s99, 0")
    a("s_load_dwordx2 s[16:17], s[0:1], 32")
    a("s_load_dwordx2 s[30:31], s[0:1], 48")
    a("s_load_dwordx2 s[32:33], s[0:1], 104")
    a("s_load_dwordx2 s[94:95], s[0:1], 96")
    a("s_load_dwordx2 s[48:49], s[0:1], 0")
    a("s_load_dwordx2 s[86:87], s[0:1], 88")
    a("v_lshlrev_b32 v2, 3, v0")
    a("v_mov_b32 v3, 1")
    for i in range(4): a(f"v_mov_b32 v{T0+i}, 0")
    a(f"ds_write_b128 v1, v[{T0}:{T0+3}]")
    a(f"v_lshrrev_b32 v{T0+4}, 6, v0")
    a(f"v_readfirstlane_b32 s3, v{T0+4}")
    a(f"s_mul_i32 s34, s2, 848")
    a(f"s_add_u32 s34, s34, {3072*4096}")
    a(f"v_add_u32 v109, s34, v0")
    a(f"v_cmp_gt_u32 vcc, 848, v0")
    a(f"v_lshlrev_b32 v110, 2, v109")
    a(f"v_lshlrev_b32 v109, 1, v109")
    a(f"v_cndmask_b32 v110, 2.0, v110, vcc")
    a(f"v_cndmask_b32 v109, 2.0, v109, vcc")
    a(f"buffer_load_dword v{TO}, v110, s[12:15], 0 offen {ld}")
    a(f"buffer_load_dword v{W0+48}, v110, s[8:11], 0 offen {ld}")
    a(f"s_mov_b32 s18, {T * 2}")
    a("s_mov_b32 s19, 0x20000")
    a(f"s_mul_i32 s37, s2, {12 * 8192}")
    a("s_waitcnt lgkmcnt(0)")
    a("s_load_dword s35, s[30:31], 0")
    a(f"buffer_load_ushort v{C0+24}, v109, s[16:19], 0 offen {ld}")
    a("s_mov_b32 s38, 0x7c00")
    MG = -(-(1 << 19) // S)
    assert all((n * MG) >> 19 == n // S for n in range(4096))
    a(f"s_mov_b32 s40, {(-(1024*S - 4)) & 0xffffffff}")
    for j in range(4):
        t = T0 + 16 + j
        a(f"v_lshl_add_u32 v{t}, v0, 2, {j}")
        a(f"v_mul_u32_u24 v{T0}, {MG}, v{t}")
        a(f"v_lshrrev_b32 v{T0}, 19, v{T0}")
        a(f"v_lshlrev_b32 v{t}, 10, v{t}")
        a(f"v_mad_i32_i24 v{t}, v{T0}, s40, v{t}")
        a(f"v_add_u32 v{t}, {STG}, v{t}")
    srd(a, 20, 32, NT * NT * S * 4, WS_DESC)
    srd(a, 24, 94, 256)
    a("s_mov_b32 s44, 0")
    a(f"s_mov_b32 s39, {KSL}")
    a(f"v_mov_b32 v{T0+22}, {(BSL - (CL * KSL if o.own == 1 else 0)) & 0xffffffff}")
    a(f"s_mov_b32 s5, {CL}")
    a(f"v_mov_b32 v{T0+20}, 0x7c")
    a(f"v_mov_b32 v{T0+21}, 0x0ff00000")
    a("s_barrier")
    KX = -(-(1 << 28) // (CL // 16))
    assert all(((k * (CL // 16) + d) * KX) >> 28 == (k * (CL // 16) + d) // (CL // 16) for k in range(1, 9) for d in (-1, 0) if k < 8 or d < 0)
    def key(O, W, t):
        x, xb, d, n = t, t + 1, t + 2, t + 3
        a(f"v_lshrrev_b32 v{x}, 4, v{O}")
        a(f"v_mul_u32_u24 v{x}, {KX}, v{x}")
        a(f"v_lshrrev_b32 v{x}, 28, v{x}")
        a(f"v_mul_u32_u24 v{xb}, {CL}, v{x}")
        a(f"v_sub_u32 v{d}, v{W}, v{xb}")
        a(f"v_sub_u32 v{O}, v{O}, v{xb}")
        if o.own == 1:
            a(f"v_cmp_gt_u32 s[42:43], s5, v{d}")
            a(f"v_ashrrev_i32 v{n}, 31, v{d}")
            a(f"v_add_u32 v{d}, {8 * CL}, v{d}")
            a(f"v_and_b32 v{n}, {CL}, v{n}")
            a(f"v_add_u32 v{n}, v{n}, v{W}")
            a(f"v_cndmask_b32 v{n}, v{n}, v{d}, s[42:43]")
        elif o.own == 2:
            a(f"v_subrev_u32 v{d}, {CL}, v{d}")
            a(f"v_add_u32 v{n}, {E}, v{d}")
            a(f"v_min_u32 v{n}, v{n}, v{d}")
        else:
            a(f"v_mov_b32 v{n}, v{W}")
        a(f"v_lshlrev_b32 v{xb}, 11, v{O}")
        a(f"v_lshl_or_b32 v{W}, v{O}, 28, v{W}")
        a(f"v_mad_u32_u24 v{n}, v{n}, s39, v{T0+22}")
        a(f"v_lshrrev_b32 v{O}, 2, v{O}")
        a(f"v_bitop3_b32 v{W}, v{xb}, v{T0+21}, v{W} bitop3:0xea")
        a(f"v_and_b32_sdwa v{n}, v{n}, s38 dst_sel:DWORD dst_unused:UNUSED_PAD src0_sel:WORD_1 src1_sel:DWORD")
        a(f"v_lshl_or_b32 v{n}, v{x}, 7, v{n}")
        a(f"v_bitop3_b32 v{O}, v{O}, v{T0+20}, v{n} bitop3:0xea")
    for r in range(12):
        a(f"s_waitcnt vmcnt({min(2*DP-2, 2*(11-r)) + (3 if r < DP else 0)})")
        if DP < 6 and r + DP < 12: issue_idx(r + DP)
        if r == DP:
            key(TO, W0 + 48, T0)
            a(f"v_cndmask_b32 v{KP0+24}, 2.0, v{TO}, vcc")
            a(f"ds_add_u32 v{KP0+24}, v3 offset:{CN}")
        b = C0 + 4 * (r % 6)
        for j in range(4):
            key(b + j, W0 + 4 * r + j, T0 + 4 * j)
            a(f"ds_add_u32 v{b+j}, v3 offset:{CN}")
        a(f"v_lshl_or_b32 v{KP0+2*r}, v{b+1}, 16, v{b}")
        a(f"v_lshl_or_b32 v{KP0+2*r+1}, v{b+3}, 16, v{b+2}")
        if DP == 6 and r < 6: issue_idx(r + 6)
    a("s_waitcnt lgkmcnt(0)")
    a("s_barrier")
    P.stamp()
    c = T0; x = T0 + 4; tot = T0 + 5; y = T0 + 6
    a(f"s_cmp_ge_u32 s3, {S}")
    a("s_cbranch_scc1 P1_scan1")
    a(f"ds_read_b128 v[{c}:{c+3}], v1 offset:{CN}")
    a("s_waitcnt lgkmcnt(0)")
    a(f"v_add_u32 v{c+1}, v{c}, v{c+1}")
    a(f"v_add_u32 v{c+2}, v{c+1}, v{c+2}")
    a(f"v_add_u32 v{c+3}, v{c+2}, v{c+3}")
    a(f"v_mov_b32 v{x}, v{c+3}")
    for sh in (1, 2, 4, 8):
        a(f"v_add_u32_dpp v{x}, v{x}, v{x} row_shr:{sh} row_mask:0xf bank_mask:0xf bound_ctrl:1")
    a(f"v_add_u32_dpp v{x}, v{x}, v{x} row_bcast:15 row_mask:0xa bank_mask:0xf")
    a(f"v_add_u32_dpp v{x}, v{x}, v{x} row_bcast:31 row_mask:0xc bank_mask:0xf")
    a(f"v_readlane_b32 s40, v{x}, 63")
    a(f"s_lshl_b32 s41, s3, 2")
    a(f"v_mov_b32 v{y}, s41")
    a(f"v_mov_b32 v{y+1}, s40")
    a(f"ds_write_b32 v{y}, v{y+1} offset:{SCR}")
    a("s_waitcnt lgkmcnt(0)")
    a("P1_scan1:")
    a("s_barrier")
    a(f"s_cmp_ge_u32 s3, {S}")
    a("s_cbranch_scc1 P1_scan2")
    a(f"v_and_b32 v{y}, 63, v0")
    a(f"v_lshlrev_b32 v{y+1}, 2, v{y}")
    a(f"ds_read_b32 v{y+2}, v{y+1} offset:{SCR}")
    a(f"v_cmp_gt_u32 s[42:43], s3, v{y}")
    a(f"v_sub_u32 v{x}, v{x}, v{c+3}")
    a("s_waitcnt lgkmcnt(0)")
    a(f"v_cndmask_b32 v{y+2}, 0, v{y+2}, s[42:43]")
    for sh in (1, 2, 4, 8):
        a(f"v_add_u32_dpp v{y+2}, v{y+2}, v{y+2} row_shr:{sh} row_mask:0xf bank_mask:0xf bound_ctrl:1")
    a(f"v_readlane_b32 s40, v{y+2}, 15")
    s0 = T0 + 12
    a(f"v_add_u32 v{s0}, s40, v{x}")
    for j in range(3): a(f"v_add_u32 v{s0+1+j}, v{s0}, v{c+j}")
    a(f"ds_write_b128 v1, v[{s0}:{s0+3}] offset:{CN}")
    a(f"ds_write_b128 v1, v[{s0}:{s0+3}] offset:{STG}")
    a(f"v_mov_b32 v{c}, {STG + NK * 4}")
    a(f"v_mov_b32 v{c+1}, {TILE_N}")
    a(f"ds_write_b32 v{c}, v{c+1}")
    a("s_waitcnt lgkmcnt(0)")
    a("P1_scan2:")
    a("s_barrier")
    a(f"s_cmp_ge_u32 s3, {S}")
    a("s_cbranch_scc1 P1_nodesc")
    for j in range(4):
        a(f"ds_read2_b32 v[{T0+2*j}:{T0+2*j+1}], v{T0+16+j} offset0:0 offset1:1")
    a(f"s_mul_i32 s40, s2, {256*S*4}")
    lds_count(a, T0 + 8, 4)
    for j in range(4): a(f"v_lshl_or_b32 v{T0+12+j}, v{T0+2*j+1}, 16, v{T0+2*j}")
    a(f"buffer_store_dwordx4 v[{T0+12}:{T0+15}], v1, s[20:23], s40 offen {st}")
    a("P1_nodesc:")
    a(f"s_mul_i32 s40, s3, {WREG - 1024}")
    a(f"s_add_u32 s40, s40, {9*1024}")
    a(f"v_add_u32 v{TO}, s40, v1")
    srd(a, 8, 48, E * 32)
    a(f"s_mul_i32 s41, s2, {o.pfn * 64}")
    a(f"s_sub_u32 s41, s41, {o.pfw * 64}")
    a("v_add_lshl_u32 v1, v0, s41, 7")
    if o.pp & 1: a("s_setprio 3")
    def atomics(n):
        t = T0 + 4 * (n % 2)
        if n == 12:
            a(f"ds_add_rtn_u32 v{t}, v{KP0+24}, v3 offset:{CN}"); return 1
        for j in range(4):
            kp = KP0 + 2 * n + j // 2
            if j % 2 == 0: a(f"v_and_b32 v{t+j}, 0xffff, v{kp}")
            else: a(f"v_lshrrev_b32 v{t+j}, 16, v{kp}")
            a(f"ds_add_rtn_u32 v{t+j}, v{t+j}, v3 offset:{CN}")
        return 4
    a(f"s_cmp_ge_u32 s3, {o.asplit}")
    a("s_cbranch_scc1 P1_ang1")
    for n in range(12): issue_ang(n)
    a("P1_ang1:")
    atomics(0)
    for n in range(13):
        k = atomics(n + 1) if n < 12 else 0
        a(f"s_waitcnt lgkmcnt({k})")
        t = T0 + 4 * (n % 2); u = T0 + 8
        if n < 12:
            a(f"v_lshl_or_b32 v{KP0+2*n}, v{t+1}, 16, v{t}")
            a(f"v_lshl_or_b32 v{KP0+2*n+1}, v{t+3}, 16, v{t+2}")
        else:
            a(f"v_mov_b32 v{u}, 0xffff")
            a(f"v_cndmask_b32 v{KP0+24}, v{u}, v{t}, vcc")
    a(f"s_cmp_lt_u32 s3, {o.asplit}")
    a("s_cbranch_scc1 P1_ang2")
    for n in range(12): issue_ang(n)
    a("P1_ang2:")
    a("s_lshl_b32 s35, s35, 16")
    a("s_cmp_eq_u32 s35, 1.0")
    a("s_cbranch_scc1 P1_f1")
    a("s_waitcnt vmcnt(0)")
    for n in range(25):
        cr = C0 + n; t = T0
        a(f"v_lshlrev_b32 v{t}, 16, v{cr}")
        a(f"v_and_b32 v{t+1}, 0xffff0000, v{cr}")
        a(f"v_mul_f32 v{t}, s35, v{t}")
        a(f"v_mul_f32 v{t+1}, s35, v{t+1}")
        a(f"v_cvt_pk_bf16_f32 v{cr}, v{t}, v{t+1}")
    a("P1_f1:")
    lds_wait(a, T0, 4, S, "q", 0)
    def addrs(n, h, u, base):
        a(f"v_mad_u32_u16 v{u}, v{KP0+n}, 6, {base}" + (" op_sel:[1,0,0,0]" if h else ""))
        a(f"v_and_b32 v{u+1}, 2, v{u}")
        a(f"v_sub_u32 v{u}, v{u}, v{u+1}")
        a(f"v_sub_u32 v{u+1}, v{u}, v{u+1}")
    for n in range(25):
        cr = C0 + n; t = T0 + 6 * (n % 2)
        if o.pp & 1 and n in (0, 9, 17): a(f"s_setprio {2 - n // 8}")
        if o.pf0 == 3:
            if n == 0: a("s_waitcnt vmcnt(0)")
            for w in range(o.pfn):
                if o.pfs + (w * o.pfd) // 2 == n:
                    a(f"s_cmp_lg_u32 s3, {o.pfw + w}")
                    a(f"s_cbranch_scc1 P1_npf{w}")
                    a("buffer_load_dword v1, v1, s[8:11], 0 offen")
                    a(f"P1_npf{w}:")
        elif n % 2 == 0 and n < 24: a(f"s_waitcnt vmcnt({11 - n // 2})")
        if n == 0:
            a(f"s_cmp_ge_u32 s3, {S}")
            a("s_cbranch_scc1 P1_noe")
            a("s_waitcnt vmcnt(0)")
            lds_ticket(a, 2, 8)
            a(f"s_cmp_lg_u32 s40, {S-1}")
            a("s_cbranch_scc1 P1_noe")
            arrive(a, 2, LV_E)
            a("s_mov_b32 s44, 1")
            a("P1_noe:")
        if n == 14:
            a("s_cmp_eq_u32 s44, 0")
            a("s_cbranch_scc1 P2_norele")
            release(a, 2, LV_E, "e")
        a(f"v_lshlrev_b32 v{t}, 16, v{cr}")
        a(f"v_and_b32 v{t+1}, 0xffff0000, v{cr}")
        a(f"v_mul_f32 v{t}, 0.15915494, v{t}")
        a(f"v_mul_f32 v{t+1}, 0.15915494, v{t+1}")
        a(f"v_fract_f32 v{t}, v{t}")
        a(f"v_fract_f32 v{t+1}, v{t+1}")
        a(f"v_cos_f32 v{t}, v{t}")
        a(f"v_cos_f32 v{t+1}, v{t+1}")
        for h in range(2 if n < 24 else 1):
            u = t + 2 + 2 * h
            addrs(n, h, u, 0)
            a(f"ds_write_b32 v{u}, v{W0+2*n+h} offset:{STG}")
        a(f"v_cvt_pk_bf16_f32 v{cr}, v{t}, v{t+1}")
        a(f"ds_write_b16 v{t+3}, v{cr} offset:{STG+8}")
        if n < 24: a(f"ds_write_b16_d16_hi v{t+5}, v{cr} offset:{STG+8}")
    a(f"s_mul_i32 s40, s2, {TILE_BYTES}")
    srd(a, 20, 32, CHA * 6, "s40")
    a(f"v_subrev_u32 v2, {9*1024}, v{TO}")
    a("s_mov_b32 s44, 0")
    if o.pf0 == 2:
        a(f"s_sub_u32 s40, s3, {o.pfw}")
        a(f"s_cmp_ge_u32 s40, {o.pfn}")
        a("s_cbranch_scc1 P1_nopf0")
        a("buffer_load_dword v1, v1, s[8:11], 0 offen")
        a("P1_nopf0:")
    a("s_waitcnt lgkmcnt(0)")
    a("s_barrier")
    P.stamp()
    a(f"s_cmp_lg_u32 s3, 15")
    a("s_cbranch_scc1 P1_noclr")
    a(f"v_and_b32 v3, 15, v0")
    a(f"v_lshlrev_b32 v3, 2, v3")
    a(f"v_add_u32 v3, {XW}, v3")
    a(f"v_mov_b32 v{T0}, 0")
    a(f"ds_write_b32 v3, v{T0}")
    a("P1_noclr:")
    def rd(k):
        t = T0 + 4 * (k % 6)
        a(f"ds_read_b128 v[{t}:{t+3}], v2 offset:{STG + 1024 * (9 - k)}")
    def store(k):
        t = T0 + 4 * (k % 6)
        if k == 0: a("s_mov_b64 exec, 0xffff")
        a(f"buffer_store_dwordx4 v[{t}:{t+3}], v{TO}, s[20:23], 0 offen {st}")
        if k == 0: a("s_mov_b64 exec, -1")
        a(f"v_subrev_u32 v{TO}, 1024, v{TO}")
    NB = o.nb
    for k in range(6): rd(k)
    for k in range(NB):
        a(f"s_waitcnt lgkmcnt({min(5, 9-k)})")
        store(k)
        if k + 6 < 10: rd(k + 6)
    a(f"s_waitcnt vmcnt({NB}) lgkmcnt(0)")
    a(f"s_cmp_ge_u32 s3, {o.nd}")
    a("s_cbranch_scc1 P1_nod")
    for k in range(NB, 10): store(k)
    a("s_waitcnt vmcnt(0)")
    lds_ticket(a, T0, 0)
    a(f"s_cmp_lg_u32 s40, {o.nd-1}")
    a("s_cbranch_scc1 P1_nod")
    arrive(a, T0, LV_D)
    a("s_mov_b32 s44, 1")
    a("P1_nod:")
    a(f"s_mov_b32 s45, {(-CHA*6) & 0xffffffff}")
    a("s_barrier")
    P.stamp()
    nnow = NB
    for n in range(25):
        if o.pp & 2 and n in (0, 9, 17): a(f"s_setprio {2 - n // 8}")
        if n == 1:
            a("s_cmp_eq_u32 s44, 0")
            a("s_cbranch_scc1 P2_noreld")
            release(a, T0, LV_D, "d")
        if n % o.dstep == 1 and nnow < 10:
            a(f"s_cmp_lt_u32 s3, {o.nd}")
            a(f"s_cbranch_scc1 P1_ns{n}")
            store(nnow); nnow += 1
            a(f"P1_ns{n}:")
        for h in range(2 if n < 24 else 1):
            u = 2 * h
            addrs(n, h, u, "s45")
            a(f"ds_write_b32 v{u}, v{W0+2*n+h} offset:{STG}")
            a(f"ds_write_b16{'_d16_hi' if h else ''} v{u+1}, v{C0+n} offset:{STG+8}")
    assert nnow == 10
    lds_count(a, 4, XW + X_S)
    a(f"s_mul_i32 s40, s2, {TILE_BYTES}")
    a(f"s_add_u32 s40, s40, {CHA*6}")
    srd(a, 20, 32, (TILE_N - CHA) * 6, "s40")
    return XW, STG

LV_A, LV_B, LV_D, LV_E = 0, 1, 2, 3
X_A, X_S, X_X, X_I, X_B, X_R, X_C, X_H, X_CW, X_PW = 0, 4, 8, 12, 16, 20, 24, 28, 32, 48

def arrive(a, t, level):
    a(f"v_mov_b32 v{t}, 0")
    a(f"v_mov_b32 v{t+1}, 1")
    a("s_mov_b64 exec, 1")
    a(f"buffer_atomic_add v{t+1}, v{t}, s[24:27], 0 offen offset:{32*level} sc0 sc1")
    a("s_mov_b64 exec, -1")

def release(a, t, level, tag):
    a("s_waitcnt vmcnt(0)")
    a(f"v_readfirstlane_b32 s40, v{t+1}")
    a("s_cmp_lg_u32 s40, 255")
    a(f"s_cbranch_scc1 P2_norel{tag}")
    a("s_mov_b64 exec, 1")
    a(f"buffer_store_dword v{t+1}, v{t}, s[24:27], 0 offen offset:{128+4*level} sc1")
    a("s_mov_b64 exec, -1")
    a(f"P2_norel{tag}:")

def lds_count(a, t, word):
    a(f"v_mov_b32 v{t}, {word}")
    a(f"v_mov_b32 v{t+1}, 1")
    a("s_mov_b64 exec, 1")
    a("s_waitcnt lgkmcnt(0)")
    a(f"ds_add_u32 v{t}, v{t+1}")
    a("s_mov_b64 exec, -1")

def lds_wait(a, t, word, n, tag, sleep):
    a(f"v_mov_b32 v{t}, {word}")
    a(f"P2_lw{tag}:")
    a(f"ds_read_b32 v{t+1}, v{t}")
    a("s_waitcnt lgkmcnt(0)")
    a(f"v_readfirstlane_b32 s40, v{t+1}")
    a(f"s_cmp_ge_u32 s40, {n}")
    a(f"s_cbranch_scc1 P2_lg{tag}")
    if sleep: a(f"s_sleep {sleep}")
    guard(a)
    a(f"s_branch P2_lw{tag}")
    a(f"P2_lg{tag}:")

def lds_ticket(a, t, word):
    a(f"v_mov_b32 v{t}, {word}")
    a(f"v_mov_b32 v{t+1}, 1")
    a("s_mov_b64 exec, 1")
    a(f"ds_add_rtn_u32 v{t+1}, v{t}, v{t+1}")
    a("s_mov_b64 exec, -1")
    a("s_waitcnt lgkmcnt(0)")
    a(f"v_readfirstlane_b32 s40, v{t+1}")

def gen_p2(o, a, P, XW, STG):
    S = o.S
    uid = [0]
    LUT = 2048; CB = 2560; WSZ = NG * WSTR
    RBSZ = 100 * 512
    X1 = RBSZ + 32
    WT = CB + WSZ // 2 + 16
    WB = CB + X1 // 2 + WSZ // 2 + 16
    RB_AT = (WB, WB + WSZ + 32)
    SC = WB + X1 + WSZ + 64
    assert WT + 3072 <= CB + X1 // 2 and WB < 65536 and SC + 12288 <= XW and WB % 16 == 0 and X1 % 32 == 0
    a("s_and_b32 s46, s2, 7")
    a("s_lshl_b32 s46, s46, 5")
    a("s_lshr_b32 s47, s2, 3")
    a("s_add_u32 s46, s46, s47")
    a("v_mbcnt_lo_u32_b32 v12, -1, 0")
    a("v_mbcnt_hi_u32_b32 v12, -1, v12")
    a("s_lshl_b32 s40, s3, 6")
    a("v_add_u32 v0, s40, v12")
    srd(a, 8, 48, E * 32)
    srd(a, 12, 32, NT * TILE_BYTES)
    srd(a, 16, 32, NT * NT * S * 4, WS_DESC)
    a("s_mov_b64 s[6:7], s[86:87]")
    if o.prof: a("s_mov_b32 s71, 0")
    a("s_mov_b32 s48, 0")
    a("s_cmp_ge_u32 s3, 4")
    a("s_cbranch_scc1 P2_consumer")
    def twait(body):
        if o.prof == 1:
            a("s_waitcnt lgkmcnt(0)")
            a("s_memtime s[56:57]")
            a("s_waitcnt lgkmcnt(0)")
        body()
        if o.prof == 1:
            a("s_memtime s[58:59]")
            a("s_waitcnt lgkmcnt(0)")
            a("s_sub_u32 s56, s58, s56")
            a("s_add_u32 s71, s71, s56")
    D0 = 40; R0 = 64
    vU12 = 1; vTile = 2; vInc = 3; v3FC = 4; vCb = 5; vZ = 6; v2U2 = 7; v2U1 = 8; vSg = 9
    n2c = 10; a0c = 11; n2n = 13; a0n = 14
    vca = 16; vcb = 17; vra = 18; vrb = 19; vwa = 20; vwb = 21; vha = 22; vhb = 23; vt = 24; vt2 = 25; vPW = 26; vS = 28
    ODDC = 52; MORC = 54; ODDN = 84; MORN = 86; ROW0 = 82; M0_ = 88; M1_ = 90
    KSL, BSL = slicing(o)
    L0 = -(-(1 << 26) // KSL) // 4 + 1
    def warm(sl, part):
        n = -(-L0 // 1024)
        a(f"s_mul_i32 s40, {sl}, {L0 - 1}")
        a(f"s_lshl_b32 s41, s2, 2")
        a(f"s_add_u32 s41, s41, {part}")
        a(f"s_mul_i32 s41, s41, {n}")
        a(f"s_add_u32 s40, s40, s41")
        a(f"s_add_u32 s40, s40, {(o.swo // 4 - BSL // KSL // 4) & 0xffffffff}")
        a(f"s_min_u32 s40, s40, {E // 4 - n}")
        a(f"s_lshl_b32 s40, s40, 7")
        a(f"s_add_u32 s36, s8, s40")
        a(f"s_addc_u32 s37, s9, 0")
        for j in range(n): a(f"s_load_dwordx2 s[38:39], s[36:37], {128*j+60}")
    def poll(level, tag, meanwhile=None):
        a("s_mov_b32 s51, 0")
        a(f"P2_poll{tag}:")
        a(f"buffer_load_dword v{vt}, v{vZ}, s[24:27], 0 offen offset:{128+4*level} sc1")
        a("s_add_u32 s51, s51, 1")
        a(f"s_cmp_gt_u32 s51, {o.maxpoll}")
        a("s_cbranch_scc1 P2_giveup")
        if meanwhile: a(f"s_call_b64 s[34:35], {meanwhile}")
        a("s_waitcnt vmcnt(0)")
        a(f"v_cmp_eq_u32 vcc, 0, v{vt}")
        a(f"s_cbranch_vccz P2_polled{tag}")
        a(f"s_sleep {o.gsleep}")
        a(f"s_branch P2_poll{tag}")
        a(f"P2_polled{tag}:")
    def ensure():
        uid[0] += 1; u = uid[0]
        a(f"v_cmp_lt_u32 vcc, s45, v{D0}")
        a(f"s_cbranch_vccz P2_have{u}")
        a("s_call_b64 s[42:43], P2_ensure")
        a(f"P2_have{u}:")
    def prep():
        ensure()
        a(f"v_bfe_u32 v{vt}, v{D0}, 1, 15")
        a(f"v_mad_u32_u24 v{a0n}, v{vt}, 12, v{vTile}")
        a(f"v_lshrrev_b32 v{n2n}, 16, v{D0}")
        a(f"v_and_b32 v{vt}, 0xfffe, v{D0}")
        a(f"v_sub_u32 v{n2n}, v{n2n}, v{vt}")
        a(f"v_and_b32 v{vt}, 1, v{D0}")
        a(f"v_cmp_eq_u32 s[{ODDN}:{ODDN+1}], 1, v{vt}")
        a(f"v_cmp_lt_u32 s[{MORN}:{MORN+1}], 32, v{n2n}")
        for k in range(S): a(f"v_mov_b32 v{D0+k}, v{D0+k+1}")
    def issue(i):
        t = (vt, vca)[i % 2]
        a(f"v_add_u32_dpp v{t}, v{a0n}, v{vU12} row_newbcast:{i} row_mask:0xf bank_mask:0xf")
        a(f"v_sub_u32_dpp v{t+1}, v{n2n}, v{v2U1} row_newbcast:{i} row_mask:0xf bank_mask:0xf")
        a(f"v_bitop3_b32 v{t}, v{t+1}, v{vSg}, v{t} bitop3:0xea")
        r = R0 + 4 * i
        a(f"buffer_load_dwordx3 v[{r}:{r+2}], v{t}, s[12:15], 0 offen sc1")
    def unhold():
        a("s_lshl_b32 s40, 1, s3")
        a(f"v_mov_b32 v{vt}, {XW + X_H}")
        a(f"v_mov_b32 v{vt2}, s40")
        a("s_mov_b64 exec, 1")
        a(f"ds_or_b32 v{vt}, v{vt2}")
        a("s_mov_b64 exec, -1")
    def next_round(regular):
        a("s_call_b64 s[42:43], P2_next")
        if regular:
            ensure()
            if o.sw:
                a(f"s_sub_u32 s4, s49, {o.swd}")
                a(f"s_cmp_lt_u32 s4, {o.sw0}")
                a("s_cbranch_scc1 P2_nowarm")
                a(f"s_cmp_ge_u32 s4, {-(-(E - o.swo) // (4 * (L0 - 1)))}")
                a("s_cbranch_scc1 P2_nowarm")
                warm("s4", "s3")
                a("P2_nowarm:")
        a("s_call_b64 s[42:43], P2_wait")
    def wait_buffer(tag):
        a("s_add_u32 s50, s48, 1")
        a("s_lshr_b32 s50, s50, 1")
        a("s_mul_i32 s50, s50, 12")
        a("s_and_b32 s51, s48, 1")
        a("s_lshl_b32 s51, s51, 2")
        a(f"s_add_u32 s51, s51, {XW + X_CW}")
        a(f"v_mov_b32 v{vt2}, s51")
        a(f"P2_pw{tag}:")
        a(f"ds_read_b32 v{vt}, v{vt2}")
        a("s_waitcnt lgkmcnt(0)")
        a(f"v_readfirstlane_b32 s51, v{vt}")
        a("s_cmp_ge_u32 s51, s50")
        a(f"s_cbranch_scc1 P2_pg{tag}")
        a(f"s_sleep {o.psleep}")
        guard(a)
        a(f"s_branch P2_pw{tag}")
        a(f"P2_pg{tag}:")
    a("s_setprio 3")
    a("s_waitcnt vmcnt(0)")
    lds_count(a, vt, XW + X_A)
    a(f"s_lshl_b32 s47, s3, 6")
    a(f"v_add_u32 v{vTile}, s47, v12")
    a(f"s_lshl_b32 s50, s3, 2")
    a(f"s_add_u32 s50, s50, {XW + X_PW}")
    a(f"v_mov_b32 v{vPW}, s50")
    a(f"v_lshlrev_b32 v15, 8, v{vTile}")
    a(f"v_add_u32 v15, s46, v15")
    a(f"v_mul_u32_u24 v15, {4*S}, v15")
    a(f"v_mov_b32 v{D0+S}, 0")
    a(f"v_mul_u32_u24 v{vTile}, {TILE_BYTES}, v{vTile}")
    a(f"v_and_b32 v{vt}, 15, v12")
    a(f"v_mul_u32_u24 v{vU12}, 12, v{vt}")
    a(f"v_lshl_add_u32 v{v2U1}, v{vt}, 1, 1")
    a(f"v_add_u32 v{v2U2}, 1, v{v2U1}")
    a(f"v_mov_b32 v{vInc}, {(1 << 20) + 4}")
    a(f"v_mov_b32 v{v3FC}, 0x3fc")
    a(f"v_mov_b32 v{vSg}, 0x80000000")
    for r in (vCb, vZ, vra, vrb, vS, vS + 1): a(f"v_mov_b32 v{r}, 0")
    a("s_mov_b32 s49, 0")
    a(f"s_mov_b32 s{ROW0}, 0x00010001")
    a(f"s_mov_b32 s{ROW0+1}, 0x00010001")
    a(f"s_mov_b32 s45, {((o.nd * WREG // 12 * 2) << 16) | 0xffff}")
    a("s_cmp_eq_u32 s3, 1")
    a("s_cselect_b32 s44, 1, 0")
    nsave = P.n
    P.stamp()
    poll(LV_E, "e")
    k = 0
    while k < S:
        w = 4 if S - k >= 4 else (2 if S - k >= 2 else 1)
        sfx = {4: "x4", 2: "x2", 1: ""}[w]
        dst = f"v[{D0+k}:{D0+k+w-1}]" if w > 1 else f"v{D0+k}"
        a(f"buffer_load_dword{sfx} {dst}, v15, s[16:19], 0 offen offset:{4*k} sc1")
        k += w
    poll(LV_D, "d")
    P.stamp()
    prep()
    for i in range(16): issue(i)
    P.stamp()
    a("s_cmp_lg_u32 s44, 1")
    a("s_cbranch_scc1 P2_noarr")
    a("s_mov_b32 s44, 3")
    lds_wait(a, vS, XW + X_A, 16, "a0", 1)
    arrive(a, vS, LV_A)
    a("P2_noarr:")
    lds_wait(a, vt, XW + X_I, 12, "i", 1)
    P.stamp()
    def rela():
        uid[0] += 1
        a("s_cmp_lg_u32 s44, 3")
        a(f"s_cbranch_scc1 P2_nra{uid[0]}")
        a("s_call_b64 s[34:35], P2_rela")
        a(f"P2_nra{uid[0]}:")
    def ppass(tg, inl):
        a(f"v_mov_b32 v{n2c}, v{n2n}")
        a(f"v_mov_b32 v{a0c}, v{a0n}")
        a(f"s_mov_b64 s[{ODDC}:{ODDC+1}], s[{ODDN}:{ODDN+1}]")
        a(f"s_mov_b64 s[{MORC}:{MORC+1}], s[{MORN}:{MORN+1}]")
        if inl: prep()
        for i in range(16):
            r = R0 + 4 * i
            a(f"v_sub_co_u32_dpp v{vt}, vcc, v{n2c}, v{v2U1} row_newbcast:{i} row_mask:0xf bank_mask:0xf")
            a(f"s_and_b64 s[92:93], s[{ODDC}:{ODDC+1}], s[{ROW0}:{ROW0+1}]")
            a(f"s_nor_b64 s[{M0_}:{M0_+1}], vcc, s[92:93]")
            a(f"v_sub_co_u32_dpp v{vt2}, vcc, v{n2c}, v{v2U2} row_newbcast:{i} row_mask:0xf bank_mask:0xf")
            a(f"s_lshr_b64 s[{ODDC}:{ODDC+1}], s[{ODDC}:{ODDC+1}], 1")
            a(f"s_not_b64 s[{M1_}:{M1_+1}], vcc")
            a(f"s_waitcnt vmcnt({15 if inl else 15 - i})")
            a(f"P2_retry{tg}{i}:")
            a(f"v_lshrrev_b32 v{vca}, 18, v{r}")
            a(f"v_lshrrev_b32 v{vcb}, 18, v{r+1}")
            a(f"v_bitop3_b32 v{vca}, v{vca}, v{v3FC}, v{vCb} bitop3:0xea")
            a(f"v_bitop3_b32 v{vcb}, v{vcb}, v{v3FC}, v{vCb} bitop3:0xea")
            a(f"s_mov_b64 exec, s[{M0_}:{M0_+1}]")
            a(f"ds_add_rtn_u32 v{vra}, v{vca}, v{vInc}")
            a(f"s_mov_b64 exec, s[{M1_}:{M1_+1}]")
            a(f"ds_add_rtn_u32 v{vrb}, v{vcb}, v{vInc}")
            a(f"s_mov_b64 exec, -1")
            a(f"v_and_b32 v{vwa}, 0xf00fffff, v{r}")
            a(f"v_and_b32 v{vwb}, 0xf00fffff, v{r+1}")
            a("s_waitcnt lgkmcnt(0)")
            a(f"v_and_b32 v{vra}, 0xfc03ffff, v{vra}")
            a(f"v_and_b32 v{vrb}, 0xfc03ffff, v{vrb}")
            a(f"v_lshrrev_b32 v{vha}, 1, v{vra}")
            a(f"v_lshrrev_b32 v{vhb}, 1, v{vrb}")
            a(f"v_or_b32 v{vt}, v{vra}, v{vrb}")
            a(f"v_cmp_lt_u32 vcc, v{vInc}, v{vt}")
            a(f"s_mov_b64 exec, s[{M0_}:{M0_+1}]")
            a(f"ds_write_b32 v{vra}, v{vwa} offset:{WB}")
            a(f"ds_write_b16 v{vha}, v{r+2} offset:{CB}")
            a(f"s_mov_b64 exec, s[{M1_}:{M1_+1}]")
            a(f"ds_write_b32 v{vrb}, v{vwb} offset:{WB}")
            a(f"ds_write_b16_d16_hi v{vhb}, v{r+2} offset:{CB}")
            a(f"s_mov_b64 exec, -1")
            a(f"s_cbranch_vccnz P2_stall{tg}{i}")
            a(f"s_and_b64 s[92:93], s[{MORC}:{MORC+1}], s[{ROW0}:{ROW0+1}]")
            a(f"s_cbranch_scc1 P2_more{tg}{i}")
            if not inl:
                a("s_cmp_lg_u32 s98, 0")
                a("s_cbranch_scc1 P2_sweep")
                a(f"P2_cont{tg}{i}:")
            a(f"s_lshr_b64 s[{MORC}:{MORC+1}], s[{MORC}:{MORC+1}], 1")
            if inl: issue(i)
            elif i == o.reli: rela()
    a("s_mov_b32 s98, 0")
    a("s_mov_b32 s47, 0")
    ppass("f", False)
    a("P2_sweep:")
    a("s_cmp_lg_u32 s47, 0")
    a("s_cbranch_scc1 P2_sweep1")
    P.stamp()
    a("s_mov_b32 s49, 1")
    a("s_cmp_ge_u32 s48, s49")
    a("s_cbranch_scc1 P2_ff1")
    a("s_call_b64 s[42:43], P2_next")
    a("P2_ff1:")
    prep()
    for i in range(16): issue(i)
    a("s_call_b64 s[42:43], P2_wait")
    a("P2_pslice:")
    ppass("", True)
    a("s_add_u32 s49, s49, 1")
    a(f"s_cmp_ge_u32 s49, {S}")
    a("s_cbranch_scc1 P2_pdone")
    a("s_cmp_ge_u32 s48, s49")
    a("s_cbranch_scc1 P2_pslice")
    next_round(True)
    a("s_branch P2_pslice")
    a("P2_next:")
    a("s_add_u32 s48, s48, 1")
    if o.maxr:
        a(f"s_cmp_gt_u32 s48, {o.maxr}")
        a("s_cbranch_scc1 P2_giveup")
    a(f"v_mov_b32 v{vt}, s48")
    a("s_waitcnt lgkmcnt(0)")
    a(f"ds_write_b32 v{vPW}, v{vt}")
    a(f"v_xor_b32 v{vCb}, 1024, v{vCb}")
    rela()
    def pubb2():
        a("s_cmp_lg_u32 s48, 2")
        a("s_cbranch_scc1 P2_next1")
        a("s_call_b64 s[96:97], P2_pubb")
        a("P2_next1:")
    if not o.nl: pubb2()
    a("s_setpc_b64 s[42:43]")
    a("P2_wait:")
    twait(lambda: wait_buffer("n"))
    if o.nl: pubb2()
    a("s_setpc_b64 s[42:43]")
    a("P2_rela:")
    a("s_mov_b32 s44, 0")
    release(a, vS, LV_A, "a0")
    a("s_setpc_b64 s[34:35]")
    a("P2_pubb:")
    lds_ticket(a, vS, XW + X_C)
    a("s_cmp_lg_u32 s40, 0")
    a("s_cbranch_scc1 P2_norelb")
    lds_wait(a, vS, XW + X_B, 12, "b", 1)
    arrive(a, vS, LV_B)
    release(a, vS, LV_B, "b")
    a("s_setpc_b64 s[96:97]")
    a("P2_ensure:")
    a("s_cmp_lg_u32 s44, 1")
    a("s_cbranch_scc1 P2_norela1")
    a("s_mov_b32 s44, 0")
    lds_wait(a, vS, XW + X_A, 16, "a1", 1)
    arrive(a, vS, LV_A)
    release(a, vS, LV_A, "a1")
    poll(LV_A, "a")
    a(f"s_mov_b32 s45, {(CHA << 16) | 0xffff}")
    a(f"v_cmp_lt_u32 vcc, s45, v{D0}")
    a("s_cbranch_vccz P2_ens1")
    unhold()
    a("s_call_b64 s[96:97], P2_pubb")
    poll(LV_B, "b")
    a("s_mov_b32 s45, -1")
    a("P2_ens1:")
    a("s_setpc_b64 s[42:43]")
    for tg, i in [(t_, i_) for t_ in ("", "f") for i_ in range(16)]:
        r = R0 + 4 * i
        a(f"P2_stall{tg}{i}:")
        a(f"v_cmp_lt_u32 s[{M0_}:{M0_+1}], v{vInc}, v{vra}")
        a(f"v_cmp_lt_u32 s[{M1_}:{M1_+1}], v{vInc}, v{vrb}")
        next_round(False)
        a(f"s_branch P2_retry{tg}{i}")
        a(f"P2_more{tg}{i}:")
        a(f"s_lshl_b64 exec, s[{ROW0}:{ROW0+1}], {i}")
        a(f"v_max_u32 v{n2c}, 32, v{n2c}")
        a(f"v_subrev_u32 v{n2c}, 32, v{n2c}")
        a(f"v_add_u32 v{a0c}, 192, v{a0c}")
        a(f"s_mov_b64 exec, -1")
        a(f"v_sub_u32_dpp v{vt2}, v{n2c}, v{v2U1} row_newbcast:{i} row_mask:0xf bank_mask:0xf")
        a(f"v_add_u32_dpp v{vt}, v{a0c}, v{vU12} row_newbcast:{i} row_mask:0xf bank_mask:0xf")
        a(f"v_bitop3_b32 v{vt}, v{vt2}, v{vSg}, v{vt} bitop3:0xea")
        a(f"buffer_load_dwordx3 v[{r}:{r+2}], v{vt}, s[12:15], 0 offen sc1")
        if tg:
            a(f"s_bitset1_b32 s47, {i}")
            a("s_cmp_eq_u32 s98, 0")
            a(f"s_cbranch_scc1 P2_cont{tg}{i}")
            a(f"P2_again{i}:")
            a(f"s_bitset0_b32 s47, {i}")
        a(f"v_cmp_lt_u32 vcc, 32, v{n2c}")
        a(f"s_lshr_b64 s[92:93], vcc, {i}")
        a(f"s_and_b64 s[92:93], s[92:93], s[{ROW0}:{ROW0+1}]")
        a(f"s_andn2_b64 s[{MORC}:{MORC+1}], s[{MORC}:{MORC+1}], s[{ROW0}:{ROW0+1}]")
        a(f"s_or_b64 s[{MORC}:{MORC+1}], s[{MORC}:{MORC+1}], s[92:93]")
        a(f"v_sub_co_u32_dpp v{vt2}, vcc, v{n2c}, v{v2U2} row_newbcast:{i} row_mask:0xf bank_mask:0xf")
        a(f"s_not_b64 s[{M1_}:{M1_+1}], vcc")
        a(f"v_sub_co_u32_dpp v{vt2}, vcc, v{n2c}, v{v2U1} row_newbcast:{i} row_mask:0xf bank_mask:0xf")
        a(f"s_not_b64 s[{M0_}:{M0_+1}], vcc")
        a("s_waitcnt vmcnt(0)")
        a(f"s_branch P2_retry{tg}{i}")
    a("P2_sweep1:")
    a("s_mov_b32 s98, 1")
    for i in range(15):
        a(f"s_bitcmp1_b32 s47, {i}")
        a(f"s_cbranch_scc1 P2_again{i}")
    a("s_branch P2_again15")
    a("P2_giveup:")
    unhold()
    a("P2_pdone:")
    a("s_add_u32 s48, s48, 0x40000001")
    a(f"v_mov_b32 v{vt}, s48")
    a("s_waitcnt lgkmcnt(0)")
    a(f"ds_write_b32 v{vPW}, v{vt}")
    a(f"s_setprio {o.eprio}")
    if o.sw and o.swd:
        warm(S - 1, "s3")
        a("s_waitcnt lgkmcnt(0)")
    a("s_load_dwordx2 s[6:7], s[0:1], 24")
    a("s_load_dwordx2 s[34:35], s[0:1], 40")
    a("s_load_dwordx8 s[36:43], s[0:1], 56")
    DS = 30; CEN = 56; RB0 = 64; t = 60; X = 1
    a("v_and_b32 v13, 15, v12")
    a("v_lshrrev_b32 v14, 4, v12")
    a(f"v_lshlrev_b32 v{X}, 7, v14")
    a(f"v_lshl_add_u32 v{X}, v13, 1, v{X}")
    a(f"v_and_b32 v{X+1}, 0xff, v{X}")
    a(f"v_and_b32 v{X+2}, 1, v14")
    a(f"v_lshlrev_b32 v{X+2}, 3, v{X+2}")
    a(f"v_lshrrev_b32 v{X+3}, 1, v14")
    a(f"v_lshlrev_b32 v{X+3}, 10, v{X+3}")
    a(f"v_lshl_add_u32 v{X+3}, v13, 1, v{X+3}")
    a("s_and_b32 s47, s46, 31")
    a("s_lshl_b32 s47, s47, 5")
    a(f"v_add_u32 v{X+3}, s47, v{X+3}")
    a(f"v_cmp_gt_u32 s[88:89], 32, v12")
    a("s_waitcnt vmcnt(0) lgkmcnt(0)")
    a("s_lshr_b32 s47, s46, 5")
    a(f"s_mul_i32 s47, s47, {CL * 2}")
    srd(a, 20, 6, CL * 2, "s47")
    srd(a, 28, 42, 512)
    srd(a, 12, 38, 256)
    srd(a, 16, 36, 256)
    srd(a, 52, 34, 16)
    srd(a, 84, 40, 512)
    for c in range(4): a(f"buffer_load_ushort v{CEN+c}, v{X+2}, s[52:55], 0 offen offset:{2*c}")
    a("s_mul_i32 s47, s3, 25")
    for k in range(25):
        a("s_mul_i32 s50, s47, 57")
        a("s_lshr_b32 s50, s50, 9")
        a("s_min_u32 s50, s50, 4")
        a("s_lshl_b32 s51, s47, 1")
        a("s_sub_u32 s50, s51, s50")
        a("s_lshl_b32 s50, s50, 10")
        a(f"v_add_u32 v{DS+k}, s50, v{X+3}")
        a("s_add_u32 s47, s47, 1")
        a(f"buffer_load_ushort v{DS+k}, v{DS+k}, s[20:23], 0 offen")
    assert all((n * 57) >> 9 == n // 9 for n in range(45))
    Y = 116
    for c in range(4): a(f"buffer_load_ushort v{Y+c}, v{X}, s[28:31], 0 offen offset:{32*c}")
    for c in range(4): a(f"buffer_load_ushort v{Y+4+c}, v{X+1}, s[12:15], 0 offen offset:{32*c}")
    for c in range(4): a(f"buffer_load_ushort v{Y+8+c}, v{X+1}, s[16:19], 0 offen offset:{32*c}")
    for c in range(4): a(f"buffer_load_ushort v{16+c}, v{X}, s[84:87], 0 offen offset:{32*c}")
    a("s_waitcnt vmcnt(40)")
    for c in range(4): a(f"v_lshlrev_b32 v{CEN+c}, 16, v{CEN+c}")
    def rnd():
        if o.nornd: return
        for u in range(2):
            a(f"v_cvt_pk_bf16_f32 v{t+2*u+1}, v{t+2*u}, v{t+2*u+1}")
        for u in range(2):
            a(f"v_lshlrev_b32 v{t+2*u}, 16, v{t+2*u+1}")
            a(f"v_and_b32 v{t+2*u+1}, 0xffff0000, v{t+2*u+1}")
    for k in range(25):
        d = DS + k
        a(f"s_waitcnt vmcnt({40 - k})")
        a(f"v_lshlrev_b32 v{d}, 16, v{d}")
        for c in range(4): a(f"v_sub_f32 v{t+c}, v{d}, v{CEN+c}")
        rnd()
        for c in range(4): a(f"v_mul_f32 v{t+c}, v{t+c}, v{t+c}")
        rnd()
        for c in range(4): a(f"v_mul_f32 v{t+c}, 0xc1200000, v{t+c}")
        rnd()
        for c in range(4): a(f"v_mul_f32 v{t+c}, 0x3fb8aa3b, v{t+c}")
        for c in range(4): a(f"v_exp_f32 v{t+c}, v{t+c}")
        for u in range(2): a(f"v_cvt_pk_bf16_f32 v{RB0+2*k+u}, v{t+2*u}, v{t+2*u+1}")
    a("s_waitcnt vmcnt(0)")
    Z = 30
    for u in range(2):
        a(f"v_lshl_or_b32 v{Z+8+u}, v{Y+2*u+1}, 16, v{Y+2*u}")
        a(f"v_lshl_or_b32 v{Z+10+u}, v{17+2*u}, 16, v{16+2*u}")
        a(f"v_lshl_or_b32 v{Y+4+u}, v{Y+5+2*u}, 16, v{Y+4+2*u}")
        a(f"v_lshl_or_b32 v{Y+8+u}, v{Y+9+2*u}, 16, v{Y+8+2*u}")
    for u in range(2):
        a(f"v_cndmask_b32 v{Z+u}, 0, v{Y+4+u}, s[88:89]")
        a(f"v_cndmask_b32 v{Z+2+u}, v{Y+4+u}, 0, s[88:89]")
        a(f"v_cndmask_b32 v{Z+4+u}, 0, v{Y+8+u}, s[88:89]")
        a(f"v_cndmask_b32 v{Z+6+u}, v{Y+8+u}, 0, s[88:89]")
    a(f"v_lshlrev_b32 v{X}, 3, v12")
    a(f"v_add_u32 v{X+1}, {WT}, v{X}")
    a(f"v_and_b32 v{X+2}, 3, v12")
    a(f"v_lshlrev_b32 v{X+2}, 2, v{X+2}")
    a(f"v_add_u32 v{X+2}, {XW + X_PW}, v{X+2}")
    a("P2_dw:")
    a(f"ds_read_b32 v{vt}, v{X+2}")
    a("s_waitcnt lgkmcnt(0)")
    a(f"v_cmp_gt_u32 vcc, 2.0, v{vt}")
    a("s_cbranch_vccz P2_dg")
    a(f"s_sleep {o.psleep}")
    guard(a)
    a("s_branch P2_dw")
    a("P2_dg:")
    a(f"v_readlane_b32 s48, v{vt}, 0")
    for k in range(1, 4):
        a(f"v_readlane_b32 s50, v{vt}, {k}")
        a("s_max_u32 s48, s48, s50")
    a("s_and_b32 s48, s48, 0x3fffffff")
    wait_buffer("e")
    a("s_bitcmp1_b32 s48, 0")
    a(f"s_cselect_b32 s50, {RB_AT[1] - RB_AT[0]}, 0")
    a(f"s_add_u32 s50, s50, {RB_AT[0]}")
    a(f"s_mul_i32 s51, s3, {25*512}")
    a("s_add_u32 s50, s50, s51")
    a(f"v_add_u32 v{X}, s50, v{X}")
    for k in range(6): a(f"ds_write_b64 v{X+1}, v[{Z+2*k}:{Z+2*k+1}] offset:{512*k}")
    for k in range(25): a(f"ds_write_b64 v{X}, v[{RB0+2*k}:{RB0+2*k+1}] offset:{512*k}")
    lds_count(a, vt, XW + X_R)
    a("s_waitcnt lgkmcnt(0)")
    if o.prof == 1:
        P.stamp(); P.dump(32, 0x80000, 8, 3); P.n = nsave
    a("s_endpgm")
    a("P2_consumer:")
    ACC = 60; G0 = 52; B0 = 44; A2 = 28; vTw = 32; vTr = 33; vM = 24; vC = 20; vX = 16
    bA = 1; bE = 2; bC = 3; bR = 4; vH = 5; vL = 6; vCA = 7; vCI = 8; vA = 9; vE = 10
    a("s_sub_u32 s47, s3, 4")
    a("s_min_u32 s44, s47, 4")
    a("s_lshl_b32 s49, s47, 4")
    a("s_add_u32 s49, s49, s44")
    a("s_cmp_lt_u32 s47, 4")
    a("s_cselect_b32 s50, 17, 16")
    a(f"s_cselect_b32 s84, 0, {MARK}")
    a(f"s_cselect_b32 s85, {17*WSTR//16-192}, {16*WSTR//16-192}")
    a("s_bfm_b64 s[92:93], s85, 0")
    a(f"v_subrev_u32 v60, 256, v0")
    a(f"v_lshlrev_b32 v60, 4, v60")
    for k in range(1, 4): a(f"v_add_u32 v{60+k}, {4*12288*k}, v60")
    lds_wait(a, vX, XW + X_S, 16, "s", 1)
    P.stamp()
    NL = o.nl; vSt = 34
    for j in range(13):
        k = 12 - j
        a(f"ds_read_b128 v[{68+4*j}:{71+4*j}], v{60+k//4} offset:{STG+12288*(k%4)}")
    a(f"v_mov_b32 v{vSt}, v63")
    q = 36
    for i in range(4): a(f"v_mov_b32 v{q+i}, {MARK}")
    a(f"v_add_u32 v61, {WB}, v60")
    a(f"v_add_u32 v62, {SC - 4 * 12288}, v60")
    a(f"v_and_b32 v52, 15, v12")
    a(f"v_lshrrev_b32 v53, 4, v12")
    a(f"v_lshrrev_b32 v56, 2, v52")
    a(f"v_cmp_eq_u32 vcc, v56, v53")
    a(f"v_and_b32 v56, 3, v12")
    a(f"v_lshlrev_b32 v56, 4, v56")
    a(f"v_mov_b32 v54, 0xffff")
    a(f"v_mov_b32 v55, 0")
    a(f"v_cndmask_b32 v54, 0, v54, vcc")
    a(f"v_lshlrev_b64 v[54:55], v56, v[54:55]")
    a(f"v_and_b32 v56, 1, v53")
    a(f"v_lshlrev_b32 v56, 3, v56")
    a(f"v_lshl_add_u32 v52, v52, 4, v56")
    a(f"v_lshrrev_b32 v53, 1, v53")
    a(f"v_lshl_add_u32 v52, v53, 8, v52")
    a(f"v_and_b32 v56, 255, v0")
    a(f"v_lshlrev_b32 v53, 2, v56")
    a(f"v_mul_u32_u24 v56, {WSTR}, v56")
    a(f"v_add_u32 v56, {(64 - CAP) << 20}, v56")
    a(f"v_add_u32 v57, {X1}, v56")
    lds_count(a, vX, XW + X_X)
    lds_wait(a, vX, XW + X_X, 12, "x", 0)
    assert WSZ // 2 + 16 <= 2 * 12288 <= X1 // 2 and WSZ + 64 <= 4 * 12288 <= X1
    for k in range(4): a(f"ds_write_b128 v61, v[{q}:{q+3}] offset:{12288 * k}")
    for k in range(2): a(f"ds_write_b128 v60, v[{q}:{q+3}] offset:{CB + 12288 * k}")
    a(f"ds_write_b64 v52, v[54:55] offset:{LUT}")
    a(f"ds_write_b32 v53, v56")
    a(f"ds_write_b32 v53, v57 offset:1024")
    lds_count(a, vX, XW + X_I)
    a("s_waitcnt vmcnt(0)")
    lds_count(a, vX, XW + X_A)
    def store_b(j):
        a(f"buffer_store_dwordx4 v[{68+4*j}:{71+4*j}], v{vSt}, s[20:23], 0 offen {o.p1_st}")
        a(f"v_subrev_u32 v{vSt}, 12288, v{vSt}")
    if o.spr: a(f"s_setprio {o.spr}")
    for j in range(13 - NL): store_b(j)
    if o.spr: a("s_setprio 0")
    for k in range(4): a(f"ds_write_b128 v62, v[{q}:{q+3}] offset:{12288 * k}")
    for k in range(2): a(f"ds_write_b128 v60, v[{q}:{q+3}] offset:{WB - 12288 * (2 - k)}")
    lds_count(a, vX, XW + X_CW + 4)
    a("v_and_b32 v13, 15, v12")
    a("v_lshrrev_b32 v14, 4, v12")
    a(f"v_and_b32 v0, 3, v12")
    a(f"v_lshlrev_b32 v0, 2, v0")
    a(f"v_add_u32 v0, {XW + X_CW}, v0")
    a(f"s_mul_i32 s51, s49, {WSTR}")
    a(f"s_lshr_b32 s86, s51, 1")
    a(f"s_add_u32 s86, s86, {CB}")
    a(f"v_lshl_add_u32 v{bC}, v14, 4, s86")
    a(f"v_mul_u32_u24 v{vCI}, {WSTR}, v12")
    a(f"s_add_u32 s86, s51, {(64 - CAP) << 20}")
    a(f"v_add_u32 v{vCI}, s86, v{vCI}")
    a(f"s_add_u32 s51, s51, {WB}")
    a(f"v_lshl_add_u32 v{bR}, v12, 4, s51")
    a(f"v_and_b32 v{bA}, 24, v12")
    a(f"v_bfe_u32 v{vA}, v12, 1, 2")
    a(f"v_or_b32 v{bA}, v{bA}, v{vA}")
    a(f"v_lshrrev_b32 v{vA}, 5, v12")
    a(f"v_lshl_or_b32 v{bA}, v{vA}, 2, v{bA}")
    a(f"v_lshl_add_u32 v{bA}, v{bA}, 2, s51")
    a(f"v_and_b32 v{vH}, 1, v12")
    a(f"v_lshlrev_b32 v{vH}, 4, v{vH}")
    a("s_lshl_b32 s87, s47, 10")
    a(f"s_add_u32 s87, s87, {SC}")
    a(f"v_lshl_add_u32 v{vTw}, v12, 4, s87")
    a(f"v_lshl_add_u32 v{vTr}, v12, 3, s87")
    a(f"v_and_b32 v{vA}, 12, v12")
    a(f"v_lshl_add_u32 v{bE}, v14, 5, v{vA}")
    a(f"v_add_u32 v{bE}, s51, v{bE}")
    a(f"v_and_b32 v{vL}, 1, v12")
    a(f"v_lshlrev_b32 v{vL}, 3, v{vL}")
    a(f"v_and_b32 v{vA}, 2, v12")
    a(f"v_lshl_add_u32 v{vL}, v{vA}, 7, v{vL}")
    a(f"v_add_lshl_u32 v{vCA}, v12, s49, 2")
    a(f"v_cmp_gt_u32 vcc, s50, v12")
    a(f"s_mov_b32 s85, {(64 - CAP + 33) << 20}")
    a("s_mov_b32 s94, 0xff000000")
    a("s_mov_b32 s95, 0xff000000")
    a(f"v_cndmask_b32 v{vCA}, 2.0, v{vCA}, vcc")
    a(f"s_lshl_b32 s51, s49, 5")
    a("s_and_b32 s40, s46, 31")
    a(f"s_add_u32 s51, s51, s40")
    a(f"s_lshl_b32 s51, s51, 4")
    a(f"v_add_lshl_u32 v15, v13, s51, 5")
    a(f"v_lshl_add_u32 v15, v14, 3, v15")
    a(f"v_lshlrev_b32 v13, 3, v12")
    for i in range(16): a(f"v_mov_b32 v{B0+i}, 0")
    for i in range(68):
        if not 15 - NL <= i // 4 <= 14: a(f"v_mov_b32 v{ACC+i}, 0")
    a("s_lshr_b32 s40, s46, 5")
    a(f"s_mul_i32 s40, s40, {CL * 32}")
    srd(a, 28, 6, CL * 32, "s40")
    srd(a, 12, 8, CL * 32, "s40")
    def lazy(t):
        j = 13 - NL + t
        store_b(j)
        for u in range(4): a(f"v_mov_b32 v{68+4*j+u}, 0")
    NC = o.lstep if o.stag else 1
    lstep = {t * o.lstep + k: (t, k) for t in range(NL) for k in range(NC)}
    assert all(i <= 14 - NL + t for i, (t, k) in lstep.items())
    if NL:
        a(f"s_mul_i32 s42, s47, {NC * 22}")
        a("s_lshr_b32 s42, s42, 8")
        a("s_add_u32 s42, s42, 1")
        assert all((c * NC * 22) >> 8 == c * NC // 12 for c in range(12))
        P.stamp()
        a(f"v_mov_b32 v{vX+2}, {XW + X_H}")
        a("P2_pre:")
        a(f"ds_read_b32 v{vX}, v0 offset:{X_PW - X_CW}")
        a(f"ds_read_b32 v{vX+1}, v{vX+2}")
        a("s_waitcnt lgkmcnt(0)")
        a(f"v_cmp_eq_u32 vcc, 0, v{vX}")
        a("s_cbranch_vccz P2_round0")
        a(f"v_cmp_eq_u32 vcc, 0, v{vX+1}")
        a("s_cbranch_vccz P2_flush")
        a(f"s_sleep {o.csleep}")
        guard(a)
        a("s_branch P2_pre")
        a("P2_flush:")
        for t in range(NL): lazy(t)
        a("s_mov_b32 s42, 0")
    a("s_waitcnt vmcnt(0)")
    lds_count(a, vX, XW + X_B)
    if not NL: P.stamp()
    def reads1(par, i, second):
        oa = par * X1 + i * WSTR + (128 if second else 0)
        a(f"ds_read_b32 v{vA}, v{bA} offset:{oa}")
        a(f"ds_read_u8 v{vE}, v{bE} offset:{oa+3}")
        a(f"ds_read_u8 v{vE+1}, v{bE} offset:{oa+19}")
    def reads2(par, i, second):
        oc = (par * X1 + i * WSTR + (128 if second else 0)) // 2
        a(f"v_add_u32 v{vE}, v{vE}, v{vL}")
        a(f"v_add_u32 v{vE+1}, v{vE+1}, v{vL}")
        a(f"ds_read_b64_tr_b16 v[{vM}:{vM+1}], v{vE} offset:{LUT}")
        a(f"ds_read_b64_tr_b16 v[{vM+2}:{vM+3}], v{vE+1} offset:{LUT}")
        a(f"ds_read_b128 v[{vC}:{vC+3}], v{bC} offset:{oc}")
    def addr():
        a(f"v_mad_u32_u24 v{vA}, v{vA}, 32, v{vH}")
    def transpose(g):
        a(f"ds_write_b128 v{vTw}, v[{g}:{g+3}]")
        a(f"ds_read_b64_tr_b16 v[{A2}:{A2+1}], v{vTr}")
        a(f"ds_read_b64_tr_b16 v[{A2+2}:{A2+3}], v{vTr} offset:512")
    def mfma2(i, b):
        c = ACC + 4 * i
        a(f"v_mfma_f32_16x16x32_bf16 v[{c}:{c+3}], v[{A2}:{A2+3}], v[{b}:{b+3}], v[{c}:{c+3}]")
    NS = 17
    for par in range(2):
        a(f"P2_round{par}:")
        def spin():
            a(f"P2_cw{par}:")
            a(f"ds_read_b32 v{vX+1}, v0 offset:{X_PW - X_CW}")
            reads1(par, 0, False)
            a(f"ds_read_b32 v{vX}, v{vCA} offset:{1024*par}")
            a("s_waitcnt lgkmcnt(4)")
            a(f"v_cmp_ge_u32 vcc, s48, v{vX+1}")
            a(f"v_and_b32 v{vX+1}, 0x3fffffff, v{vX+1}")
            a(f"s_cbranch_vccz P2_cg{par}")
            a(f"s_sleep {o.csleep}")
            guard(a)
            a(f"s_branch P2_cw{par}")
            a(f"P2_cg{par}:")
        twait(spin)
        if o.prof == 1:
            a("s_memrealtime s[58:59]")
            a("s_waitcnt lgkmcnt(0)")
            a("s_mov_b32 m0, s48")
            a("v_writelane_b32 v14, s58, m0")
            a("s_add_u32 m0, s48, 16")
            a("v_writelane_b32 v14, s56, m0")
        a(f"v_cmp_lt_u32 vcc, s48, v{vX+1}")
        a(f"s_cbranch_vccz P2_drain{1-par}")
        if o.prof == 1 and par == 0:
            a("s_cmp_lg_u32 s48, 0"); a("s_cbranch_scc1 P2_nostamp"); P.stamp(); a("P2_nostamp:")
        if par: a(f"v_add_u32 v{vX+2}, {X1}, v{vCI}")
        a(f"ds_write_b32 v{vCA}, v{vX+2 if par else vCI} offset:{1024*par}")
        a("s_add_u32 s48, s48, 1")
        for i in range(NS):
            p = (par * NS + i) % 2
            g = G0 + 4 * p; b = B0 + 4 * p
            a("s_waitcnt lgkmcnt(0)")
            if i == NS - 1: a(f"v_or_b32 v{vA}, s84, v{vA}")
            addr()
            a("s_waitcnt vmcnt(1)")
            transpose(g)
            a(f"buffer_load_dwordx4 v[{g}:{g+3}], v{vA}, s[8:11], 0 offen {o.gfl}")
            reads2(par, i, False)
            if i + 1 < NS: reads1(par, i + 1, False)
            if i == 0: a(f"v_cmp_le_u32 s[90:91], s85, v{vX}")
            a(f"s_waitcnt lgkmcnt({6 if i + 1 < NS else 3})")
            mfma2((i - 2) % NS, b)
            a(f"s_bitcmp1_b32 s90, {i}")
            a(f"s_waitcnt lgkmcnt({3 if i + 1 < NS else 0})")
            for u in range(4): a(f"v_and_b32 v{b+u}, v{vM+u}, v{vC+u}")
            a(f"s_cbranch_scc1 P2_slow{par}_{i}")
            a(f"P2_back{par}_{i}:")
            if par == 0 and i in lstep:
                a(f"s_cmp_eq_u32 s42, {lstep[i][1] + 1}")
                a(f"s_cbranch_scc1 P2_lazy{i}")
                a(f"P2_lazyb{i}:")
        if par == 0 and NL:
            a("s_cmp_eq_u32 s42, 0")
            a("s_cbranch_scc1 P2_nolz")
            a("s_mov_b32 s42, 0")
            a("s_waitcnt vmcnt(0)")
            lds_count(a, vX, XW + X_B)
            a("P2_nolz:")
        for u in range(4): a(f"v_mov_b32 v{vX+u}, {MARK}")
        for k in range(4):
            if k == 3: a("s_mov_b64 exec, s[92:93]")
            a(f"ds_write_b128 v{bR}, v[{vX}:{vX+3}] offset:{par*X1+1024*k}")
        a("s_mov_b64 exec, 1")
        a(f"v_mov_b32 v{vA}, 1")
        a("s_waitcnt lgkmcnt(0)")
        a(f"ds_add_rtn_u32 v{vA}, v0, v{vA} offset:{4*par}")
        a("s_lshr_b32 s40, s48, 1")
        a("s_mul_i32 s40, s40, 12")
        a("s_waitcnt lgkmcnt(0)")
        a(f"v_readfirstlane_b32 s41, v{vA}")
        a("s_mov_b64 exec, -1")
        a("s_sub_u32 s41, s41, s40")
        a("s_setprio 0")
        a("s_cmp_lt_u32 s41, 4")
        a(f"s_cbranch_scc1 P2_round{1-par}")
        a("s_setprio 1")
        a("s_cmp_lt_u32 s41, 8")
        a(f"s_cbranch_scc1 P2_round{1-par}")
        a("s_setprio 2")
        if par: a("s_branch P2_round0")
    for i in sorted(lstep):
        a(f"P2_lazy{i}:")
        lazy(lstep[i][0])
        a(f"s_branch P2_lazyb{i}")
    for par in range(2):
        for i in range(NS):
            a(f"P2_slow{par}_{i}:")
            reads1(par, i, True)
            a("s_waitcnt lgkmcnt(0)")
            a("s_mov_b64 exec, s[94:95]")
            a(f"v_mov_b32 v{vA}, {MARK}")
            a("s_mov_b64 exec, -1")
            addr()
            a(f"buffer_load_dwordx4 v[{vX}:{vX+3}], v{vA}, s[8:11], 0 offen")
            reads2(par, i, True)
            if i + 1 < NS: reads1(par, i + 1, False)
            a(f"s_waitcnt lgkmcnt({3 if i + 1 < NS else 0})")
            for u in range(4): a(f"v_and_b32 v{vM+u}, v{vM+u}, v{vC+u}")
            a("s_waitcnt vmcnt(0)")
            transpose(vX)
            a("s_waitcnt lgkmcnt(0)")
            mfma2(i, vM)
            a(f"s_branch P2_back{par}_{i}")
    vLo = 14; vSo = 15; vRb = 12; vWt = 13
    mreg = [0, 2, 4, 6, 8, 10, 16, 18, 20, 22, 24, 26, ACC, ACC + 2, ACC + 4, ACC + 6, ACC + 8]
    NPRE = 12
    def mload(i):
        a(f"buffer_load_dwordx2 v[{mreg[i]}:{mreg[i]+1}], v{vLo}, s[12:15], 0 offen")
        a(f"v_add_u32 v{vLo}, {512*32}, v{vLo}")
    for par in (1, 0):
        a(f"P2_drain{par}:")
        a("s_waitcnt lgkmcnt(0)")
        if par == 1: P.stamp()
        elif o.prof == 1: P.n -= 1; P.stamp()
        if o.prof == 1:
            srd(a, 52, 32, 0x100000, WS_PROF)
            a("s_lshl_b32 s56, s2, 4")
            a("s_add_u32 s56, s56, s3")
            a("s_lshl_b32 s56, s56, 7")
            a("v_lshrrev_b32 v12, 1, v13")
            a("v_add_u32 v12, s56, v12")
            a("s_bfm_b64 exec, 32, 0")
            a("buffer_store_dword v14, v12, s[52:55], 0 offen")
            a("s_mov_b64 exec, -1")
        a(f"v_mov_b32 v{vLo}, v{vSo}")
        for i in range(NPRE): mload(i)
        a(f"s_mov_b32 s51, {RB_AT[1 - par]}")
        for i in (NS, NS + 1):
            p = (par * NS + i) % 2
            a(f"s_waitcnt vmcnt({NS + 1 - i + NPRE})")
            transpose(G0 + 4 * p)
            a("s_waitcnt lgkmcnt(0)")
            mfma2(i - 2, B0 + 4 * p)
        if par == 1: a("s_branch P2_epi")
    a("P2_epi:")
    WS_ = 32; WR_ = 36; WU = 40; WD = 42; RB = 44; SS = 48; GG = 52; UU = 56; ZZ = 28
    a("s_lshl_b32 s47, s47, 3")
    a("s_add_u32 s47, s47, s44")
    a("s_lshl_b32 s47, s47, 9")
    a("s_add_u32 s51, s51, s47")
    a(f"v_add_u32 v{vRb}, s51, v{vWt}")
    a(f"v_add_u32 v{vWt}, {WT}, v{vWt}")
    lds_wait(a, UU, XW + X_R, 4, "r", 1)
    for k in range(6): a(f"ds_read_b64 v[{WS_+2*k}:{WS_+2*k+1}], v{vWt} offset:{512*k}")
    def rbread(k): a(f"ds_read_b64 v[{RB+2*(k%2)}:{RB+2*(k%2)+1}], v{vRb} offset:{512*k}")
    rbread(0); rbread(1)
    vm = [("m", i) for i in range(NPRE)]
    def mf(d, w, i):
        h = 2 * (i % 2); r = RB + 2 * ((i // 2) % 2)
        a(f"v_mfma_f32_16x16x16_bf16 v[{d}:{d+3}], v[{w+h}:{w+h+1}], v[{r}:{r+1}], 0")
    def pack(i):
        c0 = ACC + 4 * i
        for u in range(2): a(f"v_cvt_pk_bf16_f32 v{c0+u}, v{c0+2*u}, v{c0+2*u+1}")
    def stage_a(i):
        c0 = ACC + 4 * i
        a(f"v_mfma_f32_16x16x16_bf16 v[{ZZ}:{ZZ+3}], v[{WD}:{WD+1}], v[{c0}:{c0+1}], 0")
        mf(SS, WS_, i)
    def stage_b(i):
        c0 = ACC + 4 * i
        if o.pk:
            for c in (0, 2): a(f"v_pk_mul_f32 v[{c0+c}:{c0+c+1}], v[{SS+c}:{SS+c+1}], v[{ZZ+c}:{ZZ+c+1}]")
        else:
            for c in range(4): a(f"v_mul_f32 v{c0+c}, v{SS+c}, v{ZZ+c}")
        pack(i)
        if i + 1 < NS: pack(i + 1)
        mf(GG, WR_, i)
        if i % 2 == 1 and i // 2 + 2 <= 8: rbread(i // 2 + 2)
        a(f"v_mfma_f32_16x16x16_bf16 v[{UU}:{UU+3}], v[{WU}:{WU+1}], v[{c0}:{c0+1}], 0")
        if i + 1 < NS:
            if i % 2 == 1: a(f"s_waitcnt lgkmcnt({1 if i // 2 + 2 <= 8 else 0})")
            stage_a(i + 1)
    def stage_c(i):
        c0 = ACC + 4 * i; m = mreg[i]
        a(f"s_waitcnt vmcnt({len(vm) - 1 - vm.index(('m', i))})")
        a(f"v_lshlrev_b32 v{c0}, 16, v{m}")
        a(f"v_and_b32 v{c0+1}, 0xffff0000, v{m}")
        a(f"v_lshlrev_b32 v{c0+2}, 16, v{m+1}")
        a(f"v_and_b32 v{c0+3}, 0xffff0000, v{m+1}")
        if o.pk:
            for c in (0, 2): a(f"v_pk_fma_f32 v[{c0+c}:{c0+c+1}], v[{UU+c}:{UU+c+1}], v[{GG+c}:{GG+c+1}], v[{c0+c}:{c0+c+1}]")
        else:
            for c in range(4): a(f"v_fma_f32 v{c0+c}, v{UU+c}, v{GG+c}, v{c0+c}")
        for u in range(2): a(f"v_cvt_pk_bf16_f32 v{m+u}, v{c0+2*u}, v{c0+2*u+1}")
        a(f"buffer_store_dwordx2 v[{m}:{m+1}], v{vSo}, s[28:31], 0 offen {o.ost}")
        a(f"v_add_u32 v{vSo}, {512*32}, v{vSo}")
        vm.append(("s", i))
        for k in (NPRE + 2 * i, NPRE + 2 * i + 1):
            if k < NS: mload(k); vm.append(("m", k))
    pack(0)
    a("s_waitcnt lgkmcnt(0)")
    stage_a(0)
    stage_b(0)
    for i in range(NS):
        if i == NS - 1:
            a("s_cmp_lt_u32 s50, 17")
            a("s_cbranch_scc1 P2_fin")
        stage_c(i)
        if i + 1 < NS: stage_b(i + 1)
    a("P2_fin:")
    if o.prof:
        P.stamp()
        a("s_waitcnt vmcnt(0)")
        P.stamp(True)
        P.dump(32, 0x80000, 34, 3)
    a("P2_end:")
    a("s_endpgm")

KD = """.amdhsa_kernel {name}
  .amdhsa_next_free_vgpr 128
  .amdhsa_next_free_sgpr 100
  .amdhsa_accum_offset 128
  .amdhsa_group_segment_fixed_size 0
  .amdhsa_kernarg_size 112
  .amdhsa_user_sgpr_count 2
  .amdhsa_user_sgpr_kernarg_segment_ptr 1
  .amdhsa_system_sgpr_workgroup_id_x 1
  .amdhsa_float_denorm_mode_32 3
.end_amdhsa_kernel
"""

NAME = "gather_scatter__molecular_angular_gemnet__graph_kernel"

def build(o):
    GUARD[0] = 1000000 if o.maxr else 0
    a = Asm(); P = Prof(a, o.prof, 1)
    xw, stg = gen_p1(o, a, P); gen_p2(o, a, P, xw, stg)
    ref = open("gather_scatter__molecular_angular_gemnet__graph.s.ref").read().split("\n")
    head = [l for l in ref if l.startswith(";") and "launch geometry" not in l and "Harness parses" not in l and "@launch" not in l]
    s = "\n".join(head) + "\n"
    s += "; Part 1 partitions the triplets by (input slice, output bin); part 2 gathers / segment-sums with MFMA.\n"
    s += f"; @launch grid=(256,1,1) block=(1024,1,1) lds={xw + 64}\n"
    s += '.amdgcn_target "amdgcn-amd-amdhsa--gfx950"\n.text\n'
    s += f".globl {NAME}\n.p2align 8\n.type {NAME},@function\n{NAME}:\n" + a.finish()
    s += '.section .rodata,"a"\n.p2align 6\n' + KD.format(name=NAME)
    return s

def parser():
    p = argparse.ArgumentParser()
    p.add_argument("-S", type=int, default=11)
    for k, d in dict(prof=0, maxr=0, dstep=4, asplit=12, sw=1, psleep=2, csleep=2, gsleep=24, maxpoll=1000000, eprio=0, nd=4, pfs=14, pfd=2, own=1, swo=36000, swd=0, stag=1, nornd=0, pp=1, nb=5, pk=1, sw0=4, pf0=3, pfw=0, pfn=5, ldp=1, spr=2, f0=0, cpf=14, nl=4, lstep=3, reli=5, fuse=1, cmap=2, rot=0).items():
        p.add_argument("--" + k, type=int, default=d)
    p.add_argument("--p1_ld", default="nt")
    p.add_argument("--p1_st", default="sc1")
    p.add_argument("--ost", default="nt")
    p.add_argument("--gfl", default="")
    p.add_argument("-o", default="gather_scatter__molecular_angular_gemnet__graph.s")
    return p

if __name__ == "__main__":
    o = parser().parse_args()
    open(o.o, "w").write(build(o))
```

```python
import sys, argparse
from asmlib import Asm

E = 800000; T = 12800000
NT = 256
CHA = 25088
TILE_N = 50000
TILE_BYTES = 300032
WS_DESC = 0x5000000
WS_PROF = 0x6000000
CAP = 56
WSTR = CAP * 4
MARK = 0x00100000
NG = 196
CL = E // 8
WREG = 9472

GUARD = [0]
def guard(a):
    if GUARD[0]:
        a("s_add_u32 s99, s99, 1")
        a(f"s_cmp_gt_u32 s99, {GUARD[0]}")
        a("s_cbranch_scc1 P2_end")

def slicing(o):
    B = (o.f0 << 26) // 100
    K = ((o.S << 26) - B) // E
    return K, B

def srd(a, d, base, size, off=None):
    if off is None:
        a(f"s_mov_b32 s{d}, s{base}")
        a(f"s_mov_b32 s{d+1}, s{base+1}")
    else:
        a(f"s_add_u32 s{d}, s{base}, {off}")
        a(f"s_addc_u32 s{d+1}, s{base+1}, 0")
    a(f"s_mov_b32 s{d+2}, {size}")
    a(f"s_mov_b32 s{d+3}, 0x20000")

class Prof:
    def __init__(self, a, on, fuse=0): self.a = a; self.on = on; self.n = 0; self.fuse = fuse
    def stamp(self, key=False):
        if not self.on or (self.on == 2 and not key): return
        a = self.a
        a("s_waitcnt lgkmcnt(0)")
        a("s_memtime s[58:59]")
        a("s_waitcnt lgkmcnt(0)")
        a(f"s_mov_b32 s{60+self.n}, s58")
        a("s_memrealtime s[58:59]")
        a("s_waitcnt lgkmcnt(0)")
        a(f"s_mov_b32 s{72+self.n}, s58")
        self.n += 1
    def dump(self, wsreg, region, vt, wave_sreg):
        if not self.on: return
        a = self.a
        srd(a, 52, wsreg, 0x100000, WS_PROF + region)
        a(f"s_lshl_b32 s56, s2, 4")
        a(f"s_add_u32 s56, s56, s{wave_sreg}")
        a(f"s_lshl_b32 s56, s56, 7")
        a("s_mov_b64 exec, 1")
        for i in range(self.n):
            a(f"v_mov_b32 v{vt}, s56")
            a(f"v_mov_b32 v{vt+1}, s{60+i}")
            a(f"buffer_store_dword v{vt+1}, v{vt}, s[52:55], 0 offen offset:{4*i}")
            a(f"v_mov_b32 v{vt+1}, s{72+i}")
            a(f"buffer_store_dword v{vt+1}, v{vt}, s[52:55], 0 offen offset:{64+4*i}")
        a(f"v_mov_b32 v{vt+1}, s71")
        a(f"buffer_store_dword v{vt+1}, v{vt}, s[52:55], 0 offen offset:124")
        a("s_waitcnt vmcnt(0)")
        a("s_mov_b64 exec, -1")

def gen_p1(o, a, P):
    S = o.S
    NK = S * 256
    KSL, BSL = slicing(o)
    CN = 16; SCR = CN + NK * 4; STG = SCR + 64; XW = STG + CHA * 6
    W0 = 4; KP0 = 53; C0 = 78; TO = 103; T0 = 104
    ld = o.p1_ld; st = o.p1_st
    def issue_idx(r):
        b = C0 + 4 * (r % 6); w = W0 + 4 * r
        a(f"buffer_load_dwordx4 v[{b}:{b+3}], v1, s[12:15], s36 offen {ld}")
        a(f"buffer_load_dwordx4 v[{w}:{w+3}], v1, s[8:11], s36 offen {ld}")
        a(f"s_add_u32 s36, s36, 16384")
    def issue_ang(r):
        b = C0 + 2 * r
        a(f"buffer_load_dwordx2 v[{b}:{b+1}], v2, s[16:19], s37 offen {ld}")
        a(f"s_add_u32 s37, s37, 8192")
    DP = o.ldp
    a("s_load_dwordx2 s[8:9], s[0:1], 8")
    a("s_load_dwordx2 s[12:13], s[0:1], 16")
    a("s_cmp_ge_u32 s2, 256")
    a("s_cbranch_scc1 P2_end")
    if o.cpf:
        a("s_getpc_b64 s[40:41]")
        a("P1_pc:")
        a("s_lshr_b32 s45, s2, 3")
        a(f"s_mulk_i32 s45, {o.cpf}")
        a(f"s_mov_b32 s42, P2_end-P1_pc")
        a("s_mov_b32 s43, 0x20000")
        a(f"v_add_lshl_u32 v{T0+23}, v0, s45, 7")
        a(f"v_cmp_gt_u32 vcc, {o.cpf}, v0")
        a("s_and_b64 exec, exec, vcc")
        a("s_cbranch_execz P1_nopf")
        a(f"buffer_load_dword v{T0+23}, v{T0+23}, s[40:43], 0 offen")
        a("P1_nopf:")
        a("s_mov_b64 exec, -1")
    a(f"s_mov_b32 s10, {T * 4}")
    a("s_mov_b32 s11, 0x20000")
    a("s_mov_b64 s[14:15], s[10:11]")
    a(f"s_mul_i32 s36, s2, {12 * 16384}")
    a("v_lshlrev_b32 v1, 4, v0")
    a("s_waitcnt lgkmcnt(0)")
    P.stamp(True)
    for r in range(DP): issue_idx(r)
    if GUARD[0]: a("s_mov_b32 s99, 0")
    a("s_load_dwordx2 s[16:17], s[0:1], 32")
    a("s_load_dwordx2 s[30:31], s[0:1], 48")
    a("s_load_dwordx2 s[32:33], s[0:1], 104")
    a("s_load_dwordx2 s[94:95], s[0:1], 96")
    a("s_load_dwordx2 s[48:49], s[0:1], 0")
    a("s_load_dwordx2 s[86:87], s[0:1], 88")
    a("v_lshlrev_b32 v2, 3, v0")
    a("v_mov_b32 v3, 1")
    for i in range(4): a(f"v_mov_b32 v{T0+i}, 0")
    a(f"ds_write_b128 v1, v[{T0}:{T0+3}]")
    a(f"v_lshrrev_b32 v{T0+4}, 6, v0")
    a(f"v_readfirstlane_b32 s3, v{T0+4}")
    a(f"s_mul_i32 s34, s2, 848")
    a(f"s_add_u32 s34, s34, {3072*4096}")
    a(f"v_add_u32 v109, s34, v0")
    a(f"v_cmp_gt_u32 vcc, 848, v0")
    a(f"v_lshlrev_b32 v110, 2, v109")
    a(f"v_lshlrev_b32 v109, 1, v109")
    a(f"v_cndmask_b32 v110, 2.0, v110, vcc")
    a(f"v_cndmask_b32 v109, 2.0, v109, vcc")
    a(f"buffer_load_dword v{TO}, v110, s[12:15], 0 offen {ld}")
    a(f"buffer_load_dword v{W0+48}, v110, s[8:11], 0 offen {ld}")
    a(f"s_mov_b32 s18, {T * 2}")
    a("s_mov_b32 s19, 0x20000")
    a(f"s_mul_i32 s37, s2, {12 * 8192}")
    a("s_waitcnt lgkmcnt(0)")
    a("s_load_dword s35, s[30:31], 0")
    a(f"buffer_load_ushort v{C0+24}, v109, s[16:19], 0 offen {ld}")
    a("s_mov_b32 s38, 0x7c00")
    MG = -(-(1 << 19) // S)
    assert all((n * MG) >> 19 == n // S for n in range(4096))
    a(f"s_mov_b32 s40, {(-(1024*S - 4)) & 0xffffffff}")
    for j in range(4):
        t = T0 + 16 + j
        a(f"v_lshl_add_u32 v{t}, v0, 2, {j}")
        a(f"v_mul_u32_u24 v{T0}, {MG}, v{t}")
        a(f"v_lshrrev_b32 v{T0}, 19, v{T0}")
        a(f"v_lshlrev_b32 v{t}, 10, v{t}")
        a(f"v_mad_i32_i24 v{t}, v{T0}, s40, v{t}")
        a(f"v_add_u32 v{t}, {STG}, v{t}")
    srd(a, 20, 32, NT * NT * S * 4, WS_DESC)
    srd(a, 24, 94, 256)
    a("s_mov_b32 s44, 0")
    a(f"s_mov_b32 s39, {KSL}")
    a(f"v_mov_b32 v{T0+22}, {(BSL - (CL * KSL if o.own == 1 else 0)) & 0xffffffff}")
    a(f"s_mov_b32 s5, {CL}")
    a(f"v_mov_b32 v{T0+20}, 0x7c")
    a(f"v_mov_b32 v{T0+21}, 0x0ff00000")
    a("s_barrier")
    KX = -(-(1 << 28) // (CL // 16))
    assert all(((k * (CL // 16) + d) * KX) >> 28 == (k * (CL // 16) + d) // (CL // 16) for k in range(1, 9) for d in (-1, 0) if k < 8 or d < 0)
    def key(O, W, t):
        x, xb, d, n = t, t + 1, t + 2, t + 3
        a(f"v_and_b32 v{x}, -16, v{O}")
        a(f"v_mul_hi_u32_u24 v{x}, {KX}, v{x}")
        a(f"v_mul_u32_u24 v{xb}, {CL}, v{x}")
        a(f"v_sub_u32 v{d}, v{W}, v{xb}")
        a(f"v_sub_u32 v{O}, v{O}, v{xb}")
        if o.own == 1:
            a(f"v_cmp_gt_u32 s[42:43], s5, v{d}")
            a(f"v_ashrrev_i32 v{n}, 31, v{d}")
            a(f"v_add_u32 v{d}, {8 * CL}, v{d}")
            a(f"v_and_b32 v{n}, {CL}, v{n}")
            a(f"v_add_u32 v{n}, v{n}, v{W}")
            a(f"v_cndmask_b32 v{n}, v{n}, v{d}, s[42:43]")
        elif o.own == 2:
            a(f"v_subrev_u32 v{d}, {CL}, v{d}")
            a(f"v_add_u32 v{n}, {E}, v{d}")
            a(f"v_min_u32 v{n}, v{n}, v{d}")
        else:
            a(f"v_mov_b32 v{n}, v{W}")
        a(f"v_lshlrev_b32 v{xb}, 11, v{O}")
        a(f"v_lshl_or_b32 v{W}, v{O}, 28, v{W}")
        a(f"v_mad_u32_u24 v{n}, v{n}, s39, v{T0+22}")
        a(f"v_lshrrev_b32 v{O}, 2, v{O}")
        a(f"v_bitop3_b32 v{W}, v{xb}, v{T0+21}, v{W} bitop3:0xea")
        a(f"v_and_b32_sdwa v{n}, v{n}, s38 dst_sel:DWORD dst_unused:UNUSED_PAD src0_sel:WORD_1 src1_sel:DWORD")
        a(f"v_lshl_or_b32 v{n}, v{x}, 7, v{n}")
        a(f"v_bitop3_b32 v{O}, v{O}, v{T0+20}, v{n} bitop3:0xea")
    for r in range(12):
        a(f"s_waitcnt vmcnt({min(2*DP-2, 2*(11-r)) + (3 if r < DP else 0)})")
        if DP < 6 and r + DP < 12: issue_idx(r + DP)
        if r == DP:
            key(TO, W0 + 48, T0)
            a(f"v_cndmask_b32 v{KP0+24}, 2.0, v{TO}, vcc")
            a(f"ds_add_u32 v{KP0+24}, v3 offset:{CN}")
        b = C0 + 4 * (r % 6)
        for j in range(4):
            key(b + j, W0 + 4 * r + j, T0 + 4 * j)
            a(f"ds_add_u32 v{b+j}, v3 offset:{CN}")
        a(f"v_lshl_or_b32 v{KP0+2*r}, v{b+1}, 16, v{b}")
        a(f"v_lshl_or_b32 v{KP0+2*r+1}, v{b+3}, 16, v{b+2}")
        if DP == 6 and r < 6: issue_idx(r + 6)
    a("s_waitcnt lgkmcnt(0)")
    a("s_barrier")
    P.stamp()
    c = T0; x = T0 + 4; tot = T0 + 5; y = T0 + 6
    a(f"s_cmp_ge_u32 s3, {S}")
    a("s_cbranch_scc1 P1_scan1")
    a(f"ds_read_b128 v[{c}:{c+3}], v1 offset:{CN}")
    a("s_waitcnt lgkmcnt(0)")
    a(f"v_add_u32 v{c+1}, v{c}, v{c+1}")
    a(f"v_add_u32 v{c+2}, v{c+1}, v{c+2}")
    a(f"v_add_u32 v{c+3}, v{c+2}, v{c+3}")
    a(f"v_mov_b32 v{x}, v{c+3}")
    for sh in (1, 2, 4, 8):
        a(f"v_add_u32_dpp v{x}, v{x}, v{x} row_shr:{sh} row_mask:0xf bank_mask:0xf bound_ctrl:1")
    a(f"v_add_u32_dpp v{x}, v{x}, v{x} row_bcast:15 row_mask:0xa bank_mask:0xf")
    a(f"v_add_u32_dpp v{x}, v{x}, v{x} row_bcast:31 row_mask:0xc bank_mask:0xf")
    a(f"v_readlane_b32 s40, v{x}, 63")
    a(f"s_lshl_b32 s41, s3, 2")
    a(f"v_mov_b32 v{y}, s41")
    a(f"v_mov_b32 v{y+1}, s40")
    a(f"ds_write_b32 v{y}, v{y+1} offset:{SCR}")
    a("s_waitcnt lgkmcnt(0)")
    a("P1_scan1:")
    a("s_barrier")
    a(f"s_cmp_ge_u32 s3, {S}")
    a("s_cbranch_scc1 P1_scan2")
    a(f"v_and_b32 v{y}, 63, v0")
    a(f"v_lshlrev_b32 v{y+1}, 2, v{y}")
    a(f"ds_read_b32 v{y+2}, v{y+1} offset:{SCR}")
    a(f"v_cmp_gt_u32 s[42:43], s3, v{y}")
    a(f"v_sub_u32 v{x}, v{x}, v{c+3}")
    a("s_waitcnt lgkmcnt(0)")
    a(f"v_cndmask_b32 v{y+2}, 0, v{y+2}, s[42:43]")
    for sh in (1, 2, 4, 8):
        a(f"v_add_u32_dpp v{y+2}, v{y+2}, v{y+2} row_shr:{sh} row_mask:0xf bank_mask:0xf bound_ctrl:1")
    a(f"v_readlane_b32 s40, v{y+2}, 15")
    s0 = T0 + 12
    a(f"v_add_u32 v{s0}, s40, v{x}")
    for j in range(3): a(f"v_add_u32 v{s0+1+j}, v{s0}, v{c+j}")
    a(f"ds_write_b128 v1, v[{s0}:{s0+3}] offset:{CN}")
    a(f"ds_write_b128 v1, v[{s0}:{s0+3}] offset:{STG}")
    a(f"v_mov_b32 v{c}, {STG + NK * 4}")
    a(f"v_mov_b32 v{c+1}, {TILE_N}")
    a(f"ds_write_b32 v{c}, v{c+1}")
    a("s_waitcnt lgkmcnt(0)")
    a("P1_scan2:")
    a("s_barrier")
    a(f"s_cmp_ge_u32 s3, {S}")
    a("s_cbranch_scc1 P1_nodesc")
    for j in range(4):
        a(f"ds_read2_b32 v[{T0+2*j}:{T0+2*j+1}], v{T0+16+j} offset0:0 offset1:1")
    a(f"s_mul_i32 s40, s2, {256*S*4}")
    lds_count(a, T0 + 8, 4)
    for j in range(4): a(f"v_lshl_or_b32 v{T0+12+j}, v{T0+2*j+1}, 16, v{T0+2*j}")
    a(f"buffer_store_dwordx4 v[{T0+12}:{T0+15}], v1, s[20:23], s40 offen {st}")
    a("P1_nodesc:")
    a(f"s_mul_i32 s40, s3, {WREG - 1024}")
    a(f"s_add_u32 s40, s40, {9*1024}")
    a(f"v_add_u32 v{TO}, s40, v1")
    srd(a, 8, 48, E * 32)
    a(f"s_mul_i32 s41, s2, {o.pfn * 64}")
    a(f"s_sub_u32 s41, s41, {o.pfw * 64}")
    a("v_add_lshl_u32 v1, v0, s41, 7")
    if o.pp & 1: a("s_setprio 3")
    def atomics(n):
        t = T0 + 4 * (n % 2)
        if n == 12:
            a(f"ds_add_rtn_u32 v{t}, v{KP0+24}, v3 offset:{CN}"); return 1
        for j in range(4):
            kp = KP0 + 2 * n + j // 2
            if j % 2 == 0: a(f"v_and_b32 v{t+j}, 0xffff, v{kp}")
            else: a(f"v_lshrrev_b32 v{t+j}, 16, v{kp}")
            a(f"ds_add_rtn_u32 v{t+j}, v{t+j}, v3 offset:{CN}")
        return 4
    a(f"s_cmp_ge_u32 s3, {o.asplit}")
    a("s_cbranch_scc1 P1_ang1")
    for n in range(12): issue_ang(n)
    a("P1_ang1:")
    atomics(0)
    for n in range(13):
        k = atomics(n + 1) if n < 12 else 0
        a(f"s_waitcnt lgkmcnt({k})")
        t = T0 + 4 * (n % 2); u = T0 + 8
        if n < 12:
            a(f"v_lshl_or_b32 v{KP0+2*n}, v{t+1}, 16, v{t}")
            a(f"v_lshl_or_b32 v{KP0+2*n+1}, v{t+3}, 16, v{t+2}")
        else:
            a(f"v_mov_b32 v{u}, 0xffff")
            a(f"v_cndmask_b32 v{KP0+24}, v{u}, v{t}, vcc")
    a(f"s_cmp_lt_u32 s3, {o.asplit}")
    a("s_cbranch_scc1 P1_ang2")
    for n in range(12): issue_ang(n)
    a("P1_ang2:")
    a("s_lshl_b32 s35, s35, 16")
    a("s_cmp_eq_u32 s35, 1.0")
    a("s_cbranch_scc1 P1_f1")
    a("s_waitcnt vmcnt(0)")
    for n in range(25):
        cr = C0 + n; t = T0
        a(f"v_lshlrev_b32 v{t}, 16, v{cr}")
        a(f"v_and_b32 v{t+1}, 0xffff0000, v{cr}")
        a(f"v_mul_f32 v{t}, s35, v{t}")
        a(f"v_mul_f32 v{t+1}, s35, v{t+1}")
        a(f"v_cvt_pk_bf16_f32 v{cr}, v{t}, v{t+1}")
    a("P1_f1:")
    lds_wait(a, T0, 4, S, "q", 0)
    def addrs(n, h, u, base):
        a(f"v_mad_u32_u16 v{u}, v{KP0+n}, 6, {base}" + (" op_sel:[1,0,0,0]" if h else ""))
        a(f"v_and_b32 v{u+1}, 2, v{u}")
        a(f"v_sub_u32 v{u}, v{u}, v{u+1}")
        a(f"v_sub_u32 v{u+1}, v{u}, v{u+1}")
    for n in range(25):
        cr = C0 + n; t = T0 + 6 * (n % 2)
        if o.pp & 1 and n in (0, 9, 17): a(f"s_setprio {2 - n // 8}")
        if o.pf0 == 3:
            if n == 0: a("s_waitcnt vmcnt(0)")
            for w in range(o.pfn):
                if o.pfs + (w * o.pfd) // 2 == n:
                    a(f"s_cmp_lg_u32 s3, {o.pfw + w}")
                    a(f"s_cbranch_scc1 P1_npf{w}")
                    a("buffer_load_dword v1, v1, s[8:11], 0 offen")
                    a(f"P1_npf{w}:")
        elif n % 2 == 0 and n < 24: a(f"s_waitcnt vmcnt({11 - n // 2})")
        if n == 0:
            a(f"s_cmp_ge_u32 s3, {S}")
            a("s_cbranch_scc1 P1_noe")
            a("s_waitcnt vmcnt(0)")
            lds_ticket(a, 2, 8)
            a(f"s_cmp_lg_u32 s40, {S-1}")
            a("s_cbranch_scc1 P1_noe")
            arrive(a, 2, LV_E)
            a("s_mov_b32 s44, 1")
            a("P1_noe:")
        if n == 14:
            a("s_cmp_eq_u32 s44, 0")
            a("s_cbranch_scc1 P2_norele")
            release(a, 2, LV_E, "e")
        a(f"v_lshlrev_b32 v{t}, 16, v{cr}")
        a(f"v_and_b32 v{t+1}, 0xffff0000, v{cr}")
        a(f"v_mul_f32 v{t}, 0.15915494, v{t}")
        a(f"v_mul_f32 v{t+1}, 0.15915494, v{t+1}")
        a(f"v_fract_f32 v{t}, v{t}")
        a(f"v_fract_f32 v{t+1}, v{t+1}")
        a(f"v_cos_f32 v{t}, v{t}")
        a(f"v_cos_f32 v{t+1}, v{t+1}")
        for h in range(2 if n < 24 else 1):
            u = t + 2 + 2 * h
            addrs(n, h, u, 0)
            a(f"ds_write_b32 v{u}, v{W0+2*n+h} offset:{STG}")
        a(f"v_cvt_pk_bf16_f32 v{cr}, v{t}, v{t+1}")
        a(f"ds_write_b16 v{t+3}, v{cr} offset:{STG+8}")
        if n < 24: a(f"ds_write_b16_d16_hi v{t+5}, v{cr} offset:{STG+8}")
    a(f"s_mul_i32 s40, s2, {TILE_BYTES}")
    srd(a, 20, 32, CHA * 6, "s40")
    a(f"v_subrev_u32 v2, {9*1024}, v{TO}")
    a("s_mov_b32 s44, 0")
    if o.pf0 == 2:
        a(f"s_sub_u32 s40, s3, {o.pfw}")
        a(f"s_cmp_ge_u32 s40, {o.pfn}")
        a("s_cbranch_scc1 P1_nopf0")
        a("buffer_load_dword v1, v1, s[8:11], 0 offen")
        a("P1_nopf0:")
    a("s_waitcnt lgkmcnt(0)")
    a("s_barrier")
    P.stamp()
    a(f"s_cmp_lg_u32 s3, 15")
    a("s_cbranch_scc1 P1_noclr")
    a(f"v_and_b32 v3, 15, v0")
    a(f"v_lshlrev_b32 v3, 2, v3")
    a(f"v_add_u32 v3, {XW}, v3")
    a(f"v_mov_b32 v{T0}, 0")
    a(f"ds_write_b32 v3, v{T0}")
    a("P1_noclr:")
    def rd(k):
        t = T0 + 4 * (k % 6)
        a(f"ds_read_b128 v[{t}:{t+3}], v2 offset:{STG + 1024 * (9 - k)}")
    def store(k):
        t = T0 + 4 * (k % 6)
        if k == 0: a("s_mov_b64 exec, 0xffff")
        a(f"buffer_store_dwordx4 v[{t}:{t+3}], v{TO}, s[20:23], 0 offen {st}")
        if k == 0: a("s_mov_b64 exec, -1")
        a(f"v_subrev_u32 v{TO}, 1024, v{TO}")
    NB = o.nb
    for k in range(6): rd(k)
    for k in range(NB):
        a(f"s_waitcnt lgkmcnt({min(5, 9-k)})")
        store(k)
        if k + 6 < 10: rd(k + 6)
    a(f"s_waitcnt vmcnt({NB}) lgkmcnt(0)")
    a(f"s_cmp_ge_u32 s3, {o.nd}")
    a("s_cbranch_scc1 P1_nod")
    for k in range(NB, 10): store(k)
    a("s_waitcnt vmcnt(0)")
    lds_ticket(a, T0, 0)
    a(f"s_cmp_lg_u32 s40, {o.nd-1}")
    a("s_cbranch_scc1 P1_nod")
    arrive(a, T0, LV_D)
    a("s_mov_b32 s44, 1")
    a("P1_nod:")
    a(f"s_mov_b32 s45, {(-CHA*6) & 0xffffffff}")
    a("s_barrier")
    P.stamp()
    nnow = NB
    for n in range(25):
        if o.pp & 2 and n in (0, 9, 17): a(f"s_setprio {2 - n // 8}")
        if o.pp & 4 and n in (0, 9, 17):
            if n == 0: a("s_setprio 3")
            a("s_cmp_lt_u32 s3, 4")
            a(f"s_cbranch_scc1 P1_pr{n}")
            a(f"s_setprio {2 - n // 8}")
            a(f"P1_pr{n}:")
        if n == 1:
            a("s_cmp_eq_u32 s44, 0")
            a("s_cbranch_scc1 P2_noreld")
            release(a, T0, LV_D, "d")
        if n % o.dstep == 1 and nnow < 10:
            a(f"s_cmp_lt_u32 s3, {o.nd}")
            a(f"s_cbranch_scc1 P1_ns{n}")
            store(nnow); nnow += 1
            a(f"P1_ns{n}:")
        for h in range(2 if n < 24 else 1):
            u = 2 * h
            addrs(n, h, u, "s45")
            a(f"ds_write_b32 v{u}, v{W0+2*n+h} offset:{STG}")
            a(f"ds_write_b16{'_d16_hi' if h else ''} v{u+1}, v{C0+n} offset:{STG+8}")
    assert nnow == 10
    lds_count(a, 4, XW + X_S)
    a(f"s_mul_i32 s40, s2, {TILE_BYTES}")
    a(f"s_add_u32 s40, s40, {CHA*6}")
    srd(a, 20, 32, (TILE_N - CHA) * 6, "s40")
    return XW, STG

LV_A, LV_B, LV_D, LV_E = 0, 1, 2, 3
X_A, X_S, X_X, X_I, X_B, X_R, X_C, X_H, X_CW, X_PW = 0, 4, 8, 12, 16, 20, 24, 28, 32, 48

def arrive(a, t, level):
    a(f"v_mov_b32 v{t}, 0")
    a(f"v_mov_b32 v{t+1}, 1")
    a("s_mov_b64 exec, 1")
    a(f"buffer_atomic_add v{t+1}, v{t}, s[24:27], 0 offen offset:{32*level} sc0 sc1")
    a("s_mov_b64 exec, -1")

def release(a, t, level, tag):
    a("s_waitcnt vmcnt(0)")
    a(f"v_readfirstlane_b32 s40, v{t+1}")
    a("s_cmp_lg_u32 s40, 255")
    a(f"s_cbranch_scc1 P2_norel{tag}")
    a("s_mov_b64 exec, 1")
    a(f"buffer_store_dword v{t+1}, v{t}, s[24:27], 0 offen offset:{128+4*level} sc1")
    a("s_mov_b64 exec, -1")
    a(f"P2_norel{tag}:")

def lds_count(a, t, word):
    a(f"v_mov_b32 v{t}, {word}")
    a(f"v_mov_b32 v{t+1}, 1")
    a("s_mov_b64 exec, 1")
    a("s_waitcnt lgkmcnt(0)")
    a(f"ds_add_u32 v{t}, v{t+1}")
    a("s_mov_b64 exec, -1")

def lds_wait(a, t, word, n, tag, sleep):
    a(f"v_mov_b32 v{t}, {word}")
    a(f"P2_lw{tag}:")
    a(f"ds_read_b32 v{t+1}, v{t}")
    a("s_waitcnt lgkmcnt(0)")
    a(f"v_readfirstlane_b32 s40, v{t+1}")
    a(f"s_cmp_ge_u32 s40, {n}")
    a(f"s_cbranch_scc1 P2_lg{tag}")
    if sleep: a(f"s_sleep {sleep}")
    guard(a)
    a(f"s_branch P2_lw{tag}")
    a(f"P2_lg{tag}:")

def lds_ticket(a, t, word):
    a(f"v_mov_b32 v{t}, {word}")
    a(f"v_mov_b32 v{t+1}, 1")
    a("s_mov_b64 exec, 1")
    a(f"ds_add_rtn_u32 v{t+1}, v{t}, v{t+1}")
    a("s_mov_b64 exec, -1")
    a("s_waitcnt lgkmcnt(0)")
    a(f"v_readfirstlane_b32 s40, v{t+1}")

def publish_a(a, t, XW, tag):
    lds_ticket(a, t, XW + X_A)
    a("s_cmp_lg_u32 s40, 15")
    a(f"s_cbranch_scc1 P2_norel{tag}")
    arrive(a, t, LV_A)
    release(a, t, LV_A, tag)

def gen_p2(o, a, P, XW, STG):
    S = o.S
    uid = [0]
    LUT = 2048; CB = 2560; WSZ = NG * WSTR
    RBSZ = 100 * 512
    X1 = RBSZ + 32
    WT = CB + WSZ // 2 + 16
    WB = CB + X1 // 2 + WSZ // 2 + 16
    RB_AT = (WB, WB + WSZ + 32)
    SC = WB + X1 + WSZ + 64
    assert WT + 3072 <= CB + X1 // 2 and WB < 65536 and SC + 12288 <= XW and WB % 16 == 0 and X1 % 32 == 0
    if o.xp:
        a("s_bfe_u32 s46, s2, 0x20001")
        a("s_bitcmp0_b32 s2, 0")
        a("s_cselect_b32 s47, 4, 0")
        a("s_add_u32 s46, s46, s47")
    else:
        a("s_and_b32 s46, s2, 7")
    a("s_lshl_b32 s46, s46, 5")
    a("s_lshr_b32 s47, s2, 3")
    a("s_add_u32 s46, s46, s47")
    a("v_mbcnt_lo_u32_b32 v12, -1, 0")
    a("v_mbcnt_hi_u32_b32 v12, -1, v12")
    a("s_lshl_b32 s40, s3, 6")
    a("v_add_u32 v0, s40, v12")
    srd(a, 8, 48, E * 32)
    srd(a, 12, 32, NT * TILE_BYTES)
    srd(a, 16, 32, NT * NT * S * 4, WS_DESC)
    a("s_mov_b64 s[6:7], s[86:87]")
    if o.prof: a("s_mov_b32 s71, 0")
    a("s_mov_b32 s48, 0")
    a("s_cmp_ge_u32 s3, 4")
    a("s_cbranch_scc1 P2_consumer")
    def twait(body):
        if o.prof == 1:
            a("s_waitcnt lgkmcnt(0)")
            a("s_memtime s[56:57]")
            a("s_waitcnt lgkmcnt(0)")
        body()
        if o.prof == 1:
            a("s_memtime s[58:59]")
            a("s_waitcnt lgkmcnt(0)")
            a("s_sub_u32 s56, s58, s56")
            a("s_add_u32 s71, s71, s56")
    D0 = 40; R0 = 64
    vU12 = 1; vTile = 2; vInc = 3; v3FC = 4; vCb = 5; vZ = 6; v2U2 = 7; v2U1 = 8; vSg = 9
    n2c = 10; a0c = 11; n2n = 13; a0n = 14
    vca = 16; vcb = 17; vra = 18; vrb = 19; vwa = 20; vwb = 21; vha = 22; vhb = 23; vt = 24; vt2 = 25; vPW = 26; vS = 28
    ODDC = 52; MORC = 54; ODDN = 84; MORN = 86; ROW0 = 82; M0_ = 88; M1_ = 90
    KSL, BSL = slicing(o)
    L0 = -(-(1 << 26) // KSL) // 4 + 1
    def warm(sl, part):
        nt = -(-L0 // 512); n0 = nt * o.wsh // 100; n1 = nt - n0
        uid[0] += 1
        a(f"s_mul_i32 s40, {sl}, {L0 - 1}")
        a(f"s_lshr_b32 s41, s2, 1")
        a(f"s_lshl_b32 s41, s41, 2")
        a(f"s_add_u32 s41, s41, {part}")
        a(f"s_mul_i32 s41, s41, {nt}")
        a(f"s_add_u32 s40, s40, s41")
        a(f"s_add_u32 s40, s40, {(o.swo // 4 - BSL // KSL // 4) & 0xffffffff}")
        a("s_bitcmp1_b32 s2, 0")
        a(f"s_cselect_b32 s41, {n0}, 0")
        a(f"s_add_u32 s40, s40, s41")
        a(f"s_cmp_ge_u32 s40, {E // 4}")
        a(f"s_cbranch_scc1 P2_we{uid[0]}")
        a(f"s_min_u32 s40, s40, {E // 4 - n1}")
        a(f"s_lshl_b32 s40, s40, 7")
        a(f"s_add_u32 s36, s8, s40")
        a(f"s_addc_u32 s37, s9, 0")
        for j in range(n1):
            if j == n0:
                a("s_bitcmp0_b32 s2, 0")
                a(f"s_cbranch_scc1 P2_we{uid[0]}")
            a(f"s_load_dwordx2 s[38:39], s[36:37], {128*j+60}")
        a(f"P2_we{uid[0]}:")
    def poll(level, tag, meanwhile=None):
        a("s_mov_b32 s51, 0")
        a(f"P2_poll{tag}:")
        a(f"buffer_load_dword v{vt}, v{vZ}, s[24:27], 0 offen offset:{128+4*level} sc1")
        a("s_add_u32 s51, s51, 1")
        a(f"s_cmp_gt_u32 s51, {o.maxpoll}")
        a("s_cbranch_scc1 P2_giveup")
        if meanwhile: a(f"s_call_b64 s[34:35], {meanwhile}")
        a("s_waitcnt vmcnt(0)")
        a(f"v_cmp_eq_u32 vcc, 0, v{vt}")
        a(f"s_cbranch_vccz P2_polled{tag}")
        a(f"s_sleep {o.gsleep}")
        a(f"s_branch P2_poll{tag}")
        a(f"P2_polled{tag}:")
    def ensure():
        uid[0] += 1; u = uid[0]
        a(f"v_cmp_lt_u32 vcc, s45, v{D0}")
        a(f"s_cbranch_vccz P2_have{u}")
        a("s_call_b64 s[42:43], P2_ensure")
        a(f"P2_have{u}:")
    def prep():
        ensure()
        a(f"v_bfe_u32 v{vt}, v{D0}, 1, 15")
        a(f"v_mad_u32_u24 v{a0n}, v{vt}, 12, v{vTile}")
        a(f"v_lshrrev_b32 v{n2n}, 16, v{D0}")
        a(f"v_and_b32 v{vt}, 0xfffe, v{D0}")
        a(f"v_sub_u32 v{n2n}, v{n2n}, v{vt}")
        a(f"v_and_b32 v{vt}, 1, v{D0}")
        a(f"v_cmp_eq_u32 s[{ODDN}:{ODDN+1}], 1, v{vt}")
        a(f"v_cmp_lt_u32 s[{MORN}:{MORN+1}], 32, v{n2n}")
        for k in range(S): a(f"v_mov_b32 v{D0+k}, v{D0+k+1}")
    def issue(i):
        t = (vt, vca)[i % 2]
        a(f"v_add_u32_dpp v{t}, v{a0n}, v{vU12} row_newbcast:{i} row_mask:0xf bank_mask:0xf")
        a(f"v_sub_u32_dpp v{t+1}, v{n2n}, v{v2U1} row_newbcast:{i} row_mask:0xf bank_mask:0xf")
        a(f"v_bitop3_b32 v{t}, v{t+1}, v{vSg}, v{t} bitop3:0xea")
        r = R0 + 4 * i
        a(f"buffer_load_dwordx3 v[{r}:{r+2}], v{t}, s[12:15], 0 offen sc1")
    def unhold():
        a("s_lshl_b32 s40, 1, s3")
        a(f"v_mov_b32 v{vt}, {XW + X_H}")
        a(f"v_mov_b32 v{vt2}, s40")
        a("s_mov_b64 exec, 1")
        a(f"ds_or_b32 v{vt}, v{vt2}")
        a("s_mov_b64 exec, -1")
    def next_round(regular):
        a("s_call_b64 s[42:43], P2_next")
        if regular:
            ensure()
            if o.sw:
                a(f"s_sub_u32 s4, s49, {o.swd}")
                a(f"s_cmp_lt_u32 s4, {o.sw0}")
                a("s_cbranch_scc1 P2_nowarm")
                a(f"s_cmp_ge_u32 s4, {-(-(E - o.swo) // (4 * (L0 - 1)))}")
                a("s_cbranch_scc1 P2_nowarm")
                warm("s4", "s3")
                a("P2_nowarm:")
        a("s_call_b64 s[42:43], P2_wait")
    def wait_buffer(tag):
        a("s_add_u32 s50, s48, 1")
        a("s_lshr_b32 s50, s50, 1")
        a("s_mul_i32 s50, s50, 12")
        a("s_and_b32 s51, s48, 1")
        a("s_lshl_b32 s51, s51, 2")
        a(f"s_add_u32 s51, s51, {XW + X_CW}")
        a(f"v_mov_b32 v{vt2}, s51")
        a(f"P2_pw{tag}:")
        a(f"ds_read_b32 v{vt}, v{vt2}")
        a("s_waitcnt lgkmcnt(0)")
        a(f"v_readfirstlane_b32 s51, v{vt}")
        a("s_cmp_ge_u32 s51, s50")
        a(f"s_cbranch_scc1 P2_pg{tag}")
        a(f"s_sleep {o.psleep}")
        guard(a)
        a(f"s_branch P2_pw{tag}")
        a(f"P2_pg{tag}:")
    a("s_setprio 3")
    a("s_waitcnt vmcnt(0)")
    publish_a(a, vt, XW, "ap")
    a(f"s_lshl_b32 s47, s3, 6")
    a(f"v_add_u32 v{vTile}, s47, v12")
    a(f"s_lshl_b32 s50, s3, 2")
    a(f"s_add_u32 s50, s50, {XW + X_PW}")
    a(f"v_mov_b32 v{vPW}, s50")
    a(f"v_lshlrev_b32 v15, 8, v{vTile}")
    a(f"v_add_u32 v15, s46, v15")
    a(f"v_mul_u32_u24 v15, {4*S}, v15")
    a(f"v_mov_b32 v{D0+S}, 0")
    a(f"v_mul_u32_u24 v{vTile}, {TILE_BYTES}, v{vTile}")
    a(f"v_and_b32 v{vt}, 15, v12")
    a(f"v_mul_u32_u24 v{vU12}, 12, v{vt}")
    a(f"v_lshl_add_u32 v{v2U1}, v{vt}, 1, 1")
    a(f"v_add_u32 v{v2U2}, 1, v{v2U1}")
    a(f"v_mov_b32 v{vInc}, {(1 << 20) + 4}")
    a(f"v_mov_b32 v{v3FC}, 0x3fc")
    a(f"v_mov_b32 v{vSg}, 0x80000000")
    for r in (vCb, vZ, vra, vrb, vS, vS + 1): a(f"v_mov_b32 v{r}, 0")
    a("s_mov_b32 s49, 0")
    a(f"s_mov_b32 s{ROW0}, 0x00010001")
    a(f"s_mov_b32 s{ROW0+1}, 0x00010001")
    a(f"s_mov_b32 s45, {((o.nd * WREG // 12 * 2) << 16) | 0xffff}")
    nsave = P.n
    P.stamp()
    poll(LV_E, "e")
    k = 0
    while k < S:
        w = 4 if S - k >= 4 else (2 if S - k >= 2 else 1)
        sfx = {4: "x4", 2: "x2", 1: ""}[w]
        dst = f"v[{D0+k}:{D0+k+w-1}]" if w > 1 else f"v{D0+k}"
        a(f"buffer_load_dword{sfx} {dst}, v15, s[16:19], 0 offen offset:{4*k} sc1")
        k += w
    poll(LV_D, "d")
    P.stamp()
    prep()
    for i in range(16): issue(i)
    P.stamp()
    lds_wait(a, vt, XW + X_I, 12, "i", 1)
    P.stamp()
    def ppass(tg, inl):
        a(f"v_mov_b32 v{n2c}, v{n2n}")
        a(f"v_mov_b32 v{a0c}, v{a0n}")
        a(f"s_mov_b64 s[{ODDC}:{ODDC+1}], s[{ODDN}:{ODDN+1}]")
        a(f"s_mov_b64 s[{MORC}:{MORC+1}], s[{MORN}:{MORN+1}]")
        if inl: prep()
        for i in range(16):
            r = R0 + 4 * i
            a(f"v_sub_co_u32_dpp v{vt}, vcc, v{n2c}, v{v2U1} row_newbcast:{i} row_mask:0xf bank_mask:0xf")
            a(f"s_and_b64 s[92:93], s[{ODDC}:{ODDC+1}], s[{ROW0}:{ROW0+1}]")
            a(f"s_nor_b64 s[{M0_}:{M0_+1}], vcc, s[92:93]")
            a(f"v_sub_co_u32_dpp v{vt2}, vcc, v{n2c}, v{v2U2} row_newbcast:{i} row_mask:0xf bank_mask:0xf")
            a(f"s_lshr_b64 s[{ODDC}:{ODDC+1}], s[{ODDC}:{ODDC+1}], 1")
            a(f"s_not_b64 s[{M1_}:{M1_+1}], vcc")
            a(f"s_waitcnt vmcnt({15 if inl else 15 - i})")
            a(f"P2_retry{tg}{i}:")
            a(f"v_lshrrev_b32 v{vca}, 18, v{r}")
            a(f"v_lshrrev_b32 v{vcb}, 18, v{r+1}")
            a(f"v_bitop3_b32 v{vca}, v{vca}, v{v3FC}, v{vCb} bitop3:0xea")
            a(f"v_bitop3_b32 v{vcb}, v{vcb}, v{v3FC}, v{vCb} bitop3:0xea")
            a(f"s_mov_b64 exec, s[{M0_}:{M0_+1}]")
            a(f"ds_add_rtn_u32 v{vra}, v{vca}, v{vInc}")
            a(f"s_mov_b64 exec, s[{M1_}:{M1_+1}]")
            a(f"ds_add_rtn_u32 v{vrb}, v{vcb}, v{vInc}")
            a(f"s_mov_b64 exec, -1")
            a(f"v_and_b32 v{vwa}, 0xf00fffff, v{r}")
            a(f"v_and_b32 v{vwb}, 0xf00fffff, v{r+1}")
            a("s_waitcnt lgkmcnt(0)")
            a(f"v_and_b32 v{vra}, 0xfc03ffff, v{vra}")
            a(f"v_and_b32 v{vrb}, 0xfc03ffff, v{vrb}")
            a(f"v_lshrrev_b32 v{vha}, 1, v{vra}")
            a(f"v_lshrrev_b32 v{vhb}, 1, v{vrb}")
            a(f"v_or_b32 v{vt}, v{vra}, v{vrb}")
            a(f"v_cmp_lt_u32 vcc, v{vInc}, v{vt}")
            a(f"s_mov_b64 exec, s[{M0_}:{M0_+1}]")
            a(f"ds_write_b32 v{vra}, v{vwa} offset:{WB}")
            a(f"ds_write_b16 v{vha}, v{r+2} offset:{CB}")
            a(f"s_mov_b64 exec, s[{M1_}:{M1_+1}]")
            a(f"ds_write_b32 v{vrb}, v{vwb} offset:{WB}")
            a(f"ds_write_b16_d16_hi v{vhb}, v{r+2} offset:{CB}")
            a(f"s_mov_b64 exec, -1")
            a(f"s_cbranch_vccnz P2_stall{tg}{i}")
            a(f"s_and_b64 s[92:93], s[{MORC}:{MORC+1}], s[{ROW0}:{ROW0+1}]")
            a(f"s_cbranch_scc1 P2_more{tg}{i}")
            if not inl:
                a("s_cmp_lg_u32 s98, 0")
                a("s_cbranch_scc1 P2_sweep")
                a(f"P2_cont{tg}{i}:")
            a(f"s_lshr_b64 s[{MORC}:{MORC+1}], s[{MORC}:{MORC+1}], 1")
            if inl: issue(i)
    a("s_mov_b32 s98, 0")
    a("s_mov_b32 s47, 0")
    ppass("f", False)
    a("P2_sweep:")
    a("s_cmp_lg_u32 s47, 0")
    a("s_cbranch_scc1 P2_sweep1")
    P.stamp()
    a("s_mov_b32 s49, 1")
    a("s_cmp_ge_u32 s48, s49")
    a("s_cbranch_scc1 P2_ff1")
    a("s_call_b64 s[42:43], P2_next")
    a("P2_ff1:")
    prep()
    for i in range(16): issue(i)
    a("s_call_b64 s[42:43], P2_wait")
    a("P2_pslice:")
    ppass("", True)
    a("s_add_u32 s49, s49, 1")
    a(f"s_cmp_ge_u32 s49, {S}")
    a("s_cbranch_scc1 P2_pdone")
    a("s_cmp_ge_u32 s48, s49")
    a("s_cbranch_scc1 P2_pslice")
    next_round(True)
    a("s_branch P2_pslice")
    a("P2_next:")
    a("s_add_u32 s48, s48, 1")
    if o.maxr:
        a(f"s_cmp_gt_u32 s48, {o.maxr}")
        a("s_cbranch_scc1 P2_giveup")
    a(f"v_mov_b32 v{vt}, s48")
    a("s_waitcnt lgkmcnt(0)")
    a(f"ds_write_b32 v{vPW}, v{vt}")
    a(f"v_xor_b32 v{vCb}, 1024, v{vCb}")
    def pubb2():
        a("s_cmp_lg_u32 s48, 2")
        a("s_cbranch_scc1 P2_next1")
        a("s_call_b64 s[96:97], P2_pubb")
        a("P2_next1:")
    if not o.nl: pubb2()
    a("s_setpc_b64 s[42:43]")
    a("P2_wait:")
    twait(lambda: wait_buffer("n"))
    if o.nl: pubb2()
    a("s_setpc_b64 s[42:43]")
    a("P2_pubb:")
    lds_ticket(a, vS, XW + X_C)
    a("s_cmp_lg_u32 s40, 0")
    a("s_cbranch_scc1 P2_norelb")
    lds_wait(a, vS, XW + X_B, 12, "b", 1)
    arrive(a, vS, LV_B)
    release(a, vS, LV_B, "b")
    a("s_setpc_b64 s[96:97]")
    a("P2_ensure:")
    poll(LV_A, "a")
    a(f"s_mov_b32 s45, {(CHA << 16) | 0xffff}")
    a(f"v_cmp_lt_u32 vcc, s45, v{D0}")
    a("s_cbranch_vccz P2_ens1")
    unhold()
    a("s_call_b64 s[96:97], P2_pubb")
    poll(LV_B, "b")
    a("s_mov_b32 s45, -1")
    a("P2_ens1:")
    a("s_setpc_b64 s[42:43]")
    for tg, i in [(t_, i_) for t_ in ("", "f") for i_ in range(16)]:
        r = R0 + 4 * i
        a(f"P2_stall{tg}{i}:")
        a(f"v_cmp_lt_u32 s[{M0_}:{M0_+1}], v{vInc}, v{vra}")
        a(f"v_cmp_lt_u32 s[{M1_}:{M1_+1}], v{vInc}, v{vrb}")
        next_round(False)
        a(f"s_branch P2_retry{tg}{i}")
        a(f"P2_more{tg}{i}:")
        a(f"s_lshl_b64 exec, s[{ROW0}:{ROW0+1}], {i}")
        a(f"v_max_u32 v{n2c}, 32, v{n2c}")
        a(f"v_subrev_u32 v{n2c}, 32, v{n2c}")
        a(f"v_add_u32 v{a0c}, 192, v{a0c}")
        a(f"s_mov_b64 exec, -1")
        a(f"v_sub_u32_dpp v{vt2}, v{n2c}, v{v2U1} row_newbcast:{i} row_mask:0xf bank_mask:0xf")
        a(f"v_add_u32_dpp v{vt}, v{a0c}, v{vU12} row_newbcast:{i} row_mask:0xf bank_mask:0xf")
        a(f"v_bitop3_b32 v{vt}, v{vt2}, v{vSg}, v{vt} bitop3:0xea")
        a(f"buffer_load_dwordx3 v[{r}:{r+2}], v{vt}, s[12:15], 0 offen sc1")
        if tg:
            a(f"s_bitset1_b32 s47, {i}")
            a("s_cmp_eq_u32 s98, 0")
            a(f"s_cbranch_scc1 P2_cont{tg}{i}")
            a(f"P2_again{i}:")
            a(f"s_bitset0_b32 s47, {i}")
        a(f"v_cmp_lt_u32 vcc, 32, v{n2c}")
        a(f"s_lshr_b64 s[92:93], vcc, {i}")
        a(f"s_and_b64 s[92:93], s[92:93], s[{ROW0}:{ROW0+1}]")
        a(f"s_andn2_b64 s[{MORC}:{MORC+1}], s[{MORC}:{MORC+1}], s[{ROW0}:{ROW0+1}]")
        a(f"s_or_b64 s[{MORC}:{MORC+1}], s[{MORC}:{MORC+1}], s[92:93]")
        a(f"v_sub_co_u32_dpp v{vt2}, vcc, v{n2c}, v{v2U2} row_newbcast:{i} row_mask:0xf bank_mask:0xf")
        a(f"s_not_b64 s[{M1_}:{M1_+1}], vcc")
        a(f"v_sub_co_u32_dpp v{vt2}, vcc, v{n2c}, v{v2U1} row_newbcast:{i} row_mask:0xf bank_mask:0xf")
        a(f"s_not_b64 s[{M0_}:{M0_+1}], vcc")
        a("s_waitcnt vmcnt(0)")
        a(f"s_branch P2_retry{tg}{i}")
    a("P2_sweep1:")
    a("s_mov_b32 s98, 1")
    for i in range(15):
        a(f"s_bitcmp1_b32 s47, {i}")
        a(f"s_cbranch_scc1 P2_again{i}")
    a("s_branch P2_again15")
    a("P2_giveup:")
    unhold()
    a("P2_pdone:")
    a("s_add_u32 s48, s48, 0x40000001")
    a(f"v_mov_b32 v{vt}, s48")
    a("s_waitcnt lgkmcnt(0)")
    a(f"ds_write_b32 v{vPW}, v{vt}")
    a(f"s_setprio {o.eprio}")
    if o.sw and o.swd:
        warm(S - 1, "s3")
        a("s_waitcnt lgkmcnt(0)")
    a("s_load_dwordx2 s[6:7], s[0:1], 24")
    a("s_load_dwordx2 s[34:35], s[0:1], 40")
    a("s_load_dwordx8 s[36:43], s[0:1], 56")
    DS = 30; CEN = 56; RB0 = 64; t = 60; X = 1
    a("v_and_b32 v13, 15, v12")
    a("v_lshrrev_b32 v14, 4, v12")
    a(f"v_lshlrev_b32 v{X}, 7, v14")
    a(f"v_lshl_add_u32 v{X}, v13, 1, v{X}")
    a(f"v_and_b32 v{X+1}, 0xff, v{X}")
    a(f"v_and_b32 v{X+2}, 1, v14")
    a(f"v_lshlrev_b32 v{X+2}, 3, v{X+2}")
    a(f"v_lshrrev_b32 v{X+3}, 1, v14")
    a(f"v_lshlrev_b32 v{X+3}, 10, v{X+3}")
    a(f"v_lshl_add_u32 v{X+3}, v13, 1, v{X+3}")
    a("s_and_b32 s47, s46, 31")
    a("s_lshl_b32 s47, s47, 5")
    a(f"v_add_u32 v{X+3}, s47, v{X+3}")
    a(f"v_cmp_gt_u32 s[88:89], 32, v12")
    a("s_waitcnt vmcnt(0) lgkmcnt(0)")
    a("s_lshr_b32 s47, s46, 5")
    a(f"s_mul_i32 s47, s47, {CL * 2}")
    srd(a, 20, 6, CL * 2, "s47")
    srd(a, 28, 42, 512)
    srd(a, 12, 38, 256)
    srd(a, 16, 36, 256)
    srd(a, 52, 34, 16)
    srd(a, 84, 40, 512)
    for c in range(4): a(f"buffer_load_ushort v{CEN+c}, v{X+2}, s[52:55], 0 offen offset:{2*c}")
    a("s_mul_i32 s47, s3, 25")
    for k in range(25):
        a("s_mul_i32 s50, s47, 57")
        a("s_lshr_b32 s50, s50, 9")
        a("s_min_u32 s50, s50, 4")
        a("s_lshl_b32 s51, s47, 1")
        a("s_sub_u32 s50, s51, s50")
        a("s_lshl_b32 s50, s50, 10")
        a(f"v_add_u32 v{DS+k}, s50, v{X+3}")
        a("s_add_u32 s47, s47, 1")
        a(f"buffer_load_ushort v{DS+k}, v{DS+k}, s[20:23], 0 offen")
    assert all((n * 57) >> 9 == n // 9 for n in range(45))
    Y = 116
    for c in range(4): a(f"buffer_load_ushort v{Y+c}, v{X}, s[28:31], 0 offen offset:{32*c}")
    for c in range(4): a(f"buffer_load_ushort v{Y+4+c}, v{X+1}, s[12:15], 0 offen offset:{32*c}")
    for c in range(4): a(f"buffer_load_ushort v{Y+8+c}, v{X+1}, s[16:19], 0 offen offset:{32*c}")
    for c in range(4): a(f"buffer_load_ushort v{16+c}, v{X}, s[84:87], 0 offen offset:{32*c}")
    a("s_waitcnt vmcnt(40)")
    for c in range(4): a(f"v_lshlrev_b32 v{CEN+c}, 16, v{CEN+c}")
    def rnd():
        if o.nornd: return
        for u in range(2):
            a(f"v_cvt_pk_bf16_f32 v{t+2*u+1}, v{t+2*u}, v{t+2*u+1}")
        for u in range(2):
            a(f"v_lshlrev_b32 v{t+2*u}, 16, v{t+2*u+1}")
            a(f"v_and_b32 v{t+2*u+1}, 0xffff0000, v{t+2*u+1}")
    for k in range(25):
        d = DS + k
        a(f"s_waitcnt vmcnt({40 - k})")
        a(f"v_lshlrev_b32 v{d}, 16, v{d}")
        for c in range(4): a(f"v_sub_f32 v{t+c}, v{d}, v{CEN+c}")
        rnd()
        for c in range(4): a(f"v_mul_f32 v{t+c}, v{t+c}, v{t+c}")
        rnd()
        for c in range(4): a(f"v_mul_f32 v{t+c}, 0xc1200000, v{t+c}")
        rnd()
        for c in range(4): a(f"v_mul_f32 v{t+c}, 0x3fb8aa3b, v{t+c}")
        for c in range(4): a(f"v_exp_f32 v{t+c}, v{t+c}")
        for u in range(2): a(f"v_cvt_pk_bf16_f32 v{RB0+2*k+u}, v{t+2*u}, v{t+2*u+1}")
    a("s_waitcnt vmcnt(0)")
    Z = 30
    for u in range(2):
        a(f"v_lshl_or_b32 v{Z+8+u}, v{Y+2*u+1}, 16, v{Y+2*u}")
        a(f"v_lshl_or_b32 v{Z+10+u}, v{17+2*u}, 16, v{16+2*u}")
        a(f"v_lshl_or_b32 v{Y+4+u}, v{Y+5+2*u}, 16, v{Y+4+2*u}")
        a(f"v_lshl_or_b32 v{Y+8+u}, v{Y+9+2*u}, 16, v{Y+8+2*u}")
    for u in range(2):
        a(f"v_cndmask_b32 v{Z+u}, 0, v{Y+4+u}, s[88:89]")
        a(f"v_cndmask_b32 v{Z+2+u}, v{Y+4+u}, 0, s[88:89]")
        a(f"v_cndmask_b32 v{Z+4+u}, 0, v{Y+8+u}, s[88:89]")
        a(f"v_cndmask_b32 v{Z+6+u}, v{Y+8+u}, 0, s[88:89]")
    a(f"v_lshlrev_b32 v{X}, 3, v12")
    a(f"v_add_u32 v{X+1}, {WT}, v{X}")
    a(f"v_and_b32 v{X+2}, 3, v12")
    a(f"v_lshlrev_b32 v{X+2}, 2, v{X+2}")
    a(f"v_add_u32 v{X+2}, {XW + X_PW}, v{X+2}")
    a("P2_dw:")
    a(f"ds_read_b32 v{vt}, v{X+2}")
    a("s_waitcnt lgkmcnt(0)")
    a(f"v_cmp_gt_u32 vcc, 2.0, v{vt}")
    a("s_cbranch_vccz P2_dg")
    a(f"s_sleep {o.psleep}")
    guard(a)
    a("s_branch P2_dw")
    a("P2_dg:")
    a(f"v_readlane_b32 s48, v{vt}, 0")
    for k in range(1, 4):
        a(f"v_readlane_b32 s50, v{vt}, {k}")
        a("s_max_u32 s48, s48, s50")
    a("s_and_b32 s48, s48, 0x3fffffff")
    wait_buffer("e")
    a("s_bitcmp1_b32 s48, 0")
    a(f"s_cselect_b32 s50, {RB_AT[1] - RB_AT[0]}, 0")
    a(f"s_add_u32 s50, s50, {RB_AT[0]}")
    a(f"s_mul_i32 s51, s3, {25*512}")
    a("s_add_u32 s50, s50, s51")
    a(f"v_add_u32 v{X}, s50, v{X}")
    for k in range(6): a(f"ds_write_b64 v{X+1}, v[{Z+2*k}:{Z+2*k+1}] offset:{512*k}")
    for k in range(25): a(f"ds_write_b64 v{X}, v[{RB0+2*k}:{RB0+2*k+1}] offset:{512*k}")
    lds_count(a, vt, XW + X_R)
    a("s_waitcnt lgkmcnt(0)")
    if o.prof == 1:
        P.stamp(); P.dump(32, 0x80000, 8, 3); P.n = nsave
    a("s_endpgm")
    a("P2_consumer:")
    ACC = 60; G0 = 52; B0 = 44; A2 = 28; vTw = 32; vTr = 33; vM = 24; vC = 20; vX = 16
    bA = 1; bE = 2; bC = 3; bR = 4; vH = 5; vL = 6; vCA = 7; vCI = 8; vA = 9; vE = 10
    a("s_sub_u32 s47, s3, 4")
    a("s_min_u32 s44, s47, 4")
    a("s_lshl_b32 s49, s47, 4")
    a("s_add_u32 s49, s49, s44")
    a("s_cmp_lt_u32 s47, 4")
    a("s_cselect_b32 s50, 17, 16")
    a(f"s_cselect_b32 s84, 0, {MARK}")
    a(f"s_cselect_b32 s85, {17*WSTR//16-192}, {16*WSTR//16-192}")
    a("s_bfm_b64 s[92:93], s85, 0")
    a(f"v_subrev_u32 v60, 256, v0")
    a(f"v_lshlrev_b32 v60, 4, v60")
    for k in range(1, 4): a(f"v_add_u32 v{60+k}, {4*12288*k}, v60")
    lds_wait(a, vX, XW + X_S, 16, "s", 1)
    P.stamp()
    NL = o.nl; vSt = 34
    for j in range(13):
        k = 12 - j
        a(f"ds_read_b128 v[{68+4*j}:{71+4*j}], v{60+k//4} offset:{STG+12288*(k%4)}")
    a(f"v_mov_b32 v{vSt}, v63")
    q = 36
    for i in range(4): a(f"v_mov_b32 v{q+i}, {MARK}")
    a(f"v_add_u32 v61, {WB}, v60")
    a(f"v_add_u32 v62, {SC - 4 * 12288}, v60")
    a(f"v_and_b32 v52, 15, v12")
    a(f"v_lshrrev_b32 v53, 4, v12")
    a(f"v_lshrrev_b32 v56, 2, v52")
    a(f"v_cmp_eq_u32 vcc, v56, v53")
    a(f"v_and_b32 v56, 3, v12")
    a(f"v_lshlrev_b32 v56, 4, v56")
    a(f"v_mov_b32 v54, 0xffff")
    a(f"v_mov_b32 v55, 0")
    a(f"v_cndmask_b32 v54, 0, v54, vcc")
    a(f"v_lshlrev_b64 v[54:55], v56, v[54:55]")
    a(f"v_and_b32 v56, 1, v53")
    a(f"v_lshlrev_b32 v56, 3, v56")
    a(f"v_lshl_add_u32 v52, v52, 4, v56")
    a(f"v_lshrrev_b32 v53, 1, v53")
    a(f"v_lshl_add_u32 v52, v53, 8, v52")
    a(f"v_and_b32 v56, 255, v0")
    a(f"v_lshlrev_b32 v53, 2, v56")
    a(f"v_mul_u32_u24 v56, {WSTR}, v56")
    a(f"v_add_u32 v56, {(64 - CAP) << 20}, v56")
    a(f"v_add_u32 v57, {X1}, v56")
    lds_count(a, vX, XW + X_X)
    lds_wait(a, vX, XW + X_X, 12, "x", 0)
    assert WSZ // 2 + 16 <= 2 * 12288 <= X1 // 2 and WSZ + 64 <= 4 * 12288 <= X1
    for k in range(4): a(f"ds_write_b128 v61, v[{q}:{q+3}] offset:{12288 * k}")
    for k in range(2): a(f"ds_write_b128 v60, v[{q}:{q+3}] offset:{CB + 12288 * k}")
    a(f"ds_write_b64 v52, v[54:55] offset:{LUT}")
    a(f"ds_write_b32 v53, v56")
    a(f"ds_write_b32 v53, v57 offset:1024")
    lds_count(a, vX, XW + X_I)
    a("s_waitcnt vmcnt(0)")
    publish_a(a, vX, XW, "ac")
    def store_b(j):
        a(f"buffer_store_dwordx4 v[{68+4*j}:{71+4*j}], v{vSt}, s[20:23], 0 offen {o.p1_st}")
        a(f"v_subrev_u32 v{vSt}, 12288, v{vSt}")
    if o.spr: a(f"s_setprio {o.spr}")
    for j in range(13 - NL): store_b(j)
    if o.spr: a("s_setprio 0")
    for k in range(4): a(f"ds_write_b128 v62, v[{q}:{q+3}] offset:{12288 * k}")
    for k in range(2): a(f"ds_write_b128 v60, v[{q}:{q+3}] offset:{WB - 12288 * (2 - k)}")
    lds_count(a, vX, XW + X_CW + 4)
    a("v_and_b32 v13, 15, v12")
    a("v_lshrrev_b32 v14, 4, v12")
    a(f"v_and_b32 v0, 3, v12")
    a(f"v_lshlrev_b32 v0, 2, v0")
    a(f"v_add_u32 v0, {XW + X_CW}, v0")
    a(f"s_mul_i32 s51, s49, {WSTR}")
    a(f"s_lshr_b32 s86, s51, 1")
    a(f"s_add_u32 s86, s86, {CB}")
    a(f"v_lshl_add_u32 v{bC}, v14, 4, s86")
    a(f"v_mul_u32_u24 v{vCI}, {WSTR}, v12")
    a(f"s_add_u32 s86, s51, {(64 - CAP) << 20}")
    a(f"v_add_u32 v{vCI}, s86, v{vCI}")
    a(f"s_add_u32 s51, s51, {WB}")
    a(f"v_lshl_add_u32 v{bR}, v12, 4, s51")
    a(f"v_and_b32 v{bA}, 24, v12")
    a(f"v_bfe_u32 v{vA}, v12, 1, 2")
    a(f"v_or_b32 v{bA}, v{bA}, v{vA}")
    a(f"v_lshrrev_b32 v{vA}, 5, v12")
    a(f"v_lshl_or_b32 v{bA}, v{vA}, 2, v{bA}")
    a(f"v_lshl_add_u32 v{bA}, v{bA}, 2, s51")
    a(f"v_and_b32 v{vH}, 1, v12")
    a(f"v_lshlrev_b32 v{vH}, 4, v{vH}")
    a("s_lshl_b32 s87, s47, 10")
    a(f"s_add_u32 s87, s87, {SC}")
    a(f"v_lshl_add_u32 v{vTw}, v12, 4, s87")
    a(f"v_lshl_add_u32 v{vTr}, v12, 3, s87")
    a(f"v_and_b32 v{vA}, 12, v12")
    a(f"v_lshl_add_u32 v{bE}, v14, 5, v{vA}")
    a(f"v_add_u32 v{bE}, s51, v{bE}")
    a(f"v_and_b32 v{vL}, 1, v12")
    a(f"v_lshlrev_b32 v{vL}, 3, v{vL}")
    a(f"v_and_b32 v{vA}, 2, v12")
    a(f"v_lshl_add_u32 v{vL}, v{vA}, 7, v{vL}")
    a(f"v_add_lshl_u32 v{vCA}, v12, s49, 2")
    a(f"v_cmp_gt_u32 vcc, s50, v12")
    a(f"s_mov_b32 s85, {(64 - CAP + 33) << 20}")
    a("s_mov_b32 s94, 0xff000000")
    a("s_mov_b32 s95, 0xff000000")
    a(f"v_cndmask_b32 v{vCA}, 2.0, v{vCA}, vcc")
    a(f"s_lshl_b32 s51, s49, 5")
    a("s_and_b32 s40, s46, 31")
    a(f"s_add_u32 s51, s51, s40")
    a(f"s_lshl_b32 s51, s51, 4")
    a(f"v_add_lshl_u32 v15, v13, s51, 5")
    a(f"v_lshl_add_u32 v15, v14, 3, v15")
    a(f"v_lshlrev_b32 v13, 3, v12")
    for i in range(16): a(f"v_mov_b32 v{B0+i}, 0")
    for i in range(68):
        if not 15 - NL <= i // 4 <= 14: a(f"v_mov_b32 v{ACC+i}, 0")
    a("s_lshr_b32 s40, s46, 5")
    a(f"s_mul_i32 s40, s40, {CL * 32}")
    srd(a, 28, 6, CL * 32, "s40")
    srd(a, 12, 8, CL * 32, "s40")
    def lazy(t):
        j = 13 - NL + t
        store_b(j)
        for u in range(4): a(f"v_mov_b32 v{68+4*j+u}, 0")
    lstep = {}
    for t in range(NL):
        i = o.l0 + t * o.lstep // 2
        assert i <= 14 - NL + t
        lstep.setdefault(i, []).append(t)
    if NL:
        a("s_mov_b32 s42, 1")
        P.stamp()
        a(f"v_mov_b32 v{vX+2}, {XW + X_H}")
        a("P2_pre:")
        a(f"ds_read_b32 v{vX}, v0 offset:{X_PW - X_CW}")
        a(f"ds_read_b32 v{vX+1}, v{vX+2}")
        a("s_waitcnt lgkmcnt(0)")
        a(f"v_cmp_eq_u32 vcc, 0, v{vX}")
        a("s_cbranch_vccz P2_round0")
        a(f"v_cmp_eq_u32 vcc, 0, v{vX+1}")
        a("s_cbranch_vccz P2_flush")
        a(f"s_sleep {o.csleep}")
        guard(a)
        a("s_branch P2_pre")
        a("P2_flush:")
        for t in range(NL): lazy(t)
        a("s_mov_b32 s42, 0")
    a("s_waitcnt vmcnt(0)")
    lds_count(a, vX, XW + X_B)
    if not NL: P.stamp()
    def reads1(par, i, second):
        oa = par * X1 + i * WSTR + (128 if second else 0)
        a(f"ds_read_b32 v{vA}, v{bA} offset:{oa}")
        a(f"ds_read_u8 v{vE}, v{bE} offset:{oa+3}")
        a(f"ds_read_u8 v{vE+1}, v{bE} offset:{oa+19}")
    def reads2(par, i, second):
        oc = (par * X1 + i * WSTR + (128 if second else 0)) // 2
        a(f"v_add_u32 v{vE}, v{vE}, v{vL}")
        a(f"v_add_u32 v{vE+1}, v{vE+1}, v{vL}")
        a(f"ds_read_b64_tr_b16 v[{vM}:{vM+1}], v{vE} offset:{LUT}")
        a(f"ds_read_b64_tr_b16 v[{vM+2}:{vM+3}], v{vE+1} offset:{LUT}")
        a(f"ds_read_b128 v[{vC}:{vC+3}], v{bC} offset:{oc}")
    def addr():
        a(f"v_mad_u32_u24 v{vA}, v{vA}, 32, v{vH}")
    def transpose(g):
        a(f"ds_write_b128 v{vTw}, v[{g}:{g+3}]")
        a(f"ds_read_b64_tr_b16 v[{A2}:{A2+1}], v{vTr}")
        a(f"ds_read_b64_tr_b16 v[{A2+2}:{A2+3}], v{vTr} offset:512")
    def mfma2(i, b):
        c = ACC + 4 * i
        a(f"v_mfma_f32_16x16x32_bf16 v[{c}:{c+3}], v[{A2}:{A2+3}], v[{b}:{b+3}], v[{c}:{c+3}]")
    NS = 17
    for par in range(2):
        a(f"P2_round{par}:")
        def spin():
            a(f"P2_cw{par}:")
            a(f"ds_read_b32 v{vX+1}, v0 offset:{X_PW - X_CW}")
            reads1(par, 0, False)
            a(f"ds_read_b32 v{vX}, v{vCA} offset:{1024*par}")
            a("s_waitcnt lgkmcnt(4)")
            a(f"v_cmp_ge_u32 vcc, s48, v{vX+1}")
            a(f"v_and_b32 v{vX+1}, 0x3fffffff, v{vX+1}")
            a(f"s_cbranch_vccz P2_cg{par}")
            a(f"s_sleep {o.csleep}")
            guard(a)
            a(f"s_branch P2_cw{par}")
            a(f"P2_cg{par}:")
        twait(spin)
        if o.prof == 1:
            a("s_memrealtime s[58:59]")
            a("s_waitcnt lgkmcnt(0)")
            a("s_mov_b32 m0, s48")
            a("v_writelane_b32 v14, s58, m0")
            a("s_add_u32 m0, s48, 16")
            a("v_writelane_b32 v14, s56, m0")
        a(f"v_cmp_lt_u32 vcc, s48, v{vX+1}")
        a(f"s_cbranch_vccz P2_drain{1-par}")
        if o.prof == 1 and par == 0:
            a("s_cmp_lg_u32 s48, 0"); a("s_cbranch_scc1 P2_nostamp"); P.stamp(); a("P2_nostamp:")
        if par: a(f"v_add_u32 v{vX+2}, {X1}, v{vCI}")
        a(f"ds_write_b32 v{vCA}, v{vX+2 if par else vCI} offset:{1024*par}")
        a("s_add_u32 s48, s48, 1")
        for i in range(NS):
            p = (par * NS + i) % 2
            g = G0 + 4 * p; b = B0 + 4 * p
            a("s_waitcnt lgkmcnt(0)")
            if i == NS - 1: a(f"v_or_b32 v{vA}, s84, v{vA}")
            addr()
            a("s_waitcnt vmcnt(1)")
            sk = o.skip and i == 1
            if sk:
                a("s_cmp_lg_u32 s84, 0")
                a(f"s_cbranch_scc1 P2_nt{par}")
            transpose(g)
            if sk: a(f"P2_nt{par}:")
            a(f"buffer_load_dwordx4 v[{g}:{g+3}], v{vA}, s[8:11], 0 offen {o.gfl}")
            if o.skip and i == NS - 1:
                a("s_cmp_lg_u32 s84, 0")
                a(f"s_cbranch_scc1 P2_last{par}")
            reads2(par, i, False)
            if i + 1 < NS: reads1(par, i + 1, False)
            if i == 0: a(f"v_cmp_le_u32 s[90:91], s85, v{vX}")
            if sk: a(f"s_cbranch_scc1 P2_nm{par}")
            a(f"s_waitcnt lgkmcnt({6 if i + 1 < NS else 3})")
            mfma2((i - 2) % NS, b)
            if sk: a(f"P2_nm{par}:")
            a(f"s_bitcmp1_b32 s90, {i}")
            a(f"s_waitcnt lgkmcnt({3 if i + 1 < NS else 0})")
            for u in range(4): a(f"v_and_b32 v{b+u}, v{vM+u}, v{vC+u}")
            a(f"s_cbranch_scc1 P2_slow{par}_{i}")
            a(f"P2_back{par}_{i}:")
            if par == 0 and i in lstep:
                a("s_cmp_lg_u32 s42, 0")
                a(f"s_cbranch_scc1 P2_lazy{i}")
                a(f"P2_lazyb{i}:")
        if par == 0 and NL:
            a("s_cmp_eq_u32 s42, 0")
            a("s_cbranch_scc1 P2_nolz")
            a("s_mov_b32 s42, 0")
            a("s_waitcnt vmcnt(0)")
            lds_count(a, vX, XW + X_B)
            a("P2_nolz:")
        for u in range(4): a(f"v_mov_b32 v{vX+u}, {MARK}")
        for k in range(4):
            if k == 3: a("s_mov_b64 exec, s[92:93]")
            a(f"ds_write_b128 v{bR}, v[{vX}:{vX+3}] offset:{par*X1+1024*k}")
        a("s_mov_b64 exec, 1")
        a(f"v_mov_b32 v{vA}, 1")
        a("s_waitcnt lgkmcnt(0)")
        a(f"ds_add_rtn_u32 v{vA}, v0, v{vA} offset:{4*par}")
        a("s_lshr_b32 s40, s48, 1")
        a("s_mul_i32 s40, s40, 12")
        a("s_waitcnt lgkmcnt(0)")
        a(f"v_readfirstlane_b32 s41, v{vA}")
        a("s_mov_b64 exec, -1")
        a("s_sub_u32 s41, s41, s40")
        a("s_setprio 0")
        a("s_cmp_lt_u32 s41, 4")
        a(f"s_cbranch_scc1 P2_round{1-par}")
        a("s_setprio 1")
        a("s_cmp_lt_u32 s41, 8")
        a(f"s_cbranch_scc1 P2_round{1-par}")
        a("s_setprio 2")
        if par: a("s_branch P2_round0")
    for par in range(2 if o.skip else 0):
        a(f"P2_last{par}:")
        a("s_waitcnt lgkmcnt(0)")
        mfma2(NS - 3, B0 + 4 * ((par * NS + NS - 1) % 2))
        a(f"s_branch P2_back{par}_{NS-1}")
    for i in sorted(lstep):
        a(f"P2_lazy{i}:")
        for t in lstep[i]: lazy(t)
        a(f"s_branch P2_lazyb{i}")
    for par in range(2):
        for i in range(NS):
            a(f"P2_slow{par}_{i}:")
            reads1(par, i, True)
            a("s_waitcnt lgkmcnt(0)")
            a("s_mov_b64 exec, s[94:95]")
            a(f"v_mov_b32 v{vA}, {MARK}")
            a("s_mov_b64 exec, -1")
            addr()
            a(f"buffer_load_dwordx4 v[{vX}:{vX+3}], v{vA}, s[8:11], 0 offen")
            reads2(par, i, True)
            if i + 1 < NS: reads1(par, i + 1, False)
            a(f"s_waitcnt lgkmcnt({3 if i + 1 < NS else 0})")
            for u in range(4): a(f"v_and_b32 v{vM+u}, v{vM+u}, v{vC+u}")
            a("s_waitcnt vmcnt(0)")
            transpose(vX)
            a("s_waitcnt lgkmcnt(0)")
            mfma2(i, vM)
            a(f"s_branch P2_back{par}_{i}")
    vLo = 14; vSo = 15; vRb = 12; vWt = 13
    mreg = [0, 2, 4, 6, 8, 10, 16, 18, 20, 22, 24, 26, ACC, ACC + 2, ACC + 4, ACC + 6, ACC + 8]
    NPRE = 12
    def mload(i):
        a(f"buffer_load_dwordx2 v[{mreg[i]}:{mreg[i]+1}], v{vLo}, s[12:15], 0 offen")
        a(f"v_add_u32 v{vLo}, {512*32}, v{vLo}")
    for par in (1, 0):
        a(f"P2_drain{par}:")
        a("s_waitcnt lgkmcnt(0)")
        if par == 1: P.stamp()
        elif o.prof == 1: P.n -= 1; P.stamp()
        if o.prof == 1:
            srd(a, 52, 32, 0x100000, WS_PROF)
            a("s_lshl_b32 s56, s2, 4")
            a("s_add_u32 s56, s56, s3")
            a("s_lshl_b32 s56, s56, 7")
            a("v_lshrrev_b32 v12, 1, v13")
            a("v_add_u32 v12, s56, v12")
            a("s_bfm_b64 exec, 32, 0")
            a("buffer_store_dword v14, v12, s[52:55], 0 offen")
            a("s_mov_b64 exec, -1")
        a(f"v_mov_b32 v{vLo}, v{vSo}")
        for i in range(NPRE): mload(i)
        a(f"s_mov_b32 s51, {RB_AT[1 - par]}")
        for i in (NS, NS + 1):
            p = (par * NS + i) % 2
            a(f"s_waitcnt vmcnt({NS + 1 - i + NPRE})")
            transpose(G0 + 4 * p)
            a("s_waitcnt lgkmcnt(0)")
            mfma2(i - 2, B0 + 4 * p)
        if par == 1: a("s_branch P2_epi")
    a("P2_epi:")
    WS_ = 32; WR_ = 36; WU = 40; WD = 42; RB = 44; SS = 48; GG = 52; UU = 56; ZZ = 28
    a("s_lshl_b32 s47, s47, 3")
    a("s_add_u32 s47, s47, s44")
    a("s_lshl_b32 s47, s47, 9")
    a("s_add_u32 s51, s51, s47")
    a(f"v_add_u32 v{vRb}, s51, v{vWt}")
    a(f"v_add_u32 v{vWt}, {WT}, v{vWt}")
    lds_wait(a, UU, XW + X_R, 4, "r", 1)
    for k in range(6): a(f"ds_read_b64 v[{WS_+2*k}:{WS_+2*k+1}], v{vWt} offset:{512*k}")
    def rbread(k): a(f"ds_read_b64 v[{RB+2*(k%2)}:{RB+2*(k%2)+1}], v{vRb} offset:{512*k}")
    rbread(0); rbread(1)
    vm = [("m", i) for i in range(NPRE)]
    def mf(d, w, i):
        h = 2 * (i % 2); r = RB + 2 * ((i // 2) % 2)
        a(f"v_mfma_f32_16x16x16_bf16 v[{d}:{d+3}], v[{w+h}:{w+h+1}], v[{r}:{r+1}], 0")
    def pack(i):
        c0 = ACC + 4 * i
        for u in range(2): a(f"v_cvt_pk_bf16_f32 v{c0+u}, v{c0+2*u}, v{c0+2*u+1}")
    def stage_a(i):
        c0 = ACC + 4 * i
        a(f"v_mfma_f32_16x16x16_bf16 v[{ZZ}:{ZZ+3}], v[{WD}:{WD+1}], v[{c0}:{c0+1}], 0")
        mf(SS, WS_, i)
    def stage_b(i):
        c0 = ACC + 4 * i
        if o.pk:
            for c in (0, 2): a(f"v_pk_mul_f32 v[{c0+c}:{c0+c+1}], v[{SS+c}:{SS+c+1}], v[{ZZ+c}:{ZZ+c+1}]")
        else:
            for c in range(4): a(f"v_mul_f32 v{c0+c}, v{SS+c}, v{ZZ+c}")
        pack(i)
        if i + 1 < NS: pack(i + 1)
        mf(GG, WR_, i)
        if i % 2 == 1 and i // 2 + 2 <= 8: rbread(i // 2 + 2)
        a(f"v_mfma_f32_16x16x16_bf16 v[{UU}:{UU+3}], v[{WU}:{WU+1}], v[{c0}:{c0+1}], 0")
        if i + 1 < NS:
            if i % 2 == 1: a(f"s_waitcnt lgkmcnt({1 if i // 2 + 2 <= 8 else 0})")
            stage_a(i + 1)
    def stage_c(i):
        c0 = ACC + 4 * i; m = mreg[i]
        a(f"s_waitcnt vmcnt({len(vm) - 1 - vm.index(('m', i))})")
        a(f"v_lshlrev_b32 v{c0}, 16, v{m}")
        a(f"v_and_b32 v{c0+1}, 0xffff0000, v{m}")
        a(f"v_lshlrev_b32 v{c0+2}, 16, v{m+1}")
        a(f"v_and_b32 v{c0+3}, 0xffff0000, v{m+1}")
        if o.pk:
            for c in (0, 2): a(f"v_pk_fma_f32 v[{c0+c}:{c0+c+1}], v[{UU+c}:{UU+c+1}], v[{GG+c}:{GG+c+1}], v[{c0+c}:{c0+c+1}]")
        else:
            for c in range(4): a(f"v_fma_f32 v{c0+c}, v{UU+c}, v{GG+c}, v{c0+c}")
        for u in range(2): a(f"v_cvt_pk_bf16_f32 v{m+u}, v{c0+2*u}, v{c0+2*u+1}")
        a(f"buffer_store_dwordx2 v[{m}:{m+1}], v{vSo}, s[28:31], 0 offen {o.ost}")
        a(f"v_add_u32 v{vSo}, {512*32}, v{vSo}")
        vm.append(("s", i))
        for k in (NPRE + 2 * i, NPRE + 2 * i + 1):
            if k < NS: mload(k); vm.append(("m", k))
    pack(0)
    a("s_waitcnt lgkmcnt(0)")
    stage_a(0)
    stage_b(0)
    for i in range(NS):
        if i == NS - 1:
            a("s_cmp_lt_u32 s50, 17")
            a("s_cbranch_scc1 P2_fin")
        stage_c(i)
        if i + 1 < NS: stage_b(i + 1)
    a("P2_fin:")
    if o.prof:
        P.stamp()
        a("s_waitcnt vmcnt(0)")
        P.stamp(True)
        P.dump(32, 0x80000, 34, 3)
    a("P2_end:")
    a("s_endpgm")

KD = """.amdhsa_kernel {name}
  .amdhsa_next_free_vgpr 128
  .amdhsa_next_free_sgpr 100
  .amdhsa_accum_offset 128
  .amdhsa_group_segment_fixed_size 0
  .amdhsa_kernarg_size 112
  .amdhsa_user_sgpr_count 2
  .amdhsa_user_sgpr_kernarg_segment_ptr 1
  .amdhsa_system_sgpr_workgroup_id_x 1
  .amdhsa_float_denorm_mode_32 3
.end_amdhsa_kernel
"""

NAME = "gather_scatter__molecular_angular_gemnet__graph_kernel"

def build(o):
    GUARD[0] = 1000000 if o.maxr else 0
    a = Asm(); P = Prof(a, o.prof, 1)
    xw, stg = gen_p1(o, a, P); gen_p2(o, a, P, xw, stg)
    ref = open("gather_scatter__molecular_angular_gemnet__graph.s.ref").read().split("\n")
    head = [l for l in ref if l.startswith(";") and "launch geometry" not in l and "Harness parses" not in l and "@launch" not in l]
    s = "\n".join(head) + "\n"
    s += "; Part 1 partitions the triplets by (input slice, output bin); part 2 gathers / segment-sums with MFMA.\n"
    s += f"; @launch grid=(256,1,1) block=(1024,1,1) lds={xw + 64}\n"
    s += '.amdgcn_target "amdgcn-amd-amdhsa--gfx950"\n.text\n'
    s += f".globl {NAME}\n.p2align 8\n.type {NAME},@function\n{NAME}:\n" + a.finish()
    s += '.section .rodata,"a"\n.p2align 6\n' + KD.format(name=NAME)
    return s

def parser():
    p = argparse.ArgumentParser()
    p.add_argument("-S", type=int, default=11)
    for k, d in dict(prof=0, maxr=0, dstep=4, asplit=12, sw=1, psleep=2, csleep=2, gsleep=24, maxpoll=1000000, eprio=0, nd=4, wsh=50, xp=0, skip=1, l0=9, pfs=14, pfd=2, own=1, swo=36000, swd=0, nornd=0, pp=5, nb=5, pk=1, sw0=4, pf0=3, pfw=0, pfn=5, ldp=1, spr=2, f0=0, cpf=14, nl=5, lstep=0, fuse=1, cmap=2, rot=0).items():
        p.add_argument("--" + k, type=int, default=d)
    p.add_argument("--p1_ld", default="nt")
    p.add_argument("--p1_st", default="sc1")
    p.add_argument("--ost", default="nt")
    p.add_argument("--gfl", default="")
    p.add_argument("-o", default="gather_scatter__molecular_angular_gemnet__graph.s")
    return p

if __name__ == "__main__":
    o = parser().parse_args()
    open(o.o, "w").write(build(o))
```

```python
import sys, argparse
from asmlib import Asm

E = 800000; T = 12800000
NT = 256
CHA = 25088
TILE_N = 50000
TILE_BYTES = 300032
WS_DESC = 0x5000000
WS_PROF = 0x6000000
CAP = 56
WSTR = CAP * 4
MARK = 0x38100000
NG = 196
RS = 18
RMASK = (0xffffffff << (RS + 6) | (1 << RS) - 1) & 0xffffffff
ROVF = (1 << (RS + 6)) - 1
CL = E // 8
WREG = 9472

GUARD = [0]
def guard(a):
    if GUARD[0]:
        a("s_add_u32 s99, s99, 1")
        a(f"s_cmp_gt_u32 s99, {GUARD[0]}")
        a("s_cbranch_scc1 P2_end")

def slicing(o):
    B = (o.f0 << 26) // 100
    K = ((o.S << 26) - B) // E
    return K, B

def srd(a, d, base, size, off=None):
    if off is None:
        a(f"s_mov_b32 s{d}, s{base}")
        a(f"s_mov_b32 s{d+1}, s{base+1}")
    else:
        a(f"s_add_u32 s{d}, s{base}, {off}")
        a(f"s_addc_u32 s{d+1}, s{base+1}, 0")
    a(f"s_mov_b32 s{d+2}, {size}")
    a(f"s_mov_b32 s{d+3}, 0x20000")

class Prof:
    def __init__(self, a, on, fuse=0): self.a = a; self.on = on; self.n = 0; self.fuse = fuse
    def stamp(self, key=False):
        if not self.on or (self.on == 2 and not key): return
        a = self.a
        a("s_waitcnt lgkmcnt(0)")
        a("s_memtime s[58:59]")
        a("s_waitcnt lgkmcnt(0)")
        a(f"s_mov_b32 s{60+self.n}, s58")
        a("s_memrealtime s[58:59]")
        a("s_waitcnt lgkmcnt(0)")
        a(f"s_mov_b32 s{72+self.n}, s58")
        self.n += 1
    def dump(self, wsreg, region, vt, wave_sreg):
        if not self.on: return
        a = self.a
        srd(a, 52, wsreg, 0x100000, WS_PROF + region)
        a(f"s_lshl_b32 s56, s2, 4")
        a(f"s_add_u32 s56, s56, s{wave_sreg}")
        a(f"s_lshl_b32 s56, s56, 7")
        a("s_mov_b64 exec, 1")
        for i in range(self.n):
            a(f"v_mov_b32 v{vt}, s56")
            a(f"v_mov_b32 v{vt+1}, s{60+i}")
            a(f"buffer_store_dword v{vt+1}, v{vt}, s[52:55], 0 offen offset:{4*i}")
            a(f"v_mov_b32 v{vt+1}, s{72+i}")
            a(f"buffer_store_dword v{vt+1}, v{vt}, s[52:55], 0 offen offset:{64+4*i}")
        a(f"v_mov_b32 v{vt+1}, s71")
        a(f"buffer_store_dword v{vt+1}, v{vt}, s[52:55], 0 offen offset:124")
        a("s_waitcnt vmcnt(0)")
        a("s_mov_b64 exec, -1")

def gen_p1(o, a, P):
    S = o.S
    NK = S * 256
    KSL, BSL = slicing(o)
    CN = 16; SCR = CN + NK * 4; STG = SCR + 64; XW = STG + CHA * 6
    W0 = 4; KP0 = 53; C0 = 78; TO = 103; T0 = 104
    ld = o.p1_ld; st = o.p1_st
    def issue_idx(r):
        b = C0 + 4 * (r % 6); w = W0 + 4 * r
        a(f"buffer_load_dwordx4 v[{b}:{b+3}], v1, s[12:15], s36 offen {ld}")
        a(f"buffer_load_dwordx4 v[{w}:{w+3}], v1, s[8:11], s36 offen {ld}")
        a(f"s_add_u32 s36, s36, 16384")
    def issue_ang(r):
        b = C0 + 2 * r
        a(f"buffer_load_dwordx2 v[{b}:{b+1}], v2, s[16:19], s37 offen {ld}")
        a(f"s_add_u32 s37, s37, 8192")
    DP = o.ldp
    a("s_load_dwordx2 s[8:9], s[0:1], 8")
    a("s_load_dwordx2 s[12:13], s[0:1], 16")
    a("s_cmp_ge_u32 s2, 256")
    a("s_cbranch_scc1 P2_end")
    if o.cpf:
        a("s_getpc_b64 s[40:41]")
        a("P1_pc:")
        a("s_lshr_b32 s45, s2, 3")
        a(f"s_mulk_i32 s45, {o.cpf}")
        a(f"s_mov_b32 s42, P2_end-P1_pc")
        a("s_mov_b32 s43, 0x20000")
        a(f"v_add_lshl_u32 v{T0+23}, v0, s45, 7")
        a(f"v_cmp_gt_u32 vcc, {o.cpf}, v0")
        a("s_and_b64 exec, exec, vcc")
        a("s_cbranch_execz P1_nopf")
        a(f"buffer_load_dword v{T0+23}, v{T0+23}, s[40:43], 0 offen")
        a("P1_nopf:")
        a("s_mov_b64 exec, -1")
    a(f"s_mov_b32 s10, {T * 4}")
    a("s_mov_b32 s11, 0x20000")
    a("s_mov_b64 s[14:15], s[10:11]")
    a(f"s_mul_i32 s36, s2, {12 * 16384}")
    a("v_lshlrev_b32 v1, 4, v0")
    a("s_waitcnt lgkmcnt(0)")
    P.stamp(True)
    for r in range(DP): issue_idx(r)
    if GUARD[0]: a("s_mov_b32 s99, 0")
    a("s_load_dwordx2 s[16:17], s[0:1], 32")
    a("s_load_dwordx2 s[30:31], s[0:1], 48")
    a("s_load_dwordx2 s[32:33], s[0:1], 104")
    a("s_load_dwordx2 s[94:95], s[0:1], 96")
    a("s_load_dwordx2 s[48:49], s[0:1], 0")
    a("s_load_dwordx2 s[86:87], s[0:1], 88")
    a("v_lshlrev_b32 v2, 3, v0")
    a("v_mov_b32 v3, 1")
    for i in range(4): a(f"v_mov_b32 v{T0+i}, 0")
    a(f"ds_write_b128 v1, v[{T0}:{T0+3}]")
    a(f"v_lshrrev_b32 v{T0+4}, 6, v0")
    a(f"v_readfirstlane_b32 s3, v{T0+4}")
    a(f"s_mul_i32 s34, s2, 848")
    a(f"s_add_u32 s34, s34, {3072*4096}")
    a(f"v_add_u32 v109, s34, v0")
    a(f"v_cmp_gt_u32 vcc, 848, v0")
    a(f"v_lshlrev_b32 v110, 2, v109")
    a(f"v_lshlrev_b32 v109, 1, v109")
    a(f"v_cndmask_b32 v110, 2.0, v110, vcc")
    a(f"v_cndmask_b32 v109, 2.0, v109, vcc")
    a(f"buffer_load_dword v{TO}, v110, s[12:15], 0 offen {ld}")
    a(f"buffer_load_dword v{W0+48}, v110, s[8:11], 0 offen {ld}")
    a(f"s_mov_b32 s18, {T * 2}")
    a("s_mov_b32 s19, 0x20000")
    a(f"s_mul_i32 s37, s2, {12 * 8192}")
    a("s_waitcnt lgkmcnt(0)")
    a("s_load_dword s35, s[30:31], 0")
    a(f"buffer_load_ushort v{C0+24}, v109, s[16:19], 0 offen {ld}")
    a("s_mov_b32 s38, 0x7c00")
    MG = -(-(1 << 19) // S)
    assert all((n * MG) >> 19 == n // S for n in range(4096))
    a(f"s_mov_b32 s40, {(-(1024*S - 4)) & 0xffffffff}")
    for j in range(4):
        t = T0 + 16 + j
        a(f"v_lshl_add_u32 v{t}, v0, 2, {j}")
        a(f"v_mul_u32_u24 v{T0}, {MG}, v{t}")
        a(f"v_lshrrev_b32 v{T0}, 19, v{T0}")
        a(f"v_lshlrev_b32 v{t}, 10, v{t}")
        a(f"v_mad_i32_i24 v{t}, v{T0}, s40, v{t}")
        a(f"v_add_u32 v{t}, {STG}, v{t}")
    srd(a, 20, 32, NT * NT * S * 4, WS_DESC)
    srd(a, 24, 94, 256)
    a("s_mov_b32 s44, 0")
    a(f"s_mov_b32 s39, {KSL}")
    a(f"v_mov_b32 v{T0+22}, {(BSL - (CL * KSL if o.own == 1 else 0)) & 0xffffffff}")
    a(f"s_mov_b32 s5, {CL}")
    a(f"v_mov_b32 v{T0+20}, 0x7c")
    a(f"v_mov_b32 v{T0+21}, 0x0ff00000")
    a("s_barrier")
    KX = -(-(1 << 28) // (CL // 16))
    assert all(((k * (CL // 16) + d) * KX) >> 28 == (k * (CL // 16) + d) // (CL // 16) for k in range(1, 9) for d in (-1, 0) if k < 8 or d < 0)
    def key(O, W, t):
        x, xb, d, n = t, t + 1, t + 2, t + 3
        a(f"v_and_b32 v{x}, -16, v{O}")
        a(f"v_mul_hi_u32_u24 v{x}, {KX}, v{x}")
        a(f"v_mul_u32_u24 v{xb}, {CL}, v{x}")
        a(f"v_sub_u32 v{d}, v{W}, v{xb}")
        a(f"v_sub_u32 v{O}, v{O}, v{xb}")
        if o.own == 1:
            a(f"v_cmp_gt_u32 s[42:43], s5, v{d}")
            a(f"v_ashrrev_i32 v{n}, 31, v{d}")
            a(f"v_add_u32 v{d}, {8 * CL}, v{d}")
            a(f"v_and_b32 v{n}, {CL}, v{n}")
            a(f"v_add_u32 v{n}, v{n}, v{W}")
            a(f"v_cndmask_b32 v{n}, v{n}, v{d}, s[42:43]")
        elif o.own == 2:
            a(f"v_subrev_u32 v{d}, {CL}, v{d}")
            a(f"v_add_u32 v{n}, {E}, v{d}")
            a(f"v_min_u32 v{n}, v{n}, v{d}")
        else:
            a(f"v_mov_b32 v{n}, v{W}")
        a(f"v_lshlrev_b32 v{xb}, 11, v{O}")
        a(f"v_lshl_or_b32 v{W}, v{O}, 28, v{W}")
        a(f"v_mad_u32_u24 v{n}, v{n}, s39, v{T0+22}")
        a(f"v_lshrrev_b32 v{O}, 2, v{O}")
        a(f"v_bitop3_b32 v{W}, v{xb}, v{T0+21}, v{W} bitop3:0xea")
        a(f"v_and_b32_sdwa v{n}, v{n}, s38 dst_sel:DWORD dst_unused:UNUSED_PAD src0_sel:WORD_1 src1_sel:DWORD")
        a(f"v_lshl_or_b32 v{n}, v{x}, 7, v{n}")
        a(f"v_bitop3_b32 v{O}, v{O}, v{T0+20}, v{n} bitop3:0xea")
    for r in range(12):
        a(f"s_waitcnt vmcnt({min(2*DP-2, 2*(11-r)) + (3 if r < DP else 0)})")
        if DP < 6 and r + DP < 12: issue_idx(r + DP)
        if r == DP:
            key(TO, W0 + 48, T0)
            a(f"v_cndmask_b32 v{KP0+24}, 2.0, v{TO}, vcc")
            a(f"ds_add_u32 v{KP0+24}, v3 offset:{CN}")
        b = C0 + 4 * (r % 6)
        for j in range(4):
            key(b + j, W0 + 4 * r + j, T0 + 4 * j)
            a(f"ds_add_u32 v{b+j}, v3 offset:{CN}")
        a(f"v_lshl_or_b32 v{KP0+2*r}, v{b+1}, 16, v{b}")
        a(f"v_lshl_or_b32 v{KP0+2*r+1}, v{b+3}, 16, v{b+2}")
        if DP == 6 and r < 6: issue_idx(r + 6)
    a("s_waitcnt lgkmcnt(0)")
    a("s_barrier")
    P.stamp()
    c = T0; x = T0 + 4; tot = T0 + 5; y = T0 + 6
    a(f"s_cmp_ge_u32 s3, {S}")
    a("s_cbranch_scc1 P1_scan1")
    a(f"ds_read_b128 v[{c}:{c+3}], v1 offset:{CN}")
    a("s_waitcnt lgkmcnt(0)")
    a(f"v_add_u32 v{c+1}, v{c}, v{c+1}")
    a(f"v_add_u32 v{c+2}, v{c+1}, v{c+2}")
    a(f"v_add_u32 v{c+3}, v{c+2}, v{c+3}")
    a(f"v_mov_b32 v{x}, v{c+3}")
    for sh in (1, 2, 4, 8):
        a(f"v_add_u32_dpp v{x}, v{x}, v{x} row_shr:{sh} row_mask:0xf bank_mask:0xf bound_ctrl:1")
    a(f"v_add_u32_dpp v{x}, v{x}, v{x} row_bcast:15 row_mask:0xa bank_mask:0xf")
    a(f"v_add_u32_dpp v{x}, v{x}, v{x} row_bcast:31 row_mask:0xc bank_mask:0xf")
    a(f"v_readlane_b32 s40, v{x}, 63")
    a(f"s_lshl_b32 s41, s3, 2")
    a(f"v_mov_b32 v{y}, s41")
    a(f"v_mov_b32 v{y+1}, s40")
    a(f"ds_write_b32 v{y}, v{y+1} offset:{SCR}")
    a("s_waitcnt lgkmcnt(0)")
    a("P1_scan1:")
    a("s_barrier")
    a(f"s_cmp_ge_u32 s3, {S}")
    a("s_cbranch_scc1 P1_scan2")
    a(f"v_and_b32 v{y}, 63, v0")
    a(f"v_lshlrev_b32 v{y+1}, 2, v{y}")
    a(f"ds_read_b32 v{y+2}, v{y+1} offset:{SCR}")
    a(f"v_cmp_gt_u32 s[42:43], s3, v{y}")
    a(f"v_sub_u32 v{x}, v{x}, v{c+3}")
    a("s_waitcnt lgkmcnt(0)")
    a(f"v_cndmask_b32 v{y+2}, 0, v{y+2}, s[42:43]")
    for sh in (1, 2, 4, 8):
        a(f"v_add_u32_dpp v{y+2}, v{y+2}, v{y+2} row_shr:{sh} row_mask:0xf bank_mask:0xf bound_ctrl:1")
    a(f"v_readlane_b32 s40, v{y+2}, 15")
    s0 = T0 + 12
    a(f"v_add_u32 v{s0}, s40, v{x}")
    for j in range(3): a(f"v_add_u32 v{s0+1+j}, v{s0}, v{c+j}")
    a(f"ds_write_b128 v1, v[{s0}:{s0+3}] offset:{CN}")
    a(f"ds_write_b128 v1, v[{s0}:{s0+3}] offset:{STG}")
    a(f"v_mov_b32 v{c}, {STG + NK * 4}")
    a(f"v_mov_b32 v{c+1}, {TILE_N}")
    a(f"ds_write_b32 v{c}, v{c+1}")
    a("s_waitcnt lgkmcnt(0)")
    a("P1_scan2:")
    a("s_barrier")
    a(f"s_cmp_ge_u32 s3, {S}")
    a("s_cbranch_scc1 P1_nodesc")
    for j in range(4):
        a(f"ds_read2_b32 v[{T0+2*j}:{T0+2*j+1}], v{T0+16+j} offset0:0 offset1:1")
    a(f"s_mul_i32 s40, s2, {256*S*4}")
    lds_count(a, T0 + 8, 4)
    for j in range(4): a(f"v_lshl_or_b32 v{T0+12+j}, v{T0+2*j+1}, 16, v{T0+2*j}")
    a(f"buffer_store_dwordx4 v[{T0+12}:{T0+15}], v1, s[20:23], s40 offen {st}")
    a("P1_nodesc:")
    a(f"s_mul_i32 s40, s3, {WREG - 1024}")
    a(f"s_add_u32 s40, s40, {9*1024}")
    a(f"v_add_u32 v{TO}, s40, v1")
    srd(a, 8, 48, E * 32)
    a(f"s_mul_i32 s41, s2, {o.pfn * 64}")
    a(f"s_sub_u32 s41, s41, {o.pfw * 64}")
    a("v_add_lshl_u32 v1, v0, s41, 7")
    if o.pp & 1: a("s_setprio 3")
    def atomics(n):
        t = T0 + 4 * (n % 2)
        if n == 12:
            a(f"ds_add_rtn_u32 v{t}, v{KP0+24}, v3 offset:{CN}"); return 1
        for j in range(4):
            kp = KP0 + 2 * n + j // 2
            if j % 2 == 0: a(f"v_and_b32 v{t+j}, 0xffff, v{kp}")
            else: a(f"v_lshrrev_b32 v{t+j}, 16, v{kp}")
            a(f"ds_add_rtn_u32 v{t+j}, v{t+j}, v3 offset:{CN}")
        return 4
    a(f"s_cmp_ge_u32 s3, {o.asplit}")
    a("s_cbranch_scc1 P1_ang1")
    for n in range(12): issue_ang(n)
    a("P1_ang1:")
    atomics(0)
    for n in range(13):
        k = atomics(n + 1) if n < 12 else 0
        a(f"s_waitcnt lgkmcnt({k})")
        t = T0 + 4 * (n % 2); u = T0 + 8
        if n < 12:
            a(f"v_lshl_or_b32 v{KP0+2*n}, v{t+1}, 16, v{t}")
            a(f"v_lshl_or_b32 v{KP0+2*n+1}, v{t+3}, 16, v{t+2}")
        else:
            a(f"v_mov_b32 v{u}, 0xffff")
            a(f"v_cndmask_b32 v{KP0+24}, v{u}, v{t}, vcc")
    a(f"s_cmp_lt_u32 s3, {o.asplit}")
    a("s_cbranch_scc1 P1_ang2")
    for n in range(12): issue_ang(n)
    a("P1_ang2:")
    a("s_lshl_b32 s35, s35, 16")
    a("s_cmp_eq_u32 s35, 1.0")
    a("s_cbranch_scc1 P1_f1")
    a("s_waitcnt vmcnt(0)")
    for n in range(25):
        cr = C0 + n; t = T0
        a(f"v_lshlrev_b32 v{t}, 16, v{cr}")
        a(f"v_and_b32 v{t+1}, 0xffff0000, v{cr}")
        a(f"v_mul_f32 v{t}, s35, v{t}")
        a(f"v_mul_f32 v{t+1}, s35, v{t+1}")
        a(f"v_cvt_pk_bf16_f32 v{cr}, v{t}, v{t+1}")
    a("P1_f1:")
    lds_wait(a, T0, 4, S, "q", 0)
    def addrs(n, h, u, base):
        a(f"v_mad_u32_u16 v{u}, v{KP0+n}, 6, {base}" + (" op_sel:[1,0,0,0]" if h else ""))
        a(f"v_and_b32 v{u+1}, 2, v{u}")
        a(f"v_sub_u32 v{u}, v{u}, v{u+1}")
        a(f"v_sub_u32 v{u+1}, v{u}, v{u+1}")
    for n in range(25):
        cr = C0 + n; t = T0 + 6 * (n % 2)
        if o.pp & 1 and n in (0, 9, 17): a(f"s_setprio {2 - n // 8}")
        if o.pf0 == 3:
            if n == 0: a("s_waitcnt vmcnt(0)")
            for w in range(o.pfn):
                if o.pfs + (w * o.pfd) // 2 == n:
                    a(f"s_cmp_lg_u32 s3, {o.pfw + w}")
                    a(f"s_cbranch_scc1 P1_npf{w}")
                    a("buffer_load_dword v1, v1, s[8:11], 0 offen")
                    a(f"P1_npf{w}:")
        elif n % 2 == 0 and n < 24: a(f"s_waitcnt vmcnt({11 - n // 2})")
        if n == 0:
            a(f"s_cmp_ge_u32 s3, {S}")
            a("s_cbranch_scc1 P1_noe")
            a("s_waitcnt vmcnt(0)")
            lds_ticket(a, 2, 8)
            a(f"s_cmp_lg_u32 s40, {S-1}")
            a("s_cbranch_scc1 P1_noe")
            arrive(a, 2, LV_E)
            a("s_mov_b32 s44, 1")
            a("P1_noe:")
        if n == 14:
            a("s_cmp_eq_u32 s44, 0")
            a("s_cbranch_scc1 P2_norele")
            release(a, 2, LV_E, "e")
        a(f"v_lshlrev_b32 v{t}, 16, v{cr}")
        a(f"v_and_b32 v{t+1}, 0xffff0000, v{cr}")
        a(f"v_mul_f32 v{t}, 0.15915494, v{t}")
        a(f"v_mul_f32 v{t+1}, 0.15915494, v{t+1}")
        a(f"v_fract_f32 v{t}, v{t}")
        a(f"v_fract_f32 v{t+1}, v{t+1}")
        a(f"v_cos_f32 v{t}, v{t}")
        a(f"v_cos_f32 v{t+1}, v{t+1}")
        for h in range(2 if n < 24 else 1):
            u = t + 2 + 2 * h
            addrs(n, h, u, 0)
            a(f"ds_write_b32 v{u}, v{W0+2*n+h} offset:{STG}")
        a(f"v_cvt_pk_bf16_f32 v{cr}, v{t}, v{t+1}")
        a(f"ds_write_b16 v{t+3}, v{cr} offset:{STG+8}")
        if n < 24: a(f"ds_write_b16_d16_hi v{t+5}, v{cr} offset:{STG+8}")
    a(f"s_mul_i32 s40, s2, {TILE_BYTES}")
    srd(a, 20, 32, CHA * 6, "s40")
    a(f"v_subrev_u32 v2, {9*1024}, v{TO}")
    a("s_mov_b32 s44, 0")
    if o.pf0 == 2:
        a(f"s_sub_u32 s40, s3, {o.pfw}")
        a(f"s_cmp_ge_u32 s40, {o.pfn}")
        a("s_cbranch_scc1 P1_nopf0")
        a("buffer_load_dword v1, v1, s[8:11], 0 offen")
        a("P1_nopf0:")
    a("s_waitcnt lgkmcnt(0)")
    a("s_barrier")
    P.stamp()
    a(f"s_cmp_lg_u32 s3, 15")
    a("s_cbranch_scc1 P1_noclr")
    a(f"v_and_b32 v3, 15, v0")
    a(f"v_lshlrev_b32 v3, 2, v3")
    a(f"v_add_u32 v3, {XW}, v3")
    a(f"v_mov_b32 v{T0}, 0")
    a(f"ds_write_b32 v3, v{T0}")
    a("P1_noclr:")
    def rd(k):
        t = T0 + 4 * (k % 6)
        a(f"ds_read_b128 v[{t}:{t+3}], v2 offset:{STG + 1024 * (9 - k)}")
    def store(k):
        t = T0 + 4 * (k % 6)
        if k == 0: a("s_mov_b64 exec, 0xffff")
        a(f"buffer_store_dwordx4 v[{t}:{t+3}], v{TO}, s[20:23], 0 offen {st}")
        if k == 0: a("s_mov_b64 exec, -1")
        a(f"v_subrev_u32 v{TO}, 1024, v{TO}")
    NB = o.nb
    for k in range(6): rd(k)
    for k in range(NB):
        a(f"s_waitcnt lgkmcnt({min(5, 9-k)})")
        store(k)
        if k + 6 < 10: rd(k + 6)
    a(f"s_waitcnt vmcnt({NB}) lgkmcnt(0)")
    a(f"s_cmp_ge_u32 s3, {o.nd}")
    a("s_cbranch_scc1 P1_nod")
    for k in range(NB, 10): store(k)
    a("s_waitcnt vmcnt(0)")
    lds_ticket(a, T0, 0)
    a(f"s_cmp_lg_u32 s40, {o.nd-1}")
    a("s_cbranch_scc1 P1_nod")
    arrive(a, T0, LV_D)
    a("s_mov_b32 s44, 1")
    a("P1_nod:")
    a(f"s_mov_b32 s45, {(-CHA*6) & 0xffffffff}")
    a("s_barrier")
    P.stamp()
    nnow = NB
    for n in range(25):
        if o.pp & 2 and n in (0, 9, 17): a(f"s_setprio {2 - n // 8}")
        if o.pp & 4 and n in (0, 9, 17):
            if n == 0: a("s_setprio 3")
            a("s_cmp_lt_u32 s3, 4")
            a(f"s_cbranch_scc1 P1_pr{n}")
            a(f"s_setprio {2 - n // 8}")
            a(f"P1_pr{n}:")
        if n == 1:
            a("s_cmp_eq_u32 s44, 0")
            a("s_cbranch_scc1 P2_noreld")
            release(a, T0, LV_D, "d")
        if n % o.dstep == 1 and nnow < 10:
            a(f"s_cmp_lt_u32 s3, {o.nd}")
            a(f"s_cbranch_scc1 P1_ns{n}")
            store(nnow); nnow += 1
            a(f"P1_ns{n}:")
        for h in range(2 if n < 24 else 1):
            u = 2 * h
            addrs(n, h, u, "s45")
            a(f"ds_write_b32 v{u}, v{W0+2*n+h} offset:{STG}")
            a(f"ds_write_b16{'_d16_hi' if h else ''} v{u+1}, v{C0+n} offset:{STG+8}")
    assert nnow == 10
    lds_count(a, 4, XW + X_S)
    a(f"s_mul_i32 s40, s2, {TILE_BYTES}")
    a(f"s_add_u32 s40, s40, {CHA*6}")
    srd(a, 20, 32, (TILE_N - CHA) * 6, "s40")
    return XW, STG

LV_A, LV_B, LV_D, LV_E = 0, 1, 2, 3
X_A, X_S, X_X, X_I, X_B, X_R, X_C, X_H, X_CW, X_PW = 0, 4, 8, 12, 16, 20, 24, 28, 32, 48

def arrive(a, t, level):
    a(f"v_mov_b32 v{t}, 0")
    a(f"v_mov_b32 v{t+1}, 1")
    a("s_mov_b64 exec, 1")
    a(f"buffer_atomic_add v{t+1}, v{t}, s[24:27], 0 offen offset:{32*level} sc0 sc1")
    a("s_mov_b64 exec, -1")

def release(a, t, level, tag):
    a("s_waitcnt vmcnt(0)")
    a(f"v_readfirstlane_b32 s40, v{t+1}")
    a("s_cmp_lg_u32 s40, 255")
    a(f"s_cbranch_scc1 P2_norel{tag}")
    a("s_mov_b64 exec, 1")
    a(f"buffer_store_dword v{t+1}, v{t}, s[24:27], 0 offen offset:{128+4*level} sc1")
    a("s_mov_b64 exec, -1")
    a(f"P2_norel{tag}:")

def lds_count(a, t, word):
    a(f"v_mov_b32 v{t}, {word}")
    a(f"v_mov_b32 v{t+1}, 1")
    a("s_mov_b64 exec, 1")
    a("s_waitcnt lgkmcnt(0)")
    a(f"ds_add_u32 v{t}, v{t+1}")
    a("s_mov_b64 exec, -1")

def lds_wait(a, t, word, n, tag, sleep):
    a(f"v_mov_b32 v{t}, {word}")
    a(f"P2_lw{tag}:")
    a(f"ds_read_b32 v{t+1}, v{t}")
    a("s_waitcnt lgkmcnt(0)")
    a(f"v_readfirstlane_b32 s40, v{t+1}")
    a(f"s_cmp_ge_u32 s40, {n}")
    a(f"s_cbranch_scc1 P2_lg{tag}")
    if sleep: a(f"s_sleep {sleep}")
    guard(a)
    a(f"s_branch P2_lw{tag}")
    a(f"P2_lg{tag}:")

def lds_ticket(a, t, word):
    a(f"v_mov_b32 v{t}, {word}")
    a(f"v_mov_b32 v{t+1}, 1")
    a("s_mov_b64 exec, 1")
    a(f"ds_add_rtn_u32 v{t+1}, v{t}, v{t+1}")
    a("s_mov_b64 exec, -1")
    a("s_waitcnt lgkmcnt(0)")
    a(f"v_readfirstlane_b32 s40, v{t+1}")

def publish_a(a, t, XW, tag):
    lds_ticket(a, t, XW + X_A)
    a("s_cmp_lg_u32 s40, 15")
    a(f"s_cbranch_scc1 P2_norel{tag}")
    arrive(a, t, LV_A)
    release(a, t, LV_A, tag)

def gen_p2(o, a, P, XW, STG):
    S = o.S
    uid = [0]
    LUT = 2048; CB = 2560; WSZ = NG * WSTR
    RBSZ = 100 * 512
    X1 = RBSZ + 32
    WT = CB + WSZ // 2 + 16
    WB = CB + X1 // 2 + WSZ // 2 + 16
    RB_AT = (WB, WB + WSZ + 32)
    K0 = (WB - STG) // 12288; K1 = (WB + X1 - STG) // 12288
    assert STG + 12288 * (K0 + 4) >= WB + WSZ + 32 and STG + 12288 * K1 >= WB + WSZ + 32 and STG + 12288 * (K1 + 4) >= WB + X1 + WSZ + 64
    SC = STG + 12288 * (K1 + 4)
    assert WT + 3072 <= CB + X1 // 2 and WB < 65536 and SC + 12288 <= XW and WB % 16 == 0 and X1 % 32 == 0
    if o.xp:
        a("s_bfe_u32 s46, s2, 0x20001")
        a("s_bitcmp0_b32 s2, 0")
        a("s_cselect_b32 s47, 4, 0")
        a("s_add_u32 s46, s46, s47")
    else:
        a("s_and_b32 s46, s2, 7")
    a("s_lshl_b32 s46, s46, 5")
    a("s_lshr_b32 s47, s2, 3")
    a("s_add_u32 s46, s46, s47")
    a("v_mbcnt_lo_u32_b32 v12, -1, 0")
    a("v_mbcnt_hi_u32_b32 v12, -1, v12")
    a("s_lshl_b32 s40, s3, 6")
    a("v_add_u32 v0, s40, v12")
    srd(a, 8, 48, E * 32)
    srd(a, 12, 32, NT * TILE_BYTES)
    srd(a, 16, 32, NT * NT * S * 4, WS_DESC)
    a("s_mov_b64 s[6:7], s[86:87]")
    if o.prof: a("s_mov_b32 s71, 0")
    a("s_mov_b32 s48, 0")
    a("s_cmp_ge_u32 s3, 4")
    a("s_cbranch_scc1 P2_consumer")
    def twait(body):
        if o.prof == 1:
            a("s_waitcnt lgkmcnt(0)")
            a("s_memtime s[56:57]")
            a("s_waitcnt lgkmcnt(0)")
        body()
        if o.prof == 1:
            a("s_memtime s[58:59]")
            a("s_waitcnt lgkmcnt(0)")
            a("s_sub_u32 s56, s58, s56")
            a("s_add_u32 s71, s71, s56")
    D0 = 40; R0 = 64
    vU12 = 1; vTile = 2; vInc = 3; v3FC = 4; vCb = 5; vZ = 6; v2U2 = 7; v2U1 = 8; vSg = 9
    n2c = 10; a0c = 11; n2n = 13; a0n = 14
    vca = 16; vcb = 17; vra = 18; vrb = 19; vwa = 20; vwb = 21; vha = 22; vhb = 23; vt = 24; vt2 = 25; vPW = 26; vS = 28
    ODDC = 52; MORC = 54; ODDN = 84; MORN = 86; ROW0 = 82; M0_ = 88; M1_ = 90
    KSL, BSL = slicing(o)
    L0 = -(-(1 << 26) // KSL) // 4 + 1
    def warm(sl, part):
        nt = -(-L0 // 512); n0 = nt * o.wsh // 100; n1 = nt - n0
        uid[0] += 1
        a(f"s_mul_i32 s40, {sl}, {L0 - 1}")
        a(f"s_lshr_b32 s41, s2, 1")
        a(f"s_lshl_b32 s41, s41, 2")
        a(f"s_add_u32 s41, s41, {part}")
        a(f"s_mul_i32 s41, s41, {nt}")
        a(f"s_add_u32 s40, s40, s41")
        a(f"s_add_u32 s40, s40, {(o.swo // 4 - BSL // KSL // 4) & 0xffffffff}")
        a("s_bitcmp1_b32 s2, 0")
        a(f"s_cselect_b32 s41, {n0}, 0")
        a(f"s_add_u32 s40, s40, s41")
        a(f"s_cmp_ge_u32 s40, {E // 4}")
        a(f"s_cbranch_scc1 P2_we{uid[0]}")
        a(f"s_min_u32 s40, s40, {E // 4 - n1}")
        a(f"s_lshl_b32 s40, s40, 7")
        a(f"s_add_u32 s36, s8, s40")
        a(f"s_addc_u32 s37, s9, 0")
        for j in range(n1):
            if j == n0:
                a("s_bitcmp0_b32 s2, 0")
                a(f"s_cbranch_scc1 P2_we{uid[0]}")
            a(f"s_load_dwordx2 s[38:39], s[36:37], {128*j+60}")
        a(f"P2_we{uid[0]}:")
    def poll(level, tag, meanwhile=None):
        a("s_mov_b32 s51, 0")
        a(f"P2_poll{tag}:")
        a(f"buffer_load_dword v{vt}, v{vZ}, s[24:27], 0 offen offset:{128+4*level} sc1")
        a("s_add_u32 s51, s51, 1")
        a(f"s_cmp_gt_u32 s51, {o.maxpoll}")
        a("s_cbranch_scc1 P2_giveup")
        if meanwhile: a(f"s_call_b64 s[34:35], {meanwhile}")
        a("s_waitcnt vmcnt(0)")
        a(f"v_cmp_eq_u32 vcc, 0, v{vt}")
        a(f"s_cbranch_vccz P2_polled{tag}")
        a(f"s_sleep {o.gsleep}")
        a(f"s_branch P2_poll{tag}")
        a(f"P2_polled{tag}:")
    def ensure():
        uid[0] += 1; u = uid[0]
        a(f"v_cmp_lt_u32 vcc, s45, v{D0}")
        a(f"s_cbranch_vccz P2_have{u}")
        a("s_call_b64 s[42:43], P2_ensure")
        a(f"P2_have{u}:")
    def prep():
        ensure()
        a(f"v_bfe_u32 v{vt}, v{D0}, 1, 15")
        a(f"v_mad_u32_u24 v{a0n}, v{vt}, 12, v{vTile}")
        a(f"v_lshrrev_b32 v{n2n}, 16, v{D0}")
        a(f"v_and_b32 v{vt}, 0xfffe, v{D0}")
        a(f"v_sub_u32 v{n2n}, v{n2n}, v{vt}")
        a(f"v_and_b32 v{vt}, 1, v{D0}")
        a(f"v_cmp_eq_u32 s[{ODDN}:{ODDN+1}], 1, v{vt}")
        a(f"v_cmp_lt_u32 s[{MORN}:{MORN+1}], 32, v{n2n}")
        for k in range(S): a(f"v_mov_b32 v{D0+k}, v{D0+k+1}")
    def issue(i):
        t = (vt, vca)[i % 2]
        a(f"v_add_u32_dpp v{t}, v{a0n}, v{vU12} row_newbcast:{i} row_mask:0xf bank_mask:0xf")
        a(f"v_sub_u32_dpp v{t+1}, v{n2n}, v{v2U1} row_newbcast:{i} row_mask:0xf bank_mask:0xf")
        a(f"v_bitop3_b32 v{t}, v{t+1}, v{vSg}, v{t} bitop3:0xea")
        r = R0 + 4 * i
        a(f"buffer_load_dwordx3 v[{r}:{r+2}], v{t}, s[12:15], 0 offen sc1")
    def unhold():
        a("s_lshl_b32 s40, 1, s3")
        a(f"v_mov_b32 v{vt}, {XW + X_H}")
        a(f"v_mov_b32 v{vt2}, s40")
        a("s_mov_b64 exec, 1")
        a(f"ds_or_b32 v{vt}, v{vt2}")
        a("s_mov_b64 exec, -1")
    def next_round(regular):
        a("s_call_b64 s[42:43], P2_next")
        if regular:
            ensure()
            if o.sw:
                a(f"s_sub_u32 s4, s49, {o.swd}")
                a(f"s_cmp_lt_u32 s4, {o.sw0}")
                a("s_cbranch_scc1 P2_nowarm")
                a(f"s_cmp_ge_u32 s4, {-(-(E - o.swo) // (4 * (L0 - 1)))}")
                a("s_cbranch_scc1 P2_nowarm")
                warm("s4", "s3")
                a("P2_nowarm:")
        a("s_call_b64 s[42:43], P2_wait")
    def wait_buffer(tag):
        a("s_add_u32 s50, s48, 1")
        a("s_lshr_b32 s50, s50, 1")
        a("s_mul_i32 s50, s50, 12")
        a("s_and_b32 s51, s48, 1")
        a("s_lshl_b32 s51, s51, 2")
        a(f"s_add_u32 s51, s51, {XW + X_CW}")
        a(f"v_mov_b32 v{vt2}, s51")
        a(f"P2_pw{tag}:")
        a(f"ds_read_b32 v{vt}, v{vt2}")
        a("s_waitcnt lgkmcnt(0)")
        a(f"v_readfirstlane_b32 s51, v{vt}")
        a("s_cmp_ge_u32 s51, s50")
        a(f"s_cbranch_scc1 P2_pg{tag}")
        a(f"s_sleep {o.psleep}")
        guard(a)
        a(f"s_branch P2_pw{tag}")
        a(f"P2_pg{tag}:")
    a("s_setprio 3")
    a("s_waitcnt vmcnt(0)")
    publish_a(a, vt, XW, "ap")
    a(f"s_lshl_b32 s47, s3, 6")
    a(f"v_add_u32 v{vTile}, s47, v12")
    a(f"s_lshl_b32 s50, s3, 2")
    a(f"s_add_u32 s50, s50, {XW + X_PW}")
    a(f"v_mov_b32 v{vPW}, s50")
    a(f"v_lshlrev_b32 v15, 8, v{vTile}")
    a(f"v_add_u32 v15, s46, v15")
    a(f"v_mul_u32_u24 v15, {4*S}, v15")
    a(f"v_mov_b32 v{D0+S}, 0")
    a(f"v_mul_u32_u24 v{vTile}, {TILE_BYTES}, v{vTile}")
    a(f"v_and_b32 v{vt}, 15, v12")
    a(f"v_mul_u32_u24 v{vU12}, 12, v{vt}")
    a(f"v_lshl_add_u32 v{v2U1}, v{vt}, 1, 1")
    a(f"v_add_u32 v{v2U2}, 1, v{v2U1}")
    a(f"v_mov_b32 v{vInc}, {(1 << RS) + 4}")
    a(f"v_mov_b32 v{v3FC}, 0x3fc")
    a(f"v_mov_b32 v{vSg}, 0x80000000")
    for r in (vCb, vZ, vra, vrb, vS, vS + 1): a(f"v_mov_b32 v{r}, 0")
    a("s_mov_b32 s49, 0")
    a(f"s_mov_b32 s5, {ROVF}")
    a(f"s_mov_b32 s{ROW0}, 0x00010001")
    a(f"s_mov_b32 s{ROW0+1}, 0x00010001")
    a(f"s_mov_b32 s45, {((o.nd * WREG // 12 * 2) << 16) | 0xffff}")
    nsave = P.n
    P.stamp()
    poll(LV_E, "e")
    k = 0
    while k < S:
        w = 4 if S - k >= 4 else (2 if S - k >= 2 else 1)
        sfx = {4: "x4", 2: "x2", 1: ""}[w]
        dst = f"v[{D0+k}:{D0+k+w-1}]" if w > 1 else f"v{D0+k}"
        a(f"buffer_load_dword{sfx} {dst}, v15, s[16:19], 0 offen offset:{4*k} sc1")
        k += w
    poll(LV_D, "d")
    P.stamp()
    prep()
    for i in range(16): issue(i)
    P.stamp()
    def masks(i):
        a(f"v_sub_co_u32_dpp v{vt}, vcc, v{n2c}, v{v2U1} row_newbcast:{i} row_mask:0xf bank_mask:0xf")
        a(f"s_and_b64 s[92:93], s[{ODDC}:{ODDC+1}], s[{ROW0}:{ROW0+1}]")
        a(f"s_nor_b64 s[{M0_}:{M0_+1}], vcc, s[92:93]")
        a(f"v_sub_co_u32_dpp v{vt2}, vcc, v{n2c}, v{v2U2} row_newbcast:{i} row_mask:0xf bank_mask:0xf")
        a(f"s_lshr_b64 s[{ODDC}:{ODDC+1}], s[{ODDC}:{ODDC+1}], 1")
        a(f"s_not_b64 s[{M1_}:{M1_+1}], vcc")
    def place(tg, i):
        r = R0 + 4 * i
        a(f"P2_retry{tg}{i}:")
        a(f"v_lshrrev_b32 v{vca}, 18, v{r}")
        a(f"v_lshrrev_b32 v{vcb}, 18, v{r+1}")
        a(f"v_bitop3_b32 v{vca}, v{vca}, v{v3FC}, v{vCb} bitop3:0xea")
        a(f"v_bitop3_b32 v{vcb}, v{vcb}, v{v3FC}, v{vCb} bitop3:0xea")
        a(f"s_mov_b64 exec, s[{M0_}:{M0_+1}]")
        a(f"ds_add_rtn_u32 v{vra}, v{vca}, v{vInc}")
        a(f"s_mov_b64 exec, s[{M1_}:{M1_+1}]")
        a(f"ds_add_rtn_u32 v{vrb}, v{vcb}, v{vInc}")
        a(f"s_mov_b64 exec, -1")
        a(f"v_and_b32 v{vwa}, 0xf00fffff, v{r}")
        a(f"v_and_b32 v{vwb}, 0xf00fffff, v{r+1}")
        a("s_waitcnt lgkmcnt(0)")
        a(f"v_and_b32 v{vra}, {RMASK}, v{vra}")
        a(f"v_and_b32 v{vrb}, {RMASK}, v{vrb}")
        a(f"v_lshrrev_b32 v{vha}, 1, v{vra}")
        a(f"v_lshrrev_b32 v{vhb}, 1, v{vrb}")
        a(f"v_or_b32 v{vt}, v{vra}, v{vrb}")
        a(f"v_cmp_lt_u32 vcc, {ROVF}, v{vt}")
        a(f"s_mov_b64 exec, s[{M0_}:{M0_+1}]")
        a(f"ds_write_b32 v{vra}, v{vwa} offset:{WB}")
        a(f"ds_write_b16 v{vha}, v{r+2} offset:{CB}")
        a(f"s_mov_b64 exec, s[{M1_}:{M1_+1}]")
        a(f"ds_write_b32 v{vrb}, v{vwb} offset:{WB}")
        a(f"ds_write_b16_d16_hi v{vhb}, v{r+2} offset:{CB}")
        a(f"s_mov_b64 exec, -1")
        a(f"s_cbranch_vccnz P2_stall{tg}{i}")
        a(f"s_and_b64 s[92:93], s[{MORC}:{MORC+1}], s[{ROW0}:{ROW0+1}]")
        a(f"s_cbranch_scc1 P2_more{tg}{i}")
    def take_next():
        a(f"v_mov_b32 v{n2c}, v{n2n}")
        a(f"v_mov_b32 v{a0c}, v{a0n}")
        a(f"s_mov_b64 s[{ODDC}:{ODDC+1}], s[{ODDN}:{ODDN+1}]")
        a(f"s_mov_b64 s[{MORC}:{MORC+1}], s[{MORN}:{MORN+1}]")
    assert S <= 12
    CA = [R0 + 4 * i + 3 for i in range(16)]; CBr = list(range(30, 40)) + list(range(53, 59))
    vMk = 59; vOob = 60; vAcc = 61
    take_next()
    a(f"v_mov_b32 v{vMk}, {RMASK}")
    a(f"v_mov_b32 v{vOob}, {1 << 19}")
    a(f"v_mov_b32 v{vAcc}, 0")
    for i in range(16):
        r = R0 + 4 * i
        masks(i)
        a(f"s_waitcnt vmcnt({15 - i})")
        a(f"v_lshrrev_b32 v{vca}, 18, v{r}")
        a(f"v_lshrrev_b32 v{vcb}, 18, v{r+1}")
        a(f"v_and_b32 v{vca}, v{v3FC}, v{vca}")
        a(f"v_and_b32 v{vcb}, v{v3FC}, v{vcb}")
        a(f"v_cndmask_b32 v{CA[i]}, v{vOob}, v{vca}, s[{M0_}:{M0_+1}]")
        a(f"v_cndmask_b32 v{CBr[i]}, v{vcb}, v{vOob}, vcc")
    lds_wait(a, vt, XW + X_I, 12, "i", 1)
    P.stamp()
    def atom(b):
        for k in range(2):
            i = 2 * b + k; t = 16 + 4 * (b % 2) + 2 * k
            a(f"ds_add_rtn_u32 v{t}, v{CA[i]}, v{vInc}")
            a(f"ds_add_rtn_u32 v{t+1}, v{CBr[i]}, v{vInc}")
    atom(0)
    for b in range(8):
        if b < 7: atom(b + 1)
        a(f"s_waitcnt lgkmcnt({(4 if b < 7 else 0) + (8 if b else 0)})")
        for k in range(2):
            i = 2 * b + k; t = 16 + 4 * (b % 2) + 2 * k; r = R0 + 4 * i
            a(f"v_bitop3_b32 v{CA[i]}, v{vMk}, v{t}, v{CA[i]} bitop3:0xca")
            a(f"v_bitop3_b32 v{CBr[i]}, v{vMk}, v{t+1}, v{CBr[i]} bitop3:0xca")
            a(f"v_and_b32 v24, 0xf00fffff, v{r}")
            a(f"v_and_b32 v25, 0xf00fffff, v{r+1}")
            a(f"v_lshrrev_b32 v27, 1, v{CA[i]}")
            a(f"v_lshrrev_b32 v15, 1, v{CBr[i]}")
            a(f"ds_write_b32 v{CA[i]}, v24 offset:{WB}")
            a(f"ds_write_b16 v27, v{r+2} offset:{CB}")
            a(f"ds_write_b32 v{CBr[i]}, v25 offset:{WB}")
            a(f"ds_write_b16_d16_hi v15, v{r+2} offset:{CB}")
            a(f"v_bitop3_b32 v{vAcc}, v{vAcc}, v{CA[i]}, v{CBr[i]} bitop3:0xfe")
    P.stamp()
    a("s_call_b64 s[42:43], P2_next")
    a(f"v_cmp_lt_u32 vcc, s5, v{vAcc}")
    a(f"v_mov_b32 v{vra}, 0")
    a(f"v_mov_b32 v{vrb}, 0")
    a(f"s_or_b32 s47, s{MORC}, s{MORC+1}")
    a("s_lshr_b32 s40, s47, 16")
    a("s_or_b32 s47, s47, s40")
    a("s_cmp_lg_u64 vcc, 0")
    a("s_cselect_b32 s47, -1, s47")
    a("s_and_b32 s47, s47, 0xffff")
    a("s_cbranch_scc0 P2_ff1")
    a("s_call_b64 s[42:43], P2_wait")
    a("s_branch P2_sweep")
    a("P2_ff1:")
    a("s_mov_b32 s49, 1")
    prep()
    for i in range(16): issue(i)
    a("s_call_b64 s[42:43], P2_wait")
    a("P2_pslice:")
    take_next()
    prep()
    for i in range(16):
        masks(i)
        a("s_waitcnt vmcnt(15)")
        place("", i)
        a(f"s_lshr_b64 s[{MORC}:{MORC+1}], s[{MORC}:{MORC+1}], 1")
        issue(i)
    a("s_add_u32 s49, s49, 1")
    a(f"s_cmp_ge_u32 s49, {S}")
    a("s_cbranch_scc1 P2_pdone")
    a("s_cmp_ge_u32 s48, s49")
    a("s_cbranch_scc1 P2_pslice")
    next_round(True)
    a("s_branch P2_pslice")
    a("P2_next:")
    a("s_add_u32 s48, s48, 1")
    if o.maxr:
        a(f"s_cmp_gt_u32 s48, {o.maxr}")
        a("s_cbranch_scc1 P2_giveup")
    a(f"v_mov_b32 v{vt}, s48")
    a("s_waitcnt lgkmcnt(0)")
    a(f"ds_write_b32 v{vPW}, v{vt}")
    a(f"v_xor_b32 v{vCb}, 1024, v{vCb}")
    def pubb2():
        a("s_cmp_lg_u32 s48, 2")
        a("s_cbranch_scc1 P2_next1")
        a("s_call_b64 s[96:97], P2_pubb")
        a("P2_next1:")
    if not o.nl: pubb2()
    a("s_setpc_b64 s[42:43]")
    a("P2_wait:")
    twait(lambda: wait_buffer("n"))
    if o.nl: pubb2()
    a("s_setpc_b64 s[42:43]")
    a("P2_pubb:")
    lds_ticket(a, vS, XW + X_C)
    a("s_cmp_lg_u32 s40, 0")
    a("s_cbranch_scc1 P2_norelb")
    lds_wait(a, vS, XW + X_B, 12, "b", 1)
    arrive(a, vS, LV_B)
    release(a, vS, LV_B, "b")
    a("s_setpc_b64 s[96:97]")
    a("P2_ensure:")
    poll(LV_A, "a")
    a(f"s_mov_b32 s45, {(CHA << 16) | 0xffff}")
    a(f"v_cmp_lt_u32 vcc, s45, v{D0}")
    a("s_cbranch_vccz P2_ens1")
    unhold()
    a("s_call_b64 s[96:97], P2_pubb")
    poll(LV_B, "b")
    a("s_mov_b32 s45, -1")
    a("P2_ens1:")
    a("s_setpc_b64 s[42:43]")
    for tg, i in [(t_, i_) for t_ in ("", "f") for i_ in range(16)]:
        r = R0 + 4 * i
        a(f"P2_stall{tg}{i}:")
        a(f"v_cmp_lt_u32 s[{M0_}:{M0_+1}], s5, v{vra}")
        a(f"v_cmp_lt_u32 s[{M1_}:{M1_+1}], s5, v{vrb}")
        next_round(False)
        a(f"s_branch P2_retry{tg}{i}")
        a(f"P2_more{tg}{i}:")
        a(f"s_lshl_b64 exec, s[{ROW0}:{ROW0+1}], {i}")
        a(f"v_max_u32 v{n2c}, 32, v{n2c}")
        a(f"v_subrev_u32 v{n2c}, 32, v{n2c}")
        a(f"v_add_u32 v{a0c}, 192, v{a0c}")
        a(f"s_mov_b64 exec, -1")
        a(f"v_sub_u32_dpp v{vt2}, v{n2c}, v{v2U1} row_newbcast:{i} row_mask:0xf bank_mask:0xf")
        a(f"v_add_u32_dpp v{vt}, v{a0c}, v{vU12} row_newbcast:{i} row_mask:0xf bank_mask:0xf")
        a(f"v_bitop3_b32 v{vt}, v{vt2}, v{vSg}, v{vt} bitop3:0xea")
        a(f"buffer_load_dwordx3 v[{r}:{r+2}], v{vt}, s[12:15], 0 offen sc1")
        a(f"v_cmp_lt_u32 vcc, 32, v{n2c}")
        a(f"s_lshr_b64 s[92:93], vcc, {i}")
        a(f"s_and_b64 s[92:93], s[92:93], s[{ROW0}:{ROW0+1}]")
        a(f"s_andn2_b64 s[{MORC}:{MORC+1}], s[{MORC}:{MORC+1}], s[{ROW0}:{ROW0+1}]")
        a(f"s_or_b64 s[{MORC}:{MORC+1}], s[{MORC}:{MORC+1}], s[92:93]")
        a(f"v_sub_co_u32_dpp v{vt2}, vcc, v{n2c}, v{v2U2} row_newbcast:{i} row_mask:0xf bank_mask:0xf")
        a(f"s_not_b64 s[{M1_}:{M1_+1}], vcc")
        a(f"v_sub_co_u32_dpp v{vt2}, vcc, v{n2c}, v{v2U1} row_newbcast:{i} row_mask:0xf bank_mask:0xf")
        a(f"s_not_b64 s[{M0_}:{M0_+1}], vcc")
        a("s_waitcnt vmcnt(0)")
        a(f"s_branch P2_retry{tg}{i}")
    for i in range(16):
        a(f"P2_fix{i}:")
        a(f"s_bitset0_b32 s47, {i}")
        a(f"v_cmp_lt_u32 vcc, 32, v{n2c}")
        a(f"v_cmp_lt_u32 s[{M0_}:{M0_+1}], s5, v{CA[i]}")
        a(f"v_cmp_lt_u32 s[{M1_}:{M1_+1}], s5, v{CBr[i]}")
        a(f"s_lshr_b64 s[{MORC}:{MORC+1}], vcc, {i}")
        place("f", i)
        if i < 15: a("s_branch P2_sweep")
    a("P2_sweep:")
    for i in range(16):
        a(f"s_bitcmp1_b32 s47, {i}")
        a(f"s_cbranch_scc1 P2_fix{i}")
    a("s_branch P2_ff1")
    a("P2_giveup:")
    unhold()
    a("P2_pdone:")
    a("s_add_u32 s48, s48, 0x40000001")
    a(f"v_mov_b32 v{vt}, s48")
    a("s_waitcnt lgkmcnt(0)")
    a(f"ds_write_b32 v{vPW}, v{vt}")
    a(f"s_setprio {o.eprio}")
    if o.sw and o.swd:
        warm(S - 1, "s3")
        a("s_waitcnt lgkmcnt(0)")
    a("s_load_dwordx2 s[6:7], s[0:1], 24")
    a("s_load_dwordx2 s[34:35], s[0:1], 40")
    a("s_load_dwordx8 s[36:43], s[0:1], 56")
    DS = 30; CEN = 56; RB0 = 64; t = 60; X = 1
    a("v_and_b32 v13, 15, v12")
    a("v_lshrrev_b32 v14, 4, v12")
    a(f"v_lshlrev_b32 v{X}, 7, v14")
    a(f"v_lshl_add_u32 v{X}, v13, 1, v{X}")
    a(f"v_and_b32 v{X+1}, 0xff, v{X}")
    a(f"v_and_b32 v{X+2}, 1, v14")
    a(f"v_lshlrev_b32 v{X+2}, 3, v{X+2}")
    a(f"v_lshrrev_b32 v{X+3}, 1, v14")
    a(f"v_lshlrev_b32 v{X+3}, 10, v{X+3}")
    a(f"v_lshl_add_u32 v{X+3}, v13, 1, v{X+3}")
    a("s_and_b32 s47, s46, 31")
    a("s_lshl_b32 s47, s47, 5")
    a(f"v_add_u32 v{X+3}, s47, v{X+3}")
    a(f"v_cmp_gt_u32 s[88:89], 32, v12")
    a("s_waitcnt vmcnt(0) lgkmcnt(0)")
    a("s_lshr_b32 s47, s46, 5")
    a(f"s_mul_i32 s47, s47, {CL * 2}")
    srd(a, 20, 6, CL * 2, "s47")
    srd(a, 28, 42, 512)
    srd(a, 12, 38, 256)
    srd(a, 16, 36, 256)
    srd(a, 52, 34, 16)
    srd(a, 84, 40, 512)
    for c in range(4): a(f"buffer_load_ushort v{CEN+c}, v{X+2}, s[52:55], 0 offen offset:{2*c}")
    a("s_mul_i32 s47, s3, 25")
    for k in range(25):
        a("s_mul_i32 s50, s47, 57")
        a("s_lshr_b32 s50, s50, 9")
        a("s_min_u32 s50, s50, 4")
        a("s_lshl_b32 s51, s47, 1")
        a("s_sub_u32 s50, s51, s50")
        a("s_lshl_b32 s50, s50, 10")
        a(f"v_add_u32 v{DS+k}, s50, v{X+3}")
        a("s_add_u32 s47, s47, 1")
        a(f"buffer_load_ushort v{DS+k}, v{DS+k}, s[20:23], 0 offen")
    assert all((n * 57) >> 9 == n // 9 for n in range(45))
    Y = 116
    for c in range(4): a(f"buffer_load_ushort v{Y+c}, v{X}, s[28:31], 0 offen offset:{32*c}")
    for c in range(4): a(f"buffer_load_ushort v{Y+4+c}, v{X+1}, s[12:15], 0 offen offset:{32*c}")
    for c in range(4): a(f"buffer_load_ushort v{Y+8+c}, v{X+1}, s[16:19], 0 offen offset:{32*c}")
    for c in range(4): a(f"buffer_load_ushort v{16+c}, v{X}, s[84:87], 0 offen offset:{32*c}")
    a("s_waitcnt vmcnt(40)")
    for c in range(4): a(f"v_lshlrev_b32 v{CEN+c}, 16, v{CEN+c}")
    def rnd():
        if o.nornd: return
        for u in range(2):
            a(f"v_cvt_pk_bf16_f32 v{t+2*u+1}, v{t+2*u}, v{t+2*u+1}")
        for u in range(2):
            a(f"v_lshlrev_b32 v{t+2*u}, 16, v{t+2*u+1}")
            a(f"v_and_b32 v{t+2*u+1}, 0xffff0000, v{t+2*u+1}")
    for k in range(25):
        d = DS + k
        a(f"s_waitcnt vmcnt({40 - k})")
        a(f"v_lshlrev_b32 v{d}, 16, v{d}")
        for c in range(4): a(f"v_sub_f32 v{t+c}, v{d}, v{CEN+c}")
        rnd()
        for c in range(4): a(f"v_mul_f32 v{t+c}, v{t+c}, v{t+c}")
        rnd()
        for c in range(4): a(f"v_mul_f32 v{t+c}, 0xc1200000, v{t+c}")
        rnd()
        for c in range(4): a(f"v_mul_f32 v{t+c}, 0x3fb8aa3b, v{t+c}")
        for c in range(4): a(f"v_exp_f32 v{t+c}, v{t+c}")
        for u in range(2): a(f"v_cvt_pk_bf16_f32 v{RB0+2*k+u}, v{t+2*u}, v{t+2*u+1}")
    a("s_waitcnt vmcnt(0)")
    Z = 30
    for u in range(2):
        a(f"v_lshl_or_b32 v{Z+8+u}, v{Y+2*u+1}, 16, v{Y+2*u}")
        a(f"v_lshl_or_b32 v{Z+10+u}, v{17+2*u}, 16, v{16+2*u}")
        a(f"v_lshl_or_b32 v{Y+4+u}, v{Y+5+2*u}, 16, v{Y+4+2*u}")
        a(f"v_lshl_or_b32 v{Y+8+u}, v{Y+9+2*u}, 16, v{Y+8+2*u}")
    for u in range(2):
        a(f"v_cndmask_b32 v{Z+u}, 0, v{Y+4+u}, s[88:89]")
        a(f"v_cndmask_b32 v{Z+2+u}, v{Y+4+u}, 0, s[88:89]")
        a(f"v_cndmask_b32 v{Z+4+u}, 0, v{Y+8+u}, s[88:89]")
        a(f"v_cndmask_b32 v{Z+6+u}, v{Y+8+u}, 0, s[88:89]")
    a(f"v_lshlrev_b32 v{X}, 3, v12")
    a(f"v_add_u32 v{X+1}, {WT}, v{X}")
    a(f"v_and_b32 v{X+2}, 3, v12")
    a(f"v_lshlrev_b32 v{X+2}, 2, v{X+2}")
    a(f"v_add_u32 v{X+2}, {XW + X_PW}, v{X+2}")
    a("P2_dw:")
    a(f"ds_read_b32 v{vt}, v{X+2}")
    a("s_waitcnt lgkmcnt(0)")
    a(f"v_cmp_gt_u32 vcc, 2.0, v{vt}")
    a("s_cbranch_vccz P2_dg")
    a(f"s_sleep {o.psleep}")
    guard(a)
    a("s_branch P2_dw")
    a("P2_dg:")
    a(f"v_readlane_b32 s48, v{vt}, 0")
    for k in range(1, 4):
        a(f"v_readlane_b32 s50, v{vt}, {k}")
        a("s_max_u32 s48, s48, s50")
    a("s_and_b32 s48, s48, 0x3fffffff")
    wait_buffer("e")
    a("s_bitcmp1_b32 s48, 0")
    a(f"s_cselect_b32 s50, {RB_AT[1] - RB_AT[0]}, 0")
    a(f"s_add_u32 s50, s50, {RB_AT[0]}")
    a(f"s_mul_i32 s51, s3, {25*512}")
    a("s_add_u32 s50, s50, s51")
    a(f"v_add_u32 v{X}, s50, v{X}")
    for k in range(6): a(f"ds_write_b64 v{X+1}, v[{Z+2*k}:{Z+2*k+1}] offset:{512*k}")
    for k in range(25): a(f"ds_write_b64 v{X}, v[{RB0+2*k}:{RB0+2*k+1}] offset:{512*k}")
    lds_count(a, vt, XW + X_R)
    a("s_waitcnt lgkmcnt(0)")
    if o.prof == 1:
        P.stamp(); P.dump(32, 0x80000, 8, 3); P.n = nsave
    a("s_endpgm")
    a("P2_consumer:")
    ACC = 60; G0 = 52; B0 = 44; A2 = 28; vTw = 32; vTr = 33; vM = 24; vC = 20; vX = 16
    bA = 1; bE = 2; bC = 3; bR = 4; vH = 5; vL = 6; vCA = 7; vCI = 8; vA = 9; vE = 10
    a("s_sub_u32 s47, s3, 4")
    a("s_min_u32 s44, s47, 4")
    a("s_lshl_b32 s49, s47, 4")
    a("s_add_u32 s49, s49, s44")
    a("s_cmp_lt_u32 s47, 4")
    a("s_cselect_b32 s50, 17, 16")
    a(f"s_cselect_b32 s84, 0, {MARK & 0xffffff}")
    a(f"s_cselect_b32 s85, {17*WSTR//16-192}, {16*WSTR//16-192}")
    a("s_bfm_b64 s[92:93], s85, 0")
    a(f"v_subrev_u32 v60, 256, v0")
    a(f"v_lshlrev_b32 v60, 4, v60")
    for k in range(1, 4): a(f"v_add_u32 v{60+k}, {4*12288*k}, v60")
    lds_wait(a, vX, XW + X_S, 16, "s", 1)
    P.stamp()
    NL = o.nl; vSt = 34
    for j in range(13):
        k = 12 - j
        a(f"ds_read_b128 v[{68+4*j}:{71+4*j}], v{60+k//4} offset:{STG+12288*(k%4)}")
    a(f"v_mov_b32 v{vSt}, v63")
    q = 36
    for i in range(4): a(f"v_mov_b32 v{q+i}, {MARK}")
    a(f"v_add_u32 v61, {STG + 12288 * K0}, v60")
    a(f"v_add_u32 v62, {STG + 12288 * K1}, v60")
    for k in range(4): a(f"ds_write_b128 v61, v[{q}:{q+3}] offset:{12288 * k}")
    a("s_cmp_ge_u32 s47, 4")
    a("s_cbranch_scc1 P2_notab")
    a(f"v_and_b32 v52, 15, v12")
    a(f"v_lshrrev_b32 v53, 4, v12")
    a(f"v_lshrrev_b32 v56, 2, v52")
    a(f"v_cmp_eq_u32 vcc, v56, v53")
    a(f"v_and_b32 v56, 3, v12")
    a(f"v_lshlrev_b32 v56, 4, v56")
    a(f"v_mov_b32 v54, 0xffff")
    a(f"v_mov_b32 v55, 0")
    a(f"v_cndmask_b32 v54, 0, v54, vcc")
    a(f"v_lshlrev_b64 v[54:55], v56, v[54:55]")
    a(f"v_and_b32 v56, 1, v53")
    a(f"v_lshlrev_b32 v56, 3, v56")
    a(f"v_lshl_add_u32 v52, v52, 4, v56")
    a(f"v_lshrrev_b32 v53, 1, v53")
    a(f"v_lshl_add_u32 v52, v53, 8, v52")
    a(f"v_and_b32 v56, 255, v0")
    a(f"v_lshlrev_b32 v53, 2, v56")
    a(f"v_mul_u32_u24 v56, {WSTR}, v56")
    a(f"v_add_u32 v56, {(64 - CAP) << RS}, v56")
    a(f"v_add_u32 v57, {X1}, v56")
    a(f"ds_write_b64 v52, v[54:55] offset:{LUT}")
    a(f"ds_write_b32 v53, v56")
    a(f"ds_write_b32 v53, v57 offset:1024")
    a("P2_notab:")
    lds_count(a, vX, XW + X_I)
    a("s_waitcnt vmcnt(0)")
    publish_a(a, vX, XW, "ac")
    def store_b(j):
        a(f"buffer_store_dwordx4 v[{68+4*j}:{71+4*j}], v{vSt}, s[20:23], 0 offen {o.p1_st}")
        a(f"v_subrev_u32 v{vSt}, 12288, v{vSt}")
    if o.spr: a(f"s_setprio {o.spr}")
    for j in range(13 - NL): store_b(j)
    if o.spr: a("s_setprio 0")
    for k in range(4): a(f"ds_write_b128 v62, v[{q}:{q+3}] offset:{12288 * k}")
    lds_count(a, vX, XW + X_CW + 4)
    a("v_and_b32 v13, 15, v12")
    a("v_lshrrev_b32 v14, 4, v12")
    a(f"v_and_b32 v0, 3, v12")
    a(f"v_lshlrev_b32 v0, 2, v0")
    a(f"v_add_u32 v0, {XW + X_CW}, v0")
    a(f"s_mul_i32 s51, s49, {WSTR}")
    a(f"s_lshr_b32 s86, s51, 1")
    a(f"s_add_u32 s86, s86, {CB}")
    a(f"v_lshl_add_u32 v{bC}, v14, 4, s86")
    a(f"v_mul_u32_u24 v{vCI}, {WSTR}, v12")
    a(f"s_add_u32 s86, s51, {(64 - CAP) << RS}")
    a(f"v_add_u32 v{vCI}, s86, v{vCI}")
    a(f"s_add_u32 s51, s51, {WB}")
    a(f"v_lshl_add_u32 v{bR}, v12, 4, s51")
    a(f"v_and_b32 v{bA}, 24, v12")
    a(f"v_bfe_u32 v{vA}, v12, 1, 2")
    a(f"v_or_b32 v{bA}, v{bA}, v{vA}")
    a(f"v_lshrrev_b32 v{vA}, 5, v12")
    a(f"v_lshl_or_b32 v{bA}, v{vA}, 2, v{bA}")
    a(f"v_lshl_add_u32 v{bA}, v{bA}, 2, s51")
    a(f"v_and_b32 v{vH}, 1, v12")
    a(f"v_lshlrev_b32 v{vH}, 4, v{vH}")
    a("s_lshl_b32 s87, s47, 10")
    a(f"s_add_u32 s87, s87, {SC}")
    a(f"v_lshl_add_u32 v{vTw}, v12, 4, s87")
    a(f"v_lshl_add_u32 v{vTr}, v12, 3, s87")
    a(f"v_and_b32 v{vA}, 12, v12")
    a(f"v_lshl_add_u32 v{bE}, v14, 5, v{vA}")
    a(f"v_add_u32 v{bE}, s51, v{bE}")
    a(f"v_and_b32 v{vL}, 1, v12")
    a(f"v_lshlrev_b32 v{vL}, 3, v{vL}")
    a(f"v_and_b32 v{vA}, 2, v12")
    a(f"v_lshl_add_u32 v{vL}, v{vA}, 7, v{vL}")
    a(f"v_add_lshl_u32 v{vCA}, v12, s49, 2")
    a(f"v_cmp_gt_u32 vcc, s50, v12")
    a(f"s_mov_b32 s85, {(64 - CAP + 33) << RS}")
    a("s_mov_b32 s94, 0xff000000")
    a("s_mov_b32 s95, 0xff000000")
    a(f"v_cndmask_b32 v{vCA}, 2.0, v{vCA}, vcc")
    a(f"s_lshl_b32 s51, s49, 5")
    a("s_and_b32 s40, s46, 31")
    a(f"s_add_u32 s51, s51, s40")
    a(f"s_lshl_b32 s51, s51, 4")
    a(f"v_add_lshl_u32 v15, v13, s51, 5")
    a(f"v_lshl_add_u32 v15, v14, 3, v15")
    a(f"v_lshlrev_b32 v13, 3, v12")
    for i in range(16): a(f"v_mov_b32 v{B0+i}, 0")
    for i in range(68):
        if not 15 - NL <= i // 4 <= 14: a(f"v_mov_b32 v{ACC+i}, 0")
    a("s_lshr_b32 s40, s46, 5")
    a(f"s_mul_i32 s40, s40, {CL * 32}")
    srd(a, 28, 6, CL * 32, "s40")
    srd(a, 12, 8, CL * 32, "s40")
    def lazy(t):
        j = 13 - NL + t
        store_b(j)
        for u in range(4): a(f"v_mov_b32 v{68+4*j+u}, 0")
    lstep = {}
    for t in range(NL):
        i = o.l0 + t * o.lstep // 2
        assert i <= 14 - NL + t
        lstep.setdefault(i, []).append(t)
    if NL:
        a("s_mov_b32 s42, 1")
        P.stamp()
        a(f"v_mov_b32 v{vX+2}, {XW + X_H}")
        a("P2_pre:")
        a(f"ds_read_b32 v{vX}, v0 offset:{X_PW - X_CW}")
        a(f"ds_read_b32 v{vX+1}, v{vX+2}")
        a("s_waitcnt lgkmcnt(0)")
        a(f"v_cmp_eq_u32 vcc, 0, v{vX}")
        a("s_cbranch_vccz P2_round0")
        a(f"v_cmp_eq_u32 vcc, 0, v{vX+1}")
        a("s_cbranch_vccz P2_flush")
        a(f"s_sleep {o.csleep}")
        guard(a)
        a("s_branch P2_pre")
        a("P2_flush:")
        for t in range(NL): lazy(t)
        a("s_mov_b32 s42, 0")
    a("s_waitcnt vmcnt(0)")
    lds_count(a, vX, XW + X_B)
    if not NL: P.stamp()
    def reads1(par, i, second):
        oa = par * X1 + i * WSTR + (128 if second else 0)
        a(f"ds_read_b32 v{vA}, v{bA} offset:{oa}")
        a(f"ds_read_u8 v{vE}, v{bE} offset:{oa+3}")
        a(f"ds_read_u8 v{vE+1}, v{bE} offset:{oa+19}")
    def reads2(par, i, second):
        oc = (par * X1 + i * WSTR + (128 if second else 0)) // 2
        a(f"v_add_u32 v{vE}, v{vE}, v{vL}")
        a(f"v_add_u32 v{vE+1}, v{vE+1}, v{vL}")
        a(f"ds_read_b64_tr_b16 v[{vM}:{vM+1}], v{vE} offset:{LUT}")
        a(f"ds_read_b64_tr_b16 v[{vM+2}:{vM+3}], v{vE+1} offset:{LUT}")
        a(f"ds_read_b128 v[{vC}:{vC+3}], v{bC} offset:{oc}")
    def addr():
        a(f"v_mad_u32_u24 v{vA}, v{vA}, 32, v{vH}")
    def transpose(g):
        a(f"ds_write_b128 v{vTw}, v[{g}:{g+3}]")
        a(f"ds_read_b64_tr_b16 v[{A2}:{A2+1}], v{vTr}")
        a(f"ds_read_b64_tr_b16 v[{A2+2}:{A2+3}], v{vTr} offset:512")
    def mfma2(i, b):
        c = ACC + 4 * i
        a(f"v_mfma_f32_16x16x32_bf16 v[{c}:{c+3}], v[{A2}:{A2+3}], v[{b}:{b+3}], v[{c}:{c+3}]")
    NS = 17
    for par in range(2):
        a(f"P2_round{par}:")
        def spin():
            a(f"P2_cw{par}:")
            a(f"ds_read_b32 v{vX+1}, v0 offset:{X_PW - X_CW}")
            reads1(par, 0, False)
            a(f"ds_read_b32 v{vX}, v{vCA} offset:{1024*par}")
            a("s_waitcnt lgkmcnt(4)")
            a(f"v_cmp_ge_u32 vcc, s48, v{vX+1}")
            a(f"v_and_b32 v{vX+1}, 0x3fffffff, v{vX+1}")
            a(f"s_cbranch_vccz P2_cg{par}")
            a(f"s_sleep {o.csleep}")
            guard(a)
            a(f"s_branch P2_cw{par}")
            a(f"P2_cg{par}:")
        twait(spin)
        if o.prof == 1:
            a("s_memrealtime s[58:59]")
            a("s_waitcnt lgkmcnt(0)")
            a("s_mov_b32 m0, s48")
            a("v_writelane_b32 v14, s58, m0")
            a("s_add_u32 m0, s48, 16")
            a("v_writelane_b32 v14, s56, m0")
        a(f"v_cmp_lt_u32 vcc, s48, v{vX+1}")
        a(f"s_cbranch_vccz P2_drain{1-par}")
        if o.prof == 1 and par == 0:
            a("s_cmp_lg_u32 s48, 0"); a("s_cbranch_scc1 P2_nostamp"); P.stamp(); a("P2_nostamp:")
        if par: a(f"v_add_u32 v{vX+2}, {X1}, v{vCI}")
        a(f"ds_write_b32 v{vCA}, v{vX+2 if par else vCI} offset:{1024*par}")
        a("s_add_u32 s48, s48, 1")
        for i in range(NS):
            p = (par * NS + i) % 2
            g = G0 + 4 * p; b = B0 + 4 * p
            a("s_waitcnt lgkmcnt(0)")
            if i == NS - 1: a(f"v_or_b32 v{vA}, s84, v{vA}")
            addr()
            a("s_waitcnt vmcnt(1)")
            sk = o.skip and i == 1
            if sk:
                a("s_cmp_lg_u32 s84, 0")
                a(f"s_cbranch_scc1 P2_nt{par}")
            transpose(g)
            if sk: a(f"P2_nt{par}:")
            a(f"buffer_load_dwordx4 v[{g}:{g+3}], v{vA}, s[8:11], 0 offen {o.gfl}")
            if o.skip and i == NS - 1:
                a("s_cmp_lg_u32 s84, 0")
                a(f"s_cbranch_scc1 P2_last{par}")
            reads2(par, i, False)
            if i + 1 < NS: reads1(par, i + 1, False)
            if i == 0: a(f"v_cmp_le_u32 s[90:91], s85, v{vX}")
            if sk: a(f"s_cbranch_scc1 P2_nm{par}")
            a(f"s_waitcnt lgkmcnt({6 if i + 1 < NS else 3})")
            mfma2((i - 2) % NS, b)
            if sk: a(f"P2_nm{par}:")
            a(f"s_bitcmp1_b32 s90, {i}")
            a(f"s_waitcnt lgkmcnt({3 if i + 1 < NS else 0})")
            for u in range(4): a(f"v_and_b32 v{b+u}, v{vM+u}, v{vC+u}")
            a(f"s_cbranch_scc1 P2_slow{par}_{i}")
            a(f"P2_back{par}_{i}:")
            if par == 0 and i in lstep:
                a("s_cmp_lg_u32 s42, 0")
                a(f"s_cbranch_scc1 P2_lazy{i}")
                a(f"P2_lazyb{i}:")
        if par == 0 and NL:
            a("s_cmp_eq_u32 s42, 0")
            a("s_cbranch_scc1 P2_nolz")
            a("s_mov_b32 s42, 0")
            a("s_waitcnt vmcnt(0)")
            lds_count(a, vX, XW + X_B)
            a("P2_nolz:")
        for u in range(4): a(f"v_mov_b32 v{vX+u}, {MARK}")
        for k in range(4):
            if k == 3: a("s_mov_b64 exec, s[92:93]")
            a(f"ds_write_b128 v{bR}, v[{vX}:{vX+3}] offset:{par*X1+1024*k}")
        a("s_mov_b64 exec, 1")
        a(f"v_mov_b32 v{vA}, 1")
        a("s_waitcnt lgkmcnt(0)")
        a(f"ds_add_rtn_u32 v{vA}, v0, v{vA} offset:{4*par}")
        a("s_lshr_b32 s40, s48, 1")
        a("s_mul_i32 s40, s40, 12")
        a("s_waitcnt lgkmcnt(0)")
        a(f"v_readfirstlane_b32 s41, v{vA}")
        a("s_mov_b64 exec, -1")
        a("s_sub_u32 s41, s41, s40")
        a("s_setprio 0")
        a("s_cmp_lt_u32 s41, 4")
        a(f"s_cbranch_scc1 P2_round{1-par}")
        a("s_setprio 1")
        a("s_cmp_lt_u32 s41, 8")
        a(f"s_cbranch_scc1 P2_round{1-par}")
        a("s_setprio 2")
        if par: a("s_branch P2_round0")
    for par in range(2 if o.skip else 0):
        a(f"P2_last{par}:")
        a("s_waitcnt lgkmcnt(0)")
        mfma2(NS - 3, B0 + 4 * ((par * NS + NS - 1) % 2))
        a(f"s_branch P2_back{par}_{NS-1}")
    for i in sorted(lstep):
        a(f"P2_lazy{i}:")
        for t in lstep[i]: lazy(t)
        a(f"s_branch P2_lazyb{i}")
    for par in range(2):
        for i in range(NS):
            a(f"P2_slow{par}_{i}:")
            reads1(par, i, True)
            a("s_waitcnt lgkmcnt(0)")
            a("s_mov_b64 exec, s[94:95]")
            a(f"v_mov_b32 v{vA}, {MARK}")
            a("s_mov_b64 exec, -1")
            addr()
            a(f"buffer_load_dwordx4 v[{vX}:{vX+3}], v{vA}, s[8:11], 0 offen")
            reads2(par, i, True)
            if i + 1 < NS: reads1(par, i + 1, False)
            a(f"s_waitcnt lgkmcnt({3 if i + 1 < NS else 0})")
            for u in range(4): a(f"v_and_b32 v{vM+u}, v{vM+u}, v{vC+u}")
            a("s_waitcnt vmcnt(0)")
            transpose(vX)
            a("s_waitcnt lgkmcnt(0)")
            mfma2(i, vM)
            a(f"s_branch P2_back{par}_{i}")
    vLo = 14; vSo = 15; vRb = 12; vWt = 13
    mreg = [0, 2, 4, 6, 8, 10, 16, 18, 20, 22, 24, 26, ACC, ACC + 2, ACC + 4, ACC + 6, ACC + 8]
    NPRE = 12
    def mload(i):
        a(f"buffer_load_dwordx2 v[{mreg[i]}:{mreg[i]+1}], v{vLo}, s[12:15], 0 offen")
        a(f"v_add_u32 v{vLo}, {512*32}, v{vLo}")
    for par in (1, 0):
        a(f"P2_drain{par}:")
        a("s_waitcnt lgkmcnt(0)")
        if par == 1: P.stamp()
        elif o.prof == 1: P.n -= 1; P.stamp()
        if o.prof == 1:
            srd(a, 52, 32, 0x100000, WS_PROF)
            a("s_lshl_b32 s56, s2, 4")
            a("s_add_u32 s56, s56, s3")
            a("s_lshl_b32 s56, s56, 7")
            a("v_lshrrev_b32 v12, 1, v13")
            a("v_add_u32 v12, s56, v12")
            a("s_bfm_b64 exec, 32, 0")
            a("buffer_store_dword v14, v12, s[52:55], 0 offen")
            a("s_mov_b64 exec, -1")
        a(f"v_mov_b32 v{vLo}, v{vSo}")
        for i in range(NPRE): mload(i)
        a(f"s_mov_b32 s51, {RB_AT[1 - par]}")
        for i in (NS, NS + 1):
            p = (par * NS + i) % 2
            a(f"s_waitcnt vmcnt({NS + 1 - i + NPRE})")
            transpose(G0 + 4 * p)
            a("s_waitcnt lgkmcnt(0)")
            mfma2(i - 2, B0 + 4 * p)
        if par == 1: a("s_branch P2_epi")
    a("P2_epi:")
    WS_ = 32; WR_ = 36; WU = 40; WD = 42; RB = 44; SS = 48; GG = 52; UU = 56; ZZ = 28
    a("s_lshl_b32 s47, s47, 3")
    a("s_add_u32 s47, s47, s44")
    a("s_lshl_b32 s47, s47, 9")
    a("s_add_u32 s51, s51, s47")
    a(f"v_add_u32 v{vRb}, s51, v{vWt}")
    a(f"v_add_u32 v{vWt}, {WT}, v{vWt}")
    lds_wait(a, UU, XW + X_R, 4, "r", 1)
    for k in range(6): a(f"ds_read_b64 v[{WS_+2*k}:{WS_+2*k+1}], v{vWt} offset:{512*k}")
    def rbread(k): a(f"ds_read_b64 v[{RB+2*(k%2)}:{RB+2*(k%2)+1}], v{vRb} offset:{512*k}")
    rbread(0); rbread(1)
    vm = [("m", i) for i in range(NPRE)]
    def mf(d, w, i):
        h = 2 * (i % 2); r = RB + 2 * ((i // 2) % 2)
        a(f"v_mfma_f32_16x16x16_bf16 v[{d}:{d+3}], v[{w+h}:{w+h+1}], v[{r}:{r+1}], 0")
    def pack(i):
        c0 = ACC + 4 * i
        for u in range(2): a(f"v_cvt_pk_bf16_f32 v{c0+u}, v{c0+2*u}, v{c0+2*u+1}")
    def mz(i):
        c0 = ACC + 4 * i
        a(f"v_mfma_f32_16x16x16_bf16 v[{ZZ}:{ZZ+3}], v[{WD}:{WD+1}], v[{c0}:{c0+1}], 0")
    def gate(i):
        c0 = ACC + 4 * i
        for c in (0, 2): a(f"v_pk_mul_f32 v[{c0+c}:{c0+c+1}], v[{SS+c}:{SS+c+1}], v[{ZZ+c}:{ZZ+c+1}]")
        pack(i)
    pack(0)
    a("s_waitcnt lgkmcnt(0)")
    mz(0); mf(SS, WS_, 0); mf(GG, WR_, 0)
    gate(0)
    for i in range(NS):
        c0 = ACC + 4 * i; m = mreg[i]; nx = i + 1 < NS
        if i == NS - 1:
            a("s_cmp_lt_u32 s50, 17")
            a("s_cbranch_scc1 P2_fin")
        a(f"v_mfma_f32_16x16x16_bf16 v[{UU}:{UU+3}], v[{WU}:{WU+1}], v[{c0}:{c0+1}], 0")
        if nx: pack(i + 1)
        lg = f" lgkmcnt({1 if i // 2 + 2 <= 8 else 0})" if nx and i % 2 == 1 else ""
        a(f"s_waitcnt vmcnt({len(vm) - 1 - vm.index(('m', i))})" + lg)
        if nx: mf(SS, WS_, i + 1)
        a(f"v_lshlrev_b32 v{c0}, 16, v{m}")
        a(f"v_and_b32 v{c0+1}, 0xffff0000, v{m}")
        if nx: mz(i + 1)
        a(f"v_lshlrev_b32 v{c0+2}, 16, v{m+1}")
        a(f"v_and_b32 v{c0+3}, 0xffff0000, v{m+1}")
        for c in (0, 2): a(f"v_pk_fma_f32 v[{c0+c}:{c0+c+1}], v[{UU+c}:{UU+c+1}], v[{GG+c}:{GG+c+1}], v[{c0+c}:{c0+c+1}]")
        if nx: mf(GG, WR_, i + 1)
        for u in range(2): a(f"v_cvt_pk_bf16_f32 v{m+u}, v{c0+2*u}, v{c0+2*u+1}")
        a(f"buffer_store_dwordx2 v[{m}:{m+1}], v{vSo}, s[28:31], 0 offen {o.ost}")
        vm.append(("s", i))
        if nx: gate(i + 1)
        a(f"v_add_u32 v{vSo}, {512*32}, v{vSo}")
        if i % 2 == 0 and i // 2 + 2 <= 8: rbread(i // 2 + 2)
        for k in (NPRE + 2 * i, NPRE + 2 * i + 1):
            if k < NS: mload(k); vm.append(("m", k))
    a("P2_fin:")
    if o.prof:
        P.stamp()
        a("s_waitcnt vmcnt(0)")
        P.stamp(True)
        P.dump(32, 0x80000, 34, 3)
    a("P2_end:")
    a("s_endpgm")

KD = """.amdhsa_kernel {name}
  .amdhsa_next_free_vgpr 128
  .amdhsa_next_free_sgpr 100
  .amdhsa_accum_offset 128
  .amdhsa_group_segment_fixed_size 0
  .amdhsa_kernarg_size 112
  .amdhsa_user_sgpr_count 2
  .amdhsa_user_sgpr_kernarg_segment_ptr 1
  .amdhsa_system_sgpr_workgroup_id_x 1
  .amdhsa_float_denorm_mode_32 3
.end_amdhsa_kernel
"""

NAME = "gather_scatter__molecular_angular_gemnet__graph_kernel"

def build(o):
    GUARD[0] = 1000000 if o.maxr else 0
    a = Asm(); P = Prof(a, o.prof, 1)
    xw, stg = gen_p1(o, a, P); gen_p2(o, a, P, xw, stg)
    ref = open("gather_scatter__molecular_angular_gemnet__graph.s.ref").read().split("\n")
    head = [l for l in ref if l.startswith(";") and "launch geometry" not in l and "Harness parses" not in l and "@launch" not in l]
    s = "\n".join(head) + "\n"
    s += "; Part 1 partitions the triplets by (input slice, output bin); part 2 gathers / segment-sums with MFMA.\n"
    s += f"; @launch grid=(256,1,1) block=(1024,1,1) lds={xw + 64}\n"
    s += '.amdgcn_target "amdgcn-amd-amdhsa--gfx950"\n.text\n'
    s += f".globl {NAME}\n.p2align 8\n.type {NAME},@function\n{NAME}:\n" + a.finish()
    s += '.section .rodata,"a"\n.p2align 6\n' + KD.format(name=NAME)
    return s

def parser():
    p = argparse.ArgumentParser()
    p.add_argument("-S", type=int, default=11)
    for k, d in dict(prof=0, maxr=0, dstep=4, asplit=12, sw=1, psleep=2, csleep=2, gsleep=24, maxpoll=1000000, eprio=0, nd=4, wsh=50, xp=0, skip=1, l0=9, pfs=14, pfd=2, own=1, swo=36000, swd=0, nornd=0, pp=5, nb=5, sw0=4, pf0=3, pfw=0, pfn=5, ldp=1, spr=2, f0=0, cpf=14, nl=5, lstep=0, fuse=1, cmap=2, rot=0).items():
        p.add_argument("--" + k, type=int, default=d)
    p.add_argument("--p1_ld", default="nt")
    p.add_argument("--p1_st", default="sc1")
    p.add_argument("--ost", default="nt")
    p.add_argument("--gfl", default="")
    p.add_argument("-o", default="gather_scatter__molecular_angular_gemnet__graph.s")
    return p

if __name__ == "__main__":
    o = parser().parse_args()
    open(o.o, "w").write(build(o))
```

```python
import sys, argparse
from asmlib import Asm

E = 800000; T = 12800000
NT = 256
CHA = 25088
TILE_N = 50000
TILE_BYTES = 300032
WS_DESC = 0x5000000
WS_PROF = 0x6000000
CAP = 56
WSTR = CAP * 4
MARK = 0x38100000
NG = 196
CL = E // 8
WREG = 9472

GUARD = [0]
def guard(a):
    if GUARD[0]:
        a("s_add_u32 s99, s99, 1")
        a(f"s_cmp_gt_u32 s99, {GUARD[0]}")
        a("s_cbranch_scc1 P2_end")

def slicing(o):
    B = (o.f0 << 26) // 100
    K = ((o.S << 26) - B) // E
    return K, B

def srd(a, d, base, size, off=None):
    if off is None:
        a(f"s_mov_b32 s{d}, s{base}")
        a(f"s_mov_b32 s{d+1}, s{base+1}")
    else:
        a(f"s_add_u32 s{d}, s{base}, {off}")
        a(f"s_addc_u32 s{d+1}, s{base+1}, 0")
    a(f"s_mov_b32 s{d+2}, {size}")
    a(f"s_mov_b32 s{d+3}, 0x20000")

class Prof:
    def __init__(self, a, on, fuse=0): self.a = a; self.on = on; self.n = 0; self.fuse = fuse
    def stamp(self, key=False):
        if not self.on or (self.on == 2 and not key): return
        a = self.a
        a("s_waitcnt lgkmcnt(0)")
        a("s_memtime s[58:59]")
        a("s_waitcnt lgkmcnt(0)")
        a(f"s_mov_b32 s{60+self.n}, s58")
        a("s_memrealtime s[58:59]")
        a("s_waitcnt lgkmcnt(0)")
        a(f"s_mov_b32 s{72+self.n}, s58")
        self.n += 1
    def dump(self, wsreg, region, vt, wave_sreg):
        if not self.on: return
        a = self.a
        srd(a, 52, wsreg, 0x100000, WS_PROF + region)
        a(f"s_lshl_b32 s56, s2, 4")
        a(f"s_add_u32 s56, s56, s{wave_sreg}")
        a(f"s_lshl_b32 s56, s56, 7")
        a("s_mov_b64 exec, 1")
        for i in range(self.n):
            a(f"v_mov_b32 v{vt}, s56")
            a(f"v_mov_b32 v{vt+1}, s{60+i}")
            a(f"buffer_store_dword v{vt+1}, v{vt}, s[52:55], 0 offen offset:{4*i}")
            a(f"v_mov_b32 v{vt+1}, s{72+i}")
            a(f"buffer_store_dword v{vt+1}, v{vt}, s[52:55], 0 offen offset:{64+4*i}")
        a(f"v_mov_b32 v{vt+1}, s71")
        a(f"buffer_store_dword v{vt+1}, v{vt}, s[52:55], 0 offen offset:124")
        a("s_waitcnt vmcnt(0)")
        a("s_mov_b64 exec, -1")

def gen_p1(o, a, P):
    S = o.S
    NK = S * 256
    KSL, BSL = slicing(o)
    CN = 16; SCR = CN + NK * 4; STG = SCR + 64; XW = STG + CHA * 6
    W0 = 4; KP0 = 53; C0 = 78; TO = 103; T0 = 104
    ld = o.p1_ld; st = o.p1_st
    def issue_idx(r):
        b = C0 + 4 * (r % 6); w = W0 + 4 * r
        a(f"buffer_load_dwordx4 v[{b}:{b+3}], v1, s[12:15], s36 offen {ld}")
        a(f"buffer_load_dwordx4 v[{w}:{w+3}], v1, s[8:11], s36 offen {ld}")
        a(f"s_add_u32 s36, s36, 16384")
    def issue_ang(r):
        b = C0 + 2 * r
        a(f"buffer_load_dwordx2 v[{b}:{b+1}], v2, s[16:19], s37 offen {ld}")
        a(f"s_add_u32 s37, s37, 8192")
    DP = o.ldp
    a("s_load_dwordx2 s[8:9], s[0:1], 8")
    a("s_load_dwordx2 s[12:13], s[0:1], 16")
    a("s_cmp_ge_u32 s2, 256")
    a("s_cbranch_scc1 P2_end")
    if o.cpf:
        a("s_getpc_b64 s[40:41]")
        a("P1_pc:")
        a("s_lshr_b32 s45, s2, 3")
        a(f"s_mulk_i32 s45, {o.cpf}")
        a(f"s_mov_b32 s42, P2_end-P1_pc")
        a("s_mov_b32 s43, 0x20000")
        a(f"v_add_lshl_u32 v{T0+23}, v0, s45, 7")
        a(f"v_cmp_gt_u32 vcc, {o.cpf}, v0")
        a("s_and_b64 exec, exec, vcc")
        a("s_cbranch_execz P1_nopf")
        a(f"buffer_load_dword v{T0+23}, v{T0+23}, s[40:43], 0 offen")
        a("P1_nopf:")
        a("s_mov_b64 exec, -1")
    a(f"s_mov_b32 s10, {T * 4}")
    a("s_mov_b32 s11, 0x20000")
    a("s_mov_b64 s[14:15], s[10:11]")
    a(f"s_mul_i32 s36, s2, {12 * 16384}")
    a("v_lshlrev_b32 v1, 4, v0")
    a("s_waitcnt lgkmcnt(0)")
    P.stamp(True)
    for r in range(DP): issue_idx(r)
    if GUARD[0]: a("s_mov_b32 s99, 0")
    a("s_load_dwordx2 s[16:17], s[0:1], 32")
    a("s_load_dwordx2 s[30:31], s[0:1], 48")
    a("s_load_dwordx2 s[32:33], s[0:1], 104")
    a("s_load_dwordx2 s[94:95], s[0:1], 96")
    a("s_load_dwordx2 s[48:49], s[0:1], 0")
    a("s_load_dwordx2 s[86:87], s[0:1], 88")
    a("v_lshlrev_b32 v2, 3, v0")
    a("v_mov_b32 v3, 1")
    for i in range(4): a(f"v_mov_b32 v{T0+i}, 0")
    a(f"ds_write_b128 v1, v[{T0}:{T0+3}]")
    a(f"v_lshrrev_b32 v{T0+4}, 6, v0")
    a(f"v_readfirstlane_b32 s3, v{T0+4}")
    a(f"s_mul_i32 s34, s2, 848")
    a(f"s_add_u32 s34, s34, {3072*4096}")
    a(f"v_add_u32 v109, s34, v0")
    a(f"v_cmp_gt_u32 vcc, 848, v0")
    a(f"v_lshlrev_b32 v110, 2, v109")
    a(f"v_lshlrev_b32 v109, 1, v109")
    a(f"v_cndmask_b32 v110, 2.0, v110, vcc")
    a(f"v_cndmask_b32 v109, 2.0, v109, vcc")
    a(f"buffer_load_dword v{TO}, v110, s[12:15], 0 offen {ld}")
    a(f"buffer_load_dword v{W0+48}, v110, s[8:11], 0 offen {ld}")
    a(f"s_mov_b32 s18, {T * 2}")
    a("s_mov_b32 s19, 0x20000")
    a(f"s_mul_i32 s37, s2, {12 * 8192}")
    a("s_waitcnt lgkmcnt(0)")
    a("s_load_dword s35, s[30:31], 0")
    a(f"buffer_load_ushort v{C0+24}, v109, s[16:19], 0 offen {ld}")
    a("s_mov_b32 s38, 0x7c00")
    MG = -(-(1 << 19) // S)
    assert all((n * MG) >> 19 == n // S for n in range(4096))
    a(f"s_mov_b32 s40, {(-(1024*S - 4)) & 0xffffffff}")
    for j in range(4):
        t = T0 + 16 + j
        a(f"v_lshl_add_u32 v{t}, v0, 2, {j}")
        a(f"v_mul_u32_u24 v{T0}, {MG}, v{t}")
        a(f"v_lshrrev_b32 v{T0}, 19, v{T0}")
        a(f"v_lshlrev_b32 v{t}, 10, v{t}")
        a(f"v_mad_i32_i24 v{t}, v{T0}, s40, v{t}")
        a(f"v_add_u32 v{t}, {STG}, v{t}")
    srd(a, 20, 32, NT * NT * S * 4, WS_DESC)
    srd(a, 24, 94, 256)
    a("s_mov_b32 s44, 0")
    a(f"s_mov_b32 s39, {KSL}")
    a(f"v_mov_b32 v{T0+22}, {(BSL - (CL * KSL if o.own == 1 else 0)) & 0xffffffff}")
    a(f"s_mov_b32 s5, {CL}")
    a(f"v_mov_b32 v{T0+20}, 0x7c")
    a(f"v_mov_b32 v{T0+21}, 0x0ff00000")
    a("s_barrier")
    KX = -(-(1 << 28) // (CL // 16))
    assert all(((k * (CL // 16) + d) * KX) >> 28 == (k * (CL // 16) + d) // (CL // 16) for k in range(1, 9) for d in (-1, 0) if k < 8 or d < 0)
    def key(O, W, t):
        x, xb, d, n = t, t + 1, t + 2, t + 3
        a(f"v_and_b32 v{x}, -16, v{O}")
        a(f"v_mul_hi_u32_u24 v{x}, {KX}, v{x}")
        a(f"v_mul_u32_u24 v{xb}, {CL}, v{x}")
        a(f"v_sub_u32 v{d}, v{W}, v{xb}")
        a(f"v_sub_u32 v{O}, v{O}, v{xb}")
        if o.own == 1:
            a(f"v_cmp_gt_u32 s[42:43], s5, v{d}")
            a(f"v_ashrrev_i32 v{n}, 31, v{d}")
            a(f"v_add_u32 v{d}, {8 * CL}, v{d}")
            a(f"v_and_b32 v{n}, {CL}, v{n}")
            a(f"v_add_u32 v{n}, v{n}, v{W}")
            a(f"v_cndmask_b32 v{n}, v{n}, v{d}, s[42:43]")
        elif o.own == 2:
            a(f"v_subrev_u32 v{d}, {CL}, v{d}")
            a(f"v_add_u32 v{n}, {E}, v{d}")
            a(f"v_min_u32 v{n}, v{n}, v{d}")
        else:
            a(f"v_mov_b32 v{n}, v{W}")
        a(f"v_lshlrev_b32 v{xb}, 11, v{O}")
        a(f"v_lshl_or_b32 v{W}, v{O}, 28, v{W}")
        a(f"v_mad_u32_u24 v{n}, v{n}, s39, v{T0+22}")
        a(f"v_lshrrev_b32 v{O}, 2, v{O}")
        a(f"v_bitop3_b32 v{W}, v{xb}, v{T0+21}, v{W} bitop3:0xea")
        a(f"v_and_b32_sdwa v{n}, v{n}, s38 dst_sel:DWORD dst_unused:UNUSED_PAD src0_sel:WORD_1 src1_sel:DWORD")
        a(f"v_lshl_or_b32 v{n}, v{x}, 7, v{n}")
        a(f"v_bitop3_b32 v{O}, v{O}, v{T0+20}, v{n} bitop3:0xea")
    for r in range(12):
        a(f"s_waitcnt vmcnt({min(2*DP-2, 2*(11-r)) + (3 if r < DP else 0)})")
        if DP < 6 and r + DP < 12: issue_idx(r + DP)
        if r == DP:
            key(TO, W0 + 48, T0)
            a(f"v_cndmask_b32 v{KP0+24}, 2.0, v{TO}, vcc")
            a(f"ds_add_u32 v{KP0+24}, v3 offset:{CN}")
        b = C0 + 4 * (r % 6)
        for j in range(4):
            key(b + j, W0 + 4 * r + j, T0 + 4 * j)
            a(f"ds_add_u32 v{b+j}, v3 offset:{CN}")
        a(f"v_lshl_or_b32 v{KP0+2*r}, v{b+1}, 16, v{b}")
        a(f"v_lshl_or_b32 v{KP0+2*r+1}, v{b+3}, 16, v{b+2}")
        if DP == 6 and r < 6: issue_idx(r + 6)
    a("s_waitcnt lgkmcnt(0)")
    a("s_barrier")
    P.stamp()
    c = T0; x = T0 + 4; tot = T0 + 5; y = T0 + 6
    a(f"s_cmp_ge_u32 s3, {S}")
    a("s_cbranch_scc1 P1_scan1")
    a(f"ds_read_b128 v[{c}:{c+3}], v1 offset:{CN}")
    a("s_waitcnt lgkmcnt(0)")
    a(f"v_add_u32 v{c+1}, v{c}, v{c+1}")
    a(f"v_add_u32 v{c+2}, v{c+1}, v{c+2}")
    a(f"v_add_u32 v{c+3}, v{c+2}, v{c+3}")
    a(f"v_mov_b32 v{x}, v{c+3}")
    for sh in (1, 2, 4, 8):
        a(f"v_add_u32_dpp v{x}, v{x}, v{x} row_shr:{sh} row_mask:0xf bank_mask:0xf bound_ctrl:1")
    a(f"v_add_u32_dpp v{x}, v{x}, v{x} row_bcast:15 row_mask:0xa bank_mask:0xf")
    a(f"v_add_u32_dpp v{x}, v{x}, v{x} row_bcast:31 row_mask:0xc bank_mask:0xf")
    a(f"v_readlane_b32 s40, v{x}, 63")
    a(f"s_lshl_b32 s41, s3, 2")
    a(f"v_mov_b32 v{y}, s41")
    a(f"v_mov_b32 v{y+1}, s40")
    a(f"ds_write_b32 v{y}, v{y+1} offset:{SCR}")
    a("s_waitcnt lgkmcnt(0)")
    a("P1_scan1:")
    a("s_barrier")
    a(f"s_cmp_ge_u32 s3, {S}")
    a("s_cbranch_scc1 P1_scan2")
    a(f"v_and_b32 v{y}, 63, v0")
    a(f"v_lshlrev_b32 v{y+1}, 2, v{y}")
    a(f"ds_read_b32 v{y+2}, v{y+1} offset:{SCR}")
    a(f"v_cmp_gt_u32 s[42:43], s3, v{y}")
    a(f"v_sub_u32 v{x}, v{x}, v{c+3}")
    a("s_waitcnt lgkmcnt(0)")
    a(f"v_cndmask_b32 v{y+2}, 0, v{y+2}, s[42:43]")
    for sh in (1, 2, 4, 8):
        a(f"v_add_u32_dpp v{y+2}, v{y+2}, v{y+2} row_shr:{sh} row_mask:0xf bank_mask:0xf bound_ctrl:1")
    a(f"v_readlane_b32 s40, v{y+2}, 15")
    s0 = T0 + 12
    a(f"v_add_u32 v{s0}, s40, v{x}")
    for j in range(3): a(f"v_add_u32 v{s0+1+j}, v{s0}, v{c+j}")
    a(f"ds_write_b128 v1, v[{s0}:{s0+3}] offset:{CN}")
    a(f"ds_write_b128 v1, v[{s0}:{s0+3}] offset:{STG}")
    a(f"v_mov_b32 v{c}, {STG + NK * 4}")
    a(f"v_mov_b32 v{c+1}, {TILE_N}")
    a(f"ds_write_b32 v{c}, v{c+1}")
    a("s_waitcnt lgkmcnt(0)")
    a("P1_scan2:")
    a("s_barrier")
    a(f"s_cmp_ge_u32 s3, {S}")
    a("s_cbranch_scc1 P1_nodesc")
    for j in range(4):
        a(f"ds_read2_b32 v[{T0+2*j}:{T0+2*j+1}], v{T0+16+j} offset0:0 offset1:1")
    a(f"s_mul_i32 s40, s2, {256*S*4}")
    lds_count(a, T0 + 8, 4)
    for j in range(4): a(f"v_lshl_or_b32 v{T0+12+j}, v{T0+2*j+1}, 16, v{T0+2*j}")
    a(f"buffer_store_dwordx4 v[{T0+12}:{T0+15}], v1, s[20:23], s40 offen {st}")
    a("P1_nodesc:")
    a(f"s_mul_i32 s40, s3, {WREG - 1024}")
    a(f"s_add_u32 s40, s40, {9*1024}")
    a(f"v_add_u32 v{TO}, s40, v1")
    srd(a, 8, 48, E * 32)
    a(f"s_mul_i32 s41, s2, {o.pfn * 64}")
    a(f"s_sub_u32 s41, s41, {o.pfw * 64}")
    a("v_add_lshl_u32 v1, v0, s41, 7")
    if o.pp & 1: a("s_setprio 3")
    def atomics(n):
        t = T0 + 4 * (n % 2)
        if n == 12:
            a(f"ds_add_rtn_u32 v{t}, v{KP0+24}, v3 offset:{CN}"); return 1
        for j in range(4):
            kp = KP0 + 2 * n + j // 2
            if j % 2 == 0: a(f"v_and_b32 v{t+j}, 0xffff, v{kp}")
            else: a(f"v_lshrrev_b32 v{t+j}, 16, v{kp}")
            a(f"ds_add_rtn_u32 v{t+j}, v{t+j}, v3 offset:{CN}")
        return 4
    a(f"s_cmp_ge_u32 s3, {o.asplit}")
    a("s_cbranch_scc1 P1_ang1")
    for n in range(12): issue_ang(n)
    a("P1_ang1:")
    atomics(0)
    for n in range(13):
        k = atomics(n + 1) if n < 12 else 0
        a(f"s_waitcnt lgkmcnt({k})")
        t = T0 + 4 * (n % 2); u = T0 + 8
        if n < 12:
            a(f"v_lshl_or_b32 v{KP0+2*n}, v{t+1}, 16, v{t}")
            a(f"v_lshl_or_b32 v{KP0+2*n+1}, v{t+3}, 16, v{t+2}")
        else:
            a(f"v_mov_b32 v{u}, 0xffff")
            a(f"v_cndmask_b32 v{KP0+24}, v{u}, v{t}, vcc")
    a(f"s_cmp_lt_u32 s3, {o.asplit}")
    a("s_cbranch_scc1 P1_ang2")
    for n in range(12): issue_ang(n)
    a("P1_ang2:")
    a("s_lshl_b32 s35, s35, 16")
    a("s_cmp_eq_u32 s35, 1.0")
    a("s_cbranch_scc1 P1_f1")
    a("s_waitcnt vmcnt(0)")
    for n in range(25):
        cr = C0 + n; t = T0
        a(f"v_lshlrev_b32 v{t}, 16, v{cr}")
        a(f"v_and_b32 v{t+1}, 0xffff0000, v{cr}")
        a(f"v_mul_f32 v{t}, s35, v{t}")
        a(f"v_mul_f32 v{t+1}, s35, v{t+1}")
        a(f"v_cvt_pk_bf16_f32 v{cr}, v{t}, v{t+1}")
    a("P1_f1:")
    lds_wait(a, T0, 4, S, "q", 0)
    def addrs(n, h, u, base):
        a(f"v_mad_u32_u16 v{u}, v{KP0+n}, 6, {base}" + (" op_sel:[1,0,0,0]" if h else ""))
        a(f"v_and_b32 v{u+1}, 2, v{u}")
        a(f"v_sub_u32 v{u}, v{u}, v{u+1}")
        a(f"v_sub_u32 v{u+1}, v{u}, v{u+1}")
    for n in range(25):
        cr = C0 + n; t = T0 + 6 * (n % 2)
        if o.pp & 1 and n in (0, 9, 17): a(f"s_setprio {2 - n // 8}")
        if o.pf0 == 3:
            if n == 0: a("s_waitcnt vmcnt(0)")
            for w in range(o.pfn):
                if o.pfs + (w * o.pfd) // 2 == n:
                    a(f"s_cmp_lg_u32 s3, {o.pfw + w}")
                    a(f"s_cbranch_scc1 P1_npf{w}")
                    a("buffer_load_dword v1, v1, s[8:11], 0 offen")
                    a(f"P1_npf{w}:")
        elif n % 2 == 0 and n < 24: a(f"s_waitcnt vmcnt({11 - n // 2})")
        if n == 0:
            a(f"s_cmp_ge_u32 s3, {S}")
            a("s_cbranch_scc1 P1_noe")
            a("s_waitcnt vmcnt(0)")
            lds_ticket(a, 2, 8)
            a(f"s_cmp_lg_u32 s40, {S-1}")
            a("s_cbranch_scc1 P1_noe")
            arrive(a, 2, LV_E)
            a("s_mov_b32 s44, 1")
            a("P1_noe:")
        if n == 14:
            a("s_cmp_eq_u32 s44, 0")
            a("s_cbranch_scc1 P2_norele")
            release(a, 2, LV_E, "e")
        a(f"v_lshlrev_b32 v{t}, 16, v{cr}")
        a(f"v_and_b32 v{t+1}, 0xffff0000, v{cr}")
        a(f"v_mul_f32 v{t}, 0.15915494, v{t}")
        a(f"v_mul_f32 v{t+1}, 0.15915494, v{t+1}")
        a(f"v_fract_f32 v{t}, v{t}")
        a(f"v_fract_f32 v{t+1}, v{t+1}")
        a(f"v_cos_f32 v{t}, v{t}")
        a(f"v_cos_f32 v{t+1}, v{t+1}")
        for h in range(2 if n < 24 else 1):
            u = t + 2 + 2 * h
            addrs(n, h, u, 0)
            a(f"ds_write_b32 v{u}, v{W0+2*n+h} offset:{STG}")
        a(f"v_cvt_pk_bf16_f32 v{cr}, v{t}, v{t+1}")
        a(f"ds_write_b16 v{t+3}, v{cr} offset:{STG+8}")
        if n < 24: a(f"ds_write_b16_d16_hi v{t+5}, v{cr} offset:{STG+8}")
    a(f"s_mul_i32 s40, s2, {TILE_BYTES}")
    srd(a, 20, 32, CHA * 6, "s40")
    a(f"v_subrev_u32 v2, {9*1024}, v{TO}")
    a("s_mov_b32 s44, 0")
    if o.pf0 == 2:
        a(f"s_sub_u32 s40, s3, {o.pfw}")
        a(f"s_cmp_ge_u32 s40, {o.pfn}")
        a("s_cbranch_scc1 P1_nopf0")
        a("buffer_load_dword v1, v1, s[8:11], 0 offen")
        a("P1_nopf0:")
    a("s_waitcnt lgkmcnt(0)")
    a("s_barrier")
    P.stamp()
    a(f"s_cmp_lg_u32 s3, 15")
    a("s_cbranch_scc1 P1_noclr")
    a(f"v_and_b32 v3, 15, v0")
    a(f"v_lshlrev_b32 v3, 2, v3")
    a(f"v_add_u32 v3, {XW}, v3")
    a(f"v_mov_b32 v{T0}, 0")
    a(f"ds_write_b32 v3, v{T0}")
    a("P1_noclr:")
    def rd(k):
        t = T0 + 4 * (k % 6)
        a(f"ds_read_b128 v[{t}:{t+3}], v2 offset:{STG + 1024 * (9 - k)}")
    def store(k):
        t = T0 + 4 * (k % 6)
        if k == 0: a("s_mov_b64 exec, 0xffff")
        a(f"buffer_store_dwordx4 v[{t}:{t+3}], v{TO}, s[20:23], 0 offen {st}")
        if k == 0: a("s_mov_b64 exec, -1")
        a(f"v_subrev_u32 v{TO}, 1024, v{TO}")
    NB = o.nb
    for k in range(6): rd(k)
    for k in range(NB):
        a(f"s_waitcnt lgkmcnt({min(5, 9-k)})")
        store(k)
        if k + 6 < 10: rd(k + 6)
    a(f"s_waitcnt vmcnt({NB}) lgkmcnt(0)")
    a(f"s_cmp_ge_u32 s3, {o.nd}")
    a("s_cbranch_scc1 P1_nod")
    for k in range(NB, 10): store(k)
    a("s_waitcnt vmcnt(0)")
    lds_ticket(a, T0, 0)
    a(f"s_cmp_lg_u32 s40, {o.nd-1}")
    a("s_cbranch_scc1 P1_nod")
    arrive(a, T0, LV_D)
    a("s_mov_b32 s44, 1")
    a("P1_nod:")
    a(f"s_mov_b32 s45, {(-CHA*6) & 0xffffffff}")
    a("s_barrier")
    P.stamp()
    nnow = NB
    for n in range(25):
        if o.pp & 2 and n in (0, 9, 17): a(f"s_setprio {2 - n // 8}")
        if o.pp & 4 and n in (0, 9, 17):
            if n == 0: a("s_setprio 3")
            a("s_cmp_lt_u32 s3, 4")
            a(f"s_cbranch_scc1 P1_pr{n}")
            a(f"s_setprio {2 - n // 8}")
            a(f"P1_pr{n}:")
        if n == 1:
            a("s_cmp_eq_u32 s44, 0")
            a("s_cbranch_scc1 P2_noreld")
            release(a, T0, LV_D, "d")
        if n % o.dstep == 1 and nnow < 10:
            a(f"s_cmp_lt_u32 s3, {o.nd}")
            a(f"s_cbranch_scc1 P1_ns{n}")
            store(nnow); nnow += 1
            a(f"P1_ns{n}:")
        for h in range(2 if n < 24 else 1):
            u = 2 * h
            addrs(n, h, u, "s45")
            a(f"ds_write_b32 v{u}, v{W0+2*n+h} offset:{STG}")
            a(f"ds_write_b16{'_d16_hi' if h else ''} v{u+1}, v{C0+n} offset:{STG+8}")
    assert nnow == 10
    lds_count(a, 4, XW + X_S)
    a(f"s_mul_i32 s40, s2, {TILE_BYTES}")
    a(f"s_add_u32 s40, s40, {CHA*6}")
    srd(a, 20, 32, (TILE_N - CHA) * 6, "s40")
    return XW, STG

LV_A, LV_B, LV_D, LV_E = 0, 1, 2, 3
X_A, X_S, X_X, X_I, X_B, X_R, X_C, X_H, X_CW, X_PW = 0, 4, 8, 12, 16, 20, 24, 28, 32, 48

def arrive(a, t, level):
    a(f"v_mov_b32 v{t}, 0")
    a(f"v_mov_b32 v{t+1}, 1")
    a("s_mov_b64 exec, 1")
    a(f"buffer_atomic_add v{t+1}, v{t}, s[24:27], 0 offen offset:{32*level} sc0 sc1")
    a("s_mov_b64 exec, -1")

def release(a, t, level, tag):
    a("s_waitcnt vmcnt(0)")
    a(f"v_readfirstlane_b32 s40, v{t+1}")
    a("s_cmp_lg_u32 s40, 255")
    a(f"s_cbranch_scc1 P2_norel{tag}")
    a("s_mov_b64 exec, 1")
    a(f"buffer_store_dword v{t+1}, v{t}, s[24:27], 0 offen offset:{128+4*level} sc1")
    a("s_mov_b64 exec, -1")
    a(f"P2_norel{tag}:")

def lds_count(a, t, word):
    a(f"v_mov_b32 v{t}, {word}")
    a(f"v_mov_b32 v{t+1}, 1")
    a("s_mov_b64 exec, 1")
    a("s_waitcnt lgkmcnt(0)")
    a(f"ds_add_u32 v{t}, v{t+1}")
    a("s_mov_b64 exec, -1")

def lds_wait(a, t, word, n, tag, sleep):
    a(f"v_mov_b32 v{t}, {word}")
    a(f"P2_lw{tag}:")
    a(f"ds_read_b32 v{t+1}, v{t}")
    a("s_waitcnt lgkmcnt(0)")
    a(f"v_readfirstlane_b32 s40, v{t+1}")
    a(f"s_cmp_ge_u32 s40, {n}")
    a(f"s_cbranch_scc1 P2_lg{tag}")
    if sleep: a(f"s_sleep {sleep}")
    guard(a)
    a(f"s_branch P2_lw{tag}")
    a(f"P2_lg{tag}:")

def lds_ticket(a, t, word):
    a(f"v_mov_b32 v{t}, {word}")
    a(f"v_mov_b32 v{t+1}, 1")
    a("s_mov_b64 exec, 1")
    a(f"ds_add_rtn_u32 v{t+1}, v{t}, v{t+1}")
    a("s_mov_b64 exec, -1")
    a("s_waitcnt lgkmcnt(0)")
    a(f"v_readfirstlane_b32 s40, v{t+1}")

def publish_a(a, t, XW, tag):
    lds_ticket(a, t, XW + X_A)
    a("s_cmp_lg_u32 s40, 15")
    a(f"s_cbranch_scc1 P2_norel{tag}")
    arrive(a, t, LV_A)
    release(a, t, LV_A, tag)

def gen_p2(o, a, P, XW, STG):
    S = o.S
    uid = [0]
    LUT = 2048; CB = 2560; WSZ = NG * WSTR
    RBSZ = 100 * 512
    X1 = RBSZ + 32
    WT = CB + WSZ // 2 + 16
    WB = CB + X1 // 2 + WSZ // 2 + 16
    RB_AT = (WB, WB + WSZ + 32)
    K0 = (WB - STG) // 12288; K1 = (WB + X1 - STG) // 12288
    assert STG + 12288 * (K0 + 4) >= WB + WSZ + 32 and STG + 12288 * K1 >= WB + WSZ + 32 and STG + 12288 * (K1 + 4) >= WB + X1 + WSZ + 64
    SC = STG + 12288 * (K1 + 4)
    assert WT + 3072 <= CB + X1 // 2 and WB < 65536 and SC + 12288 <= XW and WB % 16 == 0 and X1 % 32 == 0
    if o.xp:
        a("s_bfe_u32 s46, s2, 0x20001")
        a("s_bitcmp0_b32 s2, 0")
        a("s_cselect_b32 s47, 4, 0")
        a("s_add_u32 s46, s46, s47")
    else:
        a("s_and_b32 s46, s2, 7")
    a("s_lshl_b32 s46, s46, 5")
    a("s_lshr_b32 s47, s2, 3")
    a("s_add_u32 s46, s46, s47")
    a("v_mbcnt_lo_u32_b32 v12, -1, 0")
    a("v_mbcnt_hi_u32_b32 v12, -1, v12")
    a("s_lshl_b32 s40, s3, 6")
    a("v_add_u32 v0, s40, v12")
    srd(a, 8, 48, E * 32)
    srd(a, 12, 32, NT * TILE_BYTES)
    srd(a, 16, 32, NT * NT * S * 4, WS_DESC)
    a("s_mov_b64 s[6:7], s[86:87]")
    if o.prof: a("s_mov_b32 s71, 0")
    a("s_mov_b32 s48, 0")
    a("s_cmp_ge_u32 s3, 4")
    a("s_cbranch_scc1 P2_consumer")
    def twait(body):
        if o.prof == 1:
            a("s_waitcnt lgkmcnt(0)")
            a("s_memtime s[56:57]")
            a("s_waitcnt lgkmcnt(0)")
        body()
        if o.prof == 1:
            a("s_memtime s[58:59]")
            a("s_waitcnt lgkmcnt(0)")
            a("s_sub_u32 s56, s58, s56")
            a("s_add_u32 s71, s71, s56")
    D0 = 40; R0 = 64
    vU12 = 1; vTile = 2; vInc = 3; v3FC = 4; vCb = 5; vZ = 6; v2U2 = 7; v2U1 = 8; vSg = 9
    n2c = 10; a0c = 11; n2n = 13; a0n = 14
    vca = 16; vcb = 17; vra = 18; vrb = 19; vwa = 20; vwb = 21; vha = 22; vhb = 23; vt = 24; vt2 = 25; vPW = 26; vS = 28
    ODDC = 52; MORC = 54; ODDN = 84; MORN = 86; ROW0 = 82; M0_ = 88; M1_ = 90
    KSL, BSL = slicing(o)
    L0 = -(-(1 << 26) // KSL) // 4 + 1
    def warm(sl, part):
        nt = -(-L0 // 512); n0 = nt * o.wsh // 100; n1 = nt - n0
        uid[0] += 1
        a(f"s_mul_i32 s40, {sl}, {L0 - 1}")
        a(f"s_lshr_b32 s41, s2, 1")
        a(f"s_lshl_b32 s41, s41, 2")
        a(f"s_add_u32 s41, s41, {part}")
        a(f"s_mul_i32 s41, s41, {nt}")
        a(f"s_add_u32 s40, s40, s41")
        a(f"s_add_u32 s40, s40, {(o.swo // 4 - BSL // KSL // 4) & 0xffffffff}")
        a("s_bitcmp1_b32 s2, 0")
        a(f"s_cselect_b32 s41, {n0}, 0")
        a(f"s_add_u32 s40, s40, s41")
        a(f"s_cmp_ge_u32 s40, {E // 4}")
        a(f"s_cbranch_scc1 P2_we{uid[0]}")
        a(f"s_min_u32 s40, s40, {E // 4 - n1}")
        a(f"s_lshl_b32 s40, s40, 7")
        a(f"s_add_u32 s36, s8, s40")
        a(f"s_addc_u32 s37, s9, 0")
        for j in range(n1):
            if j == n0:
                a("s_bitcmp0_b32 s2, 0")
                a(f"s_cbranch_scc1 P2_we{uid[0]}")
            a(f"s_load_dwordx2 s[38:39], s[36:37], {128*j+60}")
        a(f"P2_we{uid[0]}:")
    def poll(level, tag, meanwhile=None):
        a("s_mov_b32 s51, 0")
        a(f"P2_poll{tag}:")
        a(f"buffer_load_dword v{vt}, v{vZ}, s[24:27], 0 offen offset:{128+4*level} sc1")
        a("s_add_u32 s51, s51, 1")
        a(f"s_cmp_gt_u32 s51, {o.maxpoll}")
        a("s_cbranch_scc1 P2_giveup")
        if meanwhile: a(f"s_call_b64 s[34:35], {meanwhile}")
        a("s_waitcnt vmcnt(0)")
        a(f"v_cmp_eq_u32 vcc, 0, v{vt}")
        a(f"s_cbranch_vccz P2_polled{tag}")
        a(f"s_sleep {o.gsleep}")
        a(f"s_branch P2_poll{tag}")
        a(f"P2_polled{tag}:")
    def ensure():
        uid[0] += 1; u = uid[0]
        a(f"v_cmp_lt_u32 vcc, s45, v{D0}")
        a(f"s_cbranch_vccz P2_have{u}")
        a("s_call_b64 s[42:43], P2_ensure")
        a(f"P2_have{u}:")
    def prep():
        ensure()
        a(f"v_bfe_u32 v{vt}, v{D0}, 1, 15")
        a(f"v_mad_u32_u24 v{a0n}, v{vt}, 12, v{vTile}")
        a(f"v_lshrrev_b32 v{n2n}, 16, v{D0}")
        a(f"v_and_b32 v{vt}, 0xfffe, v{D0}")
        a(f"v_sub_u32 v{n2n}, v{n2n}, v{vt}")
        a(f"v_and_b32 v{vt}, 1, v{D0}")
        a(f"v_cmp_eq_u32 s[{ODDN}:{ODDN+1}], 1, v{vt}")
        a(f"v_cmp_lt_u32 s[{MORN}:{MORN+1}], 32, v{n2n}")
        for k in range(S): a(f"v_mov_b32 v{D0+k}, v{D0+k+1}")
    def issue(i):
        t = (vt, vca)[i % 2]
        a(f"v_add_u32_dpp v{t}, v{a0n}, v{vU12} row_newbcast:{i} row_mask:0xf bank_mask:0xf")
        a(f"v_sub_u32_dpp v{t+1}, v{n2n}, v{v2U1} row_newbcast:{i} row_mask:0xf bank_mask:0xf")
        a(f"v_bitop3_b32 v{t}, v{t+1}, v{vSg}, v{t} bitop3:0xea")
        r = R0 + 4 * i
        a(f"buffer_load_dwordx3 v[{r}:{r+2}], v{t}, s[12:15], 0 offen sc1")
    def unhold():
        a("s_lshl_b32 s40, 1, s3")
        a(f"v_mov_b32 v{vt}, {XW + X_H}")
        a(f"v_mov_b32 v{vt2}, s40")
        a("s_mov_b64 exec, 1")
        a(f"ds_or_b32 v{vt}, v{vt2}")
        a("s_mov_b64 exec, -1")
    def next_round(regular):
        a("s_call_b64 s[42:43], P2_next")
        if regular:
            ensure()
            if o.sw:
                a(f"s_sub_u32 s4, s49, {o.swd}")
                a(f"s_cmp_lt_u32 s4, {o.sw0}")
                a("s_cbranch_scc1 P2_nowarm")
                a(f"s_cmp_ge_u32 s4, {-(-(E - o.swo) // (4 * (L0 - 1)))}")
                a("s_cbranch_scc1 P2_nowarm")
                warm("s4", "s3")
                a("P2_nowarm:")
        a("s_call_b64 s[42:43], P2_wait")
    def wait_buffer(tag):
        a("s_add_u32 s50, s48, 1")
        a("s_lshr_b32 s50, s50, 1")
        a("s_mul_i32 s50, s50, 12")
        a("s_and_b32 s51, s48, 1")
        a("s_lshl_b32 s51, s51, 2")
        a(f"s_add_u32 s51, s51, {XW + X_CW}")
        a(f"v_mov_b32 v{vt2}, s51")
        a(f"P2_pw{tag}:")
        a(f"ds_read_b32 v{vt}, v{vt2}")
        a("s_waitcnt lgkmcnt(0)")
        a(f"v_readfirstlane_b32 s51, v{vt}")
        a("s_cmp_ge_u32 s51, s50")
        a(f"s_cbranch_scc1 P2_pg{tag}")
        a(f"s_sleep {o.psleep}")
        guard(a)
        a(f"s_branch P2_pw{tag}")
        a(f"P2_pg{tag}:")
    a("s_setprio 3")
    a("s_waitcnt vmcnt(0)")
    publish_a(a, vt, XW, "ap")
    a(f"s_lshl_b32 s47, s3, 6")
    a(f"v_add_u32 v{vTile}, s47, v12")
    a(f"s_lshl_b32 s50, s3, 2")
    a(f"s_add_u32 s50, s50, {XW + X_PW}")
    a(f"v_mov_b32 v{vPW}, s50")
    a(f"v_lshlrev_b32 v15, 8, v{vTile}")
    a(f"v_add_u32 v15, s46, v15")
    a(f"v_mul_u32_u24 v15, {4*S}, v15")
    a(f"v_mov_b32 v{D0+S}, 0")
    a(f"v_mul_u32_u24 v{vTile}, {TILE_BYTES}, v{vTile}")
    a(f"v_and_b32 v{vt}, 15, v12")
    a(f"v_mul_u32_u24 v{vU12}, 12, v{vt}")
    a(f"v_lshl_add_u32 v{v2U1}, v{vt}, 1, 1")
    a(f"v_add_u32 v{v2U2}, 1, v{v2U1}")
    a(f"v_mov_b32 v{vInc}, {(1 << 20) + 4}")
    a(f"v_mov_b32 v{v3FC}, 0x3fc")
    a(f"v_mov_b32 v{vSg}, 0x80000000")
    for r in (vCb, vZ, vra, vrb, vS, vS + 1): a(f"v_mov_b32 v{r}, 0")
    a("s_mov_b32 s49, 0")
    a(f"s_mov_b32 s{ROW0}, 0x00010001")
    a(f"s_mov_b32 s{ROW0+1}, 0x00010001")
    a(f"s_mov_b32 s45, {((o.nd * WREG // 12 * 2) << 16) | 0xffff}")
    nsave = P.n
    P.stamp()
    poll(LV_E, "e")
    k = 0
    while k < S:
        w = 4 if S - k >= 4 else (2 if S - k >= 2 else 1)
        sfx = {4: "x4", 2: "x2", 1: ""}[w]
        dst = f"v[{D0+k}:{D0+k+w-1}]" if w > 1 else f"v{D0+k}"
        a(f"buffer_load_dword{sfx} {dst}, v15, s[16:19], 0 offen offset:{4*k} sc1")
        k += w
    poll(LV_D, "d")
    P.stamp()
    prep()
    for i in range(16): issue(i)
    P.stamp()
    lds_wait(a, vt, XW + X_I, 12, "i", 1)
    P.stamp()
    def ppass(tg, inl):
        a(f"v_mov_b32 v{n2c}, v{n2n}")
        a(f"v_mov_b32 v{a0c}, v{a0n}")
        a(f"s_mov_b64 s[{ODDC}:{ODDC+1}], s[{ODDN}:{ODDN+1}]")
        a(f"s_mov_b64 s[{MORC}:{MORC+1}], s[{MORN}:{MORN+1}]")
        if inl: prep()
        for i in range(16):
            r = R0 + 4 * i
            a(f"v_sub_co_u32_dpp v{vt}, vcc, v{n2c}, v{v2U1} row_newbcast:{i} row_mask:0xf bank_mask:0xf")
            a(f"s_and_b64 s[92:93], s[{ODDC}:{ODDC+1}], s[{ROW0}:{ROW0+1}]")
            a(f"s_nor_b64 s[{M0_}:{M0_+1}], vcc, s[92:93]")
            a(f"v_sub_co_u32_dpp v{vt2}, vcc, v{n2c}, v{v2U2} row_newbcast:{i} row_mask:0xf bank_mask:0xf")
            a(f"s_lshr_b64 s[{ODDC}:{ODDC+1}], s[{ODDC}:{ODDC+1}], 1")
            a(f"s_not_b64 s[{M1_}:{M1_+1}], vcc")
            a(f"s_waitcnt vmcnt({15 if inl else 15 - i})")
            a(f"P2_retry{tg}{i}:")
            a(f"v_lshrrev_b32 v{vca}, 18, v{r}")
            a(f"v_lshrrev_b32 v{vcb}, 18, v{r+1}")
            a(f"v_bitop3_b32 v{vca}, v{vca}, v{v3FC}, v{vCb} bitop3:0xea")
            a(f"v_bitop3_b32 v{vcb}, v{vcb}, v{v3FC}, v{vCb} bitop3:0xea")
            a(f"s_mov_b64 exec, s[{M0_}:{M0_+1}]")
            a(f"ds_add_rtn_u32 v{vra}, v{vca}, v{vInc}")
            a(f"s_mov_b64 exec, s[{M1_}:{M1_+1}]")
            a(f"ds_add_rtn_u32 v{vrb}, v{vcb}, v{vInc}")
            a(f"s_mov_b64 exec, -1")
            a(f"v_and_b32 v{vwa}, 0xf00fffff, v{r}")
            a(f"v_and_b32 v{vwb}, 0xf00fffff, v{r+1}")
            a("s_waitcnt lgkmcnt(0)")
            a(f"v_and_b32 v{vra}, 0xfc03ffff, v{vra}")
            a(f"v_and_b32 v{vrb}, 0xfc03ffff, v{vrb}")
            a(f"v_lshrrev_b32 v{vha}, 1, v{vra}")
            a(f"v_lshrrev_b32 v{vhb}, 1, v{vrb}")
            a(f"v_or_b32 v{vt}, v{vra}, v{vrb}")
            a(f"v_cmp_lt_u32 vcc, v{vInc}, v{vt}")
            a(f"s_mov_b64 exec, s[{M0_}:{M0_+1}]")
            a(f"ds_write_b32 v{vra}, v{vwa} offset:{WB}")
            a(f"ds_write_b16 v{vha}, v{r+2} offset:{CB}")
            a(f"s_mov_b64 exec, s[{M1_}:{M1_+1}]")
            a(f"ds_write_b32 v{vrb}, v{vwb} offset:{WB}")
            a(f"ds_write_b16_d16_hi v{vhb}, v{r+2} offset:{CB}")
            a(f"s_mov_b64 exec, -1")
            a(f"s_cbranch_vccnz P2_stall{tg}{i}")
            a(f"s_and_b64 s[92:93], s[{MORC}:{MORC+1}], s[{ROW0}:{ROW0+1}]")
            a(f"s_cbranch_scc1 P2_more{tg}{i}")
            if not inl:
                a("s_cmp_lg_u32 s98, 0")
                a("s_cbranch_scc1 P2_sweep")
                a(f"P2_cont{tg}{i}:")
            a(f"s_lshr_b64 s[{MORC}:{MORC+1}], s[{MORC}:{MORC+1}], 1")
            if inl: issue(i)
    a("s_mov_b32 s98, 0")
    a("s_mov_b32 s47, 0")
    ppass("f", False)
    a("P2_sweep:")
    a("s_cmp_lg_u32 s47, 0")
    a("s_cbranch_scc1 P2_sweep1")
    P.stamp()
    a("s_mov_b32 s49, 1")
    a("s_cmp_ge_u32 s48, s49")
    a("s_cbranch_scc1 P2_ff1")
    a("s_call_b64 s[42:43], P2_next")
    a("P2_ff1:")
    prep()
    for i in range(16): issue(i)
    a("s_call_b64 s[42:43], P2_wait")
    a("P2_pslice:")
    ppass("", True)
    a("s_add_u32 s49, s49, 1")
    a(f"s_cmp_ge_u32 s49, {S}")
    a("s_cbranch_scc1 P2_pdone")
    a("s_cmp_ge_u32 s48, s49")
    a("s_cbranch_scc1 P2_pslice")
    next_round(True)
    a("s_branch P2_pslice")
    a("P2_next:")
    a("s_add_u32 s48, s48, 1")
    if o.maxr:
        a(f"s_cmp_gt_u32 s48, {o.maxr}")
        a("s_cbranch_scc1 P2_giveup")
    a(f"v_mov_b32 v{vt}, s48")
    a("s_waitcnt lgkmcnt(0)")
    a(f"ds_write_b32 v{vPW}, v{vt}")
    a(f"v_xor_b32 v{vCb}, 1024, v{vCb}")
    def pubb2():
        a("s_cmp_lg_u32 s48, 2")
        a("s_cbranch_scc1 P2_next1")
        a("s_call_b64 s[96:97], P2_pubb")
        a("P2_next1:")
    if not o.nl: pubb2()
    a("s_setpc_b64 s[42:43]")
    a("P2_wait:")
    twait(lambda: wait_buffer("n"))
    if o.nl: pubb2()
    a("s_setpc_b64 s[42:43]")
    a("P2_pubb:")
    lds_ticket(a, vS, XW + X_C)
    a("s_cmp_lg_u32 s40, 0")
    a("s_cbranch_scc1 P2_norelb")
    lds_wait(a, vS, XW + X_B, 12, "b", 1)
    arrive(a, vS, LV_B)
    release(a, vS, LV_B, "b")
    a("s_setpc_b64 s[96:97]")
    a("P2_ensure:")
    poll(LV_A, "a")
    a(f"s_mov_b32 s45, {(CHA << 16) | 0xffff}")
    a(f"v_cmp_lt_u32 vcc, s45, v{D0}")
    a("s_cbranch_vccz P2_ens1")
    unhold()
    a("s_call_b64 s[96:97], P2_pubb")
    poll(LV_B, "b")
    a("s_mov_b32 s45, -1")
    a("P2_ens1:")
    a("s_setpc_b64 s[42:43]")
    for tg, i in [(t_, i_) for t_ in ("", "f") for i_ in range(16)]:
        r = R0 + 4 * i
        a(f"P2_stall{tg}{i}:")
        a(f"v_cmp_lt_u32 s[{M0_}:{M0_+1}], v{vInc}, v{vra}")
        a(f"v_cmp_lt_u32 s[{M1_}:{M1_+1}], v{vInc}, v{vrb}")
        next_round(False)
        a(f"s_branch P2_retry{tg}{i}")
        a(f"P2_more{tg}{i}:")
        a(f"s_lshl_b64 exec, s[{ROW0}:{ROW0+1}], {i}")
        a(f"v_max_u32 v{n2c}, 32, v{n2c}")
        a(f"v_subrev_u32 v{n2c}, 32, v{n2c}")
        a(f"v_add_u32 v{a0c}, 192, v{a0c}")
        a(f"s_mov_b64 exec, -1")
        a(f"v_sub_u32_dpp v{vt2}, v{n2c}, v{v2U1} row_newbcast:{i} row_mask:0xf bank_mask:0xf")
        a(f"v_add_u32_dpp v{vt}, v{a0c}, v{vU12} row_newbcast:{i} row_mask:0xf bank_mask:0xf")
        a(f"v_bitop3_b32 v{vt}, v{vt2}, v{vSg}, v{vt} bitop3:0xea")
        a(f"buffer_load_dwordx3 v[{r}:{r+2}], v{vt}, s[12:15], 0 offen sc1")
        if tg:
            a(f"s_bitset1_b32 s47, {i}")
            a("s_cmp_eq_u32 s98, 0")
            a(f"s_cbranch_scc1 P2_cont{tg}{i}")
            a(f"P2_again{i}:")
            a(f"s_bitset0_b32 s47, {i}")
        a(f"v_cmp_lt_u32 vcc, 32, v{n2c}")
        a(f"s_lshr_b64 s[92:93], vcc, {i}")
        a(f"s_and_b64 s[92:93], s[92:93], s[{ROW0}:{ROW0+1}]")
        a(f"s_andn2_b64 s[{MORC}:{MORC+1}], s[{MORC}:{MORC+1}], s[{ROW0}:{ROW0+1}]")
        a(f"s_or_b64 s[{MORC}:{MORC+1}], s[{MORC}:{MORC+1}], s[92:93]")
        a(f"v_sub_co_u32_dpp v{vt2}, vcc, v{n2c}, v{v2U2} row_newbcast:{i} row_mask:0xf bank_mask:0xf")
        a(f"s_not_b64 s[{M1_}:{M1_+1}], vcc")
        a(f"v_sub_co_u32_dpp v{vt2}, vcc, v{n2c}, v{v2U1} row_newbcast:{i} row_mask:0xf bank_mask:0xf")
        a(f"s_not_b64 s[{M0_}:{M0_+1}], vcc")
        a("s_waitcnt vmcnt(0)")
        a(f"s_branch P2_retry{tg}{i}")
    a("P2_sweep1:")
    a("s_mov_b32 s98, 1")
    for i in range(15):
        a(f"s_bitcmp1_b32 s47, {i}")
        a(f"s_cbranch_scc1 P2_again{i}")
    a("s_branch P2_again15")
    a("P2_giveup:")
    unhold()
    a("P2_pdone:")
    a("s_add_u32 s48, s48, 0x40000001")
    a(f"v_mov_b32 v{vt}, s48")
    a("s_waitcnt lgkmcnt(0)")
    a(f"ds_write_b32 v{vPW}, v{vt}")
    a(f"s_setprio {o.eprio}")
    if o.sw and o.swd:
        warm(S - 1, "s3")
        a("s_waitcnt lgkmcnt(0)")
    a("s_load_dwordx2 s[6:7], s[0:1], 24")
    a("s_load_dwordx2 s[34:35], s[0:1], 40")
    a("s_load_dwordx8 s[36:43], s[0:1], 56")
    DS = 30; CEN = 56; RB0 = 64; t = 60; X = 1
    a("v_and_b32 v13, 15, v12")
    a("v_lshrrev_b32 v14, 4, v12")
    a(f"v_lshlrev_b32 v{X}, 7, v14")
    a(f"v_lshl_add_u32 v{X}, v13, 1, v{X}")
    a(f"v_and_b32 v{X+1}, 0xff, v{X}")
    a(f"v_and_b32 v{X+2}, 1, v14")
    a(f"v_lshlrev_b32 v{X+2}, 3, v{X+2}")
    a(f"v_lshrrev_b32 v{X+3}, 1, v14")
    a(f"v_lshlrev_b32 v{X+3}, 10, v{X+3}")
    a(f"v_lshl_add_u32 v{X+3}, v13, 1, v{X+3}")
    a("s_and_b32 s47, s46, 31")
    a("s_lshl_b32 s47, s47, 5")
    a(f"v_add_u32 v{X+3}, s47, v{X+3}")
    a(f"v_cmp_gt_u32 s[88:89], 32, v12")
    a("s_waitcnt vmcnt(0) lgkmcnt(0)")
    a("s_lshr_b32 s47, s46, 5")
    a(f"s_mul_i32 s47, s47, {CL * 2}")
    srd(a, 20, 6, CL * 2, "s47")
    srd(a, 28, 42, 512)
    srd(a, 12, 38, 256)
    srd(a, 16, 36, 256)
    srd(a, 52, 34, 16)
    srd(a, 84, 40, 512)
    for c in range(4): a(f"buffer_load_ushort v{CEN+c}, v{X+2}, s[52:55], 0 offen offset:{2*c}")
    a("s_mul_i32 s47, s3, 25")
    for k in range(25):
        a("s_mul_i32 s50, s47, 57")
        a("s_lshr_b32 s50, s50, 9")
        a("s_min_u32 s50, s50, 4")
        a("s_lshl_b32 s51, s47, 1")
        a("s_sub_u32 s50, s51, s50")
        a("s_lshl_b32 s50, s50, 10")
        a(f"v_add_u32 v{DS+k}, s50, v{X+3}")
        a("s_add_u32 s47, s47, 1")
        a(f"buffer_load_ushort v{DS+k}, v{DS+k}, s[20:23], 0 offen")
    assert all((n * 57) >> 9 == n // 9 for n in range(45))
    Y = 116
    for c in range(4): a(f"buffer_load_ushort v{Y+c}, v{X}, s[28:31], 0 offen offset:{32*c}")
    for c in range(4): a(f"buffer_load_ushort v{Y+4+c}, v{X+1}, s[12:15], 0 offen offset:{32*c}")
    for c in range(4): a(f"buffer_load_ushort v{Y+8+c}, v{X+1}, s[16:19], 0 offen offset:{32*c}")
    for c in range(4): a(f"buffer_load_ushort v{16+c}, v{X}, s[84:87], 0 offen offset:{32*c}")
    a("s_waitcnt vmcnt(40)")
    for c in range(4): a(f"v_lshlrev_b32 v{CEN+c}, 16, v{CEN+c}")
    def rnd():
        if o.nornd: return
        for u in range(2):
            a(f"v_cvt_pk_bf16_f32 v{t+2*u+1}, v{t+2*u}, v{t+2*u+1}")
        for u in range(2):
            a(f"v_lshlrev_b32 v{t+2*u}, 16, v{t+2*u+1}")
            a(f"v_and_b32 v{t+2*u+1}, 0xffff0000, v{t+2*u+1}")
    for k in range(25):
        d = DS + k
        a(f"s_waitcnt vmcnt({40 - k})")
        a(f"v_lshlrev_b32 v{d}, 16, v{d}")
        for c in range(4): a(f"v_sub_f32 v{t+c}, v{d}, v{CEN+c}")
        rnd()
        for c in range(4): a(f"v_mul_f32 v{t+c}, v{t+c}, v{t+c}")
        rnd()
        for c in range(4): a(f"v_mul_f32 v{t+c}, 0xc1200000, v{t+c}")
        rnd()
        for c in range(4): a(f"v_mul_f32 v{t+c}, 0x3fb8aa3b, v{t+c}")
        for c in range(4): a(f"v_exp_f32 v{t+c}, v{t+c}")
        for u in range(2): a(f"v_cvt_pk_bf16_f32 v{RB0+2*k+u}, v{t+2*u}, v{t+2*u+1}")
    a("s_waitcnt vmcnt(0)")
    Z = 30
    for u in range(2):
        a(f"v_lshl_or_b32 v{Z+8+u}, v{Y+2*u+1}, 16, v{Y+2*u}")
        a(f"v_lshl_or_b32 v{Z+10+u}, v{17+2*u}, 16, v{16+2*u}")
        a(f"v_lshl_or_b32 v{Y+4+u}, v{Y+5+2*u}, 16, v{Y+4+2*u}")
        a(f"v_lshl_or_b32 v{Y+8+u}, v{Y+9+2*u}, 16, v{Y+8+2*u}")
    for u in range(2):
        a(f"v_cndmask_b32 v{Z+u}, 0, v{Y+4+u}, s[88:89]")
        a(f"v_cndmask_b32 v{Z+2+u}, v{Y+4+u}, 0, s[88:89]")
        a(f"v_cndmask_b32 v{Z+4+u}, 0, v{Y+8+u}, s[88:89]")
        a(f"v_cndmask_b32 v{Z+6+u}, v{Y+8+u}, 0, s[88:89]")
    a(f"v_lshlrev_b32 v{X}, 3, v12")
    a(f"v_add_u32 v{X+1}, {WT}, v{X}")
    a(f"v_and_b32 v{X+2}, 3, v12")
    a(f"v_lshlrev_b32 v{X+2}, 2, v{X+2}")
    a(f"v_add_u32 v{X+2}, {XW + X_PW}, v{X+2}")
    a("P2_dw:")
    a(f"ds_read_b32 v{vt}, v{X+2}")
    a("s_waitcnt lgkmcnt(0)")
    a(f"v_cmp_gt_u32 vcc, 2.0, v{vt}")
    a("s_cbranch_vccz P2_dg")
    a(f"s_sleep {o.psleep}")
    guard(a)
    a("s_branch P2_dw")
    a("P2_dg:")
    a(f"v_readlane_b32 s48, v{vt}, 0")
    for k in range(1, 4):
        a(f"v_readlane_b32 s50, v{vt}, {k}")
        a("s_max_u32 s48, s48, s50")
    a("s_and_b32 s48, s48, 0x3fffffff")
    wait_buffer("e")
    a("s_bitcmp1_b32 s48, 0")
    a(f"s_cselect_b32 s50, {RB_AT[1] - RB_AT[0]}, 0")
    a(f"s_add_u32 s50, s50, {RB_AT[0]}")
    a(f"s_mul_i32 s51, s3, {25*512}")
    a("s_add_u32 s50, s50, s51")
    a(f"v_add_u32 v{X}, s50, v{X}")
    for k in range(6): a(f"ds_write_b64 v{X+1}, v[{Z+2*k}:{Z+2*k+1}] offset:{512*k}")
    for k in range(25): a(f"ds_write_b64 v{X}, v[{RB0+2*k}:{RB0+2*k+1}] offset:{512*k}")
    lds_count(a, vt, XW + X_R)
    a("s_waitcnt lgkmcnt(0)")
    if o.prof == 1:
        P.stamp(); P.dump(32, 0x80000, 8, 3); P.n = nsave
    a("s_endpgm")
    a("P2_consumer:")
    ACC = 60; G0 = 52; B0 = 44; A2 = 28; vTw = 32; vTr = 33; vM = 24; vC = 20; vX = 16
    bA = 1; bE = 2; bC = 3; bR = 4; vH = 5; vL = 6; vCA = 7; vCI = 8; vA = 9; vE = 10
    a("s_sub_u32 s47, s3, 4")
    a("s_min_u32 s44, s47, 4")
    a("s_lshl_b32 s49, s47, 4")
    a("s_add_u32 s49, s49, s44")
    a("s_cmp_lt_u32 s47, 4")
    a("s_cselect_b32 s50, 17, 16")
    a(f"s_cselect_b32 s84, 0, {MARK & 0xffffff}")
    a(f"s_cselect_b32 s85, {17*WSTR//16-192}, {16*WSTR//16-192}")
    a("s_bfm_b64 s[92:93], s85, 0")
    a(f"v_subrev_u32 v60, 256, v0")
    a(f"v_lshlrev_b32 v60, 4, v60")
    for k in range(1, 4): a(f"v_add_u32 v{60+k}, {4*12288*k}, v60")
    lds_wait(a, vX, XW + X_S, 16, "s", o.ssleep)
    P.stamp()
    NL = o.nl; vSt = 34
    for j in range(13):
        k = 12 - j
        a(f"ds_read_b128 v[{68+4*j}:{71+4*j}], v{60+k//4} offset:{STG+12288*(k%4)}")
    a(f"v_mov_b32 v{vSt}, v63")
    q = 36
    for i in range(4): a(f"v_mov_b32 v{q+i}, {MARK}")
    a(f"v_add_u32 v61, {STG + 12288 * K0}, v60")
    a(f"v_add_u32 v62, {STG + 12288 * K1}, v60")
    for k in range(4): a(f"ds_write_b128 v61, v[{q}:{q+3}] offset:{12288 * k}")
    a("s_cmp_ge_u32 s47, 4")
    a("s_cbranch_scc1 P2_notab")
    a(f"v_and_b32 v52, 15, v12")
    a(f"v_lshrrev_b32 v53, 4, v12")
    a(f"v_lshrrev_b32 v56, 2, v52")
    a(f"v_cmp_eq_u32 vcc, v56, v53")
    a(f"v_and_b32 v56, 3, v12")
    a(f"v_lshlrev_b32 v56, 4, v56")
    a(f"v_mov_b32 v54, 0xffff")
    a(f"v_mov_b32 v55, 0")
    a(f"v_cndmask_b32 v54, 0, v54, vcc")
    a(f"v_lshlrev_b64 v[54:55], v56, v[54:55]")
    a(f"v_and_b32 v56, 1, v53")
    a(f"v_lshlrev_b32 v56, 3, v56")
    a(f"v_lshl_add_u32 v52, v52, 4, v56")
    a(f"v_lshrrev_b32 v53, 1, v53")
    a(f"v_lshl_add_u32 v52, v53, 8, v52")
    a(f"v_and_b32 v56, 255, v0")
    a(f"v_lshlrev_b32 v53, 2, v56")
    a(f"v_mul_u32_u24 v56, {WSTR}, v56")
    a(f"v_add_u32 v56, {(64 - CAP) << 20}, v56")
    a(f"v_add_u32 v57, {X1}, v56")
    a(f"ds_write_b64 v52, v[54:55] offset:{LUT}")
    a(f"ds_write_b32 v53, v56")
    a(f"ds_write_b32 v53, v57 offset:1024")
    a("P2_notab:")
    lds_count(a, vX, XW + X_I)
    a("s_waitcnt vmcnt(0)")
    publish_a(a, vX, XW, "ac")
    def store_b(j):
        a(f"buffer_store_dwordx4 v[{68+4*j}:{71+4*j}], v{vSt}, s[20:23], 0 offen {o.p1_st}")
        a(f"v_subrev_u32 v{vSt}, 12288, v{vSt}")
    if o.spr: a(f"s_setprio {o.spr}")
    for j in range(13 - NL): store_b(j)
    if o.spr: a("s_setprio 0")
    for k in range(4): a(f"ds_write_b128 v62, v[{q}:{q+3}] offset:{12288 * k}")
    lds_count(a, vX, XW + X_CW + 4)
    a("v_and_b32 v13, 15, v12")
    a("v_lshrrev_b32 v14, 4, v12")
    a(f"v_and_b32 v0, 3, v12")
    a(f"v_lshlrev_b32 v0, 2, v0")
    a(f"v_add_u32 v0, {XW + X_CW}, v0")
    a(f"s_mul_i32 s51, s49, {WSTR}")
    a(f"s_lshr_b32 s86, s51, 1")
    a(f"s_add_u32 s86, s86, {CB}")
    a(f"v_lshl_add_u32 v{bC}, v14, 4, s86")
    a(f"v_mul_u32_u24 v{vCI}, {WSTR}, v12")
    a(f"s_add_u32 s86, s51, {(64 - CAP) << 20}")
    a(f"v_add_u32 v{vCI}, s86, v{vCI}")
    a(f"s_add_u32 s51, s51, {WB}")
    a(f"v_lshl_add_u32 v{bR}, v12, 4, s51")
    a(f"v_and_b32 v{bA}, 24, v12")
    a(f"v_bfe_u32 v{vA}, v12, 1, 2")
    a(f"v_or_b32 v{bA}, v{bA}, v{vA}")
    a(f"v_lshrrev_b32 v{vA}, 5, v12")
    a(f"v_lshl_or_b32 v{bA}, v{vA}, 2, v{bA}")
    a(f"v_lshl_add_u32 v{bA}, v{bA}, 2, s51")
    a(f"v_and_b32 v{vH}, 1, v12")
    a(f"v_lshlrev_b32 v{vH}, 4, v{vH}")
    a("s_lshl_b32 s87, s47, 10")
    a(f"s_add_u32 s87, s87, {SC}")
    a(f"v_lshl_add_u32 v{vTw}, v12, 4, s87")
    a(f"v_lshl_add_u32 v{vTr}, v12, 3, s87")
    a(f"v_and_b32 v{vA}, 12, v12")
    a(f"v_lshl_add_u32 v{bE}, v14, 5, v{vA}")
    a(f"v_add_u32 v{bE}, s51, v{bE}")
    a(f"v_and_b32 v{vL}, 1, v12")
    a(f"v_lshlrev_b32 v{vL}, 3, v{vL}")
    a(f"v_and_b32 v{vA}, 2, v12")
    a(f"v_lshl_add_u32 v{vL}, v{vA}, 7, v{vL}")
    a(f"v_add_lshl_u32 v{vCA}, v12, s49, 2")
    a(f"v_cmp_gt_u32 vcc, s50, v12")
    a(f"s_mov_b32 s85, {(64 - CAP + 33) << 20}")
    a("s_mov_b32 s94, 0xff000000")
    a("s_mov_b32 s95, 0xff000000")
    a(f"v_cndmask_b32 v{vCA}, 2.0, v{vCA}, vcc")
    a(f"s_lshl_b32 s51, s49, 5")
    a("s_and_b32 s40, s46, 31")
    a(f"s_add_u32 s51, s51, s40")
    a(f"s_lshl_b32 s51, s51, 4")
    a(f"v_add_lshl_u32 v15, v13, s51, 5")
    a(f"v_lshl_add_u32 v15, v14, 3, v15")
    a(f"v_lshlrev_b32 v13, 3, v12")
    for i in range(16): a(f"v_mov_b32 v{B0+i}, 0")
    for i in range(68):
        if not 15 - NL <= i // 4 <= 14: a(f"v_mov_b32 v{ACC+i}, 0")
    a("s_lshr_b32 s40, s46, 5")
    a(f"s_mul_i32 s40, s40, {CL * 32}")
    srd(a, 28, 6, CL * 32, "s40")
    srd(a, 12, 8, CL * 32, "s40")
    def lazy(t):
        j = 13 - NL + t
        store_b(j)
        for u in range(4): a(f"v_mov_b32 v{68+4*j+u}, 0")
    lstep = {}
    for t in range(NL):
        i = o.l0 + t * o.lstep // 2
        assert i <= 14 - NL + t
        lstep.setdefault(i, []).append(t)
    if NL:
        a("s_mov_b32 s42, 1")
        P.stamp()
        a(f"v_mov_b32 v{vX+2}, {XW + X_H}")
        a("P2_pre:")
        a(f"ds_read_b32 v{vX}, v0 offset:{X_PW - X_CW}")
        a(f"ds_read_b32 v{vX+1}, v{vX+2}")
        a("s_waitcnt lgkmcnt(0)")
        a(f"v_cmp_eq_u32 vcc, 0, v{vX}")
        a("s_cbranch_vccz P2_round0")
        a(f"v_cmp_eq_u32 vcc, 0, v{vX+1}")
        a("s_cbranch_vccz P2_flush")
        a(f"s_sleep {o.csleep}")
        guard(a)
        a("s_branch P2_pre")
        a("P2_flush:")
        for t in range(NL): lazy(t)
        a("s_mov_b32 s42, 0")
    a("s_waitcnt vmcnt(0)")
    lds_count(a, vX, XW + X_B)
    if not NL: P.stamp()
    def reads1(par, i, second):
        oa = par * X1 + i * WSTR + (128 if second else 0)
        a(f"ds_read_b32 v{vA}, v{bA} offset:{oa}")
        a(f"ds_read_u8 v{vE}, v{bE} offset:{oa+3}")
        a(f"ds_read_u8 v{vE+1}, v{bE} offset:{oa+19}")
    def reads2(par, i, second):
        oc = (par * X1 + i * WSTR + (128 if second else 0)) // 2
        a(f"v_add_u32 v{vE}, v{vE}, v{vL}")
        a(f"v_add_u32 v{vE+1}, v{vE+1}, v{vL}")
        a(f"ds_read_b64_tr_b16 v[{vM}:{vM+1}], v{vE} offset:{LUT}")
        a(f"ds_read_b64_tr_b16 v[{vM+2}:{vM+3}], v{vE+1} offset:{LUT}")
        a(f"ds_read_b128 v[{vC}:{vC+3}], v{bC} offset:{oc}")
    def addr():
        a(f"v_mad_u32_u24 v{vA}, v{vA}, 32, v{vH}")
    def transpose(g):
        a(f"ds_write_b128 v{vTw}, v[{g}:{g+3}]")
        a(f"ds_read_b64_tr_b16 v[{A2}:{A2+1}], v{vTr}")
        a(f"ds_read_b64_tr_b16 v[{A2+2}:{A2+3}], v{vTr} offset:512")
    def mfma2(i, b):
        c = ACC + 4 * i
        a(f"v_mfma_f32_16x16x32_bf16 v[{c}:{c+3}], v[{A2}:{A2+3}], v[{b}:{b+3}], v[{c}:{c+3}]")
    NS = 17
    for par in range(2):
        a(f"P2_round{par}:")
        def spin():
            a(f"P2_cw{par}:")
            a(f"ds_read_b32 v{vX+1}, v0 offset:{X_PW - X_CW}")
            reads1(par, 0, False)
            a(f"ds_read_b32 v{vX}, v{vCA} offset:{1024*par}")
            a("s_waitcnt lgkmcnt(4)")
            a(f"v_cmp_ge_u32 vcc, s48, v{vX+1}")
            a(f"v_and_b32 v{vX+1}, 0x3fffffff, v{vX+1}")
            a(f"s_cbranch_vccz P2_cg{par}")
            a(f"s_sleep {o.csleep}")
            guard(a)
            a(f"s_branch P2_cw{par}")
            a(f"P2_cg{par}:")
        twait(spin)
        if o.prof == 1:
            a("s_memrealtime s[58:59]")
            a("s_waitcnt lgkmcnt(0)")
            a("s_mov_b32 m0, s48")
            a("v_writelane_b32 v14, s58, m0")
            a("s_add_u32 m0, s48, 16")
            a("v_writelane_b32 v14, s56, m0")
        a(f"v_cmp_lt_u32 vcc, s48, v{vX+1}")
        a(f"s_cbranch_vccz P2_drain{1-par}")
        if o.prof == 1 and par == 0:
            a("s_cmp_lg_u32 s48, 0"); a("s_cbranch_scc1 P2_nostamp"); P.stamp(); a("P2_nostamp:")
        if par: a(f"v_add_u32 v{vX+2}, {X1}, v{vCI}")
        a(f"ds_write_b32 v{vCA}, v{vX+2 if par else vCI} offset:{1024*par}")
        a("s_add_u32 s48, s48, 1")
        for i in range(NS):
            p = (par * NS + i) % 2
            g = G0 + 4 * p; b = B0 + 4 * p
            a("s_waitcnt lgkmcnt(0)")
            if i == NS - 1: a(f"v_or_b32 v{vA}, s84, v{vA}")
            addr()
            a("s_waitcnt vmcnt(1)")
            sk = o.skip and i == 1
            if sk:
                a("s_cmp_lg_u32 s84, 0")
                a(f"s_cbranch_scc1 P2_nt{par}")
            transpose(g)
            if sk: a(f"P2_nt{par}:")
            a(f"buffer_load_dwordx4 v[{g}:{g+3}], v{vA}, s[8:11], 0 offen {o.gfl}")
            if o.skip and i == NS - 1:
                a("s_cmp_lg_u32 s84, 0")
                a(f"s_cbranch_scc1 P2_last{par}")
            reads2(par, i, False)
            if i + 1 < NS: reads1(par, i + 1, False)
            if i == 0: a(f"v_cmp_le_u32 s[90:91], s85, v{vX}")
            if sk: a(f"s_cbranch_scc1 P2_nm{par}")
            a(f"s_waitcnt lgkmcnt({6 if i + 1 < NS else 3})")
            mfma2((i - 2) % NS, b)
            if sk: a(f"P2_nm{par}:")
            a(f"s_bitcmp1_b32 s90, {i}")
            a(f"s_waitcnt lgkmcnt({3 if i + 1 < NS else 0})")
            for u in range(4): a(f"v_and_b32 v{b+u}, v{vM+u}, v{vC+u}")
            a(f"s_cbranch_scc1 P2_slow{par}_{i}")
            a(f"P2_back{par}_{i}:")
            if par == 0 and i in lstep:
                a("s_cmp_lg_u32 s42, 0")
                a(f"s_cbranch_scc1 P2_lazy{i}")
                a(f"P2_lazyb{i}:")
        if par == 0 and NL:
            a("s_cmp_eq_u32 s42, 0")
            a("s_cbranch_scc1 P2_nolz")
            a("s_mov_b32 s42, 0")
            a("s_waitcnt vmcnt(0)")
            lds_count(a, vX, XW + X_B)
            a("P2_nolz:")
        for u in range(4): a(f"v_mov_b32 v{vX+u}, {MARK}")
        for k in range(4):
            if k == 3: a("s_mov_b64 exec, s[92:93]")
            a(f"ds_write_b128 v{bR}, v[{vX}:{vX+3}] offset:{par*X1+1024*k}")
        a("s_mov_b64 exec, 1")
        a(f"v_mov_b32 v{vA}, 1")
        a("s_waitcnt lgkmcnt(0)")
        a(f"ds_add_rtn_u32 v{vA}, v0, v{vA} offset:{4*par}")
        a("s_lshr_b32 s40, s48, 1")
        a("s_mul_i32 s40, s40, 12")
        a("s_waitcnt lgkmcnt(0)")
        a(f"v_readfirstlane_b32 s41, v{vA}")
        a("s_mov_b64 exec, -1")
        a("s_sub_u32 s41, s41, s40")
        a("s_setprio 0")
        a("s_cmp_lt_u32 s41, 4")
        a(f"s_cbranch_scc1 P2_round{1-par}")
        a("s_setprio 1")
        a("s_cmp_lt_u32 s41, 8")
        a(f"s_cbranch_scc1 P2_round{1-par}")
        a("s_setprio 2")
        if par: a("s_branch P2_round0")
    for par in range(2 if o.skip else 0):
        a(f"P2_last{par}:")
        a("s_waitcnt lgkmcnt(0)")
        mfma2(NS - 3, B0 + 4 * ((par * NS + NS - 1) % 2))
        a(f"s_branch P2_back{par}_{NS-1}")
    for i in sorted(lstep):
        a(f"P2_lazy{i}:")
        for t in lstep[i]: lazy(t)
        a(f"s_branch P2_lazyb{i}")
    for par in range(2):
        for i in range(NS):
            a(f"P2_slow{par}_{i}:")
            reads1(par, i, True)
            a("s_waitcnt lgkmcnt(0)")
            a("s_mov_b64 exec, s[94:95]")
            a(f"v_mov_b32 v{vA}, {MARK}")
            a("s_mov_b64 exec, -1")
            addr()
            a(f"buffer_load_dwordx4 v[{vX}:{vX+3}], v{vA}, s[8:11], 0 offen")
            reads2(par, i, True)
            if i + 1 < NS: reads1(par, i + 1, False)
            a(f"s_waitcnt lgkmcnt({3 if i + 1 < NS else 0})")
            for u in range(4): a(f"v_and_b32 v{vM+u}, v{vM+u}, v{vC+u}")
            a("s_waitcnt vmcnt(0)")
            transpose(vX)
            a("s_waitcnt lgkmcnt(0)")
            mfma2(i, vM)
            a(f"s_branch P2_back{par}_{i}")
    vLo = 14; vSo = 15; vRb = 12; vWt = 13
    mreg = [0, 2, 4, 6, 8, 10, 16, 18, 20, 22, 24, 26, ACC, ACC + 2, ACC + 4, ACC + 6, ACC + 8]
    NPRE = 12
    def mload(i):
        a(f"buffer_load_dwordx2 v[{mreg[i]}:{mreg[i]+1}], v{vLo}, s[12:15], 0 offen")
        a(f"v_add_u32 v{vLo}, {512*32}, v{vLo}")
    for par in (1, 0):
        a(f"P2_drain{par}:")
        a("s_waitcnt lgkmcnt(0)")
        if par == 1: P.stamp()
        elif o.prof == 1: P.n -= 1; P.stamp()
        if o.prof == 1:
            srd(a, 52, 32, 0x100000, WS_PROF)
            a("s_lshl_b32 s56, s2, 4")
            a("s_add_u32 s56, s56, s3")
            a("s_lshl_b32 s56, s56, 7")
            a("v_lshrrev_b32 v12, 1, v13")
            a("v_add_u32 v12, s56, v12")
            a("s_bfm_b64 exec, 32, 0")
            a("buffer_store_dword v14, v12, s[52:55], 0 offen")
            a("s_mov_b64 exec, -1")
        a(f"v_mov_b32 v{vLo}, v{vSo}")
        for i in range(NPRE): mload(i)
        a(f"s_mov_b32 s51, {RB_AT[1 - par]}")
        for i in (NS, NS + 1):
            p = (par * NS + i) % 2
            a(f"s_waitcnt vmcnt({NS + 1 - i + NPRE})")
            transpose(G0 + 4 * p)
            a("s_waitcnt lgkmcnt(0)")
            mfma2(i - 2, B0 + 4 * p)
        if par == 1: a("s_branch P2_epi")
    a("P2_epi:")
    WS_ = 32; WR_ = 36; WU = 40; WD = 42; RB = 44; SS = 48; GG = 52; UU = 56; ZZ = 28
    a("s_lshl_b32 s47, s47, 3")
    a("s_add_u32 s47, s47, s44")
    a("s_lshl_b32 s47, s47, 9")
    a("s_add_u32 s51, s51, s47")
    a(f"v_add_u32 v{vRb}, s51, v{vWt}")
    a(f"v_add_u32 v{vWt}, {WT}, v{vWt}")
    lds_wait(a, UU, XW + X_R, 4, "r", 1)
    for k in range(6): a(f"ds_read_b64 v[{WS_+2*k}:{WS_+2*k+1}], v{vWt} offset:{512*k}")
    def rbread(k): a(f"ds_read_b64 v[{RB+2*(k%2)}:{RB+2*(k%2)+1}], v{vRb} offset:{512*k}")
    rbread(0); rbread(1)
    vm = [("m", i) for i in range(NPRE)]
    def mf(d, w, i):
        h = 2 * (i % 2); r = RB + 2 * ((i // 2) % 2)
        a(f"v_mfma_f32_16x16x16_bf16 v[{d}:{d+3}], v[{w+h}:{w+h+1}], v[{r}:{r+1}], 0")
    def pack(i):
        c0 = ACC + 4 * i
        for u in range(2): a(f"v_cvt_pk_bf16_f32 v{c0+u}, v{c0+2*u}, v{c0+2*u+1}")
    def mz(i):
        c0 = ACC + 4 * i
        a(f"v_mfma_f32_16x16x16_bf16 v[{ZZ}:{ZZ+3}], v[{WD}:{WD+1}], v[{c0}:{c0+1}], 0")
    def gate(i):
        c0 = ACC + 4 * i
        for c in (0, 2): a(f"v_pk_mul_f32 v[{c0+c}:{c0+c+1}], v[{SS+c}:{SS+c+1}], v[{ZZ+c}:{ZZ+c+1}]")
        pack(i)
    pack(0)
    a("s_waitcnt lgkmcnt(0)")
    mz(0); mf(SS, WS_, 0); mf(GG, WR_, 0)
    gate(0)
    for i in range(NS):
        c0 = ACC + 4 * i; m = mreg[i]; nx = i + 1 < NS
        if i == NS - 1:
            a("s_cmp_lt_u32 s50, 17")
            a("s_cbranch_scc1 P2_fin")
        a(f"v_mfma_f32_16x16x16_bf16 v[{UU}:{UU+3}], v[{WU}:{WU+1}], v[{c0}:{c0+1}], 0")
        if nx: pack(i + 1)
        lg = f" lgkmcnt({1 if i // 2 + 2 <= 8 else 0})" if nx and i % 2 == 1 else ""
        a(f"s_waitcnt vmcnt({len(vm) - 1 - vm.index(('m', i))})" + lg)
        if nx: mf(SS, WS_, i + 1)
        a(f"v_lshlrev_b32 v{c0}, 16, v{m}")
        a(f"v_and_b32 v{c0+1}, 0xffff0000, v{m}")
        if nx: mz(i + 1)
        a(f"v_lshlrev_b32 v{c0+2}, 16, v{m+1}")
        a(f"v_and_b32 v{c0+3}, 0xffff0000, v{m+1}")
        for c in (0, 2): a(f"v_pk_fma_f32 v[{c0+c}:{c0+c+1}], v[{UU+c}:{UU+c+1}], v[{GG+c}:{GG+c+1}], v[{c0+c}:{c0+c+1}]")
        if nx: mf(GG, WR_, i + 1)
        for u in range(2): a(f"v_cvt_pk_bf16_f32 v{m+u}, v{c0+2*u}, v{c0+2*u+1}")
        a(f"buffer_store_dwordx2 v[{m}:{m+1}], v{vSo}, s[28:31], 0 offen {o.ost}")
        vm.append(("s", i))
        if nx: gate(i + 1)
        a(f"v_add_u32 v{vSo}, {512*32}, v{vSo}")
        if i % 2 == 0 and i // 2 + 2 <= 8: rbread(i // 2 + 2)
        for k in (NPRE + 2 * i, NPRE + 2 * i + 1):
            if k < NS: mload(k); vm.append(("m", k))
    a("P2_fin:")
    if o.prof:
        P.stamp()
        a("s_waitcnt vmcnt(0)")
        P.stamp(True)
        P.dump(32, 0x80000, 34, 3)
    a("P2_end:")
    a("s_endpgm")

KD = """.amdhsa_kernel {name}
  .amdhsa_next_free_vgpr 128
  .amdhsa_next_free_sgpr 100
  .amdhsa_accum_offset 128
  .amdhsa_group_segment_fixed_size 0
  .amdhsa_kernarg_size 112
  .amdhsa_user_sgpr_count 2
  .amdhsa_user_sgpr_kernarg_segment_ptr 1
  .amdhsa_system_sgpr_workgroup_id_x 1
  .amdhsa_float_denorm_mode_32 3
.end_amdhsa_kernel
"""

NAME = "gather_scatter__molecular_angular_gemnet__graph_kernel"

def build(o):
    GUARD[0] = 1000000 if o.maxr else 0
    a = Asm(); P = Prof(a, o.prof, 1)
    xw, stg = gen_p1(o, a, P); gen_p2(o, a, P, xw, stg)
    ref = open("gather_scatter__molecular_angular_gemnet__graph.s.ref").read().split("\n")
    head = [l for l in ref if l.startswith(";") and "launch geometry" not in l and "Harness parses" not in l and "@launch" not in l]
    s = "\n".join(head) + "\n"
    s += "; Part 1 partitions the triplets by (input slice, output bin); part 2 gathers / segment-sums with MFMA.\n"
    s += f"; @launch grid=(256,1,1) block=(1024,1,1) lds={xw + 64}\n"
    s += '.amdgcn_target "amdgcn-amd-amdhsa--gfx950"\n.text\n'
    s += f".globl {NAME}\n.p2align 8\n.type {NAME},@function\n{NAME}:\n" + a.finish()
    s += '.section .rodata,"a"\n.p2align 6\n' + KD.format(name=NAME)
    return s

def parser():
    p = argparse.ArgumentParser()
    p.add_argument("-S", type=int, default=11)
    for k, d in dict(prof=0, maxr=0, dstep=4, asplit=12, sw=1, psleep=2, csleep=2, gsleep=24, maxpoll=1000000, eprio=0, nd=4, ssleep=1, wsh=50, xp=0, skip=1, l0=9, pfs=14, pfd=2, own=1, swo=36000, swd=0, nornd=0, pp=5, nb=5, sw0=4, pf0=3, pfw=0, pfn=5, ldp=1, spr=2, f0=0, cpf=14, nl=5, lstep=0, fuse=1, cmap=2, rot=0).items():
        p.add_argument("--" + k, type=int, default=d)
    p.add_argument("--p1_ld", default="nt")
    p.add_argument("--p1_st", default="sc1")
    p.add_argument("--ost", default="nt")
    p.add_argument("--gfl", default="")
    p.add_argument("-o", default="gather_scatter__molecular_angular_gemnet__graph.s")
    return p

if __name__ == "__main__":
    o = parser().parse_args()
    open(o.o, "w").write(build(o))
```

```python
import sys, argparse
from asmlib import Asm

E = 800000; T = 12800000
NT = 256
CHA = 25088
TILE_N = 50000
TILE_BYTES = 300032
WS_DESC = 0x5000000
WS_PROF = 0x6000000
CAP = 56
WSTR = CAP * 4
MARK = 0x38100000
NG = 196
CL = E // 8
WREG = 9472

GUARD = [0]
def guard(a):
    if GUARD[0]:
        a("s_add_u32 s99, s99, 1")
        a(f"s_cmp_gt_u32 s99, {GUARD[0]}")
        a("s_cbranch_scc1 P2_end")

def slicing(o):
    B = (o.f0 << 26) // 100
    K = ((o.S << 26) - B) // E
    return K, B

def srd(a, d, base, size, off=None):
    if off is None:
        a(f"s_mov_b32 s{d}, s{base}")
        a(f"s_mov_b32 s{d+1}, s{base+1}")
    else:
        a(f"s_add_u32 s{d}, s{base}, {off}")
        a(f"s_addc_u32 s{d+1}, s{base+1}, 0")
    a(f"s_mov_b32 s{d+2}, {size}")
    a(f"s_mov_b32 s{d+3}, 0x20000")

class Prof:
    def __init__(self, a, on, fuse=0): self.a = a; self.on = on; self.n = 0; self.fuse = fuse
    def stamp(self, key=False):
        if not self.on or (self.on == 2 and not key): return
        a = self.a
        a("s_waitcnt lgkmcnt(0)")
        a("s_memtime s[58:59]")
        a("s_waitcnt lgkmcnt(0)")
        a(f"s_mov_b32 s{60+self.n}, s58")
        a("s_memrealtime s[58:59]")
        a("s_waitcnt lgkmcnt(0)")
        a(f"s_mov_b32 s{72+self.n}, s58")
        self.n += 1
    def dump(self, wsreg, region, vt, wave_sreg):
        if not self.on or self.on == 3: return
        a = self.a
        srd(a, 52, wsreg, 0x100000, WS_PROF + region)
        a(f"s_lshl_b32 s56, s2, 4")
        a(f"s_add_u32 s56, s56, s{wave_sreg}")
        a(f"s_lshl_b32 s56, s56, 7")
        a("s_mov_b64 exec, 1")
        for i in range(self.n):
            a(f"v_mov_b32 v{vt}, s56")
            a(f"v_mov_b32 v{vt+1}, s{60+i}")
            a(f"buffer_store_dword v{vt+1}, v{vt}, s[52:55], 0 offen offset:{4*i}")
            a(f"v_mov_b32 v{vt+1}, s{72+i}")
            a(f"buffer_store_dword v{vt+1}, v{vt}, s[52:55], 0 offen offset:{64+4*i}")
        a(f"v_mov_b32 v{vt+1}, s71")
        a(f"buffer_store_dword v{vt+1}, v{vt}, s[52:55], 0 offen offset:124")
        a("s_waitcnt vmcnt(0)")
        a("s_mov_b64 exec, -1")

def gen_p1(o, a, P):
    S = o.S
    NK = S * 256
    KSL, BSL = slicing(o)
    CN = 16; SCR = CN + NK * 4; STG = SCR + 64; XW = STG + CHA * 6
    W0 = 4; KP0 = 53; C0 = 78; TO = 103; T0 = 104
    ld = o.p1_ld; st = o.p1_st
    def issue_idx(r):
        b = C0 + 4 * (r % 6); w = W0 + 4 * r
        a(f"buffer_load_dwordx4 v[{b}:{b+3}], v1, s[12:15], s36 offen {ld}")
        a(f"buffer_load_dwordx4 v[{w}:{w+3}], v1, s[8:11], s36 offen {ld}")
        a(f"s_add_u32 s36, s36, 16384")
    def issue_ang(r):
        b = C0 + 2 * r
        a(f"buffer_load_dwordx2 v[{b}:{b+1}], v2, s[16:19], s37 offen {ld}")
        a(f"s_add_u32 s37, s37, 8192")
    DP = o.ldp
    a("s_load_dwordx2 s[8:9], s[0:1], 8")
    a("s_load_dwordx2 s[12:13], s[0:1], 16")
    a("s_cmp_ge_u32 s2, 256")
    a("s_cbranch_scc1 P2_end")
    if o.cpf:
        a("s_getpc_b64 s[40:41]")
        a("P1_pc:")
        a("s_lshr_b32 s45, s2, 3")
        a(f"s_mulk_i32 s45, {o.cpf}")
        a(f"s_mov_b32 s42, P2_end-P1_pc")
        a("s_mov_b32 s43, 0x20000")
        a(f"v_add_lshl_u32 v{T0+23}, v0, s45, 7")
        a(f"v_cmp_gt_u32 vcc, {o.cpf}, v0")
        a("s_and_b64 exec, exec, vcc")
        a("s_cbranch_execz P1_nopf")
        a(f"buffer_load_dword v{T0+23}, v{T0+23}, s[40:43], 0 offen")
        a("P1_nopf:")
        a("s_mov_b64 exec, -1")
    a(f"s_mov_b32 s10, {T * 4}")
    a("s_mov_b32 s11, 0x20000")
    a("s_mov_b64 s[14:15], s[10:11]")
    a(f"s_mul_i32 s36, s2, {12 * 16384}")
    a("v_lshlrev_b32 v1, 4, v0")
    a("s_waitcnt lgkmcnt(0)")
    P.stamp(True)
    for r in range(DP): issue_idx(r)
    if GUARD[0]: a("s_mov_b32 s99, 0")
    a("s_load_dwordx2 s[16:17], s[0:1], 32")
    a("s_load_dwordx2 s[30:31], s[0:1], 48")
    a("s_load_dwordx2 s[32:33], s[0:1], 104")
    a("s_load_dwordx2 s[94:95], s[0:1], 96")
    a("s_load_dwordx2 s[48:49], s[0:1], 0")
    a("s_load_dwordx2 s[86:87], s[0:1], 88")
    a("v_lshlrev_b32 v2, 3, v0")
    a("v_mov_b32 v3, 1")
    for i in range(4): a(f"v_mov_b32 v{T0+i}, 0")
    a(f"ds_write_b128 v1, v[{T0}:{T0+3}]")
    a(f"v_lshrrev_b32 v{T0+4}, 6, v0")
    a(f"v_readfirstlane_b32 s3, v{T0+4}")
    a(f"s_mul_i32 s34, s2, 848")
    a(f"s_add_u32 s34, s34, {3072*4096}")
    a(f"v_add_u32 v109, s34, v0")
    a(f"v_cmp_gt_u32 vcc, 848, v0")
    a(f"v_lshlrev_b32 v110, 2, v109")
    a(f"v_lshlrev_b32 v109, 1, v109")
    a(f"v_cndmask_b32 v110, 2.0, v110, vcc")
    a(f"v_cndmask_b32 v109, 2.0, v109, vcc")
    a(f"buffer_load_dword v{TO}, v110, s[12:15], 0 offen {ld}")
    a(f"buffer_load_dword v{W0+48}, v110, s[8:11], 0 offen {ld}")
    a(f"s_mov_b32 s18, {T * 2}")
    a("s_mov_b32 s19, 0x20000")
    a(f"s_mul_i32 s37, s2, {12 * 8192}")
    a("s_waitcnt lgkmcnt(0)")
    a("s_load_dword s35, s[30:31], 0")
    a(f"buffer_load_ushort v{C0+24}, v109, s[16:19], 0 offen {ld}")
    a("s_mov_b32 s38, 0x7c00")
    MG = -(-(1 << 19) // S)
    assert all((n * MG) >> 19 == n // S for n in range(4096))
    a(f"s_mov_b32 s40, {(-(1024*S - 4)) & 0xffffffff}")
    for j in range(4):
        t = T0 + 16 + j
        a(f"v_lshl_add_u32 v{t}, v0, 2, {j}")
        a(f"v_mul_u32_u24 v{T0}, {MG}, v{t}")
        a(f"v_lshrrev_b32 v{T0}, 19, v{T0}")
        a(f"v_lshlrev_b32 v{t}, 10, v{t}")
        a(f"v_mad_i32_i24 v{t}, v{T0}, s40, v{t}")
        a(f"v_add_u32 v{t}, {STG}, v{t}")
    srd(a, 20, 32, NT * NT * S * 4, WS_DESC)
    srd(a, 24, 94, 256)
    a("s_mov_b32 s44, 0")
    a(f"s_mov_b32 s39, {KSL}")
    a(f"v_mov_b32 v{T0+22}, {(BSL - (CL * KSL if o.own == 1 else 0)) & 0xffffffff}")
    a(f"s_mov_b32 s5, {CL}")
    a(f"v_mov_b32 v{T0+20}, 0x7c")
    a(f"v_mov_b32 v{T0+21}, 0x0ff00000")
    a("s_barrier")
    KX = -(-(1 << 28) // (CL // 16))
    assert all(((k * (CL // 16) + d) * KX) >> 28 == (k * (CL // 16) + d) // (CL // 16) for k in range(1, 9) for d in (-1, 0) if k < 8 or d < 0)
    def key(O, W, t):
        x, xb, d, n = t, t + 1, t + 2, t + 3
        a(f"v_and_b32 v{x}, -16, v{O}")
        a(f"v_mul_hi_u32_u24 v{x}, {KX}, v{x}")
        a(f"v_mul_u32_u24 v{xb}, {CL}, v{x}")
        a(f"v_sub_u32 v{d}, v{W}, v{xb}")
        a(f"v_sub_u32 v{O}, v{O}, v{xb}")
        if o.own == 1:
            a(f"v_cmp_gt_u32 s[42:43], s5, v{d}")
            a(f"v_ashrrev_i32 v{n}, 31, v{d}")
            a(f"v_add_u32 v{d}, {8 * CL}, v{d}")
            a(f"v_and_b32 v{n}, {CL}, v{n}")
            a(f"v_add_u32 v{n}, v{n}, v{W}")
            a(f"v_cndmask_b32 v{n}, v{n}, v{d}, s[42:43]")
        elif o.own == 2:
            a(f"v_subrev_u32 v{d}, {CL}, v{d}")
            a(f"v_add_u32 v{n}, {E}, v{d}")
            a(f"v_min_u32 v{n}, v{n}, v{d}")
        else:
            a(f"v_mov_b32 v{n}, v{W}")
        a(f"v_lshlrev_b32 v{xb}, 11, v{O}")
        a(f"v_lshl_or_b32 v{W}, v{O}, 28, v{W}")
        a(f"v_mad_u32_u24 v{n}, v{n}, s39, v{T0+22}")
        a(f"v_lshrrev_b32 v{O}, 2, v{O}")
        a(f"v_bitop3_b32 v{W}, v{xb}, v{T0+21}, v{W} bitop3:0xea")
        a(f"v_and_b32_sdwa v{n}, v{n}, s38 dst_sel:DWORD dst_unused:UNUSED_PAD src0_sel:WORD_1 src1_sel:DWORD")
        a(f"v_lshl_or_b32 v{n}, v{x}, 7, v{n}")
        a(f"v_bitop3_b32 v{O}, v{O}, v{T0+20}, v{n} bitop3:0xea")
    for r in range(12):
        a(f"s_waitcnt vmcnt({min(2*DP-2, 2*(11-r)) + (3 if r < DP else 0)})")
        if DP < 6 and r + DP < 12: issue_idx(r + DP)
        if r == DP:
            key(TO, W0 + 48, T0)
            a(f"v_cndmask_b32 v{KP0+24}, 2.0, v{TO}, vcc")
            a(f"ds_add_u32 v{KP0+24}, v3 offset:{CN}")
        b = C0 + 4 * (r % 6)
        for j in range(4):
            key(b + j, W0 + 4 * r + j, T0 + 4 * j)
            a(f"ds_add_u32 v{b+j}, v3 offset:{CN}")
        a(f"v_lshl_or_b32 v{KP0+2*r}, v{b+1}, 16, v{b}")
        a(f"v_lshl_or_b32 v{KP0+2*r+1}, v{b+3}, 16, v{b+2}")
        if DP == 6 and r < 6: issue_idx(r + 6)
    a("s_waitcnt lgkmcnt(0)")
    a("s_barrier")
    P.stamp()
    c = T0; x = T0 + 4; tot = T0 + 5; y = T0 + 6
    a(f"s_cmp_ge_u32 s3, {S}")
    a("s_cbranch_scc1 P1_scan1")
    a(f"ds_read_b128 v[{c}:{c+3}], v1 offset:{CN}")
    a("s_waitcnt lgkmcnt(0)")
    a(f"v_add_u32 v{c+1}, v{c}, v{c+1}")
    a(f"v_add_u32 v{c+2}, v{c+1}, v{c+2}")
    a(f"v_add_u32 v{c+3}, v{c+2}, v{c+3}")
    a(f"v_mov_b32 v{x}, v{c+3}")
    for sh in (1, 2, 4, 8):
        a(f"v_add_u32_dpp v{x}, v{x}, v{x} row_shr:{sh} row_mask:0xf bank_mask:0xf bound_ctrl:1")
    a(f"v_add_u32_dpp v{x}, v{x}, v{x} row_bcast:15 row_mask:0xa bank_mask:0xf")
    a(f"v_add_u32_dpp v{x}, v{x}, v{x} row_bcast:31 row_mask:0xc bank_mask:0xf")
    a(f"v_readlane_b32 s40, v{x}, 63")
    a(f"s_lshl_b32 s41, s3, 2")
    a(f"v_mov_b32 v{y}, s41")
    a(f"v_mov_b32 v{y+1}, s40")
    a(f"ds_write_b32 v{y}, v{y+1} offset:{SCR}")
    a("s_waitcnt lgkmcnt(0)")
    a("P1_scan1:")
    a("s_barrier")
    a(f"s_cmp_ge_u32 s3, {S}")
    a("s_cbranch_scc1 P1_scan2")
    a(f"v_and_b32 v{y}, 63, v0")
    a(f"v_lshlrev_b32 v{y+1}, 2, v{y}")
    a(f"ds_read_b32 v{y+2}, v{y+1} offset:{SCR}")
    a(f"v_cmp_gt_u32 s[42:43], s3, v{y}")
    a(f"v_sub_u32 v{x}, v{x}, v{c+3}")
    a("s_waitcnt lgkmcnt(0)")
    a(f"v_cndmask_b32 v{y+2}, 0, v{y+2}, s[42:43]")
    for sh in (1, 2, 4, 8):
        a(f"v_add_u32_dpp v{y+2}, v{y+2}, v{y+2} row_shr:{sh} row_mask:0xf bank_mask:0xf bound_ctrl:1")
    a(f"v_readlane_b32 s40, v{y+2}, 15")
    s0 = T0 + 12
    a(f"v_add_u32 v{s0}, s40, v{x}")
    for j in range(3): a(f"v_add_u32 v{s0+1+j}, v{s0}, v{c+j}")
    a(f"ds_write_b128 v1, v[{s0}:{s0+3}] offset:{CN}")
    a(f"ds_write_b128 v1, v[{s0}:{s0+3}] offset:{STG}")
    a(f"v_mov_b32 v{c}, {STG + NK * 4}")
    a(f"v_mov_b32 v{c+1}, {TILE_N}")
    a(f"ds_write_b32 v{c}, v{c+1}")
    a("s_waitcnt lgkmcnt(0)")
    a("P1_scan2:")
    a("s_barrier")
    a(f"s_cmp_ge_u32 s3, {S}")
    a("s_cbranch_scc1 P1_nodesc")
    for j in range(4):
        a(f"ds_read2_b32 v[{T0+2*j}:{T0+2*j+1}], v{T0+16+j} offset0:0 offset1:1")
    a(f"s_mul_i32 s40, s2, {256*S*4}")
    lds_count(a, T0 + 8, 4)
    for j in range(4): a(f"v_lshl_or_b32 v{T0+12+j}, v{T0+2*j+1}, 16, v{T0+2*j}")
    a(f"buffer_store_dwordx4 v[{T0+12}:{T0+15}], v1, s[20:23], s40 offen {st}")
    a("P1_nodesc:")
    a(f"s_mul_i32 s40, s3, {WREG - 1024}")
    a(f"s_add_u32 s40, s40, {9*1024}")
    a(f"v_add_u32 v{TO}, s40, v1")
    srd(a, 8, 48, E * 32)
    a(f"s_mul_i32 s41, s2, {o.pfn * 64}")
    a(f"s_sub_u32 s41, s41, {o.pfw * 64}")
    a("v_add_lshl_u32 v1, v0, s41, 7")
    if o.pp & 1: a("s_setprio 3")
    def atomics(n):
        t = T0 + 4 * (n % 2)
        if n == 12:
            a(f"ds_add_rtn_u32 v{t}, v{KP0+24}, v3 offset:{CN}"); return 1
        for j in range(4):
            kp = KP0 + 2 * n + j // 2
            if j % 2 == 0: a(f"v_and_b32 v{t+j}, 0xffff, v{kp}")
            else: a(f"v_lshrrev_b32 v{t+j}, 16, v{kp}")
            a(f"ds_add_rtn_u32 v{t+j}, v{t+j}, v3 offset:{CN}")
        return 4
    a(f"s_cmp_ge_u32 s3, {o.asplit}")
    a("s_cbranch_scc1 P1_ang1")
    for n in range(12): issue_ang(n)
    a("P1_ang1:")
    atomics(0)
    for n in range(13):
        k = atomics(n + 1) if n < 12 else 0
        a(f"s_waitcnt lgkmcnt({k})")
        t = T0 + 4 * (n % 2); u = T0 + 8
        if n < 12:
            a(f"v_lshl_or_b32 v{KP0+2*n}, v{t+1}, 16, v{t}")
            a(f"v_lshl_or_b32 v{KP0+2*n+1}, v{t+3}, 16, v{t+2}")
        else:
            a(f"v_mov_b32 v{u}, 0xffff")
            a(f"v_cndmask_b32 v{KP0+24}, v{u}, v{t}, vcc")
    a(f"s_cmp_lt_u32 s3, {o.asplit}")
    a("s_cbranch_scc1 P1_ang2")
    for n in range(12): issue_ang(n)
    a("P1_ang2:")
    a("s_lshl_b32 s35, s35, 16")
    a("s_cmp_eq_u32 s35, 1.0")
    a("s_cbranch_scc1 P1_f1")
    a("s_waitcnt vmcnt(0)")
    for n in range(25):
        cr = C0 + n; t = T0
        a(f"v_lshlrev_b32 v{t}, 16, v{cr}")
        a(f"v_and_b32 v{t+1}, 0xffff0000, v{cr}")
        a(f"v_mul_f32 v{t}, s35, v{t}")
        a(f"v_mul_f32 v{t+1}, s35, v{t+1}")
        a(f"v_cvt_pk_bf16_f32 v{cr}, v{t}, v{t+1}")
    a("P1_f1:")
    lds_wait(a, T0, 4, S, "q", 0)
    def addrs(n, h, u, base):
        a(f"v_mad_u32_u16 v{u}, v{KP0+n}, 6, {base}" + (" op_sel:[1,0,0,0]" if h else ""))
        a(f"v_and_b32 v{u+1}, 2, v{u}")
        a(f"v_sub_u32 v{u}, v{u}, v{u+1}")
        a(f"v_sub_u32 v{u+1}, v{u}, v{u+1}")
    for n in range(25):
        cr = C0 + n; t = T0 + 6 * (n % 2)
        if o.pp & 1 and n in (0, 9, 17): a(f"s_setprio {2 - n // 8}")
        if o.pf0 == 3:
            if n == 0: a("s_waitcnt vmcnt(0)")
            for w in range(o.pfn):
                if o.pfs + (w * o.pfd) // 2 == n:
                    a(f"s_cmp_lg_u32 s3, {o.pfw + w}")
                    a(f"s_cbranch_scc1 P1_npf{w}")
                    a("buffer_load_dword v1, v1, s[8:11], 0 offen")
                    a(f"P1_npf{w}:")
        elif n % 2 == 0 and n < 24: a(f"s_waitcnt vmcnt({11 - n // 2})")
        if n == 0:
            a(f"s_cmp_ge_u32 s3, {S}")
            a("s_cbranch_scc1 P1_noe")
            a("s_waitcnt vmcnt(0)")
            lds_ticket(a, 2, 8)
            a(f"s_cmp_lg_u32 s40, {S-1}")
            a("s_cbranch_scc1 P1_noe")
            arrive(a, 2, LV_E)
            a("s_mov_b32 s44, 1")
            a("P1_noe:")
        if n == 14:
            a("s_cmp_eq_u32 s44, 0")
            a("s_cbranch_scc1 P2_norele")
            release(a, 2, LV_E, "e")
        a(f"v_lshlrev_b32 v{t}, 16, v{cr}")
        a(f"v_and_b32 v{t+1}, 0xffff0000, v{cr}")
        a(f"v_mul_f32 v{t}, 0.15915494, v{t}")
        a(f"v_mul_f32 v{t+1}, 0.15915494, v{t+1}")
        a(f"v_fract_f32 v{t}, v{t}")
        a(f"v_fract_f32 v{t+1}, v{t+1}")
        a(f"v_cos_f32 v{t}, v{t}")
        a(f"v_cos_f32 v{t+1}, v{t+1}")
        for h in range(2 if n < 24 else 1):
            u = t + 2 + 2 * h
            addrs(n, h, u, 0)
            a(f"ds_write_b32 v{u}, v{W0+2*n+h} offset:{STG}")
        a(f"v_cvt_pk_bf16_f32 v{cr}, v{t}, v{t+1}")
        a(f"ds_write_b16 v{t+3}, v{cr} offset:{STG+8}")
        if n < 24: a(f"ds_write_b16_d16_hi v{t+5}, v{cr} offset:{STG+8}")
    a(f"s_mul_i32 s40, s2, {TILE_BYTES}")
    srd(a, 20, 32, CHA * 6, "s40")
    a(f"v_subrev_u32 v2, {9*1024}, v{TO}")
    a("s_mov_b32 s44, 0")
    if o.pf0 == 2:
        a(f"s_sub_u32 s40, s3, {o.pfw}")
        a(f"s_cmp_ge_u32 s40, {o.pfn}")
        a("s_cbranch_scc1 P1_nopf0")
        a("buffer_load_dword v1, v1, s[8:11], 0 offen")
        a("P1_nopf0:")
    a("s_waitcnt lgkmcnt(0)")
    a("s_barrier")
    P.stamp()
    a(f"s_cmp_lg_u32 s3, 15")
    a("s_cbranch_scc1 P1_noclr")
    a(f"v_and_b32 v3, 15, v0")
    a(f"v_lshlrev_b32 v3, 2, v3")
    a(f"v_add_u32 v3, {XW}, v3")
    a(f"v_mov_b32 v{T0}, 0")
    a(f"ds_write_b32 v3, v{T0}")
    a("P1_noclr:")
    def rd(k):
        t = T0 + 4 * (k % 6)
        a(f"ds_read_b128 v[{t}:{t+3}], v2 offset:{STG + 1024 * (9 - k)}")
    def store(k):
        t = T0 + 4 * (k % 6)
        if k == 0: a("s_mov_b64 exec, 0xffff")
        a(f"buffer_store_dwordx4 v[{t}:{t+3}], v{TO}, s[20:23], 0 offen {st}")
        if k == 0: a("s_mov_b64 exec, -1")
        a(f"v_subrev_u32 v{TO}, 1024, v{TO}")
    NB = o.nb
    for k in range(6): rd(k)
    for k in range(NB):
        a(f"s_waitcnt lgkmcnt({min(5, 9-k)})")
        store(k)
        if k + 6 < 10: rd(k + 6)
    a(f"s_waitcnt vmcnt({NB}) lgkmcnt(0)")
    a(f"s_cmp_ge_u32 s3, {o.nd}")
    a("s_cbranch_scc1 P1_nod")
    for k in range(NB, 10): store(k)
    a("s_waitcnt vmcnt(0)")
    lds_ticket(a, T0, 0)
    a(f"s_cmp_lg_u32 s40, {o.nd-1}")
    a("s_cbranch_scc1 P1_nod")
    arrive(a, T0, LV_D)
    a("s_mov_b32 s44, 1")
    a("P1_nod:")
    a(f"s_mov_b32 s45, {(-CHA*6) & 0xffffffff}")
    a("s_barrier")
    P.stamp()
    nnow = NB
    for n in range(25):
        if o.pp & 2 and n in (0, 9, 17): a(f"s_setprio {2 - n // 8}")
        if o.pp & 4 and n in (0, 9, 17):
            if n == 0: a("s_setprio 3")
            a("s_cmp_lt_u32 s3, 4")
            a(f"s_cbranch_scc1 P1_pr{n}")
            a(f"s_setprio {2 - n // 8}")
            a(f"P1_pr{n}:")
        if n == 1:
            a("s_cmp_eq_u32 s44, 0")
            a("s_cbranch_scc1 P2_noreld")
            release(a, T0, LV_D, "d")
        if n % o.dstep == 1 and nnow < 10:
            a(f"s_cmp_lt_u32 s3, {o.nd}")
            a(f"s_cbranch_scc1 P1_ns{n}")
            store(nnow); nnow += 1
            a(f"P1_ns{n}:")
        for h in range(2 if n < 24 else 1):
            u = 2 * h
            addrs(n, h, u, "s45")
            a(f"ds_write_b32 v{u}, v{W0+2*n+h} offset:{STG}")
            a(f"ds_write_b16{'_d16_hi' if h else ''} v{u+1}, v{C0+n} offset:{STG+8}")
    assert nnow == 10
    lds_count(a, 4, XW + X_S)
    a(f"s_mul_i32 s40, s2, {TILE_BYTES}")
    a(f"s_add_u32 s40, s40, {CHA*6}")
    srd(a, 20, 32, (TILE_N - CHA) * 6, "s40")
    return XW, STG

LV_A, LV_B, LV_D, LV_E = 0, 1, 2, 3
X_A, X_S, X_X, X_I, X_B, X_R, X_C, X_H, X_CW, X_PW = 0, 4, 8, 12, 16, 20, 24, 28, 32, 48

def arrive(a, t, level):
    a(f"v_mov_b32 v{t}, 0")
    a(f"v_mov_b32 v{t+1}, 1")
    a("s_mov_b64 exec, 1")
    a(f"buffer_atomic_add v{t+1}, v{t}, s[24:27], 0 offen offset:{32*level} sc0 sc1")
    a("s_mov_b64 exec, -1")

def release(a, t, level, tag):
    a("s_waitcnt vmcnt(0)")
    a(f"v_readfirstlane_b32 s40, v{t+1}")
    a("s_cmp_lg_u32 s40, 255")
    a(f"s_cbranch_scc1 P2_norel{tag}")
    a("s_mov_b64 exec, 1")
    a(f"buffer_store_dword v{t+1}, v{t}, s[24:27], 0 offen offset:{128+4*level} sc1")
    a("s_mov_b64 exec, -1")
    a(f"P2_norel{tag}:")

def lds_count(a, t, word):
    a(f"v_mov_b32 v{t}, {word}")
    a(f"v_mov_b32 v{t+1}, 1")
    a("s_mov_b64 exec, 1")
    a("s_waitcnt lgkmcnt(0)")
    a(f"ds_add_u32 v{t}, v{t+1}")
    a("s_mov_b64 exec, -1")

def lds_wait(a, t, word, n, tag, sleep):
    a(f"v_mov_b32 v{t}, {word}")
    a(f"P2_lw{tag}:")
    a(f"ds_read_b32 v{t+1}, v{t}")
    a("s_waitcnt lgkmcnt(0)")
    a(f"v_readfirstlane_b32 s40, v{t+1}")
    a(f"s_cmp_ge_u32 s40, {n}")
    a(f"s_cbranch_scc1 P2_lg{tag}")
    if sleep: a(f"s_sleep {sleep}")
    guard(a)
    a(f"s_branch P2_lw{tag}")
    a(f"P2_lg{tag}:")

def lds_ticket(a, t, word):
    a(f"v_mov_b32 v{t}, {word}")
    a(f"v_mov_b32 v{t+1}, 1")
    a("s_mov_b64 exec, 1")
    a(f"ds_add_rtn_u32 v{t+1}, v{t}, v{t+1}")
    a("s_mov_b64 exec, -1")
    a("s_waitcnt lgkmcnt(0)")
    a(f"v_readfirstlane_b32 s40, v{t+1}")

def publish_a(a, t, XW, tag):
    lds_ticket(a, t, XW + X_A)
    a("s_cmp_lg_u32 s40, 15")
    a(f"s_cbranch_scc1 P2_norel{tag}")
    arrive(a, t, LV_A)
    release(a, t, LV_A, tag)

def gen_p2(o, a, P, XW, STG):
    S = o.S
    uid = [0]
    LUT = 2048; CB = 2560; WSZ = NG * WSTR
    RBSZ = 100 * 512
    X1 = RBSZ + 32
    WT = CB + WSZ // 2 + 16
    WB = CB + X1 // 2 + WSZ // 2 + 16
    RB_AT = (WB, WB + WSZ + 32)
    K0 = (WB - STG) // 12288; K1 = (WB + X1 - STG) // 12288
    assert STG + 12288 * (K0 + 4) >= WB + WSZ + 32 and STG + 12288 * K1 >= WB + WSZ + 32 and STG + 12288 * (K1 + 4) >= WB + X1 + WSZ + 64
    SC = STG + 12288 * (K1 + 4)
    assert WT + 3072 <= CB + X1 // 2 and WB < 65536 and SC + 12288 <= XW and WB % 16 == 0 and X1 % 32 == 0
    if o.xp:
        a("s_bfe_u32 s46, s2, 0x20001")
        a("s_bitcmp0_b32 s2, 0")
        a("s_cselect_b32 s47, 4, 0")
        a("s_add_u32 s46, s46, s47")
    else:
        a("s_and_b32 s46, s2, 7")
    a("s_lshl_b32 s46, s46, 5")
    a("s_lshr_b32 s47, s2, 3")
    a("s_add_u32 s46, s46, s47")
    a("v_mbcnt_lo_u32_b32 v12, -1, 0")
    a("v_mbcnt_hi_u32_b32 v12, -1, v12")
    a("s_lshl_b32 s40, s3, 6")
    a("v_add_u32 v0, s40, v12")
    srd(a, 8, 48, E * 32)
    srd(a, 12, 32, NT * TILE_BYTES)
    srd(a, 16, 32, NT * NT * S * 4, WS_DESC)
    a("s_mov_b64 s[6:7], s[86:87]")
    if o.prof: a("s_mov_b32 s71, 0")
    a("s_mov_b32 s48, 0")
    a("s_cmp_ge_u32 s3, 4")
    a("s_cbranch_scc1 P2_consumer")
    def twait(body):
        if o.prof == 1:
            a("s_waitcnt lgkmcnt(0)")
            a("s_memtime s[56:57]")
            a("s_waitcnt lgkmcnt(0)")
        body()
        if o.prof == 1:
            a("s_memtime s[58:59]")
            a("s_waitcnt lgkmcnt(0)")
            a("s_sub_u32 s56, s58, s56")
            a("s_add_u32 s71, s71, s56")
    D0 = 40; R0 = 64
    vU12 = 1; vTile = 2; vInc = 3; v3FC = 4; vCb = 5; vZ = 6; v2U2 = 7; v2U1 = 8; vSg = 9
    n2c = 10; a0c = 11; n2n = 13; a0n = 14
    vca = 16; vcb = 17; vra = 18; vrb = 19; vwa = 20; vwb = 21; vha = 22; vhb = 23; vt = 24; vt2 = 25; vPW = 26; vS = 28
    ODDC = 52; MORC = 54; ODDN = 84; MORN = 86; ROW0 = 82; M0_ = 88; M1_ = 90
    KSL, BSL = slicing(o)
    L0 = -(-(1 << 26) // KSL) // 4 + 1
    def warm(sl, part):
        nt = -(-L0 // 512); n0 = nt * o.wsh // 100; n1 = nt - n0
        uid[0] += 1
        a(f"s_mul_i32 s40, {sl}, {L0 - 1}")
        a(f"s_lshr_b32 s41, s2, 1")
        a(f"s_lshl_b32 s41, s41, 2")
        a(f"s_add_u32 s41, s41, {part}")
        a(f"s_mul_i32 s41, s41, {nt}")
        a(f"s_add_u32 s40, s40, s41")
        a(f"s_add_u32 s40, s40, {(o.swo // 4 - BSL // KSL // 4) & 0xffffffff}")
        a("s_bitcmp1_b32 s2, 0")
        a(f"s_cselect_b32 s41, {n0}, 0")
        a(f"s_add_u32 s40, s40, s41")
        a(f"s_cmp_ge_u32 s40, {E // 4}")
        a(f"s_cbranch_scc1 P2_we{uid[0]}")
        a(f"s_min_u32 s40, s40, {E // 4 - n1}")
        a(f"s_lshl_b32 s40, s40, 7")
        a(f"s_add_u32 s36, s8, s40")
        a(f"s_addc_u32 s37, s9, 0")
        for j in range(n1):
            if j == n0:
                a("s_bitcmp0_b32 s2, 0")
                a(f"s_cbranch_scc1 P2_we{uid[0]}")
            a(f"s_load_dwordx2 s[38:39], s[36:37], {128*j+60}")
        a(f"P2_we{uid[0]}:")
    def poll(level, tag, meanwhile=None):
        a("s_mov_b32 s51, 0")
        a(f"P2_poll{tag}:")
        a(f"buffer_load_dword v{vt}, v{vZ}, s[24:27], 0 offen offset:{128+4*level} sc1")
        a("s_add_u32 s51, s51, 1")
        a(f"s_cmp_gt_u32 s51, {o.maxpoll}")
        a("s_cbranch_scc1 P2_giveup")
        if meanwhile: a(f"s_call_b64 s[34:35], {meanwhile}")
        a("s_waitcnt vmcnt(0)")
        a(f"v_cmp_eq_u32 vcc, 0, v{vt}")
        a(f"s_cbranch_vccz P2_polled{tag}")
        a(f"s_sleep {o.gsleep}")
        a(f"s_branch P2_poll{tag}")
        a(f"P2_polled{tag}:")
    def ensure():
        uid[0] += 1; u = uid[0]
        a(f"v_cmp_lt_u32 vcc, s45, v{D0}")
        a(f"s_cbranch_vccz P2_have{u}")
        a("s_call_b64 s[42:43], P2_ensure")
        a(f"P2_have{u}:")
    def prep():
        ensure()
        a(f"v_bfe_u32 v{vt}, v{D0}, 1, 15")
        a(f"v_mad_u32_u24 v{a0n}, v{vt}, 12, v{vTile}")
        a(f"v_lshrrev_b32 v{n2n}, 16, v{D0}")
        a(f"v_and_b32 v{vt}, 0xfffe, v{D0}")
        a(f"v_sub_u32 v{n2n}, v{n2n}, v{vt}")
        a(f"v_and_b32 v{vt}, 1, v{D0}")
        a(f"v_cmp_eq_u32 s[{ODDN}:{ODDN+1}], 1, v{vt}")
        a(f"v_cmp_lt_u32 s[{MORN}:{MORN+1}], 32, v{n2n}")
        for k in range(S): a(f"v_mov_b32 v{D0+k}, v{D0+k+1}")
    def issue(i):
        t = (vt, vca)[i % 2]
        a(f"v_add_u32_dpp v{t}, v{a0n}, v{vU12} row_newbcast:{i} row_mask:0xf bank_mask:0xf")
        a(f"v_sub_u32_dpp v{t+1}, v{n2n}, v{v2U1} row_newbcast:{i} row_mask:0xf bank_mask:0xf")
        a(f"v_bitop3_b32 v{t}, v{t+1}, v{vSg}, v{t} bitop3:0xea")
        r = R0 + 4 * i
        a(f"buffer_load_dwordx3 v[{r}:{r+2}], v{t}, s[12:15], 0 offen sc1")
    def unhold():
        a("s_lshl_b32 s40, 1, s3")
        a(f"v_mov_b32 v{vt}, {XW + X_H}")
        a(f"v_mov_b32 v{vt2}, s40")
        a("s_mov_b64 exec, 1")
        a(f"ds_or_b32 v{vt}, v{vt2}")
        a("s_mov_b64 exec, -1")
    def next_round(regular):
        a("s_call_b64 s[42:43], P2_next")
        if regular:
            ensure()
            if o.sw:
                a(f"s_sub_u32 s4, s49, {o.swd}")
                a(f"s_cmp_lt_u32 s4, {o.sw0}")
                a("s_cbranch_scc1 P2_nowarm")
                a(f"s_cmp_ge_u32 s4, {-(-(E - o.swo) // (4 * (L0 - 1)))}")
                a("s_cbranch_scc1 P2_nowarm")
                warm("s4", "s3")
                a("P2_nowarm:")
        a("s_call_b64 s[42:43], P2_wait")
    def wait_buffer(tag):
        a("s_add_u32 s50, s48, 1")
        a("s_lshr_b32 s50, s50, 1")
        a("s_mul_i32 s50, s50, 12")
        a("s_and_b32 s51, s48, 1")
        a("s_lshl_b32 s51, s51, 2")
        a(f"s_add_u32 s51, s51, {XW + X_CW}")
        a(f"v_mov_b32 v{vt2}, s51")
        a(f"P2_pw{tag}:")
        a(f"ds_read_b32 v{vt}, v{vt2}")
        a("s_waitcnt lgkmcnt(0)")
        a(f"v_readfirstlane_b32 s51, v{vt}")
        a("s_cmp_ge_u32 s51, s50")
        a(f"s_cbranch_scc1 P2_pg{tag}")
        a(f"s_sleep {o.psleep}")
        guard(a)
        a(f"s_branch P2_pw{tag}")
        a(f"P2_pg{tag}:")
    a("s_setprio 3")
    a("s_waitcnt vmcnt(0)")
    publish_a(a, vt, XW, "ap")
    a(f"s_lshl_b32 s47, s3, 6")
    a(f"v_add_u32 v{vTile}, s47, v12")
    a(f"s_lshl_b32 s50, s3, 2")
    a(f"s_add_u32 s50, s50, {XW + X_PW}")
    a(f"v_mov_b32 v{vPW}, s50")
    a(f"v_lshlrev_b32 v15, 8, v{vTile}")
    a(f"v_add_u32 v15, s46, v15")
    a(f"v_mul_u32_u24 v15, {4*S}, v15")
    a(f"v_mov_b32 v{D0+S}, 0")
    a(f"v_mul_u32_u24 v{vTile}, {TILE_BYTES}, v{vTile}")
    a(f"v_and_b32 v{vt}, 15, v12")
    a(f"v_mul_u32_u24 v{vU12}, 12, v{vt}")
    a(f"v_lshl_add_u32 v{v2U1}, v{vt}, 1, 1")
    a(f"v_add_u32 v{v2U2}, 1, v{v2U1}")
    a(f"v_mov_b32 v{vInc}, {(1 << 20) + 4}")
    a(f"v_mov_b32 v{v3FC}, 0x3fc")
    a(f"v_mov_b32 v{vSg}, 0x80000000")
    for r in (vCb, vZ, vra, vrb, vS, vS + 1): a(f"v_mov_b32 v{r}, 0")
    a("s_mov_b32 s49, 0")
    a(f"s_mov_b32 s{ROW0}, 0x00010001")
    a(f"s_mov_b32 s{ROW0+1}, 0x00010001")
    a(f"s_mov_b32 s45, {((o.nd * WREG // 12 * 2) << 16) | 0xffff}")
    nsave = P.n
    P.stamp()
    poll(LV_E, "e")
    k = 0
    while k < S:
        w = 4 if S - k >= 4 else (2 if S - k >= 2 else 1)
        sfx = {4: "x4", 2: "x2", 1: ""}[w]
        dst = f"v[{D0+k}:{D0+k+w-1}]" if w > 1 else f"v{D0+k}"
        a(f"buffer_load_dword{sfx} {dst}, v15, s[16:19], 0 offen offset:{4*k} sc1")
        k += w
    poll(LV_D, "d")
    P.stamp()
    prep()
    for i in range(16): issue(i)
    P.stamp()
    lds_wait(a, vt, XW + X_I, 12, "i", 1)
    P.stamp()
    def ppass(tg, inl):
        a(f"v_mov_b32 v{n2c}, v{n2n}")
        a(f"v_mov_b32 v{a0c}, v{a0n}")
        a(f"s_mov_b64 s[{ODDC}:{ODDC+1}], s[{ODDN}:{ODDN+1}]")
        a(f"s_mov_b64 s[{MORC}:{MORC+1}], s[{MORN}:{MORN+1}]")
        if inl: prep()
        for i in range(16):
            r = R0 + 4 * i
            a(f"v_sub_co_u32_dpp v{vt}, vcc, v{n2c}, v{v2U1} row_newbcast:{i} row_mask:0xf bank_mask:0xf")
            a(f"s_and_b64 s[92:93], s[{ODDC}:{ODDC+1}], s[{ROW0}:{ROW0+1}]")
            a(f"s_nor_b64 s[{M0_}:{M0_+1}], vcc, s[92:93]")
            a(f"v_sub_co_u32_dpp v{vt2}, vcc, v{n2c}, v{v2U2} row_newbcast:{i} row_mask:0xf bank_mask:0xf")
            a(f"s_lshr_b64 s[{ODDC}:{ODDC+1}], s[{ODDC}:{ODDC+1}], 1")
            a(f"s_not_b64 s[{M1_}:{M1_+1}], vcc")
            a(f"s_waitcnt vmcnt({15 if inl else 15 - i})")
            a(f"P2_retry{tg}{i}:")
            a(f"v_lshrrev_b32 v{vca}, 18, v{r}")
            a(f"v_lshrrev_b32 v{vcb}, 18, v{r+1}")
            a(f"v_bitop3_b32 v{vca}, v{vca}, v{v3FC}, v{vCb} bitop3:0xea")
            a(f"v_bitop3_b32 v{vcb}, v{vcb}, v{v3FC}, v{vCb} bitop3:0xea")
            a(f"s_mov_b64 exec, s[{M0_}:{M0_+1}]")
            a(f"ds_add_rtn_u32 v{vra}, v{vca}, v{vInc}")
            a(f"s_mov_b64 exec, s[{M1_}:{M1_+1}]")
            a(f"ds_add_rtn_u32 v{vrb}, v{vcb}, v{vInc}")
            a(f"s_mov_b64 exec, -1")
            a(f"v_and_b32 v{vwa}, 0xf00fffff, v{r}")
            a(f"v_and_b32 v{vwb}, 0xf00fffff, v{r+1}")
            a("s_waitcnt lgkmcnt(0)")
            a(f"v_and_b32 v{vra}, 0xfc03ffff, v{vra}")
            a(f"v_and_b32 v{vrb}, 0xfc03ffff, v{vrb}")
            a(f"v_lshrrev_b32 v{vha}, 1, v{vra}")
            a(f"v_lshrrev_b32 v{vhb}, 1, v{vrb}")
            a(f"v_or_b32 v{vt}, v{vra}, v{vrb}")
            a(f"v_cmp_lt_u32 vcc, v{vInc}, v{vt}")
            a(f"s_mov_b64 exec, s[{M0_}:{M0_+1}]")
            a(f"ds_write_b32 v{vra}, v{vwa} offset:{WB}")
            a(f"ds_write_b16 v{vha}, v{r+2} offset:{CB}")
            a(f"s_mov_b64 exec, s[{M1_}:{M1_+1}]")
            a(f"ds_write_b32 v{vrb}, v{vwb} offset:{WB}")
            a(f"ds_write_b16_d16_hi v{vhb}, v{r+2} offset:{CB}")
            a(f"s_mov_b64 exec, -1")
            a(f"s_cbranch_vccnz P2_stall{tg}{i}")
            a(f"s_and_b64 s[92:93], s[{MORC}:{MORC+1}], s[{ROW0}:{ROW0+1}]")
            a(f"s_cbranch_scc1 P2_more{tg}{i}")
            if not inl:
                a("s_cmp_lg_u32 s98, 0")
                a("s_cbranch_scc1 P2_sweep")
                a(f"P2_cont{tg}{i}:")
            a(f"s_lshr_b64 s[{MORC}:{MORC+1}], s[{MORC}:{MORC+1}], 1")
            if inl: issue(i)
    a("s_mov_b32 s98, 0")
    a("s_mov_b32 s47, 0")
    ppass("f", False)
    a("P2_sweep:")
    a("s_cmp_lg_u32 s47, 0")
    a("s_cbranch_scc1 P2_sweep1")
    P.stamp()
    a("s_mov_b32 s49, 1")
    a("s_cmp_ge_u32 s48, s49")
    a("s_cbranch_scc1 P2_ff1")
    a("s_call_b64 s[42:43], P2_next")
    a("P2_ff1:")
    prep()
    for i in range(16): issue(i)
    a("s_call_b64 s[42:43], P2_wait")
    a("P2_pslice:")
    ppass("", True)
    a("s_add_u32 s49, s49, 1")
    a(f"s_cmp_ge_u32 s49, {S}")
    a("s_cbranch_scc1 P2_pdone")
    a("s_cmp_ge_u32 s48, s49")
    a("s_cbranch_scc1 P2_pslice")
    next_round(True)
    a("s_branch P2_pslice")
    a("P2_next:")
    a("s_add_u32 s48, s48, 1")
    if o.maxr:
        a(f"s_cmp_gt_u32 s48, {o.maxr}")
        a("s_cbranch_scc1 P2_giveup")
    a(f"v_mov_b32 v{vt}, s48")
    a("s_waitcnt lgkmcnt(0)")
    a(f"ds_write_b32 v{vPW}, v{vt}")
    a(f"v_xor_b32 v{vCb}, 1024, v{vCb}")
    def pubb2():
        a("s_cmp_lg_u32 s48, 2")
        a("s_cbranch_scc1 P2_next1")
        a("s_call_b64 s[96:97], P2_pubb")
        a("P2_next1:")
    if not o.nl: pubb2()
    a("s_setpc_b64 s[42:43]")
    a("P2_wait:")
    twait(lambda: wait_buffer("n"))
    if o.nl: pubb2()
    a("s_setpc_b64 s[42:43]")
    a("P2_pubb:")
    lds_ticket(a, vS, XW + X_C)
    a("s_cmp_lg_u32 s40, 0")
    a("s_cbranch_scc1 P2_norelb")
    lds_wait(a, vS, XW + X_B, 12, "b", 1)
    arrive(a, vS, LV_B)
    release(a, vS, LV_B, "b")
    a("s_setpc_b64 s[96:97]")
    a("P2_ensure:")
    poll(LV_A, "a")
    a(f"s_mov_b32 s45, {(CHA << 16) | 0xffff}")
    a(f"v_cmp_lt_u32 vcc, s45, v{D0}")
    a("s_cbranch_vccz P2_ens1")
    unhold()
    a("s_call_b64 s[96:97], P2_pubb")
    poll(LV_B, "b")
    a("s_mov_b32 s45, -1")
    a("P2_ens1:")
    a("s_setpc_b64 s[42:43]")
    for tg, i in [(t_, i_) for t_ in ("", "f") for i_ in range(16)]:
        r = R0 + 4 * i
        a(f"P2_stall{tg}{i}:")
        a(f"v_cmp_lt_u32 s[{M0_}:{M0_+1}], v{vInc}, v{vra}")
        a(f"v_cmp_lt_u32 s[{M1_}:{M1_+1}], v{vInc}, v{vrb}")
        next_round(False)
        a(f"s_branch P2_retry{tg}{i}")
        a(f"P2_more{tg}{i}:")
        a(f"s_lshl_b64 exec, s[{ROW0}:{ROW0+1}], {i}")
        a(f"v_max_u32 v{n2c}, 32, v{n2c}")
        a(f"v_subrev_u32 v{n2c}, 32, v{n2c}")
        a(f"v_add_u32 v{a0c}, 192, v{a0c}")
        a(f"s_mov_b64 exec, -1")
        a(f"v_sub_u32_dpp v{vt2}, v{n2c}, v{v2U1} row_newbcast:{i} row_mask:0xf bank_mask:0xf")
        a(f"v_add_u32_dpp v{vt}, v{a0c}, v{vU12} row_newbcast:{i} row_mask:0xf bank_mask:0xf")
        a(f"v_bitop3_b32 v{vt}, v{vt2}, v{vSg}, v{vt} bitop3:0xea")
        a(f"buffer_load_dwordx3 v[{r}:{r+2}], v{vt}, s[12:15], 0 offen sc1")
        if tg:
            a(f"s_bitset1_b32 s47, {i}")
            a("s_cmp_eq_u32 s98, 0")
            a(f"s_cbranch_scc1 P2_cont{tg}{i}")
            a(f"P2_again{i}:")
            a(f"s_bitset0_b32 s47, {i}")
        a(f"v_cmp_lt_u32 vcc, 32, v{n2c}")
        a(f"s_lshr_b64 s[92:93], vcc, {i}")
        a(f"s_and_b64 s[92:93], s[92:93], s[{ROW0}:{ROW0+1}]")
        a(f"s_andn2_b64 s[{MORC}:{MORC+1}], s[{MORC}:{MORC+1}], s[{ROW0}:{ROW0+1}]")
        a(f"s_or_b64 s[{MORC}:{MORC+1}], s[{MORC}:{MORC+1}], s[92:93]")
        a(f"v_sub_co_u32_dpp v{vt2}, vcc, v{n2c}, v{v2U2} row_newbcast:{i} row_mask:0xf bank_mask:0xf")
        a(f"s_not_b64 s[{M1_}:{M1_+1}], vcc")
        a(f"v_sub_co_u32_dpp v{vt2}, vcc, v{n2c}, v{v2U1} row_newbcast:{i} row_mask:0xf bank_mask:0xf")
        a(f"s_not_b64 s[{M0_}:{M0_+1}], vcc")
        a("s_waitcnt vmcnt(0)")
        a(f"s_branch P2_retry{tg}{i}")
    a("P2_sweep1:")
    a("s_mov_b32 s98, 1")
    for i in range(15):
        a(f"s_bitcmp1_b32 s47, {i}")
        a(f"s_cbranch_scc1 P2_again{i}")
    a("s_branch P2_again15")
    a("P2_giveup:")
    unhold()
    a("P2_pdone:")
    a("s_add_u32 s48, s48, 0x40000001")
    a(f"v_mov_b32 v{vt}, s48")
    a("s_waitcnt lgkmcnt(0)")
    a(f"ds_write_b32 v{vPW}, v{vt}")
    a(f"s_setprio {o.eprio}")
    if o.amp:
        a("s_not_b32 s40, s72")
        a(f"v_mov_b32 v30, s40")
        a(f"v_mov_b32 v31, 0")
        a("s_cmp_lg_u32 s3, 0")
        a("s_cbranch_scc1 P1_noamp")
        a("s_mov_b64 exec, 1")
        a(f"buffer_atomic_umax v30, v31, s[24:27], 0 offen offset:112 sc1")
        a("s_mov_b64 exec, -1")
        a("P1_noamp:")
    if o.sw and o.swd:
        warm(S - 1, "s3")
        a("s_waitcnt lgkmcnt(0)")
    a("s_load_dwordx2 s[6:7], s[0:1], 24")
    a("s_load_dwordx2 s[34:35], s[0:1], 40")
    a("s_load_dwordx8 s[36:43], s[0:1], 56")
    DS = 30; CEN = 56; RB0 = 64; t = 60; X = 1
    a("v_and_b32 v13, 15, v12")
    a("v_lshrrev_b32 v14, 4, v12")
    a(f"v_lshlrev_b32 v{X}, 7, v14")
    a(f"v_lshl_add_u32 v{X}, v13, 1, v{X}")
    a(f"v_and_b32 v{X+1}, 0xff, v{X}")
    a(f"v_and_b32 v{X+2}, 1, v14")
    a(f"v_lshlrev_b32 v{X+2}, 3, v{X+2}")
    a(f"v_lshrrev_b32 v{X+3}, 1, v14")
    a(f"v_lshlrev_b32 v{X+3}, 10, v{X+3}")
    a(f"v_lshl_add_u32 v{X+3}, v13, 1, v{X+3}")
    a("s_and_b32 s47, s46, 31")
    a("s_lshl_b32 s47, s47, 5")
    a(f"v_add_u32 v{X+3}, s47, v{X+3}")
    a(f"v_cmp_gt_u32 s[88:89], 32, v12")
    a("s_waitcnt vmcnt(0) lgkmcnt(0)")
    a("s_lshr_b32 s47, s46, 5")
    a(f"s_mul_i32 s47, s47, {CL * 2}")
    srd(a, 20, 6, CL * 2, "s47")
    srd(a, 28, 42, 512)
    srd(a, 12, 38, 256)
    srd(a, 16, 36, 256)
    srd(a, 52, 34, 16)
    srd(a, 84, 40, 512)
    for c in range(4): a(f"buffer_load_ushort v{CEN+c}, v{X+2}, s[52:55], 0 offen offset:{2*c}")
    a("s_mul_i32 s47, s3, 25")
    for k in range(25):
        a("s_mul_i32 s50, s47, 57")
        a("s_lshr_b32 s50, s50, 9")
        a("s_min_u32 s50, s50, 4")
        a("s_lshl_b32 s51, s47, 1")
        a("s_sub_u32 s50, s51, s50")
        a("s_lshl_b32 s50, s50, 10")
        a(f"v_add_u32 v{DS+k}, s50, v{X+3}")
        a("s_add_u32 s47, s47, 1")
        a(f"buffer_load_ushort v{DS+k}, v{DS+k}, s[20:23], 0 offen")
    assert all((n * 57) >> 9 == n // 9 for n in range(45))
    Y = 116
    for c in range(4): a(f"buffer_load_ushort v{Y+c}, v{X}, s[28:31], 0 offen offset:{32*c}")
    for c in range(4): a(f"buffer_load_ushort v{Y+4+c}, v{X+1}, s[12:15], 0 offen offset:{32*c}")
    for c in range(4): a(f"buffer_load_ushort v{Y+8+c}, v{X+1}, s[16:19], 0 offen offset:{32*c}")
    for c in range(4): a(f"buffer_load_ushort v{16+c}, v{X}, s[84:87], 0 offen offset:{32*c}")
    a("s_waitcnt vmcnt(40)")
    for c in range(4): a(f"v_lshlrev_b32 v{CEN+c}, 16, v{CEN+c}")
    def rnd():
        if o.nornd: return
        for u in range(2):
            a(f"v_cvt_pk_bf16_f32 v{t+2*u+1}, v{t+2*u}, v{t+2*u+1}")
        for u in range(2):
            a(f"v_lshlrev_b32 v{t+2*u}, 16, v{t+2*u+1}")
            a(f"v_and_b32 v{t+2*u+1}, 0xffff0000, v{t+2*u+1}")
    for k in range(25):
        d = DS + k
        a(f"s_waitcnt vmcnt({40 - k})")
        a(f"v_lshlrev_b32 v{d}, 16, v{d}")
        for c in range(4): a(f"v_sub_f32 v{t+c}, v{d}, v{CEN+c}")
        rnd()
        for c in range(4): a(f"v_mul_f32 v{t+c}, v{t+c}, v{t+c}")
        rnd()
        for c in range(4): a(f"v_mul_f32 v{t+c}, 0xc1200000, v{t+c}")
        rnd()
        for c in range(4): a(f"v_mul_f32 v{t+c}, 0x3fb8aa3b, v{t+c}")
        for c in range(4): a(f"v_exp_f32 v{t+c}, v{t+c}")
        for u in range(2): a(f"v_cvt_pk_bf16_f32 v{RB0+2*k+u}, v{t+2*u}, v{t+2*u+1}")
    a("s_waitcnt vmcnt(0)")
    Z = 30
    for u in range(2):
        a(f"v_lshl_or_b32 v{Z+8+u}, v{Y+2*u+1}, 16, v{Y+2*u}")
        a(f"v_lshl_or_b32 v{Z+10+u}, v{17+2*u}, 16, v{16+2*u}")
        a(f"v_lshl_or_b32 v{Y+4+u}, v{Y+5+2*u}, 16, v{Y+4+2*u}")
        a(f"v_lshl_or_b32 v{Y+8+u}, v{Y+9+2*u}, 16, v{Y+8+2*u}")
    for u in range(2):
        a(f"v_cndmask_b32 v{Z+u}, 0, v{Y+4+u}, s[88:89]")
        a(f"v_cndmask_b32 v{Z+2+u}, v{Y+4+u}, 0, s[88:89]")
        a(f"v_cndmask_b32 v{Z+4+u}, 0, v{Y+8+u}, s[88:89]")
        a(f"v_cndmask_b32 v{Z+6+u}, v{Y+8+u}, 0, s[88:89]")
    a(f"v_lshlrev_b32 v{X}, 3, v12")
    a(f"v_add_u32 v{X+1}, {WT}, v{X}")
    a(f"v_and_b32 v{X+2}, 3, v12")
    a(f"v_lshlrev_b32 v{X+2}, 2, v{X+2}")
    a(f"v_add_u32 v{X+2}, {XW + X_PW}, v{X+2}")
    a("P2_dw:")
    a(f"ds_read_b32 v{vt}, v{X+2}")
    a("s_waitcnt lgkmcnt(0)")
    a(f"v_cmp_gt_u32 vcc, 2.0, v{vt}")
    a("s_cbranch_vccz P2_dg")
    a(f"s_sleep {o.psleep}")
    guard(a)
    a("s_branch P2_dw")
    a("P2_dg:")
    a(f"v_readlane_b32 s48, v{vt}, 0")
    for k in range(1, 4):
        a(f"v_readlane_b32 s50, v{vt}, {k}")
        a("s_max_u32 s48, s48, s50")
    a("s_and_b32 s48, s48, 0x3fffffff")
    wait_buffer("e")
    a("s_bitcmp1_b32 s48, 0")
    a(f"s_cselect_b32 s50, {RB_AT[1] - RB_AT[0]}, 0")
    a(f"s_add_u32 s50, s50, {RB_AT[0]}")
    a(f"s_mul_i32 s51, s3, {25*512}")
    a("s_add_u32 s50, s50, s51")
    a(f"v_add_u32 v{X}, s50, v{X}")
    for k in range(6): a(f"ds_write_b64 v{X+1}, v[{Z+2*k}:{Z+2*k+1}] offset:{512*k}")
    for k in range(25): a(f"ds_write_b64 v{X}, v[{RB0+2*k}:{RB0+2*k+1}] offset:{512*k}")
    lds_count(a, vt, XW + X_R)
    a("s_waitcnt lgkmcnt(0)")
    if o.prof in (1, 3):
        P.stamp(); P.dump(32, 0x80000, 8, 3); P.n = nsave
    a("s_endpgm")
    a("P2_consumer:")
    ACC = 60; G0 = 52; B0 = 44; A2 = 28; vTw = 32; vTr = 33; vM = 24; vC = 20; vX = 16
    bA = 1; bE = 2; bC = 3; bR = 4; vH = 5; vL = 6; vCA = 7; vCI = 8; vA = 9; vE = 10
    a("s_sub_u32 s47, s3, 4")
    a("s_min_u32 s44, s47, 4")
    a("s_lshl_b32 s49, s47, 4")
    a("s_add_u32 s49, s49, s44")
    a("s_cmp_lt_u32 s47, 4")
    a("s_cselect_b32 s50, 17, 16")
    a(f"s_cselect_b32 s84, 0, {MARK & 0xffffff}")
    a(f"s_cselect_b32 s85, {17*WSTR//16-192}, {16*WSTR//16-192}")
    a("s_bfm_b64 s[92:93], s85, 0")
    a(f"v_subrev_u32 v60, 256, v0")
    a(f"v_lshlrev_b32 v60, 4, v60")
    for k in range(1, 4): a(f"v_add_u32 v{60+k}, {4*12288*k}, v60")
    lds_wait(a, vX, XW + X_S, 16, "s", o.ssleep)
    P.stamp()
    NL = o.nl; vSt = 34
    for j in range(13):
        k = 12 - j
        a(f"ds_read_b128 v[{68+4*j}:{71+4*j}], v{60+k//4} offset:{STG+12288*(k%4)}")
    a(f"v_mov_b32 v{vSt}, v63")
    q = 36
    for i in range(4): a(f"v_mov_b32 v{q+i}, {MARK}")
    a(f"v_add_u32 v61, {STG + 12288 * K0}, v60")
    a(f"v_add_u32 v62, {STG + 12288 * K1}, v60")
    for k in range(4): a(f"ds_write_b128 v61, v[{q}:{q+3}] offset:{12288 * k}")
    a("s_cmp_ge_u32 s47, 4")
    a("s_cbranch_scc1 P2_notab")
    a(f"v_and_b32 v52, 15, v12")
    a(f"v_lshrrev_b32 v53, 4, v12")
    a(f"v_lshrrev_b32 v56, 2, v52")
    a(f"v_cmp_eq_u32 vcc, v56, v53")
    a(f"v_and_b32 v56, 3, v12")
    a(f"v_lshlrev_b32 v56, 4, v56")
    a(f"v_mov_b32 v54, 0xffff")
    a(f"v_mov_b32 v55, 0")
    a(f"v_cndmask_b32 v54, 0, v54, vcc")
    a(f"v_lshlrev_b64 v[54:55], v56, v[54:55]")
    a(f"v_and_b32 v56, 1, v53")
    a(f"v_lshlrev_b32 v56, 3, v56")
    a(f"v_lshl_add_u32 v52, v52, 4, v56")
    a(f"v_lshrrev_b32 v53, 1, v53")
    a(f"v_lshl_add_u32 v52, v53, 8, v52")
    a(f"v_and_b32 v56, 255, v0")
    a(f"v_lshlrev_b32 v53, 2, v56")
    a(f"v_mul_u32_u24 v56, {WSTR}, v56")
    a(f"v_add_u32 v56, {(64 - CAP) << 20}, v56")
    a(f"v_add_u32 v57, {X1}, v56")
    a(f"ds_write_b64 v52, v[54:55] offset:{LUT}")
    a(f"ds_write_b32 v53, v56")
    a(f"ds_write_b32 v53, v57 offset:1024")
    a("P2_notab:")
    lds_count(a, vX, XW + X_I)
    a("s_waitcnt vmcnt(0)")
    publish_a(a, vX, XW, "ac")
    def store_b(j):
        a(f"buffer_store_dwordx4 v[{68+4*j}:{71+4*j}], v{vSt}, s[20:23], 0 offen {o.p1_st}")
        a(f"v_subrev_u32 v{vSt}, 12288, v{vSt}")
    if o.spr: a(f"s_setprio {o.spr}")
    for j in range(13 - NL): store_b(j)
    if o.spr: a("s_setprio 0")
    for k in range(4): a(f"ds_write_b128 v62, v[{q}:{q+3}] offset:{12288 * k}")
    lds_count(a, vX, XW + X_CW + 4)
    a("v_and_b32 v13, 15, v12")
    a("v_lshrrev_b32 v14, 4, v12")
    a(f"v_and_b32 v0, 3, v12")
    a(f"v_lshlrev_b32 v0, 2, v0")
    a(f"v_add_u32 v0, {XW + X_CW}, v0")
    a(f"s_mul_i32 s51, s49, {WSTR}")
    a(f"s_lshr_b32 s86, s51, 1")
    a(f"s_add_u32 s86, s86, {CB}")
    a(f"v_lshl_add_u32 v{bC}, v14, 4, s86")
    a(f"v_mul_u32_u24 v{vCI}, {WSTR}, v12")
    a(f"s_add_u32 s86, s51, {(64 - CAP) << 20}")
    a(f"v_add_u32 v{vCI}, s86, v{vCI}")
    a(f"s_add_u32 s51, s51, {WB}")
    a(f"v_lshl_add_u32 v{bR}, v12, 4, s51")
    a(f"v_and_b32 v{bA}, 24, v12")
    a(f"v_bfe_u32 v{vA}, v12, 1, 2")
    a(f"v_or_b32 v{bA}, v{bA}, v{vA}")
    a(f"v_lshrrev_b32 v{vA}, 5, v12")
    a(f"v_lshl_or_b32 v{bA}, v{vA}, 2, v{bA}")
    a(f"v_lshl_add_u32 v{bA}, v{bA}, 2, s51")
    a(f"v_and_b32 v{vH}, 1, v12")
    a(f"v_lshlrev_b32 v{vH}, 4, v{vH}")
    a("s_lshl_b32 s87, s47, 10")
    a(f"s_add_u32 s87, s87, {SC}")
    a(f"v_lshl_add_u32 v{vTw}, v12, 4, s87")
    a(f"v_lshl_add_u32 v{vTr}, v12, 3, s87")
    a(f"v_and_b32 v{vA}, 12, v12")
    a(f"v_lshl_add_u32 v{bE}, v14, 5, v{vA}")
    a(f"v_add_u32 v{bE}, s51, v{bE}")
    a(f"v_and_b32 v{vL}, 1, v12")
    a(f"v_lshlrev_b32 v{vL}, 3, v{vL}")
    a(f"v_and_b32 v{vA}, 2, v12")
    a(f"v_lshl_add_u32 v{vL}, v{vA}, 7, v{vL}")
    a(f"v_add_lshl_u32 v{vCA}, v12, s49, 2")
    a(f"v_cmp_gt_u32 vcc, s50, v12")
    a(f"s_mov_b32 s85, {(64 - CAP + 33) << 20}")
    a("s_mov_b32 s94, 0xff000000")
    a("s_mov_b32 s95, 0xff000000")
    a(f"v_cndmask_b32 v{vCA}, 2.0, v{vCA}, vcc")
    a(f"s_lshl_b32 s51, s49, 5")
    a("s_and_b32 s40, s46, 31")
    a(f"s_add_u32 s51, s51, s40")
    a(f"s_lshl_b32 s51, s51, 4")
    a(f"v_add_lshl_u32 v15, v13, s51, 5")
    a(f"v_lshl_add_u32 v15, v14, 3, v15")
    a(f"v_lshlrev_b32 v13, 3, v12")
    for i in range(16): a(f"v_mov_b32 v{B0+i}, 0")
    for i in range(68):
        if not 15 - NL <= i // 4 <= 14: a(f"v_mov_b32 v{ACC+i}, 0")
    a("s_lshr_b32 s40, s46, 5")
    a(f"s_mul_i32 s40, s40, {CL * 32}")
    srd(a, 28, 6, CL * 32, "s40")
    srd(a, 12, 8, CL * 32, "s40")
    def lazy(t):
        j = 13 - NL + t
        store_b(j)
        for u in range(4): a(f"v_mov_b32 v{68+4*j+u}, 0")
    lstep = {}
    for t in range(NL):
        i = o.l0 + t * o.lstep // 2
        assert i <= 14 - NL + t
        lstep.setdefault(i, []).append(t)
    if NL:
        a("s_mov_b32 s42, 1")
        P.stamp()
        a(f"v_mov_b32 v{vX+2}, {XW + X_H}")
        a("P2_pre:")
        a(f"ds_read_b32 v{vX}, v0 offset:{X_PW - X_CW}")
        a(f"ds_read_b32 v{vX+1}, v{vX+2}")
        a("s_waitcnt lgkmcnt(0)")
        a(f"v_cmp_eq_u32 vcc, 0, v{vX}")
        a("s_cbranch_vccz P2_round0")
        a(f"v_cmp_eq_u32 vcc, 0, v{vX+1}")
        a("s_cbranch_vccz P2_flush")
        a(f"s_sleep {o.csleep}")
        guard(a)
        a("s_branch P2_pre")
        a("P2_flush:")
        for t in range(NL): lazy(t)
        a("s_mov_b32 s42, 0")
    a("s_waitcnt vmcnt(0)")
    lds_count(a, vX, XW + X_B)
    if not NL: P.stamp()
    def reads1(par, i, second):
        oa = par * X1 + i * WSTR + (128 if second else 0)
        a(f"ds_read_b32 v{vA}, v{bA} offset:{oa}")
        a(f"ds_read_u8 v{vE}, v{bE} offset:{oa+3}")
        a(f"ds_read_u8 v{vE+1}, v{bE} offset:{oa+19}")
    def reads2(par, i, second):
        oc = (par * X1 + i * WSTR + (128 if second else 0)) // 2
        a(f"v_add_u32 v{vE}, v{vE}, v{vL}")
        a(f"v_add_u32 v{vE+1}, v{vE+1}, v{vL}")
        a(f"ds_read_b64_tr_b16 v[{vM}:{vM+1}], v{vE} offset:{LUT}")
        a(f"ds_read_b64_tr_b16 v[{vM+2}:{vM+3}], v{vE+1} offset:{LUT}")
        a(f"ds_read_b128 v[{vC}:{vC+3}], v{bC} offset:{oc}")
    def addr():
        a(f"v_mad_u32_u24 v{vA}, v{vA}, 32, v{vH}")
    def transpose(g):
        a(f"ds_write_b128 v{vTw}, v[{g}:{g+3}]")
        a(f"ds_read_b64_tr_b16 v[{A2}:{A2+1}], v{vTr}")
        a(f"ds_read_b64_tr_b16 v[{A2+2}:{A2+3}], v{vTr} offset:512")
    def mfma2(i, b):
        c = ACC + 4 * i
        a(f"v_mfma_f32_16x16x32_bf16 v[{c}:{c+3}], v[{A2}:{A2+3}], v[{b}:{b+3}], v[{c}:{c+3}]")
    NS = 17
    for par in range(2):
        a(f"P2_round{par}:")
        def spin():
            a(f"P2_cw{par}:")
            a(f"ds_read_b32 v{vX+1}, v0 offset:{X_PW - X_CW}")
            reads1(par, 0, False)
            a(f"ds_read_b32 v{vX}, v{vCA} offset:{1024*par}")
            a("s_waitcnt lgkmcnt(4)")
            a(f"v_cmp_ge_u32 vcc, s48, v{vX+1}")
            a(f"v_and_b32 v{vX+1}, 0x3fffffff, v{vX+1}")
            a(f"s_cbranch_vccz P2_cg{par}")
            a(f"s_sleep {o.csleep}")
            guard(a)
            a(f"s_branch P2_cw{par}")
            a(f"P2_cg{par}:")
        twait(spin)
        if o.prof == 1:
            a("s_memrealtime s[58:59]")
            a("s_waitcnt lgkmcnt(0)")
            a("s_mov_b32 m0, s48")
            a("v_writelane_b32 v14, s58, m0")
            a("s_add_u32 m0, s48, 16")
            a("v_writelane_b32 v14, s56, m0")
        a(f"v_cmp_lt_u32 vcc, s48, v{vX+1}")
        a(f"s_cbranch_vccz P2_drain{1-par}")
        if o.prof in (1, 3) and par == 0:
            a("s_cmp_lg_u32 s48, 0"); a("s_cbranch_scc1 P2_nostamp"); P.stamp(); a("P2_nostamp:")
        if par: a(f"v_add_u32 v{vX+2}, {X1}, v{vCI}")
        a(f"ds_write_b32 v{vCA}, v{vX+2 if par else vCI} offset:{1024*par}")
        a("s_add_u32 s48, s48, 1")
        for i in range(NS):
            p = (par * NS + i) % 2
            g = G0 + 4 * p; b = B0 + 4 * p
            a("s_waitcnt lgkmcnt(0)")
            if i == NS - 1: a(f"v_or_b32 v{vA}, s84, v{vA}")
            addr()
            a("s_waitcnt vmcnt(1)")
            sk = o.skip and i == 1
            if sk:
                a("s_cmp_lg_u32 s84, 0")
                a(f"s_cbranch_scc1 P2_nt{par}")
            transpose(g)
            if sk: a(f"P2_nt{par}:")
            a(f"buffer_load_dwordx4 v[{g}:{g+3}], v{vA}, s[8:11], 0 offen {o.gfl}")
            if o.skip and i == NS - 1:
                a("s_cmp_lg_u32 s84, 0")
                a(f"s_cbranch_scc1 P2_last{par}")
            reads2(par, i, False)
            if i + 1 < NS: reads1(par, i + 1, False)
            if i == 0: a(f"v_cmp_le_u32 s[90:91], s85, v{vX}")
            if sk: a(f"s_cbranch_scc1 P2_nm{par}")
            a(f"s_waitcnt lgkmcnt({6 if i + 1 < NS else 3})")
            mfma2((i - 2) % NS, b)
            if sk: a(f"P2_nm{par}:")
            a(f"s_bitcmp1_b32 s90, {i}")
            a(f"s_waitcnt lgkmcnt({3 if i + 1 < NS else 0})")
            for u in range(4): a(f"v_and_b32 v{b+u}, v{vM+u}, v{vC+u}")
            a(f"s_cbranch_scc1 P2_slow{par}_{i}")
            a(f"P2_back{par}_{i}:")
            if par == 0 and i in lstep:
                a("s_cmp_lg_u32 s42, 0")
                a(f"s_cbranch_scc1 P2_lazy{i}")
                a(f"P2_lazyb{i}:")
        if par == 0 and NL:
            a("s_cmp_eq_u32 s42, 0")
            a("s_cbranch_scc1 P2_nolz")
            a("s_mov_b32 s42, 0")
            a("s_waitcnt vmcnt(0)")
            lds_count(a, vX, XW + X_B)
            a("P2_nolz:")
        for u in range(4): a(f"v_mov_b32 v{vX+u}, {MARK}")
        for k in range(4):
            if k == 3: a("s_mov_b64 exec, s[92:93]")
            a(f"ds_write_b128 v{bR}, v[{vX}:{vX+3}] offset:{par*X1+1024*k}")
        a("s_mov_b64 exec, 1")
        a(f"v_mov_b32 v{vA}, 1")
        a("s_waitcnt lgkmcnt(0)")
        a(f"ds_add_rtn_u32 v{vA}, v0, v{vA} offset:{4*par}")
        a("s_lshr_b32 s40, s48, 1")
        a("s_mul_i32 s40, s40, 12")
        a("s_waitcnt lgkmcnt(0)")
        a(f"v_readfirstlane_b32 s41, v{vA}")
        a("s_mov_b64 exec, -1")
        a("s_sub_u32 s41, s41, s40")
        a("s_setprio 0")
        a("s_cmp_lt_u32 s41, 4")
        a(f"s_cbranch_scc1 P2_round{1-par}")
        a("s_setprio 1")
        a("s_cmp_lt_u32 s41, 8")
        a(f"s_cbranch_scc1 P2_round{1-par}")
        a("s_setprio 2")
        if par: a("s_branch P2_round0")
    for par in range(2 if o.skip else 0):
        a(f"P2_last{par}:")
        a("s_waitcnt lgkmcnt(0)")
        mfma2(NS - 3, B0 + 4 * ((par * NS + NS - 1) % 2))
        a(f"s_branch P2_back{par}_{NS-1}")
    for i in sorted(lstep):
        a(f"P2_lazy{i}:")
        for t in lstep[i]: lazy(t)
        a(f"s_branch P2_lazyb{i}")
    for par in range(2):
        for i in range(NS):
            a(f"P2_slow{par}_{i}:")
            reads1(par, i, True)
            a("s_waitcnt lgkmcnt(0)")
            a("s_mov_b64 exec, s[94:95]")
            a(f"v_mov_b32 v{vA}, {MARK}")
            a("s_mov_b64 exec, -1")
            addr()
            a(f"buffer_load_dwordx4 v[{vX}:{vX+3}], v{vA}, s[8:11], 0 offen")
            reads2(par, i, True)
            if i + 1 < NS: reads1(par, i + 1, False)
            a(f"s_waitcnt lgkmcnt({3 if i + 1 < NS else 0})")
            for u in range(4): a(f"v_and_b32 v{vM+u}, v{vM+u}, v{vC+u}")
            a("s_waitcnt vmcnt(0)")
            transpose(vX)
            a("s_waitcnt lgkmcnt(0)")
            mfma2(i, vM)
            a(f"s_branch P2_back{par}_{i}")
    vLo = 14; vSo = 15; vRb = 12; vWt = 13
    mreg = [0, 2, 4, 6, 8, 10, 16, 18, 20, 22, 24, 26, ACC, ACC + 2, ACC + 4, ACC + 6, ACC + 8]
    NPRE = 12
    def mload(i):
        a(f"buffer_load_dwordx2 v[{mreg[i]}:{mreg[i]+1}], v{vLo}, s[12:15], 0 offen")
        a(f"v_add_u32 v{vLo}, {512*32}, v{vLo}")
    for par in (1, 0):
        a(f"P2_drain{par}:")
        a("s_waitcnt lgkmcnt(0)")
        if par == 1: P.stamp()
        elif o.prof in (1, 3): P.n -= 1; P.stamp()
        if o.prof == 1:
            srd(a, 52, 32, 0x100000, WS_PROF)
            a("s_lshl_b32 s56, s2, 4")
            a("s_add_u32 s56, s56, s3")
            a("s_lshl_b32 s56, s56, 7")
            a("v_lshrrev_b32 v12, 1, v13")
            a("v_add_u32 v12, s56, v12")
            a("s_bfm_b64 exec, 32, 0")
            a("buffer_store_dword v14, v12, s[52:55], 0 offen")
            a("s_mov_b64 exec, -1")
        a(f"v_mov_b32 v{vLo}, v{vSo}")
        for i in range(NPRE): mload(i)
        a(f"s_mov_b32 s51, {RB_AT[1 - par]}")
        for i in (NS, NS + 1):
            p = (par * NS + i) % 2
            a(f"s_waitcnt vmcnt({NS + 1 - i + NPRE})")
            transpose(G0 + 4 * p)
            a("s_waitcnt lgkmcnt(0)")
            mfma2(i - 2, B0 + 4 * p)
        if par == 1: a("s_branch P2_epi")
    a("P2_epi:")
    WS_ = 32; WR_ = 36; WU = 40; WD = 42; RB = 44; SS = 48; GG = 52; UU = 56; ZZ = 28
    a("s_lshl_b32 s47, s47, 3")
    a("s_add_u32 s47, s47, s44")
    a("s_lshl_b32 s47, s47, 9")
    a("s_add_u32 s51, s51, s47")
    a(f"v_add_u32 v{vRb}, s51, v{vWt}")
    a(f"v_add_u32 v{vWt}, {WT}, v{vWt}")
    lds_wait(a, UU, XW + X_R, 4, "r", 1)
    for k in range(6): a(f"ds_read_b64 v[{WS_+2*k}:{WS_+2*k+1}], v{vWt} offset:{512*k}")
    def rbread(k): a(f"ds_read_b64 v[{RB+2*(k%2)}:{RB+2*(k%2)+1}], v{vRb} offset:{512*k}")
    rbread(0); rbread(1)
    vm = [("m", i) for i in range(NPRE)]
    def mf(d, w, i):
        h = 2 * (i % 2); r = RB + 2 * ((i // 2) % 2)
        a(f"v_mfma_f32_16x16x16_bf16 v[{d}:{d+3}], v[{w+h}:{w+h+1}], v[{r}:{r+1}], 0")
    def pack(i):
        c0 = ACC + 4 * i
        for u in range(2): a(f"v_cvt_pk_bf16_f32 v{c0+u}, v{c0+2*u}, v{c0+2*u+1}")
    def mz(i):
        c0 = ACC + 4 * i
        a(f"v_mfma_f32_16x16x16_bf16 v[{ZZ}:{ZZ+3}], v[{WD}:{WD+1}], v[{c0}:{c0+1}], 0")
    def gate(i):
        c0 = ACC + 4 * i
        for c in (0, 2): a(f"v_pk_mul_f32 v[{c0+c}:{c0+c+1}], v[{SS+c}:{SS+c+1}], v[{ZZ+c}:{ZZ+c+1}]")
        pack(i)
    pack(0)
    a("s_waitcnt lgkmcnt(0)")
    mz(0); mf(SS, WS_, 0); mf(GG, WR_, 0)
    gate(0)
    for i in range(NS):
        c0 = ACC + 4 * i; m = mreg[i]; nx = i + 1 < NS
        if i == NS - 1:
            a("s_cmp_lt_u32 s50, 17")
            a("s_cbranch_scc1 P2_fin")
        a(f"v_mfma_f32_16x16x16_bf16 v[{UU}:{UU+3}], v[{WU}:{WU+1}], v[{c0}:{c0+1}], 0")
        if nx: pack(i + 1)
        lg = f" lgkmcnt({1 if i // 2 + 2 <= 8 else 0})" if nx and i % 2 == 1 else ""
        a(f"s_waitcnt vmcnt({len(vm) - 1 - vm.index(('m', i))})" + lg)
        if nx: mf(SS, WS_, i + 1)
        a(f"v_lshlrev_b32 v{c0}, 16, v{m}")
        a(f"v_and_b32 v{c0+1}, 0xffff0000, v{m}")
        if nx: mz(i + 1)
        a(f"v_lshlrev_b32 v{c0+2}, 16, v{m+1}")
        a(f"v_and_b32 v{c0+3}, 0xffff0000, v{m+1}")
        for c in (0, 2): a(f"v_pk_fma_f32 v[{c0+c}:{c0+c+1}], v[{UU+c}:{UU+c+1}], v[{GG+c}:{GG+c+1}], v[{c0+c}:{c0+c+1}]")
        if nx: mf(GG, WR_, i + 1)
        for u in range(2): a(f"v_cvt_pk_bf16_f32 v{m+u}, v{c0+2*u}, v{c0+2*u+1}")
        a(f"buffer_store_dwordx2 v[{m}:{m+1}], v{vSo}, s[28:31], 0 offen {o.ost}")
        vm.append(("s", i))
        if nx: gate(i + 1)
        a(f"v_add_u32 v{vSo}, {512*32}, v{vSo}")
        if i % 2 == 0 and i // 2 + 2 <= 8: rbread(i // 2 + 2)
        for k in (NPRE + 2 * i, NPRE + 2 * i + 1):
            if k < NS: mload(k); vm.append(("m", k))
    a("P2_fin:")
    if o.prof:
        P.stamp()
        a("s_waitcnt vmcnt(0)")
        P.stamp(True)
        P.dump(32, 0x80000, 34, 3)
    if o.amp:
        x1, k, wg = [int(v) for v in o.amp.split(",")]
        a("s_cmp_lg_u32 s3, 15"); a("s_cbranch_scc1 P2_end")
        if wg >= 0:
            a("s_and_b32 s40, s2, 7"); a(f"s_cmp_lg_u32 s40, {wg}"); a("s_cbranch_scc1 P2_end")
        a("v_mov_b32 v34, 0")
        a("buffer_load_dword v35, v34, s[24:27], 0 offen offset:112 sc1")
        a("s_waitcnt vmcnt(0)")
        a("v_readfirstlane_b32 s42, v35")
        a("s_not_b32 s42, s42")
        a(f"s_sub_u32 s40, s{72+x1}, s42")
        a(f"s_mul_i32 s40, s40, {k}")
        a("s_min_u32 s40, s40, 100000")
        a("s_add_u32 s40, s40, 13000")
        a("P2_amp:")
        a("s_memrealtime s[58:59]")
        a("s_waitcnt lgkmcnt(0)")
        a(f"s_sub_u32 s41, s58, s42")
        a("s_cmp_lt_u32 s41, s40")
        a("s_cbranch_scc1 P2_amp")
    a("P2_end:")
    a("s_endpgm")

KD = """.amdhsa_kernel {name}
  .amdhsa_next_free_vgpr 128
  .amdhsa_next_free_sgpr 100
  .amdhsa_accum_offset 128
  .amdhsa_group_segment_fixed_size 0
  .amdhsa_kernarg_size 112
  .amdhsa_user_sgpr_count 2
  .amdhsa_user_sgpr_kernarg_segment_ptr 1
  .amdhsa_system_sgpr_workgroup_id_x 1
  .amdhsa_float_denorm_mode_32 3
.end_amdhsa_kernel
"""

NAME = "gather_scatter__molecular_angular_gemnet__graph_kernel"

def build(o):
    GUARD[0] = 1000000 if o.maxr else 0
    a = Asm(); P = Prof(a, o.prof, 1)
    xw, stg = gen_p1(o, a, P); gen_p2(o, a, P, xw, stg)
    ref = open("gather_scatter__molecular_angular_gemnet__graph.s.ref").read().split("\n")
    head = [l for l in ref if l.startswith(";") and "launch geometry" not in l and "Harness parses" not in l and "@launch" not in l]
    s = "\n".join(head) + "\n"
    s += "; Part 1 partitions the triplets by (input slice, output bin); part 2 gathers / segment-sums with MFMA.\n"
    s += f"; @launch grid=(256,1,1) block=(1024,1,1) lds={xw + 64}\n"
    s += '.amdgcn_target "amdgcn-amd-amdhsa--gfx950"\n.text\n'
    s += f".globl {NAME}\n.p2align 8\n.type {NAME},@function\n{NAME}:\n" + a.finish()
    s += '.section .rodata,"a"\n.p2align 6\n' + KD.format(name=NAME)
    return s

def parser():
    p = argparse.ArgumentParser()
    p.add_argument("-S", type=int, default=11)
    for k, d in dict(prof=0, maxr=0, dstep=4, asplit=12, sw=1, psleep=2, csleep=2, gsleep=24, maxpoll=1000000, eprio=0, nd=4, ssleep=1, wsh=50, xp=0, skip=1, l0=9, pfs=14, pfd=2, own=1, swo=36000, swd=0, nornd=0, pp=5, nb=5, sw0=4, pf0=3, pfw=0, pfn=5, ldp=1, spr=2, f0=0, cpf=14, nl=5, lstep=0, fuse=1, cmap=2, rot=0).items():
        p.add_argument("--" + k, type=int, default=d)
    p.add_argument("--p1_ld", default="nt")
    p.add_argument("--p1_st", default="sc1")
    p.add_argument("--ost", default="nt")
    p.add_argument("--gfl", default="")
    p.add_argument("--amp", default="")
    p.add_argument("-o", default="gather_scatter__molecular_angular_gemnet__graph.s")
    return p

if __name__ == "__main__":
    o = parser().parse_args()
    open(o.o, "w").write(build(o))
```

```python
import sys, argparse
from asmlib import Asm

E = 800000; T = 12800000
NT = 256
CHA = 25088
TILE_N = 50000
TILE_BYTES = 300032
WS_DESC = 0x5000000
WS_PROF = 0x6000000
CAP = 56
WSTR = CAP * 4
MARK = 0x38100000
NG = 196
CL = E // 8
WREG = 9472

GUARD = [0]
def guard(a):
    if GUARD[0]:
        a("s_add_u32 s99, s99, 1")
        a(f"s_cmp_gt_u32 s99, {GUARD[0]}")
        a("s_cbranch_scc1 P2_end")

def slicing(o):
    B = (o.f0 << 26) // 100
    K = ((o.S << 26) - B) // E
    return K, B

def srd(a, d, base, size, off=None):
    if off is None:
        a(f"s_mov_b32 s{d}, s{base}")
        a(f"s_mov_b32 s{d+1}, s{base+1}")
    else:
        a(f"s_add_u32 s{d}, s{base}, {off}")
        a(f"s_addc_u32 s{d+1}, s{base+1}, 0")
    a(f"s_mov_b32 s{d+2}, {size}")
    a(f"s_mov_b32 s{d+3}, 0x20000")

class Prof:
    def __init__(self, a, on, fuse=0): self.a = a; self.on = on; self.n = 0; self.fuse = fuse
    def stamp(self, key=False):
        if not self.on or (self.on == 2 and not key): return
        a = self.a
        a("s_waitcnt lgkmcnt(0)")
        a("s_memtime s[58:59]")
        a("s_waitcnt lgkmcnt(0)")
        a(f"s_mov_b32 s{60+self.n}, s58")
        a("s_memrealtime s[58:59]")
        a("s_waitcnt lgkmcnt(0)")
        a(f"s_mov_b32 s{72+self.n}, s58")
        self.n += 1
    def dump(self, wsreg, region, vt, wave_sreg):
        if not self.on: return
        a = self.a
        srd(a, 52, wsreg, 0x100000, WS_PROF + region)
        a(f"s_lshl_b32 s56, s2, 4")
        a(f"s_add_u32 s56, s56, s{wave_sreg}")
        a(f"s_lshl_b32 s56, s56, 7")
        a("s_mov_b64 exec, 1")
        for i in range(self.n):
            a(f"v_mov_b32 v{vt}, s56")
            a(f"v_mov_b32 v{vt+1}, s{60+i}")
            a(f"buffer_store_dword v{vt+1}, v{vt}, s[52:55], 0 offen offset:{4*i}")
            a(f"v_mov_b32 v{vt+1}, s{72+i}")
            a(f"buffer_store_dword v{vt+1}, v{vt}, s[52:55], 0 offen offset:{64+4*i}")
        a(f"v_mov_b32 v{vt+1}, s71")
        a(f"buffer_store_dword v{vt+1}, v{vt}, s[52:55], 0 offen offset:124")
        a("s_waitcnt vmcnt(0)")
        a("s_mov_b64 exec, -1")

def gen_p1(o, a, P):
    S = o.S
    NK = S * 256
    KSL, BSL = slicing(o)
    CN = 16; SCR = CN + NK * 4; STG = SCR + 64; XW = STG + CHA * 6
    W0 = 4; KP0 = 53; C0 = 78; TO = 103; T0 = 104
    ld = o.p1_ld; st = o.p1_st
    def issue_idx(r):
        b = C0 + 4 * (r % 6); w = W0 + 4 * r
        a(f"buffer_load_dwordx4 v[{b}:{b+3}], v1, s[12:15], s36 offen {ld}")
        a(f"buffer_load_dwordx4 v[{w}:{w+3}], v1, s[8:11], s36 offen {ld}")
        a(f"s_add_u32 s36, s36, 16384")
    def issue_ang(r):
        b = C0 + 2 * r
        a(f"buffer_load_dwordx2 v[{b}:{b+1}], v2, s[16:19], s37 offen {ld}")
        a(f"s_add_u32 s37, s37, 8192")
    DP = o.ldp
    a("s_load_dwordx2 s[8:9], s[0:1], 8")
    a("s_load_dwordx2 s[12:13], s[0:1], 16")
    a("s_cmp_ge_u32 s2, 256")
    a("s_cbranch_scc1 P2_end")
    if o.cpf:
        a("s_getpc_b64 s[40:41]")
        a("P1_pc:")
        a("s_lshr_b32 s45, s2, 3")
        a(f"s_mulk_i32 s45, {o.cpf}")
        a(f"s_mov_b32 s42, P2_end-P1_pc")
        a("s_mov_b32 s43, 0x20000")
        a(f"v_add_lshl_u32 v{T0+23}, v0, s45, 7")
        a(f"v_cmp_gt_u32 vcc, {o.cpf}, v0")
        a("s_and_b64 exec, exec, vcc")
        a("s_cbranch_execz P1_nopf")
        a(f"buffer_load_dword v{T0+23}, v{T0+23}, s[40:43], 0 offen")
        a("P1_nopf:")
        a("s_mov_b64 exec, -1")
    a(f"s_mov_b32 s10, {T * 4}")
    a("s_mov_b32 s11, 0x20000")
    a("s_mov_b64 s[14:15], s[10:11]")
    a(f"s_mul_i32 s36, s2, {12 * 16384}")
    a("v_lshlrev_b32 v1, 4, v0")
    a("s_waitcnt lgkmcnt(0)")
    P.stamp(True)
    for r in range(DP): issue_idx(r)
    if GUARD[0]: a("s_mov_b32 s99, 0")
    a("s_load_dwordx2 s[16:17], s[0:1], 32")
    a("s_load_dwordx2 s[30:31], s[0:1], 48")
    a("s_load_dwordx2 s[32:33], s[0:1], 104")
    a("s_load_dwordx2 s[94:95], s[0:1], 96")
    a("s_load_dwordx2 s[48:49], s[0:1], 0")
    a("s_load_dwordx2 s[86:87], s[0:1], 88")
    a("v_lshlrev_b32 v2, 3, v0")
    a("v_mov_b32 v3, 1")
    for i in range(4): a(f"v_mov_b32 v{T0+i}, 0")
    a(f"ds_write_b128 v1, v[{T0}:{T0+3}]")
    a(f"v_lshrrev_b32 v{T0+4}, 6, v0")
    a(f"v_readfirstlane_b32 s3, v{T0+4}")
    a(f"s_mul_i32 s34, s2, 848")
    a(f"s_add_u32 s34, s34, {3072*4096}")
    a(f"v_add_u32 v109, s34, v0")
    a(f"v_cmp_gt_u32 vcc, 848, v0")
    a(f"v_lshlrev_b32 v110, 2, v109")
    a(f"v_lshlrev_b32 v109, 1, v109")
    a(f"v_cndmask_b32 v110, 2.0, v110, vcc")
    a(f"v_cndmask_b32 v109, 2.0, v109, vcc")
    a(f"buffer_load_dword v{TO}, v110, s[12:15], 0 offen {ld}")
    a(f"buffer_load_dword v{W0+48}, v110, s[8:11], 0 offen {ld}")
    a(f"s_mov_b32 s18, {T * 2}")
    a("s_mov_b32 s19, 0x20000")
    a(f"s_mul_i32 s37, s2, {12 * 8192}")
    a("s_waitcnt lgkmcnt(0)")
    a("s_load_dword s35, s[30:31], 0")
    a(f"buffer_load_ushort v{C0+24}, v109, s[16:19], 0 offen {ld}")
    a("s_mov_b32 s38, 0x7c00")
    MG = -(-(1 << 19) // S)
    assert all((n * MG) >> 19 == n // S for n in range(4096))
    a(f"s_mov_b32 s40, {(-(1024*S - 4)) & 0xffffffff}")
    for j in range(4):
        t = T0 + 16 + j
        a(f"v_lshl_add_u32 v{t}, v0, 2, {j}")
        a(f"v_mul_u32_u24 v{T0}, {MG}, v{t}")
        a(f"v_lshrrev_b32 v{T0}, 19, v{T0}")
        a(f"v_lshlrev_b32 v{t}, 10, v{t}")
        a(f"v_mad_i32_i24 v{t}, v{T0}, s40, v{t}")
        a(f"v_add_u32 v{t}, {STG}, v{t}")
    srd(a, 20, 32, NT * NT * S * 4, WS_DESC)
    srd(a, 24, 94, 256)
    a("s_mov_b32 s44, 0")
    a(f"s_mov_b32 s39, {KSL}")
    a(f"v_mov_b32 v{T0+22}, {(BSL - (CL * KSL if o.own == 1 else 0)) & 0xffffffff}")
    a(f"s_mov_b32 s5, {CL}")
    a(f"v_mov_b32 v{T0+20}, 0x7c")
    a(f"v_mov_b32 v{T0+21}, 0x0ff00000")
    a("s_barrier")
    KX = -(-(1 << 28) // (CL // 16))
    assert all(((k * (CL // 16) + d) * KX) >> 28 == (k * (CL // 16) + d) // (CL // 16) for k in range(1, 9) for d in (-1, 0) if k < 8 or d < 0)
    def key(O, W, t):
        x, xb, d, n = t, t + 1, t + 2, t + 3
        a(f"v_and_b32 v{x}, -16, v{O}")
        a(f"v_mul_hi_u32_u24 v{x}, {KX}, v{x}")
        a(f"v_mul_u32_u24 v{xb}, {CL}, v{x}")
        a(f"v_sub_u32 v{d}, v{W}, v{xb}")
        a(f"v_sub_u32 v{O}, v{O}, v{xb}")
        if o.own == 1:
            a(f"v_cmp_gt_u32 s[42:43], s5, v{d}")
            a(f"v_ashrrev_i32 v{n}, 31, v{d}")
            a(f"v_add_u32 v{d}, {8 * CL}, v{d}")
            a(f"v_and_b32 v{n}, {CL}, v{n}")
            a(f"v_add_u32 v{n}, v{n}, v{W}")
            a(f"v_cndmask_b32 v{n}, v{n}, v{d}, s[42:43]")
        elif o.own == 2:
            a(f"v_subrev_u32 v{d}, {CL}, v{d}")
            a(f"v_add_u32 v{n}, {E}, v{d}")
            a(f"v_min_u32 v{n}, v{n}, v{d}")
        else:
            a(f"v_mov_b32 v{n}, v{W}")
        a(f"v_lshlrev_b32 v{xb}, 11, v{O}")
        a(f"v_lshl_or_b32 v{W}, v{O}, 28, v{W}")
        a(f"v_mad_u32_u24 v{n}, v{n}, s39, v{T0+22}")
        a(f"v_lshrrev_b32 v{O}, 2, v{O}")
        a(f"v_bitop3_b32 v{W}, v{xb}, v{T0+21}, v{W} bitop3:0xea")
        a(f"v_and_b32_sdwa v{n}, v{n}, s38 dst_sel:DWORD dst_unused:UNUSED_PAD src0_sel:WORD_1 src1_sel:DWORD")
        a(f"v_lshl_or_b32 v{n}, v{x}, 7, v{n}")
        a(f"v_bitop3_b32 v{O}, v{O}, v{T0+20}, v{n} bitop3:0xea")
    for r in range(12):
        a(f"s_waitcnt vmcnt({min(2*DP-2, 2*(11-r)) + (3 if r < DP else 0)})")
        if DP < 6 and r + DP < 12: issue_idx(r + DP)
        if r == DP:
            key(TO, W0 + 48, T0)
            a(f"v_cndmask_b32 v{KP0+24}, 2.0, v{TO}, vcc")
            a(f"ds_add_u32 v{KP0+24}, v3 offset:{CN}")
        b = C0 + 4 * (r % 6)
        for j in range(4):
            key(b + j, W0 + 4 * r + j, T0 + 4 * j)
            a(f"ds_add_u32 v{b+j}, v3 offset:{CN}")
        a(f"v_lshl_or_b32 v{KP0+2*r}, v{b+1}, 16, v{b}")
        a(f"v_lshl_or_b32 v{KP0+2*r+1}, v{b+3}, 16, v{b+2}")
        if DP == 6 and r < 6: issue_idx(r + 6)
    a("s_waitcnt lgkmcnt(0)")
    a("s_barrier")
    P.stamp()
    c = T0; x = T0 + 4; tot = T0 + 5; y = T0 + 6
    a(f"s_cmp_ge_u32 s3, {S}")
    a("s_cbranch_scc1 P1_scan1")
    a(f"ds_read_b128 v[{c}:{c+3}], v1 offset:{CN}")
    a("s_waitcnt lgkmcnt(0)")
    a(f"v_add_u32 v{c+1}, v{c}, v{c+1}")
    a(f"v_add_u32 v{c+2}, v{c+1}, v{c+2}")
    a(f"v_add_u32 v{c+3}, v{c+2}, v{c+3}")
    a(f"v_mov_b32 v{x}, v{c+3}")
    for sh in (1, 2, 4, 8):
        a(f"v_add_u32_dpp v{x}, v{x}, v{x} row_shr:{sh} row_mask:0xf bank_mask:0xf bound_ctrl:1")
    a(f"v_add_u32_dpp v{x}, v{x}, v{x} row_bcast:15 row_mask:0xa bank_mask:0xf")
    a(f"v_add_u32_dpp v{x}, v{x}, v{x} row_bcast:31 row_mask:0xc bank_mask:0xf")
    a(f"v_readlane_b32 s40, v{x}, 63")
    a(f"s_lshl_b32 s41, s3, 2")
    a(f"v_mov_b32 v{y}, s41")
    a(f"v_mov_b32 v{y+1}, s40")
    a(f"ds_write_b32 v{y}, v{y+1} offset:{SCR}")
    a("s_waitcnt lgkmcnt(0)")
    a("P1_scan1:")
    a("s_barrier")
    a(f"s_cmp_ge_u32 s3, {S}")
    a("s_cbranch_scc1 P1_scan2")
    a(f"v_and_b32 v{y}, 63, v0")
    a(f"v_lshlrev_b32 v{y+1}, 2, v{y}")
    a(f"ds_read_b32 v{y+2}, v{y+1} offset:{SCR}")
    a(f"v_cmp_gt_u32 s[42:43], s3, v{y}")
    a(f"v_sub_u32 v{x}, v{x}, v{c+3}")
    a("s_waitcnt lgkmcnt(0)")
    a(f"v_cndmask_b32 v{y+2}, 0, v{y+2}, s[42:43]")
    for sh in (1, 2, 4, 8):
        a(f"v_add_u32_dpp v{y+2}, v{y+2}, v{y+2} row_shr:{sh} row_mask:0xf bank_mask:0xf bound_ctrl:1")
    a(f"v_readlane_b32 s40, v{y+2}, 15")
    s0 = T0 + 12
    a(f"v_add_u32 v{s0}, s40, v{x}")
    for j in range(3): a(f"v_add_u32 v{s0+1+j}, v{s0}, v{c+j}")
    a(f"ds_write_b128 v1, v[{s0}:{s0+3}] offset:{CN}")
    a(f"ds_write_b128 v1, v[{s0}:{s0+3}] offset:{STG}")
    a(f"v_mov_b32 v{c}, {STG + NK * 4}")
    a(f"v_mov_b32 v{c+1}, {TILE_N}")
    a(f"ds_write_b32 v{c}, v{c+1}")
    a("s_waitcnt lgkmcnt(0)")
    a("P1_scan2:")
    a("s_barrier")
    a(f"s_cmp_ge_u32 s3, {S}")
    a("s_cbranch_scc1 P1_nodesc")
    for j in range(4):
        a(f"ds_read2_b32 v[{T0+2*j}:{T0+2*j+1}], v{T0+16+j} offset0:0 offset1:1")
    a(f"s_mul_i32 s40, s2, {256*S*4}")
    lds_count(a, T0 + 8, 4)
    for j in range(4): a(f"v_lshl_or_b32 v{T0+12+j}, v{T0+2*j+1}, 16, v{T0+2*j}")
    a(f"buffer_store_dwordx4 v[{T0+12}:{T0+15}], v1, s[20:23], s40 offen {st}")
    a("P1_nodesc:")
    a(f"s_mul_i32 s40, s3, {WREG - 1024}")
    a(f"s_add_u32 s40, s40, {9*1024}")
    a(f"v_add_u32 v{TO}, s40, v1")
    srd(a, 8, 48, E * 32)
    a(f"s_mul_i32 s41, s2, {o.pfn * 64}")
    a(f"s_sub_u32 s41, s41, {o.pfw * 64}")
    a("v_add_lshl_u32 v1, v0, s41, 7")
    if o.pp & 1: a("s_setprio 3")
    def atomics(n):
        t = T0 + 4 * (n % 2)
        if n == 12:
            a(f"ds_add_rtn_u32 v{t}, v{KP0+24}, v3 offset:{CN}"); return 1
        for j in range(4):
            kp = KP0 + 2 * n + j // 2
            if j % 2 == 0: a(f"v_and_b32 v{t+j}, 0xffff, v{kp}")
            else: a(f"v_lshrrev_b32 v{t+j}, 16, v{kp}")
            a(f"ds_add_rtn_u32 v{t+j}, v{t+j}, v3 offset:{CN}")
        return 4
    a(f"s_cmp_ge_u32 s3, {o.asplit}")
    a("s_cbranch_scc1 P1_ang1")
    for n in range(12): issue_ang(n)
    a("P1_ang1:")
    atomics(0)
    for n in range(13):
        k = atomics(n + 1) if n < 12 else 0
        a(f"s_waitcnt lgkmcnt({k})")
        t = T0 + 4 * (n % 2); u = T0 + 8
        if n < 12:
            a(f"v_lshl_or_b32 v{KP0+2*n}, v{t+1}, 16, v{t}")
            a(f"v_lshl_or_b32 v{KP0+2*n+1}, v{t+3}, 16, v{t+2}")
        else:
            a(f"v_mov_b32 v{u}, 0xffff")
            a(f"v_cndmask_b32 v{KP0+24}, v{u}, v{t}, vcc")
    a(f"s_cmp_lt_u32 s3, {o.asplit}")
    a("s_cbranch_scc1 P1_ang2")
    for n in range(12): issue_ang(n)
    a("P1_ang2:")
    a("s_lshl_b32 s35, s35, 16")
    a("s_cmp_eq_u32 s35, 1.0")
    a("s_cbranch_scc1 P1_f1")
    a("s_waitcnt vmcnt(0)")
    for n in range(25):
        cr = C0 + n; t = T0
        a(f"v_lshlrev_b32 v{t}, 16, v{cr}")
        a(f"v_and_b32 v{t+1}, 0xffff0000, v{cr}")
        a(f"v_mul_f32 v{t}, s35, v{t}")
        a(f"v_mul_f32 v{t+1}, s35, v{t+1}")
        a(f"v_cvt_pk_bf16_f32 v{cr}, v{t}, v{t+1}")
    a("P1_f1:")
    lds_wait(a, T0, 4, S, "q", 0)
    def addrs(n, h, u, base):
        a(f"v_mad_u32_u16 v{u}, v{KP0+n}, 6, {base}" + (" op_sel:[1,0,0,0]" if h else ""))
        a(f"v_and_b32 v{u+1}, 2, v{u}")
        a(f"v_sub_u32 v{u}, v{u}, v{u+1}")
        a(f"v_sub_u32 v{u+1}, v{u}, v{u+1}")
    for n in range(25):
        cr = C0 + n; t = T0 + 6 * (n % 2)
        if o.pp & 1 and n in (0, 9, 17): a(f"s_setprio {2 - n // 8}")
        if o.pf0 == 3:
            if n == 0: a("s_waitcnt vmcnt(0)")
            for w in range(o.pfn):
                if o.pfs + (w * o.pfd) // 2 == n:
                    a(f"s_cmp_lg_u32 s3, {o.pfw + w}")
                    a(f"s_cbranch_scc1 P1_npf{w}")
                    a("buffer_load_dword v1, v1, s[8:11], 0 offen")
                    a(f"P1_npf{w}:")
        elif n % 2 == 0 and n < 24: a(f"s_waitcnt vmcnt({11 - n // 2})")
        if n == 0:
            a(f"s_cmp_ge_u32 s3, {S}")
            a("s_cbranch_scc1 P1_noe")
            a("s_waitcnt vmcnt(0)")
            lds_ticket(a, 2, 8)
            a(f"s_cmp_lg_u32 s40, {S-1}")
            a("s_cbranch_scc1 P1_noe")
            arrive(a, 2, LV_E)
            a("s_mov_b32 s44, 1")
            a("P1_noe:")
        if n == 14:
            a("s_cmp_eq_u32 s44, 0")
            a("s_cbranch_scc1 P2_norele")
            release(a, 2, LV_E, "e")
        a(f"v_lshlrev_b32 v{t}, 16, v{cr}")
        a(f"v_and_b32 v{t+1}, 0xffff0000, v{cr}")
        a(f"v_mul_f32 v{t}, 0.15915494, v{t}")
        a(f"v_mul_f32 v{t+1}, 0.15915494, v{t+1}")
        a(f"v_fract_f32 v{t}, v{t}")
        a(f"v_fract_f32 v{t+1}, v{t+1}")
        a(f"v_cos_f32 v{t}, v{t}")
        a(f"v_cos_f32 v{t+1}, v{t+1}")
        for h in range(2 if n < 24 else 1):
            u = t + 2 + 2 * h
            addrs(n, h, u, 0)
            a(f"ds_write_b32 v{u}, v{W0+2*n+h} offset:{STG}")
        a(f"v_cvt_pk_bf16_f32 v{cr}, v{t}, v{t+1}")
        a(f"ds_write_b16 v{t+3}, v{cr} offset:{STG+8}")
        if n < 24: a(f"ds_write_b16_d16_hi v{t+5}, v{cr} offset:{STG+8}")
    a(f"s_mul_i32 s40, s2, {TILE_BYTES}")
    srd(a, 20, 32, CHA * 6, "s40")
    a(f"v_subrev_u32 v2, {9*1024}, v{TO}")
    a("s_mov_b32 s44, 0")
    if o.pf0 == 2:
        a(f"s_sub_u32 s40, s3, {o.pfw}")
        a(f"s_cmp_ge_u32 s40, {o.pfn}")
        a("s_cbranch_scc1 P1_nopf0")
        a("buffer_load_dword v1, v1, s[8:11], 0 offen")
        a("P1_nopf0:")
    a("s_waitcnt lgkmcnt(0)")
    a("s_barrier")
    P.stamp()
    a(f"s_cmp_lg_u32 s3, 15")
    a("s_cbranch_scc1 P1_noclr")
    a(f"v_and_b32 v3, 15, v0")
    a(f"v_lshlrev_b32 v3, 2, v3")
    a(f"v_add_u32 v3, {XW}, v3")
    a(f"v_mov_b32 v{T0}, 0")
    a(f"ds_write_b32 v3, v{T0}")
    a("P1_noclr:")
    def rd(k):
        t = T0 + 4 * (k % 6)
        a(f"ds_read_b128 v[{t}:{t+3}], v2 offset:{STG + 1024 * (9 - k)}")
    def store(k):
        t = T0 + 4 * (k % 6)
        if k == 0: a("s_mov_b64 exec, 0xffff")
        a(f"buffer_store_dwordx4 v[{t}:{t+3}], v{TO}, s[20:23], 0 offen {st}")
        if k == 0: a("s_mov_b64 exec, -1")
        a(f"v_subrev_u32 v{TO}, 1024, v{TO}")
    NB = o.nb
    for k in range(6): rd(k)
    for k in range(NB):
        a(f"s_waitcnt lgkmcnt({min(5, 9-k)})")
        store(k)
        if k + 6 < 10: rd(k + 6)
    a(f"s_waitcnt vmcnt({NB}) lgkmcnt(0)")
    a(f"s_cmp_ge_u32 s3, {o.nd}")
    a("s_cbranch_scc1 P1_nod")
    for k in range(NB, 10): store(k)
    a("s_waitcnt vmcnt(0)")
    lds_ticket(a, T0, 0)
    a(f"s_cmp_lg_u32 s40, {o.nd-1}")
    a("s_cbranch_scc1 P1_nod")
    arrive(a, T0, LV_D)
    a("s_mov_b32 s44, 1")
    a("P1_nod:")
    a(f"s_mov_b32 s45, {(-CHA*6) & 0xffffffff}")
    a("s_barrier")
    P.stamp()
    nnow = NB
    for n in range(25):
        if o.pp & 2 and n in (0, 9, 17): a(f"s_setprio {2 - n // 8}")
        if o.pp & 4 and n in (0, 9, 17):
            if n == 0: a("s_setprio 3")
            a("s_cmp_lt_u32 s3, 4")
            a(f"s_cbranch_scc1 P1_pr{n}")
            a(f"s_setprio {2 - n // 8}")
            a(f"P1_pr{n}:")
        if n == 1:
            a("s_cmp_eq_u32 s44, 0")
            a("s_cbranch_scc1 P2_noreld")
            release(a, T0, LV_D, "d")
        if n % o.dstep == 1 and nnow < 10:
            a(f"s_cmp_lt_u32 s3, {o.nd}")
            a(f"s_cbranch_scc1 P1_ns{n}")
            store(nnow); nnow += 1
            a(f"P1_ns{n}:")
        for h in range(2 if n < 24 else 1):
            u = 2 * h
            addrs(n, h, u, "s45")
            a(f"ds_write_b32 v{u}, v{W0+2*n+h} offset:{STG}")
            a(f"ds_write_b16{'_d16_hi' if h else ''} v{u+1}, v{C0+n} offset:{STG+8}")
    assert nnow == 10
    lds_count(a, 4, XW + X_S)
    a(f"s_mul_i32 s40, s2, {TILE_BYTES}")
    a(f"s_add_u32 s40, s40, {CHA*6}")
    srd(a, 20, 32, (TILE_N - CHA) * 6, "s40")
    return XW, STG

LV_A, LV_B, LV_D, LV_E = 0, 1, 2, 3
X_A, X_S, X_X, X_I, X_B, X_R, X_C, X_H, X_CW, X_PW = 0, 4, 8, 12, 16, 20, 24, 28, 32, 48

def arrive(a, t, level):
    a(f"v_mov_b32 v{t}, 0")
    a(f"v_mov_b32 v{t+1}, 1")
    a("s_mov_b64 exec, 1")
    a(f"buffer_atomic_add v{t+1}, v{t}, s[24:27], 0 offen offset:{32*level} sc0 sc1")
    a("s_mov_b64 exec, -1")

def release(a, t, level, tag):
    a("s_waitcnt vmcnt(0)")
    a(f"v_readfirstlane_b32 s40, v{t+1}")
    a("s_cmp_lg_u32 s40, 255")
    a(f"s_cbranch_scc1 P2_norel{tag}")
    a("s_mov_b64 exec, 1")
    a(f"buffer_store_dword v{t+1}, v{t}, s[24:27], 0 offen offset:{128+4*level} sc1")
    a("s_mov_b64 exec, -1")
    a(f"P2_norel{tag}:")

def lds_count(a, t, word):
    a(f"v_mov_b32 v{t}, {word}")
    a(f"v_mov_b32 v{t+1}, 1")
    a("s_mov_b64 exec, 1")
    a("s_waitcnt lgkmcnt(0)")
    a(f"ds_add_u32 v{t}, v{t+1}")
    a("s_mov_b64 exec, -1")

def lds_wait(a, t, word, n, tag, sleep):
    a(f"v_mov_b32 v{t}, {word}")
    a(f"P2_lw{tag}:")
    a(f"ds_read_b32 v{t+1}, v{t}")
    a("s_waitcnt lgkmcnt(0)")
    a(f"v_readfirstlane_b32 s40, v{t+1}")
    a(f"s_cmp_ge_u32 s40, {n}")
    a(f"s_cbranch_scc1 P2_lg{tag}")
    if sleep: a(f"s_sleep {sleep}")
    guard(a)
    a(f"s_branch P2_lw{tag}")
    a(f"P2_lg{tag}:")

def lds_ticket(a, t, word):
    a(f"v_mov_b32 v{t}, {word}")
    a(f"v_mov_b32 v{t+1}, 1")
    a("s_mov_b64 exec, 1")
    a(f"ds_add_rtn_u32 v{t+1}, v{t}, v{t+1}")
    a("s_mov_b64 exec, -1")
    a("s_waitcnt lgkmcnt(0)")
    a(f"v_readfirstlane_b32 s40, v{t+1}")

def publish_a(a, t, XW, tag):
    lds_ticket(a, t, XW + X_A)
    a("s_cmp_lg_u32 s40, 15")
    a(f"s_cbranch_scc1 P2_norel{tag}")
    arrive(a, t, LV_A)
    release(a, t, LV_A, tag)

def gen_p2(o, a, P, XW, STG):
    S = o.S
    uid = [0]
    LUT = 2048; CB = 2560; WSZ = NG * WSTR
    RBSZ = 100 * 512
    X1 = RBSZ + 32
    WT = CB + WSZ // 2 + 16
    WB = CB + X1 // 2 + WSZ // 2 + 16
    RB_AT = (WB, WB + WSZ + 32)
    K0 = (WB - STG) // 12288; K1 = (WB + X1 - STG) // 12288
    assert STG + 12288 * (K0 + 4) >= WB + WSZ + 32 and STG + 12288 * K1 >= WB + WSZ + 32 and STG + 12288 * (K1 + 4) >= WB + X1 + WSZ + 64
    SC = STG + 12288 * (K1 + 4)
    assert WT + 3072 <= CB + X1 // 2 and WB < 65536 and SC + 12288 <= XW and WB % 16 == 0 and X1 % 32 == 0
    if o.xp:
        a("s_bfe_u32 s46, s2, 0x20001")
        a("s_bitcmp0_b32 s2, 0")
        a("s_cselect_b32 s47, 4, 0")
        a("s_add_u32 s46, s46, s47")
    else:
        a("s_and_b32 s46, s2, 7")
    a("s_lshl_b32 s46, s46, 5")
    a("s_lshr_b32 s47, s2, 3")
    a("s_add_u32 s46, s46, s47")
    a("v_mbcnt_lo_u32_b32 v12, -1, 0")
    a("v_mbcnt_hi_u32_b32 v12, -1, v12")
    a("s_lshl_b32 s40, s3, 6")
    a("v_add_u32 v0, s40, v12")
    srd(a, 8, 48, E * 32)
    srd(a, 12, 32, NT * TILE_BYTES)
    srd(a, 16, 32, NT * NT * S * 4, WS_DESC)
    a("s_mov_b64 s[6:7], s[86:87]")
    if o.prof: a("s_mov_b32 s71, 0")
    a("s_mov_b32 s48, 0")
    a("s_cmp_ge_u32 s3, 4")
    a("s_cbranch_scc1 P2_consumer")
    def twait(body):
        if o.prof == 1:
            a("s_waitcnt lgkmcnt(0)")
            a("s_memtime s[56:57]")
            a("s_waitcnt lgkmcnt(0)")
        body()
        if o.prof == 1:
            a("s_memtime s[58:59]")
            a("s_waitcnt lgkmcnt(0)")
            a("s_sub_u32 s56, s58, s56")
            a("s_add_u32 s71, s71, s56")
    D0 = 40; R0 = 64
    vU12 = 1; vTile = 2; vInc = 3; v3FC = 4; vCb = 5; vZ = 6; v2U2 = 7; v2U1 = 8; vSg = 9
    n2c = 10; a0c = 11; n2n = 13; a0n = 14
    vca = 16; vcb = 17; vra = 18; vrb = 19; vwa = 20; vwb = 21; vha = 22; vhb = 23; vt = 24; vt2 = 25; vPW = 26; vS = 28
    ODDC = 52; MORC = 54; ODDN = 84; MORN = 86; ROW0 = 82; M0_ = 88; M1_ = 90
    KSL, BSL = slicing(o)
    L0 = -(-(1 << 26) // KSL) // 4 + 1
    def warm(sl, part):
        nt = -(-L0 // 512); n0 = nt * o.wsh // 100; n1 = nt - n0
        uid[0] += 1
        a(f"s_mul_i32 s40, {sl}, {L0 - 1}")
        a(f"s_lshr_b32 s41, s2, 1")
        a(f"s_lshl_b32 s41, s41, 2")
        a(f"s_add_u32 s41, s41, {part}")
        a(f"s_mul_i32 s41, s41, {nt}")
        a(f"s_add_u32 s40, s40, s41")
        a(f"s_add_u32 s40, s40, {(o.swo // 4 - BSL // KSL // 4) & 0xffffffff}")
        a("s_bitcmp1_b32 s2, 0")
        a(f"s_cselect_b32 s41, {n0}, 0")
        a(f"s_add_u32 s40, s40, s41")
        a(f"s_cmp_ge_u32 s40, {E // 4}")
        a(f"s_cbranch_scc1 P2_we{uid[0]}")
        a(f"s_min_u32 s40, s40, {E // 4 - n1}")
        a(f"s_lshl_b32 s40, s40, 7")
        a(f"s_add_u32 s36, s8, s40")
        a(f"s_addc_u32 s37, s9, 0")
        for j in range(n1):
            if j == n0:
                a("s_bitcmp0_b32 s2, 0")
                a(f"s_cbranch_scc1 P2_we{uid[0]}")
            a(f"s_load_dwordx2 s[38:39], s[36:37], {128*j+60}")
        a(f"P2_we{uid[0]}:")
    def poll(level, tag, meanwhile=None):
        a("s_mov_b32 s51, 0")
        a(f"P2_poll{tag}:")
        a(f"buffer_load_dword v{vt}, v{vZ}, s[24:27], 0 offen offset:{128+4*level} sc1")
        a("s_add_u32 s51, s51, 1")
        a(f"s_cmp_gt_u32 s51, {o.maxpoll}")
        a("s_cbranch_scc1 P2_giveup")
        if meanwhile: a(f"s_call_b64 s[34:35], {meanwhile}")
        a("s_waitcnt vmcnt(0)")
        a(f"v_cmp_eq_u32 vcc, 0, v{vt}")
        a(f"s_cbranch_vccz P2_polled{tag}")
        a(f"s_sleep {o.gsleep}")
        a(f"s_branch P2_poll{tag}")
        a(f"P2_polled{tag}:")
    def ensure():
        uid[0] += 1; u = uid[0]
        a(f"v_cmp_lt_u32 vcc, s45, v{D0}")
        a(f"s_cbranch_vccz P2_have{u}")
        a("s_call_b64 s[42:43], P2_ensure")
        a(f"P2_have{u}:")
    def prep():
        ensure()
        a(f"v_bfe_u32 v{vt}, v{D0}, 1, 15")
        a(f"v_mad_u32_u24 v{a0n}, v{vt}, 12, v{vTile}")
        a(f"v_lshrrev_b32 v{n2n}, 16, v{D0}")
        a(f"v_and_b32 v{vt}, 0xfffe, v{D0}")
        a(f"v_sub_u32 v{n2n}, v{n2n}, v{vt}")
        a(f"v_and_b32 v{vt}, 1, v{D0}")
        a(f"v_cmp_eq_u32 s[{ODDN}:{ODDN+1}], 1, v{vt}")
        a(f"v_cmp_lt_u32 s[{MORN}:{MORN+1}], 32, v{n2n}")
        for k in range(S): a(f"v_mov_b32 v{D0+k}, v{D0+k+1}")
    def issue(i):
        t = (vt, vca)[i % 2]
        a(f"v_add_u32_dpp v{t}, v{a0n}, v{vU12} row_newbcast:{i} row_mask:0xf bank_mask:0xf")
        a(f"v_sub_u32_dpp v{t+1}, v{n2n}, v{v2U1} row_newbcast:{i} row_mask:0xf bank_mask:0xf")
        a(f"v_bitop3_b32 v{t}, v{t+1}, v{vSg}, v{t} bitop3:0xea")
        r = R0 + 4 * i
        a(f"buffer_load_dwordx3 v[{r}:{r+2}], v{t}, s[12:15], 0 offen sc1")
    def unhold():
        a("s_lshl_b32 s40, 1, s3")
        a(f"v_mov_b32 v{vt}, {XW + X_H}")
        a(f"v_mov_b32 v{vt2}, s40")
        a("s_mov_b64 exec, 1")
        a(f"ds_or_b32 v{vt}, v{vt2}")
        a("s_mov_b64 exec, -1")
    def next_round(regular):
        a("s_call_b64 s[42:43], P2_next")
        if regular:
            ensure()
            if o.sw:
                a(f"s_sub_u32 s4, s49, {o.swd}")
                a(f"s_cmp_lt_u32 s4, {o.sw0}")
                a("s_cbranch_scc1 P2_nowarm")
                a(f"s_cmp_ge_u32 s4, {-(-(E - o.swo) // (4 * (L0 - 1)))}")
                a("s_cbranch_scc1 P2_nowarm")
                warm("s4", "s3")
                a("P2_nowarm:")
        a("s_call_b64 s[42:43], P2_wait")
    def wait_buffer(tag):
        a("s_add_u32 s50, s48, 1")
        a("s_lshr_b32 s50, s50, 1")
        a("s_mul_i32 s50, s50, 12")
        a("s_and_b32 s51, s48, 1")
        a("s_lshl_b32 s51, s51, 2")
        a(f"s_add_u32 s51, s51, {XW + X_CW}")
        a(f"v_mov_b32 v{vt2}, s51")
        a(f"P2_pw{tag}:")
        a(f"ds_read_b32 v{vt}, v{vt2}")
        a("s_waitcnt lgkmcnt(0)")
        a(f"v_readfirstlane_b32 s51, v{vt}")
        a("s_cmp_ge_u32 s51, s50")
        a(f"s_cbranch_scc1 P2_pg{tag}")
        a(f"s_sleep {o.psleep}")
        guard(a)
        a(f"s_branch P2_pw{tag}")
        a(f"P2_pg{tag}:")
    a("s_setprio 3")
    a("s_waitcnt vmcnt(0)")
    publish_a(a, vt, XW, "ap")
    a(f"s_lshl_b32 s47, s3, 6")
    a(f"v_add_u32 v{vTile}, s47, v12")
    a(f"s_lshl_b32 s50, s3, 2")
    a(f"s_add_u32 s50, s50, {XW + X_PW}")
    a(f"v_mov_b32 v{vPW}, s50")
    a(f"v_lshlrev_b32 v15, 8, v{vTile}")
    a(f"v_add_u32 v15, s46, v15")
    a(f"v_mul_u32_u24 v15, {4*S}, v15")
    a(f"v_mov_b32 v{D0+S}, 0")
    a(f"v_mul_u32_u24 v{vTile}, {TILE_BYTES}, v{vTile}")
    a(f"v_and_b32 v{vt}, 15, v12")
    a(f"v_mul_u32_u24 v{vU12}, 12, v{vt}")
    a(f"v_lshl_add_u32 v{v2U1}, v{vt}, 1, 1")
    a(f"v_add_u32 v{v2U2}, 1, v{v2U1}")
    a(f"v_mov_b32 v{vInc}, {(1 << 20) + 4}")
    a(f"v_mov_b32 v{v3FC}, 0x3fc")
    a(f"v_mov_b32 v{vSg}, 0x80000000")
    for r in (vCb, vZ, vra, vrb, vS, vS + 1): a(f"v_mov_b32 v{r}, 0")
    a("s_mov_b32 s49, 0")
    a(f"s_mov_b32 s{ROW0}, 0x00010001")
    a(f"s_mov_b32 s{ROW0+1}, 0x00010001")
    a(f"s_mov_b32 s45, {((o.nd * WREG // 12 * 2) << 16) | 0xffff}")
    nsave = P.n
    P.stamp()
    poll(LV_E, "e")
    k = 0
    while k < S:
        w = 4 if S - k >= 4 else (2 if S - k >= 2 else 1)
        sfx = {4: "x4", 2: "x2", 1: ""}[w]
        dst = f"v[{D0+k}:{D0+k+w-1}]" if w > 1 else f"v{D0+k}"
        a(f"buffer_load_dword{sfx} {dst}, v15, s[16:19], 0 offen offset:{4*k} sc1")
        k += w
    poll(LV_D, "d")
    P.stamp()
    prep()
    for i in range(16): issue(i)
    P.stamp()
    lds_wait(a, vt, XW + X_I, 12, "i", 1)
    P.stamp()
    def ppass(tg, inl):
        a(f"v_mov_b32 v{n2c}, v{n2n}")
        a(f"v_mov_b32 v{a0c}, v{a0n}")
        a(f"s_mov_b64 s[{ODDC}:{ODDC+1}], s[{ODDN}:{ODDN+1}]")
        a(f"s_mov_b64 s[{MORC}:{MORC+1}], s[{MORN}:{MORN+1}]")
        if inl: prep()
        for i in range(16):
            r = R0 + 4 * i
            a(f"v_sub_co_u32_dpp v{vt}, vcc, v{n2c}, v{v2U1} row_newbcast:{i} row_mask:0xf bank_mask:0xf")
            a(f"s_and_b64 s[92:93], s[{ODDC}:{ODDC+1}], s[{ROW0}:{ROW0+1}]")
            a(f"s_nor_b64 s[{M0_}:{M0_+1}], vcc, s[92:93]")
            a(f"v_sub_co_u32_dpp v{vt2}, vcc, v{n2c}, v{v2U2} row_newbcast:{i} row_mask:0xf bank_mask:0xf")
            a(f"s_lshr_b64 s[{ODDC}:{ODDC+1}], s[{ODDC}:{ODDC+1}], 1")
            a(f"s_not_b64 s[{M1_}:{M1_+1}], vcc")
            a(f"s_waitcnt vmcnt({15 if inl else 15 - i})")
            a(f"P2_retry{tg}{i}:")
            a(f"v_lshrrev_b32 v{vca}, 18, v{r}")
            a(f"v_lshrrev_b32 v{vcb}, 18, v{r+1}")
            a(f"v_bitop3_b32 v{vca}, v{vca}, v{v3FC}, v{vCb} bitop3:0xea")
            a(f"v_bitop3_b32 v{vcb}, v{vcb}, v{v3FC}, v{vCb} bitop3:0xea")
            a(f"s_mov_b64 exec, s[{M0_}:{M0_+1}]")
            a(f"ds_add_rtn_u32 v{vra}, v{vca}, v{vInc}")
            a(f"s_mov_b64 exec, s[{M1_}:{M1_+1}]")
            a(f"ds_add_rtn_u32 v{vrb}, v{vcb}, v{vInc}")
            a(f"s_mov_b64 exec, -1")
            a(f"v_and_b32 v{vwa}, 0xf00fffff, v{r}")
            a(f"v_and_b32 v{vwb}, 0xf00fffff, v{r+1}")
            a("s_waitcnt lgkmcnt(0)")
            a(f"v_and_b32 v{vra}, 0xfc03ffff, v{vra}")
            a(f"v_and_b32 v{vrb}, 0xfc03ffff, v{vrb}")
            a(f"v_lshrrev_b32 v{vha}, 1, v{vra}")
            a(f"v_lshrrev_b32 v{vhb}, 1, v{vrb}")
            a(f"v_or_b32 v{vt}, v{vra}, v{vrb}")
            a(f"v_cmp_lt_u32 vcc, v{vInc}, v{vt}")
            a(f"s_mov_b64 exec, s[{M0_}:{M0_+1}]")
            a(f"ds_write_b32 v{vra}, v{vwa} offset:{WB}")
            a(f"ds_write_b16 v{vha}, v{r+2} offset:{CB}")
            a(f"s_mov_b64 exec, s[{M1_}:{M1_+1}]")
            a(f"ds_write_b32 v{vrb}, v{vwb} offset:{WB}")
            a(f"ds_write_b16_d16_hi v{vhb}, v{r+2} offset:{CB}")
            a(f"s_mov_b64 exec, -1")
            a(f"s_cbranch_vccnz P2_stall{tg}{i}")
            a(f"s_and_b64 s[92:93], s[{MORC}:{MORC+1}], s[{ROW0}:{ROW0+1}]")
            a(f"s_cbranch_scc1 P2_more{tg}{i}")
            if not inl:
                a("s_cmp_lg_u32 s98, 0")
                a("s_cbranch_scc1 P2_sweep")
                a(f"P2_cont{tg}{i}:")
            a(f"s_lshr_b64 s[{MORC}:{MORC+1}], s[{MORC}:{MORC+1}], 1")
            if inl: issue(i)
    a("s_mov_b32 s98, 0")
    a("s_mov_b32 s47, 0")
    ppass("f", False)
    a("P2_sweep:")
    a("s_cmp_lg_u32 s47, 0")
    a("s_cbranch_scc1 P2_sweep1")
    P.stamp()
    a("s_mov_b32 s49, 1")
    a("s_cmp_ge_u32 s48, s49")
    a("s_cbranch_scc1 P2_ff1")
    a("s_call_b64 s[42:43], P2_next")
    a("P2_ff1:")
    prep()
    for i in range(16): issue(i)
    a("s_call_b64 s[42:43], P2_wait")
    a("P2_pslice:")
    ppass("", True)
    a("s_add_u32 s49, s49, 1")
    a(f"s_cmp_ge_u32 s49, {S}")
    a("s_cbranch_scc1 P2_pdone")
    a("s_cmp_ge_u32 s48, s49")
    a("s_cbranch_scc1 P2_pslice")
    next_round(True)
    a("s_branch P2_pslice")
    a("P2_next:")
    a("s_add_u32 s48, s48, 1")
    if o.maxr:
        a(f"s_cmp_gt_u32 s48, {o.maxr}")
        a("s_cbranch_scc1 P2_giveup")
    a(f"v_mov_b32 v{vt}, s48")
    a("s_waitcnt lgkmcnt(0)")
    a(f"ds_write_b32 v{vPW}, v{vt}")
    a(f"v_xor_b32 v{vCb}, 1024, v{vCb}")
    def pubb2():
        a("s_cmp_lg_u32 s48, 2")
        a("s_cbranch_scc1 P2_next1")
        a("s_call_b64 s[96:97], P2_pubb")
        a("P2_next1:")
    if not o.nl: pubb2()
    a("s_setpc_b64 s[42:43]")
    a("P2_wait:")
    twait(lambda: wait_buffer("n"))
    if o.nl: pubb2()
    a("s_setpc_b64 s[42:43]")
    a("P2_pubb:")
    lds_ticket(a, vS, XW + X_C)
    a("s_cmp_lg_u32 s40, 0")
    a("s_cbranch_scc1 P2_norelb")
    lds_wait(a, vS, XW + X_B, 12, "b", 1)
    arrive(a, vS, LV_B)
    release(a, vS, LV_B, "b")
    a("s_setpc_b64 s[96:97]")
    a("P2_ensure:")
    poll(LV_A, "a")
    a(f"s_mov_b32 s45, {(CHA << 16) | 0xffff}")
    a(f"v_cmp_lt_u32 vcc, s45, v{D0}")
    a("s_cbranch_vccz P2_ens1")
    unhold()
    a("s_call_b64 s[96:97], P2_pubb")
    poll(LV_B, "b")
    a("s_mov_b32 s45, -1")
    a("P2_ens1:")
    a("s_setpc_b64 s[42:43]")
    for tg, i in [(t_, i_) for t_ in ("", "f") for i_ in range(16)]:
        r = R0 + 4 * i
        a(f"P2_stall{tg}{i}:")
        a(f"v_cmp_lt_u32 s[{M0_}:{M0_+1}], v{vInc}, v{vra}")
        a(f"v_cmp_lt_u32 s[{M1_}:{M1_+1}], v{vInc}, v{vrb}")
        next_round(False)
        a(f"s_branch P2_retry{tg}{i}")
        a(f"P2_more{tg}{i}:")
        a(f"s_lshl_b64 exec, s[{ROW0}:{ROW0+1}], {i}")
        a(f"v_max_u32 v{n2c}, 32, v{n2c}")
        a(f"v_subrev_u32 v{n2c}, 32, v{n2c}")
        a(f"v_add_u32 v{a0c}, 192, v{a0c}")
        a(f"s_mov_b64 exec, -1")
        a(f"v_sub_u32_dpp v{vt2}, v{n2c}, v{v2U1} row_newbcast:{i} row_mask:0xf bank_mask:0xf")
        a(f"v_add_u32_dpp v{vt}, v{a0c}, v{vU12} row_newbcast:{i} row_mask:0xf bank_mask:0xf")
        a(f"v_bitop3_b32 v{vt}, v{vt2}, v{vSg}, v{vt} bitop3:0xea")
        a(f"buffer_load_dwordx3 v[{r}:{r+2}], v{vt}, s[12:15], 0 offen sc1")
        if tg:
            a(f"s_bitset1_b32 s47, {i}")
            a("s_cmp_eq_u32 s98, 0")
            a(f"s_cbranch_scc1 P2_cont{tg}{i}")
            a(f"P2_again{i}:")
            a(f"s_bitset0_b32 s47, {i}")
        a(f"v_cmp_lt_u32 vcc, 32, v{n2c}")
        a(f"s_lshr_b64 s[92:93], vcc, {i}")
        a(f"s_and_b64 s[92:93], s[92:93], s[{ROW0}:{ROW0+1}]")
        a(f"s_andn2_b64 s[{MORC}:{MORC+1}], s[{MORC}:{MORC+1}], s[{ROW0}:{ROW0+1}]")
        a(f"s_or_b64 s[{MORC}:{MORC+1}], s[{MORC}:{MORC+1}], s[92:93]")
        a(f"v_sub_co_u32_dpp v{vt2}, vcc, v{n2c}, v{v2U2} row_newbcast:{i} row_mask:0xf bank_mask:0xf")
        a(f"s_not_b64 s[{M1_}:{M1_+1}], vcc")
        a(f"v_sub_co_u32_dpp v{vt2}, vcc, v{n2c}, v{v2U1} row_newbcast:{i} row_mask:0xf bank_mask:0xf")
        a(f"s_not_b64 s[{M0_}:{M0_+1}], vcc")
        a("s_waitcnt vmcnt(0)")
        a(f"s_branch P2_retry{tg}{i}")
    a("P2_sweep1:")
    a("s_mov_b32 s98, 1")
    for i in range(15):
        a(f"s_bitcmp1_b32 s47, {i}")
        a(f"s_cbranch_scc1 P2_again{i}")
    a("s_branch P2_again15")
    a("P2_giveup:")
    unhold()
    a("P2_pdone:")
    a("s_add_u32 s48, s48, 0x40000001")
    a(f"v_mov_b32 v{vt}, s48")
    a("s_waitcnt lgkmcnt(0)")
    a(f"ds_write_b32 v{vPW}, v{vt}")
    a(f"s_setprio {o.eprio}")
    if o.sw and o.swd:
        warm(S - 1, "s3")
        a("s_waitcnt lgkmcnt(0)")
    a("s_load_dwordx2 s[6:7], s[0:1], 24")
    a("s_load_dwordx2 s[34:35], s[0:1], 40")
    a("s_load_dwordx8 s[36:43], s[0:1], 56")
    DS = 30; CEN = 56; RB0 = 64; t = 60; X = 1
    a("v_and_b32 v13, 15, v12")
    a("v_lshrrev_b32 v14, 4, v12")
    a(f"v_lshlrev_b32 v{X}, 7, v14")
    a(f"v_lshl_add_u32 v{X}, v13, 1, v{X}")
    a(f"v_and_b32 v{X+1}, 0xff, v{X}")
    a(f"v_and_b32 v{X+2}, 1, v14")
    a(f"v_lshlrev_b32 v{X+2}, 3, v{X+2}")
    a(f"v_lshrrev_b32 v{X+3}, 1, v14")
    a(f"v_lshlrev_b32 v{X+3}, 10, v{X+3}")
    a(f"v_lshl_add_u32 v{X+3}, v13, 1, v{X+3}")
    a("s_and_b32 s47, s46, 31")
    a("s_lshl_b32 s47, s47, 5")
    a(f"v_add_u32 v{X+3}, s47, v{X+3}")
    a(f"v_cmp_gt_u32 s[88:89], 32, v12")
    a("s_waitcnt vmcnt(0) lgkmcnt(0)")
    a("s_lshr_b32 s47, s46, 5")
    a(f"s_mul_i32 s47, s47, {CL * 2}")
    srd(a, 20, 6, CL * 2, "s47")
    srd(a, 28, 42, 512)
    srd(a, 12, 38, 256)
    srd(a, 16, 36, 256)
    srd(a, 52, 34, 16)
    srd(a, 84, 40, 512)
    for c in range(4): a(f"buffer_load_ushort v{CEN+c}, v{X+2}, s[52:55], 0 offen offset:{2*c}")
    a("s_mul_i32 s47, s3, 25")
    for k in range(25):
        a("s_mul_i32 s50, s47, 57")
        a("s_lshr_b32 s50, s50, 9")
        a("s_min_u32 s50, s50, 4")
        a("s_lshl_b32 s51, s47, 1")
        a("s_sub_u32 s50, s51, s50")
        a("s_lshl_b32 s50, s50, 10")
        a(f"v_add_u32 v{DS+k}, s50, v{X+3}")
        a("s_add_u32 s47, s47, 1")
        a(f"buffer_load_ushort v{DS+k}, v{DS+k}, s[20:23], 0 offen")
    assert all((n * 57) >> 9 == n // 9 for n in range(45))
    Y = 116
    for c in range(4): a(f"buffer_load_ushort v{Y+c}, v{X}, s[28:31], 0 offen offset:{32*c}")
    for c in range(4): a(f"buffer_load_ushort v{Y+4+c}, v{X+1}, s[12:15], 0 offen offset:{32*c}")
    for c in range(4): a(f"buffer_load_ushort v{Y+8+c}, v{X+1}, s[16:19], 0 offen offset:{32*c}")
    for c in range(4): a(f"buffer_load_ushort v{16+c}, v{X}, s[84:87], 0 offen offset:{32*c}")
    a("s_waitcnt vmcnt(40)")
    for c in range(4): a(f"v_lshlrev_b32 v{CEN+c}, 16, v{CEN+c}")
    def rnd():
        if o.nornd: return
        for u in range(2):
            a(f"v_cvt_pk_bf16_f32 v{t+2*u+1}, v{t+2*u}, v{t+2*u+1}")
        for u in range(2):
            a(f"v_lshlrev_b32 v{t+2*u}, 16, v{t+2*u+1}")
            a(f"v_and_b32 v{t+2*u+1}, 0xffff0000, v{t+2*u+1}")
    for k in range(25):
        d = DS + k
        a(f"s_waitcnt vmcnt({40 - k})")
        a(f"v_lshlrev_b32 v{d}, 16, v{d}")
        for c in range(4): a(f"v_sub_f32 v{t+c}, v{d}, v{CEN+c}")
        rnd()
        for c in range(4): a(f"v_mul_f32 v{t+c}, v{t+c}, v{t+c}")
        rnd()
        for c in range(4): a(f"v_mul_f32 v{t+c}, 0xc1200000, v{t+c}")
        rnd()
        for c in range(4): a(f"v_mul_f32 v{t+c}, 0x3fb8aa3b, v{t+c}")
        for c in range(4): a(f"v_exp_f32 v{t+c}, v{t+c}")
        for u in range(2): a(f"v_cvt_pk_bf16_f32 v{RB0+2*k+u}, v{t+2*u}, v{t+2*u+1}")
    a("s_waitcnt vmcnt(0)")
    Z = 30
    for u in range(2):
        a(f"v_lshl_or_b32 v{Z+8+u}, v{Y+2*u+1}, 16, v{Y+2*u}")
        a(f"v_lshl_or_b32 v{Z+10+u}, v{17+2*u}, 16, v{16+2*u}")
        a(f"v_lshl_or_b32 v{Y+4+u}, v{Y+5+2*u}, 16, v{Y+4+2*u}")
        a(f"v_lshl_or_b32 v{Y+8+u}, v{Y+9+2*u}, 16, v{Y+8+2*u}")
    for u in range(2):
        a(f"v_cndmask_b32 v{Z+u}, 0, v{Y+4+u}, s[88:89]")
        a(f"v_cndmask_b32 v{Z+2+u}, v{Y+4+u}, 0, s[88:89]")
        a(f"v_cndmask_b32 v{Z+4+u}, 0, v{Y+8+u}, s[88:89]")
        a(f"v_cndmask_b32 v{Z+6+u}, v{Y+8+u}, 0, s[88:89]")
    a(f"v_lshlrev_b32 v{X}, 3, v12")
    a(f"v_add_u32 v{X+1}, {WT}, v{X}")
    a(f"v_and_b32 v{X+2}, 3, v12")
    a(f"v_lshlrev_b32 v{X+2}, 2, v{X+2}")
    a(f"v_add_u32 v{X+2}, {XW + X_PW}, v{X+2}")
    a("P2_dw:")
    a(f"ds_read_b32 v{vt}, v{X+2}")
    a("s_waitcnt lgkmcnt(0)")
    a(f"v_cmp_gt_u32 vcc, 2.0, v{vt}")
    a("s_cbranch_vccz P2_dg")
    a(f"s_sleep {o.psleep}")
    guard(a)
    a("s_branch P2_dw")
    a("P2_dg:")
    a(f"v_readlane_b32 s48, v{vt}, 0")
    for k in range(1, 4):
        a(f"v_readlane_b32 s50, v{vt}, {k}")
        a("s_max_u32 s48, s48, s50")
    a("s_and_b32 s48, s48, 0x3fffffff")
    wait_buffer("e")
    a("s_bitcmp1_b32 s48, 0")
    a(f"s_cselect_b32 s50, {RB_AT[1] - RB_AT[0]}, 0")
    a(f"s_add_u32 s50, s50, {RB_AT[0]}")
    a(f"s_mul_i32 s51, s3, {25*512}")
    a("s_add_u32 s50, s50, s51")
    a(f"v_add_u32 v{X}, s50, v{X}")
    for k in range(6): a(f"ds_write_b64 v{X+1}, v[{Z+2*k}:{Z+2*k+1}] offset:{512*k}")
    for k in range(25): a(f"ds_write_b64 v{X}, v[{RB0+2*k}:{RB0+2*k+1}] offset:{512*k}")
    lds_count(a, vt, XW + X_R)
    a("s_waitcnt lgkmcnt(0)")
    if o.prof == 1:
        P.stamp(); P.dump(32, 0x80000, 8, 3); P.n = nsave
    a("s_endpgm")
    a("P2_consumer:")
    ACC = 60; G0 = 52; B0 = 44; A2 = 28; vTw = 32; vTr = 33; vM = 24; vC = 20; vX = 16
    bA = 1; bE = 2; bC = 3; bR = 4; vH = 5; vL = 6; vCA = 7; vCI = 8; vA = 9; vE = 10
    a("s_sub_u32 s47, s3, 4")
    a("s_min_u32 s44, s47, 4")
    a("s_lshl_b32 s49, s47, 4")
    a("s_add_u32 s49, s49, s44")
    a("s_cmp_lt_u32 s47, 4")
    a("s_cselect_b32 s50, 17, 16")
    a(f"s_cselect_b32 s84, 0, {MARK & 0xffffff}")
    a(f"s_cselect_b32 s85, {17*WSTR//16-192}, {16*WSTR//16-192}")
    a("s_bfm_b64 s[92:93], s85, 0")
    a(f"v_subrev_u32 v60, 256, v0")
    a(f"v_lshlrev_b32 v60, 4, v60")
    for k in range(1, 4): a(f"v_add_u32 v{60+k}, {4*12288*k}, v60")
    lds_wait(a, vX, XW + X_S, 16, "s", 1)
    P.stamp()
    NL = o.nl; vSt = 34
    for j in range(13):
        k = 12 - j
        a(f"ds_read_b128 v[{68+4*j}:{71+4*j}], v{60+k//4} offset:{STG+12288*(k%4)}")
    a(f"v_mov_b32 v{vSt}, v63")
    q = 36
    for i in range(4): a(f"v_mov_b32 v{q+i}, {MARK}")
    a(f"v_add_u32 v61, {STG + 12288 * K0}, v60")
    a(f"v_add_u32 v62, {STG + 12288 * K1}, v60")
    for k in range(4): a(f"ds_write_b128 v61, v[{q}:{q+3}] offset:{12288 * k}")
    a("s_cmp_ge_u32 s47, 4")
    a("s_cbranch_scc1 P2_notab")
    a(f"v_and_b32 v52, 15, v12")
    a(f"v_lshrrev_b32 v53, 4, v12")
    a(f"v_lshrrev_b32 v56, 2, v52")
    a(f"v_cmp_eq_u32 vcc, v56, v53")
    a(f"v_and_b32 v56, 3, v12")
    a(f"v_lshlrev_b32 v56, 4, v56")
    a(f"v_mov_b32 v54, 0xffff")
    a(f"v_mov_b32 v55, 0")
    a(f"v_cndmask_b32 v54, 0, v54, vcc")
    a(f"v_lshlrev_b64 v[54:55], v56, v[54:55]")
    a(f"v_and_b32 v56, 1, v53")
    a(f"v_lshlrev_b32 v56, 3, v56")
    a(f"v_lshl_add_u32 v52, v52, 4, v56")
    a(f"v_lshrrev_b32 v53, 1, v53")
    a(f"v_lshl_add_u32 v52, v53, 8, v52")
    a(f"v_and_b32 v56, 255, v0")
    a(f"v_lshlrev_b32 v53, 2, v56")
    a(f"v_mul_u32_u24 v56, {WSTR}, v56")
    a(f"v_add_u32 v56, {(64 - CAP) << 20}, v56")
    a(f"v_add_u32 v57, {X1}, v56")
    a(f"ds_write_b64 v52, v[54:55] offset:{LUT}")
    a(f"ds_write_b32 v53, v56")
    a(f"ds_write_b32 v53, v57 offset:1024")
    a("P2_notab:")
    lds_count(a, vX, XW + X_I)
    a("s_waitcnt vmcnt(0)")
    publish_a(a, vX, XW, "ac")
    def store_b(j):
        a(f"buffer_store_dwordx4 v[{68+4*j}:{71+4*j}], v{vSt}, s[20:23], 0 offen {o.p1_st}")
        a(f"v_subrev_u32 v{vSt}, 12288, v{vSt}")
    if o.spr: a(f"s_setprio {o.spr}")
    for j in range(13 - NL): store_b(j)
    if o.spr: a("s_setprio 0")
    for k in range(4): a(f"ds_write_b128 v62, v[{q}:{q+3}] offset:{12288 * k}")
    lds_count(a, vX, XW + X_CW + 4)
    a("v_and_b32 v13, 15, v12")
    a("v_lshrrev_b32 v14, 4, v12")
    a(f"v_and_b32 v0, 3, v12")
    a(f"v_lshlrev_b32 v0, 2, v0")
    a(f"v_add_u32 v0, {XW + X_CW}, v0")
    a(f"s_mul_i32 s51, s49, {WSTR}")
    a(f"s_lshr_b32 s86, s51, 1")
    a(f"s_add_u32 s86, s86, {CB}")
    a(f"v_lshl_add_u32 v{bC}, v14, 4, s86")
    a(f"v_mul_u32_u24 v{vCI}, {WSTR}, v12")
    a(f"s_add_u32 s86, s51, {(64 - CAP) << 20}")
    a(f"v_add_u32 v{vCI}, s86, v{vCI}")
    a(f"s_add_u32 s51, s51, {WB}")
    a(f"v_lshl_add_u32 v{bR}, v12, 4, s51")
    a(f"v_and_b32 v{bA}, 24, v12")
    a(f"v_bfe_u32 v{vA}, v12, 1, 2")
    a(f"v_or_b32 v{bA}, v{bA}, v{vA}")
    a(f"v_lshrrev_b32 v{vA}, 5, v12")
    a(f"v_lshl_or_b32 v{bA}, v{vA}, 2, v{bA}")
    a(f"v_lshl_add_u32 v{bA}, v{bA}, 2, s51")
    a(f"v_and_b32 v{vH}, 1, v12")
    a(f"v_lshlrev_b32 v{vH}, 4, v{vH}")
    a("s_lshl_b32 s87, s47, 10")
    a(f"s_add_u32 s87, s87, {SC}")
    a(f"v_lshl_add_u32 v{vTw}, v12, 4, s87")
    a(f"v_lshl_add_u32 v{vTr}, v12, 3, s87")
    a(f"v_and_b32 v{vA}, 12, v12")
    a(f"v_lshl_add_u32 v{bE}, v14, 5, v{vA}")
    a(f"v_add_u32 v{bE}, s51, v{bE}")
    a(f"v_and_b32 v{vL}, 1, v12")
    a(f"v_lshlrev_b32 v{vL}, 3, v{vL}")
    a(f"v_and_b32 v{vA}, 2, v12")
    a(f"v_lshl_add_u32 v{vL}, v{vA}, 7, v{vL}")
    a(f"v_add_lshl_u32 v{vCA}, v12, s49, 2")
    a(f"v_cmp_gt_u32 vcc, s50, v12")
    a(f"s_mov_b32 s85, {(64 - CAP + 33) << 20}")
    a("s_mov_b32 s94, 0xff000000")
    a("s_mov_b32 s95, 0xff000000")
    a(f"v_cndmask_b32 v{vCA}, 2.0, v{vCA}, vcc")
    a(f"s_lshl_b32 s51, s49, 5")
    a("s_and_b32 s40, s46, 31")
    a(f"s_add_u32 s51, s51, s40")
    a(f"s_lshl_b32 s51, s51, 4")
    a(f"v_add_lshl_u32 v15, v13, s51, 5")
    a(f"v_lshl_add_u32 v15, v14, 3, v15")
    a(f"v_lshlrev_b32 v13, 3, v12")
    for i in range(16): a(f"v_mov_b32 v{B0+i}, 0")
    for i in range(68):
        if not 15 - NL <= i // 4 <= 14: a(f"v_mov_b32 v{ACC+i}, 0")
    a("s_lshr_b32 s40, s46, 5")
    a(f"s_mul_i32 s40, s40, {CL * 32}")
    srd(a, 28, 6, CL * 32, "s40")
    srd(a, 12, 8, CL * 32, "s40")
    def lazy(t):
        j = 13 - NL + t
        store_b(j)
        for u in range(4): a(f"v_mov_b32 v{68+4*j+u}, 0")
    lstep = {}
    for t in range(NL):
        i = o.l0 + t * o.lstep // 2
        assert i <= 14 - NL + t
        lstep.setdefault(i, []).append(t)
    if NL:
        a("s_mov_b32 s42, 1")
        P.stamp()
        a(f"v_mov_b32 v{vX+2}, {XW + X_H}")
        a("P2_pre:")
        a(f"ds_read_b32 v{vX}, v0 offset:{X_PW - X_CW}")
        a(f"ds_read_b32 v{vX+1}, v{vX+2}")
        a("s_waitcnt lgkmcnt(0)")
        a(f"v_cmp_eq_u32 vcc, 0, v{vX}")
        a("s_cbranch_vccz P2_round0")
        a(f"v_cmp_eq_u32 vcc, 0, v{vX+1}")
        a("s_cbranch_vccz P2_flush")
        a(f"s_sleep {o.csleep}")
        guard(a)
        a("s_branch P2_pre")
        a("P2_flush:")
        for t in range(NL): lazy(t)
        a("s_mov_b32 s42, 0")
    a("s_waitcnt vmcnt(0)")
    lds_count(a, vX, XW + X_B)
    if not NL: P.stamp()
    def reads1(par, i, second):
        oa = par * X1 + i * WSTR + (128 if second else 0)
        a(f"ds_read_b32 v{vA}, v{bA} offset:{oa}")
        a(f"ds_read_u8 v{vE}, v{bE} offset:{oa+3}")
        a(f"ds_read_u8 v{vE+1}, v{bE} offset:{oa+19}")
    def reads2(par, i, second):
        oc = (par * X1 + i * WSTR + (128 if second else 0)) // 2
        a(f"v_add_u32 v{vE}, v{vE}, v{vL}")
        a(f"v_add_u32 v{vE+1}, v{vE+1}, v{vL}")
        a(f"ds_read_b64_tr_b16 v[{vM}:{vM+1}], v{vE} offset:{LUT}")
        a(f"ds_read_b64_tr_b16 v[{vM+2}:{vM+3}], v{vE+1} offset:{LUT}")
        a(f"ds_read_b128 v[{vC}:{vC+3}], v{bC} offset:{oc}")
    def addr():
        a(f"v_mad_u32_u24 v{vA}, v{vA}, 32, v{vH}")
    def transpose(g):
        a(f"ds_write_b128 v{vTw}, v[{g}:{g+3}]")
        a(f"ds_read_b64_tr_b16 v[{A2}:{A2+1}], v{vTr}")
        a(f"ds_read_b64_tr_b16 v[{A2+2}:{A2+3}], v{vTr} offset:512")
    def mfma2(i, b):
        c = ACC + 4 * i
        a(f"v_mfma_f32_16x16x32_bf16 v[{c}:{c+3}], v[{A2}:{A2+3}], v[{b}:{b+3}], v[{c}:{c+3}]")
    NS = 17
    for par in range(2):
        a(f"P2_round{par}:")
        def spin():
            a(f"P2_cw{par}:")
            a(f"ds_read_b32 v{vX+1}, v0 offset:{X_PW - X_CW}")
            reads1(par, 0, False)
            a(f"ds_read_b32 v{vX}, v{vCA} offset:{1024*par}")
            a("s_waitcnt lgkmcnt(4)")
            a(f"v_cmp_ge_u32 vcc, s48, v{vX+1}")
            a(f"v_and_b32 v{vX+1}, 0x3fffffff, v{vX+1}")
            a(f"s_cbranch_vccz P2_cg{par}")
            a(f"s_sleep {o.csleep}")
            guard(a)
            a(f"s_branch P2_cw{par}")
            a(f"P2_cg{par}:")
        twait(spin)
        if o.prof == 1:
            a("s_memrealtime s[58:59]")
            a("s_waitcnt lgkmcnt(0)")
            a("s_mov_b32 m0, s48")
            a("v_writelane_b32 v14, s58, m0")
            a("s_add_u32 m0, s48, 16")
            a("v_writelane_b32 v14, s56, m0")
        a(f"v_cmp_lt_u32 vcc, s48, v{vX+1}")
        a(f"s_cbranch_vccz P2_drain{1-par}")
        if o.prof == 1 and par == 0:
            a("s_cmp_lg_u32 s48, 0"); a("s_cbranch_scc1 P2_nostamp"); P.stamp(); a("P2_nostamp:")
        if par: a(f"v_add_u32 v{vX+2}, {X1}, v{vCI}")
        a(f"ds_write_b32 v{vCA}, v{vX+2 if par else vCI} offset:{1024*par}")
        a("s_add_u32 s48, s48, 1")
        for i in range(NS):
            p = (par * NS + i) % 2
            g = G0 + 4 * p; b = B0 + 4 * p
            a("s_waitcnt lgkmcnt(0)")
            if i == NS - 1: a(f"v_or_b32 v{vA}, s84, v{vA}")
            addr()
            a("s_waitcnt vmcnt(1)")
            sk = o.skip and i == 1
            if sk:
                a("s_cmp_lg_u32 s84, 0")
                a(f"s_cbranch_scc1 P2_nt{par}")
            transpose(g)
            if sk: a(f"P2_nt{par}:")
            a(f"buffer_load_dwordx4 v[{g}:{g+3}], v{vA}, s[8:11], 0 offen {o.gfl}")
            if o.skip and i == NS - 1:
                a("s_cmp_lg_u32 s84, 0")
                a(f"s_cbranch_scc1 P2_last{par}")
            reads2(par, i, False)
            if i + 1 < NS: reads1(par, i + 1, False)
            if i == 0: a(f"v_cmp_le_u32 s[90:91], s85, v{vX}")
            if sk: a(f"s_cbranch_scc1 P2_nm{par}")
            a(f"s_waitcnt lgkmcnt({6 if i + 1 < NS else 3})")
            mfma2((i - 2) % NS, b)
            if sk: a(f"P2_nm{par}:")
            a(f"s_bitcmp1_b32 s90, {i}")
            a(f"s_waitcnt lgkmcnt({3 if i + 1 < NS else 0})")
            for u in range(4): a(f"v_and_b32 v{b+u}, v{vM+u}, v{vC+u}")
            a(f"s_cbranch_scc1 P2_slow{par}_{i}")
            a(f"P2_back{par}_{i}:")
            if par == 0 and i in lstep:
                a("s_cmp_lg_u32 s42, 0")
                a(f"s_cbranch_scc1 P2_lazy{i}")
                a(f"P2_lazyb{i}:")
        if par == 0 and NL:
            a("s_cmp_eq_u32 s42, 0")
            a("s_cbranch_scc1 P2_nolz")
            a("s_mov_b32 s42, 0")
            a("s_waitcnt vmcnt(0)")
            lds_count(a, vX, XW + X_B)
            a("P2_nolz:")
        for u in range(4): a(f"v_mov_b32 v{vX+u}, {MARK}")
        for k in range(4):
            if k == 3: a("s_mov_b64 exec, s[92:93]")
            a(f"ds_write_b128 v{bR}, v[{vX}:{vX+3}] offset:{par*X1+1024*k}")
        a("s_mov_b64 exec, 1")
        a(f"v_mov_b32 v{vA}, 1")
        a("s_waitcnt lgkmcnt(0)")
        a(f"ds_add_rtn_u32 v{vA}, v0, v{vA} offset:{4*par}")
        a("s_lshr_b32 s40, s48, 1")
        a("s_mul_i32 s40, s40, 12")
        a("s_waitcnt lgkmcnt(0)")
        a(f"v_readfirstlane_b32 s41, v{vA}")
        a("s_mov_b64 exec, -1")
        a("s_sub_u32 s41, s41, s40")
        a("s_setprio 0")
        a("s_cmp_lt_u32 s41, 4")
        a(f"s_cbranch_scc1 P2_round{1-par}")
        a("s_setprio 1")
        a("s_cmp_lt_u32 s41, 8")
        a(f"s_cbranch_scc1 P2_round{1-par}")
        a("s_setprio 2")
        if par: a("s_branch P2_round0")
    for par in range(2 if o.skip else 0):
        a(f"P2_last{par}:")
        a("s_waitcnt lgkmcnt(0)")
        mfma2(NS - 3, B0 + 4 * ((par * NS + NS - 1) % 2))
        a(f"s_branch P2_back{par}_{NS-1}")
    for i in sorted(lstep):
        a(f"P2_lazy{i}:")
        for t in lstep[i]: lazy(t)
        a(f"s_branch P2_lazyb{i}")
    for par in range(2):
        for i in range(NS):
            a(f"P2_slow{par}_{i}:")
            reads1(par, i, True)
            a("s_waitcnt lgkmcnt(0)")
            a("s_mov_b64 exec, s[94:95]")
            a(f"v_mov_b32 v{vA}, {MARK}")
            a("s_mov_b64 exec, -1")
            addr()
            a(f"buffer_load_dwordx4 v[{vX}:{vX+3}], v{vA}, s[8:11], 0 offen")
            reads2(par, i, True)
            if i + 1 < NS: reads1(par, i + 1, False)
            a(f"s_waitcnt lgkmcnt({3 if i + 1 < NS else 0})")
            for u in range(4): a(f"v_and_b32 v{vM+u}, v{vM+u}, v{vC+u}")
            a("s_waitcnt vmcnt(0)")
            transpose(vX)
            a("s_waitcnt lgkmcnt(0)")
            mfma2(i, vM)
            a(f"s_branch P2_back{par}_{i}")
    vLo = 14; vSo = 15; vRb = 12; vWt = 13
    mreg = [0, 2, 4, 6, 8, 10, 16, 18, 20, 22, 24, 26, ACC, ACC + 2, ACC + 4, ACC + 6, ACC + 8]
    NPRE = 12
    def mload(i):
        a(f"buffer_load_dwordx2 v[{mreg[i]}:{mreg[i]+1}], v{vLo}, s[12:15], 0 offen")
        a(f"v_add_u32 v{vLo}, {512*32}, v{vLo}")
    for par in (1, 0):
        a(f"P2_drain{par}:")
        a("s_waitcnt lgkmcnt(0)")
        if par == 1: P.stamp()
        elif o.prof == 1: P.n -= 1; P.stamp()
        if o.prof == 1:
            srd(a, 52, 32, 0x100000, WS_PROF)
            a("s_lshl_b32 s56, s2, 4")
            a("s_add_u32 s56, s56, s3")
            a("s_lshl_b32 s56, s56, 7")
            a("v_lshrrev_b32 v12, 1, v13")
            a("v_add_u32 v12, s56, v12")
            a("s_bfm_b64 exec, 32, 0")
            a("buffer_store_dword v14, v12, s[52:55], 0 offen")
            a("s_mov_b64 exec, -1")
        a(f"v_mov_b32 v{vLo}, v{vSo}")
        for i in range(NPRE): mload(i)
        a(f"s_mov_b32 s51, {RB_AT[1 - par]}")
        for i in (NS, NS + 1):
            p = (par * NS + i) % 2
            a(f"s_waitcnt vmcnt({NS + 1 - i + NPRE})")
            transpose(G0 + 4 * p)
            a("s_waitcnt lgkmcnt(0)")
            mfma2(i - 2, B0 + 4 * p)
        if par == 1: a("s_branch P2_epi")
    a("P2_epi:")
    WS_ = 32; WR_ = 36; WU = 40; WD = 42; RB = 44; SS = 48; GG = 52; UU = 56; ZZ = 28
    a("s_lshl_b32 s47, s47, 3")
    a("s_add_u32 s47, s47, s44")
    a("s_lshl_b32 s47, s47, 9")
    a("s_add_u32 s51, s51, s47")
    a(f"v_add_u32 v{vRb}, s51, v{vWt}")
    a(f"v_add_u32 v{vWt}, {WT}, v{vWt}")
    lds_wait(a, UU, XW + X_R, 4, "r", 1)
    for k in range(6): a(f"ds_read_b64 v[{WS_+2*k}:{WS_+2*k+1}], v{vWt} offset:{512*k}")
    def rbread(k): a(f"ds_read_b64 v[{RB+2*(k%2)}:{RB+2*(k%2)+1}], v{vRb} offset:{512*k}")
    rbread(0); rbread(1)
    vm = [("m", i) for i in range(NPRE)]
    def mf(d, w, i):
        h = 2 * (i % 2); r = RB + 2 * ((i // 2) % 2)
        a(f"v_mfma_f32_16x16x16_bf16 v[{d}:{d+3}], v[{w+h}:{w+h+1}], v[{r}:{r+1}], 0")
    def pack(i):
        c0 = ACC + 4 * i
        for u in range(2): a(f"v_cvt_pk_bf16_f32 v{c0+u}, v{c0+2*u}, v{c0+2*u+1}")
    def stage_a(i):
        c0 = ACC + 4 * i
        a(f"v_mfma_f32_16x16x16_bf16 v[{ZZ}:{ZZ+3}], v[{WD}:{WD+1}], v[{c0}:{c0+1}], 0")
        mf(SS, WS_, i)
    def stage_b(i):
        c0 = ACC + 4 * i
        if o.pk:
            for c in (0, 2): a(f"v_pk_mul_f32 v[{c0+c}:{c0+c+1}], v[{SS+c}:{SS+c+1}], v[{ZZ+c}:{ZZ+c+1}]")
        else:
            for c in range(4): a(f"v_mul_f32 v{c0+c}, v{SS+c}, v{ZZ+c}")
        pack(i)
        if i + 1 < NS: pack(i + 1)
        mf(GG, WR_, i)
        if i % 2 == 1 and i // 2 + 2 <= 8: rbread(i // 2 + 2)
        a(f"v_mfma_f32_16x16x16_bf16 v[{UU}:{UU+3}], v[{WU}:{WU+1}], v[{c0}:{c0+1}], 0")
        if i + 1 < NS:
            if i % 2 == 1: a(f"s_waitcnt lgkmcnt({1 if i // 2 + 2 <= 8 else 0})")
            stage_a(i + 1)
    def stage_c(i):
        c0 = ACC + 4 * i; m = mreg[i]
        a(f"s_waitcnt vmcnt({len(vm) - 1 - vm.index(('m', i))})")
        a(f"v_lshlrev_b32 v{c0}, 16, v{m}")
        a(f"v_and_b32 v{c0+1}, 0xffff0000, v{m}")
        a(f"v_lshlrev_b32 v{c0+2}, 16, v{m+1}")
        a(f"v_and_b32 v{c0+3}, 0xffff0000, v{m+1}")
        if o.pk:
            for c in (0, 2): a(f"v_pk_fma_f32 v[{c0+c}:{c0+c+1}], v[{UU+c}:{UU+c+1}], v[{GG+c}:{GG+c+1}], v[{c0+c}:{c0+c+1}]")
        else:
            for c in range(4): a(f"v_fma_f32 v{c0+c}, v{UU+c}, v{GG+c}, v{c0+c}")
        for u in range(2): a(f"v_cvt_pk_bf16_f32 v{m+u}, v{c0+2*u}, v{c0+2*u+1}")
        a(f"buffer_store_dwordx2 v[{m}:{m+1}], v{vSo}, s[28:31], 0 offen {o.ost}")
        a(f"v_add_u32 v{vSo}, {512*32}, v{vSo}")
        vm.append(("s", i))
        for k in (NPRE + 2 * i, NPRE + 2 * i + 1):
            if k < NS: mload(k); vm.append(("m", k))
    pack(0)
    a("s_waitcnt lgkmcnt(0)")
    stage_a(0)
    stage_b(0)
    for i in range(NS):
        if i == NS - 1:
            a("s_cmp_lt_u32 s50, 17")
            a("s_cbranch_scc1 P2_fin")
        stage_c(i)
        if i + 1 < NS: stage_b(i + 1)
    a("P2_fin:")
    if o.prof:
        P.stamp()
        a("s_waitcnt vmcnt(0)")
        P.stamp(True)
        P.dump(32, 0x80000, 34, 3)
    a("P2_end:")
    a("s_endpgm")

KD = """.amdhsa_kernel {name}
  .amdhsa_next_free_vgpr 128
  .amdhsa_next_free_sgpr 100
  .amdhsa_accum_offset 128
  .amdhsa_group_segment_fixed_size 0
  .amdhsa_kernarg_size 112
  .amdhsa_user_sgpr_count 2
  .amdhsa_user_sgpr_kernarg_segment_ptr 1
  .amdhsa_system_sgpr_workgroup_id_x 1
  .amdhsa_float_denorm_mode_32 3
.end_amdhsa_kernel
"""

NAME = "gather_scatter__molecular_angular_gemnet__graph_kernel"

def build(o):
    GUARD[0] = 1000000 if o.maxr else 0
    a = Asm(); P = Prof(a, o.prof, 1)
    xw, stg = gen_p1(o, a, P); gen_p2(o, a, P, xw, stg)
    ref = open("gather_scatter__molecular_angular_gemnet__graph.s.ref").read().split("\n")
    head = [l for l in ref if l.startswith(";") and "launch geometry" not in l and "Harness parses" not in l and "@launch" not in l]
    s = "\n".join(head) + "\n"
    s += "; Part 1 partitions the triplets by (input slice, output bin); part 2 gathers / segment-sums with MFMA.\n"
    s += f"; @launch grid=(256,1,1) block=(1024,1,1) lds={xw + 64}\n"
    s += '.amdgcn_target "amdgcn-amd-amdhsa--gfx950"\n.text\n'
    s += f".globl {NAME}\n.p2align 8\n.type {NAME},@function\n{NAME}:\n" + a.finish()
    s += '.section .rodata,"a"\n.p2align 6\n' + KD.format(name=NAME)
    return s

def parser():
    p = argparse.ArgumentParser()
    p.add_argument("-S", type=int, default=11)
    for k, d in dict(prof=0, maxr=0, dstep=4, asplit=12, sw=1, psleep=2, csleep=2, gsleep=24, maxpoll=1000000, eprio=0, nd=4, wsh=50, xp=0, skip=1, l0=9, pfs=14, pfd=2, own=1, swo=36000, swd=0, nornd=0, pp=5, nb=5, pk=1, sw0=4, pf0=3, pfw=0, pfn=5, ldp=1, spr=2, f0=0, cpf=14, nl=5, lstep=0, fuse=1, cmap=2, rot=0).items():
        p.add_argument("--" + k, type=int, default=d)
    p.add_argument("--p1_ld", default="nt")
    p.add_argument("--p1_st", default="sc1")
    p.add_argument("--ost", default="nt")
    p.add_argument("--gfl", default="")
    p.add_argument("-o", default="gather_scatter__molecular_angular_gemnet__graph.s")
    return p

if __name__ == "__main__":
    o = parser().parse_args()
    open(o.o, "w").write(build(o))
```

```python
import sys, argparse
from asmlib import Asm

E = 800000; T = 12800000
NT = 256
CHA = 25088
TILE_N = 50000
TILE_BYTES = 300032
WS_DESC = 0x5000000
WS_PROF = 0x6000000
CAP = 56
WSTR = CAP * 4
MARK = 0x38100000
NG = 196
CL = E // 8
WREG = 9472

GUARD = [0]
def guard(a):
    if GUARD[0]:
        a("s_add_u32 s99, s99, 1")
        a(f"s_cmp_gt_u32 s99, {GUARD[0]}")
        a("s_cbranch_scc1 P2_end")

def slicing(o):
    B = (o.f0 << 26) // 100
    K = ((o.S << 26) - B) // E
    return K, B

def srd(a, d, base, size, off=None):
    if off is None:
        a(f"s_mov_b32 s{d}, s{base}")
        a(f"s_mov_b32 s{d+1}, s{base+1}")
    else:
        a(f"s_add_u32 s{d}, s{base}, {off}")
        a(f"s_addc_u32 s{d+1}, s{base+1}, 0")
    a(f"s_mov_b32 s{d+2}, {size}")
    a(f"s_mov_b32 s{d+3}, 0x20000")

class Prof:
    def __init__(self, a, on, fuse=0): self.a = a; self.on = on; self.n = 0; self.fuse = fuse
    def stamp(self, key=False):
        if not self.on or (self.on == 2 and not key): return
        a = self.a
        a("s_waitcnt lgkmcnt(0)")
        a("s_memtime s[58:59]")
        a("s_waitcnt lgkmcnt(0)")
        a(f"s_mov_b32 s{60+self.n}, s58")
        a("s_memrealtime s[58:59]")
        a("s_waitcnt lgkmcnt(0)")
        a(f"s_mov_b32 s{72+self.n}, s58")
        self.n += 1
    def dump(self, wsreg, region, vt, wave_sreg):
        if not self.on: return
        a = self.a
        srd(a, 52, wsreg, 0x100000, WS_PROF + region)
        a(f"s_lshl_b32 s56, s2, 4")
        a(f"s_add_u32 s56, s56, s{wave_sreg}")
        a(f"s_lshl_b32 s56, s56, 7")
        a("s_mov_b64 exec, 1")
        for i in range(self.n):
            a(f"v_mov_b32 v{vt}, s56")
            a(f"v_mov_b32 v{vt+1}, s{60+i}")
            a(f"buffer_store_dword v{vt+1}, v{vt}, s[52:55], 0 offen offset:{4*i}")
            a(f"v_mov_b32 v{vt+1}, s{72+i}")
            a(f"buffer_store_dword v{vt+1}, v{vt}, s[52:55], 0 offen offset:{64+4*i}")
        a(f"v_mov_b32 v{vt+1}, s71")
        a(f"buffer_store_dword v{vt+1}, v{vt}, s[52:55], 0 offen offset:124")
        a("s_waitcnt vmcnt(0)")
        a("s_mov_b64 exec, -1")

def gen_p1(o, a, P):
    S = o.S
    NK = S * 256
    KSL, BSL = slicing(o)
    CN = 16; SCR = CN + NK * 4; STG = SCR + 64; XW = STG + CHA * 6
    W0 = 4; KP0 = 53; C0 = 78; TO = 103; T0 = 104
    ld = o.p1_ld; st = o.p1_st
    vmq = []
    def issue_out(r):
        b = C0 + 4 * (r % 6)
        a(f"buffer_load_dwordx4 v[{b}:{b+3}], v2, s[12:15], s36 offen {ld}")
        a(f"s_add_u32 s36, s36, {CS * 16384}")
        vmq.append(("o", r))
    def issue_in(r):
        w = W0 + 4 * r
        a(f"buffer_load_dwordx4 v[{w}:{w+3}], v2, s[8:11], s4 offen {ld}")
        a(f"s_add_u32 s4, s4, {CS * 16384}")
        vmq.append(("i", r))
    seq = [("i", r) for r in range(o.sk)]
    for r in range(12):
        seq.append(("o", r))
        if r + o.sk < 12: seq.append(("i", r + o.sk))
    def issue_next(n):
        for _ in range(n):
            if seq:
                k, r = seq.pop(0)
                (issue_in if k == "i" else issue_out)(r)
    def issue_ang(r):
        b = C0 + 2 * r
        a(f"buffer_load_dwordx2 v[{b}:{b+1}], v2, s[16:19], s37 offen {ld}")
        a(f"s_add_u32 s37, s37, {CS * 8192}")
    DP = o.ldp
    CS = o.cs
    a("s_load_dwordx2 s[8:9], s[0:1], 8")
    a("s_load_dwordx2 s[12:13], s[0:1], 16")
    a("s_cmp_ge_u32 s2, 256")
    a("s_cbranch_scc1 P2_end")
    if o.cpf:
        a("s_getpc_b64 s[40:41]")
        a("P1_pc:")
        a("s_lshr_b32 s45, s2, 3")
        a(f"s_mulk_i32 s45, {o.cpf}")
        a(f"s_mov_b32 s42, P2_end-P1_pc")
        a("s_mov_b32 s43, 0x20000")
        a(f"v_add_lshl_u32 v{T0+23}, v0, s45, 7")
        a(f"v_cmp_gt_u32 vcc, {o.cpf}, v0")
        a("s_and_b64 exec, exec, vcc")
        a("s_cbranch_execz P1_nopf")
        a(f"buffer_load_dword v{T0+23}, v{T0+23}, s[40:43], 0 offen")
        a("P1_nopf:")
        a("s_mov_b64 exec, -1")
    a(f"s_mov_b32 s10, {T * 4}")
    a("s_mov_b32 s11, 0x20000")
    a("s_mov_b64 s[14:15], s[10:11]")
    if o.cg < 14:
        assert CS == 256
        a(f"s_lshl_b32 s36, s2, {o.cg}")
    elif CS == 1:
        a(f"s_mul_i32 s36, s2, {12 * 16384}")
    else:
        a(f"s_andn2_b32 s36, s2, {CS - 1}")
        a(f"s_mulk_i32 s36, 11")
        a(f"s_add_u32 s36, s36, s2")
        a(f"s_lshl_b32 s36, s36, 14")
    a("s_lshr_b32 s37, s36, 1")
    a("s_mov_b32 s4, s36")
    a("v_lshlrev_b32 v1, 4, v0")
    if o.cg < 14:
        a(f"v_lshrrev_b32 v2, {o.cg}, v1")
        a(f"v_mul_u32_u24 v2, {255 << o.cg}, v2")
        a("v_add_u32 v2, v2, v1")
    else:
        a("v_mov_b32 v2, v1")
    a("s_waitcnt lgkmcnt(0)")
    P.stamp(True)
    issue_next(o.nf)
    if GUARD[0]: a("s_mov_b32 s99, 0")
    a("s_load_dwordx2 s[16:17], s[0:1], 32")
    a("s_load_dwordx2 s[30:31], s[0:1], 48")
    a("s_load_dwordx2 s[32:33], s[0:1], 104")
    a("s_load_dwordx2 s[94:95], s[0:1], 96")
    a("s_load_dwordx2 s[48:49], s[0:1], 0")
    a("s_load_dwordx2 s[86:87], s[0:1], 88")
    a("v_mov_b32 v3, 1")
    for i in range(4): a(f"v_mov_b32 v{T0+i}, 0")
    a(f"ds_write_b128 v1, v[{T0}:{T0+3}]")
    a(f"v_lshrrev_b32 v{T0+4}, 6, v0")
    a(f"v_readfirstlane_b32 s3, v{T0+4}")
    a(f"s_mul_i32 s34, s2, 848")
    a(f"s_add_u32 s34, s34, {3072*4096}")
    a(f"v_add_u32 v109, s34, v0")
    a(f"v_cmp_gt_u32 vcc, 848, v0")
    a(f"v_lshlrev_b32 v110, 2, v109")
    a(f"v_lshlrev_b32 v109, 1, v109")
    a(f"v_cndmask_b32 v110, 2.0, v110, vcc")
    a(f"v_cndmask_b32 v109, 2.0, v109, vcc")
    a(f"buffer_load_dword v{TO}, v110, s[12:15], 0 offen {ld}")
    a(f"buffer_load_dword v{W0+48}, v110, s[8:11], 0 offen {ld}")
    a(f"s_mov_b32 s18, {T * 2}")
    a("s_mov_b32 s19, 0x20000")
    a("s_waitcnt lgkmcnt(0)")
    a("s_load_dword s35, s[30:31], 0")
    a(f"buffer_load_ushort v{C0+24}, v109, s[16:19], 0 offen {ld}")
    vmq.extend([("t", 0), ("t", 1), ("t", 2)])
    a("s_mov_b32 s38, 0x7c00")
    MG = -(-(1 << 19) // S)
    assert all((n * MG) >> 19 == n // S for n in range(4096))
    a(f"s_mov_b32 s40, {(-(1024*S - 4)) & 0xffffffff}")
    for j in range(4):
        t = T0 + 16 + j
        a(f"v_lshl_add_u32 v{t}, v0, 2, {j}")
        a(f"v_mul_u32_u24 v{T0}, {MG}, v{t}")
        a(f"v_lshrrev_b32 v{T0}, 19, v{T0}")
        a(f"v_lshlrev_b32 v{t}, 10, v{t}")
        a(f"v_mad_i32_i24 v{t}, v{T0}, s40, v{t}")
        a(f"v_add_u32 v{t}, {STG}, v{t}")
    srd(a, 20, 32, NT * NT * S * 4, WS_DESC)
    srd(a, 24, 94, 256)
    a("s_mov_b32 s44, 0")
    a(f"s_mov_b32 s39, {KSL}")
    a(f"v_mov_b32 v{T0+22}, {(BSL - (CL * KSL if o.own == 1 else 0)) & 0xffffffff}")
    a(f"s_mov_b32 s5, {CL}")
    a(f"v_mov_b32 v{T0+20}, 0x7c")
    a(f"v_mov_b32 v{T0+21}, 0x0ff00000")
    a("s_barrier")
    KX = -(-(1 << 28) // (CL // 16))
    assert all(((k * (CL // 16) + d) * KX) >> 28 == (k * (CL // 16) + d) // (CL // 16) for k in range(1, 9) for d in (-1, 0) if k < 8 or d < 0)
    def key(O, W, t):
        x, xb, d, n = t, t + 1, t + 2, t + 3
        a(f"v_and_b32 v{x}, -16, v{O}")
        a(f"v_mul_hi_u32_u24 v{x}, {KX}, v{x}")
        a(f"v_mul_u32_u24 v{xb}, {CL}, v{x}")
        a(f"v_sub_u32 v{d}, v{W}, v{xb}")
        a(f"v_sub_u32 v{O}, v{O}, v{xb}")
        if o.own == 1:
            a(f"v_cmp_gt_u32 s[42:43], s5, v{d}")
            a(f"v_ashrrev_i32 v{n}, 31, v{d}")
            a(f"v_add_u32 v{d}, {8 * CL}, v{d}")
            a(f"v_and_b32 v{n}, {CL}, v{n}")
            a(f"v_add_u32 v{n}, v{n}, v{W}")
            a(f"v_cndmask_b32 v{n}, v{n}, v{d}, s[42:43]")
        elif o.own == 2:
            a(f"v_subrev_u32 v{d}, {CL}, v{d}")
            a(f"v_add_u32 v{n}, {E}, v{d}")
            a(f"v_min_u32 v{n}, v{n}, v{d}")
        else:
            a(f"v_mov_b32 v{n}, v{W}")
        a(f"v_lshlrev_b32 v{xb}, 11, v{O}")
        a(f"v_lshl_or_b32 v{W}, v{O}, 28, v{W}")
        a(f"v_mad_u32_u24 v{n}, v{n}, s39, v{T0+22}")
        a(f"v_lshrrev_b32 v{O}, 2, v{O}")
        a(f"v_bitop3_b32 v{W}, v{xb}, v{T0+21}, v{W} bitop3:0xea")
        a(f"v_and_b32_sdwa v{n}, v{n}, s38 dst_sel:DWORD dst_unused:UNUSED_PAD src0_sel:WORD_1 src1_sel:DWORD")
        a(f"v_lshl_or_b32 v{n}, v{x}, 7, v{n}")
        a(f"v_bitop3_b32 v{O}, v{O}, v{T0+20}, v{n} bitop3:0xea")
    done = [0]
    def wait_for(ops):
        while True:
            need = max(vmq.index(x) for x in ops) + 1 if all(x in vmq for x in ops) else None
            if need is not None and need <= done[0]: return
            idx = [k for k in range(done[0], len(vmq)) if vmq[k][0] != "t"]
            tgt = idx[min(o.ng, len(idx)) - 1] + 1 if idx else len(vmq)
            a(f"s_waitcnt vmcnt({len(vmq) - tgt})")
            n = sum(1 for k in range(done[0], tgt) if vmq[k][0] != "t")
            done[0] = tgt
            issue_next(n)
    for r in range(12):
        wait_for([("o", r), ("i", r)])
        assert all(k != "o" or q < r + 6 for k, q in vmq)
        if r == 2:
            wait_for([("t", 2)])
            key(TO, W0 + 48, T0)
            a(f"v_cndmask_b32 v{KP0+24}, 2.0, v{TO}, vcc")
            a(f"ds_add_u32 v{KP0+24}, v3 offset:{CN}")
        b = C0 + 4 * (r % 6)
        for j in range(4):
            key(b + j, W0 + 4 * r + j, T0 + 4 * j)
            a(f"ds_add_u32 v{b+j}, v3 offset:{CN}")
        a(f"v_lshl_or_b32 v{KP0+2*r}, v{b+1}, 16, v{b}")
        a(f"v_lshl_or_b32 v{KP0+2*r+1}, v{b+3}, 16, v{b+2}")
    a("v_lshrrev_b32 v2, 1, v2")
    a("s_waitcnt lgkmcnt(0)")
    a("s_barrier")
    P.stamp()
    c = T0; x = T0 + 4; tot = T0 + 5; y = T0 + 6
    a(f"s_cmp_ge_u32 s3, {S}")
    a("s_cbranch_scc1 P1_scan1")
    a(f"ds_read_b128 v[{c}:{c+3}], v1 offset:{CN}")
    a("s_waitcnt lgkmcnt(0)")
    a(f"v_add_u32 v{c+1}, v{c}, v{c+1}")
    a(f"v_add_u32 v{c+2}, v{c+1}, v{c+2}")
    a(f"v_add_u32 v{c+3}, v{c+2}, v{c+3}")
    a(f"v_mov_b32 v{x}, v{c+3}")
    for sh in (1, 2, 4, 8):
        a(f"v_add_u32_dpp v{x}, v{x}, v{x} row_shr:{sh} row_mask:0xf bank_mask:0xf bound_ctrl:1")
    a(f"v_add_u32_dpp v{x}, v{x}, v{x} row_bcast:15 row_mask:0xa bank_mask:0xf")
    a(f"v_add_u32_dpp v{x}, v{x}, v{x} row_bcast:31 row_mask:0xc bank_mask:0xf")
    a(f"v_readlane_b32 s40, v{x}, 63")
    a(f"s_lshl_b32 s41, s3, 2")
    a(f"v_mov_b32 v{y}, s41")
    a(f"v_mov_b32 v{y+1}, s40")
    a(f"ds_write_b32 v{y}, v{y+1} offset:{SCR}")
    a("s_waitcnt lgkmcnt(0)")
    a("P1_scan1:")
    a("s_barrier")
    a(f"s_cmp_ge_u32 s3, {S}")
    a("s_cbranch_scc1 P1_scan2")
    a(f"v_and_b32 v{y}, 63, v0")
    a(f"v_lshlrev_b32 v{y+1}, 2, v{y}")
    a(f"ds_read_b32 v{y+2}, v{y+1} offset:{SCR}")
    a(f"v_cmp_gt_u32 s[42:43], s3, v{y}")
    a(f"v_sub_u32 v{x}, v{x}, v{c+3}")
    a("s_waitcnt lgkmcnt(0)")
    a(f"v_cndmask_b32 v{y+2}, 0, v{y+2}, s[42:43]")
    for sh in (1, 2, 4, 8):
        a(f"v_add_u32_dpp v{y+2}, v{y+2}, v{y+2} row_shr:{sh} row_mask:0xf bank_mask:0xf bound_ctrl:1")
    a(f"v_readlane_b32 s40, v{y+2}, 15")
    s0 = T0 + 12
    a(f"v_add_u32 v{s0}, s40, v{x}")
    for j in range(3): a(f"v_add_u32 v{s0+1+j}, v{s0}, v{c+j}")
    a(f"ds_write_b128 v1, v[{s0}:{s0+3}] offset:{CN}")
    a(f"ds_write_b128 v1, v[{s0}:{s0+3}] offset:{STG}")
    a(f"v_mov_b32 v{c}, {STG + NK * 4}")
    a(f"v_mov_b32 v{c+1}, {TILE_N}")
    a(f"ds_write_b32 v{c}, v{c+1}")
    a("s_waitcnt lgkmcnt(0)")
    a("P1_scan2:")
    a("s_barrier")
    a(f"s_cmp_ge_u32 s3, {S}")
    a("s_cbranch_scc1 P1_nodesc")
    for j in range(4):
        a(f"ds_read2_b32 v[{T0+2*j}:{T0+2*j+1}], v{T0+16+j} offset0:0 offset1:1")
    a(f"s_mul_i32 s40, s2, {256*S*4}")
    lds_count(a, T0 + 8, 4)
    for j in range(4): a(f"v_lshl_or_b32 v{T0+12+j}, v{T0+2*j+1}, 16, v{T0+2*j}")
    a(f"buffer_store_dwordx4 v[{T0+12}:{T0+15}], v1, s[20:23], s40 offen {st}")
    a("P1_nodesc:")
    a(f"s_mul_i32 s40, s3, {WREG - 1024}")
    a(f"s_add_u32 s40, s40, {9*1024}")
    a(f"v_add_u32 v{TO}, s40, v1")
    srd(a, 8, 48, E * 32)
    a(f"s_mul_i32 s41, s2, {o.pfn * 64}")
    a(f"s_sub_u32 s41, s41, {o.pfw * 64}")
    a("v_add_lshl_u32 v1, v0, s41, 7")
    if o.pp & 1: a("s_setprio 3")
    def atomics(n):
        t = T0 + 4 * (n % 2)
        if n == 12:
            a(f"ds_add_rtn_u32 v{t}, v{KP0+24}, v3 offset:{CN}"); return 1
        for j in range(4):
            kp = KP0 + 2 * n + j // 2
            if j % 2 == 0: a(f"v_and_b32 v{t+j}, 0xffff, v{kp}")
            else: a(f"v_lshrrev_b32 v{t+j}, 16, v{kp}")
            a(f"ds_add_rtn_u32 v{t+j}, v{t+j}, v3 offset:{CN}")
        return 4
    a(f"s_cmp_ge_u32 s3, {o.asplit}")
    a("s_cbranch_scc1 P1_ang1")
    for n in range(o.an0): issue_ang(n)
    a("P1_ang1:")
    atomics(0)
    for n in range(13):
        k = atomics(n + 1) if n < 12 else 0
        if o.an0 + n < 12:
            a(f"s_cmp_ge_u32 s3, {o.asplit}")
            a(f"s_cbranch_scc1 P1_an{n}")
            issue_ang(o.an0 + n)
            a(f"P1_an{n}:")
        a(f"s_waitcnt lgkmcnt({k})")
        t = T0 + 4 * (n % 2); u = T0 + 8
        if n < 12:
            a(f"v_lshl_or_b32 v{KP0+2*n}, v{t+1}, 16, v{t}")
            a(f"v_lshl_or_b32 v{KP0+2*n+1}, v{t+3}, 16, v{t+2}")
        else:
            a(f"v_mov_b32 v{u}, 0xffff")
            a(f"v_cndmask_b32 v{KP0+24}, v{u}, v{t}, vcc")
    a(f"s_cmp_lt_u32 s3, {o.asplit}")
    a("s_cbranch_scc1 P1_ang2")
    for n in range(12): issue_ang(n)
    a("P1_ang2:")
    a("s_lshl_b32 s35, s35, 16")
    a("s_cmp_eq_u32 s35, 1.0")
    a("s_cbranch_scc1 P1_f1")
    a("s_waitcnt vmcnt(0)")
    for n in range(25):
        cr = C0 + n; t = T0
        a(f"v_lshlrev_b32 v{t}, 16, v{cr}")
        a(f"v_and_b32 v{t+1}, 0xffff0000, v{cr}")
        a(f"v_mul_f32 v{t}, s35, v{t}")
        a(f"v_mul_f32 v{t+1}, s35, v{t+1}")
        a(f"v_cvt_pk_bf16_f32 v{cr}, v{t}, v{t+1}")
    a("P1_f1:")
    lds_wait(a, T0, 4, S, "q", 0)
    def addrs(n, h, u, base):
        a(f"v_mad_u32_u16 v{u}, v{KP0+n}, 6, {base}" + (" op_sel:[1,0,0,0]" if h else ""))
        a(f"v_and_b32 v{u+1}, 2, v{u}")
        a(f"v_sub_u32 v{u}, v{u}, v{u+1}")
        a(f"v_sub_u32 v{u+1}, v{u}, v{u+1}")
    for n in range(25):
        cr = C0 + n; t = T0 + 6 * (n % 2)
        if o.pp & 1 and n in (0, 9, 17): a(f"s_setprio {2 - n // 8}")
        if o.pf0 == 3:
            if n == 0: a("s_waitcnt vmcnt(0)")
            for w in range(o.pfn):
                if o.pfs + (w * o.pfd) // 2 == n:
                    a(f"s_cmp_lg_u32 s3, {o.pfw + w}")
                    a(f"s_cbranch_scc1 P1_npf{w}")
                    a("buffer_load_dword v1, v1, s[8:11], 0 offen")
                    a(f"P1_npf{w}:")
        elif n % 2 == 0 and n < 24: a(f"s_waitcnt vmcnt({11 - n // 2})")
        if n == 0:
            a(f"s_cmp_ge_u32 s3, {S}")
            a("s_cbranch_scc1 P1_noe")
            a("s_waitcnt vmcnt(0)")
            lds_ticket(a, 2, 8)
            a(f"s_cmp_lg_u32 s40, {S-1}")
            a("s_cbranch_scc1 P1_noe")
            arrive(a, 2, LV_E)
            a("s_mov_b32 s44, 1")
            a("P1_noe:")
        if n == 14:
            a("s_cmp_eq_u32 s44, 0")
            a("s_cbranch_scc1 P2_norele")
            release(a, 2, LV_E, "e")
        a(f"v_lshlrev_b32 v{t}, 16, v{cr}")
        a(f"v_and_b32 v{t+1}, 0xffff0000, v{cr}")
        a(f"v_mul_f32 v{t}, 0.15915494, v{t}")
        a(f"v_mul_f32 v{t+1}, 0.15915494, v{t+1}")
        a(f"v_fract_f32 v{t}, v{t}")
        a(f"v_fract_f32 v{t+1}, v{t+1}")
        a(f"v_cos_f32 v{t}, v{t}")
        a(f"v_cos_f32 v{t+1}, v{t+1}")
        for h in range(2 if n < 24 else 1):
            u = t + 2 + 2 * h
            addrs(n, h, u, 0)
            a(f"ds_write_b32 v{u}, v{W0+2*n+h} offset:{STG}")
        a(f"v_cvt_pk_bf16_f32 v{cr}, v{t}, v{t+1}")
        a(f"ds_write_b16 v{t+3}, v{cr} offset:{STG+8}")
        if n < 24: a(f"ds_write_b16_d16_hi v{t+5}, v{cr} offset:{STG+8}")
    a(f"s_mul_i32 s40, s2, {TILE_BYTES}")
    srd(a, 20, 32, CHA * 6, "s40")
    a(f"v_subrev_u32 v2, {9*1024}, v{TO}")
    a("s_mov_b32 s44, 0")
    if o.pf0 == 2:
        a(f"s_sub_u32 s40, s3, {o.pfw}")
        a(f"s_cmp_ge_u32 s40, {o.pfn}")
        a("s_cbranch_scc1 P1_nopf0")
        a("buffer_load_dword v1, v1, s[8:11], 0 offen")
        a("P1_nopf0:")
    a("s_waitcnt lgkmcnt(0)")
    a("s_barrier")
    P.stamp()
    a(f"s_cmp_lg_u32 s3, 15")
    a("s_cbranch_scc1 P1_noclr")
    a(f"v_and_b32 v3, 15, v0")
    a(f"v_lshlrev_b32 v3, 2, v3")
    a(f"v_add_u32 v3, {XW}, v3")
    a(f"v_mov_b32 v{T0}, 0")
    a(f"ds_write_b32 v3, v{T0}")
    a("P1_noclr:")
    def rd(k):
        t = T0 + 4 * (k % 6)
        a(f"ds_read_b128 v[{t}:{t+3}], v2 offset:{STG + 1024 * (9 - k)}")
    def store(k):
        t = T0 + 4 * (k % 6)
        if k == 0: a("s_mov_b64 exec, 0xffff")
        a(f"buffer_store_dwordx4 v[{t}:{t+3}], v{TO}, s[20:23], 0 offen {st}")
        if k == 0: a("s_mov_b64 exec, -1")
        a(f"v_subrev_u32 v{TO}, 1024, v{TO}")
    NB = o.nb
    for k in range(6): rd(k)
    for k in range(NB):
        a(f"s_waitcnt lgkmcnt({min(5, 9-k)})")
        store(k)
        if k + 6 < 10: rd(k + 6)
    a(f"s_waitcnt vmcnt({NB}) lgkmcnt(0)")
    a(f"s_cmp_ge_u32 s3, {o.nd}")
    a("s_cbranch_scc1 P1_nod")
    for k in range(NB, 10): store(k)
    a("s_waitcnt vmcnt(0)")
    lds_ticket(a, T0, 0)
    a(f"s_cmp_lg_u32 s40, {o.nd-1}")
    a("s_cbranch_scc1 P1_nod")
    arrive(a, T0, LV_D)
    a("s_mov_b32 s44, 1")
    a("P1_nod:")
    a(f"s_mov_b32 s45, {(-CHA*6) & 0xffffffff}")
    a("s_barrier")
    P.stamp()
    nnow = NB
    for n in range(25):
        if o.pp & 2 and n in (0, 9, 17): a(f"s_setprio {2 - n // 8}")
        if o.pp & 4 and n in (0, 9, 17):
            if n == 0: a("s_setprio 3")
            a("s_cmp_lt_u32 s3, 4")
            a(f"s_cbranch_scc1 P1_pr{n}")
            a(f"s_setprio {2 - n // 8}")
            a(f"P1_pr{n}:")
        if n == 1:
            a("s_cmp_eq_u32 s44, 0")
            a("s_cbranch_scc1 P2_noreld")
            release(a, T0, LV_D, "d")
        if n % o.dstep == 1 and nnow < 10:
            a(f"s_cmp_lt_u32 s3, {o.nd}")
            a(f"s_cbranch_scc1 P1_ns{n}")
            store(nnow); nnow += 1
            a(f"P1_ns{n}:")
        for h in range(2 if n < 24 else 1):
            u = 2 * h
            addrs(n, h, u, "s45")
            a(f"ds_write_b32 v{u}, v{W0+2*n+h} offset:{STG}")
            a(f"ds_write_b16{'_d16_hi' if h else ''} v{u+1}, v{C0+n} offset:{STG+8}")
    assert nnow == 10
    lds_count(a, 4, XW + X_S)
    a(f"s_mul_i32 s40, s2, {TILE_BYTES}")
    a(f"s_add_u32 s40, s40, {CHA*6}")
    srd(a, 20, 32, (TILE_N - CHA) * 6, "s40")
    return XW, STG

LV_A, LV_B, LV_D, LV_E = 0, 1, 2, 3
X_A, X_S, X_X, X_I, X_B, X_R, X_C, X_H, X_CW, X_PW = 0, 4, 8, 12, 16, 20, 24, 28, 32, 48

def arrive(a, t, level):
    a(f"v_mov_b32 v{t}, 0")
    a(f"v_mov_b32 v{t+1}, 1")
    a("s_mov_b64 exec, 1")
    a(f"buffer_atomic_add v{t+1}, v{t}, s[24:27], 0 offen offset:{32*level} sc0 sc1")
    a("s_mov_b64 exec, -1")

def release(a, t, level, tag):
    a("s_waitcnt vmcnt(0)")
    a(f"v_readfirstlane_b32 s40, v{t+1}")
    a("s_cmp_lg_u32 s40, 255")
    a(f"s_cbranch_scc1 P2_norel{tag}")
    a("s_mov_b64 exec, 1")
    a(f"buffer_store_dword v{t+1}, v{t}, s[24:27], 0 offen offset:{128+4*level} sc1")
    a("s_mov_b64 exec, -1")
    a(f"P2_norel{tag}:")

def lds_count(a, t, word):
    a(f"v_mov_b32 v{t}, {word}")
    a(f"v_mov_b32 v{t+1}, 1")
    a("s_mov_b64 exec, 1")
    a("s_waitcnt lgkmcnt(0)")
    a(f"ds_add_u32 v{t}, v{t+1}")
    a("s_mov_b64 exec, -1")

def lds_wait(a, t, word, n, tag, sleep):
    a(f"v_mov_b32 v{t}, {word}")
    a(f"P2_lw{tag}:")
    a(f"ds_read_b32 v{t+1}, v{t}")
    a("s_waitcnt lgkmcnt(0)")
    a(f"v_readfirstlane_b32 s40, v{t+1}")
    a(f"s_cmp_ge_u32 s40, {n}")
    a(f"s_cbranch_scc1 P2_lg{tag}")
    if sleep: a(f"s_sleep {sleep}")
    guard(a)
    a(f"s_branch P2_lw{tag}")
    a(f"P2_lg{tag}:")

def lds_ticket(a, t, word):
    a(f"v_mov_b32 v{t}, {word}")
    a(f"v_mov_b32 v{t+1}, 1")
    a("s_mov_b64 exec, 1")
    a(f"ds_add_rtn_u32 v{t+1}, v{t}, v{t+1}")
    a("s_mov_b64 exec, -1")
    a("s_waitcnt lgkmcnt(0)")
    a(f"v_readfirstlane_b32 s40, v{t+1}")

def publish_a(a, t, XW, tag):
    lds_ticket(a, t, XW + X_A)
    a("s_cmp_lg_u32 s40, 15")
    a(f"s_cbranch_scc1 P2_norel{tag}")
    arrive(a, t, LV_A)
    release(a, t, LV_A, tag)

def gen_p2(o, a, P, XW, STG):
    S = o.S
    uid = [0]
    LUT = 2048; CB = 2560; WSZ = NG * WSTR
    RBSZ = 100 * 512
    X1 = RBSZ + 32
    WT = CB + WSZ // 2 + 16
    WB = CB + X1 // 2 + WSZ // 2 + 16
    RB_AT = (WB, WB + WSZ + 32)
    K0 = (WB - STG) // 12288; K1 = (WB + X1 - STG) // 12288
    assert STG + 12288 * (K0 + 4) >= WB + WSZ + 32 and STG + 12288 * K1 >= WB + WSZ + 32 and STG + 12288 * (K1 + 4) >= WB + X1 + WSZ + 64
    SC = STG + 12288 * (K1 + 4)
    assert WT + 3072 <= CB + X1 // 2 and WB < 65536 and SC + 12288 <= XW and WB % 16 == 0 and X1 % 32 == 0
    if o.xp:
        a("s_bfe_u32 s46, s2, 0x20001")
        a("s_bitcmp0_b32 s2, 0")
        a("s_cselect_b32 s47, 4, 0")
        a("s_add_u32 s46, s46, s47")
    else:
        a("s_and_b32 s46, s2, 7")
    a("s_lshl_b32 s46, s46, 5")
    a("s_lshr_b32 s47, s2, 3")
    a("s_add_u32 s46, s46, s47")
    a("v_mbcnt_lo_u32_b32 v12, -1, 0")
    a("v_mbcnt_hi_u32_b32 v12, -1, v12")
    a("s_lshl_b32 s40, s3, 6")
    a("v_add_u32 v0, s40, v12")
    srd(a, 8, 48, E * 32)
    srd(a, 12, 32, NT * TILE_BYTES)
    srd(a, 16, 32, NT * NT * S * 4, WS_DESC)
    a("s_mov_b64 s[6:7], s[86:87]")
    if o.prof: a("s_mov_b32 s71, 0")
    a("s_mov_b32 s48, 0")
    a("s_cmp_ge_u32 s3, 4")
    a("s_cbranch_scc1 P2_consumer")
    def twait(body):
        if o.prof == 1:
            a("s_waitcnt lgkmcnt(0)")
            a("s_memtime s[56:57]")
            a("s_waitcnt lgkmcnt(0)")
        body()
        if o.prof == 1:
            a("s_memtime s[58:59]")
            a("s_waitcnt lgkmcnt(0)")
            a("s_sub_u32 s56, s58, s56")
            a("s_add_u32 s71, s71, s56")
    D0 = 40; R0 = 64
    vU12 = 1; vTile = 2; vInc = 3; v3FC = 4; vCb = 5; vZ = 6; v2U2 = 7; v2U1 = 8; vSg = 9
    n2c = 10; a0c = 11; n2n = 13; a0n = 14
    vca = 16; vcb = 17; vra = 18; vrb = 19; vwa = 20; vwb = 21; vha = 22; vhb = 23; vt = 24; vt2 = 25; vPW = 26; vS = 28
    ODDC = 52; MORC = 54; ODDN = 84; MORN = 86; ROW0 = 82; M0_ = 88; M1_ = 90
    KSL, BSL = slicing(o)
    L0 = -(-(1 << 26) // KSL) // 4 + 1
    def warm(sl, part):
        nt = -(-L0 // 512); n0 = nt * o.wsh // 100; n1 = nt - n0
        uid[0] += 1
        a(f"s_mul_i32 s40, {sl}, {L0 - 1}")
        a(f"s_lshr_b32 s41, s2, 1")
        a(f"s_lshl_b32 s41, s41, 2")
        a(f"s_add_u32 s41, s41, {part}")
        a(f"s_mul_i32 s41, s41, {nt}")
        a(f"s_add_u32 s40, s40, s41")
        a(f"s_add_u32 s40, s40, {(o.swo // 4 - BSL // KSL // 4) & 0xffffffff}")
        a("s_bitcmp1_b32 s2, 0")
        a(f"s_cselect_b32 s41, {n0}, 0")
        a(f"s_add_u32 s40, s40, s41")
        a(f"s_cmp_ge_u32 s40, {E // 4}")
        a(f"s_cbranch_scc1 P2_we{uid[0]}")
        a(f"s_min_u32 s40, s40, {E // 4 - n1}")
        a(f"s_lshl_b32 s40, s40, 7")
        a(f"s_add_u32 s36, s8, s40")
        a(f"s_addc_u32 s37, s9, 0")
        for j in range(n1):
            if j == n0:
                a("s_bitcmp0_b32 s2, 0")
                a(f"s_cbranch_scc1 P2_we{uid[0]}")
            a(f"s_load_dwordx2 s[38:39], s[36:37], {128*j+60}")
        a(f"P2_we{uid[0]}:")
    def poll(level, tag, meanwhile=None):
        a("s_mov_b32 s51, 0")
        a(f"P2_poll{tag}:")
        a(f"buffer_load_dword v{vt}, v{vZ}, s[24:27], 0 offen offset:{128+4*level} sc1")
        a("s_add_u32 s51, s51, 1")
        a(f"s_cmp_gt_u32 s51, {o.maxpoll}")
        a("s_cbranch_scc1 P2_giveup")
        if meanwhile: a(f"s_call_b64 s[34:35], {meanwhile}")
        a("s_waitcnt vmcnt(0)")
        a(f"v_cmp_eq_u32 vcc, 0, v{vt}")
        a(f"s_cbranch_vccz P2_polled{tag}")
        a(f"s_sleep {o.gsleep}")
        a(f"s_branch P2_poll{tag}")
        a(f"P2_polled{tag}:")
    def ensure():
        uid[0] += 1; u = uid[0]
        a(f"v_cmp_lt_u32 vcc, s45, v{D0}")
        a(f"s_cbranch_vccz P2_have{u}")
        a("s_call_b64 s[42:43], P2_ensure")
        a(f"P2_have{u}:")
    def prep():
        ensure()
        a(f"v_bfe_u32 v{vt}, v{D0}, 1, 15")
        a(f"v_mad_u32_u24 v{a0n}, v{vt}, 12, v{vTile}")
        a(f"v_lshrrev_b32 v{n2n}, 16, v{D0}")
        a(f"v_and_b32 v{vt}, 0xfffe, v{D0}")
        a(f"v_sub_u32 v{n2n}, v{n2n}, v{vt}")
        a(f"v_and_b32 v{vt}, 1, v{D0}")
        a(f"v_cmp_eq_u32 s[{ODDN}:{ODDN+1}], 1, v{vt}")
        a(f"v_cmp_lt_u32 s[{MORN}:{MORN+1}], 32, v{n2n}")
        for k in range(S): a(f"v_mov_b32 v{D0+k}, v{D0+k+1}")
    def issue(i):
        t = (vt, vca)[i % 2]
        a(f"v_add_u32_dpp v{t}, v{a0n}, v{vU12} row_newbcast:{i} row_mask:0xf bank_mask:0xf")
        a(f"v_sub_u32_dpp v{t+1}, v{n2n}, v{v2U1} row_newbcast:{i} row_mask:0xf bank_mask:0xf")
        a(f"v_bitop3_b32 v{t}, v{t+1}, v{vSg}, v{t} bitop3:0xea")
        r = R0 + 4 * i
        a(f"buffer_load_dwordx3 v[{r}:{r+2}], v{t}, s[12:15], 0 offen sc1")
    def unhold():
        a("s_lshl_b32 s40, 1, s3")
        a(f"v_mov_b32 v{vt}, {XW + X_H}")
        a(f"v_mov_b32 v{vt2}, s40")
        a("s_mov_b64 exec, 1")
        a(f"ds_or_b32 v{vt}, v{vt2}")
        a("s_mov_b64 exec, -1")
    def next_round(regular):
        a("s_call_b64 s[42:43], P2_next")
        if regular:
            ensure()
            if o.sw:
                a(f"s_sub_u32 s4, s49, {o.swd}")
                a(f"s_cmp_lt_u32 s4, {o.sw0}")
                a("s_cbranch_scc1 P2_nowarm")
                a(f"s_cmp_ge_u32 s4, {-(-(E - o.swo) // (4 * (L0 - 1)))}")
                a("s_cbranch_scc1 P2_nowarm")
                warm("s4", "s3")
                a("P2_nowarm:")
        a("s_call_b64 s[42:43], P2_wait")
    def wait_buffer(tag):
        a("s_add_u32 s50, s48, 1")
        a("s_lshr_b32 s50, s50, 1")
        a("s_mul_i32 s50, s50, 12")
        a("s_and_b32 s51, s48, 1")
        a("s_lshl_b32 s51, s51, 2")
        a(f"s_add_u32 s51, s51, {XW + X_CW}")
        a(f"v_mov_b32 v{vt2}, s51")
        a(f"P2_pw{tag}:")
        a(f"ds_read_b32 v{vt}, v{vt2}")
        a("s_waitcnt lgkmcnt(0)")
        a(f"v_readfirstlane_b32 s51, v{vt}")
        a("s_cmp_ge_u32 s51, s50")
        a(f"s_cbranch_scc1 P2_pg{tag}")
        a(f"s_sleep {o.psleep}")
        guard(a)
        a(f"s_branch P2_pw{tag}")
        a(f"P2_pg{tag}:")
    a("s_setprio 3")
    a("s_waitcnt vmcnt(0)")
    publish_a(a, vt, XW, "ap")
    a(f"s_lshl_b32 s47, s3, 6")
    a(f"v_add_u32 v{vTile}, s47, v12")
    a(f"s_lshl_b32 s50, s3, 2")
    a(f"s_add_u32 s50, s50, {XW + X_PW}")
    a(f"v_mov_b32 v{vPW}, s50")
    a(f"v_lshlrev_b32 v15, 8, v{vTile}")
    a(f"v_add_u32 v15, s46, v15")
    a(f"v_mul_u32_u24 v15, {4*S}, v15")
    a(f"v_mov_b32 v{D0+S}, 0")
    a(f"v_mul_u32_u24 v{vTile}, {TILE_BYTES}, v{vTile}")
    a(f"v_and_b32 v{vt}, 15, v12")
    a(f"v_mul_u32_u24 v{vU12}, 12, v{vt}")
    a(f"v_lshl_add_u32 v{v2U1}, v{vt}, 1, 1")
    a(f"v_add_u32 v{v2U2}, 1, v{v2U1}")
    a(f"v_mov_b32 v{vInc}, {(1 << 20) + 4}")
    a(f"v_mov_b32 v{v3FC}, 0x3fc")
    a(f"v_mov_b32 v{vSg}, 0x80000000")
    for r in (vCb, vZ, vra, vrb, vS, vS + 1): a(f"v_mov_b32 v{r}, 0")
    a("s_mov_b32 s49, 0")
    a(f"s_mov_b32 s{ROW0}, 0x00010001")
    a(f"s_mov_b32 s{ROW0+1}, 0x00010001")
    a(f"s_mov_b32 s45, {((o.nd * WREG // 12 * 2) << 16) | 0xffff}")
    nsave = P.n
    P.stamp()
    poll(LV_E, "e")
    k = 0
    while k < S:
        w = 4 if S - k >= 4 else (2 if S - k >= 2 else 1)
        sfx = {4: "x4", 2: "x2", 1: ""}[w]
        dst = f"v[{D0+k}:{D0+k+w-1}]" if w > 1 else f"v{D0+k}"
        a(f"buffer_load_dword{sfx} {dst}, v15, s[16:19], 0 offen offset:{4*k} sc1")
        k += w
    poll(LV_D, "d")
    P.stamp()
    prep()
    for i in range(16): issue(i)
    P.stamp()
    lds_wait(a, vt, XW + X_I, 12, "i", 1)
    P.stamp()
    def ppass(tg, inl):
        a(f"v_mov_b32 v{n2c}, v{n2n}")
        a(f"v_mov_b32 v{a0c}, v{a0n}")
        a(f"s_mov_b64 s[{ODDC}:{ODDC+1}], s[{ODDN}:{ODDN+1}]")
        a(f"s_mov_b64 s[{MORC}:{MORC+1}], s[{MORN}:{MORN+1}]")
        if inl: prep()
        for i in range(16):
            r = R0 + 4 * i
            a(f"v_sub_co_u32_dpp v{vt}, vcc, v{n2c}, v{v2U1} row_newbcast:{i} row_mask:0xf bank_mask:0xf")
            a(f"s_and_b64 s[92:93], s[{ODDC}:{ODDC+1}], s[{ROW0}:{ROW0+1}]")
            a(f"s_nor_b64 s[{M0_}:{M0_+1}], vcc, s[92:93]")
            a(f"v_sub_co_u32_dpp v{vt2}, vcc, v{n2c}, v{v2U2} row_newbcast:{i} row_mask:0xf bank_mask:0xf")
            a(f"s_lshr_b64 s[{ODDC}:{ODDC+1}], s[{ODDC}:{ODDC+1}], 1")
            a(f"s_not_b64 s[{M1_}:{M1_+1}], vcc")
            a(f"s_waitcnt vmcnt({15 if inl else 15 - i})")
            a(f"P2_retry{tg}{i}:")
            a(f"v_lshrrev_b32 v{vca}, 18, v{r}")
            a(f"v_lshrrev_b32 v{vcb}, 18, v{r+1}")
            a(f"v_bitop3_b32 v{vca}, v{vca}, v{v3FC}, v{vCb} bitop3:0xea")
            a(f"v_bitop3_b32 v{vcb}, v{vcb}, v{v3FC}, v{vCb} bitop3:0xea")
            a(f"s_mov_b64 exec, s[{M0_}:{M0_+1}]")
            a(f"ds_add_rtn_u32 v{vra}, v{vca}, v{vInc}")
            a(f"s_mov_b64 exec, s[{M1_}:{M1_+1}]")
            a(f"ds_add_rtn_u32 v{vrb}, v{vcb}, v{vInc}")
            a(f"s_mov_b64 exec, -1")
            a(f"v_and_b32 v{vwa}, 0xf00fffff, v{r}")
            a(f"v_and_b32 v{vwb}, 0xf00fffff, v{r+1}")
            a("s_waitcnt lgkmcnt(0)")
            a(f"v_and_b32 v{vra}, 0xfc03ffff, v{vra}")
            a(f"v_and_b32 v{vrb}, 0xfc03ffff, v{vrb}")
            a(f"v_lshrrev_b32 v{vha}, 1, v{vra}")
            a(f"v_lshrrev_b32 v{vhb}, 1, v{vrb}")
            a(f"v_or_b32 v{vt}, v{vra}, v{vrb}")
            a(f"v_cmp_lt_u32 vcc, v{vInc}, v{vt}")
            a(f"s_mov_b64 exec, s[{M0_}:{M0_+1}]")
            a(f"ds_write_b32 v{vra}, v{vwa} offset:{WB}")
            a(f"ds_write_b16 v{vha}, v{r+2} offset:{CB}")
            a(f"s_mov_b64 exec, s[{M1_}:{M1_+1}]")
            a(f"ds_write_b32 v{vrb}, v{vwb} offset:{WB}")
            a(f"ds_write_b16_d16_hi v{vhb}, v{r+2} offset:{CB}")
            a(f"s_mov_b64 exec, -1")
            a(f"s_cbranch_vccnz P2_stall{tg}{i}")
            a(f"s_and_b64 s[92:93], s[{MORC}:{MORC+1}], s[{ROW0}:{ROW0+1}]")
            a(f"s_cbranch_scc1 P2_more{tg}{i}")
            if not inl:
                a("s_cmp_lg_u32 s98, 0")
                a("s_cbranch_scc1 P2_sweep")
                a(f"P2_cont{tg}{i}:")
            a(f"s_lshr_b64 s[{MORC}:{MORC+1}], s[{MORC}:{MORC+1}], 1")
            if inl: issue(i)
    a("s_mov_b32 s98, 0")
    a("s_mov_b32 s47, 0")
    ppass("f", False)
    a("P2_sweep:")
    a("s_cmp_lg_u32 s47, 0")
    a("s_cbranch_scc1 P2_sweep1")
    P.stamp()
    a("s_mov_b32 s49, 1")
    a("s_cmp_ge_u32 s48, s49")
    a("s_cbranch_scc1 P2_ff1")
    a("s_call_b64 s[42:43], P2_next")
    a("P2_ff1:")
    prep()
    for i in range(16): issue(i)
    a("s_call_b64 s[42:43], P2_wait")
    a("P2_pslice:")
    ppass("", True)
    a("s_add_u32 s49, s49, 1")
    a(f"s_cmp_ge_u32 s49, {S}")
    a("s_cbranch_scc1 P2_pdone")
    a("s_cmp_ge_u32 s48, s49")
    a("s_cbranch_scc1 P2_pslice")
    next_round(True)
    a("s_branch P2_pslice")
    a("P2_next:")
    a("s_add_u32 s48, s48, 1")
    if o.maxr:
        a(f"s_cmp_gt_u32 s48, {o.maxr}")
        a("s_cbranch_scc1 P2_giveup")
    a(f"v_mov_b32 v{vt}, s48")
    a("s_waitcnt lgkmcnt(0)")
    a(f"ds_write_b32 v{vPW}, v{vt}")
    a(f"v_xor_b32 v{vCb}, 1024, v{vCb}")
    def pubb2():
        a("s_cmp_lg_u32 s48, 2")
        a("s_cbranch_scc1 P2_next1")
        a("s_call_b64 s[96:97], P2_pubb")
        a("P2_next1:")
    if not o.nl: pubb2()
    a("s_setpc_b64 s[42:43]")
    a("P2_wait:")
    twait(lambda: wait_buffer("n"))
    if o.nl: pubb2()
    a("s_setpc_b64 s[42:43]")
    a("P2_pubb:")
    lds_ticket(a, vS, XW + X_C)
    a("s_cmp_lg_u32 s40, 0")
    a("s_cbranch_scc1 P2_norelb")
    lds_wait(a, vS, XW + X_B, 12, "b", 1)
    arrive(a, vS, LV_B)
    release(a, vS, LV_B, "b")
    a("s_setpc_b64 s[96:97]")
    a("P2_ensure:")
    poll(LV_A, "a")
    a(f"s_mov_b32 s45, {(CHA << 16) | 0xffff}")
    a(f"v_cmp_lt_u32 vcc, s45, v{D0}")
    a("s_cbranch_vccz P2_ens1")
    unhold()
    a("s_call_b64 s[96:97], P2_pubb")
    poll(LV_B, "b")
    a("s_mov_b32 s45, -1")
    a("P2_ens1:")
    a("s_setpc_b64 s[42:43]")
    for tg, i in [(t_, i_) for t_ in ("", "f") for i_ in range(16)]:
        r = R0 + 4 * i
        a(f"P2_stall{tg}{i}:")
        a(f"v_cmp_lt_u32 s[{M0_}:{M0_+1}], v{vInc}, v{vra}")
        a(f"v_cmp_lt_u32 s[{M1_}:{M1_+1}], v{vInc}, v{vrb}")
        next_round(False)
        a(f"s_branch P2_retry{tg}{i}")
        a(f"P2_more{tg}{i}:")
        a(f"s_lshl_b64 exec, s[{ROW0}:{ROW0+1}], {i}")
        a(f"v_max_u32 v{n2c}, 32, v{n2c}")
        a(f"v_subrev_u32 v{n2c}, 32, v{n2c}")
        a(f"v_add_u32 v{a0c}, 192, v{a0c}")
        a(f"s_mov_b64 exec, -1")
        a(f"v_sub_u32_dpp v{vt2}, v{n2c}, v{v2U1} row_newbcast:{i} row_mask:0xf bank_mask:0xf")
        a(f"v_add_u32_dpp v{vt}, v{a0c}, v{vU12} row_newbcast:{i} row_mask:0xf bank_mask:0xf")
        a(f"v_bitop3_b32 v{vt}, v{vt2}, v{vSg}, v{vt} bitop3:0xea")
        a(f"buffer_load_dwordx3 v[{r}:{r+2}], v{vt}, s[12:15], 0 offen sc1")
        if tg:
            a(f"s_bitset1_b32 s47, {i}")
            a("s_cmp_eq_u32 s98, 0")
            a(f"s_cbranch_scc1 P2_cont{tg}{i}")
            a(f"P2_again{i}:")
            a(f"s_bitset0_b32 s47, {i}")
        a(f"v_cmp_lt_u32 vcc, 32, v{n2c}")
        a(f"s_lshr_b64 s[92:93], vcc, {i}")
        a(f"s_and_b64 s[92:93], s[92:93], s[{ROW0}:{ROW0+1}]")
        a(f"s_andn2_b64 s[{MORC}:{MORC+1}], s[{MORC}:{MORC+1}], s[{ROW0}:{ROW0+1}]")
        a(f"s_or_b64 s[{MORC}:{MORC+1}], s[{MORC}:{MORC+1}], s[92:93]")
        a(f"v_sub_co_u32_dpp v{vt2}, vcc, v{n2c}, v{v2U2} row_newbcast:{i} row_mask:0xf bank_mask:0xf")
        a(f"s_not_b64 s[{M1_}:{M1_+1}], vcc")
        a(f"v_sub_co_u32_dpp v{vt2}, vcc, v{n2c}, v{v2U1} row_newbcast:{i} row_mask:0xf bank_mask:0xf")
        a(f"s_not_b64 s[{M0_}:{M0_+1}], vcc")
        a("s_waitcnt vmcnt(0)")
        a(f"s_branch P2_retry{tg}{i}")
    a("P2_sweep1:")
    a("s_mov_b32 s98, 1")
    for i in range(15):
        a(f"s_bitcmp1_b32 s47, {i}")
        a(f"s_cbranch_scc1 P2_again{i}")
    a("s_branch P2_again15")
    a("P2_giveup:")
    unhold()
    a("P2_pdone:")
    a("s_add_u32 s48, s48, 0x40000001")
    a(f"v_mov_b32 v{vt}, s48")
    a("s_waitcnt lgkmcnt(0)")
    a(f"ds_write_b32 v{vPW}, v{vt}")
    a(f"s_setprio {o.eprio}")
    if o.sw and o.swd:
        warm(S - 1, "s3")
        a("s_waitcnt lgkmcnt(0)")
    a("s_load_dwordx2 s[6:7], s[0:1], 24")
    a("s_load_dwordx2 s[34:35], s[0:1], 40")
    a("s_load_dwordx8 s[36:43], s[0:1], 56")
    DS = 30; CEN = 56; RB0 = 64; t = 60; X = 1
    a("v_and_b32 v13, 15, v12")
    a("v_lshrrev_b32 v14, 4, v12")
    a(f"v_lshlrev_b32 v{X}, 7, v14")
    a(f"v_lshl_add_u32 v{X}, v13, 1, v{X}")
    a(f"v_and_b32 v{X+1}, 0xff, v{X}")
    a(f"v_and_b32 v{X+2}, 1, v14")
    a(f"v_lshlrev_b32 v{X+2}, 3, v{X+2}")
    a(f"v_lshrrev_b32 v{X+3}, 1, v14")
    a(f"v_lshlrev_b32 v{X+3}, 10, v{X+3}")
    a(f"v_lshl_add_u32 v{X+3}, v13, 1, v{X+3}")
    a("s_and_b32 s47, s46, 31")
    a("s_lshl_b32 s47, s47, 5")
    a(f"v_add_u32 v{X+3}, s47, v{X+3}")
    a(f"v_cmp_gt_u32 s[88:89], 32, v12")
    a("s_waitcnt vmcnt(0) lgkmcnt(0)")
    a("s_lshr_b32 s47, s46, 5")
    a(f"s_mul_i32 s47, s47, {CL * 2}")
    srd(a, 20, 6, CL * 2, "s47")
    srd(a, 28, 42, 512)
    srd(a, 12, 38, 256)
    srd(a, 16, 36, 256)
    srd(a, 52, 34, 16)
    srd(a, 84, 40, 512)
    for c in range(4): a(f"buffer_load_ushort v{CEN+c}, v{X+2}, s[52:55], 0 offen offset:{2*c}")
    a("s_mul_i32 s47, s3, 25")
    for k in range(25):
        a("s_mul_i32 s50, s47, 57")
        a("s_lshr_b32 s50, s50, 9")
        a("s_min_u32 s50, s50, 4")
        a("s_lshl_b32 s51, s47, 1")
        a("s_sub_u32 s50, s51, s50")
        a("s_lshl_b32 s50, s50, 10")
        a(f"v_add_u32 v{DS+k}, s50, v{X+3}")
        a("s_add_u32 s47, s47, 1")
        a(f"buffer_load_ushort v{DS+k}, v{DS+k}, s[20:23], 0 offen")
    assert all((n * 57) >> 9 == n // 9 for n in range(45))
    Y = 116
    for c in range(4): a(f"buffer_load_ushort v{Y+c}, v{X}, s[28:31], 0 offen offset:{32*c}")
    for c in range(4): a(f"buffer_load_ushort v{Y+4+c}, v{X+1}, s[12:15], 0 offen offset:{32*c}")
    for c in range(4): a(f"buffer_load_ushort v{Y+8+c}, v{X+1}, s[16:19], 0 offen offset:{32*c}")
    for c in range(4): a(f"buffer_load_ushort v{16+c}, v{X}, s[84:87], 0 offen offset:{32*c}")
    a("s_waitcnt vmcnt(40)")
    for c in range(4): a(f"v_lshlrev_b32 v{CEN+c}, 16, v{CEN+c}")
    def rnd():
        if o.nornd: return
        for u in range(2):
            a(f"v_cvt_pk_bf16_f32 v{t+2*u+1}, v{t+2*u}, v{t+2*u+1}")
        for u in range(2):
            a(f"v_lshlrev_b32 v{t+2*u}, 16, v{t+2*u+1}")
            a(f"v_and_b32 v{t+2*u+1}, 0xffff0000, v{t+2*u+1}")
    for k in range(25):
        d = DS + k
        a(f"s_waitcnt vmcnt({40 - k})")
        a(f"v_lshlrev_b32 v{d}, 16, v{d}")
        for c in range(4): a(f"v_sub_f32 v{t+c}, v{d}, v{CEN+c}")
        rnd()
        for c in range(4): a(f"v_mul_f32 v{t+c}, v{t+c}, v{t+c}")
        rnd()
        for c in range(4): a(f"v_mul_f32 v{t+c}, 0xc1200000, v{t+c}")
        rnd()
        for c in range(4): a(f"v_mul_f32 v{t+c}, 0x3fb8aa3b, v{t+c}")
        for c in range(4): a(f"v_exp_f32 v{t+c}, v{t+c}")
        for u in range(2): a(f"v_cvt_pk_bf16_f32 v{RB0+2*k+u}, v{t+2*u}, v{t+2*u+1}")
    a("s_waitcnt vmcnt(0)")
    Z = 30
    for u in range(2):
        a(f"v_lshl_or_b32 v{Z+8+u}, v{Y+2*u+1}, 16, v{Y+2*u}")
        a(f"v_lshl_or_b32 v{Z+10+u}, v{17+2*u}, 16, v{16+2*u}")
        a(f"v_lshl_or_b32 v{Y+4+u}, v{Y+5+2*u}, 16, v{Y+4+2*u}")
        a(f"v_lshl_or_b32 v{Y+8+u}, v{Y+9+2*u}, 16, v{Y+8+2*u}")
    for u in range(2):
        a(f"v_cndmask_b32 v{Z+u}, 0, v{Y+4+u}, s[88:89]")
        a(f"v_cndmask_b32 v{Z+2+u}, v{Y+4+u}, 0, s[88:89]")
        a(f"v_cndmask_b32 v{Z+4+u}, 0, v{Y+8+u}, s[88:89]")
        a(f"v_cndmask_b32 v{Z+6+u}, v{Y+8+u}, 0, s[88:89]")
    a(f"v_lshlrev_b32 v{X}, 3, v12")
    a(f"v_add_u32 v{X+1}, {WT}, v{X}")
    a(f"v_and_b32 v{X+2}, 3, v12")
    a(f"v_lshlrev_b32 v{X+2}, 2, v{X+2}")
    a(f"v_add_u32 v{X+2}, {XW + X_PW}, v{X+2}")
    a("P2_dw:")
    a(f"ds_read_b32 v{vt}, v{X+2}")
    a("s_waitcnt lgkmcnt(0)")
    a(f"v_cmp_gt_u32 vcc, 2.0, v{vt}")
    a("s_cbranch_vccz P2_dg")
    a(f"s_sleep {o.psleep}")
    guard(a)
    a("s_branch P2_dw")
    a("P2_dg:")
    a(f"v_readlane_b32 s48, v{vt}, 0")
    for k in range(1, 4):
        a(f"v_readlane_b32 s50, v{vt}, {k}")
        a("s_max_u32 s48, s48, s50")
    a("s_and_b32 s48, s48, 0x3fffffff")
    wait_buffer("e")
    a("s_bitcmp1_b32 s48, 0")
    a(f"s_cselect_b32 s50, {RB_AT[1] - RB_AT[0]}, 0")
    a(f"s_add_u32 s50, s50, {RB_AT[0]}")
    a(f"s_mul_i32 s51, s3, {25*512}")
    a("s_add_u32 s50, s50, s51")
    a(f"v_add_u32 v{X}, s50, v{X}")
    for k in range(6): a(f"ds_write_b64 v{X+1}, v[{Z+2*k}:{Z+2*k+1}] offset:{512*k}")
    for k in range(25): a(f"ds_write_b64 v{X}, v[{RB0+2*k}:{RB0+2*k+1}] offset:{512*k}")
    lds_count(a, vt, XW + X_R)
    a("s_waitcnt lgkmcnt(0)")
    if o.prof == 1:
        P.stamp(); P.dump(32, 0x80000, 8, 3); P.n = nsave
    a("s_endpgm")
    a("P2_consumer:")
    ACC = 60; G0 = 52; B0 = 44; A2 = 28; vTw = 32; vTr = 33; vM = 24; vC = 20; vX = 16
    bA = 1; bE = 2; bC = 3; bR = 4; vH = 5; vL = 6; vCA = 7; vCI = 8; vA = 9; vE = 10
    a("s_sub_u32 s47, s3, 4")
    a("s_min_u32 s44, s47, 4")
    a("s_lshl_b32 s49, s47, 4")
    a("s_add_u32 s49, s49, s44")
    a("s_cmp_lt_u32 s47, 4")
    a("s_cselect_b32 s50, 17, 16")
    a(f"s_cselect_b32 s84, 0, {MARK & 0xffffff}")
    a(f"s_cselect_b32 s85, {17*WSTR//16-192}, {16*WSTR//16-192}")
    a("s_bfm_b64 s[92:93], s85, 0")
    a(f"v_subrev_u32 v60, 256, v0")
    a(f"v_lshlrev_b32 v60, 4, v60")
    for k in range(1, 4): a(f"v_add_u32 v{60+k}, {4*12288*k}, v60")
    lds_wait(a, vX, XW + X_S, 16, "s", o.ssleep)
    P.stamp()
    NL = o.nl; vSt = 34
    for j in range(13):
        k = 12 - j
        a(f"ds_read_b128 v[{68+4*j}:{71+4*j}], v{60+k//4} offset:{STG+12288*(k%4)}")
    a(f"v_mov_b32 v{vSt}, v63")
    q = 36
    for i in range(4): a(f"v_mov_b32 v{q+i}, {MARK}")
    a(f"v_add_u32 v61, {STG + 12288 * K0}, v60")
    a(f"v_add_u32 v62, {STG + 12288 * K1}, v60")
    for k in range(4): a(f"ds_write_b128 v61, v[{q}:{q+3}] offset:{12288 * k}")
    a("s_cmp_ge_u32 s47, 4")
    a("s_cbranch_scc1 P2_notab")
    a(f"v_and_b32 v52, 15, v12")
    a(f"v_lshrrev_b32 v53, 4, v12")
    a(f"v_lshrrev_b32 v56, 2, v52")
    a(f"v_cmp_eq_u32 vcc, v56, v53")
    a(f"v_and_b32 v56, 3, v12")
    a(f"v_lshlrev_b32 v56, 4, v56")
    a(f"v_mov_b32 v54, 0xffff")
    a(f"v_mov_b32 v55, 0")
    a(f"v_cndmask_b32 v54, 0, v54, vcc")
    a(f"v_lshlrev_b64 v[54:55], v56, v[54:55]")
    a(f"v_and_b32 v56, 1, v53")
    a(f"v_lshlrev_b32 v56, 3, v56")
    a(f"v_lshl_add_u32 v52, v52, 4, v56")
    a(f"v_lshrrev_b32 v53, 1, v53")
    a(f"v_lshl_add_u32 v52, v53, 8, v52")
    a(f"v_and_b32 v56, 255, v0")
    a(f"v_lshlrev_b32 v53, 2, v56")
    a(f"v_mul_u32_u24 v56, {WSTR}, v56")
    a(f"v_add_u32 v56, {(64 - CAP) << 20}, v56")
    a(f"v_add_u32 v57, {X1}, v56")
    a(f"ds_write_b64 v52, v[54:55] offset:{LUT}")
    a(f"ds_write_b32 v53, v56")
    a(f"ds_write_b32 v53, v57 offset:1024")
    a("P2_notab:")
    lds_count(a, vX, XW + X_I)
    a("s_waitcnt vmcnt(0)")
    publish_a(a, vX, XW, "ac")
    def store_b(j):
        a(f"buffer_store_dwordx4 v[{68+4*j}:{71+4*j}], v{vSt}, s[20:23], 0 offen {o.p1_st}")
        a(f"v_subrev_u32 v{vSt}, 12288, v{vSt}")
    if o.spr: a(f"s_setprio {o.spr}")
    for j in range(13 - NL): store_b(j)
    if o.spr: a("s_setprio 0")
    for k in range(4): a(f"ds_write_b128 v62, v[{q}:{q+3}] offset:{12288 * k}")
    lds_count(a, vX, XW + X_CW + 4)
    a("v_and_b32 v13, 15, v12")
    a("v_lshrrev_b32 v14, 4, v12")
    a(f"v_and_b32 v0, 3, v12")
    a(f"v_lshlrev_b32 v0, 2, v0")
    a(f"v_add_u32 v0, {XW + X_CW}, v0")
    a(f"s_mul_i32 s51, s49, {WSTR}")
    a(f"s_lshr_b32 s86, s51, 1")
    a(f"s_add_u32 s86, s86, {CB}")
    a(f"v_lshl_add_u32 v{bC}, v14, 4, s86")
    a(f"v_mul_u32_u24 v{vCI}, {WSTR}, v12")
    a(f"s_add_u32 s86, s51, {(64 - CAP) << 20}")
    a(f"v_add_u32 v{vCI}, s86, v{vCI}")
    a(f"s_add_u32 s51, s51, {WB}")
    a(f"v_lshl_add_u32 v{bR}, v12, 4, s51")
    a(f"v_and_b32 v{bA}, 24, v12")
    a(f"v_bfe_u32 v{vA}, v12, 1, 2")
    a(f"v_or_b32 v{bA}, v{bA}, v{vA}")
    a(f"v_lshrrev_b32 v{vA}, 5, v12")
    a(f"v_lshl_or_b32 v{bA}, v{vA}, 2, v{bA}")
    a(f"v_lshl_add_u32 v{bA}, v{bA}, 2, s51")
    a(f"v_and_b32 v{vH}, 1, v12")
    a(f"v_lshlrev_b32 v{vH}, 4, v{vH}")
    a("s_lshl_b32 s87, s47, 10")
    a(f"s_add_u32 s87, s87, {SC}")
    a(f"v_lshl_add_u32 v{vTw}, v12, 4, s87")
    a(f"v_lshl_add_u32 v{vTr}, v12, 3, s87")
    a(f"v_and_b32 v{vA}, 12, v12")
    a(f"v_lshl_add_u32 v{bE}, v14, 5, v{vA}")
    a(f"v_add_u32 v{bE}, s51, v{bE}")
    a(f"v_and_b32 v{vL}, 1, v12")
    a(f"v_lshlrev_b32 v{vL}, 3, v{vL}")
    a(f"v_and_b32 v{vA}, 2, v12")
    a(f"v_lshl_add_u32 v{vL}, v{vA}, 7, v{vL}")
    a(f"v_add_lshl_u32 v{vCA}, v12, s49, 2")
    a(f"v_cmp_gt_u32 vcc, s50, v12")
    a(f"s_mov_b32 s85, {(64 - CAP + 33) << 20}")
    a("s_mov_b32 s94, 0xff000000")
    a("s_mov_b32 s95, 0xff000000")
    a(f"v_cndmask_b32 v{vCA}, 2.0, v{vCA}, vcc")
    a(f"s_lshl_b32 s51, s49, 5")
    a("s_and_b32 s40, s46, 31")
    a(f"s_add_u32 s51, s51, s40")
    a(f"s_lshl_b32 s51, s51, 4")
    a(f"v_add_lshl_u32 v15, v13, s51, 5")
    a(f"v_lshl_add_u32 v15, v14, 3, v15")
    a(f"v_lshlrev_b32 v13, 3, v12")
    for i in range(16): a(f"v_mov_b32 v{B0+i}, 0")
    for i in range(68):
        if not 15 - NL <= i // 4 <= 14: a(f"v_mov_b32 v{ACC+i}, 0")
    a("s_lshr_b32 s40, s46, 5")
    a(f"s_mul_i32 s40, s40, {CL * 32}")
    srd(a, 28, 6, CL * 32, "s40")
    srd(a, 12, 8, CL * 32, "s40")
    def lazy(t):
        j = 13 - NL + t
        store_b(j)
        for u in range(4): a(f"v_mov_b32 v{68+4*j+u}, 0")
    lstep = {}
    for t in range(NL):
        i = o.l0 + t * o.lstep // 2
        assert i <= 14 - NL + t
        lstep.setdefault(i, []).append(t)
    if NL:
        a("s_mov_b32 s42, 1")
        P.stamp()
        a(f"v_mov_b32 v{vX+2}, {XW + X_H}")
        a("P2_pre:")
        a(f"ds_read_b32 v{vX}, v0 offset:{X_PW - X_CW}")
        a(f"ds_read_b32 v{vX+1}, v{vX+2}")
        a("s_waitcnt lgkmcnt(0)")
        a(f"v_cmp_eq_u32 vcc, 0, v{vX}")
        a("s_cbranch_vccz P2_round0")
        a(f"v_cmp_eq_u32 vcc, 0, v{vX+1}")
        a("s_cbranch_vccz P2_flush")
        a(f"s_sleep {o.csleep}")
        guard(a)
        a("s_branch P2_pre")
        a("P2_flush:")
        for t in range(NL): lazy(t)
        a("s_mov_b32 s42, 0")
    a("s_waitcnt vmcnt(0)")
    lds_count(a, vX, XW + X_B)
    if not NL: P.stamp()
    def reads1(par, i, second):
        oa = par * X1 + i * WSTR + (128 if second else 0)
        a(f"ds_read_b32 v{vA}, v{bA} offset:{oa}")
        a(f"ds_read_u8 v{vE}, v{bE} offset:{oa+3}")
        a(f"ds_read_u8 v{vE+1}, v{bE} offset:{oa+19}")
    def reads2(par, i, second):
        oc = (par * X1 + i * WSTR + (128 if second else 0)) // 2
        a(f"v_add_u32 v{vE}, v{vE}, v{vL}")
        a(f"v_add_u32 v{vE+1}, v{vE+1}, v{vL}")
        a(f"ds_read_b64_tr_b16 v[{vM}:{vM+1}], v{vE} offset:{LUT}")
        a(f"ds_read_b64_tr_b16 v[{vM+2}:{vM+3}], v{vE+1} offset:{LUT}")
        a(f"ds_read_b128 v[{vC}:{vC+3}], v{bC} offset:{oc}")
    def addr():
        a(f"v_mad_u32_u24 v{vA}, v{vA}, 32, v{vH}")
    def transpose(g):
        a(f"ds_write_b128 v{vTw}, v[{g}:{g+3}]")
        a(f"ds_read_b64_tr_b16 v[{A2}:{A2+1}], v{vTr}")
        a(f"ds_read_b64_tr_b16 v[{A2+2}:{A2+3}], v{vTr} offset:512")
    def mfma2(i, b):
        c = ACC + 4 * i
        a(f"v_mfma_f32_16x16x32_bf16 v[{c}:{c+3}], v[{A2}:{A2+3}], v[{b}:{b+3}], v[{c}:{c+3}]")
    NS = 17
    for par in range(2):
        a(f"P2_round{par}:")
        def spin():
            a(f"P2_cw{par}:")
            a(f"ds_read_b32 v{vX+1}, v0 offset:{X_PW - X_CW}")
            reads1(par, 0, False)
            a(f"ds_read_b32 v{vX}, v{vCA} offset:{1024*par}")
            a("s_waitcnt lgkmcnt(4)")
            a(f"v_cmp_ge_u32 vcc, s48, v{vX+1}")
            a(f"v_and_b32 v{vX+1}, 0x3fffffff, v{vX+1}")
            a(f"s_cbranch_vccz P2_cg{par}")
            a(f"s_sleep {o.csleep}")
            guard(a)
            a(f"s_branch P2_cw{par}")
            a(f"P2_cg{par}:")
        twait(spin)
        if o.prof == 1:
            a("s_memrealtime s[58:59]")
            a("s_waitcnt lgkmcnt(0)")
            a("s_mov_b32 m0, s48")
            a("v_writelane_b32 v14, s58, m0")
            a("s_add_u32 m0, s48, 16")
            a("v_writelane_b32 v14, s56, m0")
        a(f"v_cmp_lt_u32 vcc, s48, v{vX+1}")
        a(f"s_cbranch_vccz P2_drain{1-par}")
        if o.prof == 1 and par == 0:
            a("s_cmp_lg_u32 s48, 0"); a("s_cbranch_scc1 P2_nostamp"); P.stamp(); a("P2_nostamp:")
        if par: a(f"v_add_u32 v{vX+2}, {X1}, v{vCI}")
        a(f"ds_write_b32 v{vCA}, v{vX+2 if par else vCI} offset:{1024*par}")
        a("s_add_u32 s48, s48, 1")
        for i in range(NS):
            p = (par * NS + i) % 2
            g = G0 + 4 * p; b = B0 + 4 * p
            a("s_waitcnt lgkmcnt(0)")
            if i == NS - 1: a(f"v_or_b32 v{vA}, s84, v{vA}")
            addr()
            a("s_waitcnt vmcnt(1)")
            sk = o.skip and i == 1
            if sk:
                a("s_cmp_lg_u32 s84, 0")
                a(f"s_cbranch_scc1 P2_nt{par}")
            transpose(g)
            if sk: a(f"P2_nt{par}:")
            a(f"buffer_load_dwordx4 v[{g}:{g+3}], v{vA}, s[8:11], 0 offen {o.gfl}")
            if o.skip and i == NS - 1:
                a("s_cmp_lg_u32 s84, 0")
                a(f"s_cbranch_scc1 P2_last{par}")
            reads2(par, i, False)
            if i + 1 < NS: reads1(par, i + 1, False)
            if i == 0: a(f"v_cmp_le_u32 s[90:91], s85, v{vX}")
            if sk: a(f"s_cbranch_scc1 P2_nm{par}")
            a(f"s_waitcnt lgkmcnt({6 if i + 1 < NS else 3})")
            mfma2((i - 2) % NS, b)
            if sk: a(f"P2_nm{par}:")
            a(f"s_bitcmp1_b32 s90, {i}")
            a(f"s_waitcnt lgkmcnt({3 if i + 1 < NS else 0})")
            for u in range(4): a(f"v_and_b32 v{b+u}, v{vM+u}, v{vC+u}")
            a(f"s_cbranch_scc1 P2_slow{par}_{i}")
            a(f"P2_back{par}_{i}:")
            if par == 0 and i in lstep:
                a("s_cmp_lg_u32 s42, 0")
                a(f"s_cbranch_scc1 P2_lazy{i}")
                a(f"P2_lazyb{i}:")
        if par == 0 and NL:
            a("s_cmp_eq_u32 s42, 0")
            a("s_cbranch_scc1 P2_nolz")
            a("s_mov_b32 s42, 0")
            a("s_waitcnt vmcnt(0)")
            lds_count(a, vX, XW + X_B)
            a("P2_nolz:")
        for u in range(4): a(f"v_mov_b32 v{vX+u}, {MARK}")
        for k in range(4):
            if k == 3: a("s_mov_b64 exec, s[92:93]")
            a(f"ds_write_b128 v{bR}, v[{vX}:{vX+3}] offset:{par*X1+1024*k}")
        a("s_mov_b64 exec, 1")
        a(f"v_mov_b32 v{vA}, 1")
        a("s_waitcnt lgkmcnt(0)")
        a(f"ds_add_rtn_u32 v{vA}, v0, v{vA} offset:{4*par}")
        a("s_lshr_b32 s40, s48, 1")
        a("s_mul_i32 s40, s40, 12")
        a("s_waitcnt lgkmcnt(0)")
        a(f"v_readfirstlane_b32 s41, v{vA}")
        a("s_mov_b64 exec, -1")
        a("s_sub_u32 s41, s41, s40")
        a("s_setprio 0")
        a("s_cmp_lt_u32 s41, 4")
        a(f"s_cbranch_scc1 P2_round{1-par}")
        a("s_setprio 1")
        a("s_cmp_lt_u32 s41, 8")
        a(f"s_cbranch_scc1 P2_round{1-par}")
        a("s_setprio 2")
        if par: a("s_branch P2_round0")
    for par in range(2 if o.skip else 0):
        a(f"P2_last{par}:")
        a("s_waitcnt lgkmcnt(0)")
        mfma2(NS - 3, B0 + 4 * ((par * NS + NS - 1) % 2))
        a(f"s_branch P2_back{par}_{NS-1}")
    for i in sorted(lstep):
        a(f"P2_lazy{i}:")
        for t in lstep[i]: lazy(t)
        a(f"s_branch P2_lazyb{i}")
    for par in range(2):
        for i in range(NS):
            a(f"P2_slow{par}_{i}:")
            reads1(par, i, True)
            a("s_waitcnt lgkmcnt(0)")
            a("s_mov_b64 exec, s[94:95]")
            a(f"v_mov_b32 v{vA}, {MARK}")
            a("s_mov_b64 exec, -1")
            addr()
            a(f"buffer_load_dwordx4 v[{vX}:{vX+3}], v{vA}, s[8:11], 0 offen")
            reads2(par, i, True)
            if i + 1 < NS: reads1(par, i + 1, False)
            a(f"s_waitcnt lgkmcnt({3 if i + 1 < NS else 0})")
            for u in range(4): a(f"v_and_b32 v{vM+u}, v{vM+u}, v{vC+u}")
            a("s_waitcnt vmcnt(0)")
            transpose(vX)
            a("s_waitcnt lgkmcnt(0)")
            mfma2(i, vM)
            a(f"s_branch P2_back{par}_{i}")
    vLo = 14; vSo = 15; vRb = 12; vWt = 13
    mreg = [0, 2, 4, 6, 8, 10, 16, 18, 20, 22, 24, 26, ACC, ACC + 2, ACC + 4, ACC + 6, ACC + 8]
    NPRE = 12
    def mload(i):
        a(f"buffer_load_dwordx2 v[{mreg[i]}:{mreg[i]+1}], v{vLo}, s[12:15], 0 offen")
        a(f"v_add_u32 v{vLo}, {512*32}, v{vLo}")
    for par in (1, 0):
        a(f"P2_drain{par}:")
        a("s_waitcnt lgkmcnt(0)")
        if par == 1: P.stamp()
        elif o.prof == 1: P.n -= 1; P.stamp()
        if o.prof == 1:
            srd(a, 52, 32, 0x100000, WS_PROF)
            a("s_lshl_b32 s56, s2, 4")
            a("s_add_u32 s56, s56, s3")
            a("s_lshl_b32 s56, s56, 7")
            a("v_lshrrev_b32 v12, 1, v13")
            a("v_add_u32 v12, s56, v12")
            a("s_bfm_b64 exec, 32, 0")
            a("buffer_store_dword v14, v12, s[52:55], 0 offen")
            a("s_mov_b64 exec, -1")
        a(f"v_mov_b32 v{vLo}, v{vSo}")
        for i in range(NPRE): mload(i)
        a(f"s_mov_b32 s51, {RB_AT[1 - par]}")
        for i in (NS, NS + 1):
            p = (par * NS + i) % 2
            a(f"s_waitcnt vmcnt({NS + 1 - i + NPRE})")
            transpose(G0 + 4 * p)
            a("s_waitcnt lgkmcnt(0)")
            mfma2(i - 2, B0 + 4 * p)
        if par == 1: a("s_branch P2_epi")
    a("P2_epi:")
    WS_ = 32; WR_ = 36; WU = 40; WD = 42; RB = 44; SS = 48; GG = 52; UU = 56; ZZ = 28
    a("s_lshl_b32 s47, s47, 3")
    a("s_add_u32 s47, s47, s44")
    a("s_lshl_b32 s47, s47, 9")
    a("s_add_u32 s51, s51, s47")
    a(f"v_add_u32 v{vRb}, s51, v{vWt}")
    a(f"v_add_u32 v{vWt}, {WT}, v{vWt}")
    lds_wait(a, UU, XW + X_R, 4, "r", 1)
    for k in range(6): a(f"ds_read_b64 v[{WS_+2*k}:{WS_+2*k+1}], v{vWt} offset:{512*k}")
    def rbread(k): a(f"ds_read_b64 v[{RB+2*(k%2)}:{RB+2*(k%2)+1}], v{vRb} offset:{512*k}")
    rbread(0); rbread(1)
    vm = [("m", i) for i in range(NPRE)]
    def mf(d, w, i):
        h = 2 * (i % 2); r = RB + 2 * ((i // 2) % 2)
        a(f"v_mfma_f32_16x16x16_bf16 v[{d}:{d+3}], v[{w+h}:{w+h+1}], v[{r}:{r+1}], 0")
    def pack(i):
        c0 = ACC + 4 * i
        for u in range(2): a(f"v_cvt_pk_bf16_f32 v{c0+u}, v{c0+2*u}, v{c0+2*u+1}")
    def mz(i):
        c0 = ACC + 4 * i
        a(f"v_mfma_f32_16x16x16_bf16 v[{ZZ}:{ZZ+3}], v[{WD}:{WD+1}], v[{c0}:{c0+1}], 0")
    def gate(i):
        c0 = ACC + 4 * i
        for c in (0, 2): a(f"v_pk_mul_f32 v[{c0+c}:{c0+c+1}], v[{SS+c}:{SS+c+1}], v[{ZZ+c}:{ZZ+c+1}]")
        pack(i)
    pack(0)
    a("s_waitcnt lgkmcnt(0)")
    mz(0); mf(SS, WS_, 0); mf(GG, WR_, 0)
    gate(0)
    for i in range(NS):
        c0 = ACC + 4 * i; m = mreg[i]; nx = i + 1 < NS
        if i == NS - 1:
            a("s_cmp_lt_u32 s50, 17")
            a("s_cbranch_scc1 P2_fin")
        a(f"v_mfma_f32_16x16x16_bf16 v[{UU}:{UU+3}], v[{WU}:{WU+1}], v[{c0}:{c0+1}], 0")
        if nx: pack(i + 1)
        lg = f" lgkmcnt({1 if i // 2 + 2 <= 8 else 0})" if nx and i % 2 == 1 else ""
        a(f"s_waitcnt vmcnt({len(vm) - 1 - vm.index(('m', i))})" + lg)
        if nx: mf(SS, WS_, i + 1)
        a(f"v_lshlrev_b32 v{c0}, 16, v{m}")
        a(f"v_and_b32 v{c0+1}, 0xffff0000, v{m}")
        if nx: mz(i + 1)
        a(f"v_lshlrev_b32 v{c0+2}, 16, v{m+1}")
        a(f"v_and_b32 v{c0+3}, 0xffff0000, v{m+1}")
        for c in (0, 2): a(f"v_pk_fma_f32 v[{c0+c}:{c0+c+1}], v[{UU+c}:{UU+c+1}], v[{GG+c}:{GG+c+1}], v[{c0+c}:{c0+c+1}]")
        if nx: mf(GG, WR_, i + 1)
        for u in range(2): a(f"v_cvt_pk_bf16_f32 v{m+u}, v{c0+2*u}, v{c0+2*u+1}")
        a(f"buffer_store_dwordx2 v[{m}:{m+1}], v{vSo}, s[28:31], 0 offen {o.ost}")
        vm.append(("s", i))
        if nx: gate(i + 1)
        a(f"v_add_u32 v{vSo}, {512*32}, v{vSo}")
        if i % 2 == 0 and i // 2 + 2 <= 8: rbread(i // 2 + 2)
        for k in (NPRE + 2 * i, NPRE + 2 * i + 1):
            if k < NS: mload(k); vm.append(("m", k))
    a("P2_fin:")
    if o.prof:
        P.stamp()
        a("s_waitcnt vmcnt(0)")
        P.stamp(True)
        P.dump(32, 0x80000, 34, 3)
    a("P2_end:")
    a("s_endpgm")

KD = """.amdhsa_kernel {name}
  .amdhsa_next_free_vgpr 128
  .amdhsa_next_free_sgpr 100
  .amdhsa_accum_offset 128
  .amdhsa_group_segment_fixed_size 0
  .amdhsa_kernarg_size 112
  .amdhsa_user_sgpr_count 2
  .amdhsa_user_sgpr_kernarg_segment_ptr 1
  .amdhsa_system_sgpr_workgroup_id_x 1
  .amdhsa_float_denorm_mode_32 3
.end_amdhsa_kernel
"""

NAME = "gather_scatter__molecular_angular_gemnet__graph_kernel"

def build(o):
    GUARD[0] = 1000000 if o.maxr else 0
    a = Asm(); P = Prof(a, o.prof, 1)
    xw, stg = gen_p1(o, a, P); gen_p2(o, a, P, xw, stg)
    ref = open("gather_scatter__molecular_angular_gemnet__graph.s.ref").read().split("\n")
    head = [l for l in ref if l.startswith(";") and "launch geometry" not in l and "Harness parses" not in l and "@launch" not in l]
    s = "\n".join(head) + "\n"
    s += """;
"""
    s += f"; @launch grid=(256,1,1) block=(1024,1,1) lds={xw + 64}\n"
    s += '.amdgcn_target "amdgcn-amd-amdhsa--gfx950"\n.text\n'
    s += f".globl {NAME}\n.p2align 8\n.type {NAME},@function\n{NAME}:\n" + a.finish()
    s += '.section .rodata,"a"\n.p2align 6\n' + KD.format(name=NAME)
    return s

def parser():
    p = argparse.ArgumentParser()
    p.add_argument("-S", type=int, default=11)
    for k, d in dict(prof=0, maxr=0, dstep=4, asplit=12, sw=1, psleep=2, csleep=2, gsleep=24, maxpoll=1000000, eprio=0, nd=4, cs=256, cg=14, ck=0, an0=12, sk=0, nf=2, ng=2, ssleep=1, wsh=50, xp=0, skip=1, l0=9, pfs=14, pfd=2, own=1, swo=36000, swd=0, nornd=0, pp=5, nb=5, sw0=4, pf0=3, pfw=0, pfn=5, ldp=1, spr=2, f0=0, cpf=14, nl=5, lstep=0, fuse=1, cmap=2, rot=0).items():
        p.add_argument("--" + k, type=int, default=d)
    p.add_argument("--p1_ld", default="nt")
    p.add_argument("--p1_st", default="sc1")
    p.add_argument("--ost", default="nt")
    p.add_argument("--gfl", default="")
    p.add_argument("-o", default="gather_scatter__molecular_angular_gemnet__graph.s")
    return p

if __name__ == "__main__":
    o = parser().parse_args()
    open(o.o, "w").write(build(o))
```

```python
import sys, argparse
from asmlib import Asm

E = 800000; T = 12800000
NT = 256
CHA = 25088
TILE_N = 50000
TILE_BYTES = 300032
WS_DESC = 0x5000000
WS_PROF = 0x6000000
CAP = 56
WSTR = CAP * 4
MARK = 0x38100000
NG = 196
CL = E // 8
WREG = 9472

GUARD = [0]
def guard(a):
    if GUARD[0]:
        a("s_add_u32 s99, s99, 1")
        a(f"s_cmp_gt_u32 s99, {GUARD[0]}")
        a("s_cbranch_scc1 P2_end")

def slicing(o):
    B = (o.f0 << 26) // 100
    K = ((o.S << 26) - B) // E
    return K, B

def srd(a, d, base, size, off=None):
    if off is None:
        a(f"s_mov_b32 s{d}, s{base}")
        a(f"s_mov_b32 s{d+1}, s{base+1}")
    else:
        a(f"s_add_u32 s{d}, s{base}, {off}")
        a(f"s_addc_u32 s{d+1}, s{base+1}, 0")
    a(f"s_mov_b32 s{d+2}, {size}")
    a(f"s_mov_b32 s{d+3}, 0x20000")

class Prof:
    def __init__(self, a, on, fuse=0): self.a = a; self.on = on; self.n = 0; self.fuse = fuse
    def stamp(self, key=False):
        if not self.on or (self.on == 2 and not key): return
        a = self.a
        a("s_waitcnt lgkmcnt(0)")
        a("s_memtime s[58:59]")
        a("s_waitcnt lgkmcnt(0)")
        a(f"s_mov_b32 s{60+self.n}, s58")
        a("s_memrealtime s[58:59]")
        a("s_waitcnt lgkmcnt(0)")
        a(f"s_mov_b32 s{72+self.n}, s58")
        self.n += 1
    def dump(self, wsreg, region, vt, wave_sreg):
        if not self.on: return
        a = self.a
        srd(a, 52, wsreg, 0x100000, WS_PROF + region)
        a(f"s_lshl_b32 s56, s2, 4")
        a(f"s_add_u32 s56, s56, s{wave_sreg}")
        a(f"s_lshl_b32 s56, s56, 7")
        a("s_mov_b64 exec, 1")
        for i in range(self.n):
            a(f"v_mov_b32 v{vt}, s56")
            a(f"v_mov_b32 v{vt+1}, s{60+i}")
            a(f"buffer_store_dword v{vt+1}, v{vt}, s[52:55], 0 offen offset:{4*i}")
            a(f"v_mov_b32 v{vt+1}, s{72+i}")
            a(f"buffer_store_dword v{vt+1}, v{vt}, s[52:55], 0 offen offset:{64+4*i}")
        a(f"v_mov_b32 v{vt+1}, s71")
        a(f"buffer_store_dword v{vt+1}, v{vt}, s[52:55], 0 offen offset:124")
        a("s_waitcnt vmcnt(0)")
        a("s_mov_b64 exec, -1")

def gen_p1(o, a, P):
    S = o.S
    NK = S * 256
    KSL, BSL = slicing(o)
    CN = 16; SCR = CN + NK * 4; STG = SCR + 64; XW = STG + CHA * 6
    W0 = 4; KP0 = 53; C0 = 78; TO = 103; T0 = 104
    ld = o.p1_ld; st = o.p1_st
    vmq = []
    def issue_out(r):
        b = C0 + 4 * (r % 6)
        a(f"buffer_load_dwordx4 v[{b}:{b+3}], v2, s[12:15], s36 offen {ld}")
        a(f"s_add_u32 s36, s36, {CS * 16384}")
        vmq.append(("o", r))
    def issue_in(r):
        w = W0 + 4 * r
        a(f"buffer_load_dwordx4 v[{w}:{w+3}], v2, s[8:11], s4 offen {ld}")
        a(f"s_add_u32 s4, s4, {CS * 16384}")
        vmq.append(("i", r))
    seq = [("i", r) for r in range(o.sk)]
    for r in range(12):
        seq.append(("o", r))
        if r + o.sk < 12: seq.append(("i", r + o.sk))
    def issue_next(n):
        for _ in range(n):
            if seq:
                k, r = seq.pop(0)
                (issue_in if k == "i" else issue_out)(r)
    def issue_ang(r):
        b = C0 + 2 * r
        a(f"buffer_load_dwordx2 v[{b}:{b+1}], v2, s[16:19], s37 offen {ld}")
        a(f"s_add_u32 s37, s37, {CS * 8192}")
    DP = o.ldp
    CS = o.cs
    a("s_load_dwordx2 s[8:9], s[0:1], 8")
    a("s_load_dwordx2 s[12:13], s[0:1], 16")
    a("s_cmp_ge_u32 s2, 256")
    a("s_cbranch_scc1 P2_end")
    if o.cpf:
        a("s_getpc_b64 s[40:41]")
        a("P1_pc:")
        a("s_lshr_b32 s45, s2, 3")
        a(f"s_mulk_i32 s45, {o.cpf}")
        a(f"s_mov_b32 s42, P2_end-P1_pc")
        a("s_mov_b32 s43, 0x20000")
        a(f"v_add_lshl_u32 v{T0+23}, v0, s45, 7")
        a(f"v_cmp_gt_u32 vcc, {o.cpf}, v0")
        a("s_and_b64 exec, exec, vcc")
        a("s_cbranch_execz P1_nopf")
        a(f"buffer_load_dword v{T0+23}, v{T0+23}, s[40:43], 0 offen")
        a("P1_nopf:")
        a("s_mov_b64 exec, -1")
    a(f"s_mov_b32 s10, {T * 4}")
    a("s_mov_b32 s11, 0x20000")
    a("s_mov_b64 s[14:15], s[10:11]")
    if o.cg < 14:
        assert CS == 256
        a(f"s_lshl_b32 s36, s2, {o.cg}")
    elif CS == 1:
        a(f"s_mul_i32 s36, s2, {12 * 16384}")
    else:
        a(f"s_andn2_b32 s36, s2, {CS - 1}")
        a(f"s_mulk_i32 s36, 11")
        a(f"s_add_u32 s36, s36, s2")
        a(f"s_lshl_b32 s36, s36, 14")
    a("s_lshr_b32 s37, s36, 1")
    a("s_mov_b32 s4, s36")
    a("v_lshlrev_b32 v1, 4, v0")
    if o.cg < 14:
        a(f"v_lshrrev_b32 v2, {o.cg}, v1")
        a(f"v_mul_u32_u24 v2, {255 << o.cg}, v2")
        a("v_add_u32 v2, v2, v1")
    else:
        a("v_mov_b32 v2, v1")
    a("s_waitcnt lgkmcnt(0)")
    P.stamp(True)
    issue_next(o.nf)
    if GUARD[0]: a("s_mov_b32 s99, 0")
    a("s_load_dwordx2 s[16:17], s[0:1], 32")
    a("s_load_dwordx2 s[30:31], s[0:1], 48")
    a("s_load_dwordx2 s[32:33], s[0:1], 104")
    a("s_load_dwordx2 s[94:95], s[0:1], 96")
    a("s_load_dwordx2 s[48:49], s[0:1], 0")
    a("s_load_dwordx2 s[86:87], s[0:1], 88")
    a("v_mov_b32 v3, 1")
    for i in range(4): a(f"v_mov_b32 v{T0+i}, 0")
    a(f"ds_write_b128 v1, v[{T0}:{T0+3}]")
    a(f"v_lshrrev_b32 v{T0+4}, 6, v0")
    a(f"v_readfirstlane_b32 s3, v{T0+4}")
    a(f"s_mul_i32 s34, s2, 848")
    a(f"s_add_u32 s34, s34, {3072*4096}")
    a(f"v_add_u32 v109, s34, v0")
    a(f"v_cmp_gt_u32 vcc, 848, v0")
    a(f"v_lshlrev_b32 v110, 2, v109")
    a(f"v_lshlrev_b32 v109, 1, v109")
    a(f"v_cndmask_b32 v110, 2.0, v110, vcc")
    a(f"v_cndmask_b32 v109, 2.0, v109, vcc")
    a(f"buffer_load_dword v{TO}, v110, s[12:15], 0 offen {ld}")
    a(f"buffer_load_dword v{W0+48}, v110, s[8:11], 0 offen {ld}")
    a(f"s_mov_b32 s18, {T * 2}")
    a("s_mov_b32 s19, 0x20000")
    a("s_waitcnt lgkmcnt(0)")
    a("s_load_dword s35, s[30:31], 0")
    a(f"buffer_load_ushort v{C0+24}, v109, s[16:19], 0 offen {ld}")
    vmq.extend([("t", 0), ("t", 1), ("t", 2)])
    a("s_mov_b32 s38, 0x7c00")
    MG = -(-(1 << 19) // S)
    assert all((n * MG) >> 19 == n // S for n in range(4096))
    a(f"s_mov_b32 s40, {(-(1024*S - 4)) & 0xffffffff}")
    for j in range(4):
        t = T0 + 16 + j
        a(f"v_lshl_add_u32 v{t}, v0, 2, {j}")
        a(f"v_mul_u32_u24 v{T0}, {MG}, v{t}")
        a(f"v_lshrrev_b32 v{T0}, 19, v{T0}")
        a(f"v_lshlrev_b32 v{t}, 10, v{t}")
        a(f"v_mad_i32_i24 v{t}, v{T0}, s40, v{t}")
        a(f"v_add_u32 v{t}, {STG}, v{t}")
    srd(a, 20, 32, NT * NT * S * 4, WS_DESC)
    srd(a, 24, 94, 256)
    a("s_mov_b32 s44, 0")
    a(f"s_mov_b32 s39, {KSL}")
    a(f"v_mov_b32 v{T0+22}, {(BSL - (CL * KSL if o.own == 1 else 0)) & 0xffffffff}")
    a(f"s_mov_b32 s5, {CL}")
    a(f"v_mov_b32 v{T0+20}, 0x7c")
    a(f"v_mov_b32 v{T0+21}, 0x0ff00000")
    a("s_barrier")
    KX = -(-(1 << 28) // (CL // 16))
    assert all(((k * (CL // 16) + d) * KX) >> 28 == (k * (CL // 16) + d) // (CL // 16) for k in range(1, 9) for d in (-1, 0) if k < 8 or d < 0)
    def key(O, W, t):
        x, xb, d, n = t, t + 1, t + 2, t + 3
        a(f"v_and_b32 v{x}, -16, v{O}")
        a(f"v_mul_hi_u32_u24 v{x}, {KX}, v{x}")
        a(f"v_mul_u32_u24 v{xb}, {CL}, v{x}")
        a(f"v_sub_u32 v{d}, v{W}, v{xb}")
        a(f"v_sub_u32 v{O}, v{O}, v{xb}")
        if o.own == 1:
            a(f"v_cmp_gt_u32 s[42:43], s5, v{d}")
            a(f"v_ashrrev_i32 v{n}, 31, v{d}")
            a(f"v_add_u32 v{d}, {8 * CL}, v{d}")
            a(f"v_and_b32 v{n}, {CL}, v{n}")
            a(f"v_add_u32 v{n}, v{n}, v{W}")
            a(f"v_cndmask_b32 v{n}, v{n}, v{d}, s[42:43]")
        elif o.own == 2:
            a(f"v_subrev_u32 v{d}, {CL}, v{d}")
            a(f"v_add_u32 v{n}, {E}, v{d}")
            a(f"v_min_u32 v{n}, v{n}, v{d}")
        else:
            a(f"v_mov_b32 v{n}, v{W}")
        a(f"v_lshlrev_b32 v{xb}, 11, v{O}")
        a(f"v_lshl_or_b32 v{W}, v{O}, 28, v{W}")
        a(f"v_mad_u32_u24 v{n}, v{n}, s39, v{T0+22}")
        a(f"v_lshrrev_b32 v{O}, 2, v{O}")
        a(f"v_bitop3_b32 v{W}, v{xb}, v{T0+21}, v{W} bitop3:0xea")
        a(f"v_and_b32_sdwa v{n}, v{n}, s38 dst_sel:DWORD dst_unused:UNUSED_PAD src0_sel:WORD_1 src1_sel:DWORD")
        a(f"v_lshl_or_b32 v{n}, v{x}, 7, v{n}")
        a(f"v_bitop3_b32 v{O}, v{O}, v{T0+20}, v{n} bitop3:0xea")
    done = [0]
    def wait_for(ops):
        while True:
            need = max(vmq.index(x) for x in ops) + 1 if all(x in vmq for x in ops) else None
            if need is not None and need <= done[0]: return
            idx = [k for k in range(done[0], len(vmq)) if vmq[k][0] != "t"]
            tgt = idx[min(o.ng, len(idx)) - 1] + 1 if idx else len(vmq)
            a(f"s_waitcnt vmcnt({len(vmq) - tgt})")
            n = sum(1 for k in range(done[0], tgt) if vmq[k][0] != "t")
            done[0] = tgt
            issue_next(n)
    for r in range(12):
        wait_for([("o", r), ("i", r)])
        assert all(k != "o" or q < r + 6 for k, q in vmq)
        if r == 2:
            wait_for([("t", 2)])
            key(TO, W0 + 48, T0)
            a(f"v_cndmask_b32 v{KP0+24}, 2.0, v{TO}, vcc")
            a(f"ds_add_u32 v{KP0+24}, v3 offset:{CN}")
        b = C0 + 4 * (r % 6)
        for j in range(4):
            key(b + j, W0 + 4 * r + j, T0 + 4 * j)
            a(f"ds_add_u32 v{b+j}, v3 offset:{CN}")
        a(f"v_lshl_or_b32 v{KP0+2*r}, v{b+1}, 16, v{b}")
        a(f"v_lshl_or_b32 v{KP0+2*r+1}, v{b+3}, 16, v{b+2}")
    a("v_lshrrev_b32 v2, 1, v2")
    a("s_waitcnt lgkmcnt(0)")
    a("s_barrier")
    P.stamp()
    c = T0; x = T0 + 4; tot = T0 + 5; y = T0 + 6
    a(f"s_cmp_ge_u32 s3, {S}")
    a("s_cbranch_scc1 P1_scan1")
    a(f"ds_read_b128 v[{c}:{c+3}], v1 offset:{CN}")
    a("s_waitcnt lgkmcnt(0)")
    a(f"v_add_u32 v{c+1}, v{c}, v{c+1}")
    a(f"v_add_u32 v{c+2}, v{c+1}, v{c+2}")
    a(f"v_add_u32 v{c+3}, v{c+2}, v{c+3}")
    a(f"v_mov_b32 v{x}, v{c+3}")
    for sh in (1, 2, 4, 8):
        a(f"v_add_u32_dpp v{x}, v{x}, v{x} row_shr:{sh} row_mask:0xf bank_mask:0xf bound_ctrl:1")
    a(f"v_add_u32_dpp v{x}, v{x}, v{x} row_bcast:15 row_mask:0xa bank_mask:0xf")
    a(f"v_add_u32_dpp v{x}, v{x}, v{x} row_bcast:31 row_mask:0xc bank_mask:0xf")
    a(f"v_readlane_b32 s40, v{x}, 63")
    a(f"s_lshl_b32 s41, s3, 2")
    a(f"v_mov_b32 v{y}, s41")
    a(f"v_mov_b32 v{y+1}, s40")
    a(f"ds_write_b32 v{y}, v{y+1} offset:{SCR}")
    a("s_waitcnt lgkmcnt(0)")
    a("P1_scan1:")
    a("s_barrier")
    a(f"s_cmp_ge_u32 s3, {S}")
    a("s_cbranch_scc1 P1_scan2")
    a(f"v_and_b32 v{y}, 63, v0")
    a(f"v_lshlrev_b32 v{y+1}, 2, v{y}")
    a(f"ds_read_b32 v{y+2}, v{y+1} offset:{SCR}")
    a(f"v_cmp_gt_u32 s[42:43], s3, v{y}")
    a(f"v_sub_u32 v{x}, v{x}, v{c+3}")
    a("s_waitcnt lgkmcnt(0)")
    a(f"v_cndmask_b32 v{y+2}, 0, v{y+2}, s[42:43]")
    for sh in (1, 2, 4, 8):
        a(f"v_add_u32_dpp v{y+2}, v{y+2}, v{y+2} row_shr:{sh} row_mask:0xf bank_mask:0xf bound_ctrl:1")
    a(f"v_readlane_b32 s40, v{y+2}, 15")
    s0 = T0 + 12
    a(f"v_add_u32 v{s0}, s40, v{x}")
    for j in range(3): a(f"v_add_u32 v{s0+1+j}, v{s0}, v{c+j}")
    a(f"ds_write_b128 v1, v[{s0}:{s0+3}] offset:{CN}")
    a(f"ds_write_b128 v1, v[{s0}:{s0+3}] offset:{STG}")
    a(f"v_mov_b32 v{c}, {STG + NK * 4}")
    a(f"v_mov_b32 v{c+1}, {TILE_N}")
    a(f"ds_write_b32 v{c}, v{c+1}")
    a("s_waitcnt lgkmcnt(0)")
    a("P1_scan2:")
    a("s_barrier")
    a(f"s_cmp_ge_u32 s3, {S}")
    a("s_cbranch_scc1 P1_nodesc")
    for j in range(4):
        a(f"ds_read2_b32 v[{T0+2*j}:{T0+2*j+1}], v{T0+16+j} offset0:0 offset1:1")
    a(f"s_mul_i32 s40, s2, {256*S*4}")
    lds_count(a, T0 + 8, 4)
    for j in range(4): a(f"v_lshl_or_b32 v{T0+12+j}, v{T0+2*j+1}, 16, v{T0+2*j}")
    a(f"buffer_store_dwordx4 v[{T0+12}:{T0+15}], v1, s[20:23], s40 offen {st}")
    a("P1_nodesc:")
    a(f"s_mul_i32 s40, s3, {WREG - 1024}")
    a(f"s_add_u32 s40, s40, {9*1024}")
    a(f"v_add_u32 v{TO}, s40, v1")
    srd(a, 8, 48, E * 32)
    a(f"s_mul_i32 s41, s2, {o.pfn * 64}")
    a(f"s_sub_u32 s41, s41, {o.pfw * 64}")
    a("v_add_lshl_u32 v1, v0, s41, 7")
    if o.pp & 1: a("s_setprio 3")
    def atomics(n):
        t = T0 + 4 * (n % 2)
        if n == 12:
            a(f"ds_add_rtn_u32 v{t}, v{KP0+24}, v3 offset:{CN}"); return 1
        for j in range(4):
            kp = KP0 + 2 * n + j // 2
            if j % 2 == 0: a(f"v_and_b32 v{t+j}, 0xffff, v{kp}")
            else: a(f"v_lshrrev_b32 v{t+j}, 16, v{kp}")
            a(f"ds_add_rtn_u32 v{t+j}, v{t+j}, v3 offset:{CN}")
        return 4
    a(f"s_cmp_ge_u32 s3, {o.asplit}")
    a("s_cbranch_scc1 P1_ang1")
    for n in range(o.an0): issue_ang(n)
    a("P1_ang1:")
    atomics(0)
    for n in range(13):
        k = atomics(n + 1) if n < 12 else 0
        if o.an0 + n < 12:
            a(f"s_cmp_ge_u32 s3, {o.asplit}")
            a(f"s_cbranch_scc1 P1_an{n}")
            issue_ang(o.an0 + n)
            a(f"P1_an{n}:")
        a(f"s_waitcnt lgkmcnt({k})")
        t = T0 + 4 * (n % 2); u = T0 + 8
        if n < 12:
            a(f"v_lshl_or_b32 v{KP0+2*n}, v{t+1}, 16, v{t}")
            a(f"v_lshl_or_b32 v{KP0+2*n+1}, v{t+3}, 16, v{t+2}")
        else:
            a(f"v_mov_b32 v{u}, 0xffff")
            a(f"v_cndmask_b32 v{KP0+24}, v{u}, v{t}, vcc")
    a(f"s_cmp_lt_u32 s3, {o.asplit}")
    a("s_cbranch_scc1 P1_ang2")
    for n in range(12): issue_ang(n)
    a("P1_ang2:")
    a("s_lshl_b32 s35, s35, 16")
    a("s_cmp_eq_u32 s35, 1.0")
    a("s_cbranch_scc1 P1_f1")
    a("s_waitcnt vmcnt(0)")
    for n in range(25):
        cr = C0 + n; t = T0
        a(f"v_lshlrev_b32 v{t}, 16, v{cr}")
        a(f"v_and_b32 v{t+1}, 0xffff0000, v{cr}")
        a(f"v_mul_f32 v{t}, s35, v{t}")
        a(f"v_mul_f32 v{t+1}, s35, v{t+1}")
        a(f"v_cvt_pk_bf16_f32 v{cr}, v{t}, v{t+1}")
    a("P1_f1:")
    lds_wait(a, T0, 4, S, "q", 0)
    def addrs(n, h, u, base):
        a(f"v_mad_u32_u16 v{u}, v{KP0+n}, 6, {base}" + (" op_sel:[1,0,0,0]" if h else ""))
        a(f"v_and_b32 v{u+1}, 2, v{u}")
        a(f"v_sub_u32 v{u}, v{u}, v{u+1}")
        a(f"v_sub_u32 v{u+1}, v{u}, v{u+1}")
    for n in range(25):
        cr = C0 + n; t = T0 + 6 * (n % 2)
        if o.pp & 1 and n in (0, 9, 17): a(f"s_setprio {2 - n // 8}")
        if o.pf0 == 3:
            if n == 0: a("s_waitcnt vmcnt(0)")
            for w in range(o.pfn):
                if o.pfs + (w * o.pfd) // 2 == n:
                    a(f"s_cmp_lg_u32 s3, {o.pfw + w}")
                    a(f"s_cbranch_scc1 P1_npf{w}")
                    a("buffer_load_dword v1, v1, s[8:11], 0 offen")
                    a(f"P1_npf{w}:")
        elif n % 2 == 0 and n < 24: a(f"s_waitcnt vmcnt({11 - n // 2})")
        if n == 0:
            a(f"s_cmp_ge_u32 s3, {S}")
            a("s_cbranch_scc1 P1_noe")
            a("s_waitcnt vmcnt(0)")
            lds_ticket(a, 2, 8)
            a(f"s_cmp_lg_u32 s40, {S-1}")
            a("s_cbranch_scc1 P1_noe")
            arrive(a, 2, LV_E)
            a("s_mov_b32 s44, 1")
            a("P1_noe:")
        if n == 14:
            a("s_cmp_eq_u32 s44, 0")
            a("s_cbranch_scc1 P2_norele")
            release(a, 2, LV_E, "e")
        a(f"v_lshlrev_b32 v{t}, 16, v{cr}")
        a(f"v_and_b32 v{t+1}, 0xffff0000, v{cr}")
        a(f"v_mul_f32 v{t}, 0.15915494, v{t}")
        a(f"v_mul_f32 v{t+1}, 0.15915494, v{t+1}")
        a(f"v_fract_f32 v{t}, v{t}")
        a(f"v_fract_f32 v{t+1}, v{t+1}")
        a(f"v_cos_f32 v{t}, v{t}")
        a(f"v_cos_f32 v{t+1}, v{t+1}")
        for h in range(2 if n < 24 else 1):
            u = t + 2 + 2 * h
            addrs(n, h, u, 0)
            a(f"ds_write_b32 v{u}, v{W0+2*n+h} offset:{STG}")
        a(f"v_cvt_pk_bf16_f32 v{cr}, v{t}, v{t+1}")
        a(f"ds_write_b16 v{t+3}, v{cr} offset:{STG+8}")
        if n < 24: a(f"ds_write_b16_d16_hi v{t+5}, v{cr} offset:{STG+8}")
    a(f"s_mul_i32 s40, s2, {TILE_BYTES}")
    srd(a, 20, 32, CHA * 6, "s40")
    a(f"v_subrev_u32 v2, {9*1024}, v{TO}")
    a("s_mov_b32 s44, 0")
    if o.pf0 == 2:
        a(f"s_sub_u32 s40, s3, {o.pfw}")
        a(f"s_cmp_ge_u32 s40, {o.pfn}")
        a("s_cbranch_scc1 P1_nopf0")
        a("buffer_load_dword v1, v1, s[8:11], 0 offen")
        a("P1_nopf0:")
    a("s_waitcnt lgkmcnt(0)")
    a("s_barrier")
    P.stamp()
    a(f"s_cmp_lg_u32 s3, 15")
    a("s_cbranch_scc1 P1_noclr")
    a(f"v_and_b32 v3, 15, v0")
    a(f"v_lshlrev_b32 v3, 2, v3")
    a(f"v_add_u32 v3, {XW}, v3")
    a(f"v_mov_b32 v{T0}, 0")
    a(f"ds_write_b32 v3, v{T0}")
    a("P1_noclr:")
    def rd(k):
        t = T0 + 4 * (k % 6)
        a(f"ds_read_b128 v[{t}:{t+3}], v2 offset:{STG + 1024 * (9 - k)}")
    def store(k):
        t = T0 + 4 * (k % 6)
        if k == 0: a("s_mov_b64 exec, 0xffff")
        a(f"buffer_store_dwordx4 v[{t}:{t+3}], v{TO}, s[20:23], 0 offen {st}")
        if k == 0: a("s_mov_b64 exec, -1")
        a(f"v_subrev_u32 v{TO}, 1024, v{TO}")
    NB = o.nb
    for k in range(6): rd(k)
    for k in range(NB):
        a(f"s_waitcnt lgkmcnt({min(5, 9-k)})")
        store(k)
        if k + 6 < 10: rd(k + 6)
    a(f"s_waitcnt vmcnt({NB}) lgkmcnt(0)")
    a(f"s_cmp_ge_u32 s3, {o.nd}")
    a("s_cbranch_scc1 P1_nod")
    for k in range(NB, 10): store(k)
    a("s_waitcnt vmcnt(0)")
    lds_ticket(a, T0, 0)
    a(f"s_cmp_lg_u32 s40, {o.nd-1}")
    a("s_cbranch_scc1 P1_nod")
    arrive(a, T0, LV_D)
    a("s_mov_b32 s44, 1")
    a("P1_nod:")
    a(f"s_mov_b32 s45, {(-CHA*6) & 0xffffffff}")
    a("s_barrier")
    P.stamp()
    nnow = NB
    for n in range(25):
        if o.pp & 2 and n in (0, 9, 17): a(f"s_setprio {2 - n // 8}")
        if o.pp & 4 and n in (0, 9, 17):
            if n == 0: a("s_setprio 3")
            a("s_cmp_lt_u32 s3, 4")
            a(f"s_cbranch_scc1 P1_pr{n}")
            a(f"s_setprio {2 - n // 8}")
            a(f"P1_pr{n}:")
        if n == 1:
            a("s_cmp_eq_u32 s44, 0")
            a("s_cbranch_scc1 P2_noreld")
            release(a, T0, LV_D, "d")
        if n % o.dstep == 1 and nnow < 10:
            a(f"s_cmp_lt_u32 s3, {o.nd}")
            a(f"s_cbranch_scc1 P1_ns{n}")
            store(nnow); nnow += 1
            a(f"P1_ns{n}:")
        for h in range(2 if n < 24 else 1):
            u = 2 * h
            addrs(n, h, u, "s45")
            a(f"ds_write_b32 v{u}, v{W0+2*n+h} offset:{STG}")
            a(f"ds_write_b16{'_d16_hi' if h else ''} v{u+1}, v{C0+n} offset:{STG+8}")
    assert nnow == 10
    lds_count(a, 4, XW + X_S)
    a(f"s_mul_i32 s40, s2, {TILE_BYTES}")
    a(f"s_add_u32 s40, s40, {CHA*6}")
    srd(a, 20, 32, (TILE_N - CHA) * 6, "s40")
    return XW, STG

LV_A, LV_B, LV_D, LV_E = 0, 1, 2, 3
X_A, X_S, X_X, X_I, X_B, X_R, X_C, X_H, X_CW, X_PW = 0, 4, 8, 12, 16, 20, 24, 28, 32, 48

def arrive(a, t, level):
    a(f"v_mov_b32 v{t}, 0")
    a(f"v_mov_b32 v{t+1}, 1")
    a("s_mov_b64 exec, 1")
    a(f"buffer_atomic_add v{t+1}, v{t}, s[24:27], 0 offen offset:{32*level} sc0 sc1")
    a("s_mov_b64 exec, -1")

def release(a, t, level, tag):
    a("s_waitcnt vmcnt(0)")
    a(f"v_readfirstlane_b32 s40, v{t+1}")
    a("s_cmp_lg_u32 s40, 255")
    a(f"s_cbranch_scc1 P2_norel{tag}")
    a("s_mov_b64 exec, 1")
    a(f"buffer_store_dword v{t+1}, v{t}, s[24:27], 0 offen offset:{128+4*level} sc1")
    a("s_mov_b64 exec, -1")
    a(f"P2_norel{tag}:")

def lds_count(a, t, word):
    a(f"v_mov_b32 v{t}, {word}")
    a(f"v_mov_b32 v{t+1}, 1")
    a("s_mov_b64 exec, 1")
    a("s_waitcnt lgkmcnt(0)")
    a(f"ds_add_u32 v{t}, v{t+1}")
    a("s_mov_b64 exec, -1")

def lds_wait(a, t, word, n, tag, sleep):
    a(f"v_mov_b32 v{t}, {word}")
    a(f"P2_lw{tag}:")
    a(f"ds_read_b32 v{t+1}, v{t}")
    a("s_waitcnt lgkmcnt(0)")
    a(f"v_readfirstlane_b32 s40, v{t+1}")
    a(f"s_cmp_ge_u32 s40, {n}")
    a(f"s_cbranch_scc1 P2_lg{tag}")
    if sleep: a(f"s_sleep {sleep}")
    guard(a)
    a(f"s_branch P2_lw{tag}")
    a(f"P2_lg{tag}:")

def lds_ticket(a, t, word):
    a(f"v_mov_b32 v{t}, {word}")
    a(f"v_mov_b32 v{t+1}, 1")
    a("s_mov_b64 exec, 1")
    a(f"ds_add_rtn_u32 v{t+1}, v{t}, v{t+1}")
    a("s_mov_b64 exec, -1")
    a("s_waitcnt lgkmcnt(0)")
    a(f"v_readfirstlane_b32 s40, v{t+1}")

def publish_a(a, t, XW, tag):
    lds_ticket(a, t, XW + X_A)
    a("s_cmp_lg_u32 s40, 15")
    a(f"s_cbranch_scc1 P2_norel{tag}")
    arrive(a, t, LV_A)
    release(a, t, LV_A, tag)

def gen_p2(o, a, P, XW, STG):
    S = o.S
    uid = [0]
    LUT = 2048; CB = 2560; WSZ = NG * WSTR
    RBSZ = 100 * 512
    X1 = RBSZ + 32
    WT = CB + WSZ // 2 + 16
    WB = CB + X1 // 2 + WSZ // 2 + 16
    RB_AT = (WB, WB + WSZ + 32)
    K0 = (WB - STG) // 12288; K1 = (WB + X1 - STG) // 12288
    assert STG + 12288 * (K0 + 4) >= WB + WSZ + 32 and STG + 12288 * K1 >= WB + WSZ + 32 and STG + 12288 * (K1 + 4) >= WB + X1 + WSZ + 64
    SC = STG + 12288 * (K1 + 4); TSZ = 1088
    assert WT + 3072 <= CB + X1 // 2 and WB < 65536 and SC + 12 * TSZ <= XW and WB % 16 == 0 and X1 % 32 == 0
    if o.xp:
        a("s_bfe_u32 s46, s2, 0x20001")
        a("s_bitcmp0_b32 s2, 0")
        a("s_cselect_b32 s47, 4, 0")
        a("s_add_u32 s46, s46, s47")
    else:
        a("s_and_b32 s46, s2, 7")
    a("s_lshl_b32 s46, s46, 5")
    a("s_lshr_b32 s47, s2, 3")
    a("s_add_u32 s46, s46, s47")
    a("v_mbcnt_lo_u32_b32 v12, -1, 0")
    a("v_mbcnt_hi_u32_b32 v12, -1, v12")
    a("s_lshl_b32 s40, s3, 6")
    a("v_add_u32 v0, s40, v12")
    srd(a, 8, 48, E * 32)
    srd(a, 12, 32, NT * TILE_BYTES)
    srd(a, 16, 32, NT * NT * S * 4, WS_DESC)
    a("s_mov_b64 s[6:7], s[86:87]")
    if o.prof: a("s_mov_b32 s71, 0")
    a("s_mov_b32 s48, 0")
    a("s_cmp_ge_u32 s3, 4")
    a("s_cbranch_scc1 P2_consumer")
    def twait(body):
        if o.prof == 1:
            a("s_waitcnt lgkmcnt(0)")
            a("s_memtime s[56:57]")
            a("s_waitcnt lgkmcnt(0)")
        body()
        if o.prof == 1:
            a("s_memtime s[58:59]")
            a("s_waitcnt lgkmcnt(0)")
            a("s_sub_u32 s56, s58, s56")
            a("s_add_u32 s71, s71, s56")
    D0 = 40; R0 = 64
    vU12 = 1; vTile = 2; vInc = 3; v3FC = 4; vCb = 5; vZ = 6; v2U2 = 7; v2U1 = 8; vSg = 9
    n2c = 10; a0c = 11; n2n = 13; a0n = 14
    vca = 16; vcb = 17; vra = 18; vrb = 19; vwa = 20; vwb = 21; vha = 22; vhb = 23; vt = 24; vt2 = 25; vPW = 26; vS = 28
    ODDC = 52; MORC = 54; ODDN = 84; MORN = 86; ROW0 = 82; M0_ = 88; M1_ = 90
    KSL, BSL = slicing(o)
    L0 = -(-(1 << 26) // KSL) // 4 + 1
    def warm(sl, part):
        nt = -(-L0 // 512); n0 = nt * o.wsh // 100; n1 = nt - n0
        uid[0] += 1
        a(f"s_mul_i32 s40, {sl}, {L0 - 1}")
        a(f"s_lshr_b32 s41, s2, 1")
        a(f"s_lshl_b32 s41, s41, 2")
        a(f"s_add_u32 s41, s41, {part}")
        a(f"s_mul_i32 s41, s41, {nt}")
        a(f"s_add_u32 s40, s40, s41")
        a(f"s_add_u32 s40, s40, {(o.swo // 4 - BSL // KSL // 4) & 0xffffffff}")
        a("s_bitcmp1_b32 s2, 0")
        a(f"s_cselect_b32 s41, {n0}, 0")
        a(f"s_add_u32 s40, s40, s41")
        a(f"s_cmp_ge_u32 s40, {E // 4}")
        a(f"s_cbranch_scc1 P2_we{uid[0]}")
        a(f"s_min_u32 s40, s40, {E // 4 - n1}")
        a(f"s_lshl_b32 s40, s40, 7")
        a(f"s_add_u32 s36, s8, s40")
        a(f"s_addc_u32 s37, s9, 0")
        for j in range(n1):
            if j == n0:
                a("s_bitcmp0_b32 s2, 0")
                a(f"s_cbranch_scc1 P2_we{uid[0]}")
            a(f"s_load_dwordx2 s[38:39], s[36:37], {128*j+60}")
        a(f"P2_we{uid[0]}:")
    def poll(level, tag, meanwhile=None):
        a("s_mov_b32 s51, 0")
        a(f"P2_poll{tag}:")
        a(f"buffer_load_dword v{vt}, v{vZ}, s[24:27], 0 offen offset:{128+4*level} sc1")
        a("s_add_u32 s51, s51, 1")
        a(f"s_cmp_gt_u32 s51, {o.maxpoll}")
        a("s_cbranch_scc1 P2_giveup")
        if meanwhile: a(f"s_call_b64 s[34:35], {meanwhile}")
        a("s_waitcnt vmcnt(0)")
        a(f"v_cmp_eq_u32 vcc, 0, v{vt}")
        a(f"s_cbranch_vccz P2_polled{tag}")
        a(f"s_sleep {o.gsleep}")
        a(f"s_branch P2_poll{tag}")
        a(f"P2_polled{tag}:")
    def ensure():
        uid[0] += 1; u = uid[0]
        a(f"v_cmp_lt_u32 vcc, s45, v{D0}")
        a(f"s_cbranch_vccz P2_have{u}")
        a("s_call_b64 s[42:43], P2_ensure")
        a(f"P2_have{u}:")
    def prep():
        ensure()
        a(f"v_bfe_u32 v{vt}, v{D0}, 1, 15")
        a(f"v_mad_u32_u24 v{a0n}, v{vt}, 12, v{vTile}")
        a(f"v_lshrrev_b32 v{n2n}, 16, v{D0}")
        a(f"v_and_b32 v{vt}, 0xfffe, v{D0}")
        a(f"v_sub_u32 v{n2n}, v{n2n}, v{vt}")
        a(f"v_and_b32 v{vt}, 1, v{D0}")
        a(f"v_cmp_eq_u32 s[{ODDN}:{ODDN+1}], 1, v{vt}")
        a(f"v_cmp_lt_u32 s[{MORN}:{MORN+1}], 32, v{n2n}")
        for k in range(S): a(f"v_mov_b32 v{D0+k}, v{D0+k+1}")
    def issue(i):
        t = (vt, vca)[i % 2]
        a(f"v_add_u32_dpp v{t}, v{a0n}, v{vU12} row_newbcast:{i} row_mask:0xf bank_mask:0xf")
        a(f"v_sub_u32_dpp v{t+1}, v{n2n}, v{v2U1} row_newbcast:{i} row_mask:0xf bank_mask:0xf")
        a(f"v_bitop3_b32 v{t}, v{t+1}, v{vSg}, v{t} bitop3:0xea")
        r = R0 + 4 * i
        a(f"buffer_load_dwordx3 v[{r}:{r+2}], v{t}, s[12:15], 0 offen sc1")
    def unhold():
        a("s_lshl_b32 s40, 1, s3")
        a(f"v_mov_b32 v{vt}, {XW + X_H}")
        a(f"v_mov_b32 v{vt2}, s40")
        a("s_mov_b64 exec, 1")
        a(f"ds_or_b32 v{vt}, v{vt2}")
        a("s_mov_b64 exec, -1")
    def next_round(regular):
        a("s_call_b64 s[42:43], P2_next")
        if regular:
            ensure()
            if o.sw:
                a(f"s_sub_u32 s4, s49, {o.swd}")
                a(f"s_cmp_lt_u32 s4, {o.sw0}")
                a("s_cbranch_scc1 P2_nowarm")
                a(f"s_cmp_ge_u32 s4, {-(-(E - o.swo) // (4 * (L0 - 1)))}")
                a("s_cbranch_scc1 P2_nowarm")
                warm("s4", "s3")
                a("P2_nowarm:")
        a("s_call_b64 s[42:43], P2_wait")
    def wait_buffer(tag):
        a("s_add_u32 s50, s48, 1")
        a("s_lshr_b32 s50, s50, 1")
        a("s_mul_i32 s50, s50, 12")
        a("s_and_b32 s51, s48, 1")
        a("s_lshl_b32 s51, s51, 2")
        a(f"s_add_u32 s51, s51, {XW + X_CW}")
        a(f"v_mov_b32 v{vt2}, s51")
        a(f"P2_pw{tag}:")
        a(f"ds_read_b32 v{vt}, v{vt2}")
        a("s_waitcnt lgkmcnt(0)")
        a(f"v_readfirstlane_b32 s51, v{vt}")
        a("s_cmp_ge_u32 s51, s50")
        a(f"s_cbranch_scc1 P2_pg{tag}")
        a(f"s_sleep {o.psleep}")
        guard(a)
        a(f"s_branch P2_pw{tag}")
        a(f"P2_pg{tag}:")
    a("s_setprio 3")
    a("s_waitcnt vmcnt(0)")
    publish_a(a, vt, XW, "ap")
    a(f"s_lshl_b32 s47, s3, 6")
    a(f"v_add_u32 v{vTile}, s47, v12")
    a(f"s_lshl_b32 s50, s3, 2")
    a(f"s_add_u32 s50, s50, {XW + X_PW}")
    a(f"v_mov_b32 v{vPW}, s50")
    a(f"v_lshlrev_b32 v15, 8, v{vTile}")
    a(f"v_add_u32 v15, s46, v15")
    a(f"v_mul_u32_u24 v15, {4*S}, v15")
    a(f"v_mov_b32 v{D0+S}, 0")
    a(f"v_mul_u32_u24 v{vTile}, {TILE_BYTES}, v{vTile}")
    a(f"v_and_b32 v{vt}, 15, v12")
    a(f"v_mul_u32_u24 v{vU12}, 12, v{vt}")
    a(f"v_lshl_add_u32 v{v2U1}, v{vt}, 1, 1")
    a(f"v_add_u32 v{v2U2}, 1, v{v2U1}")
    a(f"v_mov_b32 v{vInc}, {(1 << 20) + 4}")
    a(f"v_mov_b32 v{v3FC}, 0x3fc")
    a(f"v_mov_b32 v{vSg}, 0x80000000")
    for r in (vCb, vZ, vra, vrb, vS, vS + 1): a(f"v_mov_b32 v{r}, 0")
    a("s_mov_b32 s49, 0")
    a(f"s_mov_b32 s{ROW0}, 0x00010001")
    a(f"s_mov_b32 s{ROW0+1}, 0x00010001")
    a(f"s_mov_b32 s45, {((o.nd * WREG // 12 * 2) << 16) | 0xffff}")
    nsave = P.n
    P.stamp()
    poll(LV_E, "e")
    k = 0
    while k < S:
        w = 4 if S - k >= 4 else (2 if S - k >= 2 else 1)
        sfx = {4: "x4", 2: "x2", 1: ""}[w]
        dst = f"v[{D0+k}:{D0+k+w-1}]" if w > 1 else f"v{D0+k}"
        a(f"buffer_load_dword{sfx} {dst}, v15, s[16:19], 0 offen offset:{4*k} sc1")
        k += w
    poll(LV_D, "d")
    P.stamp()
    prep()
    for i in range(16): issue(i)
    P.stamp()
    lds_wait(a, vt, XW + X_I, 12, "i", 1)
    P.stamp()
    def ppass(tg, inl):
        a(f"v_mov_b32 v{n2c}, v{n2n}")
        a(f"v_mov_b32 v{a0c}, v{a0n}")
        a(f"s_mov_b64 s[{ODDC}:{ODDC+1}], s[{ODDN}:{ODDN+1}]")
        a(f"s_mov_b64 s[{MORC}:{MORC+1}], s[{MORN}:{MORN+1}]")
        if inl: prep()
        for i in range(16):
            r = R0 + 4 * i
            a(f"v_sub_co_u32_dpp v{vt}, vcc, v{n2c}, v{v2U1} row_newbcast:{i} row_mask:0xf bank_mask:0xf")
            a(f"s_and_b64 s[92:93], s[{ODDC}:{ODDC+1}], s[{ROW0}:{ROW0+1}]")
            a(f"s_nor_b64 s[{M0_}:{M0_+1}], vcc, s[92:93]")
            a(f"v_sub_co_u32_dpp v{vt2}, vcc, v{n2c}, v{v2U2} row_newbcast:{i} row_mask:0xf bank_mask:0xf")
            a(f"s_lshr_b64 s[{ODDC}:{ODDC+1}], s[{ODDC}:{ODDC+1}], 1")
            a(f"s_not_b64 s[{M1_}:{M1_+1}], vcc")
            a(f"s_waitcnt vmcnt({15 if inl else 15 - i})")
            a(f"P2_retry{tg}{i}:")
            a(f"v_lshrrev_b32 v{vca}, 18, v{r}")
            a(f"v_lshrrev_b32 v{vcb}, 18, v{r+1}")
            a(f"v_bitop3_b32 v{vca}, v{vca}, v{v3FC}, v{vCb} bitop3:0xea")
            a(f"v_bitop3_b32 v{vcb}, v{vcb}, v{v3FC}, v{vCb} bitop3:0xea")
            a(f"s_mov_b64 exec, s[{M0_}:{M0_+1}]")
            a(f"ds_add_rtn_u32 v{vra}, v{vca}, v{vInc}")
            a(f"s_mov_b64 exec, s[{M1_}:{M1_+1}]")
            a(f"ds_add_rtn_u32 v{vrb}, v{vcb}, v{vInc}")
            a(f"s_mov_b64 exec, -1")
            a(f"v_and_b32 v{vwa}, 0xf00fffff, v{r}")
            a(f"v_and_b32 v{vwb}, 0xf00fffff, v{r+1}")
            a("s_waitcnt lgkmcnt(0)")
            a(f"v_and_b32 v{vra}, 0xfc03ffff, v{vra}")
            a(f"v_and_b32 v{vrb}, 0xfc03ffff, v{vrb}")
            a(f"v_lshrrev_b32 v{vha}, 1, v{vra}")
            a(f"v_lshrrev_b32 v{vhb}, 1, v{vrb}")
            a(f"v_or_b32 v{vt}, v{vra}, v{vrb}")
            a(f"v_cmp_lt_u32 vcc, v{vInc}, v{vt}")
            a(f"s_mov_b64 exec, s[{M0_}:{M0_+1}]")
            a(f"ds_write_b32 v{vra}, v{vwa} offset:{WB}")
            a(f"ds_write_b16 v{vha}, v{r+2} offset:{CB}")
            a(f"s_mov_b64 exec, s[{M1_}:{M1_+1}]")
            a(f"ds_write_b32 v{vrb}, v{vwb} offset:{WB}")
            a(f"ds_write_b16_d16_hi v{vhb}, v{r+2} offset:{CB}")
            a(f"s_mov_b64 exec, -1")
            a(f"s_cbranch_vccnz P2_stall{tg}{i}")
            a(f"s_and_b64 s[92:93], s[{MORC}:{MORC+1}], s[{ROW0}:{ROW0+1}]")
            a(f"s_cbranch_scc1 P2_more{tg}{i}")
            if not inl:
                a("s_cmp_lg_u32 s98, 0")
                a("s_cbranch_scc1 P2_sweep")
                a(f"P2_cont{tg}{i}:")
            a(f"s_lshr_b64 s[{MORC}:{MORC+1}], s[{MORC}:{MORC+1}], 1")
            if inl: issue(i)
    a("s_mov_b32 s98, 0")
    a("s_mov_b32 s47, 0")
    ppass("f", False)
    a("P2_sweep:")
    a("s_cmp_lg_u32 s47, 0")
    a("s_cbranch_scc1 P2_sweep1")
    P.stamp()
    a("s_mov_b32 s49, 1")
    a("s_cmp_ge_u32 s48, s49")
    a("s_cbranch_scc1 P2_ff1")
    a("s_call_b64 s[42:43], P2_next")
    a("P2_ff1:")
    prep()
    for i in range(16): issue(i)
    a("s_call_b64 s[42:43], P2_wait")
    a("P2_pslice:")
    ppass("", True)
    a("s_add_u32 s49, s49, 1")
    a(f"s_cmp_ge_u32 s49, {S}")
    a("s_cbranch_scc1 P2_pdone")
    a("s_cmp_ge_u32 s48, s49")
    a("s_cbranch_scc1 P2_pslice")
    next_round(True)
    a("s_branch P2_pslice")
    a("P2_next:")
    a("s_add_u32 s48, s48, 1")
    if o.maxr:
        a(f"s_cmp_gt_u32 s48, {o.maxr}")
        a("s_cbranch_scc1 P2_giveup")
    a(f"v_mov_b32 v{vt}, s48")
    a("s_waitcnt lgkmcnt(0)")
    a(f"ds_write_b32 v{vPW}, v{vt}")
    a(f"v_xor_b32 v{vCb}, 1024, v{vCb}")
    def pubb2():
        a("s_cmp_lg_u32 s48, 2")
        a("s_cbranch_scc1 P2_next1")
        a("s_call_b64 s[96:97], P2_pubb")
        a("P2_next1:")
    if not o.nl: pubb2()
    a("s_setpc_b64 s[42:43]")
    a("P2_wait:")
    twait(lambda: wait_buffer("n"))
    if o.nl: pubb2()
    a("s_setpc_b64 s[42:43]")
    a("P2_pubb:")
    lds_ticket(a, vS, XW + X_C)
    a("s_cmp_lg_u32 s40, 0")
    a("s_cbranch_scc1 P2_norelb")
    lds_wait(a, vS, XW + X_B, 12, "b", 1)
    arrive(a, vS, LV_B)
    release(a, vS, LV_B, "b")
    a("s_setpc_b64 s[96:97]")
    a("P2_ensure:")
    poll(LV_A, "a")
    a(f"s_mov_b32 s45, {(CHA << 16) | 0xffff}")
    a(f"v_cmp_lt_u32 vcc, s45, v{D0}")
    a("s_cbranch_vccz P2_ens1")
    unhold()
    a("s_call_b64 s[96:97], P2_pubb")
    poll(LV_B, "b")
    a("s_mov_b32 s45, -1")
    a("P2_ens1:")
    a("s_setpc_b64 s[42:43]")
    for tg, i in [(t_, i_) for t_ in ("", "f") for i_ in range(16)]:
        r = R0 + 4 * i
        a(f"P2_stall{tg}{i}:")
        a(f"v_cmp_lt_u32 s[{M0_}:{M0_+1}], v{vInc}, v{vra}")
        a(f"v_cmp_lt_u32 s[{M1_}:{M1_+1}], v{vInc}, v{vrb}")
        next_round(False)
        a(f"s_branch P2_retry{tg}{i}")
        a(f"P2_more{tg}{i}:")
        a(f"s_lshl_b64 exec, s[{ROW0}:{ROW0+1}], {i}")
        a(f"v_max_u32 v{n2c}, 32, v{n2c}")
        a(f"v_subrev_u32 v{n2c}, 32, v{n2c}")
        a(f"v_add_u32 v{a0c}, 192, v{a0c}")
        a(f"s_mov_b64 exec, -1")
        a(f"v_sub_u32_dpp v{vt2}, v{n2c}, v{v2U1} row_newbcast:{i} row_mask:0xf bank_mask:0xf")
        a(f"v_add_u32_dpp v{vt}, v{a0c}, v{vU12} row_newbcast:{i} row_mask:0xf bank_mask:0xf")
        a(f"v_bitop3_b32 v{vt}, v{vt2}, v{vSg}, v{vt} bitop3:0xea")
        a(f"buffer_load_dwordx3 v[{r}:{r+2}], v{vt}, s[12:15], 0 offen sc1")
        if tg:
            a(f"s_bitset1_b32 s47, {i}")
            a("s_cmp_eq_u32 s98, 0")
            a(f"s_cbranch_scc1 P2_cont{tg}{i}")
            a(f"P2_again{i}:")
            a(f"s_bitset0_b32 s47, {i}")
        a(f"v_cmp_lt_u32 vcc, 32, v{n2c}")
        a(f"s_lshr_b64 s[92:93], vcc, {i}")
        a(f"s_and_b64 s[92:93], s[92:93], s[{ROW0}:{ROW0+1}]")
        a(f"s_andn2_b64 s[{MORC}:{MORC+1}], s[{MORC}:{MORC+1}], s[{ROW0}:{ROW0+1}]")
        a(f"s_or_b64 s[{MORC}:{MORC+1}], s[{MORC}:{MORC+1}], s[92:93]")
        a(f"v_sub_co_u32_dpp v{vt2}, vcc, v{n2c}, v{v2U2} row_newbcast:{i} row_mask:0xf bank_mask:0xf")
        a(f"s_not_b64 s[{M1_}:{M1_+1}], vcc")
        a(f"v_sub_co_u32_dpp v{vt2}, vcc, v{n2c}, v{v2U1} row_newbcast:{i} row_mask:0xf bank_mask:0xf")
        a(f"s_not_b64 s[{M0_}:{M0_+1}], vcc")
        a("s_waitcnt vmcnt(0)")
        a(f"s_branch P2_retry{tg}{i}")
    a("P2_sweep1:")
    a("s_mov_b32 s98, 1")
    for i in range(15):
        a(f"s_bitcmp1_b32 s47, {i}")
        a(f"s_cbranch_scc1 P2_again{i}")
    a("s_branch P2_again15")
    a("P2_giveup:")
    unhold()
    a("P2_pdone:")
    a("s_add_u32 s48, s48, 0x40000001")
    a(f"v_mov_b32 v{vt}, s48")
    a("s_waitcnt lgkmcnt(0)")
    a(f"ds_write_b32 v{vPW}, v{vt}")
    a(f"s_setprio {o.eprio}")
    if o.sw and o.swd:
        warm(S - 1, "s3")
        a("s_waitcnt lgkmcnt(0)")
    a("s_load_dwordx2 s[6:7], s[0:1], 24")
    a("s_load_dwordx2 s[34:35], s[0:1], 40")
    a("s_load_dwordx8 s[36:43], s[0:1], 56")
    DS = 30; CEN = 56; RB0 = 64; t = 60; X = 1
    a("v_and_b32 v13, 15, v12")
    a("v_lshrrev_b32 v14, 4, v12")
    a(f"v_lshlrev_b32 v{X}, 7, v14")
    a(f"v_lshl_add_u32 v{X}, v13, 1, v{X}")
    a(f"v_and_b32 v{X+1}, 0xff, v{X}")
    a(f"v_and_b32 v{X+2}, 1, v14")
    a(f"v_lshlrev_b32 v{X+2}, 3, v{X+2}")
    a(f"v_lshrrev_b32 v{X+3}, 1, v14")
    a(f"v_lshlrev_b32 v{X+3}, 10, v{X+3}")
    a(f"v_lshl_add_u32 v{X+3}, v13, 1, v{X+3}")
    a("s_and_b32 s47, s46, 31")
    a("s_lshl_b32 s47, s47, 5")
    a(f"v_add_u32 v{X+3}, s47, v{X+3}")
    a(f"v_cmp_gt_u32 s[88:89], 32, v12")
    a("s_waitcnt vmcnt(0) lgkmcnt(0)")
    a("s_lshr_b32 s47, s46, 5")
    a(f"s_mul_i32 s47, s47, {CL * 2}")
    srd(a, 20, 6, CL * 2, "s47")
    srd(a, 28, 42, 512)
    srd(a, 12, 38, 256)
    srd(a, 16, 36, 256)
    srd(a, 52, 34, 16)
    srd(a, 84, 40, 512)
    for c in range(4): a(f"buffer_load_ushort v{CEN+c}, v{X+2}, s[52:55], 0 offen offset:{2*c}")
    a("s_mul_i32 s47, s3, 25")
    for k in range(25):
        a("s_mul_i32 s50, s47, 57")
        a("s_lshr_b32 s50, s50, 9")
        a("s_min_u32 s50, s50, 4")
        a("s_lshl_b32 s51, s47, 1")
        a("s_sub_u32 s50, s51, s50")
        a("s_lshl_b32 s50, s50, 10")
        a(f"v_add_u32 v{DS+k}, s50, v{X+3}")
        a("s_add_u32 s47, s47, 1")
        a(f"buffer_load_ushort v{DS+k}, v{DS+k}, s[20:23], 0 offen")
    assert all((n * 57) >> 9 == n // 9 for n in range(45))
    Y = 116
    for c in range(4): a(f"buffer_load_ushort v{Y+c}, v{X}, s[28:31], 0 offen offset:{32*c}")
    for c in range(4): a(f"buffer_load_ushort v{Y+4+c}, v{X+1}, s[12:15], 0 offen offset:{32*c}")
    for c in range(4): a(f"buffer_load_ushort v{Y+8+c}, v{X+1}, s[16:19], 0 offen offset:{32*c}")
    for c in range(4): a(f"buffer_load_ushort v{16+c}, v{X}, s[84:87], 0 offen offset:{32*c}")
    a("s_waitcnt vmcnt(40)")
    for c in range(4): a(f"v_lshlrev_b32 v{CEN+c}, 16, v{CEN+c}")
    def rnd():
        if o.nornd: return
        for u in range(2):
            a(f"v_cvt_pk_bf16_f32 v{t+2*u+1}, v{t+2*u}, v{t+2*u+1}")
        for u in range(2):
            a(f"v_lshlrev_b32 v{t+2*u}, 16, v{t+2*u+1}")
            a(f"v_and_b32 v{t+2*u+1}, 0xffff0000, v{t+2*u+1}")
    for k in range(25):
        d = DS + k
        a(f"s_waitcnt vmcnt({40 - k})")
        a(f"v_lshlrev_b32 v{d}, 16, v{d}")
        for c in range(4): a(f"v_sub_f32 v{t+c}, v{d}, v{CEN+c}")
        rnd()
        for c in range(4): a(f"v_mul_f32 v{t+c}, v{t+c}, v{t+c}")
        rnd()
        for c in range(4): a(f"v_mul_f32 v{t+c}, 0xc1200000, v{t+c}")
        rnd()
        for c in range(4): a(f"v_mul_f32 v{t+c}, 0x3fb8aa3b, v{t+c}")
        for c in range(4): a(f"v_exp_f32 v{t+c}, v{t+c}")
        for u in range(2): a(f"v_cvt_pk_bf16_f32 v{RB0+2*k+u}, v{t+2*u}, v{t+2*u+1}")
    a("s_waitcnt vmcnt(0)")
    Z = 30
    for u in range(2):
        a(f"v_lshl_or_b32 v{Z+8+u}, v{Y+2*u+1}, 16, v{Y+2*u}")
        a(f"v_lshl_or_b32 v{Z+10+u}, v{17+2*u}, 16, v{16+2*u}")
        a(f"v_lshl_or_b32 v{Y+4+u}, v{Y+5+2*u}, 16, v{Y+4+2*u}")
        a(f"v_lshl_or_b32 v{Y+8+u}, v{Y+9+2*u}, 16, v{Y+8+2*u}")
    for u in range(2):
        a(f"v_cndmask_b32 v{Z+u}, 0, v{Y+4+u}, s[88:89]")
        a(f"v_cndmask_b32 v{Z+2+u}, v{Y+4+u}, 0, s[88:89]")
        a(f"v_cndmask_b32 v{Z+4+u}, 0, v{Y+8+u}, s[88:89]")
        a(f"v_cndmask_b32 v{Z+6+u}, v{Y+8+u}, 0, s[88:89]")
    a(f"v_lshlrev_b32 v{X}, 3, v12")
    a(f"v_add_u32 v{X+1}, {WT}, v{X}")
    a(f"v_and_b32 v{X+2}, 3, v12")
    a(f"v_lshlrev_b32 v{X+2}, 2, v{X+2}")
    a(f"v_add_u32 v{X+2}, {XW + X_PW}, v{X+2}")
    a("P2_dw:")
    a(f"ds_read_b32 v{vt}, v{X+2}")
    a("s_waitcnt lgkmcnt(0)")
    a(f"v_cmp_gt_u32 vcc, 2.0, v{vt}")
    a("s_cbranch_vccz P2_dg")
    a(f"s_sleep {o.psleep}")
    guard(a)
    a("s_branch P2_dw")
    a("P2_dg:")
    a(f"v_readlane_b32 s48, v{vt}, 0")
    for k in range(1, 4):
        a(f"v_readlane_b32 s50, v{vt}, {k}")
        a("s_max_u32 s48, s48, s50")
    a("s_and_b32 s48, s48, 0x3fffffff")
    wait_buffer("e")
    a("s_bitcmp1_b32 s48, 0")
    a(f"s_cselect_b32 s50, {RB_AT[1] - RB_AT[0]}, 0")
    a(f"s_add_u32 s50, s50, {RB_AT[0]}")
    a(f"s_mul_i32 s51, s3, {25*512}")
    a("s_add_u32 s50, s50, s51")
    a(f"v_add_u32 v{X}, s50, v{X}")
    for k in range(6): a(f"ds_write_b64 v{X+1}, v[{Z+2*k}:{Z+2*k+1}] offset:{512*k}")
    for k in range(25): a(f"ds_write_b64 v{X}, v[{RB0+2*k}:{RB0+2*k+1}] offset:{512*k}")
    lds_count(a, vt, XW + X_R)
    a("s_waitcnt lgkmcnt(0)")
    if o.prof == 1:
        P.stamp(); P.dump(32, 0x80000, 8, 3); P.n = nsave
    a("s_endpgm")
    a("P2_consumer:")
    ACC = 60; G0 = 52; B0 = 44; A2 = 28; vTw = 32; vTr = 33; vM = 24; vC = 20; vX = 16
    bA = 1; bE = 2; bC = 3; bR = 4; vH = 5; vL = 6; vCA = 7; vCI = 8; vA = 9; vE = 10
    a("s_sub_u32 s47, s3, 4")
    a("s_min_u32 s44, s47, 4")
    a("s_lshl_b32 s49, s47, 4")
    a("s_add_u32 s49, s49, s44")
    a("s_cmp_lt_u32 s47, 4")
    a("s_cselect_b32 s50, 17, 16")
    a(f"s_cselect_b32 s84, 0, {MARK & 0xffffff}")
    a(f"s_cselect_b32 s85, {17*WSTR//16-192}, {16*WSTR//16-192}")
    a("s_bfm_b64 s[92:93], s85, 0")
    a(f"v_subrev_u32 v60, 256, v0")
    a(f"v_lshlrev_b32 v60, 4, v60")
    for k in range(1, 4): a(f"v_add_u32 v{60+k}, {4*12288*k}, v60")
    lds_wait(a, vX, XW + X_S, 16, "s", o.ssleep)
    P.stamp()
    NL = o.nl; vSt = 34
    for j in range(13):
        k = 12 - j
        a(f"ds_read_b128 v[{68+4*j}:{71+4*j}], v{60+k//4} offset:{STG+12288*(k%4)}")
    a(f"v_mov_b32 v{vSt}, v63")
    q = 36
    for i in range(4): a(f"v_mov_b32 v{q+i}, {MARK}")
    a(f"v_add_u32 v61, {STG + 12288 * K0}, v60")
    a(f"v_add_u32 v62, {STG + 12288 * K1}, v60")
    for k in range(4): a(f"ds_write_b128 v61, v[{q}:{q+3}] offset:{12288 * k}")
    a("s_cmp_ge_u32 s47, 4")
    a("s_cbranch_scc1 P2_notab")
    a(f"v_and_b32 v52, 15, v12")
    a(f"v_lshrrev_b32 v53, 4, v12")
    a(f"v_lshrrev_b32 v56, 2, v52")
    a(f"v_cmp_eq_u32 vcc, v56, v53")
    a(f"v_and_b32 v56, 3, v12")
    a(f"v_lshlrev_b32 v56, 4, v56")
    a(f"v_mov_b32 v54, 0xffff")
    a(f"v_mov_b32 v55, 0")
    a(f"v_cndmask_b32 v54, 0, v54, vcc")
    a(f"v_lshlrev_b64 v[54:55], v56, v[54:55]")
    a(f"v_and_b32 v56, 1, v53")
    a(f"v_lshlrev_b32 v56, 3, v56")
    a(f"v_lshl_add_u32 v52, v52, 4, v56")
    a(f"v_lshrrev_b32 v53, 1, v53")
    a(f"v_lshl_add_u32 v52, v53, 8, v52")
    a(f"v_and_b32 v56, 255, v0")
    a(f"v_lshlrev_b32 v53, 2, v56")
    a(f"v_mul_u32_u24 v56, {WSTR}, v56")
    a(f"v_add_u32 v56, {(64 - CAP) << 20}, v56")
    a(f"v_add_u32 v57, {X1}, v56")
    a(f"ds_write_b64 v52, v[54:55] offset:{LUT}")
    a(f"ds_write_b32 v53, v56")
    a(f"ds_write_b32 v53, v57 offset:1024")
    a("P2_notab:")
    lds_count(a, vX, XW + X_I)
    a("s_waitcnt vmcnt(0)")
    publish_a(a, vX, XW, "ac")
    def store_b(j):
        a(f"buffer_store_dwordx4 v[{68+4*j}:{71+4*j}], v{vSt}, s[20:23], 0 offen {o.p1_st}")
        a(f"v_subrev_u32 v{vSt}, 12288, v{vSt}")
    if o.spr: a(f"s_setprio {o.spr}")
    for j in range(13 - NL): store_b(j)
    if o.spr: a("s_setprio 0")
    for k in range(4): a(f"ds_write_b128 v62, v[{q}:{q+3}] offset:{12288 * k}")
    lds_count(a, vX, XW + X_CW + 4)
    a("v_and_b32 v13, 15, v12")
    a("v_lshrrev_b32 v14, 4, v12")
    a(f"v_and_b32 v0, 3, v12")
    a(f"v_lshlrev_b32 v0, 2, v0")
    a(f"v_add_u32 v0, {XW + X_CW}, v0")
    a(f"s_mul_i32 s51, s49, {WSTR}")
    a(f"s_lshr_b32 s86, s51, 1")
    a(f"s_add_u32 s86, s86, {CB}")
    a(f"v_lshl_add_u32 v{bC}, v14, 4, s86")
    a(f"v_mul_u32_u24 v{vCI}, {WSTR}, v12")
    a(f"s_add_u32 s86, s51, {(64 - CAP) << 20}")
    a(f"v_add_u32 v{vCI}, s86, v{vCI}")
    a(f"s_add_u32 s51, s51, {WB}")
    a(f"v_lshl_add_u32 v{bR}, v12, 4, s51")
    a(f"v_and_b32 v{vA}, 12, v12")
    a(f"v_lshl_add_u32 v{bA}, v14, 5, v{vA}")
    a(f"v_bfe_u32 v{vA}, v12, 1, 1")
    a(f"v_lshl_add_u32 v{bA}, v{vA}, 4, v{bA}")
    a(f"v_add_u32 v{bA}, s51, v{bA}")
    a(f"v_and_b32 v{vH}, 1, v12")
    a(f"v_lshlrev_b32 v{vH}, 4, v{vH}")
    a(f"s_mul_i32 s87, s47, {TSZ}")
    a(f"s_add_u32 s87, s87, {SC}")
    a(f"v_mul_u32_u24 v{vTw}, 576, v{vA}")
    a(f"v_lshrrev_b32 v{vA}, 2, v12")
    a(f"v_lshl_add_u32 v{vTw}, v{vA}, 5, v{vTw}")
    a(f"v_add3_u32 v{vTw}, v{vTw}, v{vH}, s87")
    a(f"v_lshl_add_u32 v{vTr}, v12, 3, s87")
    a(f"v_and_b32 v{vL}, 1, v12")
    a(f"v_lshlrev_b32 v{vL}, 3, v{vL}")
    a(f"v_and_b32 v{vA}, 2, v12")
    a(f"v_lshl_add_u32 v{vL}, v{vA}, 7, v{vL}")
    a(f"v_add_lshl_u32 v{vCA}, v12, s49, 2")
    a(f"v_cmp_gt_u32 vcc, s50, v12")
    a(f"s_mov_b32 s85, {(64 - CAP + 33) << 20}")
    a("s_mov_b32 s94, 0")
    a("s_mov_b32 s95, 0xffff0000")
    a(f"v_cndmask_b32 v{vCA}, 2.0, v{vCA}, vcc")
    a(f"s_lshl_b32 s51, s49, 5")
    a("s_and_b32 s40, s46, 31")
    a(f"s_add_u32 s51, s51, s40")
    a(f"s_lshl_b32 s51, s51, 4")
    a(f"v_add_lshl_u32 v15, v13, s51, 5")
    a(f"v_lshl_add_u32 v15, v14, 3, v15")
    a(f"v_lshlrev_b32 v13, 3, v12")
    for i in range(16): a(f"v_mov_b32 v{B0+i}, 0")
    for i in range(68):
        if not 15 - NL <= i // 4 <= 14: a(f"v_mov_b32 v{ACC+i}, 0")
    a("s_lshr_b32 s40, s46, 5")
    a(f"s_mul_i32 s40, s40, {CL * 32}")
    srd(a, 28, 6, CL * 32, "s40")
    srd(a, 12, 8, CL * 32, "s40")
    def lazy(t):
        j = 13 - NL + t
        store_b(j)
        for u in range(4): a(f"v_mov_b32 v{68+4*j+u}, 0")
    lstep = {}
    for t in range(NL):
        i = o.l0 + t * o.lstep // 2
        assert i <= 14 - NL + t
        lstep.setdefault(i, []).append(t)
    if NL:
        a("s_mov_b32 s42, 1")
        P.stamp()
        a(f"v_mov_b32 v{vX+2}, {XW + X_H}")
        a("P2_pre:")
        a(f"ds_read_b32 v{vX}, v0 offset:{X_PW - X_CW}")
        a(f"ds_read_b32 v{vX+1}, v{vX+2}")
        a("s_waitcnt lgkmcnt(0)")
        a(f"v_cmp_eq_u32 vcc, 0, v{vX}")
        a("s_cbranch_vccz P2_round0")
        a(f"v_cmp_eq_u32 vcc, 0, v{vX+1}")
        a("s_cbranch_vccz P2_flush")
        a(f"s_sleep {o.csleep}")
        guard(a)
        a("s_branch P2_pre")
        a("P2_flush:")
        for t in range(NL): lazy(t)
        a("s_mov_b32 s42, 0")
    a("s_waitcnt vmcnt(0)")
    lds_count(a, vX, XW + X_B)
    if not NL: P.stamp()
    def reads1(par, i, second):
        oa = par * X1 + i * WSTR + (128 if second else 0)
        a(f"ds_read_b32 v{vA}, v{bA} offset:{oa}")
    def reads2(par, i, second):
        oc = (par * X1 + i * WSTR + (128 if second else 0)) // 2
        a(f"v_add_u32_dpp v{vE}, v{bE}, v{vL} quad_perm:[0,0,0,0] row_mask:0xf bank_mask:0xf")
        a(f"v_add_u32_dpp v{vE+1}, v{bE}, v{vL} quad_perm:[2,2,2,2] row_mask:0xf bank_mask:0xf")
        a(f"ds_read_b64_tr_b16 v[{vM}:{vM+1}], v{vE} offset:{LUT}")
        a(f"ds_read_b64_tr_b16 v[{vM+2}:{vM+3}], v{vE+1} offset:{LUT}")
        a(f"ds_read_b128 v[{vC}:{vC+3}], v{bC} offset:{oc}")
    def addr():
        a(f"v_lshrrev_b32 v{bE}, 24, v{vA}")
        a(f"v_mad_u32_u24 v{vA}, v{vA}, 32, v{vH}")
    def transpose(g):
        a(f"ds_write_b128 v{vTw}, v[{g}:{g+3}]")
        a(f"ds_read_b64_tr_b16 v[{A2}:{A2+1}], v{vTr}")
        a(f"ds_read_b64_tr_b16 v[{A2+2}:{A2+3}], v{vTr} offset:576")
    def mfma2(i, b):
        c = ACC + 4 * i
        a(f"v_mfma_f32_16x16x32_bf16 v[{c}:{c+3}], v[{A2}:{A2+3}], v[{b}:{b+3}], v[{c}:{c+3}]")
    NS = 17
    for par in range(2):
        a(f"P2_round{par}:")
        def spin():
            a(f"P2_cw{par}:")
            a(f"ds_read_b32 v{vX+1}, v0 offset:{X_PW - X_CW}")
            reads1(par, 0, False)
            a(f"ds_read_b32 v{vX}, v{vCA} offset:{1024*par}")
            a("s_waitcnt lgkmcnt(2)")
            a(f"v_cmp_ge_u32 vcc, s48, v{vX+1}")
            a(f"v_and_b32 v{vX+1}, 0x3fffffff, v{vX+1}")
            a(f"s_cbranch_vccz P2_cg{par}")
            a(f"s_sleep {o.csleep}")
            guard(a)
            a(f"s_branch P2_cw{par}")
            a(f"P2_cg{par}:")
        twait(spin)
        if o.prof == 1:
            a("s_memrealtime s[58:59]")
            a("s_waitcnt lgkmcnt(0)")
            a("s_mov_b32 m0, s48")
            a("v_writelane_b32 v14, s58, m0")
            a("s_add_u32 m0, s48, 16")
            a("v_writelane_b32 v14, s56, m0")
        a(f"v_cmp_lt_u32 vcc, s48, v{vX+1}")
        a(f"s_cbranch_vccz P2_drain{1-par}")
        if o.prof == 1 and par == 0:
            a("s_cmp_lg_u32 s48, 0"); a("s_cbranch_scc1 P2_nostamp"); P.stamp(); a("P2_nostamp:")
        if par: a(f"v_add_u32 v{vX+2}, {X1}, v{vCI}")
        a(f"ds_write_b32 v{vCA}, v{vX+2 if par else vCI} offset:{1024*par}")
        a("s_add_u32 s48, s48, 1")
        for i in range(NS):
            p = (par * NS + i) % 2
            g = G0 + 4 * p; b = B0 + 4 * p
            a("s_waitcnt lgkmcnt(0)")
            if i == NS - 1: a(f"v_or_b32 v{vA}, s84, v{vA}")
            addr()
            a("s_waitcnt vmcnt(1)")
            sk = o.skip and i == 1
            if sk:
                a("s_cmp_lg_u32 s84, 0")
                a(f"s_cbranch_scc1 P2_nt{par}")
            transpose(g)
            if sk: a(f"P2_nt{par}:")
            a(f"buffer_load_dwordx4 v[{g}:{g+3}], v{vA}, s[8:11], 0 offen {o.gfl}")
            if o.skip and i == NS - 1:
                a("s_cmp_lg_u32 s84, 0")
                a(f"s_cbranch_scc1 P2_last{par}")
            reads2(par, i, False)
            if i + 1 < NS: reads1(par, i + 1, False)
            if i == 0: a(f"v_cmp_le_u32 s[90:91], s85, v{vX}")
            if sk: a(f"s_cbranch_scc1 P2_nm{par}")
            a(f"s_waitcnt lgkmcnt({4 if i + 1 < NS else 3})")
            mfma2((i - 2) % NS, b)
            if sk: a(f"P2_nm{par}:")
            a(f"s_bitcmp1_b32 s90, {i}")
            a(f"s_waitcnt lgkmcnt({1 if i + 1 < NS else 0})")
            for u in range(4): a(f"v_and_b32 v{b+u}, v{vM+u}, v{vC+u}")
            a(f"s_cbranch_scc1 P2_slow{par}_{i}")
            a(f"P2_back{par}_{i}:")
            if par == 0 and i in lstep:
                a("s_cmp_lg_u32 s42, 0")
                a(f"s_cbranch_scc1 P2_lazy{i}")
                a(f"P2_lazyb{i}:")
        if par == 0 and NL:
            a("s_cmp_eq_u32 s42, 0")
            a("s_cbranch_scc1 P2_nolz")
            a("s_mov_b32 s42, 0")
            a("s_waitcnt vmcnt(0)")
            lds_count(a, vX, XW + X_B)
            a("P2_nolz:")
        for u in range(4): a(f"v_mov_b32 v{vX+u}, {MARK}")
        for k in range(4):
            if k == 3: a("s_mov_b64 exec, s[92:93]")
            a(f"ds_write_b128 v{bR}, v[{vX}:{vX+3}] offset:{par*X1+1024*k}")
        a("s_mov_b64 exec, 1")
        a(f"v_mov_b32 v{vA}, 1")
        a("s_waitcnt lgkmcnt(0)")
        a(f"ds_add_rtn_u32 v{vA}, v0, v{vA} offset:{4*par}")
        a("s_lshr_b32 s40, s48, 1")
        a("s_mul_i32 s40, s40, 12")
        a("s_waitcnt lgkmcnt(0)")
        a(f"v_readfirstlane_b32 s41, v{vA}")
        a("s_mov_b64 exec, -1")
        a("s_sub_u32 s41, s41, s40")
        a("s_setprio 0")
        a("s_cmp_lt_u32 s41, 4")
        a(f"s_cbranch_scc1 P2_round{1-par}")
        a("s_setprio 1")
        a("s_cmp_lt_u32 s41, 8")
        a(f"s_cbranch_scc1 P2_round{1-par}")
        a("s_setprio 2")
        if par: a("s_branch P2_round0")
    for par in range(2 if o.skip else 0):
        a(f"P2_last{par}:")
        a("s_waitcnt lgkmcnt(0)")
        mfma2(NS - 3, B0 + 4 * ((par * NS + NS - 1) % 2))
        a(f"s_branch P2_back{par}_{NS-1}")
    for i in sorted(lstep):
        a(f"P2_lazy{i}:")
        for t in lstep[i]: lazy(t)
        a(f"s_branch P2_lazyb{i}")
    for par in range(2):
        for i in range(NS):
            a(f"P2_slow{par}_{i}:")
            reads1(par, i, True)
            a("s_waitcnt lgkmcnt(0)")
            a("s_mov_b64 exec, s[94:95]")
            a(f"v_mov_b32 v{vA}, {MARK}")
            a("s_mov_b64 exec, -1")
            addr()
            a(f"buffer_load_dwordx4 v[{vX}:{vX+3}], v{vA}, s[8:11], 0 offen")
            reads2(par, i, True)
            if i + 1 < NS: reads1(par, i + 1, False)
            a(f"s_waitcnt lgkmcnt({1 if i + 1 < NS else 0})")
            for u in range(4): a(f"v_and_b32 v{vM+u}, v{vM+u}, v{vC+u}")
            a("s_waitcnt vmcnt(0)")
            transpose(vX)
            a("s_waitcnt lgkmcnt(0)")
            mfma2(i, vM)
            a(f"s_branch P2_back{par}_{i}")
    vLo = 14; vSo = 15; vRb = 12; vWt = 13
    mreg = [0, 2, 4, 6, 8, 10, 16, 18, 20, 22, 24, 26, ACC, ACC + 2, ACC + 4, ACC + 6, ACC + 8]
    NPRE = 12
    def mload(i):
        a(f"buffer_load_dwordx2 v[{mreg[i]}:{mreg[i]+1}], v{vLo}, s[12:15], 0 offen")
        a(f"v_add_u32 v{vLo}, {512*32}, v{vLo}")
    for par in (1, 0):
        a(f"P2_drain{par}:")
        a("s_waitcnt lgkmcnt(0)")
        if par == 1: P.stamp()
        elif o.prof == 1: P.n -= 1; P.stamp()
        if o.prof == 1:
            srd(a, 52, 32, 0x100000, WS_PROF)
            a("s_lshl_b32 s56, s2, 4")
            a("s_add_u32 s56, s56, s3")
            a("s_lshl_b32 s56, s56, 7")
            a("v_lshrrev_b32 v12, 1, v13")
            a("v_add_u32 v12, s56, v12")
            a("s_bfm_b64 exec, 32, 0")
            a("buffer_store_dword v14, v12, s[52:55], 0 offen")
            a("s_mov_b64 exec, -1")
        a(f"v_mov_b32 v{vLo}, v{vSo}")
        for i in range(NPRE): mload(i)
        a(f"s_mov_b32 s51, {RB_AT[1 - par]}")
        for i in (NS, NS + 1):
            p = (par * NS + i) % 2
            a(f"s_waitcnt vmcnt({NS + 1 - i + NPRE})")
            transpose(G0 + 4 * p)
            a("s_waitcnt lgkmcnt(0)")
            mfma2(i - 2, B0 + 4 * p)
        if par == 1: a("s_branch P2_epi")
    a("P2_epi:")
    WS_ = 32; WR_ = 36; WU = 40; WD = 42; RB = 44; SS = 48; GG = 52; UU = 56; ZZ = 28
    a("s_lshl_b32 s47, s47, 3")
    a("s_add_u32 s47, s47, s44")
    a("s_lshl_b32 s47, s47, 9")
    a("s_add_u32 s51, s51, s47")
    a(f"v_add_u32 v{vRb}, s51, v{vWt}")
    a(f"v_add_u32 v{vWt}, {WT}, v{vWt}")
    lds_wait(a, UU, XW + X_R, 4, "r", 1)
    for k in range(6): a(f"ds_read_b64 v[{WS_+2*k}:{WS_+2*k+1}], v{vWt} offset:{512*k}")
    def rbread(k): a(f"ds_read_b64 v[{RB+2*(k%2)}:{RB+2*(k%2)+1}], v{vRb} offset:{512*k}")
    rbread(0); rbread(1)
    vm = [("m", i) for i in range(NPRE)]
    def mf(d, w, i):
        h = 2 * (i % 2); r = RB + 2 * ((i // 2) % 2)
        a(f"v_mfma_f32_16x16x16_bf16 v[{d}:{d+3}], v[{w+h}:{w+h+1}], v[{r}:{r+1}], 0")
    def pack(i):
        c0 = ACC + 4 * i
        for u in range(2): a(f"v_cvt_pk_bf16_f32 v{c0+u}, v{c0+2*u}, v{c0+2*u+1}")
    def mz(i):
        c0 = ACC + 4 * i
        a(f"v_mfma_f32_16x16x16_bf16 v[{ZZ}:{ZZ+3}], v[{WD}:{WD+1}], v[{c0}:{c0+1}], 0")
    def gate(i):
        c0 = ACC + 4 * i
        for c in (0, 2): a(f"v_pk_mul_f32 v[{c0+c}:{c0+c+1}], v[{SS+c}:{SS+c+1}], v[{ZZ+c}:{ZZ+c+1}]")
        pack(i)
    pack(0)
    a("s_waitcnt lgkmcnt(0)")
    mz(0); mf(SS, WS_, 0); mf(GG, WR_, 0)
    gate(0)
    for i in range(NS):
        c0 = ACC + 4 * i; m = mreg[i]; nx = i + 1 < NS
        if i == NS - 1:
            a("s_cmp_lt_u32 s50, 17")
            a("s_cbranch_scc1 P2_fin")
        a(f"v_mfma_f32_16x16x16_bf16 v[{UU}:{UU+3}], v[{WU}:{WU+1}], v[{c0}:{c0+1}], 0")
        if nx: pack(i + 1)
        lg = f" lgkmcnt({1 if i // 2 + 2 <= 8 else 0})" if nx and i % 2 == 1 else ""
        a(f"s_waitcnt vmcnt({len(vm) - 1 - vm.index(('m', i))})" + lg)
        if nx: mf(SS, WS_, i + 1)
        a(f"v_lshlrev_b32 v{c0}, 16, v{m}")
        a(f"v_and_b32 v{c0+1}, 0xffff0000, v{m}")
        if nx: mz(i + 1)
        a(f"v_lshlrev_b32 v{c0+2}, 16, v{m+1}")
        a(f"v_and_b32 v{c0+3}, 0xffff0000, v{m+1}")
        for c in (0, 2): a(f"v_pk_fma_f32 v[{c0+c}:{c0+c+1}], v[{UU+c}:{UU+c+1}], v[{GG+c}:{GG+c+1}], v[{c0+c}:{c0+c+1}]")
        if nx: mf(GG, WR_, i + 1)
        for u in range(2): a(f"v_cvt_pk_bf16_f32 v{m+u}, v{c0+2*u}, v{c0+2*u+1}")
        a(f"buffer_store_dwordx2 v[{m}:{m+1}], v{vSo}, s[28:31], 0 offen {o.ost}")
        vm.append(("s", i))
        if nx: gate(i + 1)
        a(f"v_add_u32 v{vSo}, {512*32}, v{vSo}")
        if i % 2 == 0 and i // 2 + 2 <= 8: rbread(i // 2 + 2)
        for k in (NPRE + 2 * i, NPRE + 2 * i + 1):
            if k < NS: mload(k); vm.append(("m", k))
    a("P2_fin:")
    if o.prof:
        P.stamp()
        a("s_waitcnt vmcnt(0)")
        P.stamp(True)
        P.dump(32, 0x80000, 34, 3)
    a("P2_end:")
    a("s_endpgm")

KD = """.amdhsa_kernel {name}
  .amdhsa_next_free_vgpr 128
  .amdhsa_next_free_sgpr 100
  .amdhsa_accum_offset 128
  .amdhsa_group_segment_fixed_size 0
  .amdhsa_kernarg_size 112
  .amdhsa_user_sgpr_count 2
  .amdhsa_user_sgpr_kernarg_segment_ptr 1
  .amdhsa_system_sgpr_workgroup_id_x 1
  .amdhsa_float_denorm_mode_32 3
.end_amdhsa_kernel
"""

NAME = "gather_scatter__molecular_angular_gemnet__graph_kernel"

def build(o):
    GUARD[0] = 1000000 if o.maxr else 0
    a = Asm(); P = Prof(a, o.prof, 1)
    xw, stg = gen_p1(o, a, P); gen_p2(o, a, P, xw, stg)
    ref = open("gather_scatter__molecular_angular_gemnet__graph.s.ref").read().split("\n")
    head = [l for l in ref if l.startswith(";") and "launch geometry" not in l and "Harness parses" not in l and "@launch" not in l]
    s = "\n".join(head) + "\n"
    s += """;
"""
    s += f"; @launch grid=(256,1,1) block=(1024,1,1) lds={xw + 64}\n"
    s += '.amdgcn_target "amdgcn-amd-amdhsa--gfx950"\n.text\n'
    s += f".globl {NAME}\n.p2align 8\n.type {NAME},@function\n{NAME}:\n" + a.finish()
    s += '.section .rodata,"a"\n.p2align 6\n' + KD.format(name=NAME)
    return s

def parser():
    p = argparse.ArgumentParser()
    p.add_argument("-S", type=int, default=11)
    for k, d in dict(prof=0, maxr=0, dstep=4, asplit=12, sw=1, psleep=2, csleep=2, gsleep=24, maxpoll=1000000, eprio=0, nd=4, cs=256, cg=14, ck=0, an0=12, sk=0, nf=2, ng=2, ssleep=1, wsh=50, xp=0, skip=1, l0=9, pfs=14, pfd=2, own=1, swo=36000, swd=0, nornd=0, pp=5, nb=5, sw0=4, pf0=3, pfw=0, pfn=5, ldp=1, spr=2, f0=0, cpf=14, nl=5, lstep=0, fuse=1, cmap=2, rot=0).items():
        p.add_argument("--" + k, type=int, default=d)
    p.add_argument("--p1_ld", default="nt")
    p.add_argument("--p1_st", default="sc1")
    p.add_argument("--ost", default="nt")
    p.add_argument("--gfl", default="")
    p.add_argument("-o", default="gather_scatter__molecular_angular_gemnet__graph.s")
    return p

if __name__ == "__main__":
    o = parser().parse_args()
    open(o.o, "w").write(build(o))
```

```python
import sys, argparse
from asmlib import Asm

E = 800000; T = 12800000
NT = 256
CHA = 25088
TILE_N = 50000
TILE_BYTES = 300032
WS_DESC = 0x5000000
WS_PROF = 0x6000000
CAP = 56
WSTR = CAP * 4
MARK = 0x38100000
NG = 196
CL = E // 8
WREG = 9472

GUARD = [0]
def guard(a):
    if GUARD[0]:
        a("s_add_u32 s99, s99, 1")
        a(f"s_cmp_gt_u32 s99, {GUARD[0]}")
        a("s_cbranch_scc1 P2_end")

def slicing(o):
    B = (o.f0 << 26) // 100
    K = ((o.S << 26) - B) // E
    return K, B

def srd(a, d, base, size, off=None):
    if off is None:
        a(f"s_mov_b32 s{d}, s{base}")
        a(f"s_mov_b32 s{d+1}, s{base+1}")
    else:
        a(f"s_add_u32 s{d}, s{base}, {off}")
        a(f"s_addc_u32 s{d+1}, s{base+1}, 0")
    a(f"s_mov_b32 s{d+2}, {size}")
    a(f"s_mov_b32 s{d+3}, 0x20000")

class Prof:
    def __init__(self, a, on, fuse=0): self.a = a; self.on = on; self.n = 0; self.fuse = fuse
    def stamp(self, key=False):
        if not self.on or (self.on == 2 and not key): return
        a = self.a
        a("s_waitcnt lgkmcnt(0)")
        a("s_memtime s[58:59]")
        a("s_waitcnt lgkmcnt(0)")
        a(f"s_mov_b32 s{60+self.n}, s58")
        a("s_memrealtime s[58:59]")
        a("s_waitcnt lgkmcnt(0)")
        a(f"s_mov_b32 s{72+self.n}, s58")
        self.n += 1
    def dump(self, wsreg, region, vt, wave_sreg):
        if not self.on: return
        a = self.a
        srd(a, 52, wsreg, 0x100000, WS_PROF + region)
        a(f"s_lshl_b32 s56, s2, 4")
        a(f"s_add_u32 s56, s56, s{wave_sreg}")
        a(f"s_lshl_b32 s56, s56, 7")
        a("s_mov_b64 exec, 1")
        for i in range(self.n):
            a(f"v_mov_b32 v{vt}, s56")
            a(f"v_mov_b32 v{vt+1}, s{60+i}")
            a(f"buffer_store_dword v{vt+1}, v{vt}, s[52:55], 0 offen offset:{4*i}")
            a(f"v_mov_b32 v{vt+1}, s{72+i}")
            a(f"buffer_store_dword v{vt+1}, v{vt}, s[52:55], 0 offen offset:{64+4*i}")
        a(f"v_mov_b32 v{vt+1}, s71")
        a(f"buffer_store_dword v{vt+1}, v{vt}, s[52:55], 0 offen offset:124")
        a("s_waitcnt vmcnt(0)")
        a("s_mov_b64 exec, -1")

def gen_p1(o, a, P):
    S = o.S
    NK = S * 256
    KSL, BSL = slicing(o)
    CN = 16; SCR = CN + NK * 4; STG = SCR + 64; XW = STG + CHA * 6
    W0 = 4; KP0 = 53; C0 = 78; TO = 103; T0 = 104
    ld = o.p1_ld; st = o.p1_st
    vmq = []
    def issue_out(r):
        b = C0 + 4 * (r % 6)
        a(f"buffer_load_dwordx4 v[{b}:{b+3}], v2, s[12:15], s36 offen {ld}")
        a(f"s_add_u32 s36, s36, {CS * 16384}")
        vmq.append(("o", r))
    def issue_in(r):
        w = W0 + 4 * r
        a(f"buffer_load_dwordx4 v[{w}:{w+3}], v2, s[8:11], s4 offen {ld}")
        a(f"s_add_u32 s4, s4, {CS * 16384}")
        vmq.append(("i", r))
    seq = [("i", r) for r in range(o.sk)]
    for r in range(12):
        seq.append(("o", r))
        if r + o.sk < 12: seq.append(("i", r + o.sk))
    def issue_next(n):
        for _ in range(n):
            if seq:
                k, r = seq.pop(0)
                (issue_in if k == "i" else issue_out)(r)
    def issue_ang(r):
        b = C0 + 2 * r
        a(f"buffer_load_dwordx2 v[{b}:{b+1}], v2, s[16:19], s37 offen {ld}")
        a(f"s_add_u32 s37, s37, {CS * 8192}")
    DP = o.ldp
    CS = o.cs
    a("s_load_dwordx2 s[8:9], s[0:1], 8")
    a("s_load_dwordx2 s[12:13], s[0:1], 16")
    a("s_cmp_ge_u32 s2, 256")
    a("s_cbranch_scc1 P2_end")
    if o.cpf:
        a("s_getpc_b64 s[40:41]")
        a("P1_pc:")
        a("s_lshr_b32 s45, s2, 3")
        a(f"s_mulk_i32 s45, {o.cpf}")
        a(f"s_mov_b32 s42, P2_end-P1_pc")
        a("s_mov_b32 s43, 0x20000")
        a(f"v_add_lshl_u32 v{T0+23}, v0, s45, 7")
        a(f"v_cmp_gt_u32 vcc, {o.cpf}, v0")
        a("s_and_b64 exec, exec, vcc")
        a("s_cbranch_execz P1_nopf")
        a(f"buffer_load_dword v{T0+23}, v{T0+23}, s[40:43], 0 offen")
        a("P1_nopf:")
        a("s_mov_b64 exec, -1")
    a(f"s_mov_b32 s10, {T * 4}")
    a("s_mov_b32 s11, 0x20000")
    a("s_mov_b64 s[14:15], s[10:11]")
    if o.cg < 14:
        assert CS == 256
        a(f"s_lshl_b32 s36, s2, {o.cg}")
    elif CS == 1:
        a(f"s_mul_i32 s36, s2, {12 * 16384}")
    else:
        a(f"s_andn2_b32 s36, s2, {CS - 1}")
        a(f"s_mulk_i32 s36, 11")
        a(f"s_add_u32 s36, s36, s2")
        a(f"s_lshl_b32 s36, s36, 14")
    a("s_lshr_b32 s37, s36, 1")
    a("s_mov_b32 s4, s36")
    a("v_lshlrev_b32 v1, 4, v0")
    if o.cg < 14:
        a(f"v_lshrrev_b32 v2, {o.cg}, v1")
        a(f"v_mul_u32_u24 v2, {255 << o.cg}, v2")
        a("v_add_u32 v2, v2, v1")
    else:
        a("v_mov_b32 v2, v1")
    a("s_waitcnt lgkmcnt(0)")
    P.stamp(True)
    issue_next(o.nf)
    if GUARD[0]: a("s_mov_b32 s99, 0")
    a("s_load_dwordx2 s[16:17], s[0:1], 32")
    a("s_load_dwordx2 s[30:31], s[0:1], 48")
    a("s_load_dwordx2 s[32:33], s[0:1], 104")
    a("s_load_dwordx2 s[94:95], s[0:1], 96")
    a("s_load_dwordx2 s[48:49], s[0:1], 0")
    a("s_load_dwordx2 s[86:87], s[0:1], 88")
    a("v_mov_b32 v3, 1")
    for i in range(4): a(f"v_mov_b32 v{T0+i}, 0")
    a(f"ds_write_b128 v1, v[{T0}:{T0+3}]")
    a(f"v_lshrrev_b32 v{T0+4}, 6, v0")
    a(f"v_readfirstlane_b32 s3, v{T0+4}")
    a(f"s_mul_i32 s34, s2, 848")
    a(f"s_add_u32 s34, s34, {3072*4096}")
    a(f"v_add_u32 v109, s34, v0")
    a(f"v_cmp_gt_u32 vcc, 848, v0")
    a(f"v_lshlrev_b32 v110, 2, v109")
    a(f"v_lshlrev_b32 v109, 1, v109")
    a(f"v_cndmask_b32 v110, 2.0, v110, vcc")
    a(f"v_cndmask_b32 v109, 2.0, v109, vcc")
    a(f"buffer_load_dword v{TO}, v110, s[12:15], 0 offen {ld}")
    a(f"buffer_load_dword v{W0+48}, v110, s[8:11], 0 offen {ld}")
    a(f"s_mov_b32 s18, {T * 2}")
    a("s_mov_b32 s19, 0x20000")
    a("s_waitcnt lgkmcnt(0)")
    a("s_load_dword s35, s[30:31], 0")
    a(f"buffer_load_ushort v{C0+24}, v109, s[16:19], 0 offen {ld}")
    vmq.extend([("t", 0), ("t", 1), ("t", 2)])
    a("s_mov_b32 s38, 0x7c00")
    MG = -(-(1 << 19) // S)
    assert all((n * MG) >> 19 == n // S for n in range(4096))
    a(f"s_mov_b32 s40, {(-(1024*S - 4)) & 0xffffffff}")
    for j in range(4):
        t = T0 + 16 + j
        a(f"v_lshl_add_u32 v{t}, v0, 2, {j}")
        a(f"v_mul_u32_u24 v{T0}, {MG}, v{t}")
        a(f"v_lshrrev_b32 v{T0}, 19, v{T0}")
        a(f"v_lshlrev_b32 v{t}, 10, v{t}")
        a(f"v_mad_i32_i24 v{t}, v{T0}, s40, v{t}")
        a(f"v_add_u32 v{t}, {STG}, v{t}")
    srd(a, 20, 32, NT * NT * S * 4, WS_DESC)
    srd(a, 24, 94, 256)
    a("s_mov_b32 s44, 0")
    a(f"s_mov_b32 s39, {KSL}")
    a(f"v_mov_b32 v{T0+22}, {(BSL - (CL * KSL if o.own == 1 else 0)) & 0xffffffff}")
    a(f"s_mov_b32 s5, {CL}")
    a(f"v_mov_b32 v{T0+20}, 0x7c")
    a(f"v_mov_b32 v{T0+21}, 0x0ff00000")
    a("s_barrier")
    KX = -(-(1 << 28) // (CL // 16))
    assert all(((k * (CL // 16) + d) * KX) >> 28 == (k * (CL // 16) + d) // (CL // 16) for k in range(1, 9) for d in (-1, 0) if k < 8 or d < 0)
    def key(O, W, t):
        x, xb, d, n = t, t + 1, t + 2, t + 3
        a(f"v_and_b32 v{x}, -16, v{O}")
        a(f"v_mul_hi_u32_u24 v{x}, {KX}, v{x}")
        a(f"v_mul_u32_u24 v{xb}, {CL}, v{x}")
        a(f"v_sub_u32 v{d}, v{W}, v{xb}")
        a(f"v_sub_u32 v{O}, v{O}, v{xb}")
        if o.own == 1:
            a(f"v_cmp_gt_u32 s[42:43], s5, v{d}")
            a(f"v_ashrrev_i32 v{n}, 31, v{d}")
            a(f"v_add_u32 v{d}, {8 * CL}, v{d}")
            a(f"v_and_b32 v{n}, {CL}, v{n}")
            a(f"v_add_u32 v{n}, v{n}, v{W}")
            a(f"v_cndmask_b32 v{n}, v{n}, v{d}, s[42:43]")
        elif o.own == 2:
            a(f"v_subrev_u32 v{d}, {CL}, v{d}")
            a(f"v_add_u32 v{n}, {E}, v{d}")
            a(f"v_min_u32 v{n}, v{n}, v{d}")
        else:
            a(f"v_mov_b32 v{n}, v{W}")
        a(f"v_lshlrev_b32 v{xb}, 11, v{O}")
        a(f"v_lshl_or_b32 v{W}, v{O}, 28, v{W}")
        a(f"v_mad_u32_u24 v{n}, v{n}, s39, v{T0+22}")
        a(f"v_lshrrev_b32 v{O}, 2, v{O}")
        a(f"v_bitop3_b32 v{W}, v{xb}, v{T0+21}, v{W} bitop3:0xea")
        a(f"v_and_b32_sdwa v{n}, v{n}, s38 dst_sel:DWORD dst_unused:UNUSED_PAD src0_sel:WORD_1 src1_sel:DWORD")
        a(f"v_lshl_or_b32 v{n}, v{x}, 7, v{n}")
        a(f"v_bitop3_b32 v{O}, v{O}, v{T0+20}, v{n} bitop3:0xea")
    done = [0]
    def wait_for(ops):
        while True:
            need = max(vmq.index(x) for x in ops) + 1 if all(x in vmq for x in ops) else None
            if need is not None and need <= done[0]: return
            idx = [k for k in range(done[0], len(vmq)) if vmq[k][0] != "t"]
            tgt = idx[min(o.ng, len(idx)) - 1] + 1 if idx else len(vmq)
            a(f"s_waitcnt vmcnt({len(vmq) - tgt})")
            n = sum(1 for k in range(done[0], tgt) if vmq[k][0] != "t")
            done[0] = tgt
            issue_next(n)
    for r in range(12):
        wait_for([("o", r), ("i", r)])
        assert all(k != "o" or q < r + 6 for k, q in vmq)
        if r == 2:
            wait_for([("t", 2)])
            key(TO, W0 + 48, T0)
            a(f"v_cndmask_b32 v{KP0+24}, 2.0, v{TO}, vcc")
            a(f"ds_add_u32 v{KP0+24}, v3 offset:{CN}")
        b = C0 + 4 * (r % 6)
        for j in range(4):
            key(b + j, W0 + 4 * r + j, T0 + 4 * j)
            a(f"ds_add_u32 v{b+j}, v3 offset:{CN}")
        a(f"v_lshl_or_b32 v{KP0+2*r}, v{b+1}, 16, v{b}")
        a(f"v_lshl_or_b32 v{KP0+2*r+1}, v{b+3}, 16, v{b+2}")
    a("v_lshrrev_b32 v2, 1, v2")
    a("s_waitcnt lgkmcnt(0)")
    a("s_barrier")
    P.stamp()
    c = T0; x = T0 + 4; tot = T0 + 5; y = T0 + 6
    a(f"s_cmp_ge_u32 s3, {S}")
    a("s_cbranch_scc1 P1_scan1")
    a(f"ds_read_b128 v[{c}:{c+3}], v1 offset:{CN}")
    a("s_waitcnt lgkmcnt(0)")
    a(f"v_add_u32 v{c+1}, v{c}, v{c+1}")
    a(f"v_add_u32 v{c+2}, v{c+1}, v{c+2}")
    a(f"v_add_u32 v{c+3}, v{c+2}, v{c+3}")
    a(f"v_mov_b32 v{x}, v{c+3}")
    for sh in (1, 2, 4, 8):
        a(f"v_add_u32_dpp v{x}, v{x}, v{x} row_shr:{sh} row_mask:0xf bank_mask:0xf bound_ctrl:1")
    a(f"v_add_u32_dpp v{x}, v{x}, v{x} row_bcast:15 row_mask:0xa bank_mask:0xf")
    a(f"v_add_u32_dpp v{x}, v{x}, v{x} row_bcast:31 row_mask:0xc bank_mask:0xf")
    a(f"v_readlane_b32 s40, v{x}, 63")
    a(f"s_lshl_b32 s41, s3, 2")
    a(f"v_mov_b32 v{y}, s41")
    a(f"v_mov_b32 v{y+1}, s40")
    a(f"ds_write_b32 v{y}, v{y+1} offset:{SCR}")
    a("s_waitcnt lgkmcnt(0)")
    a("P1_scan1:")
    a("s_barrier")
    a(f"s_cmp_ge_u32 s3, {S}")
    a("s_cbranch_scc1 P1_scan2")
    a(f"v_and_b32 v{y}, 63, v0")
    a(f"v_lshlrev_b32 v{y+1}, 2, v{y}")
    a(f"ds_read_b32 v{y+2}, v{y+1} offset:{SCR}")
    a(f"v_cmp_gt_u32 s[42:43], s3, v{y}")
    a(f"v_sub_u32 v{x}, v{x}, v{c+3}")
    a("s_waitcnt lgkmcnt(0)")
    a(f"v_cndmask_b32 v{y+2}, 0, v{y+2}, s[42:43]")
    for sh in (1, 2, 4, 8):
        a(f"v_add_u32_dpp v{y+2}, v{y+2}, v{y+2} row_shr:{sh} row_mask:0xf bank_mask:0xf bound_ctrl:1")
    a(f"v_readlane_b32 s40, v{y+2}, 15")
    s0 = T0 + 12
    a(f"v_add_u32 v{s0}, s40, v{x}")
    for j in range(3): a(f"v_add_u32 v{s0+1+j}, v{s0}, v{c+j}")
    a(f"ds_write_b128 v1, v[{s0}:{s0+3}] offset:{CN}")
    a(f"ds_write_b128 v1, v[{s0}:{s0+3}] offset:{STG}")
    a(f"v_mov_b32 v{c}, {STG + NK * 4}")
    a(f"v_mov_b32 v{c+1}, {TILE_N}")
    a(f"ds_write_b32 v{c}, v{c+1}")
    a("s_waitcnt lgkmcnt(0)")
    a("P1_scan2:")
    a("s_barrier")
    a(f"s_cmp_ge_u32 s3, {S}")
    a("s_cbranch_scc1 P1_nodesc")
    for j in range(4):
        a(f"ds_read2_b32 v[{T0+2*j}:{T0+2*j+1}], v{T0+16+j} offset0:0 offset1:1")
    a(f"s_mul_i32 s40, s2, {256*S*4}")
    lds_count(a, T0 + 8, 4)
    for j in range(4): a(f"v_lshl_or_b32 v{T0+12+j}, v{T0+2*j+1}, 16, v{T0+2*j}")
    a(f"buffer_store_dwordx4 v[{T0+12}:{T0+15}], v1, s[20:23], s40 offen {st}")
    a("P1_nodesc:")
    a(f"s_mul_i32 s40, s3, {WREG - 1024}")
    a(f"s_add_u32 s40, s40, {9*1024}")
    a(f"v_add_u32 v{TO}, s40, v1")
    srd(a, 8, 48, E * 32)
    a(f"s_mul_i32 s41, s2, {o.pfn * 64}")
    a(f"s_sub_u32 s41, s41, {o.pfw * 64}")
    a("v_add_lshl_u32 v1, v0, s41, 7")
    if o.pp & 1: a("s_setprio 3")
    def atomics(n):
        t = T0 + 4 * (n % 2)
        if n == 12:
            a(f"ds_add_rtn_u32 v{t}, v{KP0+24}, v3 offset:{CN}"); return 1
        for j in range(4):
            kp = KP0 + 2 * n + j // 2
            if j % 2 == 0: a(f"v_and_b32 v{t+j}, 0xffff, v{kp}")
            else: a(f"v_lshrrev_b32 v{t+j}, 16, v{kp}")
            a(f"ds_add_rtn_u32 v{t+j}, v{t+j}, v3 offset:{CN}")
        return 4
    a(f"s_cmp_ge_u32 s3, {o.asplit}")
    a("s_cbranch_scc1 P1_ang1")
    for n in range(o.an0): issue_ang(n)
    a("P1_ang1:")
    atomics(0)
    for n in range(13):
        k = atomics(n + 1) if n < 12 else 0
        if o.an0 + n < 12:
            a(f"s_cmp_ge_u32 s3, {o.asplit}")
            a(f"s_cbranch_scc1 P1_an{n}")
            issue_ang(o.an0 + n)
            a(f"P1_an{n}:")
        a(f"s_waitcnt lgkmcnt({k})")
        t = T0 + 4 * (n % 2); u = T0 + 8
        if n < 12:
            a(f"v_lshl_or_b32 v{KP0+2*n}, v{t+1}, 16, v{t}")
            a(f"v_lshl_or_b32 v{KP0+2*n+1}, v{t+3}, 16, v{t+2}")
        else:
            a(f"v_mov_b32 v{u}, 0xffff")
            a(f"v_cndmask_b32 v{KP0+24}, v{u}, v{t}, vcc")
    a(f"s_cmp_lt_u32 s3, {o.asplit}")
    a("s_cbranch_scc1 P1_ang2")
    for n in range(12): issue_ang(n)
    a("P1_ang2:")
    a("s_lshl_b32 s35, s35, 16")
    a("s_cmp_eq_u32 s35, 1.0")
    a("s_cbranch_scc1 P1_f1")
    a("s_waitcnt vmcnt(0)")
    for n in range(25):
        cr = C0 + n; t = T0
        a(f"v_lshlrev_b32 v{t}, 16, v{cr}")
        a(f"v_and_b32 v{t+1}, 0xffff0000, v{cr}")
        a(f"v_mul_f32 v{t}, s35, v{t}")
        a(f"v_mul_f32 v{t+1}, s35, v{t+1}")
        a(f"v_cvt_pk_bf16_f32 v{cr}, v{t}, v{t+1}")
    a("P1_f1:")
    lds_wait(a, T0, 4, S, "q", 0)
    def addrs(n, h, u, base):
        a(f"v_mad_u32_u16 v{u}, v{KP0+n}, 6, {base}" + (" op_sel:[1,0,0,0]" if h else ""))
        a(f"v_and_b32 v{u+1}, 2, v{u}")
        a(f"v_sub_u32 v{u}, v{u}, v{u+1}")
        a(f"v_sub_u32 v{u+1}, v{u}, v{u+1}")
    for n in range(25):
        cr = C0 + n; t = T0 + 6 * (n % 2)
        if o.pp & 1 and n in (0, 9, 17): a(f"s_setprio {2 - n // 8}")
        if o.pf0 == 3:
            if n == 0: a("s_waitcnt vmcnt(0)")
            for w in range(o.pfn):
                if o.pfs + (w * o.pfd) // 2 == n:
                    a(f"s_cmp_lg_u32 s3, {o.pfw + w}")
                    a(f"s_cbranch_scc1 P1_npf{w}")
                    a("buffer_load_dword v1, v1, s[8:11], 0 offen")
                    a(f"P1_npf{w}:")
        elif n % 2 == 0 and n < 24: a(f"s_waitcnt vmcnt({11 - n // 2})")
        if n == 0:
            a(f"s_cmp_ge_u32 s3, {S}")
            a("s_cbranch_scc1 P1_noe")
            a("s_waitcnt vmcnt(0)")
            lds_ticket(a, 2, 8)
            a(f"s_cmp_lg_u32 s40, {S-1}")
            a("s_cbranch_scc1 P1_noe")
            arrive(a, 2, LV_E)
            a("s_mov_b32 s44, 1")
            a("P1_noe:")
        if n == 14:
            a("s_cmp_eq_u32 s44, 0")
            a("s_cbranch_scc1 P2_norele")
            release(a, 2, LV_E, "e")
        a(f"v_lshlrev_b32 v{t}, 16, v{cr}")
        a(f"v_and_b32 v{t+1}, 0xffff0000, v{cr}")
        a(f"v_mul_f32 v{t}, 0.15915494, v{t}")
        a(f"v_mul_f32 v{t+1}, 0.15915494, v{t+1}")
        a(f"v_fract_f32 v{t}, v{t}")
        a(f"v_fract_f32 v{t+1}, v{t+1}")
        a(f"v_cos_f32 v{t}, v{t}")
        a(f"v_cos_f32 v{t+1}, v{t+1}")
        for h in range(2 if n < 24 else 1):
            u = t + 2 + 2 * h
            addrs(n, h, u, 0)
            a(f"ds_write_b32 v{u}, v{W0+2*n+h} offset:{STG}")
        a(f"v_cvt_pk_bf16_f32 v{cr}, v{t}, v{t+1}")
        a(f"ds_write_b16 v{t+3}, v{cr} offset:{STG+8}")
        if n < 24: a(f"ds_write_b16_d16_hi v{t+5}, v{cr} offset:{STG+8}")
    a(f"s_mul_i32 s40, s2, {TILE_BYTES}")
    srd(a, 20, 32, CHA * 6, "s40")
    a(f"v_subrev_u32 v2, {9*1024}, v{TO}")
    a("s_mov_b32 s44, 0")
    if o.pf0 == 2:
        a(f"s_sub_u32 s40, s3, {o.pfw}")
        a(f"s_cmp_ge_u32 s40, {o.pfn}")
        a("s_cbranch_scc1 P1_nopf0")
        a("buffer_load_dword v1, v1, s[8:11], 0 offen")
        a("P1_nopf0:")
    a("s_waitcnt lgkmcnt(0)")
    a("s_barrier")
    P.stamp()
    a(f"s_cmp_lg_u32 s3, 15")
    a("s_cbranch_scc1 P1_noclr")
    a(f"v_and_b32 v3, 15, v0")
    a(f"v_lshlrev_b32 v3, 2, v3")
    a(f"v_add_u32 v3, {XW}, v3")
    a(f"v_mov_b32 v{T0}, 0")
    a(f"ds_write_b32 v3, v{T0}")
    a("P1_noclr:")
    def rd(k):
        t = T0 + 4 * (k % 6)
        a(f"ds_read_b128 v[{t}:{t+3}], v2 offset:{STG + 1024 * (9 - k)}")
    def store(k):
        t = T0 + 4 * (k % 6)
        if k == 0: a("s_mov_b64 exec, 0xffff")
        a(f"buffer_store_dwordx4 v[{t}:{t+3}], v{TO}, s[20:23], 0 offen {st}")
        if k == 0: a("s_mov_b64 exec, -1")
        a(f"v_subrev_u32 v{TO}, 1024, v{TO}")
    NB = o.nb
    for k in range(6): rd(k)
    for k in range(NB):
        a(f"s_waitcnt lgkmcnt({min(5, 9-k)})")
        store(k)
        if k + 6 < 10: rd(k + 6)
    a(f"s_waitcnt vmcnt({NB}) lgkmcnt(0)")
    a(f"s_cmp_ge_u32 s3, {o.nd}")
    a("s_cbranch_scc1 P1_nod")
    for k in range(NB, 10): store(k)
    a("s_waitcnt vmcnt(0)")
    lds_ticket(a, T0, 0)
    a(f"s_cmp_lg_u32 s40, {o.nd-1}")
    a("s_cbranch_scc1 P1_nod")
    arrive(a, T0, LV_D)
    a("s_mov_b32 s44, 1")
    a("P1_nod:")
    a(f"s_mov_b32 s45, {(-CHA*6) & 0xffffffff}")
    a("s_barrier")
    P.stamp()
    nnow = NB
    for n in range(25):
        if o.pp & 2 and n in (0, 9, 17): a(f"s_setprio {2 - n // 8}")
        if o.pp & 4 and n in (0, 9, 17):
            if n == 0: a("s_setprio 3")
            a("s_cmp_lt_u32 s3, 4")
            a(f"s_cbranch_scc1 P1_pr{n}")
            a(f"s_setprio {2 - n // 8}")
            a(f"P1_pr{n}:")
        if n == 1:
            a("s_cmp_eq_u32 s44, 0")
            a("s_cbranch_scc1 P2_noreld")
            release(a, T0, LV_D, "d")
        if n % o.dstep == 1 and nnow < 10:
            a(f"s_cmp_lt_u32 s3, {o.nd}")
            a(f"s_cbranch_scc1 P1_ns{n}")
            store(nnow); nnow += 1
            a(f"P1_ns{n}:")
        for h in range(2 if n < 24 else 1):
            u = 2 * h
            addrs(n, h, u, "s45")
            a(f"ds_write_b32 v{u}, v{W0+2*n+h} offset:{STG}")
            a(f"ds_write_b16{'_d16_hi' if h else ''} v{u+1}, v{C0+n} offset:{STG+8}")
    assert nnow == 10
    lds_count(a, 4, XW + X_S)
    a(f"s_mul_i32 s40, s2, {TILE_BYTES}")
    a(f"s_add_u32 s40, s40, {CHA*6}")
    srd(a, 20, 32, (TILE_N - CHA) * 6, "s40")
    return XW, STG

LV_A, LV_B, LV_D, LV_E = 0, 1, 2, 3
X_A, X_S, X_X, X_I, X_B, X_R, X_C, X_H, X_CW, X_PW = 0, 4, 8, 12, 16, 20, 24, 28, 32, 48

def arrive(a, t, level):
    a(f"v_mov_b32 v{t}, 0")
    a(f"v_mov_b32 v{t+1}, 1")
    a("s_mov_b64 exec, 1")
    a(f"buffer_atomic_add v{t+1}, v{t}, s[24:27], 0 offen offset:{32*level} sc0 sc1")
    a("s_mov_b64 exec, -1")

def release(a, t, level, tag):
    a("s_waitcnt vmcnt(0)")
    a(f"v_readfirstlane_b32 s40, v{t+1}")
    a("s_cmp_lg_u32 s40, 255")
    a(f"s_cbranch_scc1 P2_norel{tag}")
    a("s_mov_b64 exec, 1")
    a(f"buffer_store_dword v{t+1}, v{t}, s[24:27], 0 offen offset:{128+4*level} sc1")
    a("s_mov_b64 exec, -1")
    a(f"P2_norel{tag}:")

def lds_count(a, t, word):
    a(f"v_mov_b32 v{t}, {word}")
    a(f"v_mov_b32 v{t+1}, 1")
    a("s_mov_b64 exec, 1")
    a("s_waitcnt lgkmcnt(0)")
    a(f"ds_add_u32 v{t}, v{t+1}")
    a("s_mov_b64 exec, -1")

def lds_wait(a, t, word, n, tag, sleep):
    a(f"v_mov_b32 v{t}, {word}")
    a(f"P2_lw{tag}:")
    a(f"ds_read_b32 v{t+1}, v{t}")
    a("s_waitcnt lgkmcnt(0)")
    a(f"v_readfirstlane_b32 s40, v{t+1}")
    a(f"s_cmp_ge_u32 s40, {n}")
    a(f"s_cbranch_scc1 P2_lg{tag}")
    if sleep: a(f"s_sleep {sleep}")
    guard(a)
    a(f"s_branch P2_lw{tag}")
    a(f"P2_lg{tag}:")

def lds_ticket(a, t, word):
    a(f"v_mov_b32 v{t}, {word}")
    a(f"v_mov_b32 v{t+1}, 1")
    a("s_mov_b64 exec, 1")
    a(f"ds_add_rtn_u32 v{t+1}, v{t}, v{t+1}")
    a("s_mov_b64 exec, -1")
    a("s_waitcnt lgkmcnt(0)")
    a(f"v_readfirstlane_b32 s40, v{t+1}")

def publish_a(a, t, XW, tag):
    lds_ticket(a, t, XW + X_A)
    a("s_cmp_lg_u32 s40, 15")
    a(f"s_cbranch_scc1 P2_norel{tag}")
    arrive(a, t, LV_A)
    release(a, t, LV_A, tag)

def gen_p2(o, a, P, XW, STG):
    S = o.S
    uid = [0]
    LUT = 2048; CB = 2560; WSZ = NG * WSTR
    RBSZ = 100 * 512
    X1 = RBSZ + 32
    WT = CB + WSZ // 2 + 16
    WB = CB + X1 // 2 + WSZ // 2 + 16
    RB_AT = (WB, WB + WSZ + 32)
    K0 = (WB - STG) // 12288; K1 = (WB + X1 - STG) // 12288
    assert STG + 12288 * (K0 + 4) >= WB + WSZ + 32 and STG + 12288 * K1 >= WB + WSZ + 32 and STG + 12288 * (K1 + 4) >= WB + X1 + WSZ + 64
    SC = STG + 12288 * (K1 + 4); TSZ = 1088
    assert WT + 3072 <= CB + X1 // 2 and WB < 65536 and SC + 12 * TSZ <= XW and WB % 16 == 0 and X1 % 32 == 0
    if o.xp:
        a("s_bfe_u32 s46, s2, 0x20001")
        a("s_bitcmp0_b32 s2, 0")
        a("s_cselect_b32 s47, 4, 0")
        a("s_add_u32 s46, s46, s47")
    else:
        a("s_and_b32 s46, s2, 7")
    a("s_lshl_b32 s46, s46, 5")
    a("s_lshr_b32 s47, s2, 3")
    a("s_add_u32 s46, s46, s47")
    a("v_mbcnt_lo_u32_b32 v12, -1, 0")
    a("v_mbcnt_hi_u32_b32 v12, -1, v12")
    a("s_lshl_b32 s40, s3, 6")
    a("v_add_u32 v0, s40, v12")
    srd(a, 8, 48, E * 32)
    srd(a, 12, 32, NT * TILE_BYTES)
    srd(a, 16, 32, NT * NT * S * 4, WS_DESC)
    a("s_mov_b64 s[6:7], s[86:87]")
    if o.prof: a("s_mov_b32 s71, 0")
    a("s_mov_b32 s48, 0")
    a("s_cmp_ge_u32 s3, 4")
    a("s_cbranch_scc1 P2_consumer")
    def twait(body):
        if o.prof == 1:
            a("s_waitcnt lgkmcnt(0)")
            a("s_memtime s[56:57]")
            a("s_waitcnt lgkmcnt(0)")
        body()
        if o.prof == 1:
            a("s_memtime s[58:59]")
            a("s_waitcnt lgkmcnt(0)")
            a("s_sub_u32 s56, s58, s56")
            a("s_add_u32 s71, s71, s56")
    D0 = 40; R0 = 64
    vU12 = 1; vTile = 2; vInc = 3; v3FC = 4; vCb = 5; vZ = 6; v2U2 = 7; v2U1 = 8; vSg = 9
    n2c = 10; a0c = 11; n2n = 13; a0n = 14
    vca = 16; vcb = 17; vra = 18; vrb = 19; vwa = 20; vwb = 21; vha = 22; vhb = 23; vt = 24; vt2 = 25; vPW = 26; vS = 28
    ODDC = 52; MORC = 54; ODDN = 84; MORN = 86; ROW0 = 82; M0_ = 88; M1_ = 90
    KSL, BSL = slicing(o)
    L0 = -(-(1 << 26) // KSL) // 4 + 1
    def warm(sl, part):
        nt = -(-L0 // 512); n0 = nt * o.wsh // 100; n1 = nt - n0
        uid[0] += 1
        a(f"s_mul_i32 s40, {sl}, {L0 - 1}")
        a(f"s_lshr_b32 s41, s2, 1")
        a(f"s_lshl_b32 s41, s41, 2")
        a(f"s_add_u32 s41, s41, {part}")
        a(f"s_mul_i32 s41, s41, {nt}")
        a(f"s_add_u32 s40, s40, s41")
        a(f"s_add_u32 s40, s40, {(o.swo // 4 - BSL // KSL // 4) & 0xffffffff}")
        a("s_bitcmp1_b32 s2, 0")
        a(f"s_cselect_b32 s41, {n0}, 0")
        a(f"s_add_u32 s40, s40, s41")
        a(f"s_cmp_ge_u32 s40, {E // 4}")
        a(f"s_cbranch_scc1 P2_we{uid[0]}")
        a(f"s_min_u32 s40, s40, {E // 4 - n1}")
        a(f"s_lshl_b32 s40, s40, 7")
        a(f"s_add_u32 s36, s8, s40")
        a(f"s_addc_u32 s37, s9, 0")
        for j in range(n1):
            if j == n0:
                a("s_bitcmp0_b32 s2, 0")
                a(f"s_cbranch_scc1 P2_we{uid[0]}")
            a(f"s_load_dwordx2 s[38:39], s[36:37], {128*j+60}")
        a(f"P2_we{uid[0]}:")
    def poll(level, tag, meanwhile=None):
        a("s_mov_b32 s51, 0")
        a(f"P2_poll{tag}:")
        a(f"buffer_load_dword v{vt}, v{vZ}, s[24:27], 0 offen offset:{128+4*level} sc1")
        a("s_add_u32 s51, s51, 1")
        a(f"s_cmp_gt_u32 s51, {o.maxpoll}")
        a("s_cbranch_scc1 P2_giveup")
        if meanwhile: a(f"s_call_b64 s[34:35], {meanwhile}")
        a("s_waitcnt vmcnt(0)")
        a(f"v_cmp_eq_u32 vcc, 0, v{vt}")
        a(f"s_cbranch_vccz P2_polled{tag}")
        a(f"s_sleep {o.gsleep}")
        a(f"s_branch P2_poll{tag}")
        a(f"P2_polled{tag}:")
    def ensure():
        uid[0] += 1; u = uid[0]
        a(f"v_cmp_lt_u32 vcc, s45, v{D0}")
        a(f"s_cbranch_vccz P2_have{u}")
        a("s_call_b64 s[42:43], P2_ensure")
        a(f"P2_have{u}:")
    def prep():
        ensure()
        a(f"v_bfe_u32 v{vt}, v{D0}, 1, 15")
        a(f"v_mad_u32_u24 v{a0n}, v{vt}, 12, v{vTile}")
        a(f"v_lshrrev_b32 v{n2n}, 16, v{D0}")
        a(f"v_and_b32 v{vt}, 0xfffe, v{D0}")
        a(f"v_sub_u32 v{n2n}, v{n2n}, v{vt}")
        a(f"v_and_b32 v{vt}, 1, v{D0}")
        a(f"v_cmp_eq_u32 s[{ODDN}:{ODDN+1}], 1, v{vt}")
        a(f"v_cmp_lt_u32 s[{MORN}:{MORN+1}], 32, v{n2n}")
        for k in range(S): a(f"v_mov_b32 v{D0+k}, v{D0+k+1}")
    def issue(i):
        t = (vt, vca)[i % 2]
        a(f"v_add_u32_dpp v{t}, v{a0n}, v{vU12} row_newbcast:{i} row_mask:0xf bank_mask:0xf")
        a(f"v_sub_u32_dpp v{t+1}, v{n2n}, v{v2U1} row_newbcast:{i} row_mask:0xf bank_mask:0xf")
        a(f"v_bitop3_b32 v{t}, v{t+1}, v{vSg}, v{t} bitop3:0xea")
        r = R0 + 4 * i
        a(f"buffer_load_dwordx3 v[{r}:{r+2}], v{t}, s[12:15], 0 offen sc1")
    def unhold():
        a("s_lshl_b32 s40, 1, s3")
        a(f"v_mov_b32 v{vt}, {XW + X_H}")
        a(f"v_mov_b32 v{vt2}, s40")
        a("s_mov_b64 exec, 1")
        a(f"ds_or_b32 v{vt}, v{vt2}")
        a("s_mov_b64 exec, -1")
    def warm_step():
        if o.sw:
            a(f"s_sub_u32 s4, s49, {o.swd}")
            a(f"s_cmp_lt_u32 s4, {o.sw0}")
            a("s_cbranch_scc1 P2_nowarm")
            a(f"s_cmp_ge_u32 s4, {-(-(E - o.swo) // (4 * (L0 - 1)))}")
            a("s_cbranch_scc1 P2_nowarm")
            warm("s4", "s3")
            a("P2_nowarm:")
    def next_round(regular):
        a("s_call_b64 s[42:43], P2_next")
        if regular:
            ensure()
            warm_step()
        a("s_call_b64 s[42:43], P2_wait")
    def wait_buffer(tag):
        a("s_add_u32 s50, s48, 1")
        a("s_lshr_b32 s50, s50, 1")
        a("s_mul_i32 s50, s50, 12")
        a("s_and_b32 s51, s48, 1")
        a("s_lshl_b32 s51, s51, 2")
        a(f"s_add_u32 s51, s51, {XW + X_CW}")
        a(f"v_mov_b32 v{vt2}, s51")
        a(f"P2_pw{tag}:")
        a(f"ds_read_b32 v{vt}, v{vt2}")
        a("s_waitcnt lgkmcnt(0)")
        a(f"v_readfirstlane_b32 s51, v{vt}")
        a("s_cmp_ge_u32 s51, s50")
        a(f"s_cbranch_scc1 P2_pg{tag}")
        a(f"s_sleep {o.psleep}")
        guard(a)
        a(f"s_branch P2_pw{tag}")
        a(f"P2_pg{tag}:")
    a("s_setprio 3")
    a("s_waitcnt vmcnt(0)")
    publish_a(a, vt, XW, "ap")
    a(f"s_lshl_b32 s47, s3, 6")
    a(f"v_add_u32 v{vTile}, s47, v12")
    a(f"s_lshl_b32 s50, s3, 2")
    a(f"s_add_u32 s50, s50, {XW + X_PW}")
    a(f"v_mov_b32 v{vPW}, s50")
    a(f"v_lshlrev_b32 v15, 8, v{vTile}")
    a(f"v_add_u32 v15, s46, v15")
    a(f"v_mul_u32_u24 v15, {4*S}, v15")
    a(f"v_mov_b32 v{D0+S}, 0")
    a(f"v_mul_u32_u24 v{vTile}, {TILE_BYTES}, v{vTile}")
    a(f"v_and_b32 v{vt}, 15, v12")
    a(f"v_mul_u32_u24 v{vU12}, 12, v{vt}")
    a(f"v_lshl_add_u32 v{v2U1}, v{vt}, 1, 1")
    a(f"v_add_u32 v{v2U2}, 1, v{v2U1}")
    a(f"v_mov_b32 v{vInc}, {(1 << 20) + 4}")
    a(f"v_mov_b32 v{v3FC}, 0x3fc")
    a(f"v_mov_b32 v{vSg}, 0x80000000")
    for r in (vCb, vZ, vra, vrb, vS, vS + 1): a(f"v_mov_b32 v{r}, 0")
    a("s_mov_b32 s49, 0")
    a(f"s_mov_b32 s{ROW0}, 0x00010001")
    a(f"s_mov_b32 s{ROW0+1}, 0x00010001")
    a(f"s_mov_b32 s45, {((o.nd * WREG // 12 * 2) << 16) | 0xffff}")
    nsave = P.n
    P.stamp()
    poll(LV_E, "e")
    k = 0
    while k < S:
        w = 4 if S - k >= 4 else (2 if S - k >= 2 else 1)
        sfx = {4: "x4", 2: "x2", 1: ""}[w]
        dst = f"v[{D0+k}:{D0+k+w-1}]" if w > 1 else f"v{D0+k}"
        a(f"buffer_load_dword{sfx} {dst}, v15, s[16:19], 0 offen offset:{4*k} sc1")
        k += w
    poll(LV_D, "d")
    P.stamp()
    prep()
    for i in range(16): issue(i)
    P.stamp()
    lds_wait(a, vt, XW + X_I, 12, "i", 1)
    P.stamp()
    def ppass(tg, inl):
        a(f"v_mov_b32 v{n2c}, v{n2n}")
        a(f"v_mov_b32 v{a0c}, v{a0n}")
        a(f"s_mov_b64 s[{ODDC}:{ODDC+1}], s[{ODDN}:{ODDN+1}]")
        a(f"s_mov_b64 s[{MORC}:{MORC+1}], s[{MORN}:{MORN+1}]")
        if inl: prep()
        for i in range(16):
            r = R0 + 4 * i
            a(f"v_sub_co_u32_dpp v{vt}, vcc, v{n2c}, v{v2U1} row_newbcast:{i} row_mask:0xf bank_mask:0xf")
            a(f"s_and_b64 s[92:93], s[{ODDC}:{ODDC+1}], s[{ROW0}:{ROW0+1}]")
            a(f"s_nor_b64 s[{M0_}:{M0_+1}], vcc, s[92:93]")
            a(f"v_sub_co_u32_dpp v{vt2}, vcc, v{n2c}, v{v2U2} row_newbcast:{i} row_mask:0xf bank_mask:0xf")
            a(f"s_lshr_b64 s[{ODDC}:{ODDC+1}], s[{ODDC}:{ODDC+1}], 1")
            a(f"s_not_b64 s[{M1_}:{M1_+1}], vcc")
            a(f"s_waitcnt vmcnt({15 if inl else 15 - i})")
            a(f"P2_retry{tg}{i}:")
            a(f"v_lshrrev_b32 v{vca}, 18, v{r}")
            a(f"v_lshrrev_b32 v{vcb}, 18, v{r+1}")
            a(f"v_bitop3_b32 v{vca}, v{vca}, v{v3FC}, v{vCb} bitop3:0xea")
            a(f"v_bitop3_b32 v{vcb}, v{vcb}, v{v3FC}, v{vCb} bitop3:0xea")
            a(f"s_mov_b64 exec, s[{M0_}:{M0_+1}]")
            a(f"ds_add_rtn_u32 v{vra}, v{vca}, v{vInc}")
            a(f"s_mov_b64 exec, s[{M1_}:{M1_+1}]")
            a(f"ds_add_rtn_u32 v{vrb}, v{vcb}, v{vInc}")
            a(f"s_mov_b64 exec, -1")
            a(f"v_and_b32 v{vwa}, 0xf00fffff, v{r}")
            a(f"v_and_b32 v{vwb}, 0xf00fffff, v{r+1}")
            a("s_waitcnt lgkmcnt(0)")
            a(f"v_and_b32 v{vra}, 0xfc03ffff, v{vra}")
            a(f"v_and_b32 v{vrb}, 0xfc03ffff, v{vrb}")
            a(f"v_lshrrev_b32 v{vha}, 1, v{vra}")
            a(f"v_lshrrev_b32 v{vhb}, 1, v{vrb}")
            a(f"v_or_b32 v{vt}, v{vra}, v{vrb}")
            a(f"v_cmp_lt_u32 vcc, v{vInc}, v{vt}")
            a(f"s_mov_b64 exec, s[{M0_}:{M0_+1}]")
            a(f"ds_write_b32 v{vra}, v{vwa} offset:{WB}")
            a(f"ds_write_b16 v{vha}, v{r+2} offset:{CB}")
            a(f"s_mov_b64 exec, s[{M1_}:{M1_+1}]")
            a(f"ds_write_b32 v{vrb}, v{vwb} offset:{WB}")
            a(f"ds_write_b16_d16_hi v{vhb}, v{r+2} offset:{CB}")
            a(f"s_mov_b64 exec, -1")
            a(f"s_cbranch_vccnz P2_stall{tg}{i}")
            a(f"s_and_b64 s[92:93], s[{MORC}:{MORC+1}], s[{ROW0}:{ROW0+1}]")
            a(f"s_cbranch_scc1 P2_more{tg}{i}")
            if not inl:
                a("s_cmp_lg_u32 s98, 0")
                a("s_cbranch_scc1 P2_sweep")
                a(f"P2_cont{tg}{i}:")
            a(f"s_lshr_b64 s[{MORC}:{MORC+1}], s[{MORC}:{MORC+1}], 1")
            if inl: issue(i)
    if o.burst:
        a("s_mov_b32 s47, 0")
        a("P2_pslice:")
        a("s_mov_b32 s98, 0")
        ppass("f", False)
        a("P2_sweep:")
        a("s_cmp_lg_u32 s47, 0")
        a("s_cbranch_scc1 P2_sweep1")
        if o.prof == 1:
            a("s_cmp_lg_u32 s49, 0"); a("s_cbranch_scc1 P2_nost2"); P.stamp(); a("P2_nost2:")
        a("s_add_u32 s49, s49, 1")
        a(f"s_cmp_ge_u32 s49, {S}")
        a("s_cbranch_scc1 P2_pdone")
        a("s_cmp_ge_u32 s48, s49")
        a("s_cbranch_scc1 P2_ff1")
        a("s_call_b64 s[42:43], P2_next")
        a("P2_ff1:")
        if o.burst == 2: warm_step()
        if o.bpr != 3: a(f"s_setprio {o.bpr}")
        prep()
        for i in range(16): issue(i)
        if o.burst == 1: warm_step()
        ensure()
        if o.bpr != 3: a("s_setprio 3")
        a("s_call_b64 s[42:43], P2_wait")
        a("s_branch P2_pslice")
    else:
        a("s_mov_b32 s98, 0")
        a("s_mov_b32 s47, 0")
        ppass("f", False)
        a("P2_sweep:")
        a("s_cmp_lg_u32 s47, 0")
        a("s_cbranch_scc1 P2_sweep1")
        P.stamp()
        a("s_mov_b32 s49, 1")
        a("s_cmp_ge_u32 s48, s49")
        a("s_cbranch_scc1 P2_ff1")
        a("s_call_b64 s[42:43], P2_next")
        a("P2_ff1:")
        prep()
        for i in range(16): issue(i)
        a("s_call_b64 s[42:43], P2_wait")
        if o.ppr != 3: a(f"s_setprio {o.ppr}")
        a("P2_pslice:")
        ppass("", True)
        a("s_add_u32 s49, s49, 1")
        a(f"s_cmp_ge_u32 s49, {S}")
        a("s_cbranch_scc1 P2_pdone")
        a("s_cmp_ge_u32 s48, s49")
        a("s_cbranch_scc1 P2_pslice")
        next_round(True)
        a("s_branch P2_pslice")
    a("P2_next:")
    a("s_add_u32 s48, s48, 1")
    if o.maxr:
        a(f"s_cmp_gt_u32 s48, {o.maxr}")
        a("s_cbranch_scc1 P2_giveup")
    a(f"v_mov_b32 v{vt}, s48")
    a("s_waitcnt lgkmcnt(0)")
    a(f"ds_write_b32 v{vPW}, v{vt}")
    a(f"v_xor_b32 v{vCb}, 1024, v{vCb}")
    def pubb2():
        a("s_cmp_lg_u32 s48, 2")
        a("s_cbranch_scc1 P2_next1")
        a("s_call_b64 s[96:97], P2_pubb")
        a("P2_next1:")
    if not o.nl: pubb2()
    a("s_setpc_b64 s[42:43]")
    a("P2_wait:")
    twait(lambda: wait_buffer("n"))
    if o.nl: pubb2()
    a("s_setpc_b64 s[42:43]")
    a("P2_pubb:")
    lds_ticket(a, vS, XW + X_C)
    a("s_cmp_lg_u32 s40, 0")
    a("s_cbranch_scc1 P2_norelb")
    lds_wait(a, vS, XW + X_B, 12, "b", 1)
    arrive(a, vS, LV_B)
    release(a, vS, LV_B, "b")
    a("s_setpc_b64 s[96:97]")
    a("P2_ensure:")
    poll(LV_A, "a")
    a(f"s_mov_b32 s45, {(CHA << 16) | 0xffff}")
    a(f"v_cmp_lt_u32 vcc, s45, v{D0}")
    a("s_cbranch_vccz P2_ens1")
    unhold()
    a("s_call_b64 s[96:97], P2_pubb")
    poll(LV_B, "b")
    a("s_mov_b32 s45, -1")
    a("P2_ens1:")
    a("s_setpc_b64 s[42:43]")
    for tg, i in [(t_, i_) for t_ in (("f",) if o.burst else ("", "f")) for i_ in range(16)]:
        r = R0 + 4 * i
        a(f"P2_stall{tg}{i}:")
        a(f"v_cmp_lt_u32 s[{M0_}:{M0_+1}], v{vInc}, v{vra}")
        a(f"v_cmp_lt_u32 s[{M1_}:{M1_+1}], v{vInc}, v{vrb}")
        next_round(False)
        a(f"s_branch P2_retry{tg}{i}")
        a(f"P2_more{tg}{i}:")
        a(f"s_lshl_b64 exec, s[{ROW0}:{ROW0+1}], {i}")
        a(f"v_max_u32 v{n2c}, 32, v{n2c}")
        a(f"v_subrev_u32 v{n2c}, 32, v{n2c}")
        a(f"v_add_u32 v{a0c}, 192, v{a0c}")
        a(f"s_mov_b64 exec, -1")
        a(f"v_sub_u32_dpp v{vt2}, v{n2c}, v{v2U1} row_newbcast:{i} row_mask:0xf bank_mask:0xf")
        a(f"v_add_u32_dpp v{vt}, v{a0c}, v{vU12} row_newbcast:{i} row_mask:0xf bank_mask:0xf")
        a(f"v_bitop3_b32 v{vt}, v{vt2}, v{vSg}, v{vt} bitop3:0xea")
        a(f"buffer_load_dwordx3 v[{r}:{r+2}], v{vt}, s[12:15], 0 offen sc1")
        if tg:
            a(f"s_bitset1_b32 s47, {i}")
            a("s_cmp_eq_u32 s98, 0")
            a(f"s_cbranch_scc1 P2_cont{tg}{i}")
            a(f"P2_again{i}:")
            a(f"s_bitset0_b32 s47, {i}")
        a(f"v_cmp_lt_u32 vcc, 32, v{n2c}")
        a(f"s_lshr_b64 s[92:93], vcc, {i}")
        a(f"s_and_b64 s[92:93], s[92:93], s[{ROW0}:{ROW0+1}]")
        a(f"s_andn2_b64 s[{MORC}:{MORC+1}], s[{MORC}:{MORC+1}], s[{ROW0}:{ROW0+1}]")
        a(f"s_or_b64 s[{MORC}:{MORC+1}], s[{MORC}:{MORC+1}], s[92:93]")
        a(f"v_sub_co_u32_dpp v{vt2}, vcc, v{n2c}, v{v2U2} row_newbcast:{i} row_mask:0xf bank_mask:0xf")
        a(f"s_not_b64 s[{M1_}:{M1_+1}], vcc")
        a(f"v_sub_co_u32_dpp v{vt2}, vcc, v{n2c}, v{v2U1} row_newbcast:{i} row_mask:0xf bank_mask:0xf")
        a(f"s_not_b64 s[{M0_}:{M0_+1}], vcc")
        a("s_waitcnt vmcnt(0)")
        a(f"s_branch P2_retry{tg}{i}")
    a("P2_sweep1:")
    a("s_mov_b32 s98, 1")
    for i in range(15):
        a(f"s_bitcmp1_b32 s47, {i}")
        a(f"s_cbranch_scc1 P2_again{i}")
    a("s_branch P2_again15")
    a("P2_giveup:")
    unhold()
    a("P2_pdone:")
    a("s_add_u32 s48, s48, 0x40000001")
    a(f"v_mov_b32 v{vt}, s48")
    a("s_waitcnt lgkmcnt(0)")
    a(f"ds_write_b32 v{vPW}, v{vt}")
    a(f"s_setprio {o.eprio}")
    if o.sw and o.swd:
        warm(S - 1, "s3")
        a("s_waitcnt lgkmcnt(0)")
    a("s_load_dwordx2 s[6:7], s[0:1], 24")
    a("s_load_dwordx2 s[34:35], s[0:1], 40")
    a("s_load_dwordx8 s[36:43], s[0:1], 56")
    DS = 30; CEN = 56; RB0 = 64; t = 60; X = 1
    a("v_and_b32 v13, 15, v12")
    a("v_lshrrev_b32 v14, 4, v12")
    a(f"v_lshlrev_b32 v{X}, 7, v14")
    a(f"v_lshl_add_u32 v{X}, v13, 1, v{X}")
    a(f"v_and_b32 v{X+1}, 0xff, v{X}")
    a(f"v_and_b32 v{X+2}, 1, v14")
    a(f"v_lshlrev_b32 v{X+2}, 3, v{X+2}")
    a(f"v_lshrrev_b32 v{X+3}, 1, v14")
    a(f"v_lshlrev_b32 v{X+3}, 10, v{X+3}")
    a(f"v_lshl_add_u32 v{X+3}, v13, 1, v{X+3}")
    a("s_and_b32 s47, s46, 31")
    a("s_lshl_b32 s47, s47, 5")
    a(f"v_add_u32 v{X+3}, s47, v{X+3}")
    a(f"v_cmp_gt_u32 s[88:89], 32, v12")
    a("s_waitcnt vmcnt(0) lgkmcnt(0)")
    a("s_lshr_b32 s47, s46, 5")
    a(f"s_mul_i32 s47, s47, {CL * 2}")
    srd(a, 20, 6, CL * 2, "s47")
    srd(a, 28, 42, 512)
    srd(a, 12, 38, 256)
    srd(a, 16, 36, 256)
    srd(a, 52, 34, 16)
    srd(a, 84, 40, 512)
    for c in range(4): a(f"buffer_load_ushort v{CEN+c}, v{X+2}, s[52:55], 0 offen offset:{2*c}")
    a("s_mul_i32 s47, s3, 25")
    for k in range(25):
        a("s_mul_i32 s50, s47, 57")
        a("s_lshr_b32 s50, s50, 9")
        a("s_min_u32 s50, s50, 4")
        a("s_lshl_b32 s51, s47, 1")
        a("s_sub_u32 s50, s51, s50")
        a("s_lshl_b32 s50, s50, 10")
        a(f"v_add_u32 v{DS+k}, s50, v{X+3}")
        a("s_add_u32 s47, s47, 1")
        a(f"buffer_load_ushort v{DS+k}, v{DS+k}, s[20:23], 0 offen")
    assert all((n * 57) >> 9 == n // 9 for n in range(45))
    Y = 116
    for c in range(4): a(f"buffer_load_ushort v{Y+c}, v{X}, s[28:31], 0 offen offset:{32*c}")
    for c in range(4): a(f"buffer_load_ushort v{Y+4+c}, v{X+1}, s[12:15], 0 offen offset:{32*c}")
    for c in range(4): a(f"buffer_load_ushort v{Y+8+c}, v{X+1}, s[16:19], 0 offen offset:{32*c}")
    for c in range(4): a(f"buffer_load_ushort v{16+c}, v{X}, s[84:87], 0 offen offset:{32*c}")
    a("s_waitcnt vmcnt(40)")
    for c in range(4): a(f"v_lshlrev_b32 v{CEN+c}, 16, v{CEN+c}")
    def rnd():
        if o.nornd: return
        for u in range(2):
            a(f"v_cvt_pk_bf16_f32 v{t+2*u+1}, v{t+2*u}, v{t+2*u+1}")
        for u in range(2):
            a(f"v_lshlrev_b32 v{t+2*u}, 16, v{t+2*u+1}")
            a(f"v_and_b32 v{t+2*u+1}, 0xffff0000, v{t+2*u+1}")
    for k in range(25):
        d = DS + k
        a(f"s_waitcnt vmcnt({40 - k})")
        a(f"v_lshlrev_b32 v{d}, 16, v{d}")
        for c in range(4): a(f"v_sub_f32 v{t+c}, v{d}, v{CEN+c}")
        rnd()
        for c in range(4): a(f"v_mul_f32 v{t+c}, v{t+c}, v{t+c}")
        rnd()
        for c in range(4): a(f"v_mul_f32 v{t+c}, 0xc1200000, v{t+c}")
        rnd()
        for c in range(4): a(f"v_mul_f32 v{t+c}, 0x3fb8aa3b, v{t+c}")
        for c in range(4): a(f"v_exp_f32 v{t+c}, v{t+c}")
        for u in range(2): a(f"v_cvt_pk_bf16_f32 v{RB0+2*k+u}, v{t+2*u}, v{t+2*u+1}")
    a("s_waitcnt vmcnt(0)")
    Z = 30
    for u in range(2):
        a(f"v_lshl_or_b32 v{Z+8+u}, v{Y+2*u+1}, 16, v{Y+2*u}")
        a(f"v_lshl_or_b32 v{Z+10+u}, v{17+2*u}, 16, v{16+2*u}")
        a(f"v_lshl_or_b32 v{Y+4+u}, v{Y+5+2*u}, 16, v{Y+4+2*u}")
        a(f"v_lshl_or_b32 v{Y+8+u}, v{Y+9+2*u}, 16, v{Y+8+2*u}")
    for u in range(2):
        a(f"v_cndmask_b32 v{Z+u}, 0, v{Y+4+u}, s[88:89]")
        a(f"v_cndmask_b32 v{Z+2+u}, v{Y+4+u}, 0, s[88:89]")
        a(f"v_cndmask_b32 v{Z+4+u}, 0, v{Y+8+u}, s[88:89]")
        a(f"v_cndmask_b32 v{Z+6+u}, v{Y+8+u}, 0, s[88:89]")
    a(f"v_lshlrev_b32 v{X}, 3, v12")
    a(f"v_add_u32 v{X+1}, {WT}, v{X}")
    a(f"v_and_b32 v{X+2}, 3, v12")
    a(f"v_lshlrev_b32 v{X+2}, 2, v{X+2}")
    a(f"v_add_u32 v{X+2}, {XW + X_PW}, v{X+2}")
    a("P2_dw:")
    a(f"ds_read_b32 v{vt}, v{X+2}")
    a("s_waitcnt lgkmcnt(0)")
    a(f"v_cmp_gt_u32 vcc, 2.0, v{vt}")
    a("s_cbranch_vccz P2_dg")
    a(f"s_sleep {o.psleep}")
    guard(a)
    a("s_branch P2_dw")
    a("P2_dg:")
    a(f"v_readlane_b32 s48, v{vt}, 0")
    for k in range(1, 4):
        a(f"v_readlane_b32 s50, v{vt}, {k}")
        a("s_max_u32 s48, s48, s50")
    a("s_and_b32 s48, s48, 0x3fffffff")
    wait_buffer("e")
    a("s_bitcmp1_b32 s48, 0")
    a(f"s_cselect_b32 s50, {RB_AT[1] - RB_AT[0]}, 0")
    a(f"s_add_u32 s50, s50, {RB_AT[0]}")
    a(f"s_mul_i32 s51, s3, {25*512}")
    a("s_add_u32 s50, s50, s51")
    a(f"v_add_u32 v{X}, s50, v{X}")
    for k in range(6): a(f"ds_write_b64 v{X+1}, v[{Z+2*k}:{Z+2*k+1}] offset:{512*k}")
    for k in range(25): a(f"ds_write_b64 v{X}, v[{RB0+2*k}:{RB0+2*k+1}] offset:{512*k}")
    lds_count(a, vt, XW + X_R)
    a("s_waitcnt lgkmcnt(0)")
    if o.prof == 1:
        P.stamp(); P.dump(32, 0x80000, 8, 3); P.n = nsave
    a("s_endpgm")
    a("P2_consumer:")
    ACC = 60; G0 = 52; B0 = 44; A2 = 28; vTw = 32; vTr = 33; vM = 24; vC = 20; vX = 16
    bA = 1; bE = 2; bC = 3; bR = 4; vH = 5; vL = 6; vCA = 7; vCI = 8; vA = 9; vE = 10
    a("s_sub_u32 s47, s3, 4")
    a("s_min_u32 s44, s47, 4")
    a("s_lshl_b32 s49, s47, 4")
    a("s_add_u32 s49, s49, s44")
    a("s_cmp_lt_u32 s47, 4")
    a("s_cselect_b32 s50, 17, 16")
    a(f"s_cselect_b32 s84, 0, {MARK & 0xffffff}")
    a(f"s_cselect_b32 s85, {17*WSTR//16-192}, {16*WSTR//16-192}")
    a("s_bfm_b64 s[92:93], s85, 0")
    a(f"v_subrev_u32 v60, 256, v0")
    a(f"v_lshlrev_b32 v60, 4, v60")
    for k in range(1, 4): a(f"v_add_u32 v{60+k}, {4*12288*k}, v60")
    lds_wait(a, vX, XW + X_S, 16, "s", o.ssleep)
    P.stamp()
    NL = o.nl; vSt = 34
    for j in range(13):
        k = 12 - j
        a(f"ds_read_b128 v[{68+4*j}:{71+4*j}], v{60+k//4} offset:{STG+12288*(k%4)}")
    a(f"v_mov_b32 v{vSt}, v63")
    q = 36
    for i in range(4): a(f"v_mov_b32 v{q+i}, {MARK}")
    a(f"v_add_u32 v61, {STG + 12288 * K0}, v60")
    a(f"v_add_u32 v62, {STG + 12288 * K1}, v60")
    for k in range(4): a(f"ds_write_b128 v61, v[{q}:{q+3}] offset:{12288 * k}")
    a("s_cmp_ge_u32 s47, 4")
    a("s_cbranch_scc1 P2_notab")
    a(f"v_and_b32 v52, 15, v12")
    a(f"v_lshrrev_b32 v53, 4, v12")
    a(f"v_lshrrev_b32 v56, 2, v52")
    a(f"v_cmp_eq_u32 vcc, v56, v53")
    a(f"v_and_b32 v56, 3, v12")
    a(f"v_lshlrev_b32 v56, 4, v56")
    a(f"v_mov_b32 v54, 0xffff")
    a(f"v_mov_b32 v55, 0")
    a(f"v_cndmask_b32 v54, 0, v54, vcc")
    a(f"v_lshlrev_b64 v[54:55], v56, v[54:55]")
    a(f"v_and_b32 v56, 1, v53")
    a(f"v_lshlrev_b32 v56, 3, v56")
    a(f"v_lshl_add_u32 v52, v52, 4, v56")
    a(f"v_lshrrev_b32 v53, 1, v53")
    a(f"v_lshl_add_u32 v52, v53, 8, v52")
    a(f"v_and_b32 v56, 255, v0")
    a(f"v_lshlrev_b32 v53, 2, v56")
    a(f"v_mul_u32_u24 v56, {WSTR}, v56")
    a(f"v_add_u32 v56, {(64 - CAP) << 20}, v56")
    a(f"v_add_u32 v57, {X1}, v56")
    a(f"ds_write_b64 v52, v[54:55] offset:{LUT}")
    a(f"ds_write_b32 v53, v56")
    a(f"ds_write_b32 v53, v57 offset:1024")
    a("P2_notab:")
    lds_count(a, vX, XW + X_I)
    a("s_waitcnt vmcnt(0)")
    publish_a(a, vX, XW, "ac")
    def store_b(j):
        a(f"buffer_store_dwordx4 v[{68+4*j}:{71+4*j}], v{vSt}, s[20:23], 0 offen {o.p1_st}")
        a(f"v_subrev_u32 v{vSt}, 12288, v{vSt}")
    if o.spr: a(f"s_setprio {o.spr}")
    for j in range(13 - NL): store_b(j)
    if o.spr: a("s_setprio 0")
    for k in range(4): a(f"ds_write_b128 v62, v[{q}:{q+3}] offset:{12288 * k}")
    lds_count(a, vX, XW + X_CW + 4)
    a("v_and_b32 v13, 15, v12")
    a("v_lshrrev_b32 v14, 4, v12")
    a(f"v_and_b32 v0, 3, v12")
    a(f"v_lshlrev_b32 v0, 2, v0")
    a(f"v_add_u32 v0, {XW + X_CW}, v0")
    a(f"s_mul_i32 s51, s49, {WSTR}")
    a(f"s_lshr_b32 s86, s51, 1")
    a(f"s_add_u32 s86, s86, {CB}")
    a(f"v_lshl_add_u32 v{bC}, v14, 4, s86")
    a(f"v_mul_u32_u24 v{vCI}, {WSTR}, v12")
    a(f"s_add_u32 s86, s51, {(64 - CAP) << 20}")
    a(f"v_add_u32 v{vCI}, s86, v{vCI}")
    a(f"s_add_u32 s51, s51, {WB}")
    a(f"v_lshl_add_u32 v{bR}, v12, 4, s51")
    a(f"v_and_b32 v{vA}, 12, v12")
    a(f"v_lshl_add_u32 v{bA}, v14, 5, v{vA}")
    a(f"v_bfe_u32 v{vA}, v12, 1, 1")
    a(f"v_lshl_add_u32 v{bA}, v{vA}, 4, v{bA}")
    a(f"v_add_u32 v{bA}, s51, v{bA}")
    a(f"v_and_b32 v{vH}, 1, v12")
    a(f"v_lshlrev_b32 v{vH}, 4, v{vH}")
    a(f"s_mul_i32 s87, s47, {TSZ}")
    a(f"s_add_u32 s87, s87, {SC}")
    a(f"v_mul_u32_u24 v{vTw}, 576, v{vA}")
    a(f"v_lshrrev_b32 v{vA}, 2, v12")
    a(f"v_lshl_add_u32 v{vTw}, v{vA}, 5, v{vTw}")
    a(f"v_add3_u32 v{vTw}, v{vTw}, v{vH}, s87")
    a(f"v_lshl_add_u32 v{vTr}, v12, 3, s87")
    a(f"v_and_b32 v{vL}, 1, v12")
    a(f"v_lshlrev_b32 v{vL}, 3, v{vL}")
    a(f"v_and_b32 v{vA}, 2, v12")
    a(f"v_lshl_add_u32 v{vL}, v{vA}, 7, v{vL}")
    a(f"v_add_lshl_u32 v{vCA}, v12, s49, 2")
    a(f"v_cmp_gt_u32 vcc, s50, v12")
    a(f"s_mov_b32 s85, {(64 - CAP + 33) << 20}")
    a("s_mov_b32 s94, 0")
    a("s_mov_b32 s95, 0xffff0000")
    a(f"v_cndmask_b32 v{vCA}, 2.0, v{vCA}, vcc")
    a(f"s_lshl_b32 s51, s49, 5")
    a("s_and_b32 s40, s46, 31")
    a(f"s_add_u32 s51, s51, s40")
    a(f"s_lshl_b32 s51, s51, 4")
    a(f"v_add_lshl_u32 v15, v13, s51, 5")
    a(f"v_lshl_add_u32 v15, v14, 3, v15")
    a(f"v_lshlrev_b32 v13, 3, v12")
    for i in range(16): a(f"v_mov_b32 v{B0+i}, 0")
    for i in range(68):
        if not 15 - NL <= i // 4 <= 14: a(f"v_mov_b32 v{ACC+i}, 0")
    a("s_lshr_b32 s40, s46, 5")
    a(f"s_mul_i32 s40, s40, {CL * 32}")
    srd(a, 28, 6, CL * 32, "s40")
    srd(a, 12, 8, CL * 32, "s40")
    def lazy(t):
        j = 13 - NL + t
        store_b(j)
        for u in range(4): a(f"v_mov_b32 v{68+4*j+u}, 0")
    lstep = {}
    for t in range(NL):
        i = o.l0 + t * o.lstep // 2
        assert i <= 14 - NL + t
        lstep.setdefault(i, []).append(t)
    if NL:
        a("s_mov_b32 s42, 1")
        P.stamp()
        a(f"v_mov_b32 v{vX+2}, {XW + X_H}")
        a("P2_pre:")
        a(f"ds_read_b32 v{vX}, v0 offset:{X_PW - X_CW}")
        a(f"ds_read_b32 v{vX+1}, v{vX+2}")
        a("s_waitcnt lgkmcnt(0)")
        a(f"v_cmp_eq_u32 vcc, 0, v{vX}")
        a("s_cbranch_vccz P2_round0")
        a(f"v_cmp_eq_u32 vcc, 0, v{vX+1}")
        a("s_cbranch_vccz P2_flush")
        a(f"s_sleep {o.csleep}")
        guard(a)
        a("s_branch P2_pre")
        a("P2_flush:")
        for t in range(NL): lazy(t)
        a("s_mov_b32 s42, 0")
    a("s_waitcnt vmcnt(0)")
    lds_count(a, vX, XW + X_B)
    if not NL: P.stamp()
    def reads1(par, i, second):
        oa = par * X1 + i * WSTR + (128 if second else 0)
        a(f"ds_read_b32 v{vA}, v{bA} offset:{oa}")
    def reads2(par, i, second):
        oc = (par * X1 + i * WSTR + (128 if second else 0)) // 2
        a(f"v_add_u32_dpp v{vE}, v{bE}, v{vL} quad_perm:[0,0,0,0] row_mask:0xf bank_mask:0xf")
        a(f"v_add_u32_dpp v{vE+1}, v{bE}, v{vL} quad_perm:[2,2,2,2] row_mask:0xf bank_mask:0xf")
        a(f"ds_read_b64_tr_b16 v[{vM}:{vM+1}], v{vE} offset:{LUT}")
        a(f"ds_read_b64_tr_b16 v[{vM+2}:{vM+3}], v{vE+1} offset:{LUT}")
        a(f"ds_read_b128 v[{vC}:{vC+3}], v{bC} offset:{oc}")
    def addr():
        a(f"v_lshrrev_b32 v{bE}, 24, v{vA}")
        a(f"v_mad_u32_u24 v{vA}, v{vA}, 32, v{vH}")
    def transpose(g):
        a(f"ds_write_b128 v{vTw}, v[{g}:{g+3}]")
        a(f"ds_read_b64_tr_b16 v[{A2}:{A2+1}], v{vTr}")
        a(f"ds_read_b64_tr_b16 v[{A2+2}:{A2+3}], v{vTr} offset:576")
    def mfma2(i, b):
        c = ACC + 4 * i
        a(f"v_mfma_f32_16x16x32_bf16 v[{c}:{c+3}], v[{A2}:{A2+3}], v[{b}:{b+3}], v[{c}:{c+3}]")
    NS = 17
    for par in range(2):
        a(f"P2_round{par}:")
        def spin():
            a(f"P2_cw{par}:")
            a(f"ds_read_b32 v{vX+1}, v0 offset:{X_PW - X_CW}")
            reads1(par, 0, False)
            a(f"ds_read_b32 v{vX}, v{vCA} offset:{1024*par}")
            a("s_waitcnt lgkmcnt(2)")
            a(f"v_cmp_ge_u32 vcc, s48, v{vX+1}")
            a(f"v_and_b32 v{vX+1}, 0x3fffffff, v{vX+1}")
            a(f"s_cbranch_vccz P2_cg{par}")
            a(f"s_sleep {o.csleep}")
            guard(a)
            a(f"s_branch P2_cw{par}")
            a(f"P2_cg{par}:")
        twait(spin)
        if o.prof == 1:
            a("s_memrealtime s[58:59]")
            a("s_waitcnt lgkmcnt(0)")
            a("s_mov_b32 m0, s48")
            a("v_writelane_b32 v14, s58, m0")
            a("s_add_u32 m0, s48, 16")
            a("v_writelane_b32 v14, s56, m0")
        a(f"v_cmp_lt_u32 vcc, s48, v{vX+1}")
        a(f"s_cbranch_vccz P2_drain{1-par}")
        if o.prof == 1 and par == 0:
            a("s_cmp_lg_u32 s48, 0"); a("s_cbranch_scc1 P2_nostamp"); P.stamp(); a("P2_nostamp:")
        if par: a(f"v_add_u32 v{vX+2}, {X1}, v{vCI}")
        a(f"ds_write_b32 v{vCA}, v{vX+2 if par else vCI} offset:{1024*par}")
        a("s_add_u32 s48, s48, 1")
        for i in range(NS):
            p = (par * NS + i) % 2
            g = G0 + 4 * p; b = B0 + 4 * p
            a("s_waitcnt lgkmcnt(0)")
            if i == NS - 1: a(f"v_or_b32 v{vA}, s84, v{vA}")
            addr()
            a("s_waitcnt vmcnt(1)")
            sk = o.skip and i == 1
            if sk:
                a("s_cmp_lg_u32 s84, 0")
                a(f"s_cbranch_scc1 P2_nt{par}")
            transpose(g)
            if sk: a(f"P2_nt{par}:")
            a(f"buffer_load_dwordx4 v[{g}:{g+3}], v{vA}, s[8:11], 0 offen {o.gfl}")
            if o.skip and i == NS - 1:
                a("s_cmp_lg_u32 s84, 0")
                a(f"s_cbranch_scc1 P2_last{par}")
            reads2(par, i, False)
            if i + 1 < NS: reads1(par, i + 1, False)
            if i == 0: a(f"v_cmp_le_u32 s[90:91], s85, v{vX}")
            if sk: a(f"s_cbranch_scc1 P2_nm{par}")
            a(f"s_waitcnt lgkmcnt({4 if i + 1 < NS else 3})")
            mfma2((i - 2) % NS, b)
            if sk: a(f"P2_nm{par}:")
            a(f"s_bitcmp1_b32 s90, {i}")
            a(f"s_waitcnt lgkmcnt({1 if i + 1 < NS else 0})")
            for u in range(4): a(f"v_and_b32 v{b+u}, v{vM+u}, v{vC+u}")
            a(f"s_cbranch_scc1 P2_slow{par}_{i}")
            a(f"P2_back{par}_{i}:")
            if par == 0 and i in lstep:
                a("s_cmp_lg_u32 s42, 0")
                a(f"s_cbranch_scc1 P2_lazy{i}")
                a(f"P2_lazyb{i}:")
        if par == 0 and NL:
            a("s_cmp_eq_u32 s42, 0")
            a("s_cbranch_scc1 P2_nolz")
            a("s_mov_b32 s42, 0")
            a("s_waitcnt vmcnt(0)")
            lds_count(a, vX, XW + X_B)
            a("P2_nolz:")
        for u in range(4): a(f"v_mov_b32 v{vX+u}, {MARK}")
        for k in range(4):
            if k == 3: a("s_mov_b64 exec, s[92:93]")
            a(f"ds_write_b128 v{bR}, v[{vX}:{vX+3}] offset:{par*X1+1024*k}")
        a("s_mov_b64 exec, 1")
        a(f"v_mov_b32 v{vA}, 1")
        a("s_waitcnt lgkmcnt(0)")
        a(f"ds_add_rtn_u32 v{vA}, v0, v{vA} offset:{4*par}")
        a("s_lshr_b32 s40, s48, 1")
        a("s_mul_i32 s40, s40, 12")
        a("s_waitcnt lgkmcnt(0)")
        a(f"v_readfirstlane_b32 s41, v{vA}")
        a("s_mov_b64 exec, -1")
        a("s_sub_u32 s41, s41, s40")
        a(f"s_setprio {o.cb}")
        a(f"s_cmp_lt_u32 s41, {o.fb0}")
        a(f"s_cbranch_scc1 P2_round{1-par}")
        a(f"s_setprio {o.cb + 1}")
        a(f"s_cmp_lt_u32 s41, {o.fb1}")
        a(f"s_cbranch_scc1 P2_round{1-par}")
        a(f"s_setprio {o.cb + 2}")
        if par: a("s_branch P2_round0")
    for par in range(2 if o.skip else 0):
        a(f"P2_last{par}:")
        a("s_waitcnt lgkmcnt(0)")
        mfma2(NS - 3, B0 + 4 * ((par * NS + NS - 1) % 2))
        a(f"s_branch P2_back{par}_{NS-1}")
    for i in sorted(lstep):
        a(f"P2_lazy{i}:")
        for t in lstep[i]: lazy(t)
        a(f"s_branch P2_lazyb{i}")
    for par in range(2):
        for i in range(NS):
            a(f"P2_slow{par}_{i}:")
            reads1(par, i, True)
            a("s_waitcnt lgkmcnt(0)")
            a("s_mov_b64 exec, s[94:95]")
            a(f"v_mov_b32 v{vA}, {MARK}")
            a("s_mov_b64 exec, -1")
            addr()
            a(f"buffer_load_dwordx4 v[{vX}:{vX+3}], v{vA}, s[8:11], 0 offen")
            reads2(par, i, True)
            if i + 1 < NS: reads1(par, i + 1, False)
            a(f"s_waitcnt lgkmcnt({1 if i + 1 < NS else 0})")
            for u in range(4): a(f"v_and_b32 v{vM+u}, v{vM+u}, v{vC+u}")
            a("s_waitcnt vmcnt(0)")
            transpose(vX)
            a("s_waitcnt lgkmcnt(0)")
            mfma2(i, vM)
            a(f"s_branch P2_back{par}_{i}")
    vLo = 14; vSo = 15; vRb = 12; vWt = 13
    mreg = [0, 2, 4, 6, 8, 10, 16, 18, 20, 22, 24, 26, ACC, ACC + 2, ACC + 4, ACC + 6, ACC + 8]
    NPRE = 12
    def mload(i):
        a(f"buffer_load_dwordx2 v[{mreg[i]}:{mreg[i]+1}], v{vLo}, s[12:15], 0 offen")
        a(f"v_add_u32 v{vLo}, {512*32}, v{vLo}")
    for par in (1, 0):
        a(f"P2_drain{par}:")
        a("s_waitcnt lgkmcnt(0)")
        if par == 1: P.stamp()
        elif o.prof == 1: P.n -= 1; P.stamp()
        if o.prof == 1:
            srd(a, 52, 32, 0x100000, WS_PROF)
            a("s_lshl_b32 s56, s2, 4")
            a("s_add_u32 s56, s56, s3")
            a("s_lshl_b32 s56, s56, 7")
            a("v_lshrrev_b32 v12, 1, v13")
            a("v_add_u32 v12, s56, v12")
            a("s_bfm_b64 exec, 32, 0")
            a("buffer_store_dword v14, v12, s[52:55], 0 offen")
            a("s_mov_b64 exec, -1")
        if o.epr >= 0: a(f"s_setprio {o.epr}")
        a(f"v_mov_b32 v{vLo}, v{vSo}")
        for i in range(NPRE): mload(i)
        a(f"s_mov_b32 s51, {RB_AT[1 - par]}")
        for i in (NS, NS + 1):
            p = (par * NS + i) % 2
            a(f"s_waitcnt vmcnt({NS + 1 - i + NPRE})")
            transpose(G0 + 4 * p)
            a("s_waitcnt lgkmcnt(0)")
            mfma2(i - 2, B0 + 4 * p)
        if par == 1: a("s_branch P2_epi")
    a("P2_epi:")
    WS_ = 32; WR_ = 36; WU = 40; WD = 42; RB = 44; SS = 48; GG = 52; UU = 56; ZZ = 28
    a("s_lshl_b32 s47, s47, 3")
    a("s_add_u32 s47, s47, s44")
    a("s_lshl_b32 s47, s47, 9")
    a("s_add_u32 s51, s51, s47")
    a(f"v_add_u32 v{vRb}, s51, v{vWt}")
    a(f"v_add_u32 v{vWt}, {WT}, v{vWt}")
    lds_wait(a, UU, XW + X_R, 4, "r", 1)
    for k in range(6): a(f"ds_read_b64 v[{WS_+2*k}:{WS_+2*k+1}], v{vWt} offset:{512*k}")
    def rbread(k): a(f"ds_read_b64 v[{RB+2*(k%2)}:{RB+2*(k%2)+1}], v{vRb} offset:{512*k}")
    rbread(0); rbread(1)
    vm = [("m", i) for i in range(NPRE)]
    def mf(d, w, i):
        h = 2 * (i % 2); r = RB + 2 * ((i // 2) % 2)
        a(f"v_mfma_f32_16x16x16_bf16 v[{d}:{d+3}], v[{w+h}:{w+h+1}], v[{r}:{r+1}], 0")
    def pack(i):
        c0 = ACC + 4 * i
        for u in range(2): a(f"v_cvt_pk_bf16_f32 v{c0+u}, v{c0+2*u}, v{c0+2*u+1}")
    def mz(i):
        c0 = ACC + 4 * i
        a(f"v_mfma_f32_16x16x16_bf16 v[{ZZ}:{ZZ+3}], v[{WD}:{WD+1}], v[{c0}:{c0+1}], 0")
    def gate(i):
        c0 = ACC + 4 * i
        for c in (0, 2): a(f"v_pk_mul_f32 v[{c0+c}:{c0+c+1}], v[{SS+c}:{SS+c+1}], v[{ZZ+c}:{ZZ+c+1}]")
        pack(i)
    pack(0)
    a("s_waitcnt lgkmcnt(0)")
    mz(0); mf(SS, WS_, 0); mf(GG, WR_, 0)
    gate(0)
    for i in range(NS):
        c0 = ACC + 4 * i; m = mreg[i]; nx = i + 1 < NS
        if i == NS - 1:
            a("s_cmp_lt_u32 s50, 17")
            a("s_cbranch_scc1 P2_fin")
        a(f"v_mfma_f32_16x16x16_bf16 v[{UU}:{UU+3}], v[{WU}:{WU+1}], v[{c0}:{c0+1}], 0")
        if nx: pack(i + 1)
        lg = f" lgkmcnt({1 if i // 2 + 2 <= 8 else 0})" if nx and i % 2 == 1 else ""
        a(f"s_waitcnt vmcnt({len(vm) - 1 - vm.index(('m', i))})" + lg)
        if nx: mf(SS, WS_, i + 1)
        a(f"v_lshlrev_b32 v{c0}, 16, v{m}")
        a(f"v_and_b32 v{c0+1}, 0xffff0000, v{m}")
        if nx: mz(i + 1)
        a(f"v_lshlrev_b32 v{c0+2}, 16, v{m+1}")
        a(f"v_and_b32 v{c0+3}, 0xffff0000, v{m+1}")
        for c in (0, 2): a(f"v_pk_fma_f32 v[{c0+c}:{c0+c+1}], v[{UU+c}:{UU+c+1}], v[{GG+c}:{GG+c+1}], v[{c0+c}:{c0+c+1}]")
        if nx: mf(GG, WR_, i + 1)
        for u in range(2): a(f"v_cvt_pk_bf16_f32 v{m+u}, v{c0+2*u}, v{c0+2*u+1}")
        a(f"buffer_store_dwordx2 v[{m}:{m+1}], v{vSo}, s[28:31], 0 offen {o.ost}")
        vm.append(("s", i))
        if nx: gate(i + 1)
        a(f"v_add_u32 v{vSo}, {512*32}, v{vSo}")
        if i % 2 == 0 and i // 2 + 2 <= 8: rbread(i // 2 + 2)
        for k in (NPRE + 2 * i, NPRE + 2 * i + 1):
            if k < NS: mload(k); vm.append(("m", k))
    a("P2_fin:")
    if o.prof:
        P.stamp()
        a("s_waitcnt vmcnt(0)")
        P.stamp(True)
        P.dump(32, 0x80000, 34, 3)
    a("P2_end:")
    a("s_endpgm")

KD = """.amdhsa_kernel {name}
  .amdhsa_next_free_vgpr 128
  .amdhsa_next_free_sgpr 100
  .amdhsa_accum_offset 128
  .amdhsa_group_segment_fixed_size 0
  .amdhsa_kernarg_size 112
  .amdhsa_user_sgpr_count 2
  .amdhsa_user_sgpr_kernarg_segment_ptr 1
  .amdhsa_system_sgpr_workgroup_id_x 1
  .amdhsa_float_denorm_mode_32 3
.end_amdhsa_kernel
"""

NAME = "gather_scatter__molecular_angular_gemnet__graph_kernel"

def build(o):
    GUARD[0] = 1000000 if o.maxr else 0
    a = Asm(); P = Prof(a, o.prof, 1)
    xw, stg = gen_p1(o, a, P); gen_p2(o, a, P, xw, stg)
    ref = open("gather_scatter__molecular_angular_gemnet__graph.s.ref").read().split("\n")
    head = [l for l in ref if l.startswith(";") and "launch geometry" not in l and "Harness parses" not in l and "@launch" not in l]
    s = "\n".join(head) + "\n"
    s += """;
"""
    s += f"; @launch grid=(256,1,1) block=(1024,1,1) lds={xw + 64}\n"
    s += '.amdgcn_target "amdgcn-amd-amdhsa--gfx950"\n.text\n'
    s += f".globl {NAME}\n.p2align 8\n.type {NAME},@function\n{NAME}:\n" + a.finish()
    s += '.section .rodata,"a"\n.p2align 6\n' + KD.format(name=NAME)
    return s

def parser():
    p = argparse.ArgumentParser()
    p.add_argument("-S", type=int, default=11)
    for k, d in dict(prof=0, maxr=0, dstep=4, asplit=12, sw=1, psleep=2, csleep=2, gsleep=24, maxpoll=1000000, eprio=0, nd=4, cb=0, epr=-1, bpr=3, burst=1, ppr=3, fb0=6, fb1=10, cs=256, cg=14, ck=0, an0=12, sk=0, nf=2, ng=2, ssleep=1, wsh=50, xp=0, skip=1, l0=9, pfs=14, pfd=2, own=1, swo=50000, swd=0, nornd=0, pp=5, nb=5, sw0=4, pf0=3, pfw=0, pfn=5, ldp=1, spr=2, f0=0, cpf=14, nl=5, lstep=0, fuse=1, cmap=2, rot=0).items():
        p.add_argument("--" + k, type=int, default=d)
    p.add_argument("--p1_ld", default="nt")
    p.add_argument("--p1_st", default="sc1")
    p.add_argument("--ost", default="nt")
    p.add_argument("--gfl", default="")
    p.add_argument("-o", default="gather_scatter__molecular_angular_gemnet__graph.s")
    return p

if __name__ == "__main__":
    o = parser().parse_args()
    open(o.o, "w").write(build(o))
```

```python
import sys, argparse
from asmlib import Asm

E = 800000; T = 12800000
NT = 256
CHA = 25088
TILE_N = 50000
TILE_BYTES = 300032
WS_DESC = 0x5000000
WS_PROF = 0x6000000
CAP = 56
WSTR = CAP * 4
MARK = 0x38100000
NG = 196
RS = 18
RMASK = (0xffffffff << (RS + 6) | (1 << RS) - 1) & 0xffffffff
ROVF = (1 << (RS + 6)) - 1
CL = E // 8
WREG = 9472

GUARD = [0]
def guard(a):
    if GUARD[0]:
        a("s_add_u32 s99, s99, 1")
        a(f"s_cmp_gt_u32 s99, {GUARD[0]}")
        a("s_cbranch_scc1 P2_end")

def slicing(o):
    B = (o.f0 << 26) // 100
    K = ((o.S << 26) - B) // E
    return K, B

def srd(a, d, base, size, off=None):
    if off is None:
        a(f"s_mov_b32 s{d}, s{base}")
        a(f"s_mov_b32 s{d+1}, s{base+1}")
    else:
        a(f"s_add_u32 s{d}, s{base}, {off}")
        a(f"s_addc_u32 s{d+1}, s{base+1}, 0")
    a(f"s_mov_b32 s{d+2}, {size}")
    a(f"s_mov_b32 s{d+3}, 0x20000")

class Prof:
    def __init__(self, a, on, fuse=0): self.a = a; self.on = on; self.n = 0; self.fuse = fuse
    def stamp(self, key=False):
        if not self.on or (self.on == 2 and not key): return
        a = self.a
        a("s_waitcnt lgkmcnt(0)")
        a("s_memtime s[58:59]")
        a("s_waitcnt lgkmcnt(0)")
        a(f"s_mov_b32 s{60+self.n}, s58")
        a("s_memrealtime s[58:59]")
        a("s_waitcnt lgkmcnt(0)")
        a(f"s_mov_b32 s{72+self.n}, s58")
        self.n += 1
    def dump(self, wsreg, region, vt, wave_sreg):
        if not self.on: return
        a = self.a
        srd(a, 52, wsreg, 0x100000, WS_PROF + region)
        a(f"s_lshl_b32 s56, s2, 4")
        a(f"s_add_u32 s56, s56, s{wave_sreg}")
        a(f"s_lshl_b32 s56, s56, 7")
        a("s_mov_b64 exec, 1")
        for i in range(self.n):
            a(f"v_mov_b32 v{vt}, s56")
            a(f"v_mov_b32 v{vt+1}, s{60+i}")
            a(f"buffer_store_dword v{vt+1}, v{vt}, s[52:55], 0 offen offset:{4*i}")
            a(f"v_mov_b32 v{vt+1}, s{72+i}")
            a(f"buffer_store_dword v{vt+1}, v{vt}, s[52:55], 0 offen offset:{64+4*i}")
        a(f"v_mov_b32 v{vt+1}, s71")
        a(f"buffer_store_dword v{vt+1}, v{vt}, s[52:55], 0 offen offset:124")
        a("s_waitcnt vmcnt(0)")
        a("s_mov_b64 exec, -1")

def gen_p1(o, a, P):
    S = o.S
    NK = S * 256
    KSL, BSL = slicing(o)
    CN = 16; SCR = CN + NK * 4; STG = SCR + 64; XW = STG + CHA * 6
    W0 = 4; KP0 = 53; C0 = 78; TO = 103; T0 = 104
    ld = o.p1_ld; st = o.p1_st
    vmq = []
    def issue_out(r):
        b = C0 + 4 * (r % 6)
        a(f"buffer_load_dwordx4 v[{b}:{b+3}], v2, s[12:15], s36 offen {ld}")
        a(f"s_add_u32 s36, s36, {CS * 16384}")
        vmq.append(("o", r))
    def issue_in(r):
        w = W0 + 4 * r
        a(f"buffer_load_dwordx4 v[{w}:{w+3}], v2, s[8:11], s4 offen {ld}")
        a(f"s_add_u32 s4, s4, {CS * 16384}")
        vmq.append(("i", r))
    seq = [("i", r) for r in range(o.sk)]
    for r in range(12):
        seq.append(("o", r))
        if r + o.sk < 12: seq.append(("i", r + o.sk))
    def issue_next(n):
        for _ in range(n):
            if seq:
                k, r = seq.pop(0)
                (issue_in if k == "i" else issue_out)(r)
    def issue_ang(r):
        b = C0 + 2 * r
        a(f"buffer_load_dwordx2 v[{b}:{b+1}], v2, s[16:19], s37 offen {ld}")
        a(f"s_add_u32 s37, s37, {CS * 8192}")
    DP = o.ldp
    CS = o.cs
    a("s_load_dwordx2 s[8:9], s[0:1], 8")
    a("s_load_dwordx2 s[12:13], s[0:1], 16")
    a("s_cmp_ge_u32 s2, 256")
    a("s_cbranch_scc1 P2_end")
    if o.cpf:
        a("s_getpc_b64 s[40:41]")
        a("P1_pc:")
        a("s_lshr_b32 s45, s2, 3")
        a(f"s_mulk_i32 s45, {o.cpf}")
        a(f"s_mov_b32 s42, P2_end-P1_pc")
        a("s_mov_b32 s43, 0x20000")
        a(f"v_add_lshl_u32 v{T0+23}, v0, s45, 7")
        a(f"v_cmp_gt_u32 vcc, {o.cpf}, v0")
        a("s_and_b64 exec, exec, vcc")
        a("s_cbranch_execz P1_nopf")
        a(f"buffer_load_dword v{T0+23}, v{T0+23}, s[40:43], 0 offen")
        a("P1_nopf:")
        a("s_mov_b64 exec, -1")
    a(f"s_mov_b32 s10, {T * 4}")
    a("s_mov_b32 s11, 0x20000")
    a("s_mov_b64 s[14:15], s[10:11]")
    if o.cg < 14:
        assert CS == 256
        a(f"s_lshl_b32 s36, s2, {o.cg}")
    elif CS == 1:
        a(f"s_mul_i32 s36, s2, {12 * 16384}")
    else:
        a(f"s_andn2_b32 s36, s2, {CS - 1}")
        a(f"s_mulk_i32 s36, 11")
        a(f"s_add_u32 s36, s36, s2")
        a(f"s_lshl_b32 s36, s36, 14")
    a("s_lshr_b32 s37, s36, 1")
    a("s_mov_b32 s4, s36")
    a("v_lshlrev_b32 v1, 4, v0")
    if o.cg < 14:
        a(f"v_lshrrev_b32 v2, {o.cg}, v1")
        a(f"v_mul_u32_u24 v2, {255 << o.cg}, v2")
        a("v_add_u32 v2, v2, v1")
    else:
        a("v_mov_b32 v2, v1")
    a("s_waitcnt lgkmcnt(0)")
    P.stamp(True)
    issue_next(o.nf)
    if GUARD[0]: a("s_mov_b32 s99, 0")
    a("s_load_dwordx2 s[16:17], s[0:1], 32")
    a("s_load_dwordx2 s[30:31], s[0:1], 48")
    a("s_load_dwordx2 s[32:33], s[0:1], 104")
    a("s_load_dwordx2 s[94:95], s[0:1], 96")
    a("s_load_dwordx2 s[48:49], s[0:1], 0")
    a("s_load_dwordx2 s[86:87], s[0:1], 88")
    a("v_mov_b32 v3, 1")
    for i in range(4): a(f"v_mov_b32 v{T0+i}, 0")
    a(f"ds_write_b128 v1, v[{T0}:{T0+3}]")
    a(f"v_lshrrev_b32 v{T0+4}, 6, v0")
    a(f"v_readfirstlane_b32 s3, v{T0+4}")
    a(f"s_mul_i32 s34, s2, 848")
    a(f"s_add_u32 s34, s34, {3072*4096}")
    a(f"v_add_u32 v109, s34, v0")
    a(f"v_cmp_gt_u32 vcc, 848, v0")
    a(f"v_lshlrev_b32 v110, 2, v109")
    a(f"v_lshlrev_b32 v109, 1, v109")
    a(f"v_cndmask_b32 v110, 2.0, v110, vcc")
    a(f"v_cndmask_b32 v109, 2.0, v109, vcc")
    a(f"buffer_load_dword v{TO}, v110, s[12:15], 0 offen {ld}")
    a(f"buffer_load_dword v{W0+48}, v110, s[8:11], 0 offen {ld}")
    a(f"s_mov_b32 s18, {T * 2}")
    a("s_mov_b32 s19, 0x20000")
    a("s_waitcnt lgkmcnt(0)")
    a("s_load_dword s35, s[30:31], 0")
    a(f"buffer_load_ushort v{C0+24}, v109, s[16:19], 0 offen {ld}")
    vmq.extend([("t", 0), ("t", 1), ("t", 2)])
    a("s_mov_b32 s38, 0x7c00")
    MG = -(-(1 << 19) // S)
    assert all((n * MG) >> 19 == n // S for n in range(4096))
    a(f"s_mov_b32 s40, {(-(1024*S - 4)) & 0xffffffff}")
    for j in range(4):
        t = T0 + 16 + j
        a(f"v_lshl_add_u32 v{t}, v0, 2, {j}")
        a(f"v_mul_u32_u24 v{T0}, {MG}, v{t}")
        a(f"v_lshrrev_b32 v{T0}, 19, v{T0}")
        a(f"v_lshlrev_b32 v{t}, 10, v{t}")
        a(f"v_mad_i32_i24 v{t}, v{T0}, s40, v{t}")
        a(f"v_add_u32 v{t}, {STG}, v{t}")
    srd(a, 20, 32, NT * NT * S * 4, WS_DESC)
    srd(a, 24, 94, 256)
    a("s_mov_b32 s44, 0")
    a(f"s_mov_b32 s39, {KSL}")
    a(f"v_mov_b32 v{T0+22}, {(BSL - (CL * KSL if o.own == 1 else 0)) & 0xffffffff}")
    a(f"s_mov_b32 s5, {CL}")
    a(f"v_mov_b32 v{T0+20}, 0x7c")
    a(f"v_mov_b32 v{T0+21}, 0x0ff00000")
    a("s_barrier")
    KX = -(-(1 << 28) // (CL // 16))
    assert all(((k * (CL // 16) + d) * KX) >> 28 == (k * (CL // 16) + d) // (CL // 16) for k in range(1, 9) for d in (-1, 0) if k < 8 or d < 0)
    def key(O, W, t):
        x, xb, d, n = t, t + 1, t + 2, t + 3
        a(f"v_and_b32 v{x}, -16, v{O}")
        a(f"v_mul_hi_u32_u24 v{x}, {KX}, v{x}")
        a(f"v_mul_u32_u24 v{xb}, {CL}, v{x}")
        a(f"v_sub_u32 v{d}, v{W}, v{xb}")
        a(f"v_sub_u32 v{O}, v{O}, v{xb}")
        if o.own == 1:
            a(f"v_cmp_gt_u32 s[42:43], s5, v{d}")
            a(f"v_ashrrev_i32 v{n}, 31, v{d}")
            a(f"v_add_u32 v{d}, {8 * CL}, v{d}")
            a(f"v_and_b32 v{n}, {CL}, v{n}")
            a(f"v_add_u32 v{n}, v{n}, v{W}")
            a(f"v_cndmask_b32 v{n}, v{n}, v{d}, s[42:43]")
        elif o.own == 2:
            a(f"v_subrev_u32 v{d}, {CL}, v{d}")
            a(f"v_add_u32 v{n}, {E}, v{d}")
            a(f"v_min_u32 v{n}, v{n}, v{d}")
        else:
            a(f"v_mov_b32 v{n}, v{W}")
        a(f"v_lshlrev_b32 v{xb}, 11, v{O}")
        a(f"v_lshl_or_b32 v{W}, v{O}, 28, v{W}")
        a(f"v_mad_u32_u24 v{n}, v{n}, s39, v{T0+22}")
        a(f"v_lshrrev_b32 v{O}, 2, v{O}")
        a(f"v_bitop3_b32 v{W}, v{xb}, v{T0+21}, v{W} bitop3:0xea")
        a(f"v_and_b32_sdwa v{n}, v{n}, s38 dst_sel:DWORD dst_unused:UNUSED_PAD src0_sel:WORD_1 src1_sel:DWORD")
        a(f"v_lshl_or_b32 v{n}, v{x}, 7, v{n}")
        a(f"v_bitop3_b32 v{O}, v{O}, v{T0+20}, v{n} bitop3:0xea")
    done = [0]
    def wait_for(ops):
        while True:
            need = max(vmq.index(x) for x in ops) + 1 if all(x in vmq for x in ops) else None
            if need is not None and need <= done[0]: return
            idx = [k for k in range(done[0], len(vmq)) if vmq[k][0] != "t"]
            tgt = idx[min(o.ng, len(idx)) - 1] + 1 if idx else len(vmq)
            a(f"s_waitcnt vmcnt({len(vmq) - tgt})")
            n = sum(1 for k in range(done[0], tgt) if vmq[k][0] != "t")
            done[0] = tgt
            issue_next(n)
    for r in range(12):
        wait_for([("o", r), ("i", r)])
        assert all(k != "o" or q < r + 6 for k, q in vmq)
        if r == 2:
            wait_for([("t", 2)])
            key(TO, W0 + 48, T0)
            a(f"v_cndmask_b32 v{KP0+24}, 2.0, v{TO}, vcc")
            a(f"ds_add_u32 v{KP0+24}, v3 offset:{CN}")
        b = C0 + 4 * (r % 6)
        for j in range(4):
            key(b + j, W0 + 4 * r + j, T0 + 4 * j)
            a(f"ds_add_u32 v{b+j}, v3 offset:{CN}")
        a(f"v_lshl_or_b32 v{KP0+2*r}, v{b+1}, 16, v{b}")
        a(f"v_lshl_or_b32 v{KP0+2*r+1}, v{b+3}, 16, v{b+2}")
    a("v_lshrrev_b32 v2, 1, v2")
    a("s_waitcnt lgkmcnt(0)")
    a("s_barrier")
    P.stamp()
    c = T0; x = T0 + 4; tot = T0 + 5; y = T0 + 6
    a(f"s_cmp_ge_u32 s3, {S}")
    a("s_cbranch_scc1 P1_scan1")
    a(f"ds_read_b128 v[{c}:{c+3}], v1 offset:{CN}")
    a("s_waitcnt lgkmcnt(0)")
    a(f"v_add_u32 v{c+1}, v{c}, v{c+1}")
    a(f"v_add_u32 v{c+2}, v{c+1}, v{c+2}")
    a(f"v_add_u32 v{c+3}, v{c+2}, v{c+3}")
    a(f"v_mov_b32 v{x}, v{c+3}")
    for sh in (1, 2, 4, 8):
        a(f"v_add_u32_dpp v{x}, v{x}, v{x} row_shr:{sh} row_mask:0xf bank_mask:0xf bound_ctrl:1")
    a(f"v_add_u32_dpp v{x}, v{x}, v{x} row_bcast:15 row_mask:0xa bank_mask:0xf")
    a(f"v_add_u32_dpp v{x}, v{x}, v{x} row_bcast:31 row_mask:0xc bank_mask:0xf")
    a(f"v_readlane_b32 s40, v{x}, 63")
    a(f"s_lshl_b32 s41, s3, 2")
    a(f"v_mov_b32 v{y}, s41")
    a(f"v_mov_b32 v{y+1}, s40")
    a(f"ds_write_b32 v{y}, v{y+1} offset:{SCR}")
    a("s_waitcnt lgkmcnt(0)")
    a("P1_scan1:")
    a("s_barrier")
    a(f"s_cmp_ge_u32 s3, {S}")
    a("s_cbranch_scc1 P1_scan2")
    a(f"v_and_b32 v{y}, 63, v0")
    a(f"v_lshlrev_b32 v{y+1}, 2, v{y}")
    a(f"ds_read_b32 v{y+2}, v{y+1} offset:{SCR}")
    a(f"v_cmp_gt_u32 s[42:43], s3, v{y}")
    a(f"v_sub_u32 v{x}, v{x}, v{c+3}")
    a("s_waitcnt lgkmcnt(0)")
    a(f"v_cndmask_b32 v{y+2}, 0, v{y+2}, s[42:43]")
    for sh in (1, 2, 4, 8):
        a(f"v_add_u32_dpp v{y+2}, v{y+2}, v{y+2} row_shr:{sh} row_mask:0xf bank_mask:0xf bound_ctrl:1")
    a(f"v_readlane_b32 s40, v{y+2}, 15")
    s0 = T0 + 12
    a(f"v_add_u32 v{s0}, s40, v{x}")
    for j in range(3): a(f"v_add_u32 v{s0+1+j}, v{s0}, v{c+j}")
    a(f"ds_write_b128 v1, v[{s0}:{s0+3}] offset:{CN}")
    a(f"ds_write_b128 v1, v[{s0}:{s0+3}] offset:{STG}")
    a(f"v_mov_b32 v{c}, {STG + NK * 4}")
    a(f"v_mov_b32 v{c+1}, {TILE_N}")
    a(f"ds_write_b32 v{c}, v{c+1}")
    a("s_waitcnt lgkmcnt(0)")
    a("P1_scan2:")
    a("s_barrier")
    a(f"s_cmp_ge_u32 s3, {S}")
    a("s_cbranch_scc1 P1_nodesc")
    for j in range(4):
        a(f"ds_read2_b32 v[{T0+2*j}:{T0+2*j+1}], v{T0+16+j} offset0:0 offset1:1")
    a(f"s_mul_i32 s40, s2, {256*S*4}")
    lds_count(a, T0 + 8, 4)
    for j in range(4): a(f"v_lshl_or_b32 v{T0+12+j}, v{T0+2*j+1}, 16, v{T0+2*j}")
    a(f"buffer_store_dwordx4 v[{T0+12}:{T0+15}], v1, s[20:23], s40 offen {st}")
    a("P1_nodesc:")
    a(f"s_mul_i32 s40, s3, {WREG - 1024}")
    a(f"s_add_u32 s40, s40, {9*1024}")
    a(f"v_add_u32 v{TO}, s40, v1")
    srd(a, 8, 48, E * 32)
    a(f"s_mul_i32 s41, s2, {o.pfn * 64}")
    a(f"s_sub_u32 s41, s41, {o.pfw * 64}")
    a("v_add_lshl_u32 v1, v0, s41, 7")
    if o.pp & 1: a("s_setprio 3")
    def atomics(n):
        t = T0 + 4 * (n % 2)
        if n == 12:
            a(f"ds_add_rtn_u32 v{t}, v{KP0+24}, v3 offset:{CN}"); return 1
        for j in range(4):
            kp = KP0 + 2 * n + j // 2
            if j % 2 == 0: a(f"v_and_b32 v{t+j}, 0xffff, v{kp}")
            else: a(f"v_lshrrev_b32 v{t+j}, 16, v{kp}")
            a(f"ds_add_rtn_u32 v{t+j}, v{t+j}, v3 offset:{CN}")
        return 4
    a(f"s_cmp_ge_u32 s3, {o.asplit}")
    a("s_cbranch_scc1 P1_ang1")
    for n in range(o.an0): issue_ang(n)
    a("P1_ang1:")
    atomics(0)
    for n in range(13):
        k = atomics(n + 1) if n < 12 else 0
        if o.an0 + n < 12:
            a(f"s_cmp_ge_u32 s3, {o.asplit}")
            a(f"s_cbranch_scc1 P1_an{n}")
            issue_ang(o.an0 + n)
            a(f"P1_an{n}:")
        a(f"s_waitcnt lgkmcnt({k})")
        t = T0 + 4 * (n % 2); u = T0 + 8
        if n < 12:
            a(f"v_lshl_or_b32 v{KP0+2*n}, v{t+1}, 16, v{t}")
            a(f"v_lshl_or_b32 v{KP0+2*n+1}, v{t+3}, 16, v{t+2}")
        else:
            a(f"v_mov_b32 v{u}, 0xffff")
            a(f"v_cndmask_b32 v{KP0+24}, v{u}, v{t}, vcc")
    a(f"s_cmp_lt_u32 s3, {o.asplit}")
    a("s_cbranch_scc1 P1_ang2")
    for n in range(12): issue_ang(n)
    a("P1_ang2:")
    a("s_lshl_b32 s35, s35, 16")
    a("s_cmp_eq_u32 s35, 1.0")
    a("s_cbranch_scc1 P1_f1")
    a("s_waitcnt vmcnt(0)")
    for n in range(25):
        cr = C0 + n; t = T0
        a(f"v_lshlrev_b32 v{t}, 16, v{cr}")
        a(f"v_and_b32 v{t+1}, 0xffff0000, v{cr}")
        a(f"v_mul_f32 v{t}, s35, v{t}")
        a(f"v_mul_f32 v{t+1}, s35, v{t+1}")
        a(f"v_cvt_pk_bf16_f32 v{cr}, v{t}, v{t+1}")
    a("P1_f1:")
    lds_wait(a, T0, 4, S, "q", 0)
    def addrs(n, h, u, base):
        a(f"v_mad_u32_u16 v{u}, v{KP0+n}, 6, {base}" + (" op_sel:[1,0,0,0]" if h else ""))
        a(f"v_and_b32 v{u+1}, 2, v{u}")
        a(f"v_sub_u32 v{u}, v{u}, v{u+1}")
        a(f"v_sub_u32 v{u+1}, v{u}, v{u+1}")
    for n in range(25):
        cr = C0 + n; t = T0 + 6 * (n % 2)
        if o.pp & 1 and n in (0, 9, 17): a(f"s_setprio {2 - n // 8}")
        if o.pf0 == 3:
            if n == 0: a("s_waitcnt vmcnt(0)")
            for w in range(o.pfn):
                if o.pfs + (w * o.pfd) // 2 == n:
                    a(f"s_cmp_lg_u32 s3, {o.pfw + w}")
                    a(f"s_cbranch_scc1 P1_npf{w}")
                    a("buffer_load_dword v1, v1, s[8:11], 0 offen")
                    a(f"P1_npf{w}:")
        elif n % 2 == 0 and n < 24: a(f"s_waitcnt vmcnt({11 - n // 2})")
        if n == 0:
            a(f"s_cmp_ge_u32 s3, {S}")
            a("s_cbranch_scc1 P1_noe")
            a("s_waitcnt vmcnt(0)")
            lds_ticket(a, 2, 8)
            a(f"s_cmp_lg_u32 s40, {S-1}")
            a("s_cbranch_scc1 P1_noe")
            arrive(a, 2, LV_E)
            a("s_mov_b32 s44, 1")
            a("P1_noe:")
        if n == 14:
            a("s_cmp_eq_u32 s44, 0")
            a("s_cbranch_scc1 P2_norele")
            release(a, 2, LV_E, "e")
        a(f"v_lshlrev_b32 v{t}, 16, v{cr}")
        a(f"v_and_b32 v{t+1}, 0xffff0000, v{cr}")
        a(f"v_mul_f32 v{t}, 0.15915494, v{t}")
        a(f"v_mul_f32 v{t+1}, 0.15915494, v{t+1}")
        a(f"v_fract_f32 v{t}, v{t}")
        a(f"v_fract_f32 v{t+1}, v{t+1}")
        a(f"v_cos_f32 v{t}, v{t}")
        a(f"v_cos_f32 v{t+1}, v{t+1}")
        for h in range(2 if n < 24 else 1):
            u = t + 2 + 2 * h
            addrs(n, h, u, 0)
            a(f"ds_write_b32 v{u}, v{W0+2*n+h} offset:{STG}")
        a(f"v_cvt_pk_bf16_f32 v{cr}, v{t}, v{t+1}")
        a(f"ds_write_b16 v{t+3}, v{cr} offset:{STG+8}")
        if n < 24: a(f"ds_write_b16_d16_hi v{t+5}, v{cr} offset:{STG+8}")
    a(f"s_mul_i32 s40, s2, {TILE_BYTES}")
    srd(a, 20, 32, CHA * 6, "s40")
    a(f"v_subrev_u32 v2, {9*1024}, v{TO}")
    a("s_mov_b32 s44, 0")
    if o.pf0 == 2:
        a(f"s_sub_u32 s40, s3, {o.pfw}")
        a(f"s_cmp_ge_u32 s40, {o.pfn}")
        a("s_cbranch_scc1 P1_nopf0")
        a("buffer_load_dword v1, v1, s[8:11], 0 offen")
        a("P1_nopf0:")
    a("s_waitcnt lgkmcnt(0)")
    a("s_barrier")
    P.stamp()
    a(f"s_cmp_lg_u32 s3, 15")
    a("s_cbranch_scc1 P1_noclr")
    a(f"v_and_b32 v3, 15, v0")
    a(f"v_lshlrev_b32 v3, 2, v3")
    a(f"v_add_u32 v3, {XW}, v3")
    a(f"v_mov_b32 v{T0}, 0")
    a(f"ds_write_b32 v3, v{T0}")
    a("P1_noclr:")
    def rd(k):
        t = T0 + 4 * (k % 6)
        a(f"ds_read_b128 v[{t}:{t+3}], v2 offset:{STG + 1024 * (9 - k)}")
    def store(k):
        t = T0 + 4 * (k % 6)
        if k == 0: a("s_mov_b64 exec, 0xffff")
        a(f"buffer_store_dwordx4 v[{t}:{t+3}], v{TO}, s[20:23], 0 offen {st}")
        if k == 0: a("s_mov_b64 exec, -1")
        a(f"v_subrev_u32 v{TO}, 1024, v{TO}")
    NB = o.nb
    for k in range(6): rd(k)
    for k in range(NB):
        a(f"s_waitcnt lgkmcnt({min(5, 9-k)})")
        store(k)
        if k + 6 < 10: rd(k + 6)
    a(f"s_waitcnt vmcnt({NB}) lgkmcnt(0)")
    a(f"s_cmp_ge_u32 s3, {o.nd}")
    a("s_cbranch_scc1 P1_nod")
    for k in range(NB, 10): store(k)
    a("s_waitcnt vmcnt(0)")
    lds_ticket(a, T0, 0)
    a(f"s_cmp_lg_u32 s40, {o.nd-1}")
    a("s_cbranch_scc1 P1_nod")
    arrive(a, T0, LV_D)
    a("s_mov_b32 s44, 1")
    a("P1_nod:")
    a(f"s_mov_b32 s45, {(-CHA*6) & 0xffffffff}")
    a("s_barrier")
    P.stamp()
    nnow = NB
    for n in range(25):
        if o.pp & 2 and n in (0, 9, 17): a(f"s_setprio {2 - n // 8}")
        if o.pp & 4 and n in (0, 9, 17):
            if n == 0: a("s_setprio 3")
            a("s_cmp_lt_u32 s3, 4")
            a(f"s_cbranch_scc1 P1_pr{n}")
            a(f"s_setprio {2 - n // 8}")
            a(f"P1_pr{n}:")
        if n == 1:
            a("s_cmp_eq_u32 s44, 0")
            a("s_cbranch_scc1 P2_noreld")
            release(a, T0, LV_D, "d")
        if n % o.dstep == 1 and nnow < 10:
            a(f"s_cmp_lt_u32 s3, {o.nd}")
            a(f"s_cbranch_scc1 P1_ns{n}")
            store(nnow); nnow += 1
            a(f"P1_ns{n}:")
        for h in range(2 if n < 24 else 1):
            u = 2 * h
            addrs(n, h, u, "s45")
            a(f"ds_write_b32 v{u}, v{W0+2*n+h} offset:{STG}")
            a(f"ds_write_b16{'_d16_hi' if h else ''} v{u+1}, v{C0+n} offset:{STG+8}")
    assert nnow == 10
    lds_count(a, 4, XW + X_S)
    a(f"s_mul_i32 s40, s2, {TILE_BYTES}")
    a(f"s_add_u32 s40, s40, {CHA*6}")
    srd(a, 20, 32, (TILE_N - CHA) * 6, "s40")
    return XW, STG

LV_A, LV_B, LV_D, LV_E = 0, 1, 2, 3
X_A, X_S, X_X, X_I, X_B, X_R, X_C, X_H, X_CW, X_PW = 0, 4, 8, 12, 16, 20, 24, 28, 32, 48

def arrive(a, t, level):
    a(f"v_mov_b32 v{t}, 0")
    a(f"v_mov_b32 v{t+1}, 1")
    a("s_mov_b64 exec, 1")
    a(f"buffer_atomic_add v{t+1}, v{t}, s[24:27], 0 offen offset:{32*level} sc0 sc1")
    a("s_mov_b64 exec, -1")

def release(a, t, level, tag):
    a("s_waitcnt vmcnt(0)")
    a(f"v_readfirstlane_b32 s40, v{t+1}")
    a("s_cmp_lg_u32 s40, 255")
    a(f"s_cbranch_scc1 P2_norel{tag}")
    a("s_mov_b64 exec, 1")
    a(f"buffer_store_dword v{t+1}, v{t}, s[24:27], 0 offen offset:{128+4*level} sc1")
    a("s_mov_b64 exec, -1")
    a(f"P2_norel{tag}:")

def lds_count(a, t, word):
    a(f"v_mov_b32 v{t}, {word}")
    a(f"v_mov_b32 v{t+1}, 1")
    a("s_mov_b64 exec, 1")
    a("s_waitcnt lgkmcnt(0)")
    a(f"ds_add_u32 v{t}, v{t+1}")
    a("s_mov_b64 exec, -1")

def lds_wait(a, t, word, n, tag, sleep):
    a(f"v_mov_b32 v{t}, {word}")
    a(f"P2_lw{tag}:")
    a(f"ds_read_b32 v{t+1}, v{t}")
    a("s_waitcnt lgkmcnt(0)")
    a(f"v_readfirstlane_b32 s40, v{t+1}")
    a(f"s_cmp_ge_u32 s40, {n}")
    a(f"s_cbranch_scc1 P2_lg{tag}")
    if sleep: a(f"s_sleep {sleep}")
    guard(a)
    a(f"s_branch P2_lw{tag}")
    a(f"P2_lg{tag}:")

def lds_ticket(a, t, word):
    a(f"v_mov_b32 v{t}, {word}")
    a(f"v_mov_b32 v{t+1}, 1")
    a("s_mov_b64 exec, 1")
    a(f"ds_add_rtn_u32 v{t+1}, v{t}, v{t+1}")
    a("s_mov_b64 exec, -1")
    a("s_waitcnt lgkmcnt(0)")
    a(f"v_readfirstlane_b32 s40, v{t+1}")

def publish_a(a, t, XW, tag):
    lds_ticket(a, t, XW + X_A)
    a("s_cmp_lg_u32 s40, 15")
    a(f"s_cbranch_scc1 P2_norel{tag}")
    arrive(a, t, LV_A)
    release(a, t, LV_A, tag)

def gen_p2(o, a, P, XW, STG):
    S = o.S
    uid = [0]
    LUT = 2048; CB = 2560; WSZ = NG * WSTR
    RBSZ = 100 * 512
    X1 = RBSZ + 32
    WT = CB + WSZ // 2 + 16
    WB = CB + X1 // 2 + WSZ // 2 + 16
    RB_AT = (WB, WB + WSZ + 32)
    K0 = (WB - STG) // 12288; K1 = (WB + X1 - STG) // 12288
    assert STG + 12288 * (K0 + 4) >= WB + WSZ + 32 and STG + 12288 * K1 >= WB + WSZ + 32 and STG + 12288 * (K1 + 4) >= WB + X1 + WSZ + 64
    SC = STG + 12288 * (K1 + 4); TSZ = 1088
    assert WT + 3072 <= CB + X1 // 2 and WB < 65536 and SC + 12 * TSZ <= XW and WB % 16 == 0 and X1 % 32 == 0
    perm = [int(c) for c in o.xt]
    assert sorted(perm) == list(range(8))
    a("s_and_b32 s46, s2, 7")
    a("s_lshl_b32 s46, s46, 2")
    a(f"s_lshr_b32 s46, {sum(p << (4 * k) for k, p in enumerate(perm))}, s46")
    a("s_and_b32 s46, s46, 7")
    a("s_lshl_b32 s46, s46, 5")
    a("s_lshr_b32 s47, s2, 3")
    a("s_add_u32 s46, s46, s47")
    a("v_mbcnt_lo_u32_b32 v12, -1, 0")
    a("v_mbcnt_hi_u32_b32 v12, -1, v12")
    a("s_lshl_b32 s40, s3, 6")
    a("v_add_u32 v0, s40, v12")
    srd(a, 8, 48, E * 32)
    srd(a, 12, 32, NT * TILE_BYTES)
    srd(a, 16, 32, NT * NT * S * 4, WS_DESC)
    a("s_mov_b64 s[6:7], s[86:87]")
    if o.prof: a("s_mov_b32 s71, 0")
    a("s_mov_b32 s48, 0")
    a("s_cmp_ge_u32 s3, 4")
    a("s_cbranch_scc1 P2_consumer")
    def twait(body):
        if o.prof == 1:
            a("s_waitcnt lgkmcnt(0)")
            a("s_memtime s[56:57]")
            a("s_waitcnt lgkmcnt(0)")
        body()
        if o.prof == 1:
            a("s_memtime s[58:59]")
            a("s_waitcnt lgkmcnt(0)")
            a("s_sub_u32 s56, s58, s56")
            a("s_add_u32 s71, s71, s56")
    D0 = 40; R0 = 64
    vU12 = 1; vTile = 2; vInc = 3; v3FC = 4; vCb = 5; vZ = 6; v2U2 = 7; v2U1 = 8; vSg = 9
    n2c = 10; a0c = 11; n2n = 13; a0n = 14
    vca = 16; vcb = 17; vra = 18; vrb = 19; vwa = 20; vwb = 21; vha = 22; vhb = 23; vt = 24; vt2 = 25; vPW = 26; vS = 28
    ODDC = 52; MORC = 54; ODDN = 84; MORN = 86; ROW0 = 82; M0_ = 88; M1_ = 90
    KSL, BSL = slicing(o)
    L0 = -(-(1 << 26) // KSL) // 4 + 1
    def warm(sl, part):
        nt = -(-L0 // 512); n0 = nt * o.wsh // 100; n1 = nt - n0
        uid[0] += 1
        a(f"s_mul_i32 s40, {sl}, {L0 - 1}")
        a(f"s_lshr_b32 s41, s2, 1")
        a(f"s_lshl_b32 s41, s41, 2")
        a(f"s_add_u32 s41, s41, {part}")
        a(f"s_mul_i32 s41, s41, {nt}")
        a(f"s_add_u32 s40, s40, s41")
        a(f"s_add_u32 s40, s40, {(o.swo // 4 - BSL // KSL // 4) & 0xffffffff}")
        a("s_bitcmp1_b32 s2, 0")
        a(f"s_cselect_b32 s41, {n0}, 0")
        a(f"s_add_u32 s40, s40, s41")
        a(f"s_cmp_ge_u32 s40, {E // 4}")
        a(f"s_cbranch_scc1 P2_we{uid[0]}")
        a(f"s_min_u32 s40, s40, {E // 4 - n1}")
        a(f"s_lshl_b32 s40, s40, 7")
        a(f"s_add_u32 s36, s8, s40")
        a(f"s_addc_u32 s37, s9, 0")
        for j in range(n1):
            if j == n0:
                a("s_bitcmp0_b32 s2, 0")
                a(f"s_cbranch_scc1 P2_we{uid[0]}")
            a(f"s_load_dwordx2 s[38:39], s[36:37], {128*j+60}")
        a(f"P2_we{uid[0]}:")
    def poll(level, tag, meanwhile=None):
        a("s_mov_b32 s51, 0")
        a(f"P2_poll{tag}:")
        a(f"buffer_load_dword v{vt}, v{vZ}, s[24:27], 0 offen offset:{128+4*level} sc1")
        a("s_add_u32 s51, s51, 1")
        a(f"s_cmp_gt_u32 s51, {o.maxpoll}")
        a("s_cbranch_scc1 P2_giveup")
        if meanwhile: a(f"s_call_b64 s[34:35], {meanwhile}")
        a("s_waitcnt vmcnt(0)")
        a(f"v_cmp_eq_u32 vcc, 0, v{vt}")
        a(f"s_cbranch_vccz P2_polled{tag}")
        a(f"s_sleep {o.gsleep}")
        a(f"s_branch P2_poll{tag}")
        a(f"P2_polled{tag}:")
    def ensure():
        uid[0] += 1; u = uid[0]
        a(f"v_cmp_lt_u32 vcc, s45, v{D0}")
        a(f"s_cbranch_vccz P2_have{u}")
        a("s_call_b64 s[42:43], P2_ensure")
        a(f"P2_have{u}:")
    def prep():
        ensure()
        a(f"v_bfe_u32 v{vt}, v{D0}, 1, 15")
        a(f"v_mad_u32_u24 v{a0n}, v{vt}, 12, v{vTile}")
        a(f"v_lshrrev_b32 v{n2n}, 16, v{D0}")
        a(f"v_and_b32 v{vt}, 0xfffe, v{D0}")
        a(f"v_sub_u32 v{n2n}, v{n2n}, v{vt}")
        a(f"v_and_b32 v{vt}, 1, v{D0}")
        a(f"v_cmp_eq_u32 s[{ODDN}:{ODDN+1}], 1, v{vt}")
        a(f"v_cmp_lt_u32 s[{MORN}:{MORN+1}], 32, v{n2n}")
        for k in range(S): a(f"v_mov_b32 v{D0+k}, v{D0+k+1}")
    def issue(i):
        t = (vt, vca)[i % 2]
        a(f"v_add_u32_dpp v{t}, v{a0n}, v{vU12} row_newbcast:{i} row_mask:0xf bank_mask:0xf")
        a(f"v_sub_u32_dpp v{t+1}, v{n2n}, v{v2U1} row_newbcast:{i} row_mask:0xf bank_mask:0xf")
        a(f"v_bitop3_b32 v{t}, v{t+1}, v{vSg}, v{t} bitop3:0xea")
        r = R0 + 4 * i
        a(f"buffer_load_dwordx3 v[{r}:{r+2}], v{t}, s[12:15], 0 offen sc1")
    def unhold():
        a("s_lshl_b32 s40, 1, s3")
        a(f"v_mov_b32 v{vt}, {XW + X_H}")
        a(f"v_mov_b32 v{vt2}, s40")
        a("s_mov_b64 exec, 1")
        a(f"ds_or_b32 v{vt}, v{vt2}")
        a("s_mov_b64 exec, -1")
    def pubb2():
        a("s_cmp_lg_u32 s48, 3")
        a("s_cbranch_scc1 P2_next1")
        a("s_call_b64 s[96:97], P2_pubb")
        a("P2_next1:")
    def warm_step():
        if o.sw:
            a(f"s_sub_u32 s4, s49, {o.swd}")
            a(f"s_cmp_lt_u32 s4, {o.sw0}")
            a("s_cbranch_scc1 P2_nowarm")
            a(f"s_cmp_ge_u32 s4, {-(-(E - o.swo) // (4 * (L0 - 1)))}")
            a("s_cbranch_scc1 P2_nowarm")
            warm("s4", "s3")
            a("P2_nowarm:")
    def next_round(regular):
        a("s_call_b64 s[42:43], P2_next")
        if regular:
            ensure()
            warm_step()
        a("s_call_b64 s[42:43], P2_wait")
    def wait_buffer(tag):
        a("s_add_u32 s50, s48, 1")
        a("s_lshr_b32 s50, s50, 1")
        a("s_mul_i32 s50, s50, 12")
        a("s_and_b32 s51, s48, 1")
        a("s_lshl_b32 s51, s51, 2")
        a(f"s_add_u32 s51, s51, {XW + X_CW}")
        a(f"v_mov_b32 v{vt2}, s51")
        a(f"P2_pw{tag}:")
        a(f"ds_read_b32 v{vt}, v{vt2}")
        a("s_waitcnt lgkmcnt(0)")
        a(f"v_readfirstlane_b32 s51, v{vt}")
        a("s_cmp_ge_u32 s51, s50")
        a(f"s_cbranch_scc1 P2_pg{tag}")
        a(f"s_sleep {o.psleep}")
        guard(a)
        a(f"s_branch P2_pw{tag}")
        a(f"P2_pg{tag}:")
    a("s_setprio 3")
    a("s_waitcnt vmcnt(0)")
    publish_a(a, vt, XW, "ap")
    a(f"s_lshl_b32 s47, s3, 6")
    a(f"v_add_u32 v{vTile}, s47, v12")
    a(f"s_lshl_b32 s50, s3, 2")
    a(f"s_add_u32 s50, s50, {XW + X_PW}")
    a(f"v_mov_b32 v{vPW}, s50")
    a(f"v_lshlrev_b32 v15, 8, v{vTile}")
    a(f"v_add_u32 v15, s46, v15")
    a(f"v_mul_u32_u24 v15, {4*S}, v15")
    a(f"v_mov_b32 v{D0+S}, 0")
    a(f"v_mul_u32_u24 v{vTile}, {TILE_BYTES}, v{vTile}")
    a(f"v_and_b32 v{vt}, 15, v12")
    a(f"v_mul_u32_u24 v{vU12}, 12, v{vt}")
    a(f"v_lshl_add_u32 v{v2U1}, v{vt}, 1, 1")
    a(f"v_add_u32 v{v2U2}, 1, v{v2U1}")
    a(f"v_mov_b32 v{vInc}, {(1 << RS) + 4}")
    a(f"v_mov_b32 v{v3FC}, 0x3fc")
    a(f"v_mov_b32 v{vSg}, 0x80000000")
    for r in (vCb, vZ, vra, vrb, vS, vS + 1): a(f"v_mov_b32 v{r}, 0")
    a("s_mov_b32 s49, 0")
    a(f"s_mov_b32 s5, {ROVF}")
    a(f"s_mov_b32 s{ROW0}, 0x00010001")
    a(f"s_mov_b32 s{ROW0+1}, 0x00010001")
    a(f"s_mov_b32 s45, {((o.nd * WREG // 12 * 2) << 16) | 0xffff}")
    nsave = P.n
    P.stamp()
    poll(LV_E, "e")
    k = 0
    while k < S:
        w = 4 if S - k >= 4 else (2 if S - k >= 2 else 1)
        sfx = {4: "x4", 2: "x2", 1: ""}[w]
        dst = f"v[{D0+k}:{D0+k+w-1}]" if w > 1 else f"v{D0+k}"
        a(f"buffer_load_dword{sfx} {dst}, v15, s[16:19], 0 offen offset:{4*k} sc1")
        k += w
    poll(LV_D, "d")
    P.stamp()
    prep()
    for i in range(16): issue(i)
    P.stamp()
    def masks(i):
        a(f"v_sub_co_u32_dpp v{vt}, vcc, v{n2c}, v{v2U1} row_newbcast:{i} row_mask:0xf bank_mask:0xf")
        a(f"s_and_b64 s[92:93], s[{ODDC}:{ODDC+1}], s[{ROW0}:{ROW0+1}]")
        a(f"s_nor_b64 s[{M0_}:{M0_+1}], vcc, s[92:93]")
        a(f"v_sub_co_u32_dpp v{vt2}, vcc, v{n2c}, v{v2U2} row_newbcast:{i} row_mask:0xf bank_mask:0xf")
        a(f"s_lshr_b64 s[{ODDC}:{ODDC+1}], s[{ODDC}:{ODDC+1}], 1")
        a(f"s_not_b64 s[{M1_}:{M1_+1}], vcc")
    def place(tg, i):
        r = R0 + 4 * i
        a(f"P2_retry{tg}{i}:")
        a(f"v_lshrrev_b32 v{vca}, 18, v{r}")
        a(f"v_lshrrev_b32 v{vcb}, 18, v{r+1}")
        a(f"v_bitop3_b32 v{vca}, v{vca}, v{v3FC}, v{vCb} bitop3:0xea")
        a(f"v_bitop3_b32 v{vcb}, v{vcb}, v{v3FC}, v{vCb} bitop3:0xea")
        a(f"s_mov_b64 exec, s[{M0_}:{M0_+1}]")
        a(f"ds_add_rtn_u32 v{vra}, v{vca}, v{vInc}")
        a(f"s_mov_b64 exec, s[{M1_}:{M1_+1}]")
        a(f"ds_add_rtn_u32 v{vrb}, v{vcb}, v{vInc}")
        a(f"s_mov_b64 exec, -1")
        a(f"v_and_b32 v{vwa}, 0xf00fffff, v{r}")
        a(f"v_and_b32 v{vwb}, 0xf00fffff, v{r+1}")
        a("s_waitcnt lgkmcnt(0)")
        a(f"v_and_b32 v{vra}, {RMASK}, v{vra}")
        a(f"v_and_b32 v{vrb}, {RMASK}, v{vrb}")
        a(f"v_lshrrev_b32 v{vha}, 1, v{vra}")
        a(f"v_lshrrev_b32 v{vhb}, 1, v{vrb}")
        a(f"v_or_b32 v{vt}, v{vra}, v{vrb}")
        a(f"v_cmp_lt_u32 vcc, {ROVF}, v{vt}")
        a(f"s_mov_b64 exec, s[{M0_}:{M0_+1}]")
        a(f"ds_write_b32 v{vra}, v{vwa} offset:{WB}")
        a(f"ds_write_b16 v{vha}, v{r+2} offset:{CB}")
        a(f"s_mov_b64 exec, s[{M1_}:{M1_+1}]")
        a(f"ds_write_b32 v{vrb}, v{vwb} offset:{WB}")
        a(f"ds_write_b16_d16_hi v{vhb}, v{r+2} offset:{CB}")
        a(f"s_mov_b64 exec, -1")
        a(f"s_cbranch_vccnz P2_stall{tg}{i}")
        a(f"s_and_b64 s[92:93], s[{MORC}:{MORC+1}], s[{ROW0}:{ROW0+1}]")
        a(f"s_cbranch_scc1 P2_more{tg}{i}")
    def take_next():
        a(f"v_mov_b32 v{n2c}, v{n2n}")
        a(f"v_mov_b32 v{a0c}, v{a0n}")
        a(f"s_mov_b64 s[{ODDC}:{ODDC+1}], s[{ODDN}:{ODDN+1}]")
        a(f"s_mov_b64 s[{MORC}:{MORC+1}], s[{MORN}:{MORN+1}]")
    assert S <= 12
    CA = [R0 + 4 * i + 3 for i in range(16)]; CBr = list(range(30, 40)) + list(range(53, 59))
    vMk = 59; vOob = 60; vAcc = 61
    a(f"v_mov_b32 v{vMk}, {RMASK}")
    a(f"v_mov_b32 v{vOob}, {1 << 19}")
    def first_only(tag, body):
        a("s_cmp_lg_u32 s49, 0"); a(f"s_cbranch_scc1 P2_nf{tag}"); body(); a(f"P2_nf{tag}:")
    a("P2_pslice:")
    if o.qpr != 3: a(f"s_setprio {o.qpr}")
    take_next()
    a(f"v_mov_b32 v{vAcc}, 0")
    for i in range(16):
        r = R0 + 4 * i
        a(f"v_sub_co_u32_dpp v{vt}, vcc, v{n2c}, v{v2U1} row_newbcast:{i} row_mask:0xf bank_mask:0xf")
        a(f"s_and_b64 s[92:93], s[{ODDC}:{ODDC+1}], s[{ROW0}:{ROW0+1}]")
        a(f"s_or_b64 s[{M0_}:{M0_+1}], vcc, s[92:93]")
        a(f"v_sub_co_u32_dpp v{vt2}, vcc, v{n2c}, v{v2U2} row_newbcast:{i} row_mask:0xf bank_mask:0xf")
        a(f"s_lshr_b64 s[{ODDC}:{ODDC+1}], s[{ODDC}:{ODDC+1}], 1")
        a(f"s_waitcnt vmcnt({15 - i})")
        a(f"v_lshrrev_b32 v{vca}, 18, v{r}")
        a(f"v_lshrrev_b32 v{vcb}, 18, v{r+1}")
        a(f"v_bitop3_b32 v{vca}, v{vca}, v{v3FC}, v{vCb} bitop3:0xea")
        a(f"v_bitop3_b32 v{vcb}, v{vcb}, v{v3FC}, v{vCb} bitop3:0xea")
        a(f"v_cndmask_b32 v{CA[i]}, v{vca}, v{vOob}, s[{M0_}:{M0_+1}]")
        a(f"v_cndmask_b32 v{CBr[i]}, v{vcb}, v{vOob}, vcc")
    if o.qpr != 3: a("s_setprio 3")
    if o.wlate: warm_step()
    def w0():
        lds_wait(a, vt, XW + X_I, 12, "i", 1)
        P.stamp()
    first_only("i", w0)
    a("s_call_b64 s[42:43], P2_wait")
    if o.unb:
        if o.fpr != 3: a(f"s_setprio {o.fpr}")
        for i in range(16):
            t = 16; r = R0 + 4 * i
            a(f"ds_add_rtn_u32 v{t}, v{CA[i]}, v{vInc}")
            a(f"ds_add_rtn_u32 v{t+1}, v{CBr[i]}, v{vInc}")
            a(f"v_and_b32 v24, 0xf00fffff, v{r}")
            a(f"v_and_b32 v25, 0xf00fffff, v{r+1}")
            a("s_waitcnt lgkmcnt(0)")
            a(f"v_bitop3_b32 v{CA[i]}, v{vMk}, v{t}, v{CA[i]} bitop3:0xca")
            a(f"v_bitop3_b32 v{CBr[i]}, v{vMk}, v{t+1}, v{CBr[i]} bitop3:0xca")
            a(f"v_lshrrev_b32 v27, 1, v{CA[i]}")
            a(f"v_lshrrev_b32 v15, 1, v{CBr[i]}")
            a(f"ds_write_b32 v{CA[i]}, v24 offset:{WB}")
            a(f"ds_write_b16 v27, v{r+2} offset:{CB}")
            if o.unb == 3: a("s_waitcnt lgkmcnt(0)")
            a(f"ds_write_b32 v{CBr[i]}, v25 offset:{WB}")
            a(f"ds_write_b16_d16_hi v15, v{r+2} offset:{CB}")
            a(f"v_bitop3_b32 v{vAcc}, v{vAcc}, v{CA[i]}, v{CBr[i]} bitop3:0xfe")
            if o.unb >= 2: a("s_waitcnt lgkmcnt(0)")
        if o.fpr != 3: a("s_setprio 3")
    else:
        if o.fpr != 3: a(f"s_setprio {o.fpr}")
        def atom(b):
            for k in range(2):
                i = 2 * b + k; t = 16 + 4 * (b % 2) + 2 * k
                a(f"ds_add_rtn_u32 v{t}, v{CA[i]}, v{vInc}")
                a(f"ds_add_rtn_u32 v{t+1}, v{CBr[i]}, v{vInc}")
        atom(0)
        for b in range(8):
            if b < 7: atom(b + 1)
            a(f"s_waitcnt lgkmcnt({(4 if b < 7 else 0) + (8 if b else 0)})")
            for k in range(2):
                i = 2 * b + k; t = 16 + 4 * (b % 2) + 2 * k; r = R0 + 4 * i
                a(f"v_bitop3_b32 v{CA[i]}, v{vMk}, v{t}, v{CA[i]} bitop3:0xca")
                a(f"v_bitop3_b32 v{CBr[i]}, v{vMk}, v{t+1}, v{CBr[i]} bitop3:0xca")
                a(f"v_and_b32 v24, 0xf00fffff, v{r}")
                a(f"v_and_b32 v25, 0xf00fffff, v{r+1}")
                a(f"v_lshrrev_b32 v27, 1, v{CA[i]}")
                a(f"v_lshrrev_b32 v15, 1, v{CBr[i]}")
                a(f"ds_write_b32 v{CA[i]}, v24 offset:{WB}")
                a(f"ds_write_b16 v27, v{r+2} offset:{CB}")
                a(f"ds_write_b32 v{CBr[i]}, v25 offset:{WB}")
                a(f"ds_write_b16_d16_hi v15, v{r+2} offset:{CB}")
                a(f"v_bitop3_b32 v{vAcc}, v{vAcc}, v{CA[i]}, v{CBr[i]} bitop3:0xfe")
        if o.fpr != 3: a("s_setprio 3")
    a(f"v_cmp_lt_u32 vcc, s5, v{vAcc}")
    a(f"v_mov_b32 v{vra}, 0")
    a(f"v_mov_b32 v{vrb}, 0")
    a(f"s_or_b32 s47, s{MORC}, s{MORC+1}")
    a("s_lshr_b32 s40, s47, 16")
    a("s_or_b32 s47, s47, s40")
    a("s_cmp_lg_u64 vcc, 0")
    a("s_cselect_b32 s47, -1, s47")
    a("s_and_b32 s47, s47, 0xffff")
    a("s_cbranch_scc1 P2_sweep")
    a("P2_swept:")
    if o.prof == 1: first_only("s", P.stamp)
    a("s_add_u32 s49, s49, 1")
    a(f"s_cmp_ge_u32 s49, {S}")
    a("s_cbranch_scc1 P2_pdone")
    def publish(tag, upto):
        a(f"s_cmp_ge_u32 s48, {upto}")
        a(f"s_cbranch_scc1 P2_ff{tag}")
        a("s_call_b64 s[42:43], P2_next")
        a(f"P2_ff{tag}:")
    publish("0", "s49" if o.pub == 0 else o.pub0)
    prep()
    for i in range(16): issue(i)
    if o.pub == 1: publish("1", "s49")
    if o.pub == 4:
        a("s_waitcnt vmcnt(0)")
        publish("1", "s49")
    if not o.wlate: warm_step()
    if o.dl1: a(f"s_sleep {o.dl1}")
    if o.pub == 2: publish("1", "s49")
    ensure()
    pubb2()
    a("s_branch P2_pslice")
    a("P2_next:")
    a("s_add_u32 s48, s48, 1")
    if o.maxr:
        a(f"s_cmp_gt_u32 s48, {o.maxr}")
        a("s_cbranch_scc1 P2_giveup")
    a(f"v_mov_b32 v{vt}, s48")
    a("s_waitcnt lgkmcnt(0)")
    a(f"ds_write_b32 v{vPW}, v{vt}")
    a(f"v_xor_b32 v{vCb}, 1024, v{vCb}")
    a("s_setpc_b64 s[42:43]")
    a("P2_wait:")
    twait(lambda: wait_buffer("n"))
    a("s_cmp_lg_u32 s48, 3")
    a("s_cbranch_scc1 P2_next2")
    a("s_call_b64 s[96:97], P2_pubb")
    a("P2_next2:")
    a("s_setpc_b64 s[42:43]")
    a("P2_pubb:")
    lds_ticket(a, vS, XW + X_C)
    a("s_cmp_lg_u32 s40, 0")
    a("s_cbranch_scc1 P2_norelb")
    lds_wait(a, vS, XW + X_B, 12, "b", 1)
    arrive(a, vS, LV_B)
    release(a, vS, LV_B, "b")
    a("s_setpc_b64 s[96:97]")
    a("P2_ensure:")
    poll(LV_A, "a")
    a(f"s_mov_b32 s45, {(CHA << 16) | 0xffff}")
    a(f"v_cmp_lt_u32 vcc, s45, v{D0}")
    a("s_cbranch_vccz P2_ens1")
    unhold()
    a("s_call_b64 s[96:97], P2_pubb")
    poll(LV_B, "b")
    a("s_mov_b32 s45, -1")
    a("P2_ens1:")
    a("s_setpc_b64 s[42:43]")
    for tg, i in [(t_, i_) for t_ in (("f",) if o.burst else ("", "f")) for i_ in range(16)]:
        r = R0 + 4 * i
        a(f"P2_stall{tg}{i}:")
        a(f"v_cmp_lt_u32 s[{M0_}:{M0_+1}], s5, v{vra}")
        a(f"v_cmp_lt_u32 s[{M1_}:{M1_+1}], s5, v{vrb}")
        next_round(False)
        a(f"s_branch P2_retry{tg}{i}")
        a(f"P2_more{tg}{i}:")
        a(f"s_lshl_b64 exec, s[{ROW0}:{ROW0+1}], {i}")
        a(f"v_max_u32 v{n2c}, 32, v{n2c}")
        a(f"v_subrev_u32 v{n2c}, 32, v{n2c}")
        a(f"v_add_u32 v{a0c}, 192, v{a0c}")
        a(f"s_mov_b64 exec, -1")
        a(f"v_sub_u32_dpp v{vt2}, v{n2c}, v{v2U1} row_newbcast:{i} row_mask:0xf bank_mask:0xf")
        a(f"v_add_u32_dpp v{vt}, v{a0c}, v{vU12} row_newbcast:{i} row_mask:0xf bank_mask:0xf")
        a(f"v_bitop3_b32 v{vt}, v{vt2}, v{vSg}, v{vt} bitop3:0xea")
        a(f"buffer_load_dwordx3 v[{r}:{r+2}], v{vt}, s[12:15], 0 offen sc1")
        a(f"v_cmp_lt_u32 vcc, 32, v{n2c}")
        a(f"s_lshr_b64 s[92:93], vcc, {i}")
        a(f"s_and_b64 s[92:93], s[92:93], s[{ROW0}:{ROW0+1}]")
        a(f"s_andn2_b64 s[{MORC}:{MORC+1}], s[{MORC}:{MORC+1}], s[{ROW0}:{ROW0+1}]")
        a(f"s_or_b64 s[{MORC}:{MORC+1}], s[{MORC}:{MORC+1}], s[92:93]")
        a(f"v_sub_co_u32_dpp v{vt2}, vcc, v{n2c}, v{v2U2} row_newbcast:{i} row_mask:0xf bank_mask:0xf")
        a(f"s_not_b64 s[{M1_}:{M1_+1}], vcc")
        a(f"v_sub_co_u32_dpp v{vt2}, vcc, v{n2c}, v{v2U1} row_newbcast:{i} row_mask:0xf bank_mask:0xf")
        a(f"s_not_b64 s[{M0_}:{M0_+1}], vcc")
        a("s_waitcnt vmcnt(0)")
        a(f"s_branch P2_retry{tg}{i}")
    for i in range(16):
        a(f"P2_fix{i}:")
        a(f"s_bitset0_b32 s47, {i}")
        a(f"v_cmp_lt_u32 vcc, 32, v{n2c}")
        a(f"v_cmp_lt_u32 s[{M0_}:{M0_+1}], s5, v{CA[i]}")
        a(f"v_cmp_lt_u32 s[{M1_}:{M1_+1}], s5, v{CBr[i]}")
        a(f"s_lshr_b64 s[{MORC}:{MORC+1}], vcc, {i}")
        place("f", i)
        if i < 15: a("s_branch P2_sweep")
    a("P2_sweep:")
    for i in range(16):
        a(f"s_bitcmp1_b32 s47, {i}")
        a(f"s_cbranch_scc1 P2_fix{i}")
    a("s_branch P2_swept")
    a("P2_giveup:")
    unhold()
    a("P2_pdone:")
    a("s_add_u32 s48, s48, 0x40000001")
    a(f"v_mov_b32 v{vt}, s48")
    a("s_waitcnt lgkmcnt(0)")
    a(f"ds_write_b32 v{vPW}, v{vt}")
    a(f"s_setprio {o.eprio}")
    if o.sw and o.swd:
        warm(S - 1, "s3")
        a("s_waitcnt lgkmcnt(0)")
    a("s_load_dwordx2 s[6:7], s[0:1], 24")
    a("s_load_dwordx2 s[34:35], s[0:1], 40")
    a("s_load_dwordx8 s[36:43], s[0:1], 56")
    DS = 30; CEN = 56; RB0 = 64; t = 60; X = 1
    a("v_and_b32 v13, 15, v12")
    a("v_lshrrev_b32 v14, 4, v12")
    a(f"v_lshlrev_b32 v{X}, 7, v14")
    a(f"v_lshl_add_u32 v{X}, v13, 1, v{X}")
    a(f"v_and_b32 v{X+1}, 0xff, v{X}")
    a(f"v_and_b32 v{X+2}, 1, v14")
    a(f"v_lshlrev_b32 v{X+2}, 3, v{X+2}")
    a(f"v_lshrrev_b32 v{X+3}, 1, v14")
    a(f"v_lshlrev_b32 v{X+3}, 10, v{X+3}")
    a(f"v_lshl_add_u32 v{X+3}, v13, 1, v{X+3}")
    a("s_and_b32 s47, s46, 31")
    a("s_lshl_b32 s47, s47, 5")
    a(f"v_add_u32 v{X+3}, s47, v{X+3}")
    a(f"v_cmp_gt_u32 s[88:89], 32, v12")
    a("s_waitcnt vmcnt(0) lgkmcnt(0)")
    a("s_lshr_b32 s47, s46, 5")
    a(f"s_mul_i32 s47, s47, {CL * 2}")
    srd(a, 20, 6, CL * 2, "s47")
    srd(a, 28, 42, 512)
    srd(a, 12, 38, 256)
    srd(a, 16, 36, 256)
    srd(a, 52, 34, 16)
    srd(a, 84, 40, 512)
    for c in range(4): a(f"buffer_load_ushort v{CEN+c}, v{X+2}, s[52:55], 0 offen offset:{2*c}")
    a("s_mul_i32 s47, s3, 25")
    for k in range(25):
        a("s_mul_i32 s50, s47, 57")
        a("s_lshr_b32 s50, s50, 9")
        a("s_min_u32 s50, s50, 4")
        a("s_lshl_b32 s51, s47, 1")
        a("s_sub_u32 s50, s51, s50")
        a("s_lshl_b32 s50, s50, 10")
        a(f"v_add_u32 v{DS+k}, s50, v{X+3}")
        a("s_add_u32 s47, s47, 1")
        a(f"buffer_load_ushort v{DS+k}, v{DS+k}, s[20:23], 0 offen")
    assert all((n * 57) >> 9 == n // 9 for n in range(45))
    Y = 116
    for c in range(4): a(f"buffer_load_ushort v{Y+c}, v{X}, s[28:31], 0 offen offset:{32*c}")
    for c in range(4): a(f"buffer_load_ushort v{Y+4+c}, v{X+1}, s[12:15], 0 offen offset:{32*c}")
    for c in range(4): a(f"buffer_load_ushort v{Y+8+c}, v{X+1}, s[16:19], 0 offen offset:{32*c}")
    for c in range(4): a(f"buffer_load_ushort v{16+c}, v{X}, s[84:87], 0 offen offset:{32*c}")
    a("s_waitcnt vmcnt(40)")
    for c in range(4): a(f"v_lshlrev_b32 v{CEN+c}, 16, v{CEN+c}")
    def rnd():
        if o.nornd: return
        for u in range(2):
            a(f"v_cvt_pk_bf16_f32 v{t+2*u+1}, v{t+2*u}, v{t+2*u+1}")
        for u in range(2):
            a(f"v_lshlrev_b32 v{t+2*u}, 16, v{t+2*u+1}")
            a(f"v_and_b32 v{t+2*u+1}, 0xffff0000, v{t+2*u+1}")
    for k in range(25):
        d = DS + k
        a(f"s_waitcnt vmcnt({40 - k})")
        a(f"v_lshlrev_b32 v{d}, 16, v{d}")
        for c in range(4): a(f"v_sub_f32 v{t+c}, v{d}, v{CEN+c}")
        rnd()
        for c in range(4): a(f"v_mul_f32 v{t+c}, v{t+c}, v{t+c}")
        rnd()
        for c in range(4): a(f"v_mul_f32 v{t+c}, 0xc1200000, v{t+c}")
        rnd()
        for c in range(4): a(f"v_mul_f32 v{t+c}, 0x3fb8aa3b, v{t+c}")
        for c in range(4): a(f"v_exp_f32 v{t+c}, v{t+c}")
        for u in range(2): a(f"v_cvt_pk_bf16_f32 v{RB0+2*k+u}, v{t+2*u}, v{t+2*u+1}")
    a("s_waitcnt vmcnt(0)")
    Z = 30
    for u in range(2):
        a(f"v_lshl_or_b32 v{Z+8+u}, v{Y+2*u+1}, 16, v{Y+2*u}")
        a(f"v_lshl_or_b32 v{Z+10+u}, v{17+2*u}, 16, v{16+2*u}")
        a(f"v_lshl_or_b32 v{Y+4+u}, v{Y+5+2*u}, 16, v{Y+4+2*u}")
        a(f"v_lshl_or_b32 v{Y+8+u}, v{Y+9+2*u}, 16, v{Y+8+2*u}")
    for u in range(2):
        a(f"v_cndmask_b32 v{Z+u}, 0, v{Y+4+u}, s[88:89]")
        a(f"v_cndmask_b32 v{Z+2+u}, v{Y+4+u}, 0, s[88:89]")
        a(f"v_cndmask_b32 v{Z+4+u}, 0, v{Y+8+u}, s[88:89]")
        a(f"v_cndmask_b32 v{Z+6+u}, v{Y+8+u}, 0, s[88:89]")
    a(f"v_lshlrev_b32 v{X}, 3, v12")
    a(f"v_add_u32 v{X+1}, {WT}, v{X}")
    a(f"v_and_b32 v{X+2}, 3, v12")
    a(f"v_lshlrev_b32 v{X+2}, 2, v{X+2}")
    a(f"v_add_u32 v{X+2}, {XW + X_PW}, v{X+2}")
    a("P2_dw:")
    a(f"ds_read_b32 v{vt}, v{X+2}")
    a("s_waitcnt lgkmcnt(0)")
    a(f"v_cmp_gt_u32 vcc, 2.0, v{vt}")
    a("s_cbranch_vccz P2_dg")
    a(f"s_sleep {o.psleep}")
    guard(a)
    a("s_branch P2_dw")
    a("P2_dg:")
    a(f"v_readlane_b32 s48, v{vt}, 0")
    for k in range(1, 4):
        a(f"v_readlane_b32 s50, v{vt}, {k}")
        a("s_max_u32 s48, s48, s50")
    a("s_and_b32 s48, s48, 0x3fffffff")
    wait_buffer("e")
    a("s_bitcmp1_b32 s48, 0")
    a(f"s_cselect_b32 s50, {RB_AT[1] - RB_AT[0]}, 0")
    a(f"s_add_u32 s50, s50, {RB_AT[0]}")
    a(f"s_mul_i32 s51, s3, {25*512}")
    a("s_add_u32 s50, s50, s51")
    a(f"v_add_u32 v{X}, s50, v{X}")
    for k in range(6): a(f"ds_write_b64 v{X+1}, v[{Z+2*k}:{Z+2*k+1}] offset:{512*k}")
    for k in range(25): a(f"ds_write_b64 v{X}, v[{RB0+2*k}:{RB0+2*k+1}] offset:{512*k}")
    lds_count(a, vt, XW + X_R)
    a("s_waitcnt lgkmcnt(0)")
    if o.prof == 1:
        P.stamp(); P.dump(32, 0x80000, 8, 3); P.n = nsave
    a("s_endpgm")
    a("P2_consumer:")
    ACC = 60; G0 = 52; B0 = 44; A2 = 28; vTw = 32; vTr = 33; vM = 24; vC = 20; vX = 16
    bA = 1; bE = 2; bC = 3; bR = 4; vH = 5; vL = 6; vCA = 7; vCI = 8; vA = 9; vE = 10
    a("s_sub_u32 s47, s3, 4")
    a("s_min_u32 s44, s47, 4")
    a("s_lshl_b32 s49, s47, 4")
    a("s_add_u32 s49, s49, s44")
    a("s_cmp_lt_u32 s47, 4")
    a("s_cselect_b32 s50, 17, 16")
    a(f"s_cselect_b32 s84, 0, {MARK & 0xffffff}")
    a(f"s_cselect_b32 s85, {17*WSTR//16-192}, {16*WSTR//16-192}")
    a("s_bfm_b64 s[92:93], s85, 0")
    a(f"v_subrev_u32 v60, 256, v0")
    a(f"v_lshlrev_b32 v60, 4, v60")
    for k in range(1, 4): a(f"v_add_u32 v{60+k}, {4*12288*k}, v60")
    lds_wait(a, vX, XW + X_S, 16, "s", o.ssleep)
    P.stamp()
    NL = o.nl; vSt = 34
    for j in range(13):
        k = 12 - j
        a(f"ds_read_b128 v[{68+4*j}:{71+4*j}], v{60+k//4} offset:{STG+12288*(k%4)}")
    a(f"v_mov_b32 v{vSt}, v63")
    q = 36
    for i in range(4): a(f"v_mov_b32 v{q+i}, {MARK}")
    a(f"v_add_u32 v61, {STG + 12288 * K0}, v60")
    a(f"v_add_u32 v62, {STG + 12288 * K1}, v60")
    for k in range(4): a(f"ds_write_b128 v61, v[{q}:{q+3}] offset:{12288 * k}")
    a("s_cmp_ge_u32 s47, 4")
    a("s_cbranch_scc1 P2_notab")
    a(f"v_and_b32 v52, 15, v12")
    a(f"v_lshrrev_b32 v53, 4, v12")
    a(f"v_lshrrev_b32 v56, 2, v52")
    a(f"v_cmp_eq_u32 vcc, v56, v53")
    a(f"v_and_b32 v56, 3, v12")
    a(f"v_lshlrev_b32 v56, 4, v56")
    a(f"v_mov_b32 v54, 0xffff")
    a(f"v_mov_b32 v55, 0")
    a(f"v_cndmask_b32 v54, 0, v54, vcc")
    a(f"v_lshlrev_b64 v[54:55], v56, v[54:55]")
    a(f"v_and_b32 v56, 1, v53")
    a(f"v_lshlrev_b32 v56, 3, v56")
    a(f"v_lshl_add_u32 v52, v52, 4, v56")
    a(f"v_lshrrev_b32 v53, 1, v53")
    a(f"v_lshl_add_u32 v52, v53, 8, v52")
    a(f"v_and_b32 v56, 255, v0")
    a(f"v_lshlrev_b32 v53, 2, v56")
    a(f"v_mul_u32_u24 v56, {WSTR}, v56")
    a(f"v_add_u32 v56, {(64 - CAP) << RS}, v56")
    a(f"v_add_u32 v57, {X1}, v56")
    a(f"ds_write_b64 v52, v[54:55] offset:{LUT}")
    a(f"ds_write_b32 v53, v56")
    a(f"ds_write_b32 v53, v57 offset:1024")
    a("P2_notab:")
    lds_count(a, vX, XW + X_I)
    a("s_waitcnt vmcnt(0)")
    publish_a(a, vX, XW, "ac")
    def store_b(j):
        a(f"buffer_store_dwordx4 v[{68+4*j}:{71+4*j}], v{vSt}, s[20:23], 0 offen {o.p1_st}")
        a(f"v_subrev_u32 v{vSt}, 12288, v{vSt}")
    if o.spr: a(f"s_setprio {o.spr}")
    for j in range(13 - NL): store_b(j)
    if o.spr: a("s_setprio 0")
    for k in range(4): a(f"ds_write_b128 v62, v[{q}:{q+3}] offset:{12288 * k}")
    lds_count(a, vX, XW + X_CW + 4)
    a("v_and_b32 v13, 15, v12")
    a("v_lshrrev_b32 v14, 4, v12")
    a(f"v_and_b32 v0, 3, v12")
    a(f"v_lshlrev_b32 v0, 2, v0")
    a(f"v_add_u32 v0, {XW + X_CW}, v0")
    a(f"s_mul_i32 s51, s49, {WSTR}")
    a(f"s_lshr_b32 s86, s51, 1")
    a(f"s_add_u32 s86, s86, {CB}")
    a(f"v_lshl_add_u32 v{bC}, v14, 4, s86")
    a(f"v_mul_u32_u24 v{vCI}, {WSTR}, v12")
    a(f"s_add_u32 s86, s51, {(64 - CAP) << RS}")
    a(f"v_add_u32 v{vCI}, s86, v{vCI}")
    a(f"s_add_u32 s51, s51, {WB}")
    a(f"v_lshl_add_u32 v{bR}, v12, 4, s51")
    a(f"v_and_b32 v{vA}, 12, v12")
    a(f"v_lshl_add_u32 v{bA}, v14, 5, v{vA}")
    a(f"v_bfe_u32 v{vA}, v12, 1, 1")
    a(f"v_lshl_add_u32 v{bA}, v{vA}, 4, v{bA}")
    a(f"v_add_u32 v{bA}, s51, v{bA}")
    a(f"v_and_b32 v{vH}, 1, v12")
    a(f"v_lshlrev_b32 v{vH}, 4, v{vH}")
    a(f"s_mul_i32 s87, s47, {TSZ}")
    a(f"s_add_u32 s87, s87, {SC}")
    a(f"v_mul_u32_u24 v{vTw}, 576, v{vA}")
    a(f"v_lshrrev_b32 v{vA}, 2, v12")
    a(f"v_lshl_add_u32 v{vTw}, v{vA}, 5, v{vTw}")
    a(f"v_add3_u32 v{vTw}, v{vTw}, v{vH}, s87")
    a(f"v_lshl_add_u32 v{vTr}, v12, 3, s87")
    a(f"v_and_b32 v{vL}, 1, v12")
    a(f"v_lshlrev_b32 v{vL}, 3, v{vL}")
    a(f"v_and_b32 v{vA}, 2, v12")
    a(f"v_lshl_add_u32 v{vL}, v{vA}, 7, v{vL}")
    a(f"v_add_lshl_u32 v{vCA}, v12, s49, 2")
    a(f"v_cmp_gt_u32 vcc, s50, v12")
    a(f"s_mov_b32 s85, {(64 - CAP + 33) << RS}")
    a("s_mov_b32 s94, 0")
    a("s_mov_b32 s95, 0xffff0000")
    a(f"v_cndmask_b32 v{vCA}, 2.0, v{vCA}, vcc")
    a(f"s_lshl_b32 s51, s49, 5")
    a("s_and_b32 s40, s46, 31")
    a(f"s_add_u32 s51, s51, s40")
    a(f"s_lshl_b32 s51, s51, 4")
    a(f"v_add_lshl_u32 v15, v13, s51, 5")
    a(f"v_lshl_add_u32 v15, v14, 3, v15")
    a(f"v_lshlrev_b32 v13, 3, v12")
    for i in range(16): a(f"v_mov_b32 v{B0+i}, 0")
    for i in range(68):
        if not 15 - NL <= i // 4 <= 14: a(f"v_mov_b32 v{ACC+i}, 0")
    a("s_lshr_b32 s40, s46, 5")
    a(f"s_mul_i32 s40, s40, {CL * 32}")
    srd(a, 28, 6, CL * 32, "s40")
    srd(a, 12, 8, CL * 32, "s40")
    def lazy(t):
        j = 13 - NL + t
        store_b(j)
        for u in range(4): a(f"v_mov_b32 v{68+4*j+u}, 0")
    lstep = {}
    for t in range(NL):
        i = o.l0 + t * o.lstep // 2
        assert i <= 14 - NL + t
        lstep.setdefault(i, []).append(t)
    if NL:
        a("s_mov_b32 s42, 1")
        P.stamp()
        a(f"v_mov_b32 v{vX+2}, {XW + X_H}")
        a("P2_pre:")
        a(f"ds_read_b32 v{vX}, v0 offset:{X_PW - X_CW}")
        a(f"ds_read_b32 v{vX+1}, v{vX+2}")
        a("s_waitcnt lgkmcnt(0)")
        a(f"v_cmp_eq_u32 vcc, 0, v{vX}")
        a("s_cbranch_vccz P2_round0")
        a(f"v_cmp_eq_u32 vcc, 0, v{vX+1}")
        a("s_cbranch_vccz P2_flush")
        a(f"s_sleep {o.csleep}")
        guard(a)
        a("s_branch P2_pre")
        a("P2_flush:")
        for t in range(NL): lazy(t)
        a("s_mov_b32 s42, 0")
    a("s_waitcnt vmcnt(0)")
    lds_count(a, vX, XW + X_B)
    if not NL: P.stamp()
    def reads1(par, i, second):
        oa = par * X1 + i * WSTR + (128 if second else 0)
        a(f"ds_read_b32 v{vA}, v{bA} offset:{oa}")
    def reads2(par, i, second):
        oc = (par * X1 + i * WSTR + (128 if second else 0)) // 2
        a(f"v_add_u32_dpp v{vE}, v{bE}, v{vL} quad_perm:[0,0,0,0] row_mask:0xf bank_mask:0xf")
        a(f"v_add_u32_dpp v{vE+1}, v{bE}, v{vL} quad_perm:[2,2,2,2] row_mask:0xf bank_mask:0xf")
        a(f"ds_read_b64_tr_b16 v[{vM}:{vM+1}], v{vE} offset:{LUT}")
        a(f"ds_read_b64_tr_b16 v[{vM+2}:{vM+3}], v{vE+1} offset:{LUT}")
        a(f"ds_read_b128 v[{vC}:{vC+3}], v{bC} offset:{oc}")
    def addr():
        a(f"v_lshrrev_b32 v{bE}, 24, v{vA}")
        a(f"v_mad_u32_u24 v{vA}, v{vA}, 32, v{vH}")
    def transpose(g):
        a(f"ds_write_b128 v{vTw}, v[{g}:{g+3}]")
        a(f"ds_read_b64_tr_b16 v[{A2}:{A2+1}], v{vTr}")
        a(f"ds_read_b64_tr_b16 v[{A2+2}:{A2+3}], v{vTr} offset:576")
    def mfma2(i, b):
        c = ACC + 4 * i
        a(f"v_mfma_f32_16x16x32_bf16 v[{c}:{c+3}], v[{A2}:{A2+3}], v[{b}:{b+3}], v[{c}:{c+3}]")
    NS = 17
    for par in range(2):
        a(f"P2_round{par}:")
        def spin():
            a(f"P2_cw{par}:")
            a(f"ds_read_b32 v{vX+1}, v0 offset:{X_PW - X_CW}")
            reads1(par, 0, False)
            a(f"ds_read_b32 v{vX}, v{vCA} offset:{1024*par}")
            a("s_waitcnt lgkmcnt(2)")
            a(f"v_cmp_ge_u32 vcc, s48, v{vX+1}")
            a(f"v_and_b32 v{vX+1}, 0x3fffffff, v{vX+1}")
            a(f"s_cbranch_vccz P2_cg{par}")
            a(f"s_sleep {o.csleep}")
            guard(a)
            a(f"s_branch P2_cw{par}")
            a(f"P2_cg{par}:")
        twait(spin)
        if o.prof == 1:
            a("s_memrealtime s[58:59]")
            a("s_waitcnt lgkmcnt(0)")
            a("s_mov_b32 m0, s48")
            a("v_writelane_b32 v14, s58, m0")
            a("s_add_u32 m0, s48, 16")
            a("v_writelane_b32 v14, s56, m0")
        a(f"v_cmp_lt_u32 vcc, s48, v{vX+1}")
        a(f"s_cbranch_vccz P2_drain{1-par}")
        if o.prof == 1 and par == 0:
            a("s_cmp_lg_u32 s48, 0"); a("s_cbranch_scc1 P2_nostamp"); P.stamp(); a("P2_nostamp:")
        if par: a(f"v_add_u32 v{vX+2}, {X1}, v{vCI}")
        a(f"ds_write_b32 v{vCA}, v{vX+2 if par else vCI} offset:{1024*par}")
        a("s_add_u32 s48, s48, 1")
        for i in range(NS):
            p = (par * NS + i) % 2
            g = G0 + 4 * p; b = B0 + 4 * p
            a("s_waitcnt lgkmcnt(0)")
            if i == NS - 1: a(f"v_or_b32 v{vA}, s84, v{vA}")
            addr()
            a("s_waitcnt vmcnt(1)")
            sk = o.skip and i == 1
            if sk:
                a("s_cmp_lg_u32 s84, 0")
                a(f"s_cbranch_scc1 P2_nt{par}")
            transpose(g)
            if sk: a(f"P2_nt{par}:")
            a(f"buffer_load_dwordx4 v[{g}:{g+3}], v{vA}, s[8:11], 0 offen {o.gfl}")
            if o.skip and i == NS - 1:
                a("s_cmp_lg_u32 s84, 0")
                a(f"s_cbranch_scc1 P2_last{par}")
            reads2(par, i, False)
            if i + 1 < NS: reads1(par, i + 1, False)
            if i == 0: a(f"v_cmp_le_u32 s[90:91], s85, v{vX}")
            if sk: a(f"s_cbranch_scc1 P2_nm{par}")
            a(f"s_waitcnt lgkmcnt({4 if i + 1 < NS else 3})")
            mfma2((i - 2) % NS, b)
            if sk: a(f"P2_nm{par}:")
            a(f"s_bitcmp1_b32 s90, {i}")
            a(f"s_waitcnt lgkmcnt({1 if i + 1 < NS else 0})")
            for u in range(4): a(f"v_and_b32 v{b+u}, v{vM+u}, v{vC+u}")
            a(f"s_cbranch_scc1 P2_slow{par}_{i}")
            a(f"P2_back{par}_{i}:")
            if par == 0 and i in lstep:
                a("s_cmp_lg_u32 s42, 0")
                a(f"s_cbranch_scc1 P2_lazy{i}")
                a(f"P2_lazyb{i}:")
        if par == 0 and NL:
            a("s_cmp_eq_u32 s42, 0")
            a("s_cbranch_scc1 P2_nolz")
            a("s_mov_b32 s42, 0")
            a("s_waitcnt vmcnt(0)")
            lds_count(a, vX, XW + X_B)
            a("P2_nolz:")
        for u in range(4): a(f"v_mov_b32 v{vX+u}, {MARK}")
        for k in range(4):
            if k == 3: a("s_mov_b64 exec, s[92:93]")
            a(f"ds_write_b128 v{bR}, v[{vX}:{vX+3}] offset:{par*X1+1024*k}")
        a("s_mov_b64 exec, 1")
        a(f"v_mov_b32 v{vA}, 1")
        a("s_waitcnt lgkmcnt(0)")
        a(f"ds_add_rtn_u32 v{vA}, v0, v{vA} offset:{4*par}")
        a("s_lshr_b32 s40, s48, 1")
        a("s_mul_i32 s40, s40, 12")
        a("s_waitcnt lgkmcnt(0)")
        a(f"v_readfirstlane_b32 s41, v{vA}")
        a("s_mov_b64 exec, -1")
        a("s_sub_u32 s41, s41, s40")
        a(f"s_setprio {o.cb}")
        a(f"s_cmp_lt_u32 s41, {o.fb0}")
        a(f"s_cbranch_scc1 P2_round{1-par}")
        a(f"s_setprio {o.cb + 1}")
        a(f"s_cmp_lt_u32 s41, {o.fb1}")
        a(f"s_cbranch_scc1 P2_round{1-par}")
        a(f"s_setprio {o.cb + 2}")
        if par: a("s_branch P2_round0")
    for par in range(2 if o.skip else 0):
        a(f"P2_last{par}:")
        a("s_waitcnt lgkmcnt(0)")
        mfma2(NS - 3, B0 + 4 * ((par * NS + NS - 1) % 2))
        a(f"s_branch P2_back{par}_{NS-1}")
    for i in sorted(lstep):
        a(f"P2_lazy{i}:")
        for t in lstep[i]: lazy(t)
        a(f"s_branch P2_lazyb{i}")
    for par in range(2):
        for i in range(NS):
            a(f"P2_slow{par}_{i}:")
            reads1(par, i, True)
            a("s_waitcnt lgkmcnt(0)")
            a("s_mov_b64 exec, s[94:95]")
            a(f"v_mov_b32 v{vA}, {MARK}")
            a("s_mov_b64 exec, -1")
            addr()
            a(f"buffer_load_dwordx4 v[{vX}:{vX+3}], v{vA}, s[8:11], 0 offen")
            reads2(par, i, True)
            if i + 1 < NS: reads1(par, i + 1, False)
            a(f"s_waitcnt lgkmcnt({1 if i + 1 < NS else 0})")
            for u in range(4): a(f"v_and_b32 v{vM+u}, v{vM+u}, v{vC+u}")
            a("s_waitcnt vmcnt(0)")
            transpose(vX)
            a("s_waitcnt lgkmcnt(0)")
            mfma2(i, vM)
            a(f"s_branch P2_back{par}_{i}")
    vLo = 14; vSo = 15; vRb = 12; vWt = 13
    mreg = [0, 2, 4, 6, 8, 10, 16, 18, 20, 22, 24, 26, ACC, ACC + 2, ACC + 4, ACC + 6, ACC + 8]
    NPRE = 12
    def mload(i):
        a(f"buffer_load_dwordx2 v[{mreg[i]}:{mreg[i]+1}], v{vLo}, s[12:15], 0 offen")
        a(f"v_add_u32 v{vLo}, {512*32}, v{vLo}")
    for par in (1, 0):
        a(f"P2_drain{par}:")
        a("s_waitcnt lgkmcnt(0)")
        if par == 1: P.stamp()
        elif o.prof == 1: P.n -= 1; P.stamp()
        if o.prof == 1:
            srd(a, 52, 32, 0x100000, WS_PROF)
            a("s_lshl_b32 s56, s2, 4")
            a("s_add_u32 s56, s56, s3")
            a("s_lshl_b32 s56, s56, 7")
            a("v_lshrrev_b32 v12, 1, v13")
            a("v_add_u32 v12, s56, v12")
            a("s_bfm_b64 exec, 32, 0")
            a("buffer_store_dword v14, v12, s[52:55], 0 offen")
            a("s_mov_b64 exec, -1")
        if o.epr >= 0: a(f"s_setprio {o.epr}")
        a(f"v_mov_b32 v{vLo}, v{vSo}")
        for i in range(NPRE): mload(i)
        a(f"s_mov_b32 s51, {RB_AT[1 - par]}")
        for i in (NS, NS + 1):
            p = (par * NS + i) % 2
            a(f"s_waitcnt vmcnt({NS + 1 - i + NPRE})")
            transpose(G0 + 4 * p)
            a("s_waitcnt lgkmcnt(0)")
            mfma2(i - 2, B0 + 4 * p)
        if par == 1: a("s_branch P2_epi")
    a("P2_epi:")
    WS_ = 32; WR_ = 36; WU = 40; WD = 42; RB = 44; SS = 48; GG = 52; UU = 56; ZZ = 28
    a("s_lshl_b32 s47, s47, 3")
    a("s_add_u32 s47, s47, s44")
    a("s_lshl_b32 s47, s47, 9")
    a("s_add_u32 s51, s51, s47")
    a(f"v_add_u32 v{vRb}, s51, v{vWt}")
    a(f"v_add_u32 v{vWt}, {WT}, v{vWt}")
    lds_wait(a, UU, XW + X_R, 4, "r", 1)
    for k in range(6): a(f"ds_read_b64 v[{WS_+2*k}:{WS_+2*k+1}], v{vWt} offset:{512*k}")
    def rbread(k): a(f"ds_read_b64 v[{RB+2*(k%2)}:{RB+2*(k%2)+1}], v{vRb} offset:{512*k}")
    rbread(0); rbread(1)
    vm = [("m", i) for i in range(NPRE)]
    def mf(d, w, i):
        h = 2 * (i % 2); r = RB + 2 * ((i // 2) % 2)
        a(f"v_mfma_f32_16x16x16_bf16 v[{d}:{d+3}], v[{w+h}:{w+h+1}], v[{r}:{r+1}], 0")
    def pack(i):
        c0 = ACC + 4 * i
        for u in range(2): a(f"v_cvt_pk_bf16_f32 v{c0+u}, v{c0+2*u}, v{c0+2*u+1}")
    def mz(i):
        c0 = ACC + 4 * i
        a(f"v_mfma_f32_16x16x16_bf16 v[{ZZ}:{ZZ+3}], v[{WD}:{WD+1}], v[{c0}:{c0+1}], 0")
    def gate(i):
        c0 = ACC + 4 * i
        for c in (0, 2): a(f"v_pk_mul_f32 v[{c0+c}:{c0+c+1}], v[{SS+c}:{SS+c+1}], v[{ZZ+c}:{ZZ+c+1}]")
        pack(i)
    pack(0)
    a("s_waitcnt lgkmcnt(0)")
    mz(0); mf(SS, WS_, 0); mf(GG, WR_, 0)
    gate(0)
    for i in range(NS):
        c0 = ACC + 4 * i; m = mreg[i]; nx = i + 1 < NS
        if i == NS - 1:
            a("s_cmp_lt_u32 s50, 17")
            a("s_cbranch_scc1 P2_fin")
        a(f"v_mfma_f32_16x16x16_bf16 v[{UU}:{UU+3}], v[{WU}:{WU+1}], v[{c0}:{c0+1}], 0")
        if nx: pack(i + 1)
        lg = f" lgkmcnt({1 if i // 2 + 2 <= 8 else 0})" if nx and i % 2 == 1 else ""
        a(f"s_waitcnt vmcnt({len(vm) - 1 - vm.index(('m', i))})" + lg)
        if nx: mf(SS, WS_, i + 1)
        a(f"v_lshlrev_b32 v{c0}, 16, v{m}")
        a(f"v_and_b32 v{c0+1}, 0xffff0000, v{m}")
        if nx: mz(i + 1)
        a(f"v_lshlrev_b32 v{c0+2}, 16, v{m+1}")
        a(f"v_and_b32 v{c0+3}, 0xffff0000, v{m+1}")
        for c in (0, 2): a(f"v_pk_fma_f32 v[{c0+c}:{c0+c+1}], v[{UU+c}:{UU+c+1}], v[{GG+c}:{GG+c+1}], v[{c0+c}:{c0+c+1}]")
        if nx: mf(GG, WR_, i + 1)
        for u in range(2): a(f"v_cvt_pk_bf16_f32 v{m+u}, v{c0+2*u}, v{c0+2*u+1}")
        a(f"buffer_store_dwordx2 v[{m}:{m+1}], v{vSo}, s[28:31], 0 offen {o.ost}")
        vm.append(("s", i))
        if nx: gate(i + 1)
        a(f"v_add_u32 v{vSo}, {512*32}, v{vSo}")
        if i % 2 == 0 and i // 2 + 2 <= 8: rbread(i // 2 + 2)
        for k in (NPRE + 2 * i, NPRE + 2 * i + 1):
            if k < NS: mload(k); vm.append(("m", k))
    a("P2_fin:")
    if o.prof:
        P.stamp()
        a("s_waitcnt vmcnt(0)")
        P.stamp(True)
        P.dump(32, 0x80000, 34, 3)
    a("P2_end:")
    a("s_endpgm")

KD = """.amdhsa_kernel {name}
  .amdhsa_next_free_vgpr 128
  .amdhsa_next_free_sgpr 100
  .amdhsa_accum_offset 128
  .amdhsa_group_segment_fixed_size 0
  .amdhsa_kernarg_size 112
  .amdhsa_user_sgpr_count 2
  .amdhsa_user_sgpr_kernarg_segment_ptr 1
  .amdhsa_system_sgpr_workgroup_id_x 1
  .amdhsa_float_denorm_mode_32 3
.end_amdhsa_kernel
"""

NAME = "gather_scatter__molecular_angular_gemnet__graph_kernel"

def build(o):
    GUARD[0] = 1000000 if o.maxr else 0
    a = Asm(); P = Prof(a, o.prof, 1)
    xw, stg = gen_p1(o, a, P); gen_p2(o, a, P, xw, stg)
    ref = open("gather_scatter__molecular_angular_gemnet__graph.s.ref").read().split("\n")
    head = [l for l in ref if l.startswith(";") and "launch geometry" not in l and "Harness parses" not in l and "@launch" not in l]
    s = "\n".join(head) + "\n"
    s += """;
"""
    s += f"; @launch grid=(256,1,1) block=(1024,1,1) lds={xw + 64}\n"
    s += '.amdgcn_target "amdgcn-amd-amdhsa--gfx950"\n.text\n'
    s += f".globl {NAME}\n.p2align 8\n.type {NAME},@function\n{NAME}:\n" + a.finish()
    s += '.section .rodata,"a"\n.p2align 6\n' + KD.format(name=NAME)
    return s

def parser():
    p = argparse.ArgumentParser()
    p.add_argument("-S", type=int, default=11)
    for k, d in dict(prof=0, maxr=0, dstep=4, asplit=12, sw=1, psleep=2, csleep=2, gsleep=24, maxpoll=1000000, eprio=0, nd=4, unb=2, fpr=3, qpr=3, pub=1, pub0=1, wlate=0, dl1=0, cb=0, epr=-1, bpr=3, burst=1, ppr=3, fb0=6, fb1=10, cs=256, cg=14, ck=0, an0=12, sk=0, nf=2, ng=2, ssleep=1, wsh=50, skip=1, l0=9, pfs=14, pfd=2, own=1, swo=36000, swd=0, nornd=0, pp=5, nb=5, sw0=4, pf0=3, pfw=0, pfn=5, ldp=1, spr=2, f0=0, cpf=14, nl=5, lstep=0, fuse=1, cmap=2, rot=0).items():
        p.add_argument("--" + k, type=int, default=d)
    p.add_argument("--p1_ld", default="nt")
    p.add_argument("--p1_st", default="sc1")
    p.add_argument("--ost", default="nt")
    p.add_argument("--gfl", default="")
    p.add_argument("--xt", default="40516273")
    p.add_argument("-o", default="gather_scatter__molecular_angular_gemnet__graph.s")
    return p

if __name__ == "__main__":
    o = parser().parse_args()
    open(o.o, "w").write(build(o))
```

```python
import sys, argparse
from asmlib import Asm, align8

E = 800000; T = 12800000
NT = 256
CHA = 25088
TILE_N = 50000
TILE_BYTES = 300032
WS_DESC = 0x5000000
WS_PROF = 0x6000000
CAP = 56
WSTR = CAP * 4
MARK = 0x38100000
NG = 196
RS = 18
RMASK = (0xffffffff << (RS + 6) | (1 << RS) - 1) & 0xffffffff
ROVF = (1 << (RS + 6)) - 1
CL = E // 8
WREG = 9472

GUARD = [0]
def guard(a):
    if GUARD[0]:
        a("s_add_u32 s99, s99, 1")
        a(f"s_cmp_gt_u32 s99, {GUARD[0]}")
        a("s_cbranch_scc1 P2_end")

def slicing(o):
    B = (o.f0 << 26) // 100
    K = ((o.S << 26) - B) // E
    return K, B

def srd(a, d, base, size, off=None):
    if off is None:
        a(f"s_mov_b32 s{d}, s{base}")
        a(f"s_mov_b32 s{d+1}, s{base+1}")
    else:
        a(f"s_add_u32 s{d}, s{base}, {off}")
        a(f"s_addc_u32 s{d+1}, s{base+1}, 0")
    a(f"s_mov_b32 s{d+2}, {size}")
    a(f"s_mov_b32 s{d+3}, 0x20000")

class Prof:
    def __init__(self, a, on, fuse=0): self.a = a; self.on = on; self.n = 0; self.fuse = fuse
    def stamp(self, key=False):
        if not self.on or (self.on == 2 and not key): return
        a = self.a
        a("s_waitcnt lgkmcnt(0)")
        a("s_memtime s[58:59]")
        a("s_waitcnt lgkmcnt(0)")
        a(f"s_mov_b32 s{60+self.n}, s58")
        a("s_memrealtime s[58:59]")
        a("s_waitcnt lgkmcnt(0)")
        a(f"s_mov_b32 s{72+self.n}, s58")
        self.n += 1
    def dump(self, wsreg, region, vt, wave_sreg):
        if not self.on: return
        a = self.a
        srd(a, 52, wsreg, 0x100000, WS_PROF + region)
        a(f"s_lshl_b32 s56, s2, 4")
        a(f"s_add_u32 s56, s56, s{wave_sreg}")
        a(f"s_lshl_b32 s56, s56, 7")
        a("s_mov_b64 exec, 1")
        for i in range(self.n):
            a(f"v_mov_b32 v{vt}, s56")
            a(f"v_mov_b32 v{vt+1}, s{60+i}")
            a(f"buffer_store_dword v{vt+1}, v{vt}, s[52:55], 0 offen offset:{4*i}")
            a(f"v_mov_b32 v{vt+1}, s{72+i}")
            a(f"buffer_store_dword v{vt+1}, v{vt}, s[52:55], 0 offen offset:{64+4*i}")
        a(f"v_mov_b32 v{vt+1}, s71")
        a(f"buffer_store_dword v{vt+1}, v{vt}, s[52:55], 0 offen offset:124")
        a("s_waitcnt vmcnt(0)")
        a("s_mov_b64 exec, -1")

def gen_p1(o, a, P):
    S = o.S
    NK = S * 256
    KSL, BSL = slicing(o)
    CN = 16; SCR = CN + NK * 4; STG = SCR + 64; XW = STG + CHA * 6
    W0 = 4; KP0 = 53; C0 = 78; TO = 103; T0 = 104
    ld = o.p1_ld; st = o.p1_st
    vmq = []
    def issue_out(r):
        b = C0 + 4 * (r % 6)
        a(f"buffer_load_dwordx4 v[{b}:{b+3}], v2, s[12:15], s36 offen {ld}")
        a(f"s_add_u32 s36, s36, {CS * 16384}")
        vmq.append(("o", r))
    def issue_in(r):
        w = W0 + 4 * r
        a(f"buffer_load_dwordx4 v[{w}:{w+3}], v2, s[8:11], s4 offen {ld}")
        a(f"s_add_u32 s4, s4, {CS * 16384}")
        vmq.append(("i", r))
    seq = [("i", r) for r in range(o.sk)]
    for r in range(12):
        seq.append(("o", r))
        if r + o.sk < 12: seq.append(("i", r + o.sk))
    def issue_next(n):
        for _ in range(n):
            if seq:
                k, r = seq.pop(0)
                (issue_in if k == "i" else issue_out)(r)
    def issue_ang(r):
        b = C0 + 2 * r
        a(f"buffer_load_dwordx2 v[{b}:{b+1}], v2, s[16:19], s37 offen {ld}")
        a(f"s_add_u32 s37, s37, {CS * 8192}")
    DP = o.ldp
    CS = o.cs
    a("s_load_dwordx2 s[8:9], s[0:1], 8")
    a("s_load_dwordx2 s[12:13], s[0:1], 16")
    a("s_cmp_ge_u32 s2, 256")
    a("s_cbranch_scc1 P2_end")
    if o.cpf:
        a("s_getpc_b64 s[40:41]")
        a("P1_pc:")
        a("s_lshr_b32 s45, s2, 3")
        a(f"s_mulk_i32 s45, {o.cpf}")
        a(f"s_mov_b32 s42, P2_end-P1_pc")
        a("s_mov_b32 s43, 0x20000")
        a(f"v_add_lshl_u32 v{T0+23}, v0, s45, 7")
        a(f"v_cmp_gt_u32 vcc, {o.cpf}, v0")
        a("s_and_b64 exec, exec, vcc")
        a("s_cbranch_execz P1_nopf")
        a(f"buffer_load_dword v{T0+23}, v{T0+23}, s[40:43], 0 offen")
        a("P1_nopf:")
        a("s_mov_b64 exec, -1")
    a(f"s_mov_b32 s10, {T * 4}")
    a("s_mov_b32 s11, 0x20000")
    a("s_mov_b64 s[14:15], s[10:11]")
    if o.cg < 14:
        assert CS == 256
        a(f"s_lshl_b32 s36, s2, {o.cg}")
    elif CS == 1:
        a(f"s_mul_i32 s36, s2, {12 * 16384}")
    else:
        a(f"s_andn2_b32 s36, s2, {CS - 1}")
        a(f"s_mulk_i32 s36, 11")
        a(f"s_add_u32 s36, s36, s2")
        a(f"s_lshl_b32 s36, s36, 14")
    a("s_lshr_b32 s37, s36, 1")
    a("s_mov_b32 s4, s36")
    a("v_lshlrev_b32 v1, 4, v0")
    if o.cg < 14:
        a(f"v_lshrrev_b32 v2, {o.cg}, v1")
        a(f"v_mul_u32_u24 v2, {255 << o.cg}, v2")
        a("v_add_u32 v2, v2, v1")
    else:
        a("v_mov_b32 v2, v1")
    a("s_waitcnt lgkmcnt(0)")
    P.stamp(True)
    issue_next(o.nf)
    if GUARD[0]: a("s_mov_b32 s99, 0")
    a("s_load_dwordx2 s[16:17], s[0:1], 32")
    a("s_load_dwordx2 s[30:31], s[0:1], 48")
    a("s_load_dwordx2 s[32:33], s[0:1], 104")
    a("s_load_dwordx2 s[94:95], s[0:1], 96")
    a("s_load_dwordx2 s[48:49], s[0:1], 0")
    a("s_load_dwordx2 s[86:87], s[0:1], 88")
    a("v_mov_b32 v3, 1")
    for i in range(4): a(f"v_mov_b32 v{T0+i}, 0")
    a(f"ds_write_b128 v1, v[{T0}:{T0+3}]")
    a(f"v_lshrrev_b32 v{T0+4}, 6, v0")
    a(f"v_readfirstlane_b32 s3, v{T0+4}")
    a(f"s_mul_i32 s34, s2, 848")
    a(f"s_add_u32 s34, s34, {3072*4096}")
    a(f"v_add_u32 v109, s34, v0")
    a(f"v_cmp_gt_u32 vcc, 848, v0")
    a(f"v_lshlrev_b32 v110, 2, v109")
    a(f"v_lshlrev_b32 v109, 1, v109")
    a(f"v_cndmask_b32 v110, 2.0, v110, vcc")
    a(f"v_cndmask_b32 v109, 2.0, v109, vcc")
    a(f"buffer_load_dword v{TO}, v110, s[12:15], 0 offen {ld}")
    a(f"buffer_load_dword v{W0+48}, v110, s[8:11], 0 offen {ld}")
    a(f"s_mov_b32 s18, {T * 2}")
    a("s_mov_b32 s19, 0x20000")
    a("s_waitcnt lgkmcnt(0)")
    a("s_load_dword s35, s[30:31], 0")
    a(f"buffer_load_ushort v{C0+24}, v109, s[16:19], 0 offen {ld}")
    vmq.extend([("t", 0), ("t", 1), ("t", 2)])
    a("s_mov_b32 s38, 0x7c00")
    MG = -(-(1 << 19) // S)
    assert all((n * MG) >> 19 == n // S for n in range(4096))
    a(f"s_mov_b32 s40, {(-(1024*S - 4)) & 0xffffffff}")
    for j in range(4):
        t = T0 + 16 + j
        a(f"v_lshl_add_u32 v{t}, v0, 2, {j}")
        a(f"v_mul_u32_u24 v{T0}, {MG}, v{t}")
        a(f"v_lshrrev_b32 v{T0}, 19, v{T0}")
        a(f"v_lshlrev_b32 v{t}, 10, v{t}")
        a(f"v_mad_i32_i24 v{t}, v{T0}, s40, v{t}")
        a(f"v_add_u32 v{t}, {STG}, v{t}")
    srd(a, 20, 32, NT * NT * S * 4, WS_DESC)
    srd(a, 24, 94, 256)
    a("s_mov_b32 s44, 0")
    a(f"s_mov_b32 s39, {KSL}")
    a(f"v_mov_b32 v{T0+22}, {(BSL - (CL * KSL if o.own == 1 else 0)) & 0xffffffff}")
    a(f"s_mov_b32 s5, {CL}")
    a(f"v_mov_b32 v{T0+20}, 0x7c")
    a(f"v_mov_b32 v{T0+21}, 0x0ff00000")
    a("s_barrier")
    KX = -(-(1 << 28) // (CL // 16))
    assert all(((k * (CL // 16) + d) * KX) >> 28 == (k * (CL // 16) + d) // (CL // 16) for k in range(1, 9) for d in (-1, 0) if k < 8 or d < 0)
    def key(O, W, t):
        x, xb, d, n = t, t + 1, t + 2, t + 3
        a(f"v_and_b32 v{x}, -16, v{O}")
        a(f"v_mul_hi_u32_u24 v{x}, {KX}, v{x}")
        a(f"v_mul_u32_u24 v{xb}, {CL}, v{x}")
        a(f"v_sub_u32 v{d}, v{W}, v{xb}")
        a(f"v_sub_u32 v{O}, v{O}, v{xb}")
        if o.own == 1:
            a(f"v_cmp_gt_u32 s[42:43], s5, v{d}")
            a(f"v_ashrrev_i32 v{n}, 31, v{d}")
            a(f"v_add_u32 v{d}, {8 * CL}, v{d}")
            a(f"v_and_b32 v{n}, {CL}, v{n}")
            a(f"v_add_u32 v{n}, v{n}, v{W}")
            a(f"v_cndmask_b32 v{n}, v{n}, v{d}, s[42:43]")
        elif o.own == 2:
            a(f"v_subrev_u32 v{d}, {CL}, v{d}")
            a(f"v_add_u32 v{n}, {E}, v{d}")
            a(f"v_min_u32 v{n}, v{n}, v{d}")
        else:
            a(f"v_mov_b32 v{n}, v{W}")
        a(f"v_lshlrev_b32 v{xb}, 11, v{O}")
        a(f"v_lshl_or_b32 v{W}, v{O}, 28, v{W}")
        a(f"v_mad_u32_u24 v{n}, v{n}, s39, v{T0+22}")
        a(f"v_lshrrev_b32 v{O}, 2, v{O}")
        a(f"v_bitop3_b32 v{W}, v{xb}, v{T0+21}, v{W} bitop3:0xea")
        a(f"v_and_b32_sdwa v{n}, v{n}, s38 dst_sel:DWORD dst_unused:UNUSED_PAD src0_sel:WORD_1 src1_sel:DWORD")
        a(f"v_lshl_or_b32 v{n}, v{x}, 7, v{n}")
        a(f"v_bitop3_b32 v{O}, v{O}, v{T0+20}, v{n} bitop3:0xea")
    done = [0]
    def wait_for(ops):
        while True:
            need = max(vmq.index(x) for x in ops) + 1 if all(x in vmq for x in ops) else None
            if need is not None and need <= done[0]: return
            idx = [k for k in range(done[0], len(vmq)) if vmq[k][0] != "t"]
            tgt = idx[min(o.ng, len(idx)) - 1] + 1 if idx else len(vmq)
            a(f"s_waitcnt vmcnt({len(vmq) - tgt})")
            n = sum(1 for k in range(done[0], tgt) if vmq[k][0] != "t")
            done[0] = tgt
            issue_next(n)
    for r in range(12):
        wait_for([("o", r), ("i", r)])
        assert all(k != "o" or q < r + 6 for k, q in vmq)
        if r == 2:
            wait_for([("t", 2)])
            key(TO, W0 + 48, T0)
            a(f"v_cndmask_b32 v{KP0+24}, 2.0, v{TO}, vcc")
            a(f"ds_add_u32 v{KP0+24}, v3 offset:{CN}")
        b = C0 + 4 * (r % 6)
        for j in range(4):
            key(b + j, W0 + 4 * r + j, T0 + 4 * j)
            a(f"ds_add_u32 v{b+j}, v3 offset:{CN}")
        a(f"v_lshl_or_b32 v{KP0+2*r}, v{b+1}, 16, v{b}")
        a(f"v_lshl_or_b32 v{KP0+2*r+1}, v{b+3}, 16, v{b+2}")
    a("v_lshrrev_b32 v2, 1, v2")
    a("s_waitcnt lgkmcnt(0)")
    a("s_barrier")
    P.stamp()
    c = T0; x = T0 + 4; tot = T0 + 5; y = T0 + 6
    a(f"s_cmp_ge_u32 s3, {S}")
    a("s_cbranch_scc1 P1_scan1")
    a(f"ds_read_b128 v[{c}:{c+3}], v1 offset:{CN}")
    a("s_waitcnt lgkmcnt(0)")
    a(f"v_add_u32 v{c+1}, v{c}, v{c+1}")
    a(f"v_add_u32 v{c+2}, v{c+1}, v{c+2}")
    a(f"v_add_u32 v{c+3}, v{c+2}, v{c+3}")
    a(f"v_mov_b32 v{x}, v{c+3}")
    for sh in (1, 2, 4, 8):
        a(f"v_add_u32_dpp v{x}, v{x}, v{x} row_shr:{sh} row_mask:0xf bank_mask:0xf bound_ctrl:1")
    a(f"v_add_u32_dpp v{x}, v{x}, v{x} row_bcast:15 row_mask:0xa bank_mask:0xf")
    a(f"v_add_u32_dpp v{x}, v{x}, v{x} row_bcast:31 row_mask:0xc bank_mask:0xf")
    a(f"v_readlane_b32 s40, v{x}, 63")
    a(f"s_lshl_b32 s41, s3, 2")
    a(f"v_mov_b32 v{y}, s41")
    a(f"v_mov_b32 v{y+1}, s40")
    a(f"ds_write_b32 v{y}, v{y+1} offset:{SCR}")
    a("s_waitcnt lgkmcnt(0)")
    a("P1_scan1:")
    a("s_barrier")
    a(f"s_cmp_ge_u32 s3, {S}")
    a("s_cbranch_scc1 P1_scan2")
    a(f"v_and_b32 v{y}, 63, v0")
    a(f"v_lshlrev_b32 v{y+1}, 2, v{y}")
    a(f"ds_read_b32 v{y+2}, v{y+1} offset:{SCR}")
    a(f"v_cmp_gt_u32 s[42:43], s3, v{y}")
    a(f"v_sub_u32 v{x}, v{x}, v{c+3}")
    a("s_waitcnt lgkmcnt(0)")
    a(f"v_cndmask_b32 v{y+2}, 0, v{y+2}, s[42:43]")
    for sh in (1, 2, 4, 8):
        a(f"v_add_u32_dpp v{y+2}, v{y+2}, v{y+2} row_shr:{sh} row_mask:0xf bank_mask:0xf bound_ctrl:1")
    a(f"v_readlane_b32 s40, v{y+2}, 15")
    s0 = T0 + 12
    a(f"v_add_u32 v{s0}, s40, v{x}")
    for j in range(3): a(f"v_add_u32 v{s0+1+j}, v{s0}, v{c+j}")
    a(f"ds_write_b128 v1, v[{s0}:{s0+3}] offset:{CN}")
    a(f"ds_write_b128 v1, v[{s0}:{s0+3}] offset:{STG}")
    a(f"v_mov_b32 v{c}, {STG + NK * 4}")
    a(f"v_mov_b32 v{c+1}, {TILE_N}")
    a(f"ds_write_b32 v{c}, v{c+1}")
    a("s_waitcnt lgkmcnt(0)")
    a("P1_scan2:")
    a("s_barrier")
    a(f"s_cmp_ge_u32 s3, {S}")
    a("s_cbranch_scc1 P1_nodesc")
    for j in range(4):
        a(f"ds_read2_b32 v[{T0+2*j}:{T0+2*j+1}], v{T0+16+j} offset0:0 offset1:1")
    a(f"s_mul_i32 s40, s2, {256*S*4}")
    lds_count(a, T0 + 8, 4)
    for j in range(4): a(f"v_lshl_or_b32 v{T0+12+j}, v{T0+2*j+1}, 16, v{T0+2*j}")
    a(f"buffer_store_dwordx4 v[{T0+12}:{T0+15}], v1, s[20:23], s40 offen {st}")
    a("P1_nodesc:")
    a(f"s_mul_i32 s40, s3, {WREG - 1024}")
    a(f"s_add_u32 s40, s40, {9*1024}")
    a(f"v_add_u32 v{TO}, s40, v1")
    srd(a, 8, 48, E * 32)
    a(f"s_mul_i32 s41, s2, {o.pfn * 64}")
    a(f"s_sub_u32 s41, s41, {o.pfw * 64}")
    a("v_add_lshl_u32 v1, v0, s41, 7")
    if o.pp & 1: a("s_setprio 3")
    def atomics(n):
        t = T0 + 4 * (n % 2)
        if n == 12:
            a(f"ds_add_rtn_u32 v{t}, v{KP0+24}, v3 offset:{CN}"); return 1
        for j in range(4):
            kp = KP0 + 2 * n + j // 2
            if j % 2 == 0: a(f"v_and_b32 v{t+j}, 0xffff, v{kp}")
            else: a(f"v_lshrrev_b32 v{t+j}, 16, v{kp}")
            a(f"ds_add_rtn_u32 v{t+j}, v{t+j}, v3 offset:{CN}")
        return 4
    a(f"s_cmp_ge_u32 s3, {o.asplit}")
    a("s_cbranch_scc1 P1_ang1")
    for n in range(o.an0): issue_ang(n)
    a("P1_ang1:")
    atomics(0)
    for n in range(13):
        k = atomics(n + 1) if n < 12 else 0
        if o.an0 + n < 12:
            a(f"s_cmp_ge_u32 s3, {o.asplit}")
            a(f"s_cbranch_scc1 P1_an{n}")
            issue_ang(o.an0 + n)
            a(f"P1_an{n}:")
        a(f"s_waitcnt lgkmcnt({k})")
        t = T0 + 4 * (n % 2); u = T0 + 8
        if n < 12:
            a(f"v_lshl_or_b32 v{KP0+2*n}, v{t+1}, 16, v{t}")
            a(f"v_lshl_or_b32 v{KP0+2*n+1}, v{t+3}, 16, v{t+2}")
        else:
            a(f"v_mov_b32 v{u}, 0xffff")
            a(f"v_cndmask_b32 v{KP0+24}, v{u}, v{t}, vcc")
    a(f"s_cmp_lt_u32 s3, {o.asplit}")
    a("s_cbranch_scc1 P1_ang2")
    for n in range(12): issue_ang(n)
    a("P1_ang2:")
    a("s_lshl_b32 s35, s35, 16")
    a("s_cmp_eq_u32 s35, 1.0")
    a("s_cbranch_scc1 P1_f1")
    a("s_waitcnt vmcnt(0)")
    for n in range(25):
        cr = C0 + n; t = T0
        a(f"v_lshlrev_b32 v{t}, 16, v{cr}")
        a(f"v_and_b32 v{t+1}, 0xffff0000, v{cr}")
        a(f"v_mul_f32 v{t}, s35, v{t}")
        a(f"v_mul_f32 v{t+1}, s35, v{t+1}")
        a(f"v_cvt_pk_bf16_f32 v{cr}, v{t}, v{t+1}")
    a("P1_f1:")
    lds_wait(a, T0, 4, S, "q", 0)
    def addrs(n, h, u, base):
        a(f"v_mad_u32_u16 v{u}, v{KP0+n}, 6, {base}" + (" op_sel:[1,0,0,0]" if h else ""))
        a(f"v_and_b32 v{u+1}, 2, v{u}")
        a(f"v_sub_u32 v{u}, v{u}, v{u+1}")
        a(f"v_sub_u32 v{u+1}, v{u}, v{u+1}")
    for n in range(25):
        cr = C0 + n; t = T0 + 6 * (n % 2)
        if o.pp & 1 and n in (0, 9, 17): a(f"s_setprio {2 - n // 8}")
        if o.pf0 == 3:
            if n == 0: a("s_waitcnt vmcnt(0)")
            for w in range(o.pfn):
                if o.pfs + (w * o.pfd) // 2 == n:
                    a(f"s_cmp_lg_u32 s3, {o.pfw + w}")
                    a(f"s_cbranch_scc1 P1_npf{w}")
                    a("buffer_load_dword v1, v1, s[8:11], 0 offen")
                    a(f"P1_npf{w}:")
        elif n % 2 == 0 and n < 24: a(f"s_waitcnt vmcnt({11 - n // 2})")
        if n == 0:
            a(f"s_cmp_ge_u32 s3, {S}")
            a("s_cbranch_scc1 P1_noe")
            a("s_waitcnt vmcnt(0)")
            lds_ticket(a, 2, 8)
            a(f"s_cmp_lg_u32 s40, {S-1}")
            a("s_cbranch_scc1 P1_noe")
            arrive(a, 2, LV_E)
            a("s_mov_b32 s44, 1")
            a("P1_noe:")
        if n == 14:
            a("s_cmp_eq_u32 s44, 0")
            a("s_cbranch_scc1 P2_norele")
            release(a, 2, LV_E, "e")
        a(f"v_lshlrev_b32 v{t}, 16, v{cr}")
        a(f"v_and_b32 v{t+1}, 0xffff0000, v{cr}")
        a(f"v_mul_f32 v{t}, 0.15915494, v{t}")
        a(f"v_mul_f32 v{t+1}, 0.15915494, v{t+1}")
        a(f"v_fract_f32 v{t}, v{t}")
        a(f"v_fract_f32 v{t+1}, v{t+1}")
        a(f"v_cos_f32 v{t}, v{t}")
        a(f"v_cos_f32 v{t+1}, v{t+1}")
        for h in range(2 if n < 24 else 1):
            u = t + 2 + 2 * h
            addrs(n, h, u, 0)
            a(f"ds_write_b32 v{u}, v{W0+2*n+h} offset:{STG}")
        a(f"v_cvt_pk_bf16_f32 v{cr}, v{t}, v{t+1}")
        a(f"ds_write_b16 v{t+3}, v{cr} offset:{STG+8}")
        if n < 24: a(f"ds_write_b16_d16_hi v{t+5}, v{cr} offset:{STG+8}")
    a(f"s_mul_i32 s40, s2, {TILE_BYTES}")
    srd(a, 20, 32, CHA * 6, "s40")
    a(f"v_subrev_u32 v2, {9*1024}, v{TO}")
    a("s_mov_b32 s44, 0")
    if o.pf0 == 2:
        a(f"s_sub_u32 s40, s3, {o.pfw}")
        a(f"s_cmp_ge_u32 s40, {o.pfn}")
        a("s_cbranch_scc1 P1_nopf0")
        a("buffer_load_dword v1, v1, s[8:11], 0 offen")
        a("P1_nopf0:")
    a("s_waitcnt lgkmcnt(0)")
    a("s_barrier")
    P.stamp()
    a(f"s_cmp_lg_u32 s3, 15")
    a("s_cbranch_scc1 P1_noclr")
    a(f"v_and_b32 v3, 15, v0")
    a(f"v_lshlrev_b32 v3, 2, v3")
    a(f"v_add_u32 v3, {XW}, v3")
    a(f"v_mov_b32 v{T0}, 0")
    a(f"ds_write_b32 v3, v{T0}")
    a("P1_noclr:")
    def rd(k):
        t = T0 + 4 * (k % 6)
        a(f"ds_read_b128 v[{t}:{t+3}], v2 offset:{STG + 1024 * (9 - k)}")
    def store(k):
        t = T0 + 4 * (k % 6)
        if k == 0: a("s_mov_b64 exec, 0xffff")
        a(f"buffer_store_dwordx4 v[{t}:{t+3}], v{TO}, s[20:23], 0 offen {st}")
        if k == 0: a("s_mov_b64 exec, -1")
        a(f"v_subrev_u32 v{TO}, 1024, v{TO}")
    NB = o.nb
    for k in range(6): rd(k)
    for k in range(NB):
        a(f"s_waitcnt lgkmcnt({min(5, 9-k)})")
        store(k)
        if k + 6 < 10: rd(k + 6)
    a(f"s_waitcnt vmcnt({NB}) lgkmcnt(0)")
    a(f"s_cmp_ge_u32 s3, {o.nd}")
    a("s_cbranch_scc1 P1_nod")
    for k in range(NB, 10): store(k)
    a("s_waitcnt vmcnt(0)")
    lds_ticket(a, T0, 0)
    a(f"s_cmp_lg_u32 s40, {o.nd-1}")
    a("s_cbranch_scc1 P1_nod")
    arrive(a, T0, LV_D)
    a("s_mov_b32 s44, 1")
    a("P1_nod:")
    a(f"s_mov_b32 s45, {(-CHA*6) & 0xffffffff}")
    a("s_barrier")
    P.stamp()
    nnow = NB
    for n in range(25):
        if o.pp & 2 and n in (0, 9, 17): a(f"s_setprio {2 - n // 8}")
        if o.pp & 4 and n in (0, 9, 17):
            if n == 0: a("s_setprio 3")
            a("s_cmp_lt_u32 s3, 4")
            a(f"s_cbranch_scc1 P1_pr{n}")
            a(f"s_setprio {2 - n // 8}")
            a(f"P1_pr{n}:")
        if n == 1:
            a("s_cmp_eq_u32 s44, 0")
            a("s_cbranch_scc1 P2_noreld")
            release(a, T0, LV_D, "d")
        if n % o.dstep == 1 and nnow < 10:
            a(f"s_cmp_lt_u32 s3, {o.nd}")
            a(f"s_cbranch_scc1 P1_ns{n}")
            store(nnow); nnow += 1
            a(f"P1_ns{n}:")
        for h in range(2 if n < 24 else 1):
            u = 2 * h
            addrs(n, h, u, "s45")
            a(f"ds_write_b32 v{u}, v{W0+2*n+h} offset:{STG}")
            a(f"ds_write_b16{'_d16_hi' if h else ''} v{u+1}, v{C0+n} offset:{STG+8}")
    assert nnow == 10
    lds_count(a, 4, XW + X_S)
    a(f"s_mul_i32 s40, s2, {TILE_BYTES}")
    a(f"s_add_u32 s40, s40, {CHA*6}")
    srd(a, 20, 32, (TILE_N - CHA) * 6, "s40")
    return XW, STG

LV_A, LV_B, LV_D, LV_E = 0, 1, 2, 3
X_A, X_S, X_X, X_I, X_B, X_R, X_C, X_H, X_CW, X_PW = 0, 4, 8, 12, 16, 20, 24, 28, 32, 48

def arrive(a, t, level):
    a(f"v_mov_b32 v{t}, 0")
    a(f"v_mov_b32 v{t+1}, 1")
    a("s_mov_b64 exec, 1")
    a(f"buffer_atomic_add v{t+1}, v{t}, s[24:27], 0 offen offset:{32*level} sc0 sc1")
    a("s_mov_b64 exec, -1")

def release(a, t, level, tag):
    a("s_waitcnt vmcnt(0)")
    a(f"v_readfirstlane_b32 s40, v{t+1}")
    a("s_cmp_lg_u32 s40, 255")
    a(f"s_cbranch_scc1 P2_norel{tag}")
    a("s_mov_b64 exec, 1")
    a(f"buffer_store_dword v{t+1}, v{t}, s[24:27], 0 offen offset:{128+4*level} sc1")
    a("s_mov_b64 exec, -1")
    a(f"P2_norel{tag}:")

def lds_count(a, t, word):
    a(f"v_mov_b32 v{t}, {word}")
    a(f"v_mov_b32 v{t+1}, 1")
    a("s_mov_b64 exec, 1")
    a("s_waitcnt lgkmcnt(0)")
    a(f"ds_add_u32 v{t}, v{t+1}")
    a("s_mov_b64 exec, -1")

def lds_wait(a, t, word, n, tag, sleep):
    a(f"v_mov_b32 v{t}, {word}")
    a(f"P2_lw{tag}:")
    a(f"ds_read_b32 v{t+1}, v{t}")
    a("s_waitcnt lgkmcnt(0)")
    a(f"v_readfirstlane_b32 s40, v{t+1}")
    a(f"s_cmp_ge_u32 s40, {n}")
    a(f"s_cbranch_scc1 P2_lg{tag}")
    if sleep: a(f"s_sleep {sleep}")
    guard(a)
    a(f"s_branch P2_lw{tag}")
    a(f"P2_lg{tag}:")

def lds_ticket(a, t, word):
    a(f"v_mov_b32 v{t}, {word}")
    a(f"v_mov_b32 v{t+1}, 1")
    a("s_mov_b64 exec, 1")
    a(f"ds_add_rtn_u32 v{t+1}, v{t}, v{t+1}")
    a("s_mov_b64 exec, -1")
    a("s_waitcnt lgkmcnt(0)")
    a(f"v_readfirstlane_b32 s40, v{t+1}")

def publish_a(a, t, XW, tag):
    lds_ticket(a, t, XW + X_A)
    a("s_cmp_lg_u32 s40, 15")
    a(f"s_cbranch_scc1 P2_norel{tag}")
    arrive(a, t, LV_A)
    release(a, t, LV_A, tag)

def gen_p2(o, a, P, XW, STG):
    S = o.S
    uid = [0]
    LUT = 2048; CB = 2560; WSZ = NG * WSTR
    RBSZ = 100 * 512
    X1 = RBSZ + 32
    WT = CB + WSZ // 2 + 16
    WB = CB + X1 // 2 + WSZ // 2 + 16
    RB_AT = (WB, WB + WSZ + 32)
    K0 = (WB - STG) // 12288; K1 = (WB + X1 - STG) // 12288
    assert STG + 12288 * (K0 + 4) >= WB + WSZ + 32 and STG + 12288 * K1 >= WB + WSZ + 32 and STG + 12288 * (K1 + 4) >= WB + X1 + WSZ + 64
    SC = STG + 12288 * (K1 + 4); TSZ = 1088
    assert WT + 3072 <= CB + X1 // 2 and WB < 65536 and SC + 12 * TSZ <= XW and WB % 16 == 0 and X1 % 32 == 0
    perm = [int(c) for c in o.xt]
    assert sorted(perm) == list(range(8))
    a("s_and_b32 s46, s2, 7")
    a("s_lshl_b32 s46, s46, 2")
    a(f"s_lshr_b32 s46, {sum(p << (4 * k) for k, p in enumerate(perm))}, s46")
    a("s_and_b32 s46, s46, 7")
    a("s_lshl_b32 s46, s46, 5")
    a("s_lshr_b32 s47, s2, 3")
    a("s_add_u32 s46, s46, s47")
    a("v_mbcnt_lo_u32_b32 v12, -1, 0")
    a("v_mbcnt_hi_u32_b32 v12, -1, v12")
    a("s_lshl_b32 s40, s3, 6")
    a("v_add_u32 v0, s40, v12")
    srd(a, 8, 48, E * 32)
    srd(a, 12, 32, NT * TILE_BYTES)
    srd(a, 16, 32, NT * NT * S * 4, WS_DESC)
    a("s_mov_b64 s[6:7], s[86:87]")
    if o.prof: a("s_mov_b32 s71, 0")
    a("s_mov_b32 s48, 0")
    a("s_cmp_ge_u32 s3, 4")
    a("s_cbranch_scc1 P2_consumer")
    def twait(body):
        if o.prof == 1:
            a("s_waitcnt lgkmcnt(0)")
            a("s_memtime s[56:57]")
            a("s_waitcnt lgkmcnt(0)")
        body()
        if o.prof == 1:
            a("s_memtime s[58:59]")
            a("s_waitcnt lgkmcnt(0)")
            a("s_sub_u32 s56, s58, s56")
            a("s_add_u32 s71, s71, s56")
    D0 = 40; R0 = 64
    vU12 = 1; vTile = 2; vInc = 3; v3FC = 4; vCb = 5; vZ = 6; v2U2 = 7; v2U1 = 8; vSg = 9
    n2c = 10; a0c = 11; n2n = 13; a0n = 14
    vca = 16; vcb = 17; vra = 18; vrb = 19; vwa = 20; vwb = 21; vha = 22; vhb = 23; vt = 24; vt2 = 25; vPW = 26; vS = 28
    ODDC = 52; MORC = 54; ODDN = 84; MORN = 86; ROW0 = 82; M0_ = 88; M1_ = 90
    KSL, BSL = slicing(o)
    L0 = -(-(1 << 26) // KSL) // 4 + 1
    def warm(sl, part):
        nt = -(-L0 // 512); n0 = nt * o.wsh // 100; n1 = nt - n0
        uid[0] += 1
        a(f"s_mul_i32 s40, {sl}, {L0 - 1}")
        a(f"s_lshr_b32 s41, s2, 1")
        a(f"s_lshl_b32 s41, s41, 2")
        a(f"s_add_u32 s41, s41, {part}")
        a(f"s_mul_i32 s41, s41, {nt}")
        a(f"s_add_u32 s40, s40, s41")
        a(f"s_add_u32 s40, s40, {(o.swo // 4 - BSL // KSL // 4) & 0xffffffff}")
        a("s_bitcmp1_b32 s2, 0")
        a(f"s_cselect_b32 s41, {n0}, 0")
        a(f"s_add_u32 s40, s40, s41")
        a(f"s_cmp_ge_u32 s40, {E // 4}")
        a(f"s_cbranch_scc1 P2_we{uid[0]}")
        a(f"s_min_u32 s40, s40, {E // 4 - n1}")
        a(f"s_lshl_b32 s40, s40, 7")
        a(f"s_add_u32 s36, s8, s40")
        a(f"s_addc_u32 s37, s9, 0")
        for j in range(n1):
            if j == n0:
                a("s_bitcmp0_b32 s2, 0")
                a(f"s_cbranch_scc1 P2_we{uid[0]}")
            a(f"s_load_dwordx2 s[38:39], s[36:37], {128*j+60}")
        a(f"P2_we{uid[0]}:")
    def poll(level, tag, meanwhile=None):
        a("s_mov_b32 s51, 0")
        a(f"P2_poll{tag}:")
        a(f"buffer_load_dword v{vt}, v{vZ}, s[24:27], 0 offen offset:{128+4*level} sc1")
        a("s_add_u32 s51, s51, 1")
        a(f"s_cmp_gt_u32 s51, {o.maxpoll}")
        a("s_cbranch_scc1 P2_giveup")
        if meanwhile: a(f"s_call_b64 s[34:35], {meanwhile}")
        a("s_waitcnt vmcnt(0)")
        a(f"v_cmp_eq_u32 vcc, 0, v{vt}")
        a(f"s_cbranch_vccz P2_polled{tag}")
        a(f"s_sleep {o.gsleep}")
        a(f"s_branch P2_poll{tag}")
        a(f"P2_polled{tag}:")
    def ensure():
        uid[0] += 1; u = uid[0]
        a(f"v_cmp_lt_u32 vcc, s45, v{D0}")
        a(f"s_cbranch_vccz P2_have{u}")
        a("s_call_b64 s[42:43], P2_ensure")
        a(f"P2_have{u}:")
    def prep():
        ensure()
        a(f"v_bfe_u32 v{vt}, v{D0}, 1, 15")
        a(f"v_mad_u32_u24 v{a0n}, v{vt}, 12, v{vTile}")
        a(f"v_lshrrev_b32 v{n2n}, 16, v{D0}")
        a(f"v_and_b32 v{vt}, 0xfffe, v{D0}")
        a(f"v_sub_u32 v{n2n}, v{n2n}, v{vt}")
        a(f"v_and_b32 v{vt}, 1, v{D0}")
        a(f"v_cmp_eq_u32 s[{ODDN}:{ODDN+1}], 1, v{vt}")
        a(f"v_cmp_lt_u32 s[{MORN}:{MORN+1}], 32, v{n2n}")
        for k in range(S): a(f"v_mov_b32 v{D0+k}, v{D0+k+1}")
    def issue(i):
        t = (vt, vca)[i % 2]
        a(f"v_add_u32_dpp v{t}, v{a0n}, v{vU12} row_newbcast:{i} row_mask:0xf bank_mask:0xf")
        a(f"v_sub_u32_dpp v{t+1}, v{n2n}, v{v2U1} row_newbcast:{i} row_mask:0xf bank_mask:0xf")
        a(f"v_bitop3_b32 v{t}, v{t+1}, v{vSg}, v{t} bitop3:0xea")
        r = R0 + 4 * i
        a(f"buffer_load_dwordx3 v[{r}:{r+2}], v{t}, s[12:15], 0 offen sc1")
    def unhold():
        a("s_lshl_b32 s40, 1, s3")
        a(f"v_mov_b32 v{vt}, {XW + X_H}")
        a(f"v_mov_b32 v{vt2}, s40")
        a("s_mov_b64 exec, 1")
        a(f"ds_or_b32 v{vt}, v{vt2}")
        a("s_mov_b64 exec, -1")
    def pubb2():
        a("s_cmp_lg_u32 s48, 3")
        a("s_cbranch_scc1 P2_next1")
        a("s_call_b64 s[96:97], P2_pubb")
        a("P2_next1:")
    def warm_step():
        if o.sw:
            a(f"s_sub_u32 s4, s49, {o.swd}")
            a(f"s_cmp_lt_u32 s4, {o.sw0}")
            a("s_cbranch_scc1 P2_nowarm")
            a(f"s_cmp_ge_u32 s4, {-(-(E - o.swo) // (4 * (L0 - 1)))}")
            a("s_cbranch_scc1 P2_nowarm")
            warm("s4", "s3")
            a("P2_nowarm:")
    def next_round(regular):
        a("s_call_b64 s[42:43], P2_next")
        if regular:
            ensure()
            warm_step()
        a("s_call_b64 s[42:43], P2_wait")
    def wait_buffer(tag):
        a("s_add_u32 s50, s48, 1")
        a("s_lshr_b32 s50, s50, 1")
        a("s_mul_i32 s50, s50, 12")
        a("s_and_b32 s51, s48, 1")
        a("s_lshl_b32 s51, s51, 2")
        a(f"s_add_u32 s51, s51, {XW + X_CW}")
        a(f"v_mov_b32 v{vt2}, s51")
        a(f"P2_pw{tag}:")
        a(f"ds_read_b32 v{vt}, v{vt2}")
        a("s_waitcnt lgkmcnt(0)")
        a(f"v_readfirstlane_b32 s51, v{vt}")
        a("s_cmp_ge_u32 s51, s50")
        a(f"s_cbranch_scc1 P2_pg{tag}")
        a(f"s_sleep {o.psleep}")
        guard(a)
        a(f"s_branch P2_pw{tag}")
        a(f"P2_pg{tag}:")
    a("s_setprio 3")
    a("s_waitcnt vmcnt(0)")
    publish_a(a, vt, XW, "ap")
    a(f"s_lshl_b32 s47, s3, 6")
    a(f"v_add_u32 v{vTile}, s47, v12")
    a(f"s_lshl_b32 s50, s3, 2")
    a(f"s_add_u32 s50, s50, {XW + X_PW}")
    a(f"v_mov_b32 v{vPW}, s50")
    a(f"v_lshlrev_b32 v15, 8, v{vTile}")
    a(f"v_add_u32 v15, s46, v15")
    a(f"v_mul_u32_u24 v15, {4*S}, v15")
    a(f"v_mov_b32 v{D0+S}, 0")
    a(f"v_mul_u32_u24 v{vTile}, {TILE_BYTES}, v{vTile}")
    a(f"v_and_b32 v{vt}, 15, v12")
    a(f"v_mul_u32_u24 v{vU12}, 12, v{vt}")
    a(f"v_lshl_add_u32 v{v2U1}, v{vt}, 1, 1")
    a(f"v_add_u32 v{v2U2}, 1, v{v2U1}")
    a(f"v_mov_b32 v{vInc}, {(1 << RS) + 4}")
    a(f"v_mov_b32 v{v3FC}, 0x3fc")
    a(f"v_mov_b32 v{vSg}, 0x80000000")
    for r in (vCb, vZ, vra, vrb, vS, vS + 1): a(f"v_mov_b32 v{r}, 0")
    a("s_mov_b32 s49, 0")
    a(f"s_mov_b32 s5, {ROVF}")
    a(f"s_mov_b32 s{ROW0}, 0x00010001")
    a(f"s_mov_b32 s{ROW0+1}, 0x00010001")
    a(f"s_mov_b32 s45, {((o.nd * WREG // 12 * 2) << 16) | 0xffff}")
    nsave = P.n
    P.stamp()
    poll(LV_E, "e")
    k = 0
    while k < S:
        w = min(4, S - k)
        sfx = {4: "x4", 3: "x3", 2: "x2", 1: ""}[w]
        dst = f"v[{D0+k}:{D0+k+w-1}]" if w > 1 else f"v{D0+k}"
        a(f"buffer_load_dword{sfx} {dst}, v15, s[16:19], 0 offen offset:{4*k} sc1")
        k += w
    poll(LV_D, "d")
    P.stamp()
    prep()
    for i in range(16): issue(i)
    P.stamp()
    def masks(i):
        a(f"v_sub_co_u32_dpp v{vt}, vcc, v{n2c}, v{v2U1} row_newbcast:{i} row_mask:0xf bank_mask:0xf")
        a(f"s_and_b64 s[92:93], s[{ODDC}:{ODDC+1}], s[{ROW0}:{ROW0+1}]")
        a(f"s_nor_b64 s[{M0_}:{M0_+1}], vcc, s[92:93]")
        a(f"v_sub_co_u32_dpp v{vt2}, vcc, v{n2c}, v{v2U2} row_newbcast:{i} row_mask:0xf bank_mask:0xf")
        a(f"s_lshr_b64 s[{ODDC}:{ODDC+1}], s[{ODDC}:{ODDC+1}], 1")
        a(f"s_not_b64 s[{M1_}:{M1_+1}], vcc")
    def place(tg, i):
        r = R0 + 4 * i
        a(f"P2_retry{tg}{i}:")
        a(f"v_lshrrev_b32 v{vca}, 18, v{r}")
        a(f"v_lshrrev_b32 v{vcb}, 18, v{r+1}")
        a(f"v_bitop3_b32 v{vca}, v{vca}, v{v3FC}, v{vCb} bitop3:0xea")
        a(f"v_bitop3_b32 v{vcb}, v{vcb}, v{v3FC}, v{vCb} bitop3:0xea")
        a(f"s_mov_b64 exec, s[{M0_}:{M0_+1}]")
        a(f"ds_add_rtn_u32 v{vra}, v{vca}, v{vInc}")
        a(f"s_mov_b64 exec, s[{M1_}:{M1_+1}]")
        a(f"ds_add_rtn_u32 v{vrb}, v{vcb}, v{vInc}")
        a(f"s_mov_b64 exec, -1")
        a(f"v_and_b32 v{vwa}, 0xf00fffff, v{r}")
        a(f"v_and_b32 v{vwb}, 0xf00fffff, v{r+1}")
        a("s_waitcnt lgkmcnt(0)")
        a(f"v_and_b32 v{vra}, {RMASK}, v{vra}")
        a(f"v_and_b32 v{vrb}, {RMASK}, v{vrb}")
        a(f"v_lshrrev_b32 v{vha}, 1, v{vra}")
        a(f"v_lshrrev_b32 v{vhb}, 1, v{vrb}")
        a(f"v_or_b32 v{vt}, v{vra}, v{vrb}")
        a(f"v_cmp_lt_u32 vcc, {ROVF}, v{vt}")
        a(f"s_mov_b64 exec, s[{M0_}:{M0_+1}]")
        a(f"ds_write_b32 v{vra}, v{vwa} offset:{WB}")
        a(f"ds_write_b16 v{vha}, v{r+2} offset:{CB}")
        a(f"s_mov_b64 exec, s[{M1_}:{M1_+1}]")
        a(f"ds_write_b32 v{vrb}, v{vwb} offset:{WB}")
        a(f"ds_write_b16_d16_hi v{vhb}, v{r+2} offset:{CB}")
        a(f"s_mov_b64 exec, -1")
        a(f"s_cbranch_vccnz P2_stall{tg}{i}")
        a(f"s_and_b64 s[92:93], s[{MORC}:{MORC+1}], s[{ROW0}:{ROW0+1}]")
        a(f"s_cbranch_scc1 P2_more{tg}{i}")
    def take_next():
        a(f"v_mov_b32 v{n2c}, v{n2n}")
        a(f"v_mov_b32 v{a0c}, v{a0n}")
        a(f"s_mov_b64 s[{ODDC}:{ODDC+1}], s[{ODDN}:{ODDN+1}]")
        a(f"s_mov_b64 s[{MORC}:{MORC+1}], s[{MORN}:{MORN+1}]")
    assert S <= 12
    CA = [R0 + 4 * i + 3 for i in range(16)]; CBr = list(range(30, 40)) + list(range(53, 59))
    vMk = 59; vOob = 60; vAcc = 61
    a(f"v_mov_b32 v{vMk}, {RMASK}")
    a(f"v_mov_b32 v{vOob}, {1 << 19}")
    def first_only(tag, body):
        a("s_cmp_lg_u32 s49, 0"); a(f"s_cbranch_scc1 P2_nf{tag}"); body(); a(f"P2_nf{tag}:")
    if o.al2:
        a(".p2align 6")
        for _ in range(o.al2 - 1): a("s_nop 0")
    a("P2_pslice:")
    if o.qpr != 3: a(f"s_setprio {o.qpr}")
    take_next()
    a(f"v_mov_b32 v{vAcc}, 0")
    for i in range(16):
        r = R0 + 4 * i
        a(f"v_sub_co_u32_dpp v{vt}, vcc, v{n2c}, v{v2U1} row_newbcast:{i} row_mask:0xf bank_mask:0xf")
        a(f"s_and_b64 s[92:93], s[{ODDC}:{ODDC+1}], s[{ROW0}:{ROW0+1}]")
        a(f"s_or_b64 s[{M0_}:{M0_+1}], vcc, s[92:93]")
        a(f"v_sub_co_u32_dpp v{vt2}, vcc, v{n2c}, v{v2U2} row_newbcast:{i} row_mask:0xf bank_mask:0xf")
        a(f"s_lshr_b64 s[{ODDC}:{ODDC+1}], s[{ODDC}:{ODDC+1}], 1")
        a(f"s_waitcnt vmcnt({15 - i})")
        a(f"v_lshrrev_b32 v{vca}, 18, v{r}")
        a(f"v_lshrrev_b32 v{vcb}, 18, v{r+1}")
        a(f"v_bitop3_b32 v{vca}, v{vca}, v{v3FC}, v{vCb} bitop3:0xea")
        a(f"v_bitop3_b32 v{vcb}, v{vcb}, v{v3FC}, v{vCb} bitop3:0xea")
        a(f"v_cndmask_b32 v{CA[i]}, v{vca}, v{vOob}, s[{M0_}:{M0_+1}]")
        a(f"v_cndmask_b32 v{CBr[i]}, v{vcb}, v{vOob}, vcc")
    if o.qpr != 3: a("s_setprio 3")
    if o.wlate: warm_step()
    def w0():
        lds_wait(a, vt, XW + X_I, 12, "i", 1)
        P.stamp()
    first_only("i", w0)
    a("s_call_b64 s[42:43], P2_wait")
    if o.unb:
        if o.fpr != 3: a(f"s_setprio {o.fpr}")
        for i in range(16):
            t = 16; r = R0 + 4 * i
            a(f"ds_add_rtn_u32 v{t}, v{CA[i]}, v{vInc}")
            a(f"ds_add_rtn_u32 v{t+1}, v{CBr[i]}, v{vInc}")
            a(f"v_and_b32 v24, 0xf00fffff, v{r}")
            a(f"v_and_b32 v25, 0xf00fffff, v{r+1}")
            a("s_waitcnt lgkmcnt(0)")
            a(f"v_bitop3_b32 v{CA[i]}, v{vMk}, v{t}, v{CA[i]} bitop3:0xca")
            a(f"v_bitop3_b32 v{CBr[i]}, v{vMk}, v{t+1}, v{CBr[i]} bitop3:0xca")
            a(f"v_lshrrev_b32 v27, 1, v{CA[i]}")
            a(f"v_lshrrev_b32 v15, 1, v{CBr[i]}")
            a(f"ds_write_b32 v{CA[i]}, v24 offset:{WB}")
            a(f"ds_write_b16 v27, v{r+2} offset:{CB}")
            if o.unb == 3: a("s_waitcnt lgkmcnt(0)")
            a(f"ds_write_b32 v{CBr[i]}, v25 offset:{WB}")
            a(f"ds_write_b16_d16_hi v15, v{r+2} offset:{CB}")
            a(f"v_bitop3_b32 v{vAcc}, v{vAcc}, v{CA[i]}, v{CBr[i]} bitop3:0xfe")
            if o.unb >= 2: a("s_waitcnt lgkmcnt(0)")
        if o.fpr != 3: a("s_setprio 3")
    else:
        if o.fpr != 3: a(f"s_setprio {o.fpr}")
        def atom(b):
            for k in range(2):
                i = 2 * b + k; t = 16 + 4 * (b % 2) + 2 * k
                a(f"ds_add_rtn_u32 v{t}, v{CA[i]}, v{vInc}")
                a(f"ds_add_rtn_u32 v{t+1}, v{CBr[i]}, v{vInc}")
        atom(0)
        for b in range(8):
            if b < 7: atom(b + 1)
            a(f"s_waitcnt lgkmcnt({(4 if b < 7 else 0) + (8 if b else 0)})")
            for k in range(2):
                i = 2 * b + k; t = 16 + 4 * (b % 2) + 2 * k; r = R0 + 4 * i
                a(f"v_bitop3_b32 v{CA[i]}, v{vMk}, v{t}, v{CA[i]} bitop3:0xca")
                a(f"v_bitop3_b32 v{CBr[i]}, v{vMk}, v{t+1}, v{CBr[i]} bitop3:0xca")
                a(f"v_and_b32 v24, 0xf00fffff, v{r}")
                a(f"v_and_b32 v25, 0xf00fffff, v{r+1}")
                a(f"v_lshrrev_b32 v27, 1, v{CA[i]}")
                a(f"v_lshrrev_b32 v15, 1, v{CBr[i]}")
                a(f"ds_write_b32 v{CA[i]}, v24 offset:{WB}")
                a(f"ds_write_b16 v27, v{r+2} offset:{CB}")
                a(f"ds_write_b32 v{CBr[i]}, v25 offset:{WB}")
                a(f"ds_write_b16_d16_hi v15, v{r+2} offset:{CB}")
                a(f"v_bitop3_b32 v{vAcc}, v{vAcc}, v{CA[i]}, v{CBr[i]} bitop3:0xfe")
        if o.fpr != 3: a("s_setprio 3")
    a(f"v_cmp_lt_u32 vcc, s5, v{vAcc}")
    a(f"v_mov_b32 v{vra}, 0")
    a(f"v_mov_b32 v{vrb}, 0")
    a(f"s_or_b32 s47, s{MORC}, s{MORC+1}")
    a("s_lshr_b32 s40, s47, 16")
    a("s_or_b32 s47, s47, s40")
    a("s_cmp_lg_u64 vcc, 0")
    a("s_cselect_b32 s47, -1, s47")
    a("s_and_b32 s47, s47, 0xffff")
    a("s_cbranch_scc1 P2_sweep")
    a("P2_swept:")
    if o.prof == 1: first_only("s", P.stamp)
    a("s_add_u32 s49, s49, 1")
    a(f"s_cmp_ge_u32 s49, {S}")
    a("s_cbranch_scc1 P2_pdone")
    def publish(tag, upto):
        a(f"s_cmp_ge_u32 s48, {upto}")
        a(f"s_cbranch_scc1 P2_ff{tag}")
        a("s_call_b64 s[42:43], P2_next")
        a(f"P2_ff{tag}:")
    publish("0", "s49" if o.pub == 0 else o.pub0)
    prep()
    for i in range(16): issue(i)
    if o.pub == 1: publish("1", "s49")
    if o.pub == 4:
        a("s_waitcnt vmcnt(0)")
        publish("1", "s49")
    if not o.wlate: warm_step()
    if o.dl1: a(f"s_sleep {o.dl1}")
    if o.pub == 2: publish("1", "s49")
    ensure()
    pubb2()
    a("s_branch P2_pslice")
    a("P2_next:")
    a("s_add_u32 s48, s48, 1")
    if o.maxr:
        a(f"s_cmp_gt_u32 s48, {o.maxr}")
        a("s_cbranch_scc1 P2_giveup")
    a(f"v_mov_b32 v{vt}, s48")
    a("s_waitcnt lgkmcnt(0)")
    a(f"ds_write_b32 v{vPW}, v{vt}")
    a(f"v_xor_b32 v{vCb}, 1024, v{vCb}")
    a("s_setpc_b64 s[42:43]")
    a("P2_wait:")
    twait(lambda: wait_buffer("n"))
    a("s_cmp_lg_u32 s48, 3")
    a("s_cbranch_scc1 P2_next2")
    a("s_call_b64 s[96:97], P2_pubb")
    a("P2_next2:")
    a("s_setpc_b64 s[42:43]")
    a("P2_pubb:")
    lds_ticket(a, vS, XW + X_C)
    a("s_cmp_lg_u32 s40, 0")
    a("s_cbranch_scc1 P2_norelb")
    lds_wait(a, vS, XW + X_B, 12, "b", 1)
    arrive(a, vS, LV_B)
    release(a, vS, LV_B, "b")
    a("s_setpc_b64 s[96:97]")
    a("P2_ensure:")
    poll(LV_A, "a")
    a(f"s_mov_b32 s45, {(CHA << 16) | 0xffff}")
    a(f"v_cmp_lt_u32 vcc, s45, v{D0}")
    a("s_cbranch_vccz P2_ens1")
    unhold()
    a("s_call_b64 s[96:97], P2_pubb")
    poll(LV_B, "b")
    a("s_mov_b32 s45, -1")
    a("P2_ens1:")
    a("s_setpc_b64 s[42:43]")
    for tg, i in [(t_, i_) for t_ in (("f",) if o.burst else ("", "f")) for i_ in range(16)]:
        r = R0 + 4 * i
        a(f"P2_stall{tg}{i}:")
        a(f"v_cmp_lt_u32 s[{M0_}:{M0_+1}], s5, v{vra}")
        a(f"v_cmp_lt_u32 s[{M1_}:{M1_+1}], s5, v{vrb}")
        next_round(False)
        a(f"s_branch P2_retry{tg}{i}")
        a(f"P2_more{tg}{i}:")
        a(f"s_lshl_b64 exec, s[{ROW0}:{ROW0+1}], {i}")
        a(f"v_max_u32 v{n2c}, 32, v{n2c}")
        a(f"v_subrev_u32 v{n2c}, 32, v{n2c}")
        a(f"v_add_u32 v{a0c}, 192, v{a0c}")
        a(f"s_mov_b64 exec, -1")
        a(f"v_sub_u32_dpp v{vt2}, v{n2c}, v{v2U1} row_newbcast:{i} row_mask:0xf bank_mask:0xf")
        a(f"v_add_u32_dpp v{vt}, v{a0c}, v{vU12} row_newbcast:{i} row_mask:0xf bank_mask:0xf")
        a(f"v_bitop3_b32 v{vt}, v{vt2}, v{vSg}, v{vt} bitop3:0xea")
        a(f"buffer_load_dwordx3 v[{r}:{r+2}], v{vt}, s[12:15], 0 offen sc1")
        a(f"v_cmp_lt_u32 vcc, 32, v{n2c}")
        a(f"s_lshr_b64 s[92:93], vcc, {i}")
        a(f"s_and_b64 s[92:93], s[92:93], s[{ROW0}:{ROW0+1}]")
        a(f"s_andn2_b64 s[{MORC}:{MORC+1}], s[{MORC}:{MORC+1}], s[{ROW0}:{ROW0+1}]")
        a(f"s_or_b64 s[{MORC}:{MORC+1}], s[{MORC}:{MORC+1}], s[92:93]")
        a(f"v_sub_co_u32_dpp v{vt2}, vcc, v{n2c}, v{v2U2} row_newbcast:{i} row_mask:0xf bank_mask:0xf")
        a(f"s_not_b64 s[{M1_}:{M1_+1}], vcc")
        a(f"v_sub_co_u32_dpp v{vt2}, vcc, v{n2c}, v{v2U1} row_newbcast:{i} row_mask:0xf bank_mask:0xf")
        a(f"s_not_b64 s[{M0_}:{M0_+1}], vcc")
        a("s_waitcnt vmcnt(0)")
        a(f"s_branch P2_retry{tg}{i}")
    for i in range(16):
        a(f"P2_fix{i}:")
        a(f"s_bitset0_b32 s47, {i}")
        a(f"v_cmp_lt_u32 vcc, 32, v{n2c}")
        a(f"v_cmp_lt_u32 s[{M0_}:{M0_+1}], s5, v{CA[i]}")
        a(f"v_cmp_lt_u32 s[{M1_}:{M1_+1}], s5, v{CBr[i]}")
        a(f"s_lshr_b64 s[{MORC}:{MORC+1}], vcc, {i}")
        place("f", i)
        if i < 15: a("s_branch P2_sweep")
    a("P2_sweep:")
    for i in range(16):
        a(f"s_bitcmp1_b32 s47, {i}")
        a(f"s_cbranch_scc1 P2_fix{i}")
    a("s_branch P2_swept")
    a("P2_giveup:")
    unhold()
    a("P2_pdone:")
    a("s_add_u32 s48, s48, 0x40000001")
    a(f"v_mov_b32 v{vt}, s48")
    a("s_waitcnt lgkmcnt(0)")
    a(f"ds_write_b32 v{vPW}, v{vt}")
    a(f"s_setprio {o.eprio}")
    if o.sw and o.swd:
        warm(S - 1, "s3")
        a("s_waitcnt lgkmcnt(0)")
    a("s_load_dwordx2 s[6:7], s[0:1], 24")
    a("s_load_dwordx2 s[34:35], s[0:1], 40")
    a("s_load_dwordx8 s[36:43], s[0:1], 56")
    DS = 30; CEN = 56; RB0 = 64; t = 60; X = 1
    a("v_and_b32 v13, 15, v12")
    a("v_lshrrev_b32 v14, 4, v12")
    a(f"v_lshlrev_b32 v{X}, 7, v14")
    a(f"v_lshl_add_u32 v{X}, v13, 1, v{X}")
    a(f"v_and_b32 v{X+1}, 0xff, v{X}")
    a(f"v_and_b32 v{X+2}, 1, v14")
    a(f"v_lshlrev_b32 v{X+2}, 3, v{X+2}")
    a(f"v_lshrrev_b32 v{X+3}, 1, v14")
    a(f"v_lshlrev_b32 v{X+3}, 10, v{X+3}")
    a(f"v_lshl_add_u32 v{X+3}, v13, 1, v{X+3}")
    a("s_and_b32 s47, s46, 31")
    a("s_lshl_b32 s47, s47, 5")
    a(f"v_add_u32 v{X+3}, s47, v{X+3}")
    a(f"v_cmp_gt_u32 s[88:89], 32, v12")
    a("s_waitcnt vmcnt(0) lgkmcnt(0)")
    a("s_lshr_b32 s47, s46, 5")
    a(f"s_mul_i32 s47, s47, {CL * 2}")
    srd(a, 20, 6, CL * 2, "s47")
    srd(a, 28, 42, 512)
    srd(a, 12, 38, 256)
    srd(a, 16, 36, 256)
    srd(a, 52, 34, 16)
    srd(a, 84, 40, 512)
    for c in range(4): a(f"buffer_load_ushort v{CEN+c}, v{X+2}, s[52:55], 0 offen offset:{2*c}")
    a("s_mul_i32 s47, s3, 25")
    for k in range(25):
        a("s_mul_i32 s50, s47, 57")
        a("s_lshr_b32 s50, s50, 9")
        a("s_min_u32 s50, s50, 4")
        a("s_lshl_b32 s51, s47, 1")
        a("s_sub_u32 s50, s51, s50")
        a("s_lshl_b32 s50, s50, 10")
        a(f"v_add_u32 v{DS+k}, s50, v{X+3}")
        a("s_add_u32 s47, s47, 1")
        a(f"buffer_load_ushort v{DS+k}, v{DS+k}, s[20:23], 0 offen")
    assert all((n * 57) >> 9 == n // 9 for n in range(45))
    Y = 116
    for c in range(4): a(f"buffer_load_ushort v{Y+c}, v{X}, s[28:31], 0 offen offset:{32*c}")
    for c in range(4): a(f"buffer_load_ushort v{Y+4+c}, v{X+1}, s[12:15], 0 offen offset:{32*c}")
    for c in range(4): a(f"buffer_load_ushort v{Y+8+c}, v{X+1}, s[16:19], 0 offen offset:{32*c}")
    for c in range(4): a(f"buffer_load_ushort v{16+c}, v{X}, s[84:87], 0 offen offset:{32*c}")
    a("s_waitcnt vmcnt(40)")
    for c in range(4): a(f"v_lshlrev_b32 v{CEN+c}, 16, v{CEN+c}")
    def rnd():
        if o.nornd: return
        for u in range(2):
            a(f"v_cvt_pk_bf16_f32 v{t+2*u+1}, v{t+2*u}, v{t+2*u+1}")
        for u in range(2):
            a(f"v_lshlrev_b32 v{t+2*u}, 16, v{t+2*u+1}")
            a(f"v_and_b32 v{t+2*u+1}, 0xffff0000, v{t+2*u+1}")
    for k in range(25):
        d = DS + k
        a(f"s_waitcnt vmcnt({40 - k})")
        a(f"v_lshlrev_b32 v{d}, 16, v{d}")
        for c in range(4): a(f"v_sub_f32 v{t+c}, v{d}, v{CEN+c}")
        rnd()
        for c in range(4): a(f"v_mul_f32 v{t+c}, v{t+c}, v{t+c}")
        rnd()
        for c in range(4): a(f"v_mul_f32 v{t+c}, 0xc1200000, v{t+c}")
        rnd()
        for c in range(4): a(f"v_mul_f32 v{t+c}, 0x3fb8aa3b, v{t+c}")
        for c in range(4): a(f"v_exp_f32 v{t+c}, v{t+c}")
        for u in range(2): a(f"v_cvt_pk_bf16_f32 v{RB0+2*k+u}, v{t+2*u}, v{t+2*u+1}")
    a("s_waitcnt vmcnt(0)")
    Z = 30
    for u in range(2):
        a(f"v_lshl_or_b32 v{Z+8+u}, v{Y+2*u+1}, 16, v{Y+2*u}")
        a(f"v_lshl_or_b32 v{Z+10+u}, v{17+2*u}, 16, v{16+2*u}")
        a(f"v_lshl_or_b32 v{Y+4+u}, v{Y+5+2*u}, 16, v{Y+4+2*u}")
        a(f"v_lshl_or_b32 v{Y+8+u}, v{Y+9+2*u}, 16, v{Y+8+2*u}")
    for u in range(2):
        a(f"v_cndmask_b32 v{Z+u}, 0, v{Y+4+u}, s[88:89]")
        a(f"v_cndmask_b32 v{Z+2+u}, v{Y+4+u}, 0, s[88:89]")
        a(f"v_cndmask_b32 v{Z+4+u}, 0, v{Y+8+u}, s[88:89]")
        a(f"v_cndmask_b32 v{Z+6+u}, v{Y+8+u}, 0, s[88:89]")
    a(f"v_lshlrev_b32 v{X}, 3, v12")
    a(f"v_add_u32 v{X+1}, {WT}, v{X}")
    a(f"v_and_b32 v{X+2}, 3, v12")
    a(f"v_lshlrev_b32 v{X+2}, 2, v{X+2}")
    a(f"v_add_u32 v{X+2}, {XW + X_PW}, v{X+2}")
    a("P2_dw:")
    a(f"ds_read_b32 v{vt}, v{X+2}")
    a("s_waitcnt lgkmcnt(0)")
    a(f"v_cmp_gt_u32 vcc, 2.0, v{vt}")
    a("s_cbranch_vccz P2_dg")
    a(f"s_sleep {o.psleep}")
    guard(a)
    a("s_branch P2_dw")
    a("P2_dg:")
    a(f"v_readlane_b32 s48, v{vt}, 0")
    for k in range(1, 4):
        a(f"v_readlane_b32 s50, v{vt}, {k}")
        a("s_max_u32 s48, s48, s50")
    a("s_and_b32 s48, s48, 0x3fffffff")
    wait_buffer("e")
    a("s_bitcmp1_b32 s48, 0")
    a(f"s_cselect_b32 s50, {RB_AT[1] - RB_AT[0]}, 0")
    a(f"s_add_u32 s50, s50, {RB_AT[0]}")
    a(f"s_mul_i32 s51, s3, {25*512}")
    a("s_add_u32 s50, s50, s51")
    a(f"v_add_u32 v{X}, s50, v{X}")
    for k in range(6): a(f"ds_write_b64 v{X+1}, v[{Z+2*k}:{Z+2*k+1}] offset:{512*k}")
    for k in range(25): a(f"ds_write_b64 v{X}, v[{RB0+2*k}:{RB0+2*k+1}] offset:{512*k}")
    lds_count(a, vt, XW + X_R)
    a("s_waitcnt lgkmcnt(0)")
    if o.prof == 1:
        P.stamp(); P.dump(32, 0x80000, 8, 3); P.n = nsave
    a("s_endpgm")
    a("P2_consumer:")
    ACC = 60; G0 = 52; B0 = 44; A2 = 28; vTw = 32; vTr = 33; vM = 24; vC = 20; vX = 16
    bA = 1; bE = 2; bC = 3; bR = 4; vH = 5; vL = 6; vCA = 7; vCI = 8; vA = 9; vE = 10
    a("s_sub_u32 s47, s3, 4")
    a("s_min_u32 s44, s47, 4")
    a("s_lshl_b32 s49, s47, 4")
    a("s_add_u32 s49, s49, s44")
    a("s_cmp_lt_u32 s47, 4")
    a("s_cselect_b32 s50, 17, 16")
    a(f"s_cselect_b32 s84, 0, {MARK & 0xffffff}")
    a(f"s_cselect_b32 s85, {17*WSTR//16-192}, {16*WSTR//16-192}")
    a("s_bfm_b64 s[92:93], s85, 0")
    a(f"v_subrev_u32 v60, 256, v0")
    a(f"v_lshlrev_b32 v60, 4, v60")
    for k in range(1, 4): a(f"v_add_u32 v{60+k}, {4*12288*k}, v60")
    lds_wait(a, vX, XW + X_S, 16, "s", o.ssleep)
    P.stamp()
    NL = o.nl; vSt = 34
    for j in range(13):
        k = 12 - j
        a(f"ds_read_b128 v[{68+4*j}:{71+4*j}], v{60+k//4} offset:{STG+12288*(k%4)}")
    a(f"v_mov_b32 v{vSt}, v63")
    q = 36
    for i in range(4): a(f"v_mov_b32 v{q+i}, {MARK}")
    a(f"v_add_u32 v61, {STG + 12288 * K0}, v60")
    a(f"v_add_u32 v62, {STG + 12288 * K1}, v60")
    for k in range(4): a(f"ds_write_b128 v61, v[{q}:{q+3}] offset:{12288 * k}")
    a("s_cmp_ge_u32 s47, 4")
    a("s_cbranch_scc1 P2_notab")
    a(f"v_and_b32 v52, 15, v12")
    a(f"v_lshrrev_b32 v53, 4, v12")
    a(f"v_lshrrev_b32 v56, 2, v52")
    a(f"v_cmp_eq_u32 vcc, v56, v53")
    a(f"v_and_b32 v56, 3, v12")
    a(f"v_lshlrev_b32 v56, 4, v56")
    a(f"v_mov_b32 v54, 0xffff")
    a(f"v_mov_b32 v55, 0")
    a(f"v_cndmask_b32 v54, 0, v54, vcc")
    a(f"v_lshlrev_b64 v[54:55], v56, v[54:55]")
    a(f"v_and_b32 v56, 1, v53")
    a(f"v_lshlrev_b32 v56, 3, v56")
    a(f"v_lshl_add_u32 v52, v52, 4, v56")
    a(f"v_lshrrev_b32 v53, 1, v53")
    a(f"v_lshl_add_u32 v52, v53, 8, v52")
    a(f"v_and_b32 v56, 255, v0")
    a(f"v_lshlrev_b32 v53, 2, v56")
    a(f"v_mul_u32_u24 v56, {WSTR}, v56")
    a(f"v_add_u32 v56, {(64 - CAP) << RS}, v56")
    a(f"v_add_u32 v57, {X1}, v56")
    a(f"ds_write_b64 v52, v[54:55] offset:{LUT}")
    a(f"ds_write_b32 v53, v56")
    a(f"ds_write_b32 v53, v57 offset:1024")
    a("P2_notab:")
    lds_count(a, vX, XW + X_I)
    a("s_waitcnt vmcnt(0)")
    publish_a(a, vX, XW, "ac")
    def store_b(j):
        a(f"buffer_store_dwordx4 v[{68+4*j}:{71+4*j}], v{vSt}, s[20:23], 0 offen {o.p1_st}")
        a(f"v_subrev_u32 v{vSt}, 12288, v{vSt}")
    if o.spr: a(f"s_setprio {o.spr}")
    for j in range(13 - NL): store_b(j)
    if o.spr: a("s_setprio 0")
    for k in range(4): a(f"ds_write_b128 v62, v[{q}:{q+3}] offset:{12288 * k}")
    lds_count(a, vX, XW + X_CW + 4)
    a("v_and_b32 v13, 15, v12")
    a("v_lshrrev_b32 v14, 4, v12")
    a(f"v_and_b32 v0, 3, v12")
    a(f"v_lshlrev_b32 v0, 2, v0")
    a(f"v_add_u32 v0, {XW + X_CW}, v0")
    a(f"s_mul_i32 s51, s49, {WSTR}")
    a(f"s_lshr_b32 s86, s51, 1")
    a(f"s_add_u32 s86, s86, {CB}")
    a(f"v_lshl_add_u32 v{bC}, v14, 4, s86")
    a(f"v_mul_u32_u24 v{vCI}, {WSTR}, v12")
    a(f"s_add_u32 s86, s51, {(64 - CAP) << RS}")
    a(f"v_add_u32 v{vCI}, s86, v{vCI}")
    a(f"s_add_u32 s51, s51, {WB}")
    a(f"v_lshl_add_u32 v{bR}, v12, 4, s51")
    a(f"v_and_b32 v{vA}, 12, v12")
    a(f"v_lshl_add_u32 v{bA}, v14, 5, v{vA}")
    a(f"v_bfe_u32 v{vA}, v12, 1, 1")
    a(f"v_lshl_add_u32 v{bA}, v{vA}, 4, v{bA}")
    a(f"v_add_u32 v{bA}, s51, v{bA}")
    a(f"v_and_b32 v{vH}, 1, v12")
    a(f"v_lshlrev_b32 v{vH}, 4, v{vH}")
    a(f"s_mul_i32 s87, s47, {TSZ}")
    a(f"s_add_u32 s87, s87, {SC}")
    a(f"v_mul_u32_u24 v{vTw}, 576, v{vA}")
    a(f"v_lshrrev_b32 v{vA}, 2, v12")
    a(f"v_lshl_add_u32 v{vTw}, v{vA}, 5, v{vTw}")
    a(f"v_add3_u32 v{vTw}, v{vTw}, v{vH}, s87")
    a(f"v_lshl_add_u32 v{vTr}, v12, 3, s87")
    a(f"v_and_b32 v{vL}, 1, v12")
    a(f"v_lshlrev_b32 v{vL}, 3, v{vL}")
    a(f"v_and_b32 v{vA}, 2, v12")
    a(f"v_lshl_add_u32 v{vL}, v{vA}, 7, v{vL}")
    a(f"v_add_lshl_u32 v{vCA}, v12, s49, 2")
    a(f"v_cmp_gt_u32 vcc, s50, v12")
    a(f"s_mov_b32 s85, {(64 - CAP + 33) << RS}")
    a("s_mov_b32 s94, 0")
    a("s_mov_b32 s95, 0xffff0000")
    a(f"v_cndmask_b32 v{vCA}, 2.0, v{vCA}, vcc")
    a(f"s_lshl_b32 s51, s49, 5")
    a("s_and_b32 s40, s46, 31")
    a(f"s_add_u32 s51, s51, s40")
    a(f"s_lshl_b32 s51, s51, 4")
    a(f"v_add_lshl_u32 v15, v13, s51, 5")
    a(f"v_lshl_add_u32 v15, v14, 3, v15")
    a(f"v_lshlrev_b32 v13, 3, v12")
    for i in range(16): a(f"v_mov_b32 v{B0+i}, 0")
    for i in range(68):
        if not 15 - NL <= i // 4 <= 14: a(f"v_mov_b32 v{ACC+i}, 0")
    a("s_lshr_b32 s40, s46, 5")
    a(f"s_mul_i32 s40, s40, {CL * 32}")
    srd(a, 28, 6, CL * 32, "s40")
    srd(a, 12, 8, CL * 32, "s40")
    def lazy(t):
        j = 13 - NL + t
        store_b(j)
        for u in range(4): a(f"v_mov_b32 v{68+4*j+u}, 0")
    lstep = {}
    for t in range(NL):
        i = o.l0 + t * o.lstep // 2
        assert i <= 14 - NL + t
        lstep.setdefault(i, []).append(t)
    if NL:
        a("s_mov_b32 s42, 1")
        P.stamp()
        a(f"v_mov_b32 v{vX+2}, {XW + X_H}")
        a("P2_pre:")
        a(f"ds_read_b32 v{vX}, v0 offset:{X_PW - X_CW}")
        a(f"ds_read_b32 v{vX+1}, v{vX+2}")
        a("s_waitcnt lgkmcnt(0)")
        a(f"v_cmp_eq_u32 vcc, 0, v{vX}")
        a("s_cbranch_vccz P2_round0")
        a(f"v_cmp_eq_u32 vcc, 0, v{vX+1}")
        a("s_cbranch_vccz P2_flush")
        a(f"s_sleep {o.csleep}")
        guard(a)
        a("s_branch P2_pre")
        a("P2_flush:")
        for t in range(NL): lazy(t)
        a("s_mov_b32 s42, 0")
    a("s_waitcnt vmcnt(0)")
    lds_count(a, vX, XW + X_B)
    if not NL: P.stamp()
    def reads1(par, i, second):
        oa = par * X1 + i * WSTR + (128 if second else 0)
        a(f"ds_read_b32 v{vA}, v{bA} offset:{oa}")
    def reads2(par, i, second):
        oc = (par * X1 + i * WSTR + (128 if second else 0)) // 2
        a(f"v_add_u32_dpp v{vE}, v{bE}, v{vL} quad_perm:[0,0,0,0] row_mask:0xf bank_mask:0xf")
        a(f"v_add_u32_dpp v{vE+1}, v{bE}, v{vL} quad_perm:[2,2,2,2] row_mask:0xf bank_mask:0xf")
        a(f"ds_read_b64_tr_b16 v[{vM}:{vM+1}], v{vE} offset:{LUT}")
        a(f"ds_read_b64_tr_b16 v[{vM+2}:{vM+3}], v{vE+1} offset:{LUT}")
        a(f"ds_read_b128 v[{vC}:{vC+3}], v{bC} offset:{oc}")
    def addr():
        a(f"v_lshrrev_b32 v{bE}, 24, v{vA}")
        a(f"v_mad_u32_u24 v{vA}, v{vA}, 32, v{vH}")
    def transpose(g):
        a(f"ds_write_b128 v{vTw}, v[{g}:{g+3}]")
        a(f"ds_read_b64_tr_b16 v[{A2}:{A2+1}], v{vTr}")
        a(f"ds_read_b64_tr_b16 v[{A2+2}:{A2+3}], v{vTr} offset:576")
    def mfma2(i, b):
        c = ACC + 4 * i
        a(f"v_mfma_f32_16x16x32_bf16 v[{c}:{c+3}], v[{A2}:{A2+3}], v[{b}:{b+3}], v[{c}:{c+3}]")
    NS = 17
    for par in range(2):
        if o.al and par == 0:
            a(".p2align 6")
            for _ in range(o.al - 1): a("s_nop 0")
        a(f"P2_round{par}:")
        def spin():
            a(f"P2_cw{par}:")
            a(f"ds_read_b32 v{vX+1}, v0 offset:{X_PW - X_CW}")
            reads1(par, 0, False)
            a(f"ds_read_b32 v{vX}, v{vCA} offset:{1024*par}")
            a("s_waitcnt lgkmcnt(2)")
            a(f"v_cmp_ge_u32 vcc, s48, v{vX+1}")
            a(f"v_and_b32 v{vX+1}, 0x3fffffff, v{vX+1}")
            a(f"s_cbranch_vccz P2_cg{par}")
            a(f"s_sleep {o.csleep}")
            guard(a)
            a(f"s_branch P2_cw{par}")
            a(f"P2_cg{par}:")
        twait(spin)
        if o.prof == 1:
            a("s_memrealtime s[58:59]")
            a("s_waitcnt lgkmcnt(0)")
            a("s_mov_b32 m0, s48")
            a("v_writelane_b32 v14, s58, m0")
            a("s_add_u32 m0, s48, 16")
            a("v_writelane_b32 v14, s56, m0")
        a(f"v_cmp_lt_u32 vcc, s48, v{vX+1}")
        a(f"s_cbranch_vccz P2_drain{1-par}")
        if o.prof == 1 and par == 0:
            a("s_cmp_lg_u32 s48, 0"); a("s_cbranch_scc1 P2_nostamp"); P.stamp(); a("P2_nostamp:")
        if par: a(f"v_add_u32 v{vX+2}, {X1}, v{vCI}")
        a(f"ds_write_b32 v{vCA}, v{vX+2 if par else vCI} offset:{1024*par}")
        a("s_add_u32 s48, s48, 1")
        for i in range(NS):
            p = (par * NS + i) % 2
            g = G0 + 4 * p; b = B0 + 4 * p
            plain = 2 <= i < NS - 1
            a("s_waitcnt vmcnt(1) lgkmcnt(0)" if o.lay == 2 else "s_waitcnt lgkmcnt(0)")
            if i == NS - 1: a(f"v_or_b32 v{vA}, s84, v{vA}")
            addr()
            if o.lay == 1 and plain: a(f"s_bitcmp1_b32 s90, {i}")
            if o.lay != 2: a("s_waitcnt vmcnt(1)")
            sk = o.skip and i == 1
            if sk:
                a("s_cmp_lg_u32 s84, 0")
                a(f"s_cbranch_scc1 P2_nt{par}")
            if o.gfirst and not sk:
                a(f"ds_write_b128 v{vTw}, v[{g}:{g+3}]")
                a(f"buffer_load_dwordx4 v[{g}:{g+3}], v{vA}, s[8:11], 0 offen {o.gfl}")
                a(f"ds_read_b64_tr_b16 v[{A2}:{A2+1}], v{vTr}")
                a(f"ds_read_b64_tr_b16 v[{A2+2}:{A2+3}], v{vTr} offset:576")
            else:
                transpose(g)
                if sk: a(f"P2_nt{par}:")
                a(f"buffer_load_dwordx4 v[{g}:{g+3}], v{vA}, s[8:11], 0 offen {o.gfl}")
            if o.skip and i == NS - 1:
                a("s_cmp_lg_u32 s84, 0")
                a(f"s_cbranch_scc1 P2_last{par}")
            reads2(par, i, False)
            if i + 1 < NS: reads1(par, i + 1, False)
            if i == 0: a(f"v_cmp_le_u32 s[90:91], s85, v{vX}")
            if sk: a(f"s_cbranch_scc1 P2_nm{par}")
            if o.lay and plain:
                if o.lay == 2: a(f"s_bitcmp1_b32 s90, {i}")
                a("s_waitcnt lgkmcnt(1)")
                mfma2((i - 2) % NS, b)
            else:
                a(f"s_waitcnt lgkmcnt({4 if i + 1 < NS else 3})")
                mfma2((i - 2) % NS, b)
                if sk: a(f"P2_nm{par}:")
                a(f"s_bitcmp1_b32 s90, {i}")
                a(f"s_waitcnt lgkmcnt({1 if i + 1 < NS else 0})")
            for u in range(4): a(f"v_and_b32 v{b+u}, v{vM+u}, v{vC+u}")
            a(f"s_cbranch_scc1 P2_slow{par}_{i}")
            a(f"P2_back{par}_{i}:")
            if par == 0 and i in lstep:
                a("s_cmp_lg_u32 s42, 0")
                a(f"s_cbranch_scc1 P2_lazy{i}")
                a(f"P2_lazyb{i}:")
        if par == 0 and NL:
            a("s_cmp_eq_u32 s42, 0")
            a("s_cbranch_scc1 P2_nolz")
            a("s_mov_b32 s42, 0")
            a("s_waitcnt vmcnt(0)")
            lds_count(a, vX, XW + X_B)
            a("P2_nolz:")
        for u in range(4): a(f"v_mov_b32 v{vX+u}, {MARK}")
        for k in range(4):
            if k == 3: a("s_mov_b64 exec, s[92:93]")
            a(f"ds_write_b128 v{bR}, v[{vX}:{vX+3}] offset:{par*X1+1024*k}")
        a("s_mov_b64 exec, 1")
        a(f"v_mov_b32 v{vA}, 1")
        a("s_waitcnt lgkmcnt(0)")
        a(f"ds_add_rtn_u32 v{vA}, v0, v{vA} offset:{4*par}")
        a("s_lshr_b32 s40, s48, 1")
        a("s_mul_i32 s40, s40, 12")
        a("s_waitcnt lgkmcnt(0)")
        a(f"v_readfirstlane_b32 s41, v{vA}")
        a("s_mov_b64 exec, -1")
        a("s_sub_u32 s41, s41, s40")
        a(f"s_setprio {o.cb}")
        a(f"s_cmp_lt_u32 s41, {o.fb0}")
        a(f"s_cbranch_scc1 P2_round{1-par}")
        a(f"s_setprio {o.cb + 1}")
        a(f"s_cmp_lt_u32 s41, {o.fb1}")
        a(f"s_cbranch_scc1 P2_round{1-par}")
        a(f"s_setprio {o.cb + 2}")
        if par: a("s_branch P2_round0")
    for par in range(2 if o.skip else 0):
        a(f"P2_last{par}:")
        a("s_waitcnt lgkmcnt(0)")
        mfma2(NS - 3, B0 + 4 * ((par * NS + NS - 1) % 2))
        a(f"s_branch P2_back{par}_{NS-1}")
    for i in sorted(lstep):
        a(f"P2_lazy{i}:")
        for t in lstep[i]: lazy(t)
        a(f"s_branch P2_lazyb{i}")
    for par in range(2):
        for i in range(NS):
            a(f"P2_slow{par}_{i}:")
            reads1(par, i, True)
            a("s_waitcnt lgkmcnt(0)")
            a("s_mov_b64 exec, s[94:95]")
            a(f"v_mov_b32 v{vA}, {MARK}")
            a("s_mov_b64 exec, -1")
            addr()
            a(f"buffer_load_dwordx4 v[{vX}:{vX+3}], v{vA}, s[8:11], 0 offen")
            reads2(par, i, True)
            if i + 1 < NS: reads1(par, i + 1, False)
            a(f"s_waitcnt lgkmcnt({1 if i + 1 < NS else 0})")
            for u in range(4): a(f"v_and_b32 v{vM+u}, v{vM+u}, v{vC+u}")
            a("s_waitcnt vmcnt(0)")
            transpose(vX)
            a("s_waitcnt lgkmcnt(0)")
            mfma2(i, vM)
            a(f"s_branch P2_back{par}_{i}")
    vLo = 14; vSo = 15; vRb = 12; vWt = 13
    mreg = [0, 2, 4, 6, 8, 10, 16, 18, 20, 22, 24, 26, ACC, ACC + 2, ACC + 4, ACC + 6, ACC + 8]
    NPRE = 12
    def mload(i):
        a(f"buffer_load_dwordx2 v[{mreg[i]}:{mreg[i]+1}], v{vLo}, s[12:15], 0 offen")
        a(f"v_add_u32 v{vLo}, {512*32}, v{vLo}")
    for par in (1, 0):
        a(f"P2_drain{par}:")
        a("s_waitcnt lgkmcnt(0)")
        if par == 1: P.stamp()
        elif o.prof == 1: P.n -= 1; P.stamp()
        if o.prof == 1:
            srd(a, 52, 32, 0x100000, WS_PROF)
            a("s_lshl_b32 s56, s2, 4")
            a("s_add_u32 s56, s56, s3")
            a("s_lshl_b32 s56, s56, 7")
            a("v_lshrrev_b32 v12, 1, v13")
            a("v_add_u32 v12, s56, v12")
            a("s_bfm_b64 exec, 32, 0")
            a("buffer_store_dword v14, v12, s[52:55], 0 offen")
            a("s_mov_b64 exec, -1")
        if o.epr >= 0: a(f"s_setprio {o.epr}")
        a(f"v_mov_b32 v{vLo}, v{vSo}")
        for i in range(NPRE): mload(i)
        a(f"s_mov_b32 s51, {RB_AT[1 - par]}")
        for i in (NS, NS + 1):
            p = (par * NS + i) % 2
            a(f"s_waitcnt vmcnt({NS + 1 - i + NPRE})")
            transpose(G0 + 4 * p)
            a("s_waitcnt lgkmcnt(0)")
            mfma2(i - 2, B0 + 4 * p)
        if par == 1: a("s_branch P2_epi")
    a("P2_epi:")
    WS_ = 32; WR_ = 36; WU = 40; WD = 42; RB = 44; SS = 48; GG = 52; UU = 56; ZZ = 28
    a("s_lshl_b32 s47, s47, 3")
    a("s_add_u32 s47, s47, s44")
    a("s_lshl_b32 s47, s47, 9")
    a("s_add_u32 s51, s51, s47")
    a(f"v_add_u32 v{vRb}, s51, v{vWt}")
    a(f"v_add_u32 v{vWt}, {WT}, v{vWt}")
    lds_wait(a, UU, XW + X_R, 4, "r", 1)
    for k in range(6): a(f"ds_read_b64 v[{WS_+2*k}:{WS_+2*k+1}], v{vWt} offset:{512*k}")
    def rbread(k): a(f"ds_read_b64 v[{RB+2*(k%2)}:{RB+2*(k%2)+1}], v{vRb} offset:{512*k}")
    rbread(0); rbread(1)
    vm = [("m", i) for i in range(NPRE)]
    def mf(d, w, i):
        h = 2 * (i % 2); r = RB + 2 * ((i // 2) % 2)
        a(f"v_mfma_f32_16x16x16_bf16 v[{d}:{d+3}], v[{w+h}:{w+h+1}], v[{r}:{r+1}], 0")
    def pack(i):
        c0 = ACC + 4 * i
        for u in range(2): a(f"v_cvt_pk_bf16_f32 v{c0+u}, v{c0+2*u}, v{c0+2*u+1}")
    def mz(i):
        c0 = ACC + 4 * i
        a(f"v_mfma_f32_16x16x16_bf16 v[{ZZ}:{ZZ+3}], v[{WD}:{WD+1}], v[{c0}:{c0+1}], 0")
    def gate(i):
        c0 = ACC + 4 * i
        for c in (0, 2): a(f"v_pk_mul_f32 v[{c0+c}:{c0+c+1}], v[{SS+c}:{SS+c+1}], v[{ZZ+c}:{ZZ+c+1}]")
        pack(i)
    pack(0)
    a("s_waitcnt lgkmcnt(0)")
    mz(0); mf(SS, WS_, 0); mf(GG, WR_, 0)
    gate(0)
    for i in range(NS):
        c0 = ACC + 4 * i; m = mreg[i]; nx = i + 1 < NS
        if i == NS - 1:
            a("s_cmp_lt_u32 s50, 17")
            a("s_cbranch_scc1 P2_fin")
        a(f"v_mfma_f32_16x16x16_bf16 v[{UU}:{UU+3}], v[{WU}:{WU+1}], v[{c0}:{c0+1}], 0")
        if nx: pack(i + 1)
        lg = f" lgkmcnt({1 if i // 2 + 2 <= 8 else 0})" if nx and i % 2 == 1 else ""
        a(f"s_waitcnt vmcnt({len(vm) - 1 - vm.index(('m', i))})" + lg)
        if nx: mf(SS, WS_, i + 1)
        a(f"v_lshlrev_b32 v{c0}, 16, v{m}")
        a(f"v_and_b32 v{c0+1}, 0xffff0000, v{m}")
        if nx: mz(i + 1)
        a(f"v_lshlrev_b32 v{c0+2}, 16, v{m+1}")
        a(f"v_and_b32 v{c0+3}, 0xffff0000, v{m+1}")
        for c in (0, 2): a(f"v_pk_fma_f32 v[{c0+c}:{c0+c+1}], v[{UU+c}:{UU+c+1}], v[{GG+c}:{GG+c+1}], v[{c0+c}:{c0+c+1}]")
        if nx: mf(GG, WR_, i + 1)
        for u in range(2): a(f"v_cvt_pk_bf16_f32 v{m+u}, v{c0+2*u}, v{c0+2*u+1}")
        a(f"buffer_store_dwordx2 v[{m}:{m+1}], v{vSo}, s[28:31], 0 offen {o.ost}")
        vm.append(("s", i))
        if nx: gate(i + 1)
        a(f"v_add_u32 v{vSo}, {512*32}, v{vSo}")
        if i % 2 == 0 and i // 2 + 2 <= 8: rbread(i // 2 + 2)
        for k in (NPRE + 2 * i, NPRE + 2 * i + 1):
            if k < NS: mload(k); vm.append(("m", k))
    a("P2_fin:")
    if o.prof:
        P.stamp()
        a("s_waitcnt vmcnt(0)")
        P.stamp(True)
        P.dump(32, 0x80000, 34, 3)
    a("P2_end:")
    a("s_endpgm")

KD = """.amdhsa_kernel {name}
  .amdhsa_next_free_vgpr 128
  .amdhsa_next_free_sgpr 100
  .amdhsa_accum_offset 128
  .amdhsa_group_segment_fixed_size 0
  .amdhsa_kernarg_size 112
  .amdhsa_user_sgpr_count 2
  .amdhsa_user_sgpr_kernarg_segment_ptr 1
  .amdhsa_system_sgpr_workgroup_id_x 1
  .amdhsa_float_denorm_mode_32 3
.end_amdhsa_kernel
"""

NAME = "gather_scatter__molecular_angular_gemnet__graph_kernel"

def build(o):
    GUARD[0] = 1000000 if o.maxr else 0
    a = Asm(); P = Prof(a, o.prof, 1)
    xw, stg = gen_p1(o, a, P); gen_p2(o, a, P, xw, stg)
    body = a.finish()
    if o.a8:
        body, fixed, left = align8(body, o.a8 == 2)
        if o.v: print("align8 fixed", fixed, "left", left)
    ref = open("gather_scatter__molecular_angular_gemnet__graph.s.ref").read().split("\n")
    head = [l for l in ref if l.startswith(";") and "launch geometry" not in l and "Harness parses" not in l and "@launch" not in l]
    s = "\n".join(head) + "\n"
    s += """;
"""
    s += f"; @launch grid=(256,1,1) block=(1024,1,1) lds={xw + 64}\n"
    s += '.amdgcn_target "amdgcn-amd-amdhsa--gfx950"\n.text\n'
    s += f".globl {NAME}\n.p2align 8\n.type {NAME},@function\n{NAME}:\n" + body
    s += '.section .rodata,"a"\n.p2align 6\n' + KD.format(name=NAME)
    return s

def parser():
    p = argparse.ArgumentParser()
    p.add_argument("-S", type=int, default=11)
    for k, d in dict(prof=0, maxr=0, dstep=4, asplit=12, sw=1, psleep=2, csleep=2, gsleep=24, maxpoll=1000000, eprio=0, nd=4, al=0, al2=0, a8=0, lay=0, v=0, gfirst=1, unb=2, fpr=3, qpr=3, pub=1, pub0=1, wlate=0, dl1=0, cb=0, epr=-1, bpr=3, burst=1, ppr=3, fb0=6, fb1=10, cs=256, cg=14, ck=0, an0=12, sk=0, nf=2, ng=2, ssleep=1, wsh=50, skip=1, l0=10, pfs=14, pfd=2, own=1, swo=29000, swd=0, nornd=0, pp=5, nb=5, sw0=5, pf0=3, pfw=0, pfn=6, ldp=1, spr=2, f0=0, cpf=14, nl=4, lstep=0, fuse=1, cmap=2, rot=0).items():
        p.add_argument("--" + k, type=int, default=d)
    p.add_argument("--p1_ld", default="nt")
    p.add_argument("--p1_st", default="sc1")
    p.add_argument("--ost", default="nt")
    p.add_argument("--gfl", default="")
    p.add_argument("--xt", default="40516273")
    p.add_argument("-o", default="gather_scatter__molecular_angular_gemnet__graph.s")
    return p

if __name__ == "__main__":
    o = parser().parse_args()
    open(o.o, "w").write(build(o))
```

```python
import sys, argparse
from asmlib import Asm, align8

E = 800000; T = 12800000
NT = 256
CHA = 25088
TILE_N = 50000
TILE_BYTES = 300032
WS_DESC = 0x5000000
WS_PROF = 0x6000000
CAP = 56
WSTR = CAP * 4
MARK = 0x38100000
NG = 196
RS = 18
RMASK = (0xffffffff << (RS + 6) | (1 << RS) - 1) & 0xffffffff
ROVF = (1 << (RS + 6)) - 1
CL = E // 8
WREG = 9472

GUARD = [0]
def guard(a):
    if GUARD[0]:
        a("s_add_u32 s99, s99, 1")
        a(f"s_cmp_gt_u32 s99, {GUARD[0]}")
        a("s_cbranch_scc1 P2_end")

def slicing(o):
    B = (o.f0 << 26) // 100
    K = ((o.S << 26) - B) // E
    return K, B

def srd(a, d, base, size, off=None):
    if off is None:
        a(f"s_mov_b32 s{d}, s{base}")
        a(f"s_mov_b32 s{d+1}, s{base+1}")
    else:
        a(f"s_add_u32 s{d}, s{base}, {off}")
        a(f"s_addc_u32 s{d+1}, s{base+1}, 0")
    a(f"s_mov_b32 s{d+2}, {size}")
    a(f"s_mov_b32 s{d+3}, 0x20000")

class Prof:
    def __init__(self, a, on, fuse=0): self.a = a; self.on = on; self.n = 0; self.fuse = fuse
    def stamp(self, key=False):
        if not self.on or (self.on == 2 and not key): return
        a = self.a
        a("s_waitcnt lgkmcnt(0)")
        a("s_memtime s[58:59]")
        a("s_waitcnt lgkmcnt(0)")
        a(f"s_mov_b32 s{60+self.n}, s58")
        a("s_memrealtime s[58:59]")
        a("s_waitcnt lgkmcnt(0)")
        a(f"s_mov_b32 s{72+self.n}, s58")
        self.n += 1
    def dump(self, wsreg, region, vt, wave_sreg):
        if not self.on: return
        a = self.a
        srd(a, 52, wsreg, 0x100000, WS_PROF + region)
        a(f"s_lshl_b32 s56, s2, 4")
        a(f"s_add_u32 s56, s56, s{wave_sreg}")
        a(f"s_lshl_b32 s56, s56, 7")
        a("s_mov_b64 exec, 1")
        for i in range(self.n):
            a(f"v_mov_b32 v{vt}, s56")
            a(f"v_mov_b32 v{vt+1}, s{60+i}")
            a(f"buffer_store_dword v{vt+1}, v{vt}, s[52:55], 0 offen offset:{4*i}")
            a(f"v_mov_b32 v{vt+1}, s{72+i}")
            a(f"buffer_store_dword v{vt+1}, v{vt}, s[52:55], 0 offen offset:{64+4*i}")
        a(f"v_mov_b32 v{vt+1}, s71")
        a(f"buffer_store_dword v{vt+1}, v{vt}, s[52:55], 0 offen offset:124")
        a("s_waitcnt vmcnt(0)")
        a("s_mov_b64 exec, -1")

def gen_p1(o, a, P):
    S = o.S
    NK = S * 256
    KSL, BSL = slicing(o)
    CN = 16; SCR = CN + NK * 4; STG = SCR + 64; XW = STG + CHA * 6
    W0 = 4; KP0 = 53; C0 = 78; TO = 103; T0 = 104
    ld = o.p1_ld; st = o.p1_st
    vmq = []
    def issue_out(r):
        b = C0 + 4 * (r % 6)
        a(f"buffer_load_dwordx4 v[{b}:{b+3}], v2, s[12:15], s36 offen {ld}")
        a(f"s_add_u32 s36, s36, {CS * 16384}")
        vmq.append(("o", r))
    def issue_in(r):
        w = W0 + 4 * r
        a(f"buffer_load_dwordx4 v[{w}:{w+3}], v2, s[8:11], s4 offen {ld}")
        a(f"s_add_u32 s4, s4, {CS * 16384}")
        vmq.append(("i", r))
    seq = [("i", r) for r in range(o.sk)]
    for r in range(12):
        seq.append(("o", r))
        if r + o.sk < 12: seq.append(("i", r + o.sk))
    def issue_next(n):
        for _ in range(n):
            if seq:
                k, r = seq.pop(0)
                (issue_in if k == "i" else issue_out)(r)
    def issue_ang(r):
        b = C0 + 2 * r
        a(f"buffer_load_dwordx2 v[{b}:{b+1}], v2, s[16:19], s37 offen {ld}")
        a(f"s_add_u32 s37, s37, {CS * 8192}")
    DP = o.ldp
    CS = o.cs
    a("s_load_dwordx2 s[8:9], s[0:1], 8")
    a("s_load_dwordx2 s[12:13], s[0:1], 16")
    a("s_cmp_ge_u32 s2, 256")
    a("s_cbranch_scc1 P2_end")
    if o.cpf:
        a("s_getpc_b64 s[40:41]")
        a("P1_pc:")
        a("s_lshr_b32 s45, s2, 3")
        a(f"s_mulk_i32 s45, {o.cpf}")
        a(f"s_mov_b32 s42, P2_end-P1_pc")
        a("s_mov_b32 s43, 0x20000")
        a(f"v_add_lshl_u32 v{T0+23}, v0, s45, 7")
        a(f"v_cmp_gt_u32 vcc, {o.cpf}, v0")
        a("s_and_b64 exec, exec, vcc")
        a("s_cbranch_execz P1_nopf")
        a(f"buffer_load_dword v{T0+23}, v{T0+23}, s[40:43], 0 offen")
        a("P1_nopf:")
        a("s_mov_b64 exec, -1")
    a(f"s_mov_b32 s10, {T * 4}")
    a("s_mov_b32 s11, 0x20000")
    a("s_mov_b64 s[14:15], s[10:11]")
    if o.cg < 14:
        assert CS == 256
        a(f"s_lshl_b32 s36, s2, {o.cg}")
    elif CS == 1:
        a(f"s_mul_i32 s36, s2, {12 * 16384}")
    else:
        a(f"s_andn2_b32 s36, s2, {CS - 1}")
        a(f"s_mulk_i32 s36, 11")
        a(f"s_add_u32 s36, s36, s2")
        a(f"s_lshl_b32 s36, s36, 14")
    a("s_lshr_b32 s37, s36, 1")
    a("s_mov_b32 s4, s36")
    a("v_lshlrev_b32 v1, 4, v0")
    if o.cg < 14:
        a(f"v_lshrrev_b32 v2, {o.cg}, v1")
        a(f"v_mul_u32_u24 v2, {255 << o.cg}, v2")
        a("v_add_u32 v2, v2, v1")
    else:
        a("v_mov_b32 v2, v1")
    a("s_waitcnt lgkmcnt(0)")
    P.stamp(True)
    issue_next(o.nf)
    if GUARD[0]: a("s_mov_b32 s99, 0")
    a("s_load_dwordx2 s[16:17], s[0:1], 32")
    a("s_load_dwordx2 s[30:31], s[0:1], 48")
    a("s_load_dwordx2 s[32:33], s[0:1], 104")
    a("s_load_dwordx2 s[94:95], s[0:1], 96")
    a("s_load_dwordx2 s[48:49], s[0:1], 0")
    a("s_load_dwordx2 s[86:87], s[0:1], 88")
    if o.pd & 1: a("s_load_dwordx2 s[50:51], s[0:1], 24")
    if o.pd & 2:
        a("s_load_dwordx2 s[52:53], s[0:1], 40")
        a("s_load_dwordx4 s[88:91], s[0:1], 56")
        a("s_load_dwordx4 s[96:99], s[0:1], 72") if not GUARD[0] else None
    a("v_mov_b32 v3, 1")
    for i in range(4): a(f"v_mov_b32 v{T0+i}, 0")
    a(f"ds_write_b128 v1, v[{T0}:{T0+3}]")
    a(f"v_lshrrev_b32 v{T0+4}, 6, v0")
    a(f"v_readfirstlane_b32 s3, v{T0+4}")
    a(f"s_mul_i32 s34, s2, 848")
    a(f"s_add_u32 s34, s34, {3072*4096}")
    a(f"v_add_u32 v109, s34, v0")
    a(f"v_cmp_gt_u32 vcc, 848, v0")
    a(f"v_lshlrev_b32 v110, 2, v109")
    a(f"v_lshlrev_b32 v109, 1, v109")
    a(f"v_cndmask_b32 v110, 2.0, v110, vcc")
    a(f"v_cndmask_b32 v109, 2.0, v109, vcc")
    a(f"buffer_load_dword v{TO}, v110, s[12:15], 0 offen {ld}")
    a(f"buffer_load_dword v{W0+48}, v110, s[8:11], 0 offen {ld}")
    a(f"s_mov_b32 s18, {T * 2}")
    a("s_mov_b32 s19, 0x20000")
    a("s_waitcnt lgkmcnt(0)")
    a("s_load_dword s35, s[30:31], 0")
    if o.pd & 2 and not GUARD[0]:
        a("s_lshl_b32 s40, s2, 4")
        a("s_add_u32 s40, s40, s3")
        a("s_cmp_lg_u32 s40, 15")
        a("s_cbranch_scc1 P1_npw")
        for base, n in ((52, 1), (88, 4), (90, 4), (96, 8), (98, 8)):
            for j in range(n): a(f"s_load_dword s54, s[{base}:{base+1}], {64*j}")
        a("P1_npw:")
    a(f"buffer_load_ushort v{C0+24}, v109, s[16:19], 0 offen {ld}")
    vmq.extend([("t", 0), ("t", 1), ("t", 2)])
    a("s_mov_b32 s38, 0x7c00")
    MG = -(-(1 << 19) // S)
    assert all((n * MG) >> 19 == n // S for n in range(4096))
    a(f"s_mov_b32 s40, {(-(1024*S - 4)) & 0xffffffff}")
    for j in range(4):
        t = T0 + 16 + j
        a(f"v_lshl_add_u32 v{t}, v0, 2, {j}")
        a(f"v_mul_u32_u24 v{T0}, {MG}, v{t}")
        a(f"v_lshrrev_b32 v{T0}, 19, v{T0}")
        a(f"v_lshlrev_b32 v{t}, 10, v{t}")
        a(f"v_mad_i32_i24 v{t}, v{T0}, s40, v{t}")
        a(f"v_add_u32 v{t}, {STG}, v{t}")
    srd(a, 20, 32, NT * NT * S * 4, WS_DESC)
    srd(a, 24, 94, 256)
    a("s_mov_b32 s44, 0")
    a(f"s_mov_b32 s39, {KSL}")
    a(f"v_mov_b32 v{T0+22}, {(BSL - (CL * KSL if o.own == 1 else 0)) & 0xffffffff}")
    a(f"s_mov_b32 s5, {CL}")
    a(f"v_mov_b32 v{T0+20}, 0x7c")
    a(f"v_mov_b32 v{T0+21}, 0x0ff00000")
    a("s_barrier")
    KX = -(-(1 << 28) // (CL // 16))
    assert all(((k * (CL // 16) + d) * KX) >> 28 == (k * (CL // 16) + d) // (CL // 16) for k in range(1, 9) for d in (-1, 0) if k < 8 or d < 0)
    def key(O, W, t):
        x, xb, d, n = t, t + 1, t + 2, t + 3
        a(f"v_and_b32 v{x}, -16, v{O}")
        a(f"v_mul_hi_u32_u24 v{x}, {KX}, v{x}")
        a(f"v_mul_u32_u24 v{xb}, {CL}, v{x}")
        a(f"v_sub_u32 v{d}, v{W}, v{xb}")
        a(f"v_sub_u32 v{O}, v{O}, v{xb}")
        if o.own == 1:
            a(f"v_cmp_gt_u32 s[42:43], s5, v{d}")
            a(f"v_ashrrev_i32 v{n}, 31, v{d}")
            a(f"v_add_u32 v{d}, {8 * CL}, v{d}")
            a(f"v_and_b32 v{n}, {CL}, v{n}")
            a(f"v_add_u32 v{n}, v{n}, v{W}")
            a(f"v_cndmask_b32 v{n}, v{n}, v{d}, s[42:43]")
        elif o.own == 2:
            a(f"v_subrev_u32 v{d}, {CL}, v{d}")
            a(f"v_add_u32 v{n}, {E}, v{d}")
            a(f"v_min_u32 v{n}, v{n}, v{d}")
        else:
            a(f"v_mov_b32 v{n}, v{W}")
        a(f"v_lshlrev_b32 v{xb}, 11, v{O}")
        a(f"v_lshl_or_b32 v{W}, v{O}, 28, v{W}")
        a(f"v_mad_u32_u24 v{n}, v{n}, s39, v{T0+22}")
        a(f"v_lshrrev_b32 v{O}, 2, v{O}")
        a(f"v_bitop3_b32 v{W}, v{xb}, v{T0+21}, v{W} bitop3:0xea")
        a(f"v_and_b32_sdwa v{n}, v{n}, s38 dst_sel:DWORD dst_unused:UNUSED_PAD src0_sel:WORD_1 src1_sel:DWORD")
        a(f"v_lshl_or_b32 v{n}, v{x}, 7, v{n}")
        a(f"v_bitop3_b32 v{O}, v{O}, v{T0+20}, v{n} bitop3:0xea")
    done = [0]
    def wait_for(ops):
        while True:
            need = max(vmq.index(x) for x in ops) + 1 if all(x in vmq for x in ops) else None
            if need is not None and need <= done[0]: return
            idx = [k for k in range(done[0], len(vmq)) if vmq[k][0] != "t"]
            tgt = idx[min(o.ng, len(idx)) - 1] + 1 if idx else len(vmq)
            a(f"s_waitcnt vmcnt({len(vmq) - tgt})")
            n = sum(1 for k in range(done[0], tgt) if vmq[k][0] != "t")
            done[0] = tgt
            issue_next(n)
    for r in range(12):
        wait_for([("o", r), ("i", r)])
        assert all(k != "o" or q < r + 6 for k, q in vmq)
        if r == 2:
            wait_for([("t", 2)])
            key(TO, W0 + 48, T0)
            a(f"v_cndmask_b32 v{KP0+24}, 2.0, v{TO}, vcc")
            a(f"ds_add_u32 v{KP0+24}, v3 offset:{CN}")
        b = C0 + 4 * (r % 6)
        for j in range(4):
            key(b + j, W0 + 4 * r + j, T0 + 4 * j)
            a(f"ds_add_u32 v{b+j}, v3 offset:{CN}")
        a(f"v_lshl_or_b32 v{KP0+2*r}, v{b+1}, 16, v{b}")
        a(f"v_lshl_or_b32 v{KP0+2*r+1}, v{b+3}, 16, v{b+2}")
    a("v_lshrrev_b32 v2, 1, v2")
    a("s_waitcnt lgkmcnt(0)")
    a("s_barrier")
    P.stamp()
    c = T0; x = T0 + 4; tot = T0 + 5; y = T0 + 6
    a(f"s_cmp_ge_u32 s3, {S}")
    a("s_cbranch_scc1 P1_scan1")
    a(f"ds_read_b128 v[{c}:{c+3}], v1 offset:{CN}")
    a("s_waitcnt lgkmcnt(0)")
    a(f"v_add_u32 v{c+1}, v{c}, v{c+1}")
    a(f"v_add_u32 v{c+2}, v{c+1}, v{c+2}")
    a(f"v_add_u32 v{c+3}, v{c+2}, v{c+3}")
    a(f"v_mov_b32 v{x}, v{c+3}")
    for sh in (1, 2, 4, 8):
        a(f"v_add_u32_dpp v{x}, v{x}, v{x} row_shr:{sh} row_mask:0xf bank_mask:0xf bound_ctrl:1")
    a(f"v_add_u32_dpp v{x}, v{x}, v{x} row_bcast:15 row_mask:0xa bank_mask:0xf")
    a(f"v_add_u32_dpp v{x}, v{x}, v{x} row_bcast:31 row_mask:0xc bank_mask:0xf")
    a(f"v_readlane_b32 s40, v{x}, 63")
    a(f"s_lshl_b32 s41, s3, 2")
    a(f"v_mov_b32 v{y}, s41")
    a(f"v_mov_b32 v{y+1}, s40")
    a(f"ds_write_b32 v{y}, v{y+1} offset:{SCR}")
    a("s_waitcnt lgkmcnt(0)")
    a("P1_scan1:")
    a("s_barrier")
    a(f"s_cmp_ge_u32 s3, {S}")
    a("s_cbranch_scc1 P1_scan2")
    a(f"v_and_b32 v{y}, 63, v0")
    a(f"v_lshlrev_b32 v{y+1}, 2, v{y}")
    a(f"ds_read_b32 v{y+2}, v{y+1} offset:{SCR}")
    a(f"v_cmp_gt_u32 s[42:43], s3, v{y}")
    a(f"v_sub_u32 v{x}, v{x}, v{c+3}")
    a("s_waitcnt lgkmcnt(0)")
    a(f"v_cndmask_b32 v{y+2}, 0, v{y+2}, s[42:43]")
    for sh in (1, 2, 4, 8):
        a(f"v_add_u32_dpp v{y+2}, v{y+2}, v{y+2} row_shr:{sh} row_mask:0xf bank_mask:0xf bound_ctrl:1")
    a(f"v_readlane_b32 s40, v{y+2}, 15")
    s0 = T0 + 12
    a(f"v_add_u32 v{s0}, s40, v{x}")
    for j in range(3): a(f"v_add_u32 v{s0+1+j}, v{s0}, v{c+j}")
    a(f"ds_write_b128 v1, v[{s0}:{s0+3}] offset:{CN}")
    a(f"ds_write_b128 v1, v[{s0}:{s0+3}] offset:{STG}")
    a(f"v_mov_b32 v{c}, {STG + NK * 4}")
    a(f"v_mov_b32 v{c+1}, {TILE_N}")
    a(f"ds_write_b32 v{c}, v{c+1}")
    a("s_waitcnt lgkmcnt(0)")
    a("P1_scan2:")
    a("s_barrier")
    a(f"s_cmp_ge_u32 s3, {S}")
    a("s_cbranch_scc1 P1_nodesc")
    for j in range(4):
        a(f"ds_read2_b32 v[{T0+2*j}:{T0+2*j+1}], v{T0+16+j} offset0:0 offset1:1")
    a(f"s_mul_i32 s40, s2, {256*S*4}")
    lds_count(a, T0 + 8, 4)
    for j in range(4): a(f"v_lshl_or_b32 v{T0+12+j}, v{T0+2*j+1}, 16, v{T0+2*j}")
    a(f"buffer_store_dwordx4 v[{T0+12}:{T0+15}], v1, s[20:23], s40 offen {st}")
    a("P1_nodesc:")
    a(f"s_mul_i32 s40, s3, {WREG - 1024}")
    a(f"s_add_u32 s40, s40, {9*1024}")
    a(f"v_add_u32 v{TO}, s40, v1")
    srd(a, 8, 48, E * 32)
    a(f"s_mul_i32 s41, s2, {o.pfn * 64}")
    a(f"s_sub_u32 s41, s41, {o.pfw * 64}")
    if o.pd & 1:
        srd(a, 12, 50, E * 2)
        a(f"s_mul_i32 s40, s2, 49")
        a(f"s_sub_u32 s40, s40, {(o.pfw + o.pfn) * 64}")
        a(f"s_cmp_eq_u32 s3, {o.pfw + o.pfn}")
        a("s_cselect_b32 s41, s40, s41")
    a("v_add_lshl_u32 v1, v0, s41, 7")
    if o.pp & 1: a("s_setprio 3")
    def atomics(n):
        t = T0 + 4 * (n % 2)
        if n == 12:
            a(f"ds_add_rtn_u32 v{t}, v{KP0+24}, v3 offset:{CN}"); return 1
        for j in range(4):
            kp = KP0 + 2 * n + j // 2
            if j % 2 == 0: a(f"v_and_b32 v{t+j}, 0xffff, v{kp}")
            else: a(f"v_lshrrev_b32 v{t+j}, 16, v{kp}")
            a(f"ds_add_rtn_u32 v{t+j}, v{t+j}, v3 offset:{CN}")
        return 4
    a(f"s_cmp_ge_u32 s3, {o.asplit}")
    a("s_cbranch_scc1 P1_ang1")
    for n in range(o.an0): issue_ang(n)
    a("P1_ang1:")
    atomics(0)
    for n in range(13):
        k = atomics(n + 1) if n < 12 else 0
        if o.an0 + n < 12:
            a(f"s_cmp_ge_u32 s3, {o.asplit}")
            a(f"s_cbranch_scc1 P1_an{n}")
            issue_ang(o.an0 + n)
            a(f"P1_an{n}:")
        a(f"s_waitcnt lgkmcnt({k})")
        t = T0 + 4 * (n % 2); u = T0 + 8
        if n < 12:
            a(f"v_lshl_or_b32 v{KP0+2*n}, v{t+1}, 16, v{t}")
            a(f"v_lshl_or_b32 v{KP0+2*n+1}, v{t+3}, 16, v{t+2}")
        else:
            a(f"v_mov_b32 v{u}, 0xffff")
            a(f"v_cndmask_b32 v{KP0+24}, v{u}, v{t}, vcc")
    a(f"s_cmp_lt_u32 s3, {o.asplit}")
    a("s_cbranch_scc1 P1_ang2")
    for n in range(12): issue_ang(n)
    a("P1_ang2:")
    a("s_lshl_b32 s35, s35, 16")
    a("s_cmp_eq_u32 s35, 1.0")
    a("s_cbranch_scc1 P1_f1")
    a("s_waitcnt vmcnt(0)")
    for n in range(25):
        cr = C0 + n; t = T0
        a(f"v_lshlrev_b32 v{t}, 16, v{cr}")
        a(f"v_and_b32 v{t+1}, 0xffff0000, v{cr}")
        a(f"v_mul_f32 v{t}, s35, v{t}")
        a(f"v_mul_f32 v{t+1}, s35, v{t+1}")
        a(f"v_cvt_pk_bf16_f32 v{cr}, v{t}, v{t+1}")
    a("P1_f1:")
    lds_wait(a, T0, 4, S, "q", 0)
    def addrs(n, h, u, base):
        a(f"v_mad_u32_u16 v{u}, v{KP0+n}, 6, {base}" + (" op_sel:[1,0,0,0]" if h else ""))
        a(f"v_and_b32 v{u+1}, 2, v{u}")
        a(f"v_sub_u32 v{u}, v{u}, v{u+1}")
        a(f"v_sub_u32 v{u+1}, v{u}, v{u+1}")
    for n in range(25):
        cr = C0 + n; t = T0 + 6 * (n % 2)
        if o.pp & 1 and n in (0, 9, 17): a(f"s_setprio {2 - n // 8}")
        if o.pf0 == 3:
            if n == 0: a("s_waitcnt vmcnt(0)")
            if o.pd & 1 and n == o.pfs - 1:
                a(f"s_cmp_lg_u32 s3, {o.pfw + o.pfn}")
                a("s_cbranch_scc1 P1_npd")
                a("s_bfm_b64 exec, 49, 0")
                a("buffer_load_dword v1, v1, s[12:15], 0 offen")
                a("s_mov_b64 exec, -1")
                a("P1_npd:")
            for w in range(o.pfn):
                if o.pfs + (w * o.pfd) // 2 == n:
                    a(f"s_cmp_lg_u32 s3, {o.pfw + w}")
                    a(f"s_cbranch_scc1 P1_npf{w}")
                    a("buffer_load_dword v1, v1, s[8:11], 0 offen")
                    a(f"P1_npf{w}:")
        elif n % 2 == 0 and n < 24: a(f"s_waitcnt vmcnt({11 - n // 2})")
        if n == 0:
            a(f"s_cmp_ge_u32 s3, {S}")
            a("s_cbranch_scc1 P1_noe")
            a("s_waitcnt vmcnt(0)")
            lds_ticket(a, 2, 8)
            a(f"s_cmp_lg_u32 s40, {S-1}")
            a("s_cbranch_scc1 P1_noe")
            arrive(a, 2, LV_E)
            a("s_mov_b32 s44, 1")
            a("P1_noe:")
        if n == 14:
            a("s_cmp_eq_u32 s44, 0")
            a("s_cbranch_scc1 P2_norele")
            release(a, 2, LV_E, "e")
        a(f"v_lshlrev_b32 v{t}, 16, v{cr}")
        a(f"v_and_b32 v{t+1}, 0xffff0000, v{cr}")
        a(f"v_mul_f32 v{t}, 0.15915494, v{t}")
        a(f"v_mul_f32 v{t+1}, 0.15915494, v{t+1}")
        a(f"v_fract_f32 v{t}, v{t}")
        a(f"v_fract_f32 v{t+1}, v{t+1}")
        a(f"v_cos_f32 v{t}, v{t}")
        a(f"v_cos_f32 v{t+1}, v{t+1}")
        for h in range(2 if n < 24 else 1):
            u = t + 2 + 2 * h
            addrs(n, h, u, 0)
            a(f"ds_write_b32 v{u}, v{W0+2*n+h} offset:{STG}")
        a(f"v_cvt_pk_bf16_f32 v{cr}, v{t}, v{t+1}")
        a(f"ds_write_b16 v{t+3}, v{cr} offset:{STG+8}")
        if n < 24: a(f"ds_write_b16_d16_hi v{t+5}, v{cr} offset:{STG+8}")
    a(f"s_mul_i32 s40, s2, {TILE_BYTES}")
    srd(a, 20, 32, CHA * 6, "s40")
    a(f"v_subrev_u32 v2, {9*1024}, v{TO}")
    a("s_mov_b32 s44, 0")
    if o.pf0 == 2:
        a(f"s_sub_u32 s40, s3, {o.pfw}")
        a(f"s_cmp_ge_u32 s40, {o.pfn}")
        a("s_cbranch_scc1 P1_nopf0")
        a("buffer_load_dword v1, v1, s[8:11], 0 offen")
        a("P1_nopf0:")
    a("s_waitcnt lgkmcnt(0)")
    a("s_barrier")
    P.stamp()
    a(f"s_cmp_lg_u32 s3, 15")
    a("s_cbranch_scc1 P1_noclr")
    a(f"v_and_b32 v3, 15, v0")
    a(f"v_lshlrev_b32 v3, 2, v3")
    a(f"v_add_u32 v3, {XW}, v3")
    a(f"v_mov_b32 v{T0}, 0")
    a(f"ds_write_b32 v3, v{T0}")
    a("P1_noclr:")
    def rd(k):
        t = T0 + 4 * (k % 6)
        a(f"ds_read_b128 v[{t}:{t+3}], v2 offset:{STG + 1024 * (9 - k)}")
    def store(k):
        t = T0 + 4 * (k % 6)
        if k == 0: a("s_mov_b64 exec, 0xffff")
        a(f"buffer_store_dwordx4 v[{t}:{t+3}], v{TO}, s[20:23], 0 offen {st}")
        if k == 0: a("s_mov_b64 exec, -1")
        a(f"v_subrev_u32 v{TO}, 1024, v{TO}")
    NB = o.nb
    for k in range(6): rd(k)
    for k in range(NB):
        a(f"s_waitcnt lgkmcnt({min(5, 9-k)})")
        store(k)
        if k + 6 < 10: rd(k + 6)
    a(f"s_waitcnt vmcnt({NB}) lgkmcnt(0)")
    a(f"s_cmp_ge_u32 s3, {o.nd}")
    a("s_cbranch_scc1 P1_nod")
    for k in range(NB, 10): store(k)
    a("s_waitcnt vmcnt(0)")
    lds_ticket(a, T0, 0)
    a(f"s_cmp_lg_u32 s40, {o.nd-1}")
    a("s_cbranch_scc1 P1_nod")
    arrive(a, T0, LV_D)
    a("s_mov_b32 s44, 1")
    a("P1_nod:")
    a(f"s_mov_b32 s45, {(-CHA*6) & 0xffffffff}")
    a("s_barrier")
    P.stamp()
    nnow = NB
    for n in range(25):
        if o.pp & 2 and n in (0, 9, 17): a(f"s_setprio {2 - n // 8}")
        if o.pp & 4 and n in (0, 9, 17):
            if n == 0: a("s_setprio 3")
            a("s_cmp_lt_u32 s3, 4")
            a(f"s_cbranch_scc1 P1_pr{n}")
            a(f"s_setprio {2 - n // 8}")
            a(f"P1_pr{n}:")
        if n == 1:
            a("s_cmp_eq_u32 s44, 0")
            a("s_cbranch_scc1 P2_noreld")
            release(a, T0, LV_D, "d")
        if n % o.dstep == 1 and nnow < 10:
            a(f"s_cmp_lt_u32 s3, {o.nd}")
            a(f"s_cbranch_scc1 P1_ns{n}")
            store(nnow); nnow += 1
            a(f"P1_ns{n}:")
        for h in range(2 if n < 24 else 1):
            u = 2 * h
            addrs(n, h, u, "s45")
            a(f"ds_write_b32 v{u}, v{W0+2*n+h} offset:{STG}")
            a(f"ds_write_b16{'_d16_hi' if h else ''} v{u+1}, v{C0+n} offset:{STG+8}")
    assert nnow == 10
    lds_count(a, 4, XW + X_S)
    a(f"s_mul_i32 s40, s2, {TILE_BYTES}")
    a(f"s_add_u32 s40, s40, {CHA*6}")
    srd(a, 20, 32, (TILE_N - CHA) * 6, "s40")
    return XW, STG

LV_A, LV_B, LV_D, LV_E = 0, 1, 2, 3
X_A, X_S, X_X, X_I, X_B, X_R, X_C, X_H, X_CW, X_PW = 0, 4, 8, 12, 16, 20, 24, 28, 32, 48

def arrive(a, t, level):
    a(f"v_mov_b32 v{t}, 0")
    a(f"v_mov_b32 v{t+1}, 1")
    a("s_mov_b64 exec, 1")
    a(f"buffer_atomic_add v{t+1}, v{t}, s[24:27], 0 offen offset:{32*level} sc0 sc1")
    a("s_mov_b64 exec, -1")

def release(a, t, level, tag):
    a("s_waitcnt vmcnt(0)")
    a(f"v_readfirstlane_b32 s40, v{t+1}")
    a("s_cmp_lg_u32 s40, 255")
    a(f"s_cbranch_scc1 P2_norel{tag}")
    a("s_mov_b64 exec, 1")
    a(f"buffer_store_dword v{t+1}, v{t}, s[24:27], 0 offen offset:{128+4*level} sc1")
    a("s_mov_b64 exec, -1")
    a(f"P2_norel{tag}:")

def lds_count(a, t, word):
    a(f"v_mov_b32 v{t}, {word}")
    a(f"v_mov_b32 v{t+1}, 1")
    a("s_mov_b64 exec, 1")
    a("s_waitcnt lgkmcnt(0)")
    a(f"ds_add_u32 v{t}, v{t+1}")
    a("s_mov_b64 exec, -1")

def lds_wait(a, t, word, n, tag, sleep):
    a(f"v_mov_b32 v{t}, {word}")
    a(f"P2_lw{tag}:")
    a(f"ds_read_b32 v{t+1}, v{t}")
    a("s_waitcnt lgkmcnt(0)")
    a(f"v_readfirstlane_b32 s40, v{t+1}")
    a(f"s_cmp_ge_u32 s40, {n}")
    a(f"s_cbranch_scc1 P2_lg{tag}")
    if sleep: a(f"s_sleep {sleep}")
    guard(a)
    a(f"s_branch P2_lw{tag}")
    a(f"P2_lg{tag}:")

def lds_ticket(a, t, word):
    a(f"v_mov_b32 v{t}, {word}")
    a(f"v_mov_b32 v{t+1}, 1")
    a("s_mov_b64 exec, 1")
    a(f"ds_add_rtn_u32 v{t+1}, v{t}, v{t+1}")
    a("s_mov_b64 exec, -1")
    a("s_waitcnt lgkmcnt(0)")
    a(f"v_readfirstlane_b32 s40, v{t+1}")

def publish_a(a, t, XW, tag):
    lds_ticket(a, t, XW + X_A)
    a("s_cmp_lg_u32 s40, 15")
    a(f"s_cbranch_scc1 P2_norel{tag}")
    arrive(a, t, LV_A)
    release(a, t, LV_A, tag)

def gen_p2(o, a, P, XW, STG):
    S = o.S
    uid = [0]
    LUT = 2048; CB = 2560; WSZ = NG * WSTR
    RBSZ = 100 * 512
    X1 = RBSZ + 32
    WT = CB + WSZ // 2 + 16
    WB = CB + X1 // 2 + WSZ // 2 + 16
    RB_AT = (WB, WB + WSZ + 32)
    K0 = (WB - STG) // 12288; K1 = (WB + X1 - STG) // 12288
    assert STG + 12288 * (K0 + 4) >= WB + WSZ + 32 and STG + 12288 * K1 >= WB + WSZ + 32 and STG + 12288 * (K1 + 4) >= WB + X1 + WSZ + 64
    SC = STG + 12288 * (K1 + 4); TSZ = 1088
    assert WT + 3072 <= CB + X1 // 2 and WB < 65536 and SC + 12 * TSZ <= XW and WB % 16 == 0 and X1 % 32 == 0
    perm = [int(c) for c in o.xt]
    assert sorted(perm) == list(range(8))
    a("s_and_b32 s46, s2, 7")
    a("s_lshl_b32 s46, s46, 2")
    a(f"s_lshr_b32 s46, {sum(p << (4 * k) for k, p in enumerate(perm))}, s46")
    a("s_and_b32 s46, s46, 7")
    a("s_lshl_b32 s46, s46, 5")
    a("s_lshr_b32 s47, s2, 3")
    a("s_add_u32 s46, s46, s47")
    a("v_mbcnt_lo_u32_b32 v12, -1, 0")
    a("v_mbcnt_hi_u32_b32 v12, -1, v12")
    a("s_lshl_b32 s40, s3, 6")
    a("v_add_u32 v0, s40, v12")
    srd(a, 8, 48, E * 32)
    srd(a, 12, 32, NT * TILE_BYTES)
    srd(a, 16, 32, NT * NT * S * 4, WS_DESC)
    a("s_mov_b64 s[6:7], s[86:87]")
    if o.prof: a("s_mov_b32 s71, 0")
    a("s_mov_b32 s48, 0")
    a("s_cmp_ge_u32 s3, 4")
    a("s_cbranch_scc1 P2_consumer")
    def twait(body):
        if o.prof == 1:
            a("s_waitcnt lgkmcnt(0)")
            a("s_memtime s[56:57]")
            a("s_waitcnt lgkmcnt(0)")
        body()
        if o.prof == 1:
            a("s_memtime s[58:59]")
            a("s_waitcnt lgkmcnt(0)")
            a("s_sub_u32 s56, s58, s56")
            a("s_add_u32 s71, s71, s56")
    D0 = 40; R0 = 64
    vU12 = 1; vTile = 2; vInc = 3; v3FC = 4; vCb = 5; vZ = 6; v2U2 = 7; v2U1 = 8; vSg = 9
    n2c = 10; a0c = 11; n2n = 13; a0n = 14
    vca = 16; vcb = 17; vra = 18; vrb = 19; vwa = 20; vwb = 21; vha = 22; vhb = 23; vt = 24; vt2 = 25; vPW = 26; vS = 28
    ODDC = 52; MORC = 54; ODDN = 84; MORN = 86; ROW0 = 82; M0_ = 88; M1_ = 90
    KSL, BSL = slicing(o)
    L0 = -(-(1 << 26) // KSL) // 4 + 1
    def warm(sl, part):
        nt = -(-L0 // 512); n0 = nt * o.wsh // 100; n1 = nt - n0
        uid[0] += 1
        a(f"s_mul_i32 s40, {sl}, {L0 - 1}")
        a(f"s_lshr_b32 s41, s2, 1")
        a(f"s_lshl_b32 s41, s41, 2")
        a(f"s_add_u32 s41, s41, {part}")
        a(f"s_mul_i32 s41, s41, {nt}")
        a(f"s_add_u32 s40, s40, s41")
        a(f"s_add_u32 s40, s40, {(o.swo // 4 - BSL // KSL // 4) & 0xffffffff}")
        a("s_bitcmp1_b32 s2, 0")
        a(f"s_cselect_b32 s41, {n0}, 0")
        a(f"s_add_u32 s40, s40, s41")
        a(f"s_cmp_ge_u32 s40, {E // 4}")
        a(f"s_cbranch_scc1 P2_we{uid[0]}")
        a(f"s_min_u32 s40, s40, {E // 4 - n1}")
        a(f"s_lshl_b32 s40, s40, 7")
        a(f"s_add_u32 s36, s8, s40")
        a(f"s_addc_u32 s37, s9, 0")
        for j in range(n1):
            if j == n0:
                a("s_bitcmp0_b32 s2, 0")
                a(f"s_cbranch_scc1 P2_we{uid[0]}")
            a(f"s_load_dwordx2 s[38:39], s[36:37], {128*j+60}")
        a(f"P2_we{uid[0]}:")
    def poll(level, tag, meanwhile=None):
        a("s_mov_b32 s51, 0")
        a(f"P2_poll{tag}:")
        a(f"buffer_load_dword v{vt}, v{vZ}, s[24:27], 0 offen offset:{128+4*level} sc1")
        a("s_add_u32 s51, s51, 1")
        a(f"s_cmp_gt_u32 s51, {o.maxpoll}")
        a("s_cbranch_scc1 P2_giveup")
        if meanwhile: a(f"s_call_b64 s[34:35], {meanwhile}")
        a("s_waitcnt vmcnt(0)")
        a(f"v_cmp_eq_u32 vcc, 0, v{vt}")
        a(f"s_cbranch_vccz P2_polled{tag}")
        a(f"s_sleep {o.gsleep}")
        a(f"s_branch P2_poll{tag}")
        a(f"P2_polled{tag}:")
    def ensure():
        uid[0] += 1; u = uid[0]
        a(f"v_cmp_lt_u32 vcc, s45, v{D0}")
        a(f"s_cbranch_vccz P2_have{u}")
        a("s_call_b64 s[42:43], P2_ensure")
        a(f"P2_have{u}:")
    def prep():
        ensure()
        a(f"v_bfe_u32 v{vt}, v{D0}, 1, 15")
        a(f"v_mad_u32_u24 v{a0n}, v{vt}, 12, v{vTile}")
        a(f"v_lshrrev_b32 v{n2n}, 16, v{D0}")
        a(f"v_and_b32 v{vt}, 0xfffe, v{D0}")
        a(f"v_sub_u32 v{n2n}, v{n2n}, v{vt}")
        a(f"v_and_b32 v{vt}, 1, v{D0}")
        a(f"v_cmp_eq_u32 s[{ODDN}:{ODDN+1}], 1, v{vt}")
        a(f"v_cmp_lt_u32 s[{MORN}:{MORN+1}], 32, v{n2n}")
        for k in range(S): a(f"v_mov_b32 v{D0+k}, v{D0+k+1}")
    def issue(i):
        t = (vt, vca)[i % 2]
        a(f"v_add_u32_dpp v{t}, v{a0n}, v{vU12} row_newbcast:{i} row_mask:0xf bank_mask:0xf")
        a(f"v_sub_u32_dpp v{t+1}, v{n2n}, v{v2U1} row_newbcast:{i} row_mask:0xf bank_mask:0xf")
        a(f"v_bitop3_b32 v{t}, v{t+1}, v{vSg}, v{t} bitop3:0xea")
        r = R0 + 4 * i
        a(f"buffer_load_dwordx3 v[{r}:{r+2}], v{t}, s[12:15], 0 offen sc1")
    def unhold():
        a("s_lshl_b32 s40, 1, s3")
        a(f"v_mov_b32 v{vt}, {XW + X_H}")
        a(f"v_mov_b32 v{vt2}, s40")
        a("s_mov_b64 exec, 1")
        a(f"ds_or_b32 v{vt}, v{vt2}")
        a("s_mov_b64 exec, -1")
    def pubb2():
        a("s_cmp_lg_u32 s48, 3")
        a("s_cbranch_scc1 P2_next1")
        a("s_call_b64 s[96:97], P2_pubb")
        a("P2_next1:")
    def warm_step():
        if o.pd & 4:
            a(f"s_cmp_lg_u32 s49, {o.pdr}")
            a("s_cbranch_scc1 P2_nwd")
            a("s_load_dwordx2 s[36:37], s[0:1], 24")
            a("s_lshl_b32 s40, s2, 2")
            a("s_add_u32 s40, s40, s3")
            a("s_mulk_i32 s40, 13")
            a(f"s_min_u32 s40, s40, {E // 64 - 13}")
            a("s_lshl_b32 s40, s40, 7")
            a("s_waitcnt lgkmcnt(0)")
            a("s_add_u32 s36, s36, s40")
            a("s_addc_u32 s37, s37, 0")
            for j in range(13): a(f"s_load_dwordx2 s[38:39], s[36:37], {128*j+60}")
            a("P2_nwd:")
        if o.sw:
            a(f"s_sub_u32 s4, s49, {o.swd}")
            a(f"s_cmp_lt_u32 s4, {o.sw0}")
            a("s_cbranch_scc1 P2_nowarm")
            a(f"s_cmp_ge_u32 s4, {-(-(E - o.swo) // (4 * (L0 - 1)))}")
            a("s_cbranch_scc1 P2_nowarm")
            warm("s4", "s3")
            a("P2_nowarm:")
    def next_round(regular):
        a("s_call_b64 s[42:43], P2_next")
        if regular:
            ensure()
            warm_step()
        a("s_call_b64 s[42:43], P2_wait")
    def wait_buffer(tag):
        a("s_add_u32 s50, s48, 1")
        a("s_lshr_b32 s50, s50, 1")
        a("s_mul_i32 s50, s50, 12")
        a("s_and_b32 s51, s48, 1")
        a("s_lshl_b32 s51, s51, 2")
        a(f"s_add_u32 s51, s51, {XW + X_CW}")
        a(f"v_mov_b32 v{vt2}, s51")
        a(f"P2_pw{tag}:")
        a(f"ds_read_b32 v{vt}, v{vt2}")
        a("s_waitcnt lgkmcnt(0)")
        a(f"v_readfirstlane_b32 s51, v{vt}")
        a("s_cmp_ge_u32 s51, s50")
        a(f"s_cbranch_scc1 P2_pg{tag}")
        a(f"s_sleep {o.psleep}")
        guard(a)
        a(f"s_branch P2_pw{tag}")
        a(f"P2_pg{tag}:")
    a("s_setprio 3")
    a("s_waitcnt vmcnt(0)")
    publish_a(a, vt, XW, "ap")
    a(f"s_lshl_b32 s47, s3, 6")
    a(f"v_add_u32 v{vTile}, s47, v12")
    a(f"s_lshl_b32 s50, s3, 2")
    a(f"s_add_u32 s50, s50, {XW + X_PW}")
    a(f"v_mov_b32 v{vPW}, s50")
    a(f"v_lshlrev_b32 v15, 8, v{vTile}")
    a(f"v_add_u32 v15, s46, v15")
    a(f"v_mul_u32_u24 v15, {4*S}, v15")
    a(f"v_mov_b32 v{D0+S}, 0")
    a(f"v_mul_u32_u24 v{vTile}, {TILE_BYTES}, v{vTile}")
    a(f"v_and_b32 v{vt}, 15, v12")
    a(f"v_mul_u32_u24 v{vU12}, 12, v{vt}")
    a(f"v_lshl_add_u32 v{v2U1}, v{vt}, 1, 1")
    a(f"v_add_u32 v{v2U2}, 1, v{v2U1}")
    a(f"v_mov_b32 v{vInc}, {(1 << RS) + 4}")
    a(f"v_mov_b32 v{v3FC}, 0x3fc")
    a(f"v_mov_b32 v{vSg}, 0x80000000")
    for r in (vCb, vZ, vra, vrb, vS, vS + 1): a(f"v_mov_b32 v{r}, 0")
    a("s_mov_b32 s49, 0")
    a(f"s_mov_b32 s5, {ROVF}")
    a(f"s_mov_b32 s{ROW0}, 0x00010001")
    a(f"s_mov_b32 s{ROW0+1}, 0x00010001")
    a(f"s_mov_b32 s45, {((o.nd * WREG // 12 * 2) << 16) | 0xffff}")
    nsave = P.n
    P.stamp()
    poll(LV_E, "e")
    k = 0
    while k < S:
        w = min(4, S - k)
        sfx = {4: "x4", 3: "x3", 2: "x2", 1: ""}[w]
        dst = f"v[{D0+k}:{D0+k+w-1}]" if w > 1 else f"v{D0+k}"
        a(f"buffer_load_dword{sfx} {dst}, v15, s[16:19], 0 offen offset:{4*k} sc1")
        k += w
    poll(LV_D, "d")
    P.stamp()
    prep()
    for i in range(16): issue(i)
    P.stamp()
    def masks(i):
        a(f"v_sub_co_u32_dpp v{vt}, vcc, v{n2c}, v{v2U1} row_newbcast:{i} row_mask:0xf bank_mask:0xf")
        a(f"s_and_b64 s[92:93], s[{ODDC}:{ODDC+1}], s[{ROW0}:{ROW0+1}]")
        a(f"s_nor_b64 s[{M0_}:{M0_+1}], vcc, s[92:93]")
        a(f"v_sub_co_u32_dpp v{vt2}, vcc, v{n2c}, v{v2U2} row_newbcast:{i} row_mask:0xf bank_mask:0xf")
        a(f"s_lshr_b64 s[{ODDC}:{ODDC+1}], s[{ODDC}:{ODDC+1}], 1")
        a(f"s_not_b64 s[{M1_}:{M1_+1}], vcc")
    def place(tg, i):
        r = R0 + 4 * i
        a(f"P2_retry{tg}{i}:")
        a(f"v_lshrrev_b32 v{vca}, 18, v{r}")
        a(f"v_lshrrev_b32 v{vcb}, 18, v{r+1}")
        a(f"v_bitop3_b32 v{vca}, v{vca}, v{v3FC}, v{vCb} bitop3:0xea")
        a(f"v_bitop3_b32 v{vcb}, v{vcb}, v{v3FC}, v{vCb} bitop3:0xea")
        a(f"s_mov_b64 exec, s[{M0_}:{M0_+1}]")
        a(f"ds_add_rtn_u32 v{vra}, v{vca}, v{vInc}")
        a(f"s_mov_b64 exec, s[{M1_}:{M1_+1}]")
        a(f"ds_add_rtn_u32 v{vrb}, v{vcb}, v{vInc}")
        a(f"s_mov_b64 exec, -1")
        a(f"v_and_b32 v{vwa}, 0xf00fffff, v{r}")
        a(f"v_and_b32 v{vwb}, 0xf00fffff, v{r+1}")
        a("s_waitcnt lgkmcnt(0)")
        a(f"v_and_b32 v{vra}, {RMASK}, v{vra}")
        a(f"v_and_b32 v{vrb}, {RMASK}, v{vrb}")
        a(f"v_lshrrev_b32 v{vha}, 1, v{vra}")
        a(f"v_lshrrev_b32 v{vhb}, 1, v{vrb}")
        a(f"v_or_b32 v{vt}, v{vra}, v{vrb}")
        a(f"v_cmp_lt_u32 vcc, {ROVF}, v{vt}")
        a(f"s_mov_b64 exec, s[{M0_}:{M0_+1}]")
        a(f"ds_write_b32 v{vra}, v{vwa} offset:{WB}")
        a(f"ds_write_b16 v{vha}, v{r+2} offset:{CB}")
        a(f"s_mov_b64 exec, s[{M1_}:{M1_+1}]")
        a(f"ds_write_b32 v{vrb}, v{vwb} offset:{WB}")
        a(f"ds_write_b16_d16_hi v{vhb}, v{r+2} offset:{CB}")
        a(f"s_mov_b64 exec, -1")
        a(f"s_cbranch_vccnz P2_stall{tg}{i}")
        a(f"s_and_b64 s[92:93], s[{MORC}:{MORC+1}], s[{ROW0}:{ROW0+1}]")
        a(f"s_cbranch_scc1 P2_more{tg}{i}")
    def take_next():
        a(f"v_mov_b32 v{n2c}, v{n2n}")
        a(f"v_mov_b32 v{a0c}, v{a0n}")
        a(f"s_mov_b64 s[{ODDC}:{ODDC+1}], s[{ODDN}:{ODDN+1}]")
        a(f"s_mov_b64 s[{MORC}:{MORC+1}], s[{MORN}:{MORN+1}]")
    assert S <= 12
    CA = [R0 + 4 * i + 3 for i in range(16)]; CBr = list(range(30, 40)) + list(range(53, 59))
    vMk = 59; vOob = 60; vAcc = 61
    a(f"v_mov_b32 v{vMk}, {RMASK}")
    a(f"v_mov_b32 v{vOob}, {1 << 19}")
    def first_only(tag, body):
        a("s_cmp_lg_u32 s49, 0"); a(f"s_cbranch_scc1 P2_nf{tag}"); body(); a(f"P2_nf{tag}:")
    if o.al2:
        a(".p2align 6")
        for _ in range(o.al2 - 1): a("s_nop 0")
    a("P2_pslice:")
    if o.qpr != 3: a(f"s_setprio {o.qpr}")
    take_next()
    a(f"v_mov_b32 v{vAcc}, 0")
    for i in range(16):
        r = R0 + 4 * i
        a(f"v_sub_co_u32_dpp v{vt}, vcc, v{n2c}, v{v2U1} row_newbcast:{i} row_mask:0xf bank_mask:0xf")
        a(f"s_and_b64 s[92:93], s[{ODDC}:{ODDC+1}], s[{ROW0}:{ROW0+1}]")
        a(f"s_or_b64 s[{M0_}:{M0_+1}], vcc, s[92:93]")
        a(f"v_sub_co_u32_dpp v{vt2}, vcc, v{n2c}, v{v2U2} row_newbcast:{i} row_mask:0xf bank_mask:0xf")
        a(f"s_lshr_b64 s[{ODDC}:{ODDC+1}], s[{ODDC}:{ODDC+1}], 1")
        a(f"s_waitcnt vmcnt({15 - i})")
        a(f"v_lshrrev_b32 v{vca}, 18, v{r}")
        a(f"v_lshrrev_b32 v{vcb}, 18, v{r+1}")
        a(f"v_bitop3_b32 v{vca}, v{vca}, v{v3FC}, v{vCb} bitop3:0xea")
        a(f"v_bitop3_b32 v{vcb}, v{vcb}, v{v3FC}, v{vCb} bitop3:0xea")
        a(f"v_cndmask_b32 v{CA[i]}, v{vca}, v{vOob}, s[{M0_}:{M0_+1}]")
        a(f"v_cndmask_b32 v{CBr[i]}, v{vcb}, v{vOob}, vcc")
    if o.qpr != 3: a("s_setprio 3")
    if o.wlate: warm_step()
    def w0():
        lds_wait(a, vt, XW + X_I, 12, "i", 1)
        P.stamp()
    first_only("i", w0)
    a("s_call_b64 s[42:43], P2_wait")
    if o.unb:
        if o.fpr != 3: a(f"s_setprio {o.fpr}")
        for i in range(16):
            t = 16; r = R0 + 4 * i
            a(f"ds_add_rtn_u32 v{t}, v{CA[i]}, v{vInc}")
            a(f"ds_add_rtn_u32 v{t+1}, v{CBr[i]}, v{vInc}")
            a(f"v_and_b32 v24, 0xf00fffff, v{r}")
            a(f"v_and_b32 v25, 0xf00fffff, v{r+1}")
            a("s_waitcnt lgkmcnt(0)")
            a(f"v_bitop3_b32 v{CA[i]}, v{vMk}, v{t}, v{CA[i]} bitop3:0xca")
            a(f"v_bitop3_b32 v{CBr[i]}, v{vMk}, v{t+1}, v{CBr[i]} bitop3:0xca")
            a(f"v_lshrrev_b32 v27, 1, v{CA[i]}")
            a(f"v_lshrrev_b32 v15, 1, v{CBr[i]}")
            a(f"ds_write_b32 v{CA[i]}, v24 offset:{WB}")
            a(f"ds_write_b16 v27, v{r+2} offset:{CB}")
            if o.unb == 3: a("s_waitcnt lgkmcnt(0)")
            a(f"ds_write_b32 v{CBr[i]}, v25 offset:{WB}")
            a(f"ds_write_b16_d16_hi v15, v{r+2} offset:{CB}")
            a(f"v_bitop3_b32 v{vAcc}, v{vAcc}, v{CA[i]}, v{CBr[i]} bitop3:0xfe")
            if o.unb >= 2: a("s_waitcnt lgkmcnt(0)")
        if o.fpr != 3: a("s_setprio 3")
    else:
        if o.fpr != 3: a(f"s_setprio {o.fpr}")
        def atom(b):
            for k in range(2):
                i = 2 * b + k; t = 16 + 4 * (b % 2) + 2 * k
                a(f"ds_add_rtn_u32 v{t}, v{CA[i]}, v{vInc}")
                a(f"ds_add_rtn_u32 v{t+1}, v{CBr[i]}, v{vInc}")
        atom(0)
        for b in range(8):
            if b < 7: atom(b + 1)
            a(f"s_waitcnt lgkmcnt({(4 if b < 7 else 0) + (8 if b else 0)})")
            for k in range(2):
                i = 2 * b + k; t = 16 + 4 * (b % 2) + 2 * k; r = R0 + 4 * i
                a(f"v_bitop3_b32 v{CA[i]}, v{vMk}, v{t}, v{CA[i]} bitop3:0xca")
                a(f"v_bitop3_b32 v{CBr[i]}, v{vMk}, v{t+1}, v{CBr[i]} bitop3:0xca")
                a(f"v_and_b32 v24, 0xf00fffff, v{r}")
                a(f"v_and_b32 v25, 0xf00fffff, v{r+1}")
                a(f"v_lshrrev_b32 v27, 1, v{CA[i]}")
                a(f"v_lshrrev_b32 v15, 1, v{CBr[i]}")
                a(f"ds_write_b32 v{CA[i]}, v24 offset:{WB}")
                a(f"ds_write_b16 v27, v{r+2} offset:{CB}")
                a(f"ds_write_b32 v{CBr[i]}, v25 offset:{WB}")
                a(f"ds_write_b16_d16_hi v15, v{r+2} offset:{CB}")
                a(f"v_bitop3_b32 v{vAcc}, v{vAcc}, v{CA[i]}, v{CBr[i]} bitop3:0xfe")
        if o.fpr != 3: a("s_setprio 3")
    a(f"v_cmp_lt_u32 vcc, s5, v{vAcc}")
    a(f"v_mov_b32 v{vra}, 0")
    a(f"v_mov_b32 v{vrb}, 0")
    a(f"s_or_b32 s47, s{MORC}, s{MORC+1}")
    a("s_lshr_b32 s40, s47, 16")
    a("s_or_b32 s47, s47, s40")
    a("s_cmp_lg_u64 vcc, 0")
    a("s_cselect_b32 s47, -1, s47")
    a("s_and_b32 s47, s47, 0xffff")
    a("s_cbranch_scc1 P2_sweep")
    a("P2_swept:")
    if o.prof == 1: first_only("s", P.stamp)
    a("s_add_u32 s49, s49, 1")
    a(f"s_cmp_ge_u32 s49, {S}")
    a("s_cbranch_scc1 P2_pdone")
    def publish(tag, upto):
        a(f"s_cmp_ge_u32 s48, {upto}")
        a(f"s_cbranch_scc1 P2_ff{tag}")
        a("s_call_b64 s[42:43], P2_next")
        a(f"P2_ff{tag}:")
    publish("0", "s49" if o.pub == 0 else o.pub0)
    prep()
    for i in range(16): issue(i)
    if o.pub == 1: publish("1", "s49")
    if o.pub == 4:
        a("s_waitcnt vmcnt(0)")
        publish("1", "s49")
    if not o.wlate: warm_step()
    if o.dl1: a(f"s_sleep {o.dl1}")
    if o.pub == 2: publish("1", "s49")
    ensure()
    pubb2()
    a("s_branch P2_pslice")
    a("P2_next:")
    a("s_add_u32 s48, s48, 1")
    if o.maxr:
        a(f"s_cmp_gt_u32 s48, {o.maxr}")
        a("s_cbranch_scc1 P2_giveup")
    a(f"v_mov_b32 v{vt}, s48")
    a("s_waitcnt lgkmcnt(0)")
    a(f"ds_write_b32 v{vPW}, v{vt}")
    a(f"v_xor_b32 v{vCb}, 1024, v{vCb}")
    a("s_setpc_b64 s[42:43]")
    a("P2_wait:")
    twait(lambda: wait_buffer("n"))
    a("s_cmp_lg_u32 s48, 3")
    a("s_cbranch_scc1 P2_next2")
    a("s_call_b64 s[96:97], P2_pubb")
    a("P2_next2:")
    a("s_setpc_b64 s[42:43]")
    a("P2_pubb:")
    lds_ticket(a, vS, XW + X_C)
    a("s_cmp_lg_u32 s40, 0")
    a("s_cbranch_scc1 P2_norelb")
    lds_wait(a, vS, XW + X_B, 12, "b", 1)
    arrive(a, vS, LV_B)
    release(a, vS, LV_B, "b")
    a("s_setpc_b64 s[96:97]")
    a("P2_ensure:")
    poll(LV_A, "a")
    a(f"s_mov_b32 s45, {(CHA << 16) | 0xffff}")
    a(f"v_cmp_lt_u32 vcc, s45, v{D0}")
    a("s_cbranch_vccz P2_ens1")
    unhold()
    a("s_call_b64 s[96:97], P2_pubb")
    poll(LV_B, "b")
    a("s_mov_b32 s45, -1")
    a("P2_ens1:")
    a("s_setpc_b64 s[42:43]")
    for tg, i in [(t_, i_) for t_ in (("f",) if o.burst else ("", "f")) for i_ in range(16)]:
        r = R0 + 4 * i
        a(f"P2_stall{tg}{i}:")
        a(f"v_cmp_lt_u32 s[{M0_}:{M0_+1}], s5, v{vra}")
        a(f"v_cmp_lt_u32 s[{M1_}:{M1_+1}], s5, v{vrb}")
        next_round(False)
        a(f"s_branch P2_retry{tg}{i}")
        a(f"P2_more{tg}{i}:")
        a(f"s_lshl_b64 exec, s[{ROW0}:{ROW0+1}], {i}")
        a(f"v_max_u32 v{n2c}, 32, v{n2c}")
        a(f"v_subrev_u32 v{n2c}, 32, v{n2c}")
        a(f"v_add_u32 v{a0c}, 192, v{a0c}")
        a(f"s_mov_b64 exec, -1")
        a(f"v_sub_u32_dpp v{vt2}, v{n2c}, v{v2U1} row_newbcast:{i} row_mask:0xf bank_mask:0xf")
        a(f"v_add_u32_dpp v{vt}, v{a0c}, v{vU12} row_newbcast:{i} row_mask:0xf bank_mask:0xf")
        a(f"v_bitop3_b32 v{vt}, v{vt2}, v{vSg}, v{vt} bitop3:0xea")
        a(f"buffer_load_dwordx3 v[{r}:{r+2}], v{vt}, s[12:15], 0 offen sc1")
        a(f"v_cmp_lt_u32 vcc, 32, v{n2c}")
        a(f"s_lshr_b64 s[92:93], vcc, {i}")
        a(f"s_and_b64 s[92:93], s[92:93], s[{ROW0}:{ROW0+1}]")
        a(f"s_andn2_b64 s[{MORC}:{MORC+1}], s[{MORC}:{MORC+1}], s[{ROW0}:{ROW0+1}]")
        a(f"s_or_b64 s[{MORC}:{MORC+1}], s[{MORC}:{MORC+1}], s[92:93]")
        a(f"v_sub_co_u32_dpp v{vt2}, vcc, v{n2c}, v{v2U2} row_newbcast:{i} row_mask:0xf bank_mask:0xf")
        a(f"s_not_b64 s[{M1_}:{M1_+1}], vcc")
        a(f"v_sub_co_u32_dpp v{vt2}, vcc, v{n2c}, v{v2U1} row_newbcast:{i} row_mask:0xf bank_mask:0xf")
        a(f"s_not_b64 s[{M0_}:{M0_+1}], vcc")
        a("s_waitcnt vmcnt(0)")
        a(f"s_branch P2_retry{tg}{i}")
    for i in range(16):
        a(f"P2_fix{i}:")
        a(f"s_bitset0_b32 s47, {i}")
        a(f"v_cmp_lt_u32 vcc, 32, v{n2c}")
        a(f"v_cmp_lt_u32 s[{M0_}:{M0_+1}], s5, v{CA[i]}")
        a(f"v_cmp_lt_u32 s[{M1_}:{M1_+1}], s5, v{CBr[i]}")
        a(f"s_lshr_b64 s[{MORC}:{MORC+1}], vcc, {i}")
        place("f", i)
        if i < 15: a("s_branch P2_sweep")
    a("P2_sweep:")
    for i in range(16):
        a(f"s_bitcmp1_b32 s47, {i}")
        a(f"s_cbranch_scc1 P2_fix{i}")
    a("s_branch P2_swept")
    a("P2_giveup:")
    unhold()
    a("P2_pdone:")
    a("s_add_u32 s48, s48, 0x40000001")
    a(f"v_mov_b32 v{vt}, s48")
    a("s_waitcnt lgkmcnt(0)")
    a(f"ds_write_b32 v{vPW}, v{vt}")
    a(f"s_setprio {o.eprio}")
    if o.sw and o.swd:
        warm(S - 1, "s3")
        a("s_waitcnt lgkmcnt(0)")
    a("s_load_dwordx2 s[6:7], s[0:1], 24")
    a("s_load_dwordx2 s[34:35], s[0:1], 40")
    a("s_load_dwordx8 s[36:43], s[0:1], 56")
    DS = 30; CEN = 56; RB0 = 64; t = 60; X = 1
    a("v_and_b32 v13, 15, v12")
    a("v_lshrrev_b32 v14, 4, v12")
    a(f"v_lshlrev_b32 v{X}, 7, v14")
    a(f"v_lshl_add_u32 v{X}, v13, 1, v{X}")
    a(f"v_and_b32 v{X+1}, 0xff, v{X}")
    a(f"v_and_b32 v{X+2}, 1, v14")
    a(f"v_lshlrev_b32 v{X+2}, 3, v{X+2}")
    a(f"v_lshrrev_b32 v{X+3}, 1, v14")
    a(f"v_lshlrev_b32 v{X+3}, 10, v{X+3}")
    a(f"v_lshl_add_u32 v{X+3}, v13, 1, v{X+3}")
    a("s_and_b32 s47, s46, 31")
    a("s_lshl_b32 s47, s47, 5")
    a(f"v_add_u32 v{X+3}, s47, v{X+3}")
    a(f"v_cmp_gt_u32 s[88:89], 32, v12")
    a("s_waitcnt vmcnt(0) lgkmcnt(0)")
    a("s_lshr_b32 s47, s46, 5")
    a(f"s_mul_i32 s47, s47, {CL * 2}")
    srd(a, 20, 6, CL * 2, "s47")
    srd(a, 28, 42, 512)
    srd(a, 12, 38, 256)
    srd(a, 16, 36, 256)
    srd(a, 52, 34, 16)
    srd(a, 84, 40, 512)
    for c in range(4): a(f"buffer_load_ushort v{CEN+c}, v{X+2}, s[52:55], 0 offen offset:{2*c}")
    a("s_mul_i32 s47, s3, 25")
    for k in range(25):
        a("s_mul_i32 s50, s47, 57")
        a("s_lshr_b32 s50, s50, 9")
        a("s_min_u32 s50, s50, 4")
        a("s_lshl_b32 s51, s47, 1")
        a("s_sub_u32 s50, s51, s50")
        a("s_lshl_b32 s50, s50, 10")
        a(f"v_add_u32 v{DS+k}, s50, v{X+3}")
        a("s_add_u32 s47, s47, 1")
        a(f"buffer_load_ushort v{DS+k}, v{DS+k}, s[20:23], 0 offen")
    assert all((n * 57) >> 9 == n // 9 for n in range(45))
    Y = 116
    for c in range(4): a(f"buffer_load_ushort v{Y+c}, v{X}, s[28:31], 0 offen offset:{32*c}")
    for c in range(4): a(f"buffer_load_ushort v{Y+4+c}, v{X+1}, s[12:15], 0 offen offset:{32*c}")
    for c in range(4): a(f"buffer_load_ushort v{Y+8+c}, v{X+1}, s[16:19], 0 offen offset:{32*c}")
    for c in range(4): a(f"buffer_load_ushort v{16+c}, v{X}, s[84:87], 0 offen offset:{32*c}")
    a("s_waitcnt vmcnt(40)")
    for c in range(4): a(f"v_lshlrev_b32 v{CEN+c}, 16, v{CEN+c}")
    def rnd():
        if o.nornd: return
        for u in range(2):
            a(f"v_cvt_pk_bf16_f32 v{t+2*u+1}, v{t+2*u}, v{t+2*u+1}")
        for u in range(2):
            a(f"v_lshlrev_b32 v{t+2*u}, 16, v{t+2*u+1}")
            a(f"v_and_b32 v{t+2*u+1}, 0xffff0000, v{t+2*u+1}")
    for k in range(25):
        d = DS + k
        a(f"s_waitcnt vmcnt({40 - k})")
        a(f"v_lshlrev_b32 v{d}, 16, v{d}")
        for c in range(4): a(f"v_sub_f32 v{t+c}, v{d}, v{CEN+c}")
        rnd()
        for c in range(4): a(f"v_mul_f32 v{t+c}, v{t+c}, v{t+c}")
        rnd()
        for c in range(4): a(f"v_mul_f32 v{t+c}, 0xc1200000, v{t+c}")
        rnd()
        for c in range(4): a(f"v_mul_f32 v{t+c}, 0x3fb8aa3b, v{t+c}")
        for c in range(4): a(f"v_exp_f32 v{t+c}, v{t+c}")
        for u in range(2): a(f"v_cvt_pk_bf16_f32 v{RB0+2*k+u}, v{t+2*u}, v{t+2*u+1}")
    a("s_waitcnt vmcnt(0)")
    Z = 30
    for u in range(2):
        a(f"v_lshl_or_b32 v{Z+8+u}, v{Y+2*u+1}, 16, v{Y+2*u}")
        a(f"v_lshl_or_b32 v{Z+10+u}, v{17+2*u}, 16, v{16+2*u}")
        a(f"v_lshl_or_b32 v{Y+4+u}, v{Y+5+2*u}, 16, v{Y+4+2*u}")
        a(f"v_lshl_or_b32 v{Y+8+u}, v{Y+9+2*u}, 16, v{Y+8+2*u}")
    for u in range(2):
        a(f"v_cndmask_b32 v{Z+u}, 0, v{Y+4+u}, s[88:89]")
        a(f"v_cndmask_b32 v{Z+2+u}, v{Y+4+u}, 0, s[88:89]")
        a(f"v_cndmask_b32 v{Z+4+u}, 0, v{Y+8+u}, s[88:89]")
        a(f"v_cndmask_b32 v{Z+6+u}, v{Y+8+u}, 0, s[88:89]")
    if o.ce:
        a("s_getpc_b64 s[36:37]")
        a("P2_pc2:")
        a("s_lshr_b32 s40, s2, 3")
        a("s_lshl_b32 s40, s40, 2")
        a("s_add_u32 s40, s40, s3")
        a("s_lshl_b32 s40, s40, 7")
        a("s_min_u32 s40, s40, P2_end-P2_drain1-128")
        a("s_add_u32 s40, s40, P2_drain1-P2_pc2")
        a("s_add_u32 s36, s36, s40")
        a("s_addc_u32 s37, s37, 0")
        a("s_load_dword s38, s[36:37], 0")
        a("s_load_dword s39, s[36:37], 64")
    a(f"v_lshlrev_b32 v{X}, 3, v12")
    a(f"v_add_u32 v{X+1}, {WT}, v{X}")
    a(f"v_and_b32 v{X+2}, 3, v12")
    a(f"v_lshlrev_b32 v{X+2}, 2, v{X+2}")
    a(f"v_add_u32 v{X+2}, {XW + X_PW}, v{X+2}")
    a("P2_dw:")
    a(f"ds_read_b32 v{vt}, v{X+2}")
    a("s_waitcnt lgkmcnt(0)")
    a(f"v_cmp_gt_u32 vcc, 2.0, v{vt}")
    a("s_cbranch_vccz P2_dg")
    a(f"s_sleep {o.psleep}")
    guard(a)
    a("s_branch P2_dw")
    a("P2_dg:")
    a(f"v_readlane_b32 s48, v{vt}, 0")
    for k in range(1, 4):
        a(f"v_readlane_b32 s50, v{vt}, {k}")
        a("s_max_u32 s48, s48, s50")
    a("s_and_b32 s48, s48, 0x3fffffff")
    wait_buffer("e")
    a("s_bitcmp1_b32 s48, 0")
    a(f"s_cselect_b32 s50, {RB_AT[1] - RB_AT[0]}, 0")
    a(f"s_add_u32 s50, s50, {RB_AT[0]}")
    a(f"s_mul_i32 s51, s3, {25*512}")
    a("s_add_u32 s50, s50, s51")
    a(f"v_add_u32 v{X}, s50, v{X}")
    for k in range(6): a(f"ds_write_b64 v{X+1}, v[{Z+2*k}:{Z+2*k+1}] offset:{512*k}")
    for k in range(25): a(f"ds_write_b64 v{X}, v[{RB0+2*k}:{RB0+2*k+1}] offset:{512*k}")
    lds_count(a, vt, XW + X_R)
    a("s_waitcnt lgkmcnt(0)")
    if o.prof == 1:
        P.stamp(); P.dump(32, 0x80000, 8, 3); P.n = nsave
    a("s_endpgm")
    a("P2_consumer:")
    ACC = 60; G0 = 52; B0 = 44; A2 = 28; vTw = 32; vTr = 33; vM = 24; vC = 20; vX = 16
    bA = 1; bE = 2; bC = 3; bR = 4; vH = 5; vL = 6; vCA = 7; vCI = 8; vA = 9; vE = 10
    a("s_sub_u32 s47, s3, 4")
    a("s_min_u32 s44, s47, 4")
    a("s_lshl_b32 s49, s47, 4")
    a("s_add_u32 s49, s49, s44")
    a("s_cmp_lt_u32 s47, 4")
    a("s_cselect_b32 s50, 17, 16")
    a(f"s_cselect_b32 s84, 0, {MARK & 0xffffff}")
    a(f"s_cselect_b32 s85, {17*WSTR//16-192}, {16*WSTR//16-192}")
    a("s_bfm_b64 s[92:93], s85, 0")
    a(f"v_subrev_u32 v60, 256, v0")
    a(f"v_lshlrev_b32 v60, 4, v60")
    for k in range(1, 4): a(f"v_add_u32 v{60+k}, {4*12288*k}, v60")
    lds_wait(a, vX, XW + X_S, 16, "s", o.ssleep)
    P.stamp()
    NL = o.nl; vSt = 34
    for j in range(13):
        k = 12 - j
        a(f"ds_read_b128 v[{68+4*j}:{71+4*j}], v{60+k//4} offset:{STG+12288*(k%4)}")
    a(f"v_mov_b32 v{vSt}, v63")
    q = 36
    for i in range(4): a(f"v_mov_b32 v{q+i}, {MARK}")
    a(f"v_add_u32 v61, {STG + 12288 * K0}, v60")
    a(f"v_add_u32 v62, {STG + 12288 * K1}, v60")
    for k in range(4): a(f"ds_write_b128 v61, v[{q}:{q+3}] offset:{12288 * k}")
    a("s_cmp_ge_u32 s47, 4")
    a("s_cbranch_scc1 P2_notab")
    a(f"v_and_b32 v52, 15, v12")
    a(f"v_lshrrev_b32 v53, 4, v12")
    a(f"v_lshrrev_b32 v56, 2, v52")
    a(f"v_cmp_eq_u32 vcc, v56, v53")
    a(f"v_and_b32 v56, 3, v12")
    a(f"v_lshlrev_b32 v56, 4, v56")
    a(f"v_mov_b32 v54, 0xffff")
    a(f"v_mov_b32 v55, 0")
    a(f"v_cndmask_b32 v54, 0, v54, vcc")
    a(f"v_lshlrev_b64 v[54:55], v56, v[54:55]")
    a(f"v_and_b32 v56, 1, v53")
    a(f"v_lshlrev_b32 v56, 3, v56")
    a(f"v_lshl_add_u32 v52, v52, 4, v56")
    a(f"v_lshrrev_b32 v53, 1, v53")
    a(f"v_lshl_add_u32 v52, v53, 8, v52")
    a(f"v_and_b32 v56, 255, v0")
    a(f"v_lshlrev_b32 v53, 2, v56")
    a(f"v_mul_u32_u24 v56, {WSTR}, v56")
    a(f"v_add_u32 v56, {(64 - CAP) << RS}, v56")
    a(f"v_add_u32 v57, {X1}, v56")
    a(f"ds_write_b64 v52, v[54:55] offset:{LUT}")
    a(f"ds_write_b32 v53, v56")
    a(f"ds_write_b32 v53, v57 offset:1024")
    a("P2_notab:")
    lds_count(a, vX, XW + X_I)
    a("s_waitcnt vmcnt(0)")
    publish_a(a, vX, XW, "ac")
    def store_b(j):
        a(f"buffer_store_dwordx4 v[{68+4*j}:{71+4*j}], v{vSt}, s[20:23], 0 offen {o.p1_st}")
        a(f"v_subrev_u32 v{vSt}, 12288, v{vSt}")
    if o.spr: a(f"s_setprio {o.spr}")
    for j in range(13 - NL): store_b(j)
    if o.spr: a("s_setprio 0")
    for k in range(4): a(f"ds_write_b128 v62, v[{q}:{q+3}] offset:{12288 * k}")
    lds_count(a, vX, XW + X_CW + 4)
    a("v_and_b32 v13, 15, v12")
    a("v_lshrrev_b32 v14, 4, v12")
    a(f"v_and_b32 v0, 3, v12")
    a(f"v_lshlrev_b32 v0, 2, v0")
    a(f"v_add_u32 v0, {XW + X_CW}, v0")
    a(f"s_mul_i32 s51, s49, {WSTR}")
    a(f"s_lshr_b32 s86, s51, 1")
    a(f"s_add_u32 s86, s86, {CB}")
    a(f"v_lshl_add_u32 v{bC}, v14, 4, s86")
    a(f"v_mul_u32_u24 v{vCI}, {WSTR}, v12")
    a(f"s_add_u32 s86, s51, {(64 - CAP) << RS}")
    a(f"v_add_u32 v{vCI}, s86, v{vCI}")
    a(f"s_add_u32 s51, s51, {WB}")
    a(f"v_lshl_add_u32 v{bR}, v12, 4, s51")
    a(f"v_and_b32 v{vA}, 12, v12")
    a(f"v_lshl_add_u32 v{bA}, v14, 5, v{vA}")
    a(f"v_bfe_u32 v{vA}, v12, 1, 1")
    a(f"v_lshl_add_u32 v{bA}, v{vA}, 4, v{bA}")
    a(f"v_add_u32 v{bA}, s51, v{bA}")
    a(f"v_and_b32 v{vH}, 1, v12")
    a(f"v_lshlrev_b32 v{vH}, 4, v{vH}")
    a(f"s_mul_i32 s87, s47, {TSZ}")
    a(f"s_add_u32 s87, s87, {SC}")
    a(f"v_mul_u32_u24 v{vTw}, 576, v{vA}")
    a(f"v_lshrrev_b32 v{vA}, 2, v12")
    a(f"v_lshl_add_u32 v{vTw}, v{vA}, 5, v{vTw}")
    a(f"v_add3_u32 v{vTw}, v{vTw}, v{vH}, s87")
    a(f"v_lshl_add_u32 v{vTr}, v12, 3, s87")
    a(f"v_and_b32 v{vL}, 1, v12")
    a(f"v_lshlrev_b32 v{vL}, 3, v{vL}")
    a(f"v_and_b32 v{vA}, 2, v12")
    a(f"v_lshl_add_u32 v{vL}, v{vA}, 7, v{vL}")
    a(f"v_add_lshl_u32 v{vCA}, v12, s49, 2")
    a(f"v_cmp_gt_u32 vcc, s50, v12")
    a(f"s_mov_b32 s85, {(64 - CAP + 33) << RS}")
    a("s_mov_b32 s94, 0")
    a("s_mov_b32 s95, 0xffff0000")
    a(f"v_cndmask_b32 v{vCA}, 2.0, v{vCA}, vcc")
    a(f"s_lshl_b32 s51, s49, 5")
    a("s_and_b32 s40, s46, 31")
    a(f"s_add_u32 s51, s51, s40")
    a(f"s_lshl_b32 s51, s51, 4")
    a(f"v_add_lshl_u32 v15, v13, s51, 5")
    a(f"v_lshl_add_u32 v15, v14, 3, v15")
    a(f"v_lshlrev_b32 v13, 3, v12")
    for i in range(16): a(f"v_mov_b32 v{B0+i}, 0")
    for i in range(68):
        if not 15 - NL <= i // 4 <= 14: a(f"v_mov_b32 v{ACC+i}, 0")
    a("s_lshr_b32 s40, s46, 5")
    a(f"s_mul_i32 s40, s40, {CL * 32}")
    srd(a, 28, 6, CL * 32, "s40")
    srd(a, 12, 8, CL * 32, "s40")
    def lazy(t):
        j = 13 - NL + t
        store_b(j)
        for u in range(4): a(f"v_mov_b32 v{68+4*j+u}, 0")
    lstep = {}
    for t in range(NL):
        i = o.l0 + t * o.lstep // 2
        assert i <= 14 - NL + t
        lstep.setdefault(i, []).append(t)
    if NL:
        a("s_mov_b32 s42, 1")
        P.stamp()
        a(f"v_mov_b32 v{vX+2}, {XW + X_H}")
        a("P2_pre:")
        a(f"ds_read_b32 v{vX}, v0 offset:{X_PW - X_CW}")
        a(f"ds_read_b32 v{vX+1}, v{vX+2}")
        a("s_waitcnt lgkmcnt(0)")
        a(f"v_cmp_eq_u32 vcc, 0, v{vX}")
        a("s_cbranch_vccz P2_round0")
        a(f"v_cmp_eq_u32 vcc, 0, v{vX+1}")
        a("s_cbranch_vccz P2_flush")
        a(f"s_sleep {o.csleep}")
        guard(a)
        a("s_branch P2_pre")
        a("P2_flush:")
        for t in range(NL): lazy(t)
        a("s_mov_b32 s42, 0")
    a("s_waitcnt vmcnt(0)")
    lds_count(a, vX, XW + X_B)
    if not NL: P.stamp()
    def reads1(par, i, second):
        oa = par * X1 + i * WSTR + (128 if second else 0)
        a(f"ds_read_b32 v{vA}, v{bA} offset:{oa}")
    def reads2(par, i, second):
        oc = (par * X1 + i * WSTR + (128 if second else 0)) // 2
        a(f"v_add_u32_dpp v{vE}, v{bE}, v{vL} quad_perm:[0,0,0,0] row_mask:0xf bank_mask:0xf")
        a(f"v_add_u32_dpp v{vE+1}, v{bE}, v{vL} quad_perm:[2,2,2,2] row_mask:0xf bank_mask:0xf")
        a(f"ds_read_b64_tr_b16 v[{vM}:{vM+1}], v{vE} offset:{LUT}")
        a(f"ds_read_b64_tr_b16 v[{vM+2}:{vM+3}], v{vE+1} offset:{LUT}")
        a(f"ds_read_b128 v[{vC}:{vC+3}], v{bC} offset:{oc}")
    def addr():
        a(f"v_lshrrev_b32 v{bE}, 24, v{vA}")
        a(f"v_mad_u32_u24 v{vA}, v{vA}, 32, v{vH}")
    def transpose(g):
        a(f"ds_write_b128 v{vTw}, v[{g}:{g+3}]")
        a(f"ds_read_b64_tr_b16 v[{A2}:{A2+1}], v{vTr}")
        a(f"ds_read_b64_tr_b16 v[{A2+2}:{A2+3}], v{vTr} offset:576")
    def mfma2(i, b):
        c = ACC + 4 * i
        a(f"v_mfma_f32_16x16x32_bf16 v[{c}:{c+3}], v[{A2}:{A2+3}], v[{b}:{b+3}], v[{c}:{c+3}]")
    NS = 17
    for par in range(2):
        if o.al and par == 0:
            a(".p2align 6")
            for _ in range(o.al - 1): a("s_nop 0")
        a(f"P2_round{par}:")
        def spin():
            a(f"P2_cw{par}:")
            a(f"ds_read_b32 v{vX+1}, v0 offset:{X_PW - X_CW}")
            reads1(par, 0, False)
            a(f"ds_read_b32 v{vX}, v{vCA} offset:{1024*par}")
            a("s_waitcnt lgkmcnt(2)")
            a(f"v_cmp_ge_u32 vcc, s48, v{vX+1}")
            a(f"v_and_b32 v{vX+1}, 0x3fffffff, v{vX+1}")
            a(f"s_cbranch_vccz P2_cg{par}")
            a(f"s_sleep {o.csleep}")
            guard(a)
            a(f"s_branch P2_cw{par}")
            a(f"P2_cg{par}:")
        twait(spin)
        if o.prof == 1:
            a("s_memrealtime s[58:59]")
            a("s_waitcnt lgkmcnt(0)")
            a("s_mov_b32 m0, s48")
            a("v_writelane_b32 v14, s58, m0")
            a("s_add_u32 m0, s48, 16")
            a("v_writelane_b32 v14, s56, m0")
        a(f"v_cmp_lt_u32 vcc, s48, v{vX+1}")
        a(f"s_cbranch_vccz P2_drain{1-par}")
        if o.prof == 1 and par == 0:
            a("s_cmp_lg_u32 s48, 0"); a("s_cbranch_scc1 P2_nostamp"); P.stamp(); a("P2_nostamp:")
        if par: a(f"v_add_u32 v{vX+2}, {X1}, v{vCI}")
        a(f"ds_write_b32 v{vCA}, v{vX+2 if par else vCI} offset:{1024*par}")
        a("s_add_u32 s48, s48, 1")
        for i in range(NS):
            p = (par * NS + i) % 2
            g = G0 + 4 * p; b = B0 + 4 * p
            plain = 2 <= i < NS - 1
            a("s_waitcnt vmcnt(1) lgkmcnt(0)" if o.lay == 2 else "s_waitcnt lgkmcnt(0)")
            if i == NS - 1: a(f"v_or_b32 v{vA}, s84, v{vA}")
            addr()
            if o.lay == 1 and plain: a(f"s_bitcmp1_b32 s90, {i}")
            if o.lay != 2: a("s_waitcnt vmcnt(1)")
            sk = o.skip and i == 1
            if sk:
                a("s_cmp_lg_u32 s84, 0")
                a(f"s_cbranch_scc1 P2_nt{par}")
            if o.gfirst and not sk:
                a(f"ds_write_b128 v{vTw}, v[{g}:{g+3}]")
                a(f"buffer_load_dwordx4 v[{g}:{g+3}], v{vA}, s[8:11], 0 offen {o.gfl}")
                a(f"ds_read_b64_tr_b16 v[{A2}:{A2+1}], v{vTr}")
                a(f"ds_read_b64_tr_b16 v[{A2+2}:{A2+3}], v{vTr} offset:576")
            else:
                transpose(g)
                if sk: a(f"P2_nt{par}:")
                a(f"buffer_load_dwordx4 v[{g}:{g+3}], v{vA}, s[8:11], 0 offen {o.gfl}")
            if o.skip and i == NS - 1:
                a("s_cmp_lg_u32 s84, 0")
                a(f"s_cbranch_scc1 P2_last{par}")
            reads2(par, i, False)
            if i + 1 < NS: reads1(par, i + 1, False)
            if i == 0: a(f"v_cmp_le_u32 s[90:91], s85, v{vX}")
            if sk: a(f"s_cbranch_scc1 P2_nm{par}")
            if o.lay and plain:
                if o.lay == 2: a(f"s_bitcmp1_b32 s90, {i}")
                a("s_waitcnt lgkmcnt(1)")
                mfma2((i - 2) % NS, b)
            else:
                a(f"s_waitcnt lgkmcnt({4 if i + 1 < NS else 3})")
                mfma2((i - 2) % NS, b)
                if sk: a(f"P2_nm{par}:")
                a(f"s_bitcmp1_b32 s90, {i}")
                a(f"s_waitcnt lgkmcnt({1 if i + 1 < NS else 0})")
            for u in range(4): a(f"v_and_b32 v{b+u}, v{vM+u}, v{vC+u}")
            a(f"s_cbranch_scc1 P2_slow{par}_{i}")
            a(f"P2_back{par}_{i}:")
            if par == 0 and i in lstep:
                a("s_cmp_lg_u32 s42, 0")
                a(f"s_cbranch_scc1 P2_lazy{i}")
                a(f"P2_lazyb{i}:")
        if par == 0 and NL:
            a("s_cmp_eq_u32 s42, 0")
            a("s_cbranch_scc1 P2_nolz")
            a("s_mov_b32 s42, 0")
            a("s_waitcnt vmcnt(0)")
            lds_count(a, vX, XW + X_B)
            a("P2_nolz:")
        for u in range(4): a(f"v_mov_b32 v{vX+u}, {MARK}")
        for k in range(4):
            if k == 3: a("s_mov_b64 exec, s[92:93]")
            a(f"ds_write_b128 v{bR}, v[{vX}:{vX+3}] offset:{par*X1+1024*k}")
        a("s_mov_b64 exec, 1")
        a(f"v_mov_b32 v{vA}, 1")
        a("s_waitcnt lgkmcnt(0)")
        a(f"ds_add_rtn_u32 v{vA}, v0, v{vA} offset:{4*par}")
        a("s_lshr_b32 s40, s48, 1")
        a("s_mul_i32 s40, s40, 12")
        a("s_waitcnt lgkmcnt(0)")
        a(f"v_readfirstlane_b32 s41, v{vA}")
        a("s_mov_b64 exec, -1")
        a("s_sub_u32 s41, s41, s40")
        a(f"s_setprio {o.cb}")
        a(f"s_cmp_lt_u32 s41, {o.fb0}")
        a(f"s_cbranch_scc1 P2_round{1-par}")
        a(f"s_setprio {o.cb + 1}")
        a(f"s_cmp_lt_u32 s41, {o.fb1}")
        a(f"s_cbranch_scc1 P2_round{1-par}")
        a(f"s_setprio {o.cb + 2}")
        if par: a("s_branch P2_round0")
    for par in range(2 if o.skip else 0):
        a(f"P2_last{par}:")
        a("s_waitcnt lgkmcnt(0)")
        mfma2(NS - 3, B0 + 4 * ((par * NS + NS - 1) % 2))
        a(f"s_branch P2_back{par}_{NS-1}")
    for i in sorted(lstep):
        a(f"P2_lazy{i}:")
        for t in lstep[i]: lazy(t)
        a(f"s_branch P2_lazyb{i}")
    for par in range(2):
        for i in range(NS):
            a(f"P2_slow{par}_{i}:")
            reads1(par, i, True)
            a("s_waitcnt lgkmcnt(0)")
            a("s_mov_b64 exec, s[94:95]")
            a(f"v_mov_b32 v{vA}, {MARK}")
            a("s_mov_b64 exec, -1")
            addr()
            a(f"buffer_load_dwordx4 v[{vX}:{vX+3}], v{vA}, s[8:11], 0 offen")
            reads2(par, i, True)
            if i + 1 < NS: reads1(par, i + 1, False)
            a(f"s_waitcnt lgkmcnt({1 if i + 1 < NS else 0})")
            for u in range(4): a(f"v_and_b32 v{vM+u}, v{vM+u}, v{vC+u}")
            a("s_waitcnt vmcnt(0)")
            transpose(vX)
            a("s_waitcnt lgkmcnt(0)")
            mfma2(i, vM)
            a(f"s_branch P2_back{par}_{i}")
    vLo = 14; vSo = 15; vRb = 12; vWt = 13
    mreg = [0, 2, 4, 6, 8, 10, 16, 18, 20, 22, 24, 26, ACC, ACC + 2, ACC + 4, ACC + 6, ACC + 8]
    NPRE = 12
    def mload(i):
        a(f"buffer_load_dwordx2 v[{mreg[i]}:{mreg[i]+1}], v{vLo}, s[12:15], 0 offen")
        a(f"v_add_u32 v{vLo}, {512*32}, v{vLo}")
    for par in (1, 0):
        a(f"P2_drain{par}:")
        a("s_waitcnt lgkmcnt(0)")
        if par == 1: P.stamp()
        elif o.prof == 1: P.n -= 1; P.stamp()
        if o.prof == 1:
            srd(a, 52, 32, 0x100000, WS_PROF)
            a("s_lshl_b32 s56, s2, 4")
            a("s_add_u32 s56, s56, s3")
            a("s_lshl_b32 s56, s56, 7")
            a("v_lshrrev_b32 v12, 1, v13")
            a("v_add_u32 v12, s56, v12")
            a("s_bfm_b64 exec, 32, 0")
            a("buffer_store_dword v14, v12, s[52:55], 0 offen")
            a("s_mov_b64 exec, -1")
        if o.epr >= 0: a(f"s_setprio {o.epr}")
        a(f"v_mov_b32 v{vLo}, v{vSo}")
        for i in range(NPRE): mload(i)
        a(f"s_mov_b32 s51, {RB_AT[1 - par]}")
        for i in (NS, NS + 1):
            p = (par * NS + i) % 2
            a(f"s_waitcnt vmcnt({NS + 1 - i + NPRE})")
            transpose(G0 + 4 * p)
            a("s_waitcnt lgkmcnt(0)")
            mfma2(i - 2, B0 + 4 * p)
        if par == 1: a("s_branch P2_epi")
    a("P2_epi:")
    WS_ = 32; WR_ = 36; WU = 40; WD = 42; RB = 44; SS = 48; GG = 52; UU = 56; ZZ = 28
    a("s_lshl_b32 s47, s47, 3")
    a("s_add_u32 s47, s47, s44")
    a("s_lshl_b32 s47, s47, 9")
    a("s_add_u32 s51, s51, s47")
    a(f"v_add_u32 v{vRb}, s51, v{vWt}")
    a(f"v_add_u32 v{vWt}, {WT}, v{vWt}")
    lds_wait(a, UU, XW + X_R, 4, "r", 1)
    for k in range(6): a(f"ds_read_b64 v[{WS_+2*k}:{WS_+2*k+1}], v{vWt} offset:{512*k}")
    def rbread(k): a(f"ds_read_b64 v[{RB+2*(k%2)}:{RB+2*(k%2)+1}], v{vRb} offset:{512*k}")
    rbread(0); rbread(1)
    vm = [("m", i) for i in range(NPRE)]
    def mf(d, w, i):
        h = 2 * (i % 2); r = RB + 2 * ((i // 2) % 2)
        a(f"v_mfma_f32_16x16x16_bf16 v[{d}:{d+3}], v[{w+h}:{w+h+1}], v[{r}:{r+1}], 0")
    def pack(i):
        c0 = ACC + 4 * i
        for u in range(2): a(f"v_cvt_pk_bf16_f32 v{c0+u}, v{c0+2*u}, v{c0+2*u+1}")
    def mz(i):
        c0 = ACC + 4 * i
        a(f"v_mfma_f32_16x16x16_bf16 v[{ZZ}:{ZZ+3}], v[{WD}:{WD+1}], v[{c0}:{c0+1}], 0")
    def gate(i):
        c0 = ACC + 4 * i
        for c in (0, 2): a(f"v_pk_mul_f32 v[{c0+c}:{c0+c+1}], v[{SS+c}:{SS+c+1}], v[{ZZ+c}:{ZZ+c+1}]")
        pack(i)
    pack(0)
    a("s_waitcnt lgkmcnt(0)")
    mz(0); mf(SS, WS_, 0); mf(GG, WR_, 0)
    gate(0)
    for i in range(NS):
        c0 = ACC + 4 * i; m = mreg[i]; nx = i + 1 < NS
        if i == NS - 1:
            a("s_cmp_lt_u32 s50, 17")
            a("s_cbranch_scc1 P2_fin")
        a(f"v_mfma_f32_16x16x16_bf16 v[{UU}:{UU+3}], v[{WU}:{WU+1}], v[{c0}:{c0+1}], 0")
        if nx: pack(i + 1)
        lg = f" lgkmcnt({1 if i // 2 + 2 <= 8 else 0})" if nx and i % 2 == 1 else ""
        a(f"s_waitcnt vmcnt({len(vm) - 1 - vm.index(('m', i))})" + lg)
        if nx: mf(SS, WS_, i + 1)
        a(f"v_lshlrev_b32 v{c0}, 16, v{m}")
        a(f"v_and_b32 v{c0+1}, 0xffff0000, v{m}")
        if nx: mz(i + 1)
        a(f"v_lshlrev_b32 v{c0+2}, 16, v{m+1}")
        a(f"v_and_b32 v{c0+3}, 0xffff0000, v{m+1}")
        for c in (0, 2): a(f"v_pk_fma_f32 v[{c0+c}:{c0+c+1}], v[{UU+c}:{UU+c+1}], v[{GG+c}:{GG+c+1}], v[{c0+c}:{c0+c+1}]")
        if nx: mf(GG, WR_, i + 1)
        for u in range(2): a(f"v_cvt_pk_bf16_f32 v{m+u}, v{c0+2*u}, v{c0+2*u+1}")
        a(f"buffer_store_dwordx2 v[{m}:{m+1}], v{vSo}, s[28:31], 0 offen {o.ost}")
        vm.append(("s", i))
        if nx: gate(i + 1)
        a(f"v_add_u32 v{vSo}, {512*32}, v{vSo}")
        if i % 2 == 0 and i // 2 + 2 <= 8: rbread(i // 2 + 2)
        for k in (NPRE + 2 * i, NPRE + 2 * i + 1):
            if k < NS: mload(k); vm.append(("m", k))
    a("P2_fin:")
    if o.prof:
        P.stamp()
        a("s_waitcnt vmcnt(0)")
        P.stamp(True)
        P.dump(32, 0x80000, 34, 3)
    a("P2_end:")
    a("s_endpgm")

KD = """.amdhsa_kernel {name}
  .amdhsa_next_free_vgpr 128
  .amdhsa_next_free_sgpr 100
  .amdhsa_accum_offset 128
  .amdhsa_group_segment_fixed_size 0
  .amdhsa_kernarg_size 112
  .amdhsa_user_sgpr_count 2
  .amdhsa_user_sgpr_kernarg_segment_ptr 1
  .amdhsa_system_sgpr_workgroup_id_x 1
  .amdhsa_float_denorm_mode_32 3
.end_amdhsa_kernel
"""

NAME = "gather_scatter__molecular_angular_gemnet__graph_kernel"

def build(o):
    GUARD[0] = 1000000 if o.maxr else 0
    a = Asm(); P = Prof(a, o.prof, 1)
    xw, stg = gen_p1(o, a, P); gen_p2(o, a, P, xw, stg)
    body = a.finish()
    if o.a8:
        body, fixed, left = align8(body, o.a8 == 2)
        if o.v: print("align8 fixed", fixed, "left", left)
    ref = open("gather_scatter__molecular_angular_gemnet__graph.s.ref").read().split("\n")
    head = [l for l in ref if l.startswith(";") and "launch geometry" not in l and "Harness parses" not in l and "@launch" not in l]
    s = "\n".join(head) + "\n"
    s += """;
"""
    s += f"; @launch grid=(256,1,1) block=(1024,1,1) lds={xw + 64}\n"
    s += '.amdgcn_target "amdgcn-amd-amdhsa--gfx950"\n.text\n'
    s += f".globl {NAME}\n.p2align 8\n.type {NAME},@function\n{NAME}:\n" + body
    s += '.section .rodata,"a"\n.p2align 6\n' + KD.format(name=NAME)
    return s

def parser():
    p = argparse.ArgumentParser()
    p.add_argument("-S", type=int, default=11)
    for k, d in dict(prof=0, maxr=0, dstep=4, asplit=12, sw=1, psleep=2, csleep=2, gsleep=24, maxpoll=1000000, eprio=0, nd=4, pd=4, ce=0, pdr=3, al=0, al2=0, a8=0, lay=1, v=0, gfirst=1, unb=2, fpr=3, qpr=3, pub=1, pub0=1, wlate=0, dl1=0, cb=0, epr=-1, bpr=3, burst=1, ppr=3, fb0=6, fb1=10, cs=256, cg=14, ck=0, an0=12, sk=0, nf=2, ng=2, ssleep=1, wsh=50, skip=1, l0=10, pfs=16, pfd=1, own=1, swo=45000, swd=0, nornd=0, pp=5, nb=5, sw0=5, pf0=3, pfw=0, pfn=6, ldp=1, spr=2, f0=0, cpf=14, nl=4, lstep=0, fuse=1, cmap=2, rot=0).items():
        p.add_argument("--" + k, type=int, default=d)
    p.add_argument("--p1_ld", default="nt")
    p.add_argument("--p1_st", default="sc1")
    p.add_argument("--ost", default="nt")
    p.add_argument("--gfl", default="")
    p.add_argument("--xt", default="40516273")
    p.add_argument("-o", default="gather_scatter__molecular_angular_gemnet__graph.s")
    return p

if __name__ == "__main__":
    o = parser().parse_args()
    open(o.o, "w").write(build(o))
```
